```python
import torch

def _softmax(x, axis=-1):
    return torch.softmax(x, dim=axis)

def _gelu(x):
    return torch.nn.functional.gelu(x, approximate='tanh')

def _silu(x):
    return torch.nn.functional.silu(x)

def _sigmoid(x):
    return torch.sigmoid(x)

def _layernorm(x, axis=-1, eps=1e-05):
    m = x.mean(dim=axis, keepdim=True)
    v = x.var(dim=axis, keepdim=True, unbiased=False)
    return (x - m) / torch.sqrt(v + eps)

def _scatter_add(tgt, idx, src, axis=0):
    return tgt.clone().index_add_(axis, idx, src)

def _segment_sum(src, seg, n):
    out = torch.zeros((n,) + src.shape[1:], dtype=src.dtype)
    return out.index_add_(0, seg, src)

def _pad(x, pw):
    flat = tuple((v for pair in reversed(pw) for v in pair))
    return torch.nn.functional.pad(x, flat)
kernel_name = 'adaLN_cond__compressed_kv_cla__mixer_channel_mlp__prompt'

def setup_inputs():

    _w = lambda a: (lambda t: t.to(torch.bfloat16) if t.is_floating_point() else t)(torch.as_tensor(a))

    def _A_setup():
        B, H, Sq, Sk, D, M = (1, 32, 2048, 2048, 128, 512)
        Dc = 4 * D
        return {'x': _w((lambda *s: torch.randn(*s, dtype=torch.bfloat16) * 0.05)(B, Sq, M)), 'c_kv': _w((lambda *s: torch.randn(*s, dtype=torch.bfloat16) * 0.4)(B, Sk, Dc)), 'w_q': _w((lambda *s: torch.randn(*s, dtype=torch.bfloat16) * 3.2)(M, H, D) * M ** (-0.5)), 'w_uk': _w((lambda *s: torch.randn(*s, dtype=torch.bfloat16) * 3.2)(Dc, H, D) * Dc ** (-0.5)), 'w_uv': _w((lambda *s: torch.randn(*s, dtype=torch.bfloat16) * 0.4)(Dc, H, D) * Dc ** (-0.5)), 'w_o': _w((lambda *s: torch.randn(*s, dtype=torch.bfloat16) * 0.4)(H, D, M) * (H * D) ** (-0.5))}
    _A_in = _A_setup()

    def _B_setup():
        B, S, D, F = (1, 2048, 512, 1792)
        return {'x': _w((lambda *s: torch.randn(*s, dtype=torch.bfloat16) * 0.05)(B, S, D)), 'w1': _w((lambda *s: torch.randn(*s, dtype=torch.bfloat16) * 1.6)(D, F) * D ** (-0.5)), 'b1': _w((lambda *s: torch.randn(*s, dtype=torch.bfloat16) * 0.4)(F)), 'w2': _w((lambda *s: torch.randn(*s, dtype=torch.bfloat16) * 0.05)(F, D) * F ** (-0.5)), 'b2': _w((lambda *s: torch.randn(*s, dtype=torch.bfloat16) * 0.05)(D))}
    _B_in = _B_setup()
    return {'A_x': _A_in['x'], 'A_c_kv': _A_in['c_kv'], 'A_w_q': _A_in['w_q'], 'A_w_uk': _A_in['w_uk'], 'A_w_uv': _A_in['w_uv'], 'A_w_o': _A_in['w_o'], 'B_x': _B_in['x'], 'B_w1': _B_in['w1'], 'B_b1': _B_in['b1'], 'B_w2': _B_in['w2'], 'B_b2': _B_in['b2'], 'c': _w((lambda *s: torch.randn(*s, dtype=torch.bfloat16) * 0.1)(1, 512) * 8.0), 'w_mod': _w((lambda *s: torch.randn(*s, dtype=torch.bfloat16) * 0.1)(512, 6 * 512) * 512 ** (-0.5) * 8.0)}

def reference(A_x, A_c_kv, A_w_q, A_w_uk, A_w_uv, A_w_o, B_x, B_w1, B_b1, B_w2, B_b2, c, w_mod):

    def _A_ref(x, c_kv, w_q, w_uk, w_uv, w_o):
        B, Sq, M = (x.shape[0], x.shape[1], x.shape[2])
        Sk = c_kv.shape[1]
        H, D = (w_q.shape[1], w_q.shape[2])
        q = torch.einsum('bqm,mhd->bhqd', x, w_q)
        k = torch.einsum('bkc,chd->bhkd', c_kv, w_uk)
        v = torch.einsum('bkc,chd->bhkd', c_kv, w_uv)
        scores = torch.einsum('bhqd,bhkd->bhqk', q, k) * D ** (-0.5)
        off = Sk - Sq
        qi = torch.arange(Sq)[:, None]
        kj = torch.arange(Sk)[None, :]
        cmask = kj <= qi + off
        scores = torch.where(cmask[None, None], scores, -1000000000.0)
        p = _softmax(scores, axis=-1)
        ctx = torch.einsum('bhqk,bhkd->bhqd', p, v)
        return torch.einsum('bhqd,hdm->bqm', ctx, w_o)

    def _B_ref(x, w1, b1, w2, b2):
        y = _layernorm(x, axis=-1)
        h = _gelu(torch.einsum('bsd,df->bsf', y, w1) + b1)
        return torch.einsum('bsf,fd->bsd', h, w2) + b2
    x = A_x
    mod = (_silu(c) @ w_mod).reshape(c.shape[0], 6, 1, -1)
    sa, ca, ga, sb, cb, gb = (mod[:, 0].clone(), mod[:, 1].clone(), mod[:, 2].clone(), mod[:, 3].clone(), mod[:, 4].clone(), mod[:, 5].clone())
    h = _layernorm(x, axis=-1) * (1 + ca) + sa
    x = x + ga * _A_ref(h, A_c_kv, A_w_q, A_w_uk, A_w_uv, A_w_o)
    h = _layernorm(x, axis=-1) * (1 + cb) + sb
    x = x + gb * _B_ref(h, B_w1, B_b1, B_w2, B_b2)
    return x
```

```python
from core import *
MB = 1 << 20
WS_K = 0; WS_V = 16*MB; WS_H = 32*MB; WS_Z = 34*MB; WS_X1 = 36*MB; WS_STAT = 38*MB
WS_MODP = 39*MB; WS_MODF = 39*MB + 65536; WS_TS = 39*MB + 131072; WS_CTX = 40*MB; WS_H1 = 56*MB; WS_SIZE = 64*MB
OOB = 0x7ff00000
CSCALE = 1.4426950408889634 / (128 ** 0.5)
EPS = 1e-5
import struct
def fbits(x): return "0x%08x" % struct.unpack("<I", struct.pack("<f", x))[0]
ARG = dict(x=0, ckv=1, wq=2, wuk=3, wuv=4, wo=5, bx=6, w1=7, b1=8, w2=9, b2=10, c=11, wmod=12, out=13, dbg=14, ws=15)
def P(n): return 44 + 2*ARG[n]
def load_args():
    return ["s_load_dwordx16 s[44:59], s[0:1], 0", "s_load_dwordx16 s[60:75], s[0:1], 64"]

class Slot:
    def __init__(self, mf, pre=None):
        self.pre = pre or []; self.mf = mf; self.mem = []; self.alu = []
    def items(self): return [self.pre, self.mf, self.mem, self.alu]
def spread(slots, groups, start, end, where="alu"):
    m = end - start; n = len(groups)
    for k, g in enumerate(groups):
        i = start + (k * m) // max(n, 1)
        getattr(slots[i], where).append(g)
def emit_slots(slots): return [s.items() for s in slots]

def code_prefetch(lbl_start, nbytes, sreg, vtmp, vdst, tidreg="v0"):
    o = [f"s_getpc_b64 s[{sreg}:{sreg+1}]",
         f"s_add_u32 s{sreg}, s{sreg}, {lbl_start}-.+0",
         f"s_addc_u32 s{sreg+1}, s{sreg+1}, 0",
         f"s_mov_b32 s{sreg+2}, {nbytes}", f"s_mov_b32 s{sreg+3}, 0x20000",
         f"v_lshlrev_b32 v{vtmp}, 7, {tidreg}"]
    return o

import sys as _sys
CYC = "cyc" in _sys.argv
def stamp(i): return I(f"{'s_memtime' if CYC else 's_memrealtime'} s[{44+2*i}:{45+2*i}]")
def dump_stamps(kidx, sWS, sW, n=16, clk=False):
    o = ["s_waitcnt vmcnt(0)", "s_memrealtime s[98:99]", "s_waitcnt lgkmcnt(0)", "v_mov_b32 v2, s96", "v_mov_b32 v3, s98",
         "s_lshl_b32 s100, s2, 2", f"s_add_u32 s100, s100, s{sW}", "s_lshl_b32 s101, s100, 3", f"s_add_u32 s101, s101, {WS_TS + kidx*8192}",
         f"buffer_store_dwordx2 v[2:3], off, s[{sWS}:{sWS+3}], s101", "s_lshl_b32 s101, s100, 6", f"s_add_u32 s101, s101, {WS_TS + 65536 + kidx*65536}"]
    for q in range(0, n, 4):
        o += [f"v_mov_b32 v{4+j}, s{44+2*(q+j)}" for j in range(4)]
        o += [f"buffer_store_dwordx4 v[4:7], off, s[{sWS}:{sWS+3}], s101 offset:{q*4}", "s_nop 1"]
    return o
```

```python
import re

class It:
    __slots__ = ("t", "vm", "lg", "wvm", "wlg", "k")
    def __init__(self, t=None, vm=None, lg=None, wvm=None, wlg=None, k=None):
        self.t = t; self.vm = vm; self.lg = lg; self.wvm = wvm; self.wlg = wlg; self.k = k
    def __repr__(self): return f"It({self.t},{self.vm},{self.lg},{self.wvm},{self.wlg})"

def I(t): return It(t)
def VM(t, tag="_"): return It(t, vm=tag)
def LG(t, tag="_"): return It(t, lg=tag)
def W(vm=None, lg=None): return It(None, wvm=vm, wlg=lg)
def L(name): return It(name + ":", k="label")
def RESET(): return It(None, k="reset")

def flat(x):
    out = []
    for e in x:
        if isinstance(e, (list, tuple)): out += flat(e)
        elif isinstance(e, str):
            for ln in e.strip().split("\n"):
                ln = ln.strip()
                if ln: out.append(L(ln[:-1]) if ln.endswith(":") else I(ln))
        elif e is not None: out.append(e)
    return out

def resolve_waits(items, pre_vm=(), pre_lg=()):
    vm = list(pre_vm); lg = list(pre_lg); vdone = 0; ldone = 0
    out = []
    for it in items:
        if it.k == "reset":
            vm = []; lg = []; vdone = 0; ldone = 0
            continue
        if it.t is None:
            parts = []
            for tags, lst, done, mx, nm in ((it.wvm, vm, vdone, 63, "vmcnt"), (it.wlg, lg, ldone, 15, "lgkmcnt")):
                if tags is None: continue
                if tags == "*": idx = len(lst) - 1
                else:
                    if isinstance(tags, (str, tuple)): tags = [tags]
                    idx = -1
                    for tg in tags:
                        pos = [i for i, x in enumerate(lst) if x == tg]
                        assert pos, f"wait for unknown tag {tg}"
                        idx = max(idx, pos[-1])
                if idx + 1 <= done: continue
                n = min(len(lst) - 1 - idx, mx)
                parts.append(f"{nm}({n})")
                if nm == "vmcnt": vdone = len(lst) - n
                else: ldone = len(lst) - n
            if parts: out.append(I("s_waitcnt " + " ".join(parts)))
            continue
        if it.vm is not None: vm.append(it.vm)
        if it.lg is not None: lg.append(it.lg)
        m = re.match(r"s_waitcnt (.*)", it.t)
        if m and it.k != "cond":
            for nm, n in re.findall(r"(vmcnt|lgkmcnt)\((\d+)\)", m.group(1)):
                n = int(n)
                if nm == "vmcnt": vdone = max(vdone, len(vm) - n)
                else: ldone = max(ldone, len(lg) - n)
        out.append(it)
    return out

_reg = re.compile(r"(?<![\w.])(-|\|)?([vas])(?:(\d+)\b|\[(\d+)(?::(\d+))?\])")
def regs_of(op):
    s = set()
    for m in _reg.finditer(op):
        f = m.group(2)
        if m.group(3) is not None: s.add((f, int(m.group(3))))
        else:
            a = int(m.group(4)); b = int(m.group(5)) if m.group(5) else a
            s.update((f, i) for i in range(a, b + 1))
    if re.search(r"\bvcc\b", op): s.update({("s", "vcc")})
    if re.search(r"\bexec\b", op): s.add(("s", "exec"))
    if re.search(r"\bm0\b", op): s.add(("s", "m0"))
    return s

TRANS = ("v_exp_", "v_log_", "v_rcp_", "v_rsq_", "v_sqrt_", "v_sin_", "v_cos_")
class Dec:
    pass
def decode(t):
    d = Dec()
    t0 = t.split(";")[0].strip()
    sp = t0.split(None, 1)
    mn = sp[0]; rest = sp[1] if len(sp) > 1 else ""
    ops = [o.strip() for o in re.split(r",(?![^\[]*\])", rest)] if rest else []
    d.mn = mn; d.w = set(); d.r = set(); d.c = set(); d.ab = set()
    d.mfma = mn.startswith("v_mfma"); d.valu = mn.startswith("v_") and not d.mfma
    d.vmem = mn.startswith(("buffer_", "global_")); d.ds = mn.startswith("ds_"); d.salu = mn.startswith("s_")
    d.trans = mn.startswith(TRANS); d.dpp = ("_dpp" in mn) or ("row_" in rest) or ("quad_perm" in rest)
    d.perm = mn.startswith("v_permlane"); d.lds_dma = d.vmem and re.search(r"\blds\b", rest) is not None
    d.ws = 1; d.passes = 0; d.widestore = False; d.sdata = set()
    if mn == "s_nop": d.ws = int(ops[0]) + 1; return d
    if d.mfma:
        d.passes = 4 if "16x16" in mn else 8
        d.w = regs_of(ops[0]); d.ab = regs_of(ops[1]) | regs_of(ops[2]); d.c = regs_of(ops[3]); d.r = d.ab | d.c
    elif d.valu:
        if d.perm: d.w = regs_of(ops[0]) | regs_of(ops[1]); d.r = set(d.w)
        else:
            d.w = regs_of(ops[0]); srcs = ops[1:]
            if mn.startswith(("v_add_co", "v_sub_co", "v_addc_co", "v_subb_co")):
                d.w |= regs_of(ops[1]); srcs = ops[2:]
            for o in srcs: d.r |= regs_of(o)
            if mn.startswith(("v_fmac", "v_writelane", "v_pk_fmac")) or d.dpp: d.r |= regs_of(ops[0])
            if mn.startswith("v_cmpx"): d.w.add(("s", "exec"))
    elif d.vmem:
        if mn in ("buffer_inv", "buffer_wbl2"): return d
        if "_load" in mn and not d.lds_dma:
            d.w = regs_of(ops[0])
            for o in ops[1:]: d.r |= regs_of(o)
        else:
            for o in ops: d.r |= regs_of(o)
            if "_store" in mn or "_atomic" in mn:
                d.sdata = regs_of(ops[0])
                d.widestore = ("x3" in mn or "x4" in mn)
                if "_atomic" in mn and "sc0" in rest: d.w = regs_of(ops[0])
        if d.lds_dma: d.r.add(("s", "m0"))
    elif d.ds:
        if mn.startswith(("ds_read", "ds_bpermute", "ds_permute", "ds_swizzle")):
            d.w = regs_of(ops[0])
            for o in ops[1:]: d.r |= regs_of(o)
        else:
            for o in ops: d.r |= regs_of(o)
    elif d.salu:
        if mn.startswith(("s_cmp", "s_cbranch", "s_branch", "s_waitcnt", "s_barrier", "s_endpgm", "s_setprio", "s_sleep", "s_bitcmp")):
            for o in ops: d.r |= regs_of(o)
            if "vcc" in mn: d.r.add(("s", "vcc"))
        else:
            if ops: d.w = regs_of(ops[0])
            for o in ops[1:]: d.r |= regs_of(o)
            if "saveexec" in mn: d.w.add(("s", "exec"))
    return d

def need(p, c):
    n = 0
    vw = {r for r in p.w if r[0] in "va"}; sw = {r for r in p.w if r[0] == "s"}
    if p.mfma:
        big = {4: 8, 8: 12}[p.passes]
        if c.mfma:
            if vw & c.ab: n = max(n, big)
            if vw & c.c and not (vw == c.c and p.passes == c.passes): n = max(n, big - 2)
            if vw & c.w and not (vw == c.c and p.passes == c.passes) and not (vw & c.c): n = max(n, big - 2)
        elif c.valu or c.vmem or c.ds:
            if vw & (c.r | c.w): n = max(n, big)
        if c.valu and (p.c & c.w): n = max(n, {4: 3, 8: 7}[p.passes])
    if p.valu:
        if c.mfma and vw & c.r: n = max(n, 2)
        if p.trans and c.valu and vw & c.r: n = max(n, 1)
        if c.perm and vw & c.r: n = max(n, 2)
        if c.valu and c.dpp and vw & c.r: n = max(n, 2)
        if c.mn.startswith(("v_readfirstlane", "v_readlane")) and vw & c.r: n = max(n, 1)
        if sw:
            if c.vmem and sw & c.r: n = max(n, 5)
            if c.valu and sw & c.r: n = max(n, 4 if c.mn.startswith(("v_readlane", "v_writelane")) else 2)
            if c.salu and sw & c.r: n = max(n, 1)
            if ("s", "exec") in sw and (c.mfma or c.perm or c.mn.startswith(("v_readfirstlane", "v_readlane"))): n = max(n, 4)
            if ("s", "exec") in sw and c.dpp: n = max(n, 5)
    if p.salu and ("s", "m0") in p.w and c.lds_dma: n = max(n, 1)
    if p.widestore and (p.sdata & c.w): n = max(n, 2)
    return n

MAXWS = 12
def fix_hazards(items, stats=None):
    out = []; hist = []
    for it in items:
        if it.k == "label" or it.t.startswith("."):
            out.append(it); continue
        d = decode(it.t)
        dist = 0; pad = 0
        for p in reversed(hist):
            if dist >= MAXWS: break
            nd = need(p, d)
            if nd > dist: pad = max(pad, nd - dist)
            dist += p.ws
        if pad:
            out.append(I(f"s_nop {pad-1}")); hist.append(decode(f"s_nop {pad-1}"))
            if stats is not None: stats.append((pad, it.t))
        out.append(it); hist.append(d)
        if len(hist) > 40: hist = hist[-20:]
    return out

def check_branches(items):
    ins = []; lab = {}
    for it in items:
        if it.k == "label": lab[it.t[:-1]] = len(ins)
        elif not it.t.startswith("."): ins.append(it.t)
    dec = [decode(t) for t in ins]
    errs = []
    for i, t in enumerate(ins):
        m = re.match(r"s_c?branch\w*\s+(\S+)", t)
        if not m or m.group(1) not in lab: continue
        j0 = lab[m.group(1)]
        d0 = 0
        for j in range(j0, min(j0 + MAXWS, len(ins))):
            dist = d0
            for k in range(i, max(i - MAXWS, -1), -1):
                if dist >= MAXWS: break
                if need(dec[k], dec[j]) > dist: errs.append((ins[k], t, ins[j]))
                dist += dec[k].ws
            d0 += dec[j].ws
            if d0 >= MAXWS or ins[j].startswith(("s_branch", "s_endpgm")): break
    return errs

def interleave(slots, bg, start=0, end=None):
    n = len(slots); end = n if end is None else end
    m = end - start; k = 0
    for i in range(start, end):
        tgt = ((i - start + 1) * len(bg) + m - 1) // m if bg else 0
        while k < min(tgt, len(bg)):
            slots[i].append(bg[k]); k += 1
    return slots

def vr(b, n=1, f="v"):
    return f"{f}{b}" if n == 1 else f"{f}[{b}:{b+n-1}]"
def ar(b, n=1): return vr(b, n, "a")
def sr(b, n=1): return vr(b, n, "s")

def srd(d, base, nbytes, off=0):
    o = []
    if off:
        o += [f"s_add_u32 s{d}, s{base}, {off:#x}", f"s_addc_u32 s{d+1}, s{base+1}, 0"]
    else:
        o += [f"s_mov_b32 s{d}, s{base}", f"s_mov_b32 s{d+1}, s{base+1}"]
    o += [f"s_mov_b32 s{d+2}, {nbytes:#x}", f"s_mov_b32 s{d+3}, 0x20000"]
    return o

def kernel_text(name, items, show_nops=False):
    items = resolve_waits(flat(items))
    st = []
    items = fix_hazards(items, st)
    errs = check_branches(items)
    assert not errs, errs
    if show_nops:
        for p, t in st: print(f"  [{name}] nop {p} before {t}")
    body = "\n".join(("" if it.k == "label" else "  ") + it.t for it in items)
    n = sum(1 for it in items if it.k != "label")
    return f".globl {name}\n.p2align 8\n.type {name},@function\n{name}:\n{body}\n", n

def descriptor(name, vgpr=512, accum=256, sgpr=102):
    return f""".p2align 6
.amdhsa_kernel {name}
  .amdhsa_next_free_vgpr {vgpr}
  .amdhsa_next_free_sgpr {sgpr}
  .amdhsa_accum_offset {accum}
  .amdhsa_group_segment_fixed_size 0
  .amdhsa_kernarg_size 128
  .amdhsa_user_sgpr_count 2
  .amdhsa_user_sgpr_kernarg_segment_ptr 1
  .amdhsa_system_sgpr_workgroup_id_x 1
.end_amdhsa_kernel
"""
```

```python
from common import *

def k1(name, ts=False, prefetch=None):
    sCKV, sWK, sWV, sWS, sMOD, sC, sX, sDBG, sCODE = 8, 12, 16, 20, 24, 28, 32, 36, 40
    sW, sHEAD, sKB = 3, 4, 5
    sCOFF, sWKOFF, sWVOFF, sT0, sT1, sKST, sM0C, sM0K, sM0V = 76, 77, 78, 79, 80, 81, 82, 83, 84
    sMST, sATO, sADD, sMF, sMEAN0, sMEAN1, sRS0, sRS1, sHST, sSPIN, sVST = 85, 86, 87, 88, 89, 90, 91, 92, 93, 94, 95
    vL16, vCD, vWD, vTR, vCR, vT = 1, 2, 6, 10, 14, 16
    WF, X, ACC = 32, 64, 128
    MISC, RING, CBUF = 0, 16384, 98304
    MODRED, MODV, HST = 0, 1024, 5120
    LA = 4
    o = []
    o += ["s_cmp_ge_u32 s2, 256", f"s_cbranch_scc1 Lend_{name}"] + load_args()
    if ts: o += ["s_memrealtime s[96:97]"]
    if prefetch:
        o += code_prefetch(prefetch[0], prefetch[1], sCODE, vT, vT+1)
        for i in range(0, prefetch[1], 32768):
            o += [f"s_mov_b32 s{sT0}, {i}", VM(f"buffer_load_dword v{vT+1}, v{vT}, s[{sCODE}:{sCODE+3}], s{sT0} offen", "code")]
    o += [f"""
    v_lshrrev_b32 v{vT+2}, 6, v0
    v_and_b32 v0, 63, v0
    v_readfirstlane_b32 s{sW}, v{vT+2}
    v_lshlrev_b32 v{vL16}, 4, v0
    s_and_b32 s{sHEAD}, s2, 7
    s_lshl_b32 s{sHEAD}, s{sHEAD}, 2
    s_bfe_u32 s{sT0}, s2, 0x20003
    s_add_u32 s{sHEAD}, s{sHEAD}, s{sT0}
    s_lshr_b32 s{sKB}, s2, 5
    v_lshrrev_b32 v{vT+2}, 3, v0
    v_and_b32 v{vT+3}, 7, v0
    """]
    r8, c8 = vT+2, vT+3
    o += [f"""
    v_mul_u32_u24 v{vT+4}, 6144, v{r8}
    v_lshl_add_u32 v{vT+4}, v{c8}, 4, v{vT+4}
    v_lshlrev_b32 v{vT+5}, 1, v{r8}
    s_and_b32 s{sT0}, s2, 3
    s_lshl_b32 s{sT0}, s{sT0}, 7
    s_lshl_b32 s{sT1}, s{sW}, 5
    s_add_u32 s{sT0}, s{sT0}, s{sT1}
    s_waitcnt lgkmcnt(0)
    """]
    o += srd(sMOD, P("wmod"), 512*6144) + srd(sC, P("c"), 1024)
    o += [f"""
    s_cmp_lt_u32 s2, 192
    s_cselect_b32 s{sMOD+2}, s{sMOD+2}, 0
    s_lshl_b32 s{sT1}, s{sT0}, 1
    s_mul_i32 s{sT0}, s{sT0}, 6144
    s_lshr_b32 s{sMST}, s2, 2
    s_lshl_b32 s{sMST}, s{sMST}, 7
    s_add_u32 s{sT0}, s{sT0}, s{sMST}
    """]
    MW, MC, MA, MT = 128, 144, 148, 156
    for n in range(4):
        o += [VM(f"buffer_load_ushort v{MC+n}, v{vT+5}, s[{sC}:{sC+3}], s{sT1} offen offset:{16*n}", "modc")]
    for n in range(4):
        o += [VM(f"buffer_load_dwordx4 v[{MW+4*n}:{MW+4*n+3}], v{vT+4}, s[{sMOD}:{sMOD+3}], s{sT0} offen", ("modw", n))]
        if n < 3: o += [f"s_add_u32 s{sT0}, s{sT0}, {8*6144}"]
    o += srd(sCKV, P("ckv"), 2*MB) + srd(sWK, P("wuk"), 4*MB)
    o += [f"v_lshrrev_b32 v{vT+6}, 1, v{r8}", f"v_xor_b32 v{vT+6}, v{vT+6}, v{c8}", f"v_lshlrev_b32 v{vT+6}, 4, v{vT+6}",
          f"v_lshl_add_u32 v{vCD}, v{r8}, 10, v{vT+6}"]
    o += [f"v_xor_b32 v{vCD+1}, 64, v{vCD}", f"v_add_u32 v{vCD+1}, {7*1024}, v{vCD+1}",
          f"v_add_u32 v{vCD+2}, {14*1024}, v{vCD}", f"v_add_u32 v{vCD+3}, {14*1024}, v{vCD+1}"]
    o += [f"v_and_b32 v{vT+6}, 2, v{r8}", f"v_xor_b32 v{vT+6}, v{vT+6}, v{c8}", f"v_lshlrev_b32 v{vT+6}, 4, v{vT+6}",
          f"v_lshl_add_u32 v{vWD}, v{r8}, 13, v{vT+6}",
          f"v_xor_b32 v{vWD+1}, 64, v{vWD}", f"v_add_u32 v{vWD+1}, {65536-1024}, v{vWD+1}",
          f"v_add_u32 v{vWD+2}, {2*(65536-1024)}, v{vWD}", f"v_add_u32 v{vWD+3}, {2*(65536-1024)}, v{vWD+1}"]
    o += [f"""
    s_lshl_b32 s{sCOFF}, s{sKB}, 18
    s_lshl_b32 s{sT0}, s{sW}, 16
    s_add_u32 s{sCOFF}, s{sCOFF}, s{sT0}
    s_lshl_b32 s{sM0C}, s{sW}, 14
    s_add_u32 s{sM0C}, s{sM0C}, {CBUF}
    s_and_b32 s{sT0}, s{sW}, 1
    s_lshl_b32 s{sWKOFF}, s{sT0}, 18
    s_lshr_b32 s{sT1}, s{sW}, 1
    s_lshl_b32 s{sT1}, s{sT1}, 7
    s_add_u32 s{sWKOFF}, s{sWKOFF}, s{sT1}
    s_lshl_b32 s{sT1}, s{sHEAD}, 8
    s_add_u32 s{sWKOFF}, s{sWKOFF}, s{sT1}
    s_lshl_b32 s{sWVOFF}, s{sW}, 18
    s_add_u32 s{sWVOFF}, s{sWVOFF}, s{sT1}
    s_lshl_b32 s{sM0K}, s{sW}, 12
    """]
    def c_dma(i):
        g = []
        for hh in range(2):
            grp = [f"s_add_u32 m0, s{sM0C}, {(i&1)*8192 + hh*4096}", f"s_add_u32 s{sT0}, s{sCOFF}, {i*128 + hh*32768}"]
            for n in range(4):
                grp.append(VM(f"buffer_load_dwordx4 v{vCD+n}, s[{sCKV}:{sCKV+3}], s{sT0} offen offset:{n*1024} lds", ("c", i)))
                g.append(grp); grp = []
        return g
    def page(q): return RING + (q % 5) * 16384
    def w_dma(q):
        if q < 8: sd, off = sWK, f"s_add_u32 s{sT1}, s{sWKOFF}, {q*64*8192}"
        else: sd, off = sWV, f"s_add_u32 s{sT1}, s{sWVOFF}, {((q-8)&3)*128*8192 + ((q-8)>>2)*128}"
        g = []; grp = [f"s_add_u32 m0, s{sM0K}, {page(q)}", off]
        for n in range(4):
            grp.append(VM(f"buffer_load_dwordx4 v{vWD+n}, s[{sd}:{sd+3}], s{sT1} offen offset:{n*1024} lds", ("w", q)))
            g.append(grp); grp = []
        return g
    o += [c_dma(0), w_dma(0), c_dma(1), w_dma(1)] + srd(sWV, P("wuv"), 4*MB) + [w_dma(2), w_dma(3), w_dma(4)]
    o += srd(sWS, P("ws"), WS_SIZE) + srd(sX, P("x"), 2*MB) + srd(sDBG, P("dbg"), 256)
    o += [f"""
    v_lshrrev_b32 v{vT+6}, 4, v0
    v_bfe_u32 v{vT+7}, v0, 2, 2
    v_lshl_add_u32 v{vT+8}, v{vT+6}, 3, v{vT+7}
    v_lshlrev_b32 v{vT+8}, 7, v{vT+8}
    v_and_b32 v{vT+9}, 3, v0
    v_lshl_add_u32 v{vT+8}, v{vT+9}, 3, v{vT+8}
    v_and_b32 v{vT+9}, 1, v{vT+6}
    v_lshlrev_b32 v{vT+9}, 1, v{vT+9}
    v_lshrrev_b32 v{vT+10}, 1, v{vT+7}
    v_or_b32 v{vT+9}, v{vT+9}, v{vT+10}
    v_lshl_add_u32 v{vTR}, v{vT+9}, 5, v{vT+8}
    v_xor_b32 v{vTR+1}, 32, v{vTR}
    v_xor_b32 v{vTR+2}, 64, v{vTR}
    v_xor_b32 v{vTR+3}, 0x60, v{vTR}
    """]
    o += [f"""
    v_and_b32 v{vT+7}, 15, v0
    v_lshrrev_b32 v{vT+8}, 1, v{vT+7}
    v_xor_b32 v{vT+8}, v{vT+8}, v{vT+6}
    v_lshlrev_b32 v{vT+8}, 4, v{vT+8}
    v_lshl_add_u32 v{vT+8}, v{vT+7}, 7, v{vT+8}
    v_add_u32 v{vCR}, s{sM0C}, v{vT+8}
    v_xor_b32 v{vCR+1}, 64, v{vCR}
    """]
    o += [f"""
    s_lshl_b32 s{sKST}, s{sHEAD}, 19
    s_lshl_b32 s{sT0}, s{sKB}, 16
    s_add_u32 s{sKST}, s{sKST}, s{sT0}
    s_lshl_b32 s{sT0}, s{sW}, 14
    s_add_u32 s{sKST}, s{sKST}, s{sT0}
    s_add_u32 s{sVST}, s{sKST}, {WS_V}
    s_and_b32 s{sT0}, s2, 3
    s_mul_i32 s{sT0}, s{sT0}, 12288
    s_lshl_b32 s{sMST}, s{sMST}, 1
    s_add_u32 s{sMST}, s{sMST}, s{sT0}
    s_add_u32 s{sMST}, s{sMST}, {WS_MODP}
    s_cmp_lt_u32 s2, 192
    s_cselect_b32 s{sT0}, s{sW}, 1
    s_cmp_eq_u32 s{sT0}, 0
    s_cselect_b32 s{sMST}, s{sMST}, {OOB:#x}
    s_cselect_b32 s{sATO}, 0, 256
    s_cmp_ge_u32 s{sW}, 2
    s_cselect_b32 s{sADD}, 1.0, 0
    """]
    o += [W(vm="modc")]
    for n in range(4): o += [f"v_lshlrev_b32 v{MC+n}, 16, v{MC+n}"]
    for n in range(4): o += [f"v_mul_f32 v{MT+n}, {fbits(-1.4426950408889634)}, v{MC+n}"]
    for n in range(4): o += [f"v_exp_f32 v{MT+n}, v{MT+n}"]
    for n in range(4): o += [f"v_add_f32 v{MT+n}, 1.0, v{MT+n}"]
    for n in range(4): o += [f"v_rcp_f32 v{MT+n}, v{MT+n}"]
    for n in range(4): o += [f"v_mul_f32 v{MC+n}, v{MC+n}, v{MT+n}"]
    for n in range(4): o += [f"v_cvt_pk_bf16_f32 v{MC+n}, v{MC+n}, v{MC+n}"]
    for n in range(4): o += [f"v_lshlrev_b32 v{MC+n}, 16, v{MC+n}"]
    for n in range(4):
        o += [W(vm=[("modw", n)])]
        for j in range(4):
            o += [f"v_lshlrev_b32 v{MT}, 16, v{MW+4*n+j}", f"v_and_b32 v{MT+1}, 0xffff0000, v{MW+4*n+j}"]
            if n == 0: o += [f"v_mul_f32 v{MA+2*j}, v{MC}, v{MT}", f"v_mul_f32 v{MA+2*j+1}, v{MC}, v{MT+1}"]
            else: o += [f"v_fmac_f32 v{MA+2*j}, v{MC+n}, v{MT}", f"v_fmac_f32 v{MA+2*j+1}, v{MC+n}, v{MT+1}"]
    for j in range(8): o += [f"v_add_f32_dpp v{MA+j}, v{MA+j}, v{MA+j} row_ror:8 row_mask:0xf bank_mask:0xf"]
    for j in range(0, 8, 2): o += [f"v_permlane16_swap_b32 v{MA+j}, v{MA+j+1}"]
    for j in range(0, 8, 2): o += [f"v_add_f32 v{MA+j}, v{MA+j}, v{MA+j+1}"]
    for j in (0, 4): o += [f"v_permlane32_swap_b32 v{MA+j}, v{MA+j+2}"]
    for j in (0, 4): o += [f"v_add_f32 v{MA+j}, v{MA+j}, v{MA+j+2}"]
    o += [f"""
    v_lshrrev_b32 v{MT}, 4, v0
    v_lshl_add_u32 v{MT}, v{c8}, 3, v{MT}
    v_lshlrev_b32 v{MT}, 2, v{MT}
    s_lshl_b32 s{sT0}, s{sW}, 8
    v_add_u32 v{MT}, s{sT0}, v{MT}
    """, LG(f"ds_write_b32 v{MT}, v{MA} offset:{MODRED}", "mr"), LG(f"ds_write_b32 v{MT}, v{MA+4} offset:{MODRED+16}", "mr"),
    f"v_lshlrev_b32 v{vT+4}, 2, v0", f"v_lshlrev_b32 v{vT+5}, 8, v0", f"v_mov_b32 v{vT+6}, 1"]
    def Cfrag(kt, s): return ar((s*4+kt)*4, 4)
    def c_reads(i):
        return [LG(f"ds_read_b128 {Cfrag(kt, 2*i+sp)}, v{vCR+sp} offset:{(i&1)*8192 + kt*2048}", ("cr", i)) for sp in range(2) for kt in range(4)]
    o += [W(vm=[("c", 0)]), c_reads(0), W(vm=[("w", 0)], lg="mr"), "s_barrier"]
    frags = []
    def accK(dt, kt): return ACC + (dt*4+kt)*4
    for p in range(8):
        for sp in range(2):
            for dt in range(8):
                s = 2*p+sp
                frags.append((p, (dt >> 2)*8192 + sp*4096, dt & 3,
                              [(accK(dt, kt), "W", Cfrag(kt, s), s == 0) for kt in range(4)]))
    for s in range(16):
        for t in range(4):
            frags.append((8 + (s >> 2), (s & 3)*4096, t, [(X + (t*4+kt)*4, Cfrag(kt, s), "W", s == 0) for kt in range(4)]))
    for hb in range(2):
        for s in range(16):
            for t in (2*hb, 2*hb+1):
                frags.append((12 + (s >> 2), (s & 3)*4096, t, [(ACC + (t*4+kt)*4, Cfrag(kt, s), "W", s == 0) for kt in range(4)]))
    slots = []
    for f, (q, off, t, mf) in enumerate(frags):
        wf = vr(WF + (f % 8)*4, 4)
        for n, (d, a, b, first) in enumerate(mf):
            a = wf if a == "W" else a; b = wf if b == "W" else b
            sl = Slot(I(f"v_mfma_f32_16x16x32_bf16 {vr(d,4)}, {a}, {b}, {'0' if first else vr(d,4)}"))
            if n == 0:
                sl.pre.append(W(lg=[("wf", f)]))
                if f < 128 and f % 16 == 0: sl.pre.append(W(lg=[("cr", f//16)]))
            slots.append(sl)
    wbase = [0]; valid = {0}; bar_slot = {}
    def frag_reads(f):
        q, off, t, _ = frags[f]
        a = page(q) + off; g = []
        wb = 0 if a < 65536 else 65536
        if wb != wbase[0]:
            d = (wb - wbase[0]) & 0xffffffff
            g += [f"v_add_u32 v{vTR+i}, {d:#x}, v{vTR+i}" for i in range(4)]; wbase[0] = wb
        r = WF + (f % 8)*4
        return g, [LG(f"ds_read_b64_tr_b16 {vr(r+2*hh,2)}, v{vTR+t} offset:{a - wb + hh*512}", ("wf", f)) for hh in range(2)]
    for f in range(LA):
        g, rd = frag_reads(f); o += g + rd
    for f in range(LA, len(frags)):
        q = frags[f][0]; i = (f - LA)*4
        if q not in valid:
            qs = [q, q+1] if q == 13 else [q]
            valid.update(qs); bar_slot[q] = i - 1
            slots[i-1].alu += [W(vm=[("w", x) for x in qs]), "s_barrier"]
        g, rd = frag_reads(f)
        slots[i-1].alu += g
        slots[i].mem.append(rd[0]); slots[i+1].mem.append(rd[1])
    for q in range(5, 16):
        b = bar_slot[q-3] + 1
        for n, g in enumerate(w_dma(q)): slots[b + 2 + 4*n].mem.append(g)
    for n, g in enumerate(c_dma(2)): slots[2 + 4*n + (n & 1)*0 + 1].mem.append(g)
    for p in range(7):
        b = p*64 + (36 if p == 0 else 4)
        rd = c_reads(p+1)
        slots[b].mem.append(W(vm=[("c", p+1)]))
        for n, r in enumerate(rd): slots[b + 2 + (n >> 1)*4 + (n & 1)].mem.append(r)
        if p + 3 < 8:
            b2 = b + 20 if p > 0 else 64 + 24
            if p == 0:
                b2 = 56
            slots[b2].mem.append(W(lg=[("cr", p+1)]))
            for n, g in enumerate(c_dma(p+3)): slots[b2 + 2 + (n >> 1)*4 + (n & 1)].mem.append(g)
    MR = vT + 8
    spread(slots, [LG(f"ds_read2st64_b32 v[{MR}:{MR+1}], v{vT+4} offset0:0 offset1:1", "mr2"),
                   LG(f"ds_read2st64_b32 v[{MR+2}:{MR+3}], v{vT+4} offset0:2 offset1:3", "mr2")], 6, 12, "mem")
    spread(slots, [[W(lg="mr2"), f"v_add_f32 v{MR}, v{MR}, v{MR+1}"], f"v_add_f32 v{MR+2}, v{MR+2}, v{MR+3}",
                   f"v_add_f32 v{MR}, v{MR}, v{MR+2}"], 16, 22)
    slots[26].mem.append(VM(f"buffer_store_dword v{MR}, v{vT+4}, s[{sWS}:{sWS+3}], s{sMST} offen sc1", "mst"))
    slots[150].mem += [W(vm="mst"), VM(f"buffer_atomic_add v{vT+6}, v{vT+5}, s[{sDBG}:{sDBG+3}], s{sATO} offen sc1")]
    def pack_store(qa, qb, sreg, off):
        g = [f"v_cvt_pk_bf16_f32 v{qa}, v{qa}, v{qa+1}", f"v_cvt_pk_bf16_f32 v{qa+1}, v{qa+2}, v{qa+3}",
             f"v_cvt_pk_bf16_f32 v{qa+2}, v{qb}, v{qb+1}", f"v_cvt_pk_bf16_f32 v{qa+3}, v{qb+2}, v{qb+3}"]
        st = [f"s_add_u32 s{sT0}, s{sreg}, {off & ~4095}",
              VM(f"buffer_store_dwordx4 {vr(qa,4)}, v{vL16}, s[{sWS}:{sWS+3}], s{sT0} offen offset:{off & 4095} sc1", "st")]
        return g, st
    def place_stores(lst, start, end):
        step = (end - start) // len(lst)
        for n, (g, st) in enumerate(lst):
            b = start + n*step
            for k, x in enumerate(g): slots[b + k*(step-2)//4].alu.append(x)
            slots[b + step - 1 - ((b + step - 1) & 1 == 0)].mem.append(st)
    kst = [pack_store(accK(2*s4, kt), accK(2*s4+1, kt), sKST, (kt >> 1)*8192 + ((kt & 1)*4 + s4)*1024) for s4 in range(4) for kt in range(4)]
    place_stores(kst, 512 + 8, 512 + 8 + 16*14)
    def vst(base, t, t8): return [pack_store(base + (t*4+2*uu)*4, base + (t*4+2*uu+1)*4, sVST, uu*8192 + t8*1024) for uu in range(2)]
    place_stores(sum((vst(X, t, t) for t in range(4)), []), 768 + 8, 768 + 8 + 8*14)
    place_stores(sum((vst(ACC, t, 4+t) for t in range(2)), []), 896 + 8, 896 + 8 + 4*14)
    slots[9*64 + 2].mem.append(VM(f"buffer_load_dword v{vT}, off, s[{sDBG}:{sDBG+3}], 0 sc1", "poll"))
    PP = vT
    chk = [W(vm="poll"), f"v_readfirstlane_b32 s{sSPIN}, v{vT}", f"s_cmp_ge_u32 s{sSPIN}, 192", f"s_cbranch_scc1 Lok_{name}",
           f"s_mov_b32 s{sMF}, 0x400000", f"Lspin_{name}:",
           f"buffer_load_dword v{vT}, off, s[{sDBG}:{sDBG+3}], 0 sc1", "s_waitcnt vmcnt(0)",
           f"v_readfirstlane_b32 s{sSPIN}, v{vT}", f"s_sub_u32 s{sMF}, s{sMF}, 1", f"s_cbranch_scc1 Lok_{name}",
           f"s_cmp_lt_u32 s{sSPIN}, 192", f"s_cbranch_scc1 Lspin_{name}", f"Lok_{name}:",
           f"s_lshl_b32 s{sMF}, s{sW}, 10", f"s_add_u32 s{sMF}, s{sMF}, {WS_MODP}"]
    slots[10*64 + 3].alu.append(flat(chk))
    for n in range(4):
        slots[10*64 + 6 + 4*n].mem += [VM(f"buffer_load_dwordx4 {vr(PP+4*n,4)}, v{vL16}, s[{sWS}:{sWS+3}], s{sMF} offen sc1", "pp"),
                                       f"s_add_u32 s{sMF}, s{sMF}, 12288"]
    g = [[W(vm="pp"), f"v_add_f32 v{PP}, v{PP}, v{PP+4}"]] + [f"v_add_f32 v{PP+j}, v{PP+j}, v{PP+4+j}" for j in range(1, 4)]
    g += [f"v_add_f32 v{PP+8+j}, v{PP+8+j}, v{PP+12+j}" for j in range(4)]
    g += [f"v_add_f32 v{PP+j}, v{PP+j}, v{PP+8+j}" for j in range(4)]
    def rnd(r0, r1, t):
        return [f"v_cvt_pk_bf16_f32 v{t}, v{r0}, v{r1}", f"v_lshlrev_b32 v{r0}, 16, v{t}", f"v_and_b32 v{r1}, 0xffff0000, v{t}"]
    g += rnd(PP, PP+1, PP+4) + rnd(PP+2, PP+3, PP+5)
    g += [f"v_add_f32 v{PP+j}, s{sADD}, v{PP+j}" for j in range(4)]
    g += rnd(PP, PP+1, PP+4) + rnd(PP+2, PP+3, PP+5)
    g += [f"v_mul_f32 v{PP+j}, {fbits(CSCALE)}, v{PP+j}" for j in range(4)]
    g += [f"s_lshl_b32 s{sMF}, s{sW}, 10", f"v_add_u32 v{PP+4}, s{sMF}, v{vL16}"]
    spread(slots, g, 11*64 - 8, 11*64 + 40)
    slots[11*64 + 42].mem.append(LG(f"ds_write_b128 v{PP+4}, {vr(PP,4)} offset:{MODV}", "mv"))
    assert bar_slot[12] > 11*64 + 43
    slots[bar_slot[12]].alu.insert(0, W(lg="mv"))
    MF = vT + 8
    b = 12*64
    slots[b - 6].alu += flat([f"s_lshl_b32 s{sMF}, s2, 10", f"s_lshl_b32 s{sHST}, s{sW}, 8", f"s_add_u32 s{sMF}, s{sMF}, s{sHST}",
                     f"s_add_u32 s{sHST}, s{sMF}, {WS_MODF}", f"s_add_u32 s{sMF}, s{sMF}, {WS_MODP}", "s_cmp_lt_u32 s2, 12",
                     f"s_cselect_b32 s{sMF}, s{sMF}, {OOB:#x}", f"s_cselect_b32 s{sHST}, s{sHST}, {OOB:#x}", f"v_lshlrev_b32 v{vT+7}, 2, v0"])
    for n in range(4):
        slots[b + 2 + 4*n].mem += [VM(f"buffer_load_dword v{MF+n}, v{vT+7}, s[{sWS}:{sWS+3}], s{sMF} offen sc1", "mf"),
                                   f"s_add_u32 s{sMF}, s{sMF}, 12288"]
    XR, AV, BV, F0, F1, TT = 192, 200, 208, 216, 224, 232
    slots[b + 18].mem += [f"s_lshl_b32 s{sMF}, s2, 13", f"s_lshl_b32 s{sMEAN0}, s{sW}, 11", f"s_add_u32 s{sMF}, s{sMF}, s{sMEAN0}",
                          VM(f"buffer_load_dwordx4 {vr(XR,4)}, v{vL16}, s[{sX}:{sX+3}], s{sMF} offen", "x")]
    slots[b + 19].mem += [VM(f"buffer_load_dwordx4 {vr(XR+4,4)}, v{vL16}, s[{sX}:{sX+3}], s{sMF} offen offset:1024", "x")]
    slots[b + 20].alu += [I(f"v_lshlrev_b32 v{TT}, 5, v0")]
    for n, (r, off) in enumerate(((BV, 0), (BV+4, 16), (AV, 2048), (AV+4, 2064))):
        slots[b + 22 + (n >> 1)*4 + (n & 1)].mem.append(LG(f"ds_read_b128 {vr(r,4)}, v{TT} offset:{MODV+off}", "ab"))
    g = [[W(vm="mf"), f"v_add_f32 v{MF}, v{MF}, v{MF+1}"], f"v_add_f32 v{MF+2}, v{MF+2}, v{MF+3}", f"v_add_f32 v{MF}, v{MF}, v{MF+2}",
         f"v_cvt_pk_bf16_f32 v{MF}, v{MF}, v{MF}", f"v_lshlrev_b32 v{MF}, 16, v{MF}"]
    spread(slots, g, b + 50, b + 58)
    slots[b + 62].mem.append(VM(f"buffer_store_dword v{MF}, v{vT+7}, s[{sWS}:{sWS+3}], s{sHST} offen sc1", "st"))
    g = []
    for j in range(4):
        for F, xr in ((F0, XR), (F1, XR+4)):
            g += [f"v_lshlrev_b32 v{F+2*j}, 16, v{xr+j}", f"v_and_b32 v{F+2*j+1}, 0xffff0000, v{xr+j}"]
    g[0] = [W(vm="x"), g[0]]
    def reduce2(sa, sb, post):
        r = []
        for m in ("quad_perm:[1,0,3,2]", "quad_perm:[2,3,0,1]", "row_ror:4", "row_ror:8"):
            r += [f"v_add_f32_dpp v{TT}, v{TT}, v{TT} {m} row_mask:0xf bank_mask:0xf", f"v_add_f32_dpp v{TT+1}, v{TT+1}, v{TT+1} {m} row_mask:0xf bank_mask:0xf"]
        r += [f"v_permlane16_swap_b32 v{TT}, v{TT+1}", f"v_add_f32 v{TT}, v{TT}, v{TT+1}", f"v_mov_b32 v{TT+1}, v{TT}",
              f"v_permlane32_swap_b32 v{TT}, v{TT+1}", f"v_add_f32 v{TT}, v{TT}, v{TT+1}"] + post
        r += [f"v_readlane_b32 s{sa}, v{TT}, 0", f"v_readlane_b32 s{sb}, v{TT}, 16"]
        return r
    for j in range(1, 8):
        for k, F in enumerate((F0, F1)):
            g += [f"v_add_f32 v{TT+k}, v{F if j == 1 else TT+k}, v{F+j}"]
    g += reduce2(sMEAN0, sMEAN1, [f"v_mul_f32 v{TT}, {fbits(1/512)}, v{TT}"])
    for j in range(8):
        for F, sm in ((F0, sMEAN0), (F1, sMEAN1)): g += [f"v_subrev_f32 v{F+j}, s{sm}, v{F+j}"]
    for j in range(8):
        for k, F in enumerate((F0, F1)):
            g += [f"v_mul_f32 v{TT+k}, v{F}, v{F}" if j == 0 else f"v_fmac_f32 v{TT+k}, v{F+j}, v{F+j}"]
    g += reduce2(sRS0, sRS1, [f"v_mov_b32 v{TT+1}, {fbits(EPS)}", f"v_fmac_f32 v{TT+1}, {fbits(1/512)}, v{TT}", f"v_rsq_f32 v{TT}, v{TT+1}"])
    first = True
    for j in range(8):
        for F, rs in ((F0, sRS0), (F1, sRS1)): g += [f"v_mul_f32 v{F+j}, s{rs}, v{F+j}"]
    for j in range(8):
        for F in (F0, F1):
            x = f"v_fma_f32 v{F+j}, v{F+j}, v{AV+j}, v{BV+j}"
            g += [[W(lg="ab"), x] if first else x]; first = False
    for j in range(4):
        for F, xr in ((F0, XR), (F1, XR+4)): g += [f"v_cvt_pk_bf16_f32 v{xr+j}, v{F+2*j}, v{F+2*j+1}"]
    g += [f"s_mul_i32 s{sMF}, s{sW}, 2080", f"v_add_u32 v{TT}, s{sMF}, v{vL16}"]
    e = 14*64 + 40
    spread(slots, g, 13*64 - 4, e)
    slots[e + 2].mem.append(LG(f"ds_write_b128 v{TT}, {vr(XR,4)} offset:{HST}", "hw"))
    slots[e + 3].mem.append(LG(f"ds_write_b128 v{TT}, {vr(XR+4,4)} offset:{HST+1040}", "hw"))
    g = flat([f"""
    v_and_b32 v{TT+1}, 7, v0
    v_lshrrev_b32 v{TT+2}, 3, v0
    v_mul_u32_u24 v{TT}, 1040, v{TT+1}
    v_lshl_add_u32 v{TT}, v{TT+2}, 4, v{TT}
    s_lshl_b32 s{sMF}, s{sW}, 8
    v_add_u32 v{TT}, s{sMF}, v{TT}
    v_lshlrev_b32 v{TT+1}, 4, v{TT+1}
    v_and_b32 v{TT+3}, 3, v{TT+2}
    v_lshl_add_u32 v{TT+1}, v{TT+3}, 8, v{TT+1}
    v_lshrrev_b32 v{TT+2}, 2, v{TT+2}
    v_lshl_add_u32 v{TT+1}, v{TT+2}, 10, v{TT+1}
    s_lshr_b32 s{sHST}, s2, 1
    s_lshl_b32 s{sHST}, s{sHST}, 14
    s_and_b32 s{sMF}, s2, 1
    s_lshl_b32 s{sMF}, s{sMF}, 7
    s_add_u32 s{sHST}, s{sHST}, s{sMF}
    s_lshl_b32 s{sMF}, s{sW}, 12
    s_add_u32 s{sHST}, s{sHST}, s{sMF}
    s_add_u32 s{sHST}, s{sHST}, {WS_H}
    """])
    spread(slots, g, e + 4, e + 16)
    slots[e + 17].alu += [W(lg="hw"), I("s_barrier")]
    slots[e + 18].mem.append(LG(f"ds_read_b128 {vr(XR,4)}, v{TT} offset:{HST}", "hr"))
    slots[e + 19].mem.append(LG(f"ds_read_b128 {vr(XR+4,4)}, v{TT} offset:{HST+128}", "hr"))
    slots[e + 26].mem += [W(lg="hr"), VM(f"buffer_store_dwordx4 {vr(XR,4)}, v{TT+1}, s[{sWS}:{sWS+3}], s{sHST} offen sc1", "st")]
    slots[e + 27].mem += [VM(f"buffer_store_dwordx4 {vr(XR+4,4)}, v{TT+1}, s[{sWS}:{sWS+3}], s{sHST} offen offset:2048 sc1", "st")]
    if ts:
        for p in range(16): slots[p*64].alu.append(stamp(p))
    o += emit_slots(slots)
    for g, st in sum((vst(ACC, t, 4+t) for t in (2, 3)), []): o += [g, st]
    if ts: o += dump_stamps(0, sWS, sW)
    o += [f"Lend_{name}:", "s_endpgm"]
    return o
```

```python
from common import *

def k2(name, ts=False, prefetch=None, kidx=1):
    sWQ, sWS, sK, sV, sCODE = 8, 12, 16, 20, 40
    sW, sHEAD, sJ = 3, 4, 5
    sMK = 24
    sH = 32
    sCT = 36
    sT0, sT1, sWOFF, sM0W, sKO, sVO, sKM, sVM, sKR, sVR, sCNT, sMAT, sUS, sUL, sFL = range(76, 91)
    vL16, vKB, vVB, vWD, vTR, ONES, LS, PB, CB, TMP, ACC = 1, 2, 3, 4, 8, 12, 16, 32, 64, 96, 128
    aK, aV, aH = 128, 160, 192
    FLAG = 131072
    NINF = "0xff800000"
    def acc(dt, qi): return ACC + (dt*4+qi)*4
    def Q(qi, s4): return vr(acc(2*s4, qi), 4)
    def S(buf, qi, kt): return acc(2*(buf*2+kt)+1, qi)
    def Pq(buf, qi): return PB + (buf*4+qi)*4
    def C(qi, kt): return CB + (qi*2+kt)*4
    def O(t, qi): return ar((t*4+qi)*4, 4)
    def Kf(kt, ds): return ar(aK + (kt*4+ds)*4, 4)
    def Vf(t): return ar(aV + t*4, 4)
    GQ = {0: (0, 1), 1: (2, 3)}
    o = ["s_cmp_ge_u32 s2, 256", f"s_cbranch_scc1 Lend_{name}"] + load_args()
    if ts: o += ["s_memrealtime s[96:97]"]
    vT = TMP
    if prefetch:
        o += code_prefetch(prefetch[0], prefetch[1], sCODE, vT, vT+1)
        for i in range(0, prefetch[1], 32768):
            o += [f"s_mov_b32 s{sT0}, {i}", VM(f"buffer_load_dword v{vT+1}, v{vT}, s[{sCODE}:{sCODE+3}], s{sT0} offen", "code")]
    r8, c8 = vT+2, vT+3
    o += [f"""
    v_lshrrev_b32 v{vT+2}, 6, v0
    v_and_b32 v0, 63, v0
    v_readfirstlane_b32 s{sW}, v{vT+2}
    v_lshlrev_b32 v{vL16}, 4, v0
    s_and_b32 s{sHEAD}, s2, 7
    s_lshl_b32 s{sHEAD}, s{sHEAD}, 2
    s_bfe_u32 s{sT0}, s2, 0x20003
    s_add_u32 s{sHEAD}, s{sHEAD}, s{sT0}
    s_lshr_b32 s{sJ}, s2, 5
    v_lshrrev_b32 v{r8}, 3, v0
    v_and_b32 v{c8}, 7, v0
    v_and_b32 v{vT+6}, 2, v{r8}
    v_xor_b32 v{vT+6}, v{vT+6}, v{c8}
    v_lshlrev_b32 v{vT+6}, 4, v{vT+6}
    v_lshl_add_u32 v{vWD}, v{r8}, 13, v{vT+6}
    v_xor_b32 v{vWD+1}, 64, v{vWD}
    v_add_u32 v{vWD+1}, {65536-1024}, v{vWD+1}
    v_add_u32 v{vWD+2}, {2*(65536-1024)}, v{vWD}
    v_add_u32 v{vWD+3}, {2*(65536-1024)}, v{vWD+1}
    s_and_b32 s{sT0}, s{sW}, 1
    s_lshl_b32 s{sWOFF}, s{sT0}, 18
    s_lshr_b32 s{sT1}, s{sW}, 1
    s_lshl_b32 s{sT1}, s{sT1}, 7
    s_add_u32 s{sWOFF}, s{sWOFF}, s{sT1}
    s_lshl_b32 s{sT1}, s{sHEAD}, 8
    s_add_u32 s{sWOFF}, s{sWOFF}, s{sT1}
    s_lshl_b32 s{sM0W}, s{sW}, 12
    s_lshl_b32 s{sUS}, s{sJ}, 2
    s_sub_u32 s{sUL}, 60, s{sUS}
    s_add_u32 s{sUS}, s{sUS}, s{sW}
    s_add_u32 s{sUL}, s{sUL}, s{sW}
    s_lshl_b32 s{sH}, s{sUL}, 15
    s_add_u32 s{sH}, s{sH}, {WS_H}
    s_add_u32 s{sH+1}, s{sH}, 16384
    s_lshl_b32 s{sH+2}, s{sUS}, 15
    s_add_u32 s{sH+2}, s{sH+2}, {WS_H}
    s_add_u32 s{sH+3}, s{sH+2}, 16384
    s_waitcnt lgkmcnt(0)
    """]
    o += srd(sWQ, P("wq"), 4*MB) + srd(sWS, P("ws"), WS_SIZE)
    def w_dma(q):
        g = []; grp = [f"s_add_u32 m0, s{sM0W}, {q*16384}", f"s_add_u32 s{sT1}, s{sWOFF}, {q*64*8192}"]
        for n in range(4):
            grp.append(VM(f"buffer_load_dwordx4 v{vWD+n}, s[{sWQ}:{sWQ+3}], s{sT1} offen offset:{n*1024} lds", ("w", q)))
            g.append(grp); grp = []
        return g
    def Hf(s, qi): return ar(aH + ((s & 3)*4+qi)*4, 4)
    def h_ld(s):
        g = []
        for qi in range(4):
            x = [VM(f"buffer_load_dwordx4 {Hf(s, qi)}, v{vL16}, s[{sWS}:{sWS+3}], s{sH+qi} offen offset:{(s&3)*1024}", ("h", s))]
            if (s & 3) == 3: x.append(f"s_add_u32 s{sH+qi}, s{sH+qi}, 4096")
            g.append(x)
        return g
    o += [w_dma(0), h_ld(0), h_ld(1), w_dma(1), h_ld(2), h_ld(3), w_dma(2)]
    o += [f"""
    s_lshl_b32 s{sT0}, s{sHEAD}, 19
    s_add_u32 s{sK}, s{P('ws')}, s{sT0}
    s_addc_u32 s{sK+1}, s{P('ws')+1}, 0
    s_sub_u32 s{sK+2}, 16, s{sJ}
    s_lshl_b32 s{sK+2}, s{sK+2}, 15
    s_mov_b32 s{sK+3}, 0x20000
    s_add_u32 s{sV}, s{sK}, {WS_V}
    s_addc_u32 s{sV+1}, s{sK+1}, 0
    s_mov_b32 s{sV+2}, s{sK+2}
    s_mov_b32 s{sV+3}, 0x20000
    s_mov_b32 s{sKO}, s{sM0W}
    s_mov_b32 s{sVO}, s{sM0W}
    s_mov_b32 s{sKM}, s{sM0W}
    s_add_u32 s{sVM}, s{sM0W}, 65536
    s_lshl_b32 s{sT0}, s{sHEAD}, 12
    s_add_u32 s{sT0}, s{sT0}, {WS_CTX}
    s_lshl_b32 s{sCT}, s{sUL}, 18
    s_add_u32 s{sCT}, s{sCT}, s{sT0}
    s_add_u32 s{sCT+1}, s{sCT}, 131072
    s_lshl_b32 s{sCT+2}, s{sUS}, 18
    s_add_u32 s{sCT+2}, s{sCT+2}, s{sT0}
    s_add_u32 s{sCT+3}, s{sCT+2}, 131072
    v_lshrrev_b32 v{vT+6}, 4, v0
    v_bfe_u32 v{vT+7}, v0, 2, 2
    v_lshl_add_u32 v{vT+8}, v{vT+6}, 3, v{vT+7}
    v_lshlrev_b32 v{vT+8}, 7, v{vT+8}
    v_and_b32 v{vT+9}, 3, v0
    v_lshl_add_u32 v{vT+8}, v{vT+9}, 3, v{vT+8}
    v_and_b32 v{vT+9}, 1, v{vT+6}
    v_lshlrev_b32 v{vT+9}, 1, v{vT+9}
    v_lshrrev_b32 v{vT+10}, 1, v{vT+7}
    v_or_b32 v{vT+9}, v{vT+9}, v{vT+10}
    v_lshl_add_u32 v{vTR}, v{vT+9}, 5, v{vT+8}
    v_xor_b32 v{vTR+1}, 32, v{vTR}
    v_xor_b32 v{vTR+2}, 64, v{vTR}
    v_xor_b32 v{vTR+3}, 0x60, v{vTR}
    v_lshlrev_b32 v{vT+6}, 2, v{vT+6}
    v_and_b32 v{vT+7}, 15, v0
    v_sub_u32 v{vT+7}, v{vT+7}, v{vT+6}
    v_cmp_le_i32 s[{sMK}:{sMK+1}], 0, v{vT+7}
    v_cmp_le_i32 s[{sMK+2}:{sMK+3}], 1, v{vT+7}
    v_cmp_le_i32 s[{sMK+4}:{sMK+5}], 2, v{vT+7}
    v_cmp_le_i32 s[{sMK+6}:{sMK+7}], 3, v{vT+7}
    v_mov_b32 v{vKB}, v{vL16}
    v_add_u32 v{vVB}, 65536, v{vL16}
    s_mov_b32 s{sKR}, 0
    s_mov_b32 s{sVR}, 65536
    """]
    def kv_dma(which, tag):
        sd, so, sm = (sK, sKO, sKM) if which == "K" else (sV, sVO, sVM)
        g = []; grp = [f"s_mov_b32 m0, s{sm}", f"s_add_u32 s{sm}, s{sm}, 16384"]
        for n in range(4):
            grp.append(VM(f"buffer_load_dwordx4 v{vL16}, s[{sd}:{sd+3}], s{so} offen offset:{n*1024} lds", tag))
            if n == 0: grp.append(f"s_and_b32 s{sm}, s{sm}, 0xffff")
            if n == 1 and which == "V": grp.append(f"s_or_b32 s{sm}, s{sm}, 0x10000")
            if n == 3: grp.append(f"s_add_u32 s{so}, s{so}, 16384")
            g.append(grp); grp = []
        return g
    LA = 6
    frags = [(s >> 1, (dt >> 2)*8192 + (s & 1)*4096, dt & 3, s, dt) for s in range(16) for dt in range(8)]
    slots = []
    for f, (q, off, t, s, dt) in enumerate(frags):
        for qi in range(4):
            d = vr(acc(dt, qi), 4)
            sl = Slot(I(f"v_mfma_f32_16x16x32_bf16 {d}, {ar(aK + (f % 16)*4, 4)}, {Hf(s, qi)}, {'0' if s == 0 else d}"))
            if qi == 0:
                if f % 2 == 0: sl.pre.append(W(lg=[("wf", f+1)]))
                if dt == 0: sl.pre.append(W(vm=[("h", s)]))
            slots.append(sl)
    wbase = [0]
    def frag_reads(f):
        q, off, t, s, dt = frags[f]
        a = q*16384 + off; g = []
        wb = 0 if a < 65536 else 65536
        if wb != wbase[0]:
            g += [f"v_add_u32 v{vTR+i}, 0x10000, v{vTR+i}" for i in range(4)]; wbase[0] = wb
        r = aK + (f % 16)*4
        return g, [LG(f"ds_read_b64_tr_b16 {ar(r+2*hh,2)}, v{vTR+t} offset:{a - wb + hh*512}", ("wf", f)) for hh in range(2)]
    o += [W(vm=[("w", 0)]), "s_barrier"]
    for f in range(LA):
        g, rd = frag_reads(f); o += g + rd
    bar = {}
    for f in range(LA, 128):
        q = frags[f][0]; i = (f - LA)*4
        if f % 16 == 0:
            bar[q] = i - 1
            slots[i-1].alu += [W(vm=[("w", q)]), "s_barrier"]
        g, rd = frag_reads(f)
        slots[i-1].alu += g
        slots[i].mem.append(rd[0]); slots[i+1].mem.append(rd[1])
    for s in range(4, 16):
        for n, g in enumerate(h_ld(s)): slots[(s-3)*32 + 2 + 4*n].mem.append(g)
    for q in range(3, 8):
        for n, g in enumerate(w_dma(q)): slots[(q-3)*64 + 19 + 4*n].mem.append(g)
    kvseq = [("K", 0, 5*64 + 44), ("V", 0, 6*64 + 2), ("K", 1, 6*64 + 18), ("K", 2, 6*64 + 44), ("V", 1, 7*64 - 2), ("K", 3, 7*64 + 14)]
    assert bar[6] < 6*64 + 2 and bar[7] < 7*64 - 2
    for wh, p, b in kvseq:
        for n, g in enumerate(kv_dma(wh, (wh, p))): slots[b + 4*n + (0 if (b & 3) >= 2 else 2)].mem.append(g)
    init = [f"v_accvgpr_write_b32 a{r}, 0" for r in range(128)] + [f"v_mov_b32 v{LS+r}, 0" for r in range(16)]
    init += [f"v_mov_b32 v{ONES+r}, 0x3f803f80" for r in range(4)] + [f"v_mov_b32 v{CB+r}, 0" for r in range(32)]
    spread(slots, init, 8, 440)
    if ts:
        for p in range(0, 8, 2): slots[p*64].alu.append(stamp(p//2))
    o += emit_slots(slots)
    if ts: o += [stamp(4)]
    def mask(g):
        r = []
        for e in range(4):
            for qt in range(2):
                c = C(GQ[g][qt], qt) + e
                r.append(f"v_cndmask_b32 v{c}, v{TMP+31}, v{c}, s[{sMK+2*e}:{sMK+2*e+1}]")
            r.append(f"v_mov_b32 v{C(GQ[g][0], 1)+e}, v{TMP+31}")
        return r
    def k_reads(off): return [LG(f"ds_read_b128 {Kf(kt, ds)}, v{vKB} offset:{off + (kt*4+ds)*1024}", ("k", kt*4+ds)) for kt in range(2) for ds in range(4)]
    def v_reads(off): return [LG(f"ds_read_b128 {Vf(t)}, v{vVB} offset:{off + t*1024}", ("v", t)) for t in range(8)]
    def qk(buf, groups):
        r = []
        for kt in range(2):
            for g in groups:
                for qi in GQ[g]:
                    for ds in range(4):
                        d = vr(S(buf, qi, kt), 4)
                        r.append((I(f"v_mfma_f32_16x16x32_bf16 {d}, {Kf(kt, ds)}, {Q(qi, ds)}, {vr(C(qi, kt), 4) if ds == 0 else d}"), kt*4+ds))
        return r
    def pv(buf, groups):
        r = []
        for t in range(8):
            for g in groups:
                for qi in GQ[g]:
                    r.append((I(f"v_mfma_f32_16x16x32_bf16 {O(t, qi)}, {Vf(t)}, {vr(Pq(buf, qi), 4)}, {O(t, qi)}"), t))
        for g in groups:
            for qi in GQ[g]:
                r.append((I(f"v_mfma_f32_16x16x32_bf16 {vr(LS+4*qi, 4)}, {vr(ONES, 4)}, {vr(Pq(buf, qi), 4)}, {vr(LS+4*qi, 4)}"), None))
        return r
    def softmax(buf, groups):
        ex = []; cv = []
        for g in groups:
            for qi in GQ[g]:
                for kt in range(2):
                    s0 = S(buf, qi, kt)
                    for h in range(2):
                        ex += [f"v_exp_f32 v{s0+2*h}, v{s0+2*h}", f"v_exp_f32 v{s0+2*h+1}, v{s0+2*h+1}"]
                        cv += [f"v_cvt_pk_bf16_f32 v{Pq(buf, qi)+2*kt+h}, v{s0+2*h}, v{s0+2*h+1}"]
        return ex, cv
    o += [W(vm=[("K", 0)]), "s_barrier", k_reads(0), kv_dma("V", ("V", 2))]
    for s4 in range(4):
        for qi in range(4):
            qa, qb = acc(2*s4, qi), acc(2*s4+1, qi)
            o += [f"v_cvt_pk_bf16_f32 v{qa}, v{qa}, v{qa+1}", f"v_cvt_pk_bf16_f32 v{qa+1}, v{qa+2}, v{qa+3}",
                  f"v_cvt_pk_bf16_f32 v{qa+2}, v{qb}, v{qb+1}", f"v_cvt_pk_bf16_f32 v{qa+3}, v{qb+2}, v{qb+3}"]
    o += [f"v_mov_b32 v{TMP+31}, {NINF}", f"s_cmp_lg_u32 s{sUS}, 0", f"s_cbranch_scc1 Lp0_{name}", mask(1), f"Lp0_{name}:", "s_nop 1"]
    o += [W(lg=[("k", 7)])] + [m for m, _ in qk(0, (0, 1))]
    o += [k_reads(8192), "s_nop 3", f"s_cmp_lg_u32 s{sUS}, 1", f"s_cbranch_scc1 Lp1_{name}", mask(1), f"Lp1_{name}:", "s_nop 1"]
    q1 = [Slot(m) for m, _ in qk(1, (0, 1))]
    q1[0].pre.append(W(lg=[("k", 7)]))
    mx = []
    for qi in range(4):
        a, b, t = S(0, qi, 0), S(0, qi, 1), TMP + qi
        mx += [f"v_max3_f32 v{t}, v{a}, v{a+1}, v{a+2}", f"v_max3_f32 v{t}, v{t}, v{a+3}, v{b}",
               f"v_max3_f32 v{t}, v{t}, v{b+1}, v{b+2}", f"v_max_f32 v{t}, v{t}, v{b+3}"]
    for sw in ("v_permlane16_swap_b32", "v_permlane32_swap_b32"):
        mx += [f"v_mov_b32 v{TMP+4+qi}, v{TMP+qi}" for qi in range(4)]
        mx += [f"{sw} v{TMP+qi}, v{TMP+4+qi}" for qi in range(4)]
        mx += [f"v_max_f32 v{TMP+qi}, v{TMP+qi}, v{TMP+4+qi}" for qi in range(4)]
    spread(q1, mx, 2, 32)
    o += emit_slots(q1)
    o += ["s_waitcnt vmcnt(16)", "s_barrier", f"s_mov_b32 s{sKR}, 16384", f"v_add_u32 v{vKB}, 16384, v{vL16}", k_reads(0)]
    for qi in range(4):
        for kt in range(2):
            o += [f"v_sub_f32 v{S(0, qi, kt)+e}, v{S(0, qi, kt)+e}, v{TMP+qi}" for e in range(4)]
    ex, cv = softmax(0, (0, 1))
    for k in range(len(cv)): o += ex[2*k:2*k+2] + ([cv[k-1]] if k else [])
    o += [cv[-1]]
    for qi in range(4):
        for kt in range(2):
            o += [f"v_sub_f32 v{C(qi, kt)+e}, v{C(qi, kt)+e}, v{TMP+qi}" for e in range(4)]
            o += [f"v_sub_f32 v{S(1, qi, kt)+e}, v{S(1, qi, kt)+e}, v{TMP+qi}" for e in range(4)]
    if ts: o += [stamp(5)]
    MODES = {"D": ((0, 1), (0, 1), (0, 1)), "T1": ((0,), (0, 1), (0, 1)), "T2": ((0,), (0,), (0, 1)),
             "S": ((0,), (0,), (0,)), "F1": ((), (0,), (0,)), "F2": ((), (), (0,))}
    def iteration(mode, par, last=False, bar=True, midmask=None):
        gq, gs, gp = MODES[mode]
        m1 = qk(par, gq); m2 = pv(par, gp)
        sl = [Slot(m) for m, _ in m1 + m2]; n1 = len(m1); n2 = len(m2); n = n1 + n2
        pre = []
        seen = set()
        for i, (_, f) in enumerate(m1):
            if f not in seen and f % 4 == 0: sl[i].pre.append(W(lg=[("k", f+3)]))
            seen.add(f)
        seen = set()
        for i, (_, f) in enumerate(m2):
            if f is not None and f not in seen and f % 4 == 0: sl[n1+i].pre.append(W(lg=[("v", f+3)]))
            seen.add(f)
        vrd = v_reads(par*8192); busy = set()
        if n1:
            st = max(1, (n1*3//4)//8)
            for k, r in enumerate(vrd): sl[k*st].mem.append(r); busy.add(k*st)
        else: pre += vrd
        if not last:
            if par == 0:
                st = max(1, (n2*3//4)//8)
                for k, r in enumerate(k_reads(8192)): sl[n1 + k*st].mem.append(r); busy.add(n1 + k*st)
                dm = kv_dma("K", "d") + kv_dma("V", "d")
                free = [i for i in range(1, n - 2) if i not in busy]
                for k, g in enumerate(dm):
                    i = free[(k*len(free))//8]; sl[i].mem.append(g); busy.add(i)
            else:
                b = n1 + n2*2//8
                sl[b-1].alu += flat([f"s_add_u32 s{sKR}, s{sKR}, 16384", f"s_and_b32 s{sKR}, s{sKR}, 0xffff", f"v_add_u32 v{vKB}, s{sKR}, v{vL16}",
                                     W(lg=[("v", 7)]), "s_waitcnt vmcnt(16)", "s_barrier"])
                busy.add(b-1)
                st = max(1, (n - 2 - b)*3//4//8)
                for k, r in enumerate(k_reads(0)): sl[b + k*st].mem.append(r); busy.add(b + k*st)
                i = min(b + 8*st, n-1)
                sl[i].alu += flat([f"s_add_u32 s{sVR}, s{sVR}, 16384", f"s_and_b32 s{sVR}, s{sVR}, 0xffff", f"s_or_b32 s{sVR}, s{sVR}, 0x10000",
                                   f"v_add_u32 v{vVB}, s{sVR}, v{vL16}"])
        ex, cv = softmax(1 - par, gs)
        if ex:
            free = [i for i in range(n) if i not in busy]
            if len(free) < len(ex): free = sorted(free + [i for i in range(n) if i in busy][:len(ex) - len(free)])
            pos = [free[(k*len(free))//len(ex)] for k in range(len(ex))]
            for k, x in enumerate(ex): sl[pos[k]].alu.append(I(x))
            for k, x in enumerate(cv):
                i = pos[2*k+1] + 1
                while i < n - 1 and i not in busy and i in pos: i += 1
                sl[min(i, n-1)].alu.append(I(x))
        r = pre + emit_slots(sl)
        if midmask is not None:
            g, lbl = midmask
            r += [f"s_cmp_lg_u32 s{sCNT}, s{sMAT}", f"s_cbranch_scc1 {lbl}", "s_nop 0", mask(g), f"{lbl}:"]
        return r
    KT = [("k", i) for i in range(8)]
    def region(items): return resolve_waits(flat(items), pre_lg=KT)
    o = resolve_waits(flat(o))
    N = name
    o += flat([f"""
    s_sub_u32 s{sCNT}, s{sUS}, 1
    s_ashr_i32 s{sCNT}, s{sCNT}, 1
    s_and_b32 s{sT0}, s{sW}, 1
    s_mov_b32 s{sMAT}, s{sT0}
    s_cmp_le_i32 s{sCNT}, 0
    s_cbranch_scc1 Ldd_done_{N}
    .p2align 6
    Ldd_{N}:
    """])
    o += region([iteration("D", 0, midmask=(1, f"Lddm_{N}")), iteration("D", 1)])
    o += flat([f"s_sub_u32 s{sCNT}, s{sCNT}, 1", f"s_cmp_lg_u32 s{sCNT}, 0", f"s_cbranch_scc1 Ldd_{N}", f"Ldd_done_{N}:",
               f"s_bitcmp1_b32 s{sW}, 0", f"s_cbranch_scc1 Lodd1_{N}", f"s_cmp_eq_u32 s{sUS}, 0", f"s_cbranch_scc1 Lt2s_{N}", mask(1), "s_nop 1"])
    o += region([iteration("D", 0), iteration("T1", 1)])
    o += flat([f"Lt2s_{N}:"]) + region([iteration("T2", 0), iteration("S", 1)])
    o += flat([f"s_branch Lss_entry_{N}", f"Lodd1_{N}:"]) + region([iteration("T1", 0), iteration("T2", 1)])
    o += flat([f"""
    Lss_entry_{N}:
    s_sub_u32 s{sCNT}, s{sUL}, s{sUS}
    s_lshr_b32 s{sCNT}, s{sCNT}, 1
    s_sub_u32 s{sCNT}, s{sCNT}, 2
    s_add_u32 s{sCNT}, s{sCNT}, s{sMAT}
    s_cmp_eq_u32 s{sCNT}, 0
    s_cbranch_scc1 Lss_done_{N}
    .p2align 6
    Lss_{N}:
    """])
    o += region([iteration("S", 0, midmask=(0, f"Lssm_{N}")), iteration("S", 1)])
    o += flat([f"s_sub_u32 s{sCNT}, s{sCNT}, 1", f"s_cmp_lg_u32 s{sCNT}, 0", f"s_cbranch_scc1 Lss_{N}", f"Lss_done_{N}:"])
    if ts: o += [stamp(6)]
    o += flat([f"s_bitcmp1_b32 s{sW}, 0", f"s_cbranch_scc1 Lodd2_{N}", mask(0), "s_nop 1"])
    o += region([iteration("S", 0), iteration("F1", 1)]) + region([iteration("F2", 0, last=True)])
    o += flat([f"s_branch Lfin_{N}", f"Lodd2_{N}:"]) + region([iteration("F1", 0, last=True), iteration("F2", 1, last=True)])
    o += flat([f"Lfin_{N}:", f"s_cmp_ge_u32 s{sW}, 2", f"s_cbranch_scc1 Lepi_{N}", "s_waitcnt vmcnt(0)", "s_barrier", f"Lepi_{N}:"])
    if ts: o += [stamp(7)]
    def epilogue():
        r = ["s_nop 7"]
        for qi in range(4): r.append(f"v_rcp_f32 v{TMP+24+qi}, v{LS+4*qi}")
        k = 0
        for qi in range(4):
            for s4 in range(4):
                t = TMP + (k % 2)*12; k += 1
                for h in range(2):
                    r += [f"v_accvgpr_read_b32 v{t+4*h+e}, a{((2*s4+h)*4+qi)*4+e}" for e in range(4)]
                r += [f"v_mul_f32 v{t+e}, v{TMP+24+qi}, v{t+e}" for e in range(8)]
                r += [f"v_cvt_pk_bf16_f32 v{t+8+e}, v{t+2*e}, v{t+2*e+1}" for e in range(4)]
                r += [f"buffer_store_dwordx4 {vr(t+8, 4)}, v{vL16}, s[{sWS}:{sWS+3}], s{sCT+qi} offen offset:{s4*1024} sc1"]
        return r
    o += flat(epilogue())
    o += flat([f"s_mov_b32 s{sT0}, {fbits(2.0**90)}", f"s_mov_b64 s[{sKO}:{sKO+1}], 0"])
    for qi in range(4):
        o += flat([f"v_cmp_ngt_f32 vcc, s{sT0}, v{LS+4*qi}", f"s_or_b64 s[{sKO}:{sKO+1}], s[{sKO}:{sKO+1}], vcc"])
    o += flat([f"""
    s_cmp_lg_u64 s[{sKO}:{sKO+1}], 0
    s_cselect_b32 s{sFL}, 1, 0
    v_mov_b32 v{TMP}, s{sFL}
    s_lshl_b32 s{sT0}, s{sW}, 2
    s_add_u32 s{sT0}, s{sT0}, {FLAG}
    v_mov_b32 v{TMP+1}, s{sT0}
    ds_write_b32 v{TMP+1}, v{TMP}
    v_mov_b32 v{TMP+1}, {FLAG}
    s_waitcnt lgkmcnt(0)
    s_barrier
    ds_read_b128 v[{TMP+4}:{TMP+7}], v{TMP+1}
    s_waitcnt lgkmcnt(0)
    v_or3_b32 v{TMP}, v{TMP+4}, v{TMP+5}, v{TMP+6}
    v_or_b32 v{TMP}, v{TMP}, v{TMP+7}
    v_readfirstlane_b32 s{sFL}, v{TMP}
    s_cmp_eq_u32 s{sFL}, 0
    s_cbranch_scc1 Ldone_{N}
    """])
    MR = TMP + 16
    fb = ["s_waitcnt vmcnt(0)"] + [f"v_accvgpr_write_b32 a{r}, 0" for r in range(128)] + [f"v_mov_b32 v{LS+r}, 0" for r in range(16)]
    fb += [f"v_mov_b32 v{MR+qi}, {NINF}" for qi in range(4)]
    fb += [f"s_mov_b32 s{sCNT}, 0", f"s_lshl_b32 s{sKO}, s{sW}, 11", f"s_lshr_b32 s{sVO}, s{sK+2}, 13", f"v_mov_b32 v{vKB}, v{vL16}",
           f"v_add_u32 v{vVB}, 8192, v{vL16}", f"Lfb_{N}:", "s_barrier",
           f"s_lshl_b32 s{sT0}, s{sW}, 11", f"s_mov_b32 m0, s{sT0}", f"s_add_u32 s{sT0}, s{sT0}, 8192",
           f"buffer_load_dwordx4 v{vL16}, s[{sK}:{sK+3}], s{sKO} offen lds", f"buffer_load_dwordx4 v{vL16}, s[{sK}:{sK+3}], s{sKO} offen offset:1024 lds",
           f"s_mov_b32 m0, s{sT0}", "s_nop 0",
           f"buffer_load_dwordx4 v{vL16}, s[{sV}:{sV+3}], s{sKO} offen lds", f"buffer_load_dwordx4 v{vL16}, s[{sV}:{sV+3}], s{sKO} offen offset:1024 lds",
           f"s_add_u32 s{sKO}, s{sKO}, 8192", "s_waitcnt vmcnt(0)", "s_barrier"]
    fb += [x.t for x in k_reads(0) + v_reads(0)] + ["s_waitcnt lgkmcnt(0)"]
    for g, su in ((0, sUL), (1, sUS)):
        fb += [f"s_cmp_gt_u32 s{sCNT}, s{su}", f"s_cbranch_scc1 Lfbs{g}_{N}"]
        fb += [f"v_mov_b32 v{C(qi, kt)+e}, 0" for qi in GQ[g] for kt in range(2) for e in range(4)]
        fb += [f"s_cmp_lg_u32 s{sCNT}, s{su}", f"s_cbranch_scc1 Lfbm{g}_{N}", mask(g), f"Lfbm{g}_{N}:", "s_nop 1"]
        fb += [m for m, _ in qk(0, (g,))] + ["s_nop 7"]
        for qi in GQ[g]:
            a, b, t = S(0, qi, 0), S(0, qi, 1), TMP
            fb += [f"v_max3_f32 v{t}, v{a}, v{a+1}, v{a+2}", f"v_max3_f32 v{t}, v{t}, v{a+3}, v{b}",
                   f"v_max3_f32 v{t}, v{t}, v{b+1}, v{b+2}", f"v_max3_f32 v{t}, v{t}, v{b+3}, v{MR+qi}"]
            for sw in ("v_permlane16_swap_b32", "v_permlane32_swap_b32"):
                fb += [f"v_mov_b32 v{t+1}, v{t}", f"{sw} v{t}, v{t+1}", f"v_max_f32 v{t}, v{t}, v{t+1}"]
            fb += [f"v_sub_f32 v{t+1}, v{MR+qi}, v{t}", f"v_exp_f32 v{t+1}, v{t+1}", f"v_mov_b32 v{MR+qi}, v{t}"]
            fb += [f"v_sub_f32 v{S(0, qi, kt)+e}, v{S(0, qi, kt)+e}, v{t}" for kt in range(2) for e in range(4)]
            fb += [f"v_mul_f32 v{LS+4*qi+e}, v{t+1}, v{LS+4*qi+e}" for e in range(4)]
            for tt in range(8):
                a0 = (tt*4+qi)*4
                fb += [f"v_accvgpr_read_b32 v{t+4+e}, a{a0+e}" for e in range(4)]
                fb += [f"v_mul_f32 v{t+4+e}, v{t+1}, v{t+4+e}" for e in range(4)]
                fb += [f"v_accvgpr_write_b32 a{a0+e}, v{t+4+e}" for e in range(4)]
        ex, cv = softmax(0, (g,))
        fb += ex + cv + [m for m, _ in pv(0, (g,))] + ["s_nop 7", f"Lfbs{g}_{N}:"]
    fb += [f"s_add_u32 s{sCNT}, s{sCNT}, 1", f"s_cmp_lt_u32 s{sCNT}, s{sVO}", f"s_cbranch_scc1 Lfb_{N}"] + epilogue()
    o += flat(fb)
    o += flat([f"Ldone_{N}:"])
    if ts: o += flat(dump_stamps(kidx, sWS, sW, 8))
    o += flat([f"Lend_{name}:", "s_endpgm"])
    return o
```

```python
from common import *

def k35(name, which, ts=False, prefetch=None, kidx=2):
    sWT, sWS, sX, sB2, sOUT, sCODE = 8, 12, 16, 20, 24, 40
    sW, sRB, sCT = 3, 4, 5
    sA = 32
    sT0, sT1, sWO, sM0, sRT, sMF = range(76, 82)
    vL16, vWD, vTR, vT = 1, 2, 6, 10
    ACC, WF, EP = 32, 96, 128
    PD = 6
    o = ["s_cmp_ge_u32 s2, 256", f"s_cbranch_scc1 Lend_{name}"] + load_args()
    if ts: o += ["s_memrealtime s[96:97]"]
    if prefetch:
        o += code_prefetch(prefetch[0], prefetch[1], sCODE, vT, vT+1)
        for i in range(0, prefetch[1], 32768):
            o += [f"s_mov_b32 s{sT0}, {i}", VM(f"buffer_load_dword v{vT+1}, v{vT}, s[{sCODE}:{sCODE+3}], s{sT0} offen", "code")]
    r8, c8 = vT+2, vT+3
    o += [f"""
    v_lshrrev_b32 v{vT+2}, 6, v0
    v_and_b32 v0, 63, v0
    v_readfirstlane_b32 s{sW}, v{vT+2}
    v_lshlrev_b32 v{vL16}, 4, v0
    s_and_b32 s{sRB}, s2, 7
    s_lshl_b32 s{sRB}, s{sRB}, 2
    s_bfe_u32 s{sT0}, s2, 0x20003
    s_add_u32 s{sRB}, s{sRB}, s{sT0}
    s_lshr_b32 s{sCT}, s2, 5
    v_lshrrev_b32 v{r8}, 3, v0
    v_and_b32 v{c8}, 7, v0
    v_and_b32 v{vT+6}, 6, v{r8}
    v_xor_b32 v{vT+6}, v{vT+6}, v{c8}
    v_lshlrev_b32 v{vT+6}, 4, v{vT+6}
    v_lshl_add_u32 v{vWD}, v{r8}, 10, v{vT+6}
    v_add_u32 v{vWD+1}, 7168, v{vWD}
    v_add_u32 v{vWD+2}, {2*7168}, v{vWD}
    v_add_u32 v{vWD+3}, {3*7168}, v{vWD}
    s_lshl_b32 s{sM0}, s{sW}, 15
    s_lshl_b32 s{sT0}, s{sCT}, 7
    s_mul_i32 s{sWO}, s{sW}, {1024*1024 if which == 3 else 448*1024}
    s_add_u32 s{sWO}, s{sWO}, s{sT0}
    s_lshl_b32 s{sRT}, s{sRB}, 2
    s_add_u32 s{sRT}, s{sRT}, s{sW}
    """]
    if which == 3:
        o += [f"s_lshl_b32 s{sA}, s{sRB}, 19", f"s_lshl_b32 s{sT0}, s{sW}, 15", f"s_add_u32 s{sA}, s{sA}, s{sT0}", f"s_add_u32 s{sA}, s{sA}, {WS_CTX}"]
        o += [f"s_add_u32 s{sA+r}, s{sA}, {r*131072}" for r in range(1, 4)]
        steps = [dict(rows=32*i, nd=4, act=[(r, ("off", r, i*1024)) for r in range(4)], half=False) for i in range(32)]
    else:
        o += [f"s_mul_i32 s{sA}, s{sRB}, {2*16*7168}", f"s_mul_i32 s{sT0}, s{sW}, {4*7168}", f"s_add_u32 s{sA}, s{sA}, s{sT0}",
              f"s_add_u32 s{sA}, s{sA}, {WS_H1}", f"s_add_u32 s{sA+1}, s{sA}, {16*7168}"]
        steps = []
        for n in range(4):
            for j in range(3):
                steps.append(dict(rows=112*n + 32*j, nd=4, act=[(r, ("off", r >> 1, n*7168 + (3*(r & 1)+j)*1024)) for r in range(4)], half=False))
            steps.append(dict(rows=112*n + 96, nd=2, act=[(pp, ("off", pp, n*7168 + 6144)) for pp in range(2)], half=True))
    NS = len(steps)
    o += ["s_waitcnt lgkmcnt(0)"]
    o += srd(sWT, P("wo" if which == 3 else "w2"), 4*MB if which == 3 else 1792*1024) + srd(sWS, P("ws"), WS_SIZE)
    def Af(i, r): return (i % 8)*16 + r*4
    def loads(i):
        st = steps[i]; g = []
        grp = [f"s_add_u32 m0, s{sM0}, {(i % 8)*4096}", f"s_add_u32 s{sT1}, s{sWO}, {st['rows']*1024}"]
        for n in range(st["nd"]):
            grp.append(VM(f"buffer_load_dwordx4 v{vWD+n}, s[{sWT}:{sWT+3}], s{sT1} offen offset:{n*1024} lds", ("w", i))); g.append(grp); grp = []
        for r, (_, sb, off) in st["act"]:
            x = []
            if off < 4096: so = f"s{sA+sb}"
            else: x.append(f"s_add_u32 s{sT0}, s{sA+sb}, {off & ~4095}"); so = f"s{sT0}"
            x.append(VM(f"buffer_load_dwordx4 {ar(Af(i, r), 4)}, v{vL16}, s[{sWS}:{sWS+3}], {so} offen offset:{off & 4095}", ("a", i)))
            g.append(x)
        return g
    for i in range(2): o += loads(i)
    o += [f"""
    v_lshrrev_b32 v{vT+6}, 4, v0
    v_bfe_u32 v{vT+7}, v0, 2, 2
    v_lshl_add_u32 v{vT+8}, v{vT+6}, 2, v{vT+7}
    v_bfe_u32 v{vT+9}, v{vT+8}, 1, 2
    v_lshlrev_b32 v{vT+8}, 7, v{vT+8}
    v_lshl_add_u32 v{vT+8}, v{vT+9}, 5, v{vT+8}
    v_and_b32 v{vT+9}, 3, v0
    v_lshl_add_u32 v{vT+8}, v{vT+9}, 3, v{vT+8}
    v_add_u32 v{vTR}, s{sM0}, v{vT+8}
    v_xor_b32 v{vTR+1}, 32, v{vTR}
    v_xor_b32 v{vTR+2}, 64, v{vTR}
    v_xor_b32 v{vTR+3}, 0x60, v{vTR}
    """]
    for i in range(2, PD): o += loads(i)
    vG16, vRM = vT+4, vT+5
    o += [f"v_lshlrev_b32 v{vG16}, 4, v{vT+6}", f"v_and_b32 v{vT+7}, 15, v0", f"v_lshlrev_b32 v{vRM}, 10, v{vT+7}",
          f"v_lshl_add_u32 v{vRM}, v{vT+6}, 3, v{vRM}", f"s_lshl_b32 s{sMF}, s{sCT}, 8", f"s_add_u32 s{sMF}, s{sMF}, {WS_MODF}"]
    epl = []
    def modf(dst, vec):
        return [[f"s_add_u32 s{sT0}, s{sMF}, {vec*2048}"] * (t == 0 or True) +
                [VM(f"buffer_load_dwordx4 {vr(dst+4*t, 4)}, v{vG16}, s[{sWS}:{sWS+3}], s{sT0} offen offset:{t*64}", "ep")] for t in range(4)]
    if which == 3:
        GA, AV, BV, XR = EP, EP+16, EP+32, EP+48
        o += srd(sX, P("x"), 2*MB)
        epl += modf(GA, 2) + modf(AV, 4) + modf(BV, 3)
        epl += [[f"s_lshl_b32 s{sT0}, s{sRT}, 14", f"s_lshl_b32 s{sT1}, s{sCT}, 7", f"s_add_u32 s{sT0}, s{sT0}, s{sT1}",
                 VM(f"buffer_load_dwordx2 {vr(XR+2*t, 2)}, v{vRM}, s[{sX}:{sX+3}], s{sT0} offen offset:{t*32}", "ep")] for t in range(4)]
    else:
        GB, B2, XR = EP, EP+16, EP+24
        o += srd(sB2, P("b2"), 1024) + srd(sOUT, P("out"), 2*MB) + [f"v_lshlrev_b32 v{vT+7}, 3, v{vT+6}"]
        epl += modf(GB, 5)
        epl += [[f"s_lshl_b32 s{sT0}, s{sCT}, 7", VM(f"buffer_load_dwordx2 {vr(B2+2*t, 2)}, v{vT+7}, s[{sB2}:{sB2+3}], s{sT0} offen offset:{t*32}", "ep")] for t in range(4)]
        epl += [[f"s_lshl_b32 s{sT0}, s{sRT}, 14", f"s_lshl_b32 s{sT1}, s{sCT}, 11", f"s_add_u32 s{sT0}, s{sT0}, s{sT1}", f"s_add_u32 s{sT0}, s{sT0}, {WS_X1}",
                 VM(f"buffer_load_dwordx4 {vr(XR+4*p, 4)}, v{vL16}, s[{sWS}:{sWS+3}], s{sT0} offen offset:{p*1024}", "ep")] for p in range(2)]
    def tr(i):
        return [LG(f"ds_read_b64_tr_b16 {vr(WF + (i & 1)*16 + t*4 + 2*hh, 2)}, v{vTR+t} offset:{(i % 8)*4096 + hh*2048}", ("t", i))
                for t in range(4) for hh in range(1 if steps[i]["half"] else 2)]
    o += [W(vm=[("w", 0)]), tr(0)]
    if ts: o += [stamp(0)]
    for i in range(NS):
        st = steps[i]; sl = []
        for t in range(4):
            for r in range(4):
                d = vr(ACC + (t*4+r)*4, 4); c = "0" if i == 0 else d
                if st["half"]: m = f"v_mfma_f32_16x16x16_bf16 {d}, {vr(WF + (i & 1)*16 + t*4, 2)}, {ar(Af(i, r >> 1) + 2*(r & 1), 2)}, {c}"
                else: m = f"v_mfma_f32_16x16x32_bf16 {d}, {vr(WF + (i & 1)*16 + t*4, 4)}, {ar(Af(i, r), 4)}, {c}"
                sl.append(Slot(I(m)))
        sl[0].pre.append(W(vm=[("a", i)], lg=[("t", i)]))
        if i + PD < NS:
            for k, g in enumerate(loads(i + PD)): sl[k].mem.append(g)
        elif epl:
            for k in range(8):
                if epl: sl[k].mem.append(epl.pop(0))
        if i + 1 < NS:
            sl[7].alu.append(W(vm=[("w", i+1)]))
            for k, x in enumerate(tr(i+1)): sl[8+k].mem.append(x)
        o += emit_slots(sl)
        if ts and i % (NS//4) == NS//4 - 1: o += [stamp(1 + i//(NS//4))]
    assert not epl
    o += ["s_barrier", f"s_lshl_b32 s{sT0}, s{sW}, 14", f"v_add_u32 v{vT}, s{sT0}, v{vL16}", f"s_lshl_b32 s{sT0}, s{sW}, 12", f"v_add_u32 v{vT+1}, s{sT0}, v{vL16}"]
    for t in range(4):
        for r in range(4): o += [LG(f"ds_write_b128 v{vT}, {vr(ACC + (t*4+r)*4, 4)} offset:{(r*4+t)*1024}", "rw")]
    o += [W(lg="rw"), "s_barrier"]
    for t in range(4):
        for src in range(4): o += [LG(f"ds_read_b128 {vr(ACC + (t*4+src)*4, 4)}, v{vT+1} offset:{src*16384 + t*1024}", ("rr", t))]
    def rnd(r0, r1, t): return [f"v_cvt_pk_bf16_f32 v{t}, v{r0}, v{r1}", f"v_lshlrev_b32 v{r0}, 16, v{t}", f"v_and_b32 v{r1}, 0xffff0000, v{t}"]
    o += [W(vm="ep")]
    F = WF
    if which == 3:
        for j in range(0, 16, 2):
            o += [f"v_add_f32 v{AV+j}, 1.0, v{AV+j}", f"v_add_f32 v{AV+j+1}, 1.0, v{AV+j+1}"] + rnd(AV+j, AV+j+1, vT+2)
    for j in range(8): o += [f"v_lshlrev_b32 v{F+2*j}, 16, v{XR+j}", f"v_and_b32 v{F+2*j+1}, 0xffff0000, v{XR+j}"]
    if which == 5:
        for j in range(8): o += [f"v_lshlrev_b32 v{F+16+2*j}, 16, v{B2+j}", f"v_and_b32 v{F+16+2*j+1}, 0xffff0000, v{B2+j}"]
    for t in range(4):
        b = ACC + t*16
        o += [W(lg=[("rr", t)])]
        for h in (0, 2):
            o += [f"v_pk_add_f32 {vr(b+h, 2)}, {vr(b+h, 2)}, {vr(b+4+h, 2)}", f"v_pk_add_f32 {vr(b+8+h, 2)}, {vr(b+8+h, 2)}, {vr(b+12+h, 2)}"]
        for h in (0, 2): o += [f"v_pk_add_f32 {vr(b+h, 2)}, {vr(b+h, 2)}, {vr(b+8+h, 2)}"]
        if which == 5:
            for h in (0, 2): o += [f"v_pk_add_f32 {vr(b+h, 2)}, {vr(b+h, 2)}, {vr(F+16+4*t+h, 2)}"]
        G = GA if which == 3 else GB
        for h in (0, 2): o += [f"v_pk_fma_f32 {vr(F+4*t+h, 2)}, {vr(b+h, 2)}, {vr(G+4*t+h, 2)}, {vr(F+4*t+h, 2)}"]
    if which == 5:
        o += [f"s_lshl_b32 s{sT0}, s{sRT}, 14", f"s_lshl_b32 s{sT1}, s{sCT}, 7", f"s_add_u32 s{sT0}, s{sT0}, s{sT1}"]
        for t in range(4):
            o += [f"v_cvt_pk_bf16_f32 v{XR+2*t}, v{F+4*t}, v{F+4*t+1}", f"v_cvt_pk_bf16_f32 v{XR+2*t+1}, v{F+4*t+2}, v{F+4*t+3}",
                  VM(f"buffer_store_dwordx2 {vr(XR+2*t, 2)}, v{vRM}, s[{sOUT}:{sOUT+3}], s{sT0} offen offset:{t*32}")]
    else:
        Z, ZP, ST = ACC, ACC+16, ACC+24
        o += [f"s_lshl_b32 s{sT0}, s{sRT}, 14", f"s_lshl_b32 s{sT1}, s{sCT}, 11", f"s_add_u32 s{sT0}, s{sT0}, s{sT1}",
              f"s_add_u32 s{sT1}, s{sT0}, {WS_Z}", f"s_add_u32 s{sT0}, s{sT0}, {WS_X1}"]
        for j in range(8): o += rnd(F+2*j, F+2*j+1, XR+j)
        for p in range(2): o += [VM(f"buffer_store_dwordx4 {vr(XR+4*p, 4)}, v{vL16}, s[{sWS}:{sWS+3}], s{sT0} offen offset:{p*1024} sc1")]
        for j in range(0, 16, 2): o += [f"v_pk_mul_f32 {vr(Z+j, 2)}, {vr(F+j, 2)}, {vr(AV+j, 2)}"]
        for j in range(8): o += [f"v_cvt_pk_bf16_f32 v{ZP+j}, v{Z+2*j}, v{Z+2*j+1}"]
        for p in range(2): o += [VM(f"buffer_store_dwordx4 {vr(ZP+4*p, 4)}, v{vL16}, s[{sWS}:{sWS+3}], s{sT1} offen offset:{p*1024} sc1")]
        for j in range(0, 16, 2):
            x, z, a, b = vr(F+j, 2), vr(Z+j, 2), vr(AV+j, 2), vr(BV+j, 2)
            S = [vr(ST+2*k, 2) for k in range(6)]
            if j == 0:
                o += [f"v_pk_add_f32 {S[0]}, {x}, {vr(F+2, 2)}", f"v_pk_mul_f32 {S[1]}, {x}, {x}", f"v_pk_add_f32 {S[2]}, {z}, {vr(Z+2, 2)}",
                      f"v_pk_mul_f32 {S[3]}, {z}, {z}", f"v_pk_mul_f32 {S[4]}, {a}, {z}", f"v_pk_mul_f32 {S[5]}, {b}, {z}"]
            else:
                if j > 2: o += [f"v_pk_add_f32 {S[0]}, {S[0]}, {x}", f"v_pk_add_f32 {S[2]}, {S[2]}, {z}"]
                o += [f"v_pk_fma_f32 {S[1]}, {x}, {x}, {S[1]}", f"v_pk_fma_f32 {S[3]}, {z}, {z}, {S[3]}",
                      f"v_pk_fma_f32 {S[4]}, {a}, {z}, {S[4]}", f"v_pk_fma_f32 {S[5]}, {b}, {z}, {S[5]}"]
        o += [f"v_add_f32 v{ST+2*k}, v{ST+2*k}, v{ST+2*k+1}" for k in range(6)]
        o += [f"v_permlane16_swap_b32 v{ST+4*k}, v{ST+4*k+2}" for k in range(3)]
        o += [f"v_add_f32 v{ST+4*k}, v{ST+4*k}, v{ST+4*k+2}" for k in range(3)]
        o += [f"v_mov_b32 v{ST+10}, v{ST+8}", f"v_permlane32_swap_b32 v{ST}, v{ST+4}", f"v_permlane32_swap_b32 v{ST+8}, v{ST+10}",
              f"v_add_f32 v{ST}, v{ST}, v{ST+4}", f"v_add_f32 v{ST+1}, v{ST+8}, v{ST+10}",
              f"s_lshl_b32 s{sT0}, s{sRT}, 12", f"s_lshl_b32 s{sT1}, s{sCT}, 9", f"s_add_u32 s{sT0}, s{sT0}, s{sT1}", f"s_add_u32 s{sT0}, s{sT0}, {WS_STAT}",
              f"v_lshlrev_b32 v{vT}, 3, v0", VM(f"buffer_store_dwordx2 {vr(ST, 2)}, v{vT}, s[{sWS}:{sWS+3}], s{sT0} offen sc1")]
    if ts: o += [stamp(5)] + dump_stamps(kidx, sWS, sW, 8)
    o += [f"Lend_{name}:", "s_endpgm"]
    return o
```

```python
from common import *

def k4(name, ts=False, prefetch=None, kidx=3):
    sW1, sWS, sB1, sCODE = 8, 12, 16, 40
    sW, sPAIR, sN = 3, 4, 5
    sK = 20
    sC0, sC1, sONE = 26, 28, 30
    sT0, sT1, sWO, sM0, sZ0, sZ1, sODD = range(76, 83)
    vL16, vWD, vTR, vTX, vE, vT = 1, 2, 6, 13, 15, 16
    ACC, XA, WF, XF, EF, ST, CO, B1 = 32, 88, 96, 128, 144, 152, 184, 192
    MISC = 131072; EARR = MISC; UVS = MISC + 3072
    o = ["s_cmp_ge_u32 s2, 256", f"s_cbranch_scc1 Lend_{name}"] + load_args()
    if ts: o += ["s_memrealtime s[96:97]"]
    if prefetch:
        o += code_prefetch(prefetch[0], prefetch[1], sCODE, vT, vT+1)
        for i in range(0, prefetch[1], 32768):
            o += [f"s_mov_b32 s{sT0}, {i}", VM(f"buffer_load_dword v{vT+1}, v{vT}, s[{sCODE}:{sCODE+3}], s{sT0} offen", "code")]
    g4, c16 = vT+2, vT+3
    o += [f"""
    v_lshrrev_b32 v{vT+2}, 6, v0
    v_and_b32 v0, 63, v0
    v_readfirstlane_b32 s{sW}, v{vT+2}
    v_lshlrev_b32 v{vL16}, 4, v0
    s_and_b32 s{sPAIR}, s2, 7
    s_lshl_b32 s{sPAIR}, s{sPAIR}, 1
    s_bfe_u32 s{sT0}, s2, 0x10003
    s_add_u32 s{sPAIR}, s{sPAIR}, s{sT0}
    s_lshl_b32 s{sPAIR}, s{sPAIR}, 2
    s_add_u32 s{sPAIR}, s{sPAIR}, s{sW}
    s_lshr_b32 s{sN}, s2, 4
    s_and_b32 s{sODD}, s{sN}, 1
    v_lshrrev_b32 v{g4}, 4, v0
    v_and_b32 v{c16}, 15, v0
    v_lshlrev_b32 v{vT+6}, 1, v{g4}
    v_xor_b32 v{vT+6}, v{vT+6}, v{c16}
    v_lshlrev_b32 v{vT+6}, 4, v{vT+6}
    v_mul_u32_u24 v{vT+7}, 3584, v{g4}
    v_add_u32 v{vWD}, v{vT+6}, v{vT+7}
    v_xor_b32 v{vT+6}, 0x80, v{vT+6}
    v_add_u32 v{vWD+1}, v{vT+6}, v{vT+7}
    v_add_u32 v{vWD+1}, {4*3584-1024}, v{vWD+1}
    v_add_u32 v{vWD+2}, {2*(4*3584-1024)}, v{vWD}
    v_add_u32 v{vWD+3}, {2*(4*3584-1024)}, v{vWD+1}
    s_mul_i32 s{sWO}, s{sN}, 224
    s_lshl_b32 s{sT0}, s{sODD}, 5
    s_sub_u32 s{sWO}, s{sWO}, s{sT0}
    s_mul_i32 s{sT0}, s{sW}, {16*3584}
    s_add_u32 s{sWO}, s{sWO}, s{sT0}
    s_lshl_b32 s{sM0}, s{sW}, 12
    s_lshl_b32 s{sZ0}, s{sPAIR}, 15
    s_add_u32 s{sZ0}, s{sZ0}, {WS_Z}
    s_add_u32 s{sZ1}, s{sZ0}, 16384
    v_lshlrev_b32 v{vT+4}, 5, v0
    v_lshlrev_b32 v{vT+5}, 3, v0
    s_waitcnt lgkmcnt(0)
    """]
    o += srd(sW1, P("w1"), 512*3584) + srd(sWS, P("ws"), WS_SIZE)
    AV, BV = ACC, ACC+8
    o += [f"s_mov_b32 s{sT0}, {WS_MODF + 3*2048}"]
    for r, off in ((AV, 2048), (AV+4, 2064), (BV, 0), (BV+4, 16)):
        o += [VM(f"buffer_load_dwordx4 {vr(r, 4)}, v{vT+4}, s[{sWS}:{sWS+3}], s{sT0} offen offset:{off}", "ab")]
    def w_dma(q):
        g = []; grp = [f"s_add_u32 m0, s{sM0}, {q*16384}", f"s_add_u32 s{sT1}, s{sWO}, {q*64*3584}"]
        for n in range(4):
            grp.append(VM(f"buffer_load_dwordx4 v{vWD+n}, s[{sW1}:{sW1+3}], s{sT1} offen offset:{n*1024} lds", ("w", q))); g.append(grp); grp = []
        return g
    def Zf(s, r): return ar((s*2+r)*4, 4)
    def z_ld(s):
        g = []
        for r in range(2):
            x = [VM(f"buffer_load_dwordx4 {Zf(s, r)}, v{vL16}, s[{sWS}:{sWS+3}], s{sZ0+r} offen offset:{(s & 3)*1024}", ("z", s))]
            if (s & 3) == 3: x.append(f"s_add_u32 s{sZ0+r}, s{sZ0+r}, 4096")
            g.append(x)
        return g
    for q in range(5): o += [w_dma(q), z_ld(2*q), z_ld(2*q+1)]
    o += [f"s_lshl_b32 s{sT0}, s{sPAIR}, 13", f"s_add_u32 s{sT0}, s{sT0}, {WS_STAT}", f"s_add_u32 s{sT1}, s{sT0}, 4096"]
    for r in range(2):
        for ct in range(8):
            o += [VM(f"buffer_load_dwordx2 {vr(ST + r*16 + 2*ct, 2)}, v{vT+5}, s[{sWS}:{sWS+3}], s{sT0+r} offen offset:{ct*512}", "st")]
    o += [f"""
    v_bfe_u32 v{vT+7}, v0, 2, 2
    v_lshl_add_u32 v{vT+8}, v{g4}, 2, v{vT+7}
    v_and_b32 v{vT+9}, 7, v{vT+8}
    v_lshlrev_b32 v{vT+8}, 8, v{vT+8}
    v_and_b32 v{vT+10}, 3, v0
    v_lshl_add_u32 v{vT+8}, v{vT+10}, 3, v{vT+8}
    """]
    for t in range(7):
        o += [f"s_add_u32 s{sT0}, s{sODD}, {t}", f"v_xor_b32 v{vT+10}, s{sT0}, v{vT+9}", f"v_lshl_add_u32 v{vTR+t}, v{vT+10}, 5, v{vT+8}"]
    for k in range(2):
        o += [f"s_lshl_b32 s{sT0}, s{sW}, 1", f"s_add_u32 s{sT0}, s{sT0}, s{sODD}", f"s_add_u32 s{sT0}, s{sT0}, {k}", f"s_and_b32 s{sT0}, s{sT0}, 7",
              f"v_xor_b32 v{vT+10}, s{sT0}, v{vT+9}", f"v_lshl_add_u32 v{vTX+k}, v{vT+10}, 5, v{vT+8}"]
    o += [f"v_min_u32 v{vT+10}, 2, v{c16}", f"v_lshlrev_b32 v{vT+10}, 10, v{vT+10}", f"v_lshl_add_u32 v{vE}, v{g4}, 3, v{vT+10}",
          f"v_add_u32 v{vE}, {EARR}, v{vE}"]
    TT = ACC+16
    o += [W(vm="ab")]
    for j in range(8): o += [f"v_add_f32 v{AV+j}, 1.0, v{AV+j}"]
    for j in range(4):
        o += [f"v_cvt_pk_bf16_f32 v{TT+j}, v{AV+2*j}, v{AV+2*j+1}", f"v_cvt_pk_bf16_f32 v{TT+4+j}, v{BV+2*j}, v{BV+2*j+1}", f"v_mov_b32 v{TT+8+j}, 0x3f803f80"]
    for j in range(4): o += [f"v_lshlrev_b32 v{AV+2*j}, 16, v{TT+j}", f"v_and_b32 v{AV+2*j+1}, 0xffff0000, v{TT+j}"]
    o += [f"v_add_u32 v{vT+10}, {EARR}, v{vL16}"]
    for k in range(3): o += [LG(f"ds_write_b128 v{vT+10}, {vr(TT+4*k, 4)} offset:{k*1024}", "ew")]
    SS = TT+12
    for j in range(0, 8, 2):
        a, b = vr(AV+j, 2), vr(BV+j, 2); S = [vr(SS+2*k, 2) for k in range(5)]
        if j == 0: o += [f"v_pk_add_f32 {S[0]}, {a}, {vr(AV+2, 2)}", f"v_pk_mul_f32 {S[1]}, {a}, {a}", f"v_pk_mul_f32 {S[2]}, {a}, {b}",
                         f"v_pk_add_f32 {S[3]}, {b}, {vr(BV+2, 2)}", f"v_pk_mul_f32 {S[4]}, {b}, {b}"]
        else:
            if j > 2: o += [f"v_pk_add_f32 {S[0]}, {S[0]}, {a}", f"v_pk_add_f32 {S[3]}, {S[3]}, {b}"]
            o += [f"v_pk_fma_f32 {S[1]}, {a}, {a}, {S[1]}", f"v_pk_fma_f32 {S[2]}, {a}, {b}, {S[2]}", f"v_pk_fma_f32 {S[4]}, {b}, {b}, {S[4]}"]
    o += [f"v_add_f32 v{SS+2*k}, v{SS+2*k}, v{SS+2*k+1}" for k in range(5)]
    for m in ("quad_perm:[1,0,3,2]", "quad_perm:[2,3,0,1]", "row_ror:4", "row_ror:8"):
        o += [f"v_add_f32_dpp v{SS+2*k}, v{SS+2*k}, v{SS+2*k} {m} row_mask:0xf bank_mask:0xf" for k in range(5)]
    for sw in ("v_permlane16_swap_b32", "v_permlane32_swap_b32"):
        o += [f"v_mov_b32 v{SS+2*k+1}, v{SS+2*k}" for k in range(5)] + [f"{sw} v{SS+2*k}, v{SS+2*k+1}" for k in range(5)]
        o += [f"v_add_f32 v{SS+2*k}, v{SS+2*k}, v{SS+2*k+1}" for k in range(5)]
    o += [f"v_readfirstlane_b32 s{sK+k}, v{SS+2*k}" for k in range(5)]
    o += srd(sB1, P("b1"), 3584)
    c0 = -2*0.7978845608028654*1.4426950408889634
    o += [f"s_mov_b32 s{sC0}, {fbits(c0)}", f"s_mov_b32 s{sC0+1}, s{sC0}", f"s_mov_b32 s{sC1}, {fbits(c0*0.044715)}", f"s_mov_b32 s{sC1+1}, s{sC1}",
          f"s_mov_b32 s{sONE}, 1.0", f"s_mov_b32 s{sONE+1}, 1.0"]
    LA = 4
    frags = [(s, t) for s in range(16) for t in range(9)]
    slots = []; first = {}
    ring = {}
    nW = 0
    for f, (s, t) in enumerate(frags):
        first[f] = len(slots)
        if t < 7:
            ring[f] = WF + (nW % 8)*4; nW += 1
            for r in range(2):
                d = vr(ACC + (t*2+r)*4, 4)
                slots.append(Slot(I(f"v_mfma_f32_16x16x32_bf16 {d}, {vr(ring[f], 4)}, {Zf(s, r)}, {'0' if s == 0 else d}")))
        else:
            ring[f] = XF + ((s & 1)*2 + t - 7)*4
            d = vr(XA + (t-7)*4, 4)
            slots.append(Slot(I(f"v_mfma_f32_16x16x32_bf16 {d}, {vr(ring[f], 4)}, {vr(EF + (s & 1)*4, 4)}, {'0' if s == 0 else d}")))
        slots[first[f]].pre.append(W(lg=[("wf", f)]))
        if t == 0: slots[first[f]].pre.append(W(vm=[("z", s)]))
    def reads(f):
        s, t = frags[f]; g = []
        if s == 8 and t == 0: g = [f"v_add_u32 v{vTR+i}, 0x10000, v{vTR+i}" for i in range(9)]
        ad = vTR+t
        rd = [LG(f"ds_read_b64_tr_b16 {vr(ring[f]+2*hh, 2)}, v{ad} offset:{(s & 7)*8192 + hh*4096}", ("wf", f)) for hh in range(2)]
        if t == 7: rd = [LG(f"ds_read_b64 {vr(EF + (s & 1)*4 + 2*hh, 2)}, v{vE} offset:{s*64 + hh*32}", ("wf", f)) for hh in range(2)] + rd
        return g, rd
    assert vTX == vTR + 7
    o += [W(vm=[("w", 0)], lg="ew"), "s_barrier"]
    for f in range(LA): o += reads(f)[1]
    if ts: o += [stamp(0)]
    for f in range(LA, len(frags)):
        s, t = frags[f]; i = first[f - LA]
        if t == 0 and s % 2 == 0: slots[i-1].alu += [W(vm=[("w", s//2)]), I("s_barrier")]
        g, rd = reads(f)
        slots[i-1].alu += flat(g)
        for k, x in enumerate(rd): slots[i + (k if frags[f-LA][1] < 7 and k < 2 else 0)].mem.append(x)
    for q in range(5, 8):
        for k, g in enumerate(w_dma(q) + z_ld(2*q) + z_ld(2*q+1)): slots[(q-5)*32 + 2 + 3*k].mem.append(g)
    for t in range(7):
        slots[100 + 2*t].mem += flat([f"s_mul_i32 s{sT0}, s{sN}, 224", f"v_lshlrev_b32 v{vT+4}, 3, v{g4}"] * (t == 0) +
                                     [VM(f"buffer_load_dwordx2 {vr(B1+2*t, 2)}, v{vT+4}, s[{sB1}:{sB1+3}], s{sT0} offen offset:{t*32}", "b1")])
    bg = []
    for r in range(2):
        b = ST + r*16
        for ct in range(1, 8): bg += [f"v_add_f32 v{b}, v{b}, v{b+2*ct}", f"v_add_f32 v{b+1}, v{b+1}, v{b+2*ct+1}"]
        S1, S5, S2, S3, S4, S6, M1, R1, T0, T1, T2 = b, b+1, b+2, b+3, b+4, b+5, b+6, b+7, b+8, b+9, b+10
        bg += [f"v_mov_b32 v{S2}, v{S1}", f"v_mov_b32 v{S6}, v{S5}", f"v_permlane16_swap_b32 v{S1}, v{S2}", f"v_permlane16_swap_b32 v{S5}, v{S6}",
               f"v_mov_b32 v{S3}, v{S1}", f"v_mov_b32 v{S4}, v{S2}", f"v_permlane32_swap_b32 v{S1}, v{S3}", f"v_permlane32_swap_b32 v{S2}, v{S4}"]
        n = fbits(1/512); al, be, ga, de = CO+4*r, CO+4*r+1, CO+4*r+2, CO+4*r+3
        bg += [f"v_mul_f32 v{M1}, {n}, v{S1}",
               f"v_mul_f32 v{T0}, {n}, v{S2}", f"v_fma_f32 v{T0}, -v{M1}, v{M1}, v{T0}", f"v_add_f32 v{T0}, {fbits(EPS)}, v{T0}", f"v_rsq_f32 v{R1}, v{T0}",
               f"v_fma_f32 v{T0}, -v{M1}, s{sK}, v{S3}",
               f"v_mul_f32 v{T1}, s{sK+1}, v{M1}", f"v_fma_f32 v{T1}, -2.0, v{S5}, v{T1}", f"v_fma_f32 v{T1}, v{T1}, v{M1}, v{S4}",
               f"v_fma_f32 v{T2}, -v{M1}, s{sK+2}, v{S6}",
               f"v_fma_f32 v{T0}, v{T0}, v{R1}, s{sK+3}", f"v_mul_f32 v{T0}, {n}, v{T0}",
               f"v_mul_f32 v{T1}, v{T1}, v{R1}", f"v_fma_f32 v{T1}, 2.0, v{T2}, v{T1}", f"v_fma_f32 v{T1}, v{T1}, v{R1}, s{sK+4}",
               f"v_mul_f32 v{T1}, {n}, v{T1}", f"v_fma_f32 v{T1}, -v{T0}, v{T0}, v{T1}", f"v_add_f32 v{T1}, {fbits(EPS)}, v{T1}", f"v_rsq_f32 v{ga}, v{T1}",
               f"v_mul_f32 v{M1}, -1.0, v{M1}", f"v_mul_f32 v{al}, v{R1}, v{ga}", f"v_mul_f32 v{de}, v{T0}, v{ga}", f"v_mul_f32 v{be}, v{M1}, v{al}",
               f"v_mul_f32 v{de}, -1.0, v{de}"]
    bg[0] = [W(vm="st"), bg[0]]
    spread(slots, bg, 130, 250)
    o += emit_slots(slots)
    if ts: o += [stamp(1)]
    o += [f"v_lshlrev_b32 v{vT+5}, 9, v{c16}", f"v_lshl_add_u32 v{vT+5}, v{g4}, 4, v{vT+5}", f"s_lshl_b32 s{sT0}, s{sW}, 7", f"s_add_u32 s{sT0}, s{sT0}, {UVS}",
          f"v_add_u32 v{vT+5}, s{sT0}, v{vT+5}", f"v_lshlrev_b32 v{vT+6}, 4, v{g4}", f"v_add_u32 v{vT+6}, {UVS}, v{vT+6}"]
    o += [LG(f"ds_write_b128 v{vT+5}, {vr(XA+4*k, 4)} offset:{k*64}", "uw") for k in range(2)]
    o += [W(lg="uw"), "s_barrier"]
    U = [96, 108, 120]; HB = 208
    def uvs(t): return [LG(f"ds_read_b128 {vr(U[t % 3]+4*k, 4)}, v{vT+6} offset:{k*512 + t*64}", ("u", t)) for k in range(3)]
    o += uvs(0) + uvs(1) + [W(vm="b1"), f"s_mul_i32 s{sT0}, s{sPAIR}, {16*7168}", f"s_mul_i32 s{sT1}, s{sN}, 7168", f"s_add_u32 s{sT0}, s{sT0}, s{sT1}",
                            f"s_add_u32 s{sT0}, s{sT0}, {WS_H1}", f"s_add_u32 s{sT1}, s{sT0}, 4096"]
    BB, G = 136, 140
    for t in range(7):
        if t + 2 < 7: o += uvs(t+2)
        o += [f"v_lshlrev_b32 v{BB}, 16, v{B1+2*t}", f"v_and_b32 v{BB+1}, 0xffff0000, v{B1+2*t}",
              f"v_lshlrev_b32 v{BB+2}, 16, v{B1+2*t+1}", f"v_and_b32 v{BB+3}, 0xffff0000, v{B1+2*t+1}", W(lg=[("u", t)])]
        u = U[t % 3]
        cells = [(r, h) for r in range(2) for h in (0, 2)]
        X = lambda r, h: vr(ACC + (t*2+r)*4 + h, 2)
        T = lambda r, h: vr(G + r*4 + h, 2)
        lo, hi = "op_sel:[0,0,0] op_sel_hi:[1,0,1]", "op_sel:[0,1,0] op_sel_hi:[1,1,1]"
        for r, h in cells: o += [f"v_pk_fma_f32 {T(r,h)}, {vr(u+8+h,2)}, {vr(CO+4*r+2,2)}, {vr(BB+h,2)} {hi}"]
        for r, h in cells: o += [f"v_pk_fma_f32 {T(r,h)}, {vr(u+4+h,2)}, {vr(CO+4*r+2,2)}, {T(r,h)} {lo}"]
        for r, h in cells: o += [f"v_pk_fma_f32 {T(r,h)}, {vr(u+h,2)}, {vr(CO+4*r,2)}, {T(r,h)} {hi}"]
        for r, h in cells: o += [f"v_pk_fma_f32 {X(r,h)}, {X(r,h)}, {vr(CO+4*r,2)}, {T(r,h)} {lo}"]
        for r, h in cells: o += [f"v_pk_mul_f32 {T(r,h)}, {X(r,h)}, {X(r,h)}"]
        for r, h in cells: o += [f"v_pk_mul_f32 {T(r,h)}, {T(r,h)}, s[{sC1}:{sC1+1}]"]
        for r, h in cells: o += [f"v_pk_add_f32 {T(r,h)}, {T(r,h)}, s[{sC0}:{sC0+1}]"]
        for r, h in cells: o += [f"v_pk_mul_f32 {T(r,h)}, {T(r,h)}, {X(r,h)}"]
        o += [f"v_exp_f32 v{G+k}, v{G+k}" for k in range(8)]
        for r, h in cells: o += [f"v_pk_add_f32 {T(r,h)}, {T(r,h)}, s[{sONE}:{sONE+1}]"]
        o += [f"v_rcp_f32 v{G+k}, v{G+k}" for k in range(8)]
        for r, h in cells: o += [f"v_pk_mul_f32 {X(r,h)}, {X(r,h)}, {T(r,h)}"]
        for r, h in cells:
            a = ACC + (t*2+r)*4 + h
            dst = HB + ((3*r + t//2)*4 + (t & 1)*2 if t < 6 else 24 + 2*r) + h//2
            o += [f"v_cvt_pk_bf16_f32 v{dst}, v{a}, v{a+1}"]
        fr = [3*r + t//2 for r in range(2)] if (t < 6 and t & 1) else ([6] if t == 6 else [])
        for k in fr: o += [VM(f"buffer_store_dwordx4 {vr(HB+4*k, 4)}, v{vL16}, s[{sWS}:{sWS+3}], s{sT0 + (k >= 4)} offen offset:{(k & 3)*1024} sc1")]
    if ts: o += [stamp(2)] + dump_stamps(kidx, sWS, sW, 4)
    o += [f"Lend_{name}:", "s_endpgm"]
    return o
```

```python
import sys, importlib
sys.path.insert(0, "gen")
from common import *
from k1 import k1
from k2 import k2
from k35 import k35
from k4 import k4
HDR = open("adaLN_cond__compressed_kv_cla__mixer_channel_mlp__prompt.s.ref").read().split("; Override launch")[0]
def build(path, kernels, show=False):
    hdr = HDR; txt = '.amdgcn_target "amdgcn-amd-amdhsa--gfx950"\n.text\n'; kd = '.section .rodata,"a"\n'
    for name, items, lds in kernels:
        hdr += f"; @launch kernel={name} grid=(256,1,1) block=(256,1,1) lds={lds}\n"
        t, n = kernel_text(name, items, show); txt += t; kd += descriptor(name)
        print(name, n, "instructions")
    open(path, "w").write(hdr + txt + kd)
if __name__ == "__main__":
    ts = "ts" in sys.argv
    ks = [("kv_kernel", k1("kv", ts=ts), 163840), ("attn_kernel", k2("attn", ts=ts), 131072 + 64),
          ("oproj_kernel", k35("oproj", 3, ts=ts, kidx=2), 131072), ("mlp1_kernel", k4("mlp1", ts=ts), 131072 + 3072 + 8192),
          ("mlp2_kernel", k35("mlp2", 5, ts=ts, kidx=4), 131072)]
    build([a for a in sys.argv if a.endswith(".s")][0] if any(a.endswith(".s") for a in sys.argv) else "out.s", ks, show="nops" in sys.argv)
```

```python
from common import *
from flay import *

def attention(env, part):
    g_ = env
    (N, ts, st, sW, sK, sV, sMK, sCT, sT0, sT1, sKO, sVO, sKM, sVM, sKR, sVR, sCNT, sMAT, sUS, sUL, sFL, vL16, vKB, vVB, ONES, LS, PB, CB, TMP,
     aK, aV, acc, kv_dma, WS, upto) = [g_[k] for k in
     "N ts st sW sK sV sMK sCT sT0 sT1 sKO sVO sKM sVM sKR sVR sCNT sMAT sUS sUL sFL vL16 vKB vVB ONES LS PB CB TMP aK aV acc kv_dma WS upto".split()]
    FLAG = 131072; NINF = "0xff800000"; sG = 20
    def Q(qi, s4): return vr(acc(2*s4, qi), 4)
    def S(buf, qi, kt): return acc(2*(buf*2+kt)+1, qi)
    def Pq(buf, qi): return PB + (buf*4+qi)*4
    def C(qi, kt): return CB + (qi*2+kt)*4
    def O(t, qi): return ar((t*4+qi)*4, 4)
    def Kf(kt, ds): return ar(aK + (kt*4+ds)*4, 4)
    def Vf(t): return ar(aV + t*4, 4)
    GQ = {0: (0, 1), 1: (2, 3)}
    def mask(g):
        r = []
        for e in range(4):
            for qt in range(2):
                c = C(GQ[g][qt], qt) + e
                r.append(f"v_cndmask_b32 v{c}, v{TMP+31}, v{c}, s[{sMK+2*e}:{sMK+2*e+1}]")
            r.append(f"v_mov_b32 v{C(GQ[g][0], 1)+e}, v{TMP+31}")
        return r
    def k_reads(off): return [LG(f"ds_read_b128 {Kf(kt, ds)}, v{vKB} offset:{off + (kt*4+ds)*1024}", ("k", kt*4+ds)) for kt in range(2) for ds in range(4)]
    def v_reads(off): return [LG(f"ds_read_b128 {Vf(t)}, v{vVB} offset:{off + t*1024}", ("v", t)) for t in range(8)]
    def qk(buf, groups):
        r = []
        for kt in range(2):
            for g in groups:
                for qi in GQ[g]:
                    for ds in range(4):
                        d = vr(S(buf, qi, kt), 4)
                        r.append((I(f"v_mfma_f32_16x16x32_bf16 {d}, {Kf(kt, ds)}, {Q(qi, ds)}, {vr(C(qi, kt), 4) if ds == 0 else d}"), kt*4+ds))
        return r
    def pv(buf, groups):
        r = []
        for t in range(8):
            for g in groups:
                for qi in GQ[g]:
                    r.append((I(f"v_mfma_f32_16x16x32_bf16 {O(t, qi)}, {Vf(t)}, {vr(Pq(buf, qi), 4)}, {O(t, qi)}"), t))
        for g in groups:
            for qi in GQ[g]:
                r.append((I(f"v_mfma_f32_16x16x32_bf16 {vr(LS+4*qi, 4)}, {vr(ONES, 4)}, {vr(Pq(buf, qi), 4)}, {vr(LS+4*qi, 4)}"), None))
        return r
    def softmax(buf, groups):
        ex = []; cv = []
        for g in groups:
            for qi in GQ[g]:
                for kt in range(2):
                    s0 = S(buf, qi, kt)
                    for h in range(2):
                        ex += [f"v_exp_f32 v{s0+2*h}, v{s0+2*h}", f"v_exp_f32 v{s0+2*h+1}, v{s0+2*h+1}"]
                        cv += [f"v_cvt_pk_bf16_f32 v{Pq(buf, qi)+2*kt+h}, v{s0+2*h}, v{s0+2*h+1}"]
        return ex, cv
    if part == "prologue":
        o = env["vcheck"] + [W(vm=[("K", 0), "ud"]), "s_barrier", env["side_reads"], k_reads(0), kv_dma("V", ("V", 0))]
        o += [f"v_mov_b32 v{CB+r}, 0" for r in range(32)] + [f"v_mov_b32 v{LS+r}, 0" for r in range(2)]
        o += [W(lg="ur"), env["side_stores"]] + [kv_dma(wh, (wh, p)) for wh, p in (("K", 2), ("V", 1), ("K", 3), ("V", 2))]
        for s4 in range(4):
            for qi in range(4):
                qa, qb = acc(2*s4, qi), acc(2*s4+1, qi)
                o += [f"v_cvt_pk_bf16_f32 v{qa}, v{qa}, v{qa+1}", f"v_cvt_pk_bf16_f32 v{qa+1}, v{qa+2}, v{qa+3}",
                      f"v_cvt_pk_bf16_f32 v{qa+2}, v{qb}, v{qb+1}", f"v_cvt_pk_bf16_f32 v{qa+3}, v{qb+2}, v{qb+3}"]
        o += [f"v_mov_b32 v{TMP+31}, {NINF}", f"s_cmp_lg_u32 s{sUS}, 0", f"s_cbranch_scc1 Lp0_{N}", mask(1), f"Lp0_{N}:", "s_nop 1"]
        o += [W(lg=[("k", 7)])] + [m for m, _ in qk(0, (0, 1))]
        o += [k_reads(8192), "s_nop 3", f"s_cmp_lg_u32 s{sUS}, 1", f"s_cbranch_scc1 Lp1_{N}", mask(1), f"Lp1_{N}:", "s_nop 1"]
        q1 = [Slot(m) for m, _ in qk(1, (0, 1))]
        q1[0].pre.append(W(lg=[("k", 7)]))
        mx = []
        for qi in range(4):
            a, b, t = S(0, qi, 0), S(0, qi, 1), TMP + qi
            mx += [f"v_max3_f32 v{t}, v{a}, v{a+1}, v{a+2}", f"v_max3_f32 v{t}, v{t}, v{a+3}, v{b}",
                   f"v_max3_f32 v{t}, v{t}, v{b+1}, v{b+2}", f"v_max_f32 v{t}, v{t}, v{b+3}"]
        for sw in ("v_permlane16_swap_b32", "v_permlane32_swap_b32"):
            mx += [f"v_mov_b32 v{TMP+4+qi}, v{TMP+qi}" for qi in range(4)]
            mx += [f"{sw} v{TMP+qi}, v{TMP+4+qi}" for qi in range(4)]
            mx += [f"v_max_f32 v{TMP+qi}, v{TMP+qi}, v{TMP+4+qi}" for qi in range(4)]
        spread(q1, mx, 2, 32)
        o += emit_slots(q1)
        o += [f"s_lshl_b32 s{sFL}, s2, 2", f"s_add_u32 s{sFL}, s{sFL}, {WS_FLAG + env['SF']}", f"s_cmp_eq_u32 s{sW}, 0", f"s_cselect_b32 s{sFL}, s{sFL}, {OOB:#x}",
              W(vm=[("K", 1), ("V", 0), "sst"]), "s_barrier", env["publish"](TMP+8, sFL), f"s_mov_b32 s{sKR}, 16384", f"v_add_u32 v{vKB}, 16384, v{vL16}", k_reads(0)]
        for qi in range(4):
            for kt in range(2): o += [f"v_sub_f32 v{S(0, qi, kt)+e}, v{S(0, qi, kt)+e}, v{TMP+qi}" for e in range(4)]
        ex, cv = softmax(0, (0, 1))
        for k in range(len(cv)): o += ex[2*k:2*k+2] + ([cv[k-1]] if k else [])
        o += [cv[-1]]
        for qi in range(4):
            for kt in range(2):
                o += [f"v_sub_f32 v{C(qi, kt)+e}, v{C(qi, kt)+e}, v{TMP+qi}" for e in range(4)]
                o += [f"v_sub_f32 v{S(1, qi, kt)+e}, v{S(1, qi, kt)+e}, v{TMP+qi}" for e in range(4)]
        return o + st()
    MODES = {"D": ((0, 1), (0, 1), (0, 1)), "T1": ((0,), (0, 1), (0, 1)), "T2": ((0,), (0,), (0, 1)),
             "S": ((0,), (0,), (0,)), "F1": ((), (0,), (0,)), "F2": ((), (), (0,))}
    def iteration(mode, par, last=False, midmask=None):
        gq, gs, gp = MODES[mode]
        m1 = qk(par, gq); m2 = pv(par, gp)
        sl = [Slot(m) for m, _ in m1 + m2]; n1 = len(m1); n2 = len(m2); n = n1 + n2
        cost = [0]*n
        pre = []; seen = set()
        for i, (_, f) in enumerate(m1):
            if f not in seen and f % 4 == 0: sl[i].pre.append(W(lg=[("k", f+3)])); cost[i-1] += 2
            seen.add(f)
        seen = set()
        for i, (_, f) in enumerate(m2):
            if f is not None and f not in seen and f % 4 == 0: sl[n1+i].pre.append(W(lg=[("v", f+3)])); cost[n1+i-1] += 2
            seen.add(f)
        def mem(i, x, c=4): sl[i].mem.append(x); cost[i] += c
        vrd = v_reads(par*8192)
        if n1:
            for k, r in enumerate(vrd): mem(k*(n1 - n1//8)//8, r)
        else: pre += vrd
        if not last:
            if par == 0:
                for k, r in enumerate(k_reads(8192)): mem(n1 + k*(n2 - 2 - n2//8)//8, r)
            else:
                b = n1 + max(2, n2//6)
                sl[b-1].alu += flat([f"s_add_u32 s{sKR}, s{sKR}, 16384", f"s_and_b32 s{sKR}, s{sKR}, 0xffff", f"v_add_u32 v{vKB}, s{sKR}, v{vL16}",
                                     W(lg=[("v", 7)]), "s_waitcnt vmcnt(16)", "s_barrier"])
                cost[b-1] += 16
                for k, r in enumerate(k_reads(0)): mem(b + k*(n - 3 - b)//8, r)
                sl[n-2].alu += flat([f"s_add_u32 s{sVR}, s{sVR}, 16384", f"s_and_b32 s{sVR}, s{sVR}, 0xffff", f"s_or_b32 s{sVR}, s{sVR}, 0x10000",
                                     f"v_add_u32 v{vVB}, s{sVR}, v{vL16}"]); cost[n-2] += 8
            dm = kv_dma("K" if par == 0 else "V", "d")
            hi = n - 2 if par == 0 else b - 1
            free = [i for i in range(hi) if cost[i] == 0]
            if len(free) < 4: pre += dm
            else:
                for k, g in enumerate(dm): mem(free[(2*k+1)*len(free)//8], g, 6)
        ex, cv = softmax(1 - par, gs)
        seq = []
        for k in range(len(cv)): seq += [(ex[2*k], 8), (ex[2*k+1], 8), (cv[k], 4)]
        for k in range(2, len(seq) - 1, 3): seq[k], seq[k+1] = seq[k+1], seq[k]
        total = sum(cost) + sum(c for _, c in seq); per = total / n
        i = 0; run = 0.0; used = 0.0
        for x, c in seq:
            while i < n - 1 and sum(cost[:i+1]) + c/2 > per*(i+1): i += 1
            sl[i].alu.append(I(x)); cost[i] += c
        r = pre + emit_slots(sl)
        if midmask is not None:
            g, lbl = midmask
            r += [f"s_cmp_lg_u32 s{sCNT}, s{sMAT}", f"s_cbranch_scc1 {lbl}", "s_nop 0", mask(g), f"{lbl}:"]
        return r
    KT = [("k", i) for i in range(8)]
    def region(items): return resolve_waits(flat(items), pre_lg=KT)
    o = flat([f"""
    s_sub_u32 s{sCNT}, s{sUS}, 1
    s_ashr_i32 s{sCNT}, s{sCNT}, 1
    s_and_b32 s{sMAT}, s{sW}, 1
    s_cmp_le_i32 s{sCNT}, 0
    s_cbranch_scc1 Ldd_done_{N}
    .p2align 6
    Ldd_{N}:
    """])
    o += region([iteration("D", 0, midmask=(1, f"Lddm_{N}")), iteration("D", 1)])
    o += flat([f"s_sub_u32 s{sCNT}, s{sCNT}, 1", f"s_cmp_lg_u32 s{sCNT}, 0", f"s_cbranch_scc1 Ldd_{N}", f"Ldd_done_{N}:",
               f"s_bitcmp1_b32 s{sW}, 0", f"s_cbranch_scc1 Lodd1_{N}", f"s_cmp_eq_u32 s{sUS}, 0", f"s_cbranch_scc1 Lt2s_{N}", mask(1), "s_nop 1"])
    o += region([iteration("D", 0), iteration("T1", 1)])
    o += flat([f"Lt2s_{N}:"]) + region([iteration("T2", 0), iteration("S", 1)])
    o += flat([f"s_branch Lss_entry_{N}", f"Lodd1_{N}:"]) + region([iteration("T1", 0), iteration("T2", 1)])
    o += flat([f"""
    Lss_entry_{N}:
    s_sub_u32 s{sCNT}, s{sUL}, s{sUS}
    s_lshr_b32 s{sCNT}, s{sCNT}, 1
    s_sub_u32 s{sCNT}, s{sCNT}, 2
    s_add_u32 s{sCNT}, s{sCNT}, s{sMAT}
    s_cmp_eq_u32 s{sCNT}, 0
    s_cbranch_scc1 Lss_done_{N}
    .p2align 6
    Lss_{N}:
    """])
    o += region([iteration("S", 0, midmask=(0, f"Lssm_{N}")), iteration("S", 1)])
    o += flat([f"s_sub_u32 s{sCNT}, s{sCNT}, 1", f"s_cmp_lg_u32 s{sCNT}, 0", f"s_cbranch_scc1 Lss_{N}", f"Lss_done_{N}:"])
    o += flat([f"s_bitcmp1_b32 s{sW}, 0", f"s_cbranch_scc1 Lodd2_{N}", mask(0), "s_nop 1"])
    o += region([iteration("S", 0), iteration("F1", 1)]) + region([iteration("F2", 0, last=True)])
    o += flat([f"s_branch Lfin_{N}", f"Lodd2_{N}:"]) + region([iteration("F1", 0, last=True), iteration("F2", 1, last=True)])
    o += flat([f"Lfin_{N}:", f"s_cmp_ge_u32 s{sW}, 2", f"s_cbranch_scc1 Lepi_{N}", "s_waitcnt vmcnt(0)", "s_barrier", f"Lepi_{N}:"]) + flat(st())
    ld = f"buffer_load_dwordx4 {vr(TMP+8, 4)}, v{vL16}, {WS}, s{sKO} offen sc1"
    o += flat([f"s_mov_b32 s{sKO}, {WS_FLAG + env['SF']}", f"s_cmp_eq_u32 s{sW}, 0", f"s_cselect_b32 s{sKO}, s{sKO}, {OOB:#x}"])
    o += resolve_waits([VM(ld, "p5")] + env["check"](ld, [f"v_and_b32 v{TMP+8}, v{TMP+8}, v{TMP+9}", f"v_and_b32 v{TMP+10}, v{TMP+10}, v{TMP+11}",
                       f"v_and_b32 v{TMP+8}, v{TMP+8}, v{TMP+10}", f"v_cmp_ne_u32 vcc, 1, v{TMP+8}"], sCNT, "p5"))
    o += flat([f"s_mov_b32 s{sT0}, {fbits(2.0**90)}", f"s_mov_b64 s[{sG}:{sG+1}], 0", "s_nop 5"])
    for qi in range(4): o += flat([f"v_cmp_ngt_f32 vcc, s{sT0}, v{LS+4*qi}", f"s_or_b64 s[{sG}:{sG+1}], s[{sG}:{sG+1}], vcc"])
    o += flat([f"""
    s_cmp_lg_u64 s[{sG}:{sG+1}], 0
    s_cselect_b32 s{sFL}, 1, 0
    v_mov_b32 v{TMP}, s{sFL}
    s_lshl_b32 s{sT0}, s{sW}, 2
    s_add_u32 s{sT0}, s{sT0}, {FLAG}
    v_mov_b32 v{TMP+1}, s{sT0}
    ds_write_b32 v{TMP+1}, v{TMP}
    v_mov_b32 v{TMP+1}, {FLAG}
    s_waitcnt lgkmcnt(0) vmcnt(0)
    s_barrier
    ds_read_b128 v[{TMP+4}:{TMP+7}], v{TMP+1}
    s_waitcnt lgkmcnt(0)
    v_or3_b32 v{TMP}, v{TMP+4}, v{TMP+5}, v{TMP+6}
    v_or_b32 v{TMP}, v{TMP}, v{TMP+7}
    v_readfirstlane_b32 s{sFL}, v{TMP}
    s_cmp_lg_u32 s{sFL}, 0
    s_cbranch_scc1 Lfallback_{N}
    Lnorm_{N}:
    """]) + flat(st("T"))
    MR = TMP + 16
    fb = [f"Lfallback_{N}:"] + [f"v_accvgpr_write_b32 a{r}, 0" for r in range(128)] + [f"v_mov_b32 v{LS+r}, 0" for r in range(16)]
    fb += [f"v_mov_b32 v{MR+qi}, {NINF}" for qi in range(4)]
    fb += [f"s_mov_b32 s{sCNT}, 0", f"s_lshl_b32 s{sKO}, s{sW}, 11", f"s_lshr_b32 s{sVO}, s{sK+2}, 13", f"v_mov_b32 v{vKB}, v{vL16}",
           f"v_add_u32 v{vVB}, 8192, v{vL16}", f"Lfb_{N}:", "s_barrier",
           f"s_lshl_b32 s{sT0}, s{sW}, 11", f"s_mov_b32 m0, s{sT0}", f"s_add_u32 s{sT0}, s{sT0}, 8192",
           f"buffer_load_dwordx4 v{vL16}, s[{sK}:{sK+3}], s{sKO} offen sc1 lds", f"buffer_load_dwordx4 v{vL16}, s[{sK}:{sK+3}], s{sKO} offen offset:1024 sc1 lds",
           f"s_mov_b32 m0, s{sT0}", "s_nop 0",
           f"buffer_load_dwordx4 v{vL16}, s[{sV}:{sV+3}], s{sKO} offen sc1 lds", f"buffer_load_dwordx4 v{vL16}, s[{sV}:{sV+3}], s{sKO} offen offset:1024 sc1 lds",
           f"s_add_u32 s{sKO}, s{sKO}, 8192", "s_waitcnt vmcnt(0)", "s_barrier"]
    fb += [x.t for x in k_reads(0) + v_reads(0)] + ["s_waitcnt lgkmcnt(0)"]
    for g, su in ((0, sUL), (1, sUS)):
        fb += [f"s_cmp_gt_u32 s{sCNT}, s{su}", f"s_cbranch_scc1 Lfbs{g}_{N}"]
        fb += [f"v_mov_b32 v{C(qi, kt)+e}, 0" for qi in GQ[g] for kt in range(2) for e in range(4)]
        fb += [f"s_cmp_lg_u32 s{sCNT}, s{su}", f"s_cbranch_scc1 Lfbm{g}_{N}", mask(g), f"Lfbm{g}_{N}:", "s_nop 1"]
        fb += [m for m, _ in qk(0, (g,))] + ["s_nop 7"]
        for qi in GQ[g]:
            a, b, t = S(0, qi, 0), S(0, qi, 1), TMP
            fb += [f"v_max3_f32 v{t}, v{a}, v{a+1}, v{a+2}", f"v_max3_f32 v{t}, v{t}, v{a+3}, v{b}",
                   f"v_max3_f32 v{t}, v{t}, v{b+1}, v{b+2}", f"v_max3_f32 v{t}, v{t}, v{b+3}, v{MR+qi}"]
            for sw in ("v_permlane16_swap_b32", "v_permlane32_swap_b32"):
                fb += [f"v_mov_b32 v{t+1}, v{t}", f"{sw} v{t}, v{t+1}", f"v_max_f32 v{t}, v{t}, v{t+1}"]
            fb += [f"v_sub_f32 v{t+1}, v{MR+qi}, v{t}", f"v_exp_f32 v{t+1}, v{t+1}", f"v_mov_b32 v{MR+qi}, v{t}"]
            fb += [f"v_sub_f32 v{S(0, qi, kt)+e}, v{S(0, qi, kt)+e}, v{t}" for kt in range(2) for e in range(4)]
            fb += [f"v_mul_f32 v{LS+4*qi+e}, v{t+1}, v{LS+4*qi+e}" for e in range(4)]
            for tt in range(8):
                a0 = (tt*4+qi)*4
                fb += [f"v_accvgpr_read_b32 v{t+4+e}, a{a0+e}" for e in range(4)]
                fb += [f"v_mul_f32 v{t+4+e}, v{t+1}, v{t+4+e}" for e in range(4)]
                fb += [f"v_accvgpr_write_b32 a{a0+e}, v{t+4+e}" for e in range(4)]
        ex, cv = softmax(0, (g,))
        fb += ex + cv + [m for m, _ in pv(0, (g,))] + ["s_nop 7", f"Lfbs{g}_{N}:"]
    fb += [f"s_add_u32 s{sCNT}, s{sCNT}, 1", f"s_cmp_lt_u32 s{sCNT}, s{sVO}", f"s_cbranch_scc1 Lfb_{N}", "s_barrier", f"s_branch Lnorm_{N}"]
    env["fallback"] = flat(fb)
    def epilogue(hook):
        r = []
        for qi in range(4): r.append(f"v_rcp_f32 v{TMP+24+qi}, v{LS+4*qi}")
        k = 0
        for qi in range(4):
            for s4 in range(4):
                t = TMP + (k % 2)*12
                r += hook(k); k += 1
                for h in range(2): r += [f"v_accvgpr_read_b32 v{t+4*h+e}, a{((2*s4+h)*4+qi)*4+e}" for e in range(4)]
                r += [f"v_pk_mul_f32 {vr(t+2*e, 2)}, {vr(t+2*e, 2)}, {vr(TMP+24+(qi & 2), 2)} op_sel:[0,{qi & 1}] op_sel_hi:[1,{qi & 1}]" for e in range(4)]
                r += [f"v_cvt_pk_bf16_f32 v{t+8+e}, v{t+2*e}, v{t+2*e+1}" for e in range(4)]
                r += [VM(f"buffer_store_dwordx4 {vr(t+8, 4)}, v{vL16}, {WS}, s{sCT+qi} offen offset:{s4*1024} sc1", "ctx")]
        return r
    env["att_epilogue"] = epilogue
    if upto < 3: o += resolve_waits(flat(epilogue(lambda k: [])))
    return o
```

```python
MB = 1 << 20
WS_K = 0; WS_V = 16*MB; WS_H = 32*MB; WS_Z = 34*MB; WS_STAT = 36*MB
WS_MODP = 37*MB; WS_MODF = 37*MB + 65536; WS_FLAG = 37*MB + 262144; WS_TS = 37*MB + 524288
WS_WOF = 38*MB; WS_W2F = 42*MB; WS_W1F = 44*MB; WS_CTX = 46*MB; WS_H1 = 62*MB; WS_X1 = 70*MB; WS_SIZE = 72*MB
CSCALE = 1.4426950408889634 / (128 ** 0.5)
```

```python
from common import *
from flay import *

def tail(env, upto):
    (N, st, sW, sJ, sC, sT0, sT1, vL16, WS, pX, pB1, pB2, pOUT, flag_off, publish, check, rnd, opt) = [env[k] for k in
     "N st sW sJ sC sT0 sT1 vL16 WS pX pB1 pB2 pOUT flag_off publish check rnd opt".split()]
    sR = 12
    sA = 16
    sSUB = 20
    sK = 24
    sC0, sC1, sONE = 30, 32, 34
    sWB, sRB, sCTL, sRT, sMF, sFL, sCNT, sBLK, sN, sODD, sPAIR, sWD, sM0, sZ = 78, 79, 80, 81, 82, 83, 84, 85, 86, 87, 88, 89, 90, 40
    vG16, vRM, vP, vT = 2, 3, 4, 6
    GA, AV, BV, XR, ACC, AR = 8, 24, 40, 56, 64, 128
    RED = 98304
    o = [f"""
    s_and_b32 s{sT0}, s2, 7
    s_bfe_u32 s{sT1}, s2, 0x20003
    s_and_b32 s{sCTL}, s{sT0}, 1
    s_lshl_b32 s{sCTL}, s{sCTL}, 2
    s_add_u32 s{sCTL}, s{sCTL}, s{sT1}
    s_and_b32 s{sN}, s{sT0}, 3
    s_lshl_b32 s{sN}, s{sN}, 2
    s_add_u32 s{sN}, s{sN}, s{sT1}
    s_sub_u32 s{sBLK}, 15, s{sJ}
    s_mov_b32 s{sSUB}, 0x0f0f0f0f
    s_cmp_lt_u32 s{sT0}, 4
    s_cselect_b32 s{sBLK}, s{sJ}, s{sBLK}
    s_cselect_b32 s{sSUB}, s{sSUB}, 0xf0f0f0f0
    s_mov_b32 s{sSUB+1}, s{sSUB}
    s_bfe_u32 s{sT0}, s2, 0x10001
    s_lshl_b32 s{sRB}, s{sBLK}, 1
    s_add_u32 s{sRB}, s{sRB}, s{sT0}
    s_lshl_b32 s{sRT}, s{sRB}, 2
    s_add_u32 s{sRT}, s{sRT}, s{sW}
    s_lshl_b32 s{sWB}, s{sCTL}, 19
    s_lshl_b32 s{sT0}, s{sW}, 17
    s_add_u32 s{sWB}, s{sWB}, s{sT0}
    s_add_u32 s{sWB}, s{sWB}, {WS_WOF}
    """]
    def gemm_loads(kind):
        def w(i, reg):
            g = []
            for t in range(4):
                x = [VM(f"buffer_load_dwordx4 {ar(reg + 4*t, 4)}, v{vL16}, {WS}, s{sWB} offen offset:{t*1024} sc1", (kind + "w", i))]
                if t == 3: x.append(f"s_add_u32 s{sWB}, s{sWB}, 4096")
                g.append(x)
            return g
        def a(i):
            g = []
            for r in range(4):
                x = [VM(f"buffer_load_dwordx4 {vr(AR + (i % 8)*16 + 4*r, 4)}, v{vL16}, {WS}, s{sA+r} offen offset:{(i & 3)*1024} sc1", (kind + "a", i))]
                if (i & 3) == 3: x.append(f"s_add_u32 s{sA+r}, s{sA+r}, 4096")
                g.append(x)
            return g
        return w, a
    def wreg(i): return ((i + 8) % 16)*16
    NL = 10 if "nolw" not in opt else 0
    def gemm(kind, ns, wl, al, extra):
        r = []
        for i in range(ns):
            sl = []
            for t in range(4):
                for q in range(4):
                    d = vr(ACC + (t*4+q)*4, 4)
                    sl.append(Slot(I(f"v_mfma_f32_16x16x32_bf16 {d}, {ar(wreg(i) + 4*t, 4)}, {vr(AR + (i % 8)*16 + 4*q, 4)}, {'0' if i == 0 else d}")))
            if 16 <= i < 16 + NL: sl[0].pre.append(W(vm=[(kind + "a", i)], lg=[("lw", i)]))
            else: sl[0].pre.append(W(vm=[(kind + "a", i), (kind + "w", i)]))
            ld = []
            if i >= 1 and i + 7 < ns: ld += al(i + 7)
            if i >= 1 and i + 15 < ns:
                if i + 15 < 16 + NL: ld += [LG(f"ds_read_b128 {ar(wreg(i + 15) + 4*t, 4)}, v{vP} offset:{(i - 1)*4096 + t*1024}", ("lw", i + 15)) for t in range(4)]
                else: ld += wl(i + 15, wreg(i + 15))
            ld += extra(i)
            for k, g in enumerate(ld): sl[(2*k) % 16 + (2*k)//16].mem.append(g)
            r += emit_slots(sl)
            if kind == "c" and i in (0, 15): r += st("T")
        return r
    def reduce_waves():
        r = [f"s_lshl_b32 s{sT0}, s{sW}, 14", f"s_add_u32 s{sT0}, s{sT0}, {RED}", f"v_add_u32 v{vT}, s{sT0}, v{vL16}",
             f"s_lshl_b32 s{sT0}, s{sW}, 12", f"s_add_u32 s{sT0}, s{sT0}, {RED}", f"v_add_u32 v{vT+1}, s{sT0}, v{vL16}"]
        for t in range(4):
            for q in range(4): r += [LG(f"ds_write_b128 v{vT}, {vr(ACC + (t*4+q)*4, 4)} offset:{(q*4+t)*1024}", "rw")]
        r += [W(lg="rw"), "s_barrier"]
        for t in range(4):
            for src in range(4): r += [LG(f"ds_read_b128 {vr(ACC + (t*4+src)*4, 4)}, v{vT+1} offset:{src*16384 + t*1024}", ("rr", t))]
        return r
    def sum4(t):
        b = ACC + t*16; r = [W(lg=[("rr", t)])]
        for h in (0, 2): r += [f"v_pk_add_f32 {vr(b+h, 2)}, {vr(b+h, 2)}, {vr(b+4+h, 2)}", f"v_pk_add_f32 {vr(b+8+h, 2)}, {vr(b+8+h, 2)}, {vr(b+12+h, 2)}"]
        for h in (0, 2): r += [f"v_pk_add_f32 {vr(b+h, 2)}, {vr(b+h, 2)}, {vr(b+8+h, 2)}"]
        return r
    def modf(dst, vec):
        return [f"s_add_u32 s{sT0}, s{sMF}, {vec*2048}"] + [VM(f"buffer_load_dwordx4 {vr(dst+4*t, 4)}, v{vG16}, {WS}, s{sT0} offen offset:{t*64} sc1", "ep") for t in range(4)]
    def sync(kind, mask, between):
        ld = f"buffer_load_dword v{vP+1}, v{vP}, {WS}, s{sFL} offen sc1"
        return (flag_off(sFL, kind, True) + publish(vP, sFL) + flag_off(sFL, kind, False) + [f"v_and_b32 v{vP}, 31, v0", f"v_lshlrev_b32 v{vP}, 2, v{vP}"]
                + between + [VM(ld, ("poll", kind))] + check(ld, f"v_cmp_ne_u32 vcc, 1, v{vP+1}", sCNT, [("poll", kind)], mask) + ["s_barrier"])
    wl, al = gemm_loads("c")
    TCH = "to" in opt.split()
    def touch(soff, n, vt):
        r = [f"v_lshlrev_b32 v{vt}, 7, v0"]
        for k in range(n): r += [VM(f"buffer_load_dword v{vt+1}, v{vt}, {WS}, s{soff} offen sc1", "tch"), f"s_add_u32 s{soff}, s{soff}, 8192"]
        return r
    if TCH: o += [f"s_lshl_b32 s{sT0}, s{sJ}, 14", f"s_add_u32 s{sT0}, s{sT0}, s{sWB}"] + touch(sT0, 2, vP)
    o += env["att_epilogue"](lambda k: [])
    o += st("T") + [wl(i, wreg(i)) for i in range(8)] + [W(vm="ctx"), "s_barrier"] + st() + st("T")
    btw = [wl(i, wreg(i)) for i in range(8, 16)] + [f"s_mul_i32 s{sM0}, s{sW}, 40960"]
    for i in range(NL):
        btw += [f"s_add_u32 m0, s{sM0}, {i*4096}", "s_nop 0"] + [VM(f"buffer_load_dwordx4 v{vL16}, {WS}, s{sWB} offen offset:{t*1024} sc1 lds", "lwd") for t in range(4)]
        btw += [f"s_add_u32 s{sWB}, s{sWB}, 4096"]
    btw += [f"""
    v_lshrrev_b32 v{vT}, 4, v0
    v_lshlrev_b32 v{vG16}, 4, v{vT}
    v_and_b32 v{vT+1}, 15, v0
    v_lshlrev_b32 v{vRM}, 10, v{vT+1}
    v_lshl_add_u32 v{vRM}, v{vT}, 3, v{vRM}
    s_mul_i32 s{sMF}, s{sJ}, 12288
    s_lshl_b32 s{sT0}, s{sCTL}, 8
    s_add_u32 s{sMF}, s{sMF}, s{sT0}
    s_add_u32 s{sMF}, s{sMF}, {WS_MODF}
    s_lshl_b32 s{sA}, s{sRB}, 19
    s_lshl_b32 s{sT0}, s{sW}, 15
    s_add_u32 s{sA}, s{sA}, s{sT0}
    s_add_u32 s{sA}, s{sA}, {WS_CTX}
    """] + [f"s_add_u32 s{sA+r}, s{sA}, {r*131072}" for r in range(1, 4)] + srd(sR, pX, 2*MB)
    btw += modf(GA, 2) + modf(AV, 4) + modf(BV, 3)
    btw += [f"s_lshl_b32 s{sT0}, s{sRT}, 14", f"s_lshl_b32 s{sT1}, s{sCTL}, 7", f"s_add_u32 s{sT0}, s{sT0}, s{sT1}"]
    btw += [VM(f"buffer_load_dwordx2 {vr(XR+2*t, 2)}, v{vRM}, s[{sR}:{sR+3}], s{sT0} offen offset:{t*32}", "ep") for t in range(4)]
    o += sync(1, None, btw) + st() + st("T")
    if "tctx" in opt:
        o += [f"s_bfe_u32 s{sT0}, s2, 0x20003", f"s_lshl_b32 s{sT0}, s{sT0}, 17", f"s_add_u32 s{sT0}, s{sT0}, s{sA}"] + touch(sT0, 4, vP)
    o += [al(i) for i in range(8)] + [f"v_add_u32 v{vP}, s{sM0}, v{vL16}"]
    for j in range(0, 16, 2): o += [f"v_add_f32 v{AV+j}, 1.0, v{AV+j}", f"v_add_f32 v{AV+j+1}, 1.0, v{AV+j+1}"] + rnd(AV+j, AV+j+1, vT)
    def w1_dma(g):
        grp = [f"s_add_u32 m0, s{sM0}, {g*16384}", f"s_add_u32 s{sT1}, s{sWD}, {g*16384}"]; r = []
        for n in range(4):
            grp.append(VM(f"buffer_load_dwordx4 v{vL16}, {WS}, s{sT1} offen offset:{n*1024} sc1 lds", ("w1", g))); r.append(grp); grp = []
        return r
    o += [f"s_lshl_b32 s{sM0}, s{sW}, 12", f"s_mul_i32 s{sWD}, s{sN}, 114688", f"s_add_u32 s{sWD}, s{sWD}, s{sM0}", f"s_add_u32 s{sWD}, s{sWD}, {WS_W1F}"]
    def c_extra(i):
        if i >= 26: return w1_dma(i - 26)
        if i == 20 and NL: return [["s_barrier"]]
        if TCH and i == 17:
            return [[f"s_lshl_b32 s{sCNT}, s{sJ}, 2", f"s_add_u32 s{sCNT}, s{sCNT}, s{sW}", f"s_mul_i32 s{sCNT}, s{sCNT}, 3584",
                     f"s_sub_u32 s{sT1}, s{sWD}, s{sM0}", f"s_add_u32 s{sCNT}, s{sCNT}, s{sT1}"] + touch(sCNT, 1, vP),
                    [f"s_mul_i32 s{sCNT}, s{sCTL}, {56*4096}", f"s_mul_i32 s{sT1}, s{sW}, {14*4096}", f"s_add_u32 s{sCNT}, s{sCNT}, s{sT1}",
                     f"s_mul_i32 s{sT1}, s{sJ}, 7168", f"s_add_u32 s{sCNT}, s{sCNT}, s{sT1}", f"s_add_u32 s{sCNT}, s{sCNT}, {WS_W2F}"] + touch(sCNT, 1, vP)]
        return []
    o += gemm("c", 32, wl, al, c_extra)
    o += st() + st("T") + reduce_waves()
    F, Z, ZP, ST = AR, AR+16, AR+32, AR+40
    for j in range(8): o += [f"v_lshlrev_b32 v{F+2*j}, 16, v{XR+j}", f"v_and_b32 v{F+2*j+1}, 0xffff0000, v{XR+j}"]
    o += [f"s_lshl_b32 s{sT0}, s{sRT}, 14", f"s_lshl_b32 s{sT1}, s{sCTL}, 11", f"s_add_u32 s{sT0}, s{sT0}, s{sT1}", f"s_add_u32 s{sFL}, s{sT0}, {WS_Z}"]
    for t in range(4):
        o += sum4(t)
        for h in (0, 2): o += [f"v_pk_fma_f32 {vr(F+4*t+h, 2)}, {vr(ACC+t*16+h, 2)}, {vr(GA+4*t+h, 2)}, {vr(F+4*t+h, 2)}"]
        for j in (2*t, 2*t+1): o += rnd(F+2*j, F+2*j+1, XR+j)
        for h in (0, 2): o += [f"v_pk_mul_f32 {vr(Z+4*t+h, 2)}, {vr(F+4*t+h, 2)}, {vr(AV+4*t+h, 2)}"]
        for j in (2*t, 2*t+1): o += [f"v_cvt_pk_bf16_f32 v{ZP+j}, v{Z+2*j}, v{Z+2*j+1}"]
        if t & 1: o += [VM(f"buffer_store_dwordx4 {vr(ZP+2*(t-1), 4)}, v{vL16}, {WS}, s{sFL} offen offset:{(t >> 1)*1024} sc1", "zst")]
    for j in range(0, 16, 2):
        x, z, a, b = vr(F+j, 2), vr(Z+j, 2), vr(AV+j, 2), vr(BV+j, 2); S = [vr(ST+2*k, 2) for k in range(6)]
        if j == 0:
            o += [f"v_pk_add_f32 {S[0]}, {x}, {vr(F+2, 2)}", f"v_pk_mul_f32 {S[1]}, {x}, {x}", f"v_pk_add_f32 {S[2]}, {z}, {vr(Z+2, 2)}",
                  f"v_pk_mul_f32 {S[3]}, {z}, {z}", f"v_pk_mul_f32 {S[4]}, {a}, {z}", f"v_pk_mul_f32 {S[5]}, {b}, {z}"]
        else:
            if j > 2: o += [f"v_pk_add_f32 {S[0]}, {S[0]}, {x}", f"v_pk_add_f32 {S[2]}, {S[2]}, {z}"]
            o += [f"v_pk_fma_f32 {S[1]}, {x}, {x}, {S[1]}", f"v_pk_fma_f32 {S[3]}, {z}, {z}, {S[3]}",
                  f"v_pk_fma_f32 {S[4]}, {a}, {z}, {S[4]}", f"v_pk_fma_f32 {S[5]}, {b}, {z}, {S[5]}"]
    o += [f"v_add_f32 v{ST+2*k}, v{ST+2*k}, v{ST+2*k+1}" for k in range(6)]
    o += [f"v_permlane16_swap_b32 v{ST+4*k}, v{ST+4*k+2}" for k in range(3)]
    o += [f"v_add_f32 v{ST+4*k}, v{ST+4*k}, v{ST+4*k+2}" for k in range(3)]
    o += [f"v_mov_b32 v{ST+10}, v{ST+8}", f"v_permlane32_swap_b32 v{ST}, v{ST+4}", f"v_permlane32_swap_b32 v{ST+8}, v{ST+10}",
          f"v_add_f32 v{ST}, v{ST}, v{ST+4}", f"v_add_f32 v{ST+1}, v{ST+8}, v{ST+10}",
          f"s_lshl_b32 s{sT0}, s{sRT}, 12", f"s_lshl_b32 s{sT1}, s{sCTL}, 9", f"s_add_u32 s{sT0}, s{sT0}, s{sT1}", f"s_add_u32 s{sT0}, s{sT0}, {WS_STAT}",
          f"v_lshlrev_b32 v{vT}, 3, v0", VM(f"buffer_store_dwordx2 {vr(ST, 2)}, v{vT}, {WS}, s{sT0} offen sc1", "zst")]
    if upto < 4: return resolve_waits(flat(o))
    DA, XA, WF, DS, CO, B1, HB = 64, 120, 128, 160, 192, 200, 216
    EARR, UVS = 114688, 114688 + 3072
    vW, vW6, vWX, vE, vU, vU6, g4, c16 = 8, 9, 10, 11, 12, 13, 14, 15
    A2, B2_, TT = 16, 24, 32
    o += [f"v_lshlrev_b32 v{vT+1}, 5, v0", f"s_mul_i32 s{sT0}, s{sJ}, 12288", f"s_add_u32 s{sT0}, s{sT0}, {WS_MODF + 3*2048}"]
    o += [VM(f"buffer_load_dwordx4 {vr(r, 4)}, v{vT+1}, {WS}, s{sT0} offen offset:{off} sc1", "ab") for r, off in ((A2, 2048), (A2+4, 2064), (B2_, 0), (B2_+4, 16))]
    wl2, al2 = gemm_loads("e")
    if upto >= 5:
        o += [f"s_mul_i32 s{sWB}, s{sCTL}, {56*4096}", f"s_mul_i32 s{sT0}, s{sW}, {14*4096}", f"s_add_u32 s{sWB}, s{sWB}, s{sT0}", f"s_add_u32 s{sWB}, s{sWB}, {WS_W2F}"]
        o += [wl2(i, wreg(i)) for i in range(8)]
    o += [W(vm="zst"), "s_barrier"] + st() + st("T")
    btw = [w1_dma(6)] + srd(sR, pB1, 3584) + [f"""
    s_and_b32 s{sODD}, s{sN}, 1
    s_lshl_b32 s{sPAIR}, s{sBLK}, 2
    s_add_u32 s{sPAIR}, s{sPAIR}, s{sW}
    v_lshrrev_b32 v{g4}, 4, v0
    v_and_b32 v{c16}, 15, v0
    s_lshl_b32 s{sT0}, s{sODD}, 10
    v_add_u32 v{vW}, s{sT0}, v{vL16}
    s_cmp_eq_u32 s{sODD}, 0
    s_cselect_b32 s{sT0}, 6144, 0
    v_add_u32 v{vW6}, s{sT0}, v{vL16}
    s_lshl_b32 s{sT0}, s{sW}, 11
    v_add_u32 v{vWX}, s{sT0}, v{vL16}
    v_min_u32 v{vE}, 2, v{c16}
    v_lshlrev_b32 v{vE}, 10, v{vE}
    v_lshl_add_u32 v{vE}, v{g4}, 3, v{vE}
    v_add_u32 v{vE}, {EARR}, v{vE}
    v_lshlrev_b32 v{vT}, 3, v{g4}
    s_mul_i32 s{sT0}, s{sN}, 224
    s_lshl_b32 s{sT1}, s{sODD}, 5
    s_add_u32 s{sT1}, s{sT1}, s{sT0}
    """]
    btw += [VM(f"buffer_load_dwordx2 {vr(B1+2*i, 2)}, v{vT}, s[{sR}:{sR+3}], s{sT1} offen offset:{i*32}", "b1") for i in range(6)]
    btw += [f"s_cmp_eq_u32 s{sODD}, 0", f"s_cselect_b32 s{sT1}, 192, 0", f"s_add_u32 s{sT1}, s{sT1}, s{sT0}",
            VM(f"buffer_load_dwordx2 {vr(B1+12, 2)}, v{vT}, s[{sR}:{sR+3}], s{sT1} offen", "b1")]
    btw += [W(vm="ab")] + [f"v_add_f32 v{A2+j}, 1.0, v{A2+j}" for j in range(8)]
    for j in range(4):
        btw += [f"v_cvt_pk_bf16_f32 v{TT+j}, v{A2+2*j}, v{A2+2*j+1}", f"v_cvt_pk_bf16_f32 v{TT+4+j}, v{B2_+2*j}, v{B2_+2*j+1}", f"v_mov_b32 v{TT+8+j}, 0x3f803f80"]
    for j in range(4): btw += [f"v_lshlrev_b32 v{A2+2*j}, 16, v{TT+j}", f"v_and_b32 v{A2+2*j+1}, 0xffff0000, v{TT+j}"]
    btw += [f"v_add_u32 v{vT}, {EARR}, v{vL16}"] + [LG(f"ds_write_b128 v{vT}, {vr(TT+4*k, 4)} offset:{k*1024}", "ew") for k in range(3)]
    SS = TT+12
    for j in range(0, 8, 2):
        a, b = vr(A2+j, 2), vr(B2_+j, 2); S = [vr(SS+2*k, 2) for k in range(5)]
        if j == 0: btw += [f"v_pk_add_f32 {S[0]}, {a}, {vr(A2+2, 2)}", f"v_pk_mul_f32 {S[1]}, {a}, {a}", f"v_pk_mul_f32 {S[2]}, {a}, {b}",
                           f"v_pk_add_f32 {S[3]}, {b}, {vr(B2_+2, 2)}", f"v_pk_mul_f32 {S[4]}, {b}, {b}"]
        else:
            if j > 2: btw += [f"v_pk_add_f32 {S[0]}, {S[0]}, {a}", f"v_pk_add_f32 {S[3]}, {S[3]}, {b}"]
            btw += [f"v_pk_fma_f32 {S[1]}, {a}, {a}, {S[1]}", f"v_pk_fma_f32 {S[2]}, {a}, {b}, {S[2]}", f"v_pk_fma_f32 {S[4]}, {b}, {b}, {S[4]}"]
    btw += [f"v_add_f32 v{SS+2*k}, v{SS+2*k}, v{SS+2*k+1}" for k in range(5)]
    for m in ("quad_perm:[1,0,3,2]", "quad_perm:[2,3,0,1]", "row_ror:4", "row_ror:8"):
        btw += [f"v_add_f32_dpp v{SS+2*k}, v{SS+2*k}, v{SS+2*k} {m} row_mask:0xf bank_mask:0xf" for k in range(5)]
    for sw in ("v_permlane16_swap_b32", "v_permlane32_swap_b32"):
        btw += [f"v_mov_b32 v{SS+2*k+1}, v{SS+2*k}" for k in range(5)] + [f"{sw} v{SS+2*k}, v{SS+2*k+1}" for k in range(5)]
        btw += [f"v_add_f32 v{SS+2*k}, v{SS+2*k}, v{SS+2*k+1}" for k in range(5)]
    btw += [f"v_readfirstlane_b32 s{sK+k}, v{SS+2*k}" for k in range(5)]
    c0 = -2*0.7978845608028654*1.4426950408889634
    btw += [f"s_mov_b32 s{sC0}, {fbits(c0)}", f"s_mov_b32 s{sC0+1}, s{sC0}", f"s_mov_b32 s{sC1}, {fbits(c0*0.044715)}", f"s_mov_b32 s{sC1+1}, s{sC1}",
            f"s_mov_b32 s{sONE}, 1.0", f"s_mov_b32 s{sONE+1}, 1.0",
            f"s_lshl_b32 s{sZ}, s{sPAIR}, 15", f"s_add_u32 s{sZ}, s{sZ}, {WS_Z}", f"s_add_u32 s{sZ+1}, s{sZ}, 16384",
            f"s_lshl_b32 s{sZ+2}, s{sPAIR}, 13", f"s_add_u32 s{sZ+2}, s{sZ+2}, {WS_STAT}", f"s_add_u32 s{sZ+3}, s{sZ+2}, 4096"]
    btw += [W(vm=[("w1", 6)], lg="ew"), "s_barrier"]
    def xr(s):
        b = WF + (s % 3)*12
        return ([f"v_add_u32 v{vWX}, 57344, v{vWX}"] if s == 8 else []) + \
               [LG(f"ds_read_b128 {vr(b+4*k, 4)}, v{vWX} offset:{(s & 7)*7168 + k*1024}", ("x", s)) for k in range(2)] + \
               [LG(f"ds_read_b64 {vr(b+8+2*hh, 2)}, v{vE} offset:{s*64 + hh*32}", ("x", s)) for hh in range(2)]
    btw += xr(0) + xr(1)
    for s in range(16):
        b = WF + (s % 3)*12
        btw += [W(lg=[("x", s)])] + [f"v_mfma_f32_16x16x32_bf16 {vr(XA+4*k, 4)}, {vr(b+4*k, 4)}, {vr(b+8, 4)}, {'0' if s == 0 else vr(XA+4*k, 4)}" for k in range(2)]
        if s + 2 < 16: btw += xr(s + 2)
    btw += [f"v_lshlrev_b32 v{vT}, 9, v{c16}", f"v_lshl_add_u32 v{vT}, v{g4}, 4, v{vT}", f"s_lshl_b32 s{sT0}, s{sW}, 7", f"s_add_u32 s{sT0}, s{sT0}, {UVS}",
            f"v_add_u32 v{vT}, s{sT0}, v{vT}", f"v_lshlrev_b32 v{vU6}, 4, v{g4}", f"s_lshl_b32 s{sT0}, s{sODD}, 6", f"s_add_u32 s{sT0}, s{sT0}, {UVS}",
            f"v_add_u32 v{vU}, s{sT0}, v{vU6}", f"s_cmp_eq_u32 s{sODD}, 0", f"s_cselect_b32 s{sT0}, 384, 0", f"s_add_u32 s{sT0}, s{sT0}, {UVS}",
            f"v_add_u32 v{vU6}, s{sT0}, v{vU6}"]
    btw += [LG(f"ds_write_b128 v{vT}, {vr(XA+4*k, 4)} offset:{k*64}", "uw") for k in range(2)] + [f"v_lshlrev_b32 v{vT+1}, 3, v0", W(lg="uw")]
    o += sync(2, sSUB, btw) + st() + st("T")
    def Zf(s, r): return ar((s*2+r)*4, 4)
    def z_ld(s):
        g = []
        for r in range(2):
            x = [VM(f"buffer_load_dwordx4 {Zf(s, r)}, v{vL16}, {WS}, s{sZ+r} offen offset:{(s & 3)*1024} sc1", ("z", s))]
            if (s & 3) == 3: x.append(f"s_add_u32 s{sZ+r}, s{sZ+r}, 4096")
            g.append(x)
        return g
    o += [z_ld(s) for s in range(4)]
    stat = [VM(f"buffer_load_dwordx2 {vr(DS + r*16 + 2*ct, 2)}, v{vT+1}, {WS}, s{sZ+2+r} offen offset:{ct*512} sc1", "stat") for r in range(2) for ct in range(8)]
    LA = 4
    frags = [(s, i) for s in range(16) for i in range(7)]; slots = []
    for f, (s, i) in enumerate(frags):
        for r in range(2):
            d = vr(DA + (i*2+r)*4, 4)
            slots.append(Slot(I(f"v_mfma_f32_16x16x32_bf16 {d}, {vr(WF + (f % 8)*4, 4)}, {Zf(s, r)}, {'0' if s == 0 else d}")))
        if f % 2 == 0: slots[2*f].pre.append(W(lg=[("wf", f+1)]))
        if i == 0: slots[2*f].pre.append(W(vm=[("z", s)]))
    def rd(f):
        s, i = frags[f]
        g = [f"v_add_u32 v{vW}, 57344, v{vW}", f"v_add_u32 v{vW6}, 57344, v{vW6}"] if (s, i) == (8, 0) else []
        return g, LG(f"ds_read_b128 {vr(WF + (f % 8)*4, 4)}, v{vW if i < 6 else vW6} offset:{(s & 7)*7168 + (i*1024 if i < 6 else 0)}", ("wf", f))
    for f in range(LA): o += [rd(f)[1]]
    for f in range(LA, len(frags)):
        g, x = rd(f); i = 2*(f - LA)
        if g: slots[i-1].alu += flat(g)
        slots[i].mem.append(x)
    GB, B2 = 16, 32
    ld = sum((z_ld(s) for s in range(4, 16)), []) + stat
    for k, g in enumerate(ld): slots[1 + 2*k].mem.append(g)
    if upto >= 5:
        ep = flat(srd(sR, pB2, 1024) + [f"v_lshlrev_b32 v{vT}, 3, v{g4}", modf(GB, 5), f"s_lshl_b32 s{sT0}, s{sCTL}, 7"] +
                  [VM(f"buffer_load_dwordx2 {vr(B2+2*t, 2)}, v{vT}, s[{sR}:{sR+3}], s{sT0} offen offset:{t*32}", "ep") for t in range(4)])
        for k, g in enumerate(ep): slots[171 + 2*k].mem.append(g)
    bg = []
    for r in range(2):
        b = DS + r*16
        for ct in range(1, 8): bg += [f"v_add_f32 v{b}, v{b}, v{b+2*ct}", f"v_add_f32 v{b+1}, v{b+1}, v{b+2*ct+1}"]
        S1, S5, S2, S3, S4, S6, M1, R1, T0, T1, T2 = b, b+1, b+2, b+3, b+4, b+5, b+6, b+7, b+8, b+9, b+10
        bg += [f"v_mov_b32 v{S2}, v{S1}", f"v_mov_b32 v{S6}, v{S5}", f"v_permlane16_swap_b32 v{S1}, v{S2}", f"v_permlane16_swap_b32 v{S5}, v{S6}",
               f"v_mov_b32 v{S3}, v{S1}", f"v_mov_b32 v{S4}, v{S2}", f"v_permlane32_swap_b32 v{S1}, v{S3}", f"v_permlane32_swap_b32 v{S2}, v{S4}"]
        n = fbits(1/512); al_, be, ga, de = CO+4*r, CO+4*r+1, CO+4*r+2, CO+4*r+3
        bg += [f"v_mul_f32 v{M1}, {n}, v{S1}",
               f"v_mul_f32 v{T0}, {n}, v{S2}", f"v_fma_f32 v{T0}, -v{M1}, v{M1}, v{T0}", f"v_add_f32 v{T0}, {fbits(EPS)}, v{T0}", f"v_rsq_f32 v{R1}, v{T0}",
               f"v_fma_f32 v{T0}, -v{M1}, s{sK}, v{S3}",
               f"v_mul_f32 v{T1}, s{sK+1}, v{M1}", f"v_fma_f32 v{T1}, -2.0, v{S5}, v{T1}", f"v_fma_f32 v{T1}, v{T1}, v{M1}, v{S4}",
               f"v_fma_f32 v{T2}, -v{M1}, s{sK+2}, v{S6}",
               f"v_fma_f32 v{T0}, v{T0}, v{R1}, s{sK+3}", f"v_mul_f32 v{T0}, {n}, v{T0}",
               f"v_mul_f32 v{T1}, v{T1}, v{R1}", f"v_fma_f32 v{T1}, 2.0, v{T2}, v{T1}", f"v_fma_f32 v{T1}, v{T1}, v{R1}, s{sK+4}",
               f"v_mul_f32 v{T1}, {n}, v{T1}", f"v_fma_f32 v{T1}, -v{T0}, v{T0}, v{T1}", f"v_add_f32 v{T1}, {fbits(EPS)}, v{T1}", f"v_rsq_f32 v{ga}, v{T1}",
               f"v_mul_f32 v{M1}, -1.0, v{M1}", f"v_mul_f32 v{al_}, v{R1}, v{ga}", f"v_mul_f32 v{de}, v{T0}, v{ga}", f"v_mul_f32 v{be}, v{M1}, v{al_}",
               f"v_mul_f32 v{de}, -1.0, v{de}"]
    bg[0] = [W(vm="stat"), bg[0]]
    spread(slots, bg, 130, 222)
    slots[14].alu += st("T")
    o += emit_slots(slots) + st() + st("T")
    U = [128, 140, 152]; BB, G = 164, 168
    def uvs(i): return [LG(f"ds_read_b128 {vr(U[i % 3]+4*k, 4)}, v{vU if i < 6 else vU6} offset:{k*512 + (i*64 if i < 6 else 0)}", ("u", i)) for k in range(3)]
    late = sum((wl2(i, wreg(i)) for i in range(8, 14)), []) if upto >= 5 else []
    sHF, sHH = sZ, sZ+2
    o += uvs(0) + uvs(1) + [W(vm="b1"), f"""
    s_mul_i32 s{sT0}, s{sPAIR}, {2*57344}
    s_add_u32 s{sT0}, s{sT0}, {WS_H1}
    s_mul_i32 s{sT1}, s{sN}, 7
    s_add_u32 s{sT1}, s{sT1}, s{sODD}
    s_lshl_b32 s{sT1}, s{sT1}, 9
    s_add_u32 s{sHF}, s{sT0}, s{sT1}
    s_add_u32 s{sHF+1}, s{sHF}, 57344
    s_or_b32 s{sT1}, s{sN}, 1
    s_mul_i32 s{sT1}, s{sT1}, 7
    s_sub_u32 s{sT1}, s{sT1}, 1
    s_lshl_b32 s{sT1}, s{sT1}, 9
    s_add_u32 s{sHH}, s{sT0}, s{sT1}
    s_lshl_b32 s{sT1}, s{sODD}, 3
    s_add_u32 s{sHH}, s{sHH}, s{sT1}
    s_add_u32 s{sHH+1}, s{sHH}, 57344
    """]
    for i in (6, 0, 1, 2, 3, 4, 5)[0:0] or range(7):
        if i + 2 < 7: o += uvs(i+2)
        o += [f"v_lshlrev_b32 v{BB}, 16, v{B1+2*i}", f"v_and_b32 v{BB+1}, 0xffff0000, v{B1+2*i}",
              f"v_lshlrev_b32 v{BB+2}, 16, v{B1+2*i+1}", f"v_and_b32 v{BB+3}, 0xffff0000, v{B1+2*i+1}", W(lg=[("u", i)])]
        u = U[i % 3]; cells = [(r, h) for r in range(2) for h in (0, 2)]
        Xv = lambda r, h: vr(DA + (i*2+r)*4 + h, 2)
        T = lambda r, h: vr(G + r*4 + h, 2)
        lo, hi = "op_sel:[0,0,0] op_sel_hi:[1,0,1]", "op_sel:[0,1,0] op_sel_hi:[1,1,1]"
        for r, h in cells: o += [f"v_pk_fma_f32 {T(r,h)}, {vr(u+8+h,2)}, {vr(CO+4*r+2,2)}, {vr(BB+h,2)} {hi}"]
        for r, h in cells: o += [f"v_pk_fma_f32 {T(r,h)}, {vr(u+4+h,2)}, {vr(CO+4*r+2,2)}, {T(r,h)} {lo}"]
        for r, h in cells: o += [f"v_pk_fma_f32 {T(r,h)}, {vr(u+h,2)}, {vr(CO+4*r,2)}, {T(r,h)} {hi}"]
        for r, h in cells: o += [f"v_pk_fma_f32 {Xv(r,h)}, {Xv(r,h)}, {vr(CO+4*r,2)}, {T(r,h)} {lo}"]
        for r, h in cells: o += [f"v_pk_mul_f32 {T(r,h)}, {Xv(r,h)}, {Xv(r,h)}"]
        for r, h in cells: o += [f"v_pk_mul_f32 {T(r,h)}, {T(r,h)}, s[{sC1}:{sC1+1}]"]
        for r, h in cells: o += [f"v_pk_add_f32 {T(r,h)}, {T(r,h)}, s[{sC0}:{sC0+1}]"]
        for r, h in cells: o += [f"v_pk_mul_f32 {T(r,h)}, {T(r,h)}, {Xv(r,h)}"]
        o += [f"v_exp_f32 v{G+k}, v{G+k}" for k in range(8)]
        for r, h in cells: o += [f"v_pk_add_f32 {T(r,h)}, {T(r,h)}, s[{sONE}:{sONE+1}]"]
        o += [f"v_rcp_f32 v{G+k}, v{G+k}" for k in range(8)]
        for r, h in cells: o += [f"v_pk_mul_f32 {Xv(r,h)}, {Xv(r,h)}, {T(r,h)}"]
        for r, h in cells:
            a = DA + (i*2+r)*4 + h
            o += [f"v_cvt_pk_bf16_f32 v{HB + ((3*r + i//2)*4 + (i & 1)*2 if i < 6 else 24 + 2*r) + h//2}, v{a}, v{a+1}"]
        if i < 6 and i & 1:
            o += [VM(f"buffer_store_dwordx4 {vr(HB+4*(3*r + i//2), 4)}, v{vL16}, {WS}, s{sHF+r} offen offset:{(i//2)*1024} sc1", "hst2") for r in range(2)]
        if i == 6:
            o += [VM(f"buffer_store_dwordx2 {vr(HB+24+2*r, 2)}, v{vL16}, {WS}, s{sHH+r} offen sc1", "hst2") for r in range(2)]
    if upto < 5: return resolve_waits(flat(o))
    o += st("T") + late + [W(vm="hst2"), "s_barrier"] + st() + st("T")
    btw = [f"s_mul_i32 s{sA}, s{sRB}, {4*57344}", f"s_mul_i32 s{sT0}, s{sW}, {14*1024}", f"s_add_u32 s{sA}, s{sA}, s{sT0}", f"s_add_u32 s{sA}, s{sA}, {WS_H1}"]
    btw += [f"s_add_u32 s{sA+r}, s{sA}, {r*57344}" for r in range(1, 4)] + srd(sR, pOUT, 2*MB)
    F2, BF = 40, 8
    btw += [W(vm="ep")]
    for j in range(8): btw += [f"v_lshlrev_b32 v{F2+2*j}, 16, v{B2+j}", f"v_and_b32 v{F2+2*j+1}, 0xffff0000, v{B2+j}"]
    o += sync(3, sSUB, btw) + st() + st("T")
    o += [al2(i) for i in range(8)]
    o += gemm("e", 14, wl2, al2, lambda i: []) + st("T")
    o += reduce_waves()
    F = AR
    for j in range(8): o += [f"v_lshlrev_b32 v{F+2*j}, 16, v{XR+j}", f"v_and_b32 v{F+2*j+1}, 0xffff0000, v{XR+j}"]
    o += [f"s_lshl_b32 s{sT0}, s{sRT}, 14", f"s_lshl_b32 s{sT1}, s{sCTL}, 7", f"s_add_u32 s{sT0}, s{sT0}, s{sT1}"]
    for t in range(4):
        b = ACC + t*16
        o += sum4(t)
        for h in (0, 2): o += [f"v_pk_add_f32 {vr(b+h, 2)}, {vr(b+h, 2)}, {vr(F2+4*t+h, 2)}"]
        for h in (0, 2): o += [f"v_pk_fma_f32 {vr(F+4*t+h, 2)}, {vr(b+h, 2)}, {vr(GB+4*t+h, 2)}, {vr(F+4*t+h, 2)}"]
        o += [f"v_cvt_pk_bf16_f32 v{XR+2*t}, v{F+4*t}, v{F+4*t+1}", f"v_cvt_pk_bf16_f32 v{XR+2*t+1}, v{F+4*t+2}, v{F+4*t+3}",
              VM(f"buffer_store_dwordx2 {vr(XR+2*t, 2)}, v{vRM}, s[{sR}:{sR+3}], s{sT0} offen offset:{t*32}")]
    return resolve_waits(flat(o))
```

```python
from common import *
from flay import *

def fused(name, ts=False, opt="", upto=9):
    N = name
    NT = " nt" if "nt" in opt.split() else ""
    NT1 = " nt" if "nt1" in opt.split() or NT else ""
    NTT = " nt" if "ntt" in opt.split() or NT else ""
    sW, sHEAD, sJ, sC = 3, 4, 5, 6
    sWS = 8; WS = "s[8:11]"
    sT0, sT1 = 76, 77
    pX, pB1, pB2, pOUT = 92, 94, 96, 98
    vL16 = 1
    nstamp = [0]; env = {}
    SM = "A" if "stA" in opt else ("B" if "stB" in opt else ("P" if "stP" in opt else ("T" if "stT" in opt else "")))
    def st(kind=""):
        if not ts or nstamp[0] >= 15 or kind != SM: return []
        nstamp[0] += 1
        return [stamp(nstamp[0] - 1)]
    def finish():
        r = []
        if ts:
            r += ["s_waitcnt vmcnt(0)", stamp(15), "s_waitcnt lgkmcnt(0)", "v_mov_b32 v2, s100", "v_mov_b32 v3, s74",
                  "s_lshl_b32 s76, s2, 2", f"s_add_u32 s76, s76, s{sW}", "s_lshl_b32 s77, s76, 3", f"s_add_u32 s77, s77, {WS_TS}",
                  f"buffer_store_dwordx2 v[2:3], off, {WS}, s77", "s_lshl_b32 s77, s76, 6", f"s_add_u32 s77, s77, {WS_TS + 65536}"]
            for q in range(0, 16, 4):
                r += [f"v_mov_b32 v{4+j}, s{44+2*(q+j)}" for j in range(4)]
                r += [f"buffer_store_dwordx4 v[4:7], off, {WS}, s77 offset:{q*4}", "s_nop 1"]
        return flat(r + [f"Lend_{N}:", "s_endpgm"]) + env["fallback"] + flat([f"Lcode_end_{N}:", "s_endpgm"])
    def rnd(r0, r1, t): return [f"v_cvt_pk_bf16_f32 v{t}, v{r0}, v{r1}", f"v_lshlrev_b32 v{r0}, 16, v{t}", f"v_and_b32 v{r1}, 0xffff0000, v{t}"]
    def flag_off(dst, kind, own):
        r = [f"s_lshl_b32 s{dst}, s{sJ}, 7", f"s_add_u32 s{dst}, s{dst}, {WS_FLAG + 1024 + kind*1024}"]
        if own: r += [f"s_lshl_b32 s{sT0}, s{sC}, 2", f"s_add_u32 s{dst}, s{dst}, s{sT0}"]
        return r + [f"s_cmp_eq_u32 s{sW}, 0", f"s_cselect_b32 s{dst}, s{dst}, {OOB:#x}"]
    def publish(vt, soff):
        return [f"v_min_u32 v{vt}, 1, v0", f"v_lshlrev_b32 v{vt}, 27, v{vt}", f"v_mov_b32 v{vt+1}, 1",
                VM(f"buffer_store_dword v{vt+1}, v{vt}, {WS}, s{soff} offen sc1", "flag")]
    nsp = [0]
    def check(load, test, scnt, tag, mask=None):
        nsp[0] += 1; k = f"{N}_{nsp[0]}"
        test = [test, "s_cmp_lg_u64 vcc, 0" if mask is None else f"s_and_b64 vcc, vcc, s[{mask}:{mask+1}]"]
        return flat([W(vm=tag), f"s_cmp_lg_u32 s{sW}, 0", f"s_cbranch_scc1 Lok{k}", test, f"s_cbranch_scc0 Lok{k}", f"s_mov_b32 s{scnt}, 0x80000",
                     f"Lsp{k}:", f"s_sub_u32 s{scnt}, s{scnt}, 1", f"s_cbranch_scc1 Lok{k}", "s_sleep 2", load, It("s_waitcnt vmcnt(0)", k="cond"), test,
                     f"s_cbranch_scc1 Lsp{k}", f"Lok{k}:"])

    sCKV, sWK, sWV, sMOD, sCV, sX, sDBG, sCODE = 12, 16, 20, 24, 28, 32, 36, 40
    sWQ, sWO, sU2 = sMOD, sCV, sCODE
    sCOFF, sWKOFF, sWVOFF, sKST, sVST, sM0C, sM0K, sMST, sATO, sADD, sMF, sHST, sSPIN, sRS0 = range(78, 92)
    sRS1 = 7; sMEAN0, sMEAN1 = sMST, sATO
    vWD, vTR, vCD, vCR, vT = 2, 6, 10, 14, 16
    WF, X, ACC = 32, 64, 128
    RING, CBUF = 16384, 98304
    MODRED, MODV, HST = 0, 1024, 5120
    o = ["s_cmp_ge_u32 s2, 256", f"s_cbranch_scc1 Lend_{N}"] + load_args()
    if ts: o += ["s_memrealtime s[100:101]" if not CYC else "s_memtime s[100:101]"]
    o += [f"s_getpc_b64 s[{sCODE}:{sCODE+1}]", f"Lpc_{N}:", f"s_mov_b32 s{sCODE+2}, Lcode_end_{N}-Lpc_{N}", f"s_mov_b32 s{sCODE+3}, 0x20000",
          f"v_lshlrev_b32 v{vT}, 7, v0", VM(f"buffer_load_dword v{vT+1}, v{vT}, s[{sCODE}:{sCODE+3}], 0 offen", "code")]
    o += [f"""
    v_lshrrev_b32 v{vT+2}, 6, v0
    v_and_b32 v0, 63, v0
    v_readfirstlane_b32 s{sW}, v{vT+2}
    v_lshlrev_b32 v{vL16}, 4, v0
    s_and_b32 s{sHEAD}, s2, 7
    s_lshl_b32 s{sHEAD}, s{sHEAD}, 2
    s_bfe_u32 s{sT0}, s2, 0x20003
    s_add_u32 s{sHEAD}, s{sHEAD}, s{sT0}
    s_lshr_b32 s{sJ}, s2, 5
    s_and_b32 s{sC}, s2, 31
    v_lshrrev_b32 v{vT+2}, 3, v0
    v_and_b32 v{vT+3}, 7, v0
    """]
    r8, c8 = vT+2, vT+3
    o += [f"""
    v_mul_u32_u24 v{vT+4}, 6144, v{r8}
    v_lshl_add_u32 v{vT+4}, v{c8}, 4, v{vT+4}
    v_lshlrev_b32 v{vT+5}, 1, v{r8}
    v_lshrrev_b32 v{vT+6}, 1, v{r8}
    v_xor_b32 v{vT+6}, v{vT+6}, v{c8}
    v_lshlrev_b32 v{vT+6}, 4, v{vT+6}
    v_lshl_add_u32 v{vCD}, v{r8}, 10, v{vT+6}
    v_xor_b32 v{vCD+1}, 64, v{vCD}
    v_add_u32 v{vCD+1}, {7*1024}, v{vCD+1}
    v_add_u32 v{vCD+2}, {14*1024}, v{vCD}
    v_add_u32 v{vCD+3}, {14*1024}, v{vCD+1}
    v_and_b32 v{vT+6}, 2, v{r8}
    v_xor_b32 v{vT+6}, v{vT+6}, v{c8}
    v_lshlrev_b32 v{vT+6}, 4, v{vT+6}
    v_lshl_add_u32 v{vWD}, v{r8}, 13, v{vT+6}
    v_xor_b32 v{vWD+1}, 64, v{vWD}
    v_add_u32 v{vWD+1}, {65536-1024}, v{vWD+1}
    v_add_u32 v{vWD+2}, {2*(65536-1024)}, v{vWD}
    v_add_u32 v{vWD+3}, {2*(65536-1024)}, v{vWD+1}
    s_and_b32 s{sT0}, s2, 3
    s_lshl_b32 s{sT0}, s{sT0}, 7
    s_lshl_b32 s{sT1}, s{sW}, 5
    s_add_u32 s{sMF}, s{sT0}, s{sT1}
    s_lshl_b32 s{sHST}, s{sMF}, 1
    s_mul_i32 s{sMF}, s{sMF}, 6144
    s_lshr_b32 s{sMST}, s2, 2
    s_lshl_b32 s{sMST}, s{sMST}, 7
    s_add_u32 s{sMF}, s{sMF}, s{sMST}
    s_lshl_b32 s{sCOFF}, s{sJ}, 18
    s_lshl_b32 s{sT0}, s{sW}, 16
    s_add_u32 s{sCOFF}, s{sCOFF}, s{sT0}
    s_lshl_b32 s{sM0C}, s{sW}, 14
    s_add_u32 s{sM0C}, s{sM0C}, {CBUF}
    s_and_b32 s{sT0}, s{sW}, 1
    s_lshl_b32 s{sWKOFF}, s{sT0}, 18
    s_lshr_b32 s{sT1}, s{sW}, 1
    s_lshl_b32 s{sT1}, s{sT1}, 7
    s_add_u32 s{sWKOFF}, s{sWKOFF}, s{sT1}
    s_lshl_b32 s{sT1}, s{sHEAD}, 8
    s_add_u32 s{sWKOFF}, s{sWKOFF}, s{sT1}
    s_lshl_b32 s{sWVOFF}, s{sW}, 18
    s_add_u32 s{sWVOFF}, s{sWVOFF}, s{sT1}
    s_lshl_b32 s{sM0K}, s{sW}, 12
    s_waitcnt lgkmcnt(0)
    """]
    if SM == "P": o += ["s_memrealtime s[92:93]"]
    o += srd(sMOD, P("wmod"), 512*6144) + srd(sCV, P("c"), 1024) + ["s_cmp_lt_u32 s2, 192", f"s_cselect_b32 s{sMOD+2}, s{sMOD+2}, 0"]
    MW, MC, MA, MT = 64, 80, 84, 92
    for n in range(4): o += [VM(f"buffer_load_ushort v{MC+n}, v{vT+5}, s[{sCV}:{sCV+3}], s{sHST} offen offset:{16*n}", "modc")]
    for n in range(4):
        o += [VM(f"buffer_load_dwordx4 v[{MW+4*n}:{MW+4*n+3}], v{vT+4}, s[{sMOD}:{sMOD+3}], s{sMF} offen{NT1}", ("modw", n))]
        if n < 3: o += [f"s_add_u32 s{sMF}, s{sMF}, {8*6144}"]
    o += srd(sCKV, P("ckv"), 2*MB) + srd(sWK, P("wuk"), 4*MB)
    def c_dma(i):
        g = []
        for hh in range(2):
            grp = [f"s_add_u32 m0, s{sM0C}, {(i&1)*8192 + hh*4096}", f"s_add_u32 s{sT0}, s{sCOFF}, {i*128 + hh*32768}"]
            for n in range(4):
                grp.append(VM(f"buffer_load_dwordx4 v{vCD+n}, s[{sCKV}:{sCKV+3}], s{sT0} offen offset:{n*1024}{' nt' if 'ntc' in opt.split() else ''} lds", ("c", i)))
                g.append(grp); grp = []
        return g
    def page(q): return RING + (q % 5) * 16384
    def w_dma(q):
        if q < 8: sd, off, m0 = sWK, f"s_add_u32 s{sT1}, s{sWKOFF}, {q*64*8192}", f"s{sM0K}, {page(q)}"
        elif q < 16:
            sd, off = sWV, f"s_add_u32 s{sT1}, s{sWVOFF}, {((q-8)&3)*128*8192 + ((q-8)>>2)*128}"
            m0 = f"s{sM0K}, {page(q)}" if q < 12 else f"s{sM0C}, {(q-12)*4096}"
        else: sd, off, m0 = sWQ, f"s_add_u32 s{sT1}, s{sWKOFF}, {(q-16)*64*8192}", f"s{sM0K}, {(q-16)*16384}"
        g = []; grp = [f"s_add_u32 m0, {m0}", off]
        for n in range(4):
            grp.append(VM(f"buffer_load_dwordx4 v{vWD+n}, s[{sd}:{sd+3}], s{sT1} offen offset:{n*1024}{NT} lds", ("w", q)))
            g.append(grp); grp = []
        return g
    o += [c_dma(0), w_dma(0)] + (["s_memrealtime s[94:95]"] if SM == "P" else []) + srd(sWV, P("wuv"), 4*MB)
    OPT = opt.split()
    vTD = vT+1
    def w_touch(sd, vt, nt):
        return [f"s_lshl_b32 s{sT0}, s{sJ}, 19", f"s_lshl_b32 s{sT1}, s{sW}, 17", f"s_add_u32 s{sT0}, s{sT0}, s{sT1}", f"s_lshl_b32 s{sT1}, s{sHEAD}, 8",
                f"s_add_u32 s{sT0}, s{sT0}, s{sT1}", VM(f"buffer_load_dword v{vTD}, v{vt}, s[{sd}:{sd+3}], s{sT0} offen{nt}", "tch")]
    def w_touch_addr(vt): return [f"v_bfe_u32 v{vt}, v0, 1, 4", f"v_lshlrev_b32 v{vt}, 13, v{vt}", f"v_and_b32 v{vt+1}, 1, v0", f"v_lshl_add_u32 v{vt}, v{vt+1}, 7, v{vt}"]
    vTA = 96
    tc = [f"v_lshlrev_b32 v{vTA}, 7, v0", f"s_bfe_u32 s{sT0}, s2, 0x20003", f"s_lshl_b32 s{sT0}, s{sT0}, 16", f"s_lshl_b32 s{sT1}, s{sJ}, 18",
          f"s_add_u32 s{sT0}, s{sT0}, s{sT1}", f"s_lshl_b32 s{sT1}, s{sW}, 14", f"s_add_u32 s{sT0}, s{sT0}, s{sT1}",
          VM(f"buffer_load_dword v{vTD}, v{vTA}, s[{sCKV}:{sCKV+3}], s{sT0} offen", "tch"), f"s_add_u32 s{sT0}, s{sT0}, 8192",
          VM(f"buffer_load_dword v{vTD}, v{vTA}, s[{sCKV}:{sCKV+3}], s{sT0} offen", "tch")]
    tk = w_touch_addr(vTA) + w_touch(sWK, vTA, NTT); tv = w_touch_addr(vTA) + w_touch(sWV, vTA, NTT)
    if "tc0" in OPT: o += tc
    if "tk0" in OPT: o += tk
    o += [c_dma(1), w_dma(1)] + (["s_memrealtime s[96:97]"] if SM == "P" else []) + srd(sWS, P("ws"), WS_SIZE)
    KF, VF, SF = 0, 5120, 6144
    vZA, vZD = vT+14, vT+15
    o += [f"""
    v_lshlrev_b32 v{vZA}, 10, v0
    s_lshl_b32 s{sT0}, s{sJ}, 7
    s_lshl_b32 s{sT1}, s{sC}, 2
    s_add_u32 s{sT0}, s{sT0}, s{sT1}
    v_add_u32 v{vZA}, s{sT0}, v{vZA}
    s_lshl_b32 s{sT0}, s{sHEAD}, 5
    s_lshl_b32 s{sT1}, s{sJ}, 2
    s_add_u32 s{sT0}, s{sT0}, s{sT1}
    v_writelane_b32 v{vZA}, s{sT0}, 0
    s_add_u32 s{sT0}, s{sT0}, {VF}
    v_writelane_b32 v{vZA}, s{sT0}, 5
    s_lshl_b32 s{sT0}, s2, 2
    s_add_u32 s{sT0}, s{sT0}, {SF}
    v_writelane_b32 v{vZA}, s{sT0}, 6
    v_mov_b32 v{vZD}, {1 << 27}
    v_cmp_gt_u32 vcc, 7, v0
    v_cndmask_b32 v{vZA}, v{vZD}, v{vZA}, vcc
    v_mov_b32 v{vZD}, 0
    s_mov_b32 s{sSPIN}, {WS_FLAG}
    s_cmp_eq_u32 s{sW}, 0
    s_cselect_b32 s{sSPIN}, s{sSPIN}, {OOB:#x}
    """, VM(f"buffer_store_dword v{vZD}, v{vZA}, {WS}, s{sSPIN} offen sc1", "zero")]
    for i in (32768, 65536):
        o += [f"s_mov_b32 s{sT0}, {i}", VM(f"buffer_load_dword v{vT+1}, v{vT}, s[{sCODE}:{sCODE+3}], s{sT0} offen", "code2")]
    o += srd(sX, P("x"), 2*MB) + srd(sDBG, P("dbg"), 256) + srd(sWQ, P("wq"), 4*MB) + srd(sWO, P("wo"), 4*MB)
    EARLY = "s_waitcnt lgkmcnt(0)\ns_mov_b32 s66, s92\ns_mov_b32 s68, s94\ns_mov_b32 s72, s96" if SM == "P" else ""
    o += [f"""
    s_lshl_b32 s{sT0}, s2, 2
    s_add_u32 s{sT0}, s{sT0}, s{sW}
    s_cmp_lt_u32 s{sT0}, 448
    s_cselect_b32 s{sU2}, s{P('w2')}, s{P('w1')}
    s_cselect_b32 s{sU2+1}, s{P('w2')+1}, s{P('w1')+1}
    s_cmp_lt_u32 s{sT0}, 896
    s_cselect_b32 s{sU2+2}, {1792*1024}, 0
    s_mov_b32 s{sU2+3}, 0x20000
    {EARLY}
    s_mov_b64 s[{pX}:{pX+1}], s[{P('x')}:{P('x')+1}]
    s_mov_b64 s[{pB1}:{pB1+1}], s[{P('b1')}:{P('b1')+1}]
    s_mov_b64 s[{pB2}:{pB2+1}], s[{P('b2')}:{P('b2')+1}]
    s_mov_b64 s[{pOUT}:{pOUT+1}], s[{P('out')}:{P('out')+1}]
    v_lshrrev_b32 v{vT+6}, 4, v0
    v_bfe_u32 v{vT+7}, v0, 2, 2
    v_lshl_add_u32 v{vT+8}, v{vT+6}, 3, v{vT+7}
    v_lshlrev_b32 v{vT+8}, 7, v{vT+8}
    v_and_b32 v{vT+9}, 3, v0
    v_lshl_add_u32 v{vT+8}, v{vT+9}, 3, v{vT+8}
    v_and_b32 v{vT+9}, 1, v{vT+6}
    v_lshlrev_b32 v{vT+9}, 1, v{vT+9}
    v_lshrrev_b32 v{vT+10}, 1, v{vT+7}
    v_or_b32 v{vT+9}, v{vT+9}, v{vT+10}
    v_lshl_add_u32 v{vTR}, v{vT+9}, 5, v{vT+8}
    v_xor_b32 v{vTR+1}, 32, v{vTR}
    v_xor_b32 v{vTR+2}, 64, v{vTR}
    v_xor_b32 v{vTR+3}, 0x60, v{vTR}
    v_and_b32 v{vT+7}, 15, v0
    v_lshrrev_b32 v{vT+8}, 1, v{vT+7}
    v_xor_b32 v{vT+8}, v{vT+8}, v{vT+6}
    v_lshlrev_b32 v{vT+8}, 4, v{vT+8}
    v_lshl_add_u32 v{vT+8}, v{vT+7}, 7, v{vT+8}
    v_add_u32 v{vCR}, s{sM0C}, v{vT+8}
    v_xor_b32 v{vCR+1}, 64, v{vCR}
    s_lshl_b32 s{sKST}, s{sHEAD}, 19
    s_lshl_b32 s{sT0}, s{sJ}, 16
    s_add_u32 s{sKST}, s{sKST}, s{sT0}
    s_lshl_b32 s{sT0}, s{sW}, 14
    s_add_u32 s{sKST}, s{sKST}, s{sT0}
    s_add_u32 s{sVST}, s{sKST}, {WS_V}
    s_and_b32 s{sT0}, s2, 3
    s_mul_i32 s{sT0}, s{sT0}, 12288
    s_lshl_b32 s{sMST}, s{sMST}, 1
    s_add_u32 s{sMST}, s{sMST}, s{sT0}
    s_add_u32 s{sMST}, s{sMST}, {WS_MODP}
    s_cmp_lt_u32 s2, 192
    s_cselect_b32 s{sT0}, s{sW}, 1
    s_cmp_eq_u32 s{sT0}, 0
    s_cselect_b32 s{sMST}, s{sMST}, {OOB:#x}
    s_and_b32 s{sATO}, s2, 63
    s_lshl_b32 s{sATO}, s{sATO}, 2
    s_cmp_eq_u32 s{sW}, 0
    s_cselect_b32 s{sATO}, s{sATO}, 256
    s_cmp_ge_u32 s{sW}, 2
    s_cselect_b32 s{sADD}, 1.0, 0
    """]
    o += st("P") + [W(vm="code" if SM == "P" else "modc")] + st("P") + [W(vm="modc")] + st("P")
    for n in range(4): o += [f"v_lshlrev_b32 v{MC+n}, 16, v{MC+n}"]
    for n in range(4): o += [f"v_mul_f32 v{MT+n}, {fbits(-1.4426950408889634)}, v{MC+n}"]
    for n in range(4): o += [f"v_exp_f32 v{MT+n}, v{MT+n}"]
    for n in range(4): o += [f"v_add_f32 v{MT+n}, 1.0, v{MT+n}"]
    for n in range(4): o += [f"v_rcp_f32 v{MT+n}, v{MT+n}"]
    for n in range(4): o += [f"v_mul_f32 v{MC+n}, v{MC+n}, v{MT+n}"]
    for n in range(4): o += [f"v_cvt_pk_bf16_f32 v{MC+n}, v{MC+n}, v{MC+n}"]
    for n in range(4): o += [f"v_lshlrev_b32 v{MC+n}, 16, v{MC+n}"]
    for n in range(4):
        o += [W(vm=[("modw", n)])]
        for j in range(4):
            o += [f"v_lshlrev_b32 v{MT}, 16, v{MW+4*n+j}", f"v_and_b32 v{MT+1}, 0xffff0000, v{MW+4*n+j}"]
            if n == 0: o += [f"v_mul_f32 v{MA+2*j}, v{MC}, v{MT}", f"v_mul_f32 v{MA+2*j+1}, v{MC}, v{MT+1}"]
            else: o += [f"v_fmac_f32 v{MA+2*j}, v{MC+n}, v{MT}", f"v_fmac_f32 v{MA+2*j+1}, v{MC+n}, v{MT+1}"]
    for j in range(8): o += [f"v_add_f32_dpp v{MA+j}, v{MA+j}, v{MA+j} row_ror:8 row_mask:0xf bank_mask:0xf"]
    for j in range(0, 8, 2): o += [f"v_permlane16_swap_b32 v{MA+j}, v{MA+j+1}"]
    for j in range(0, 8, 2): o += [f"v_add_f32 v{MA+j}, v{MA+j}, v{MA+j+1}"]
    for j in (0, 4): o += [f"v_permlane32_swap_b32 v{MA+j}, v{MA+j+2}"]
    for j in (0, 4): o += [f"v_add_f32 v{MA+j}, v{MA+j}, v{MA+j+2}"]
    vL4, vL256, vONE = vT+4, vT+5, vT+6
    o += [f"""
    v_lshrrev_b32 v{MT}, 4, v0
    v_lshl_add_u32 v{MT}, v{c8}, 3, v{MT}
    v_lshlrev_b32 v{MT}, 2, v{MT}
    s_lshl_b32 s{sT0}, s{sW}, 8
    v_add_u32 v{MT}, s{sT0}, v{MT}
    """, LG(f"ds_write_b32 v{MT}, v{MA} offset:{MODRED}", "mr"), LG(f"ds_write_b32 v{MT}, v{MA+4} offset:{MODRED+16}", "mr"),
    f"v_lshlrev_b32 v{vL4}, 2, v0", f"v_lshlrev_b32 v{vL256}, 8, v0", f"v_mov_b32 v{vONE}, 1"]
    def Cfrag(kt, s): return ar((s*4+kt)*4, 4)
    def c_reads(i):
        return [LG(f"ds_read_b128 {Cfrag(kt, 2*i+sp)}, v{vCR+sp} offset:{(i&1)*8192 + kt*2048}", ("cr", i)) for sp in range(2) for kt in range(4)]
    o += st("P") + [W(vm=[("c", 0)])] + st("P") + [c_reads(0), W(vm=[("w", 0)], lg="mr")] + st("P") + ["s_barrier"] + st("P")

    QA, HR = 64, 192
    aK, aV = 128, 160
    def accK(dt, kt): return ACC + (dt*4+kt)*4
    def acc(dt, qi): return QA + (dt*4+qi)*4
    def Hf(s, qi): return vr(HR + ((s & 3)*4+qi)*4, 4, "a" if s & 4 else "v")
    frags = []
    for s in range(16):
        for dt in range(8):
            frags.append((s >> 1, page(s >> 1) + (dt >> 2)*8192 + (s & 1)*4096, dt & 3, [(accK(dt, kt), "W", Cfrag(kt, s), s == 0) for kt in range(4)]))
    for s in range(16):
        for t in range(4):
            frags.append((8 + (s >> 2), page(8 + (s >> 2)) + (s & 3)*4096, t, [(X + (t*4+kt)*4, Cfrag(kt, s), "W", s == 0) for kt in range(4)]))
    for hb in range(2):
        for s in range(16):
            for t in (2*hb, 2*hb+1):
                frags.append((12 + (s >> 2), CBUF + (s & 3)*16384 + (s >> 2)*4096, t, [(ACC + (t*4+kt)*4, Cfrag(kt, s), "W", s == 0) for kt in range(4)]))
    for s in range(16):
        for dt in range(8):
            frags.append((16 + (s >> 1), (s >> 1)*16384 + (dt >> 2)*8192 + (s & 1)*4096, dt & 3, [(acc(dt, qi), "W", Hf(s, qi), s == 0) for qi in range(4)]))
    def wreg(f): return ("v", WF + (f % 8)*4) if f < 256 else ("a", aK + (f % 16)*4)
    slots = []
    for f, (q, a, t, mf) in enumerate(frags):
        fl, r = wreg(f); wf = vr(r, 4, fl)
        for n, (d, a_, b_, first) in enumerate(mf):
            sl = Slot(I(f"v_mfma_f32_16x16x32_bf16 {vr(d,4)}, {wf if a_ == 'W' else a_}, {wf if b_ == 'W' else b_}, {'0' if first else vr(d,4)}"))
            if n == 0:
                if f % 2 == 0: sl.pre.append(W(lg=[("wf", f+1)]))
                if f < 128 and f % 16 == 0: sl.pre.append(W(lg=[("cr", f//16)]))
                if f >= 256 and f % 8 == 0: sl.pre.append(W(vm=[("h", (f-256)//8)]))
            slots.append(sl)
    LA = 4
    wbase = [0]; bar = {}
    def frag_reads(f):
        q, a, t, _ = frags[f]; g = []
        wb = wbase[0]
        if not (wb <= a and a + 512 < wb + 65536): wb = 0 if a < 65536 else (65536 if a < CBUF or f >= 256 else CBUF)
        if wb != wbase[0]:
            g += [f"v_add_u32 v{vTR+i}, {(wb - wbase[0]) & 0xffffffff:#x}, v{vTR+i}" for i in range(4)]; wbase[0] = wb
        fl, r = wreg(f)
        return g, [LG(f"ds_read_b64_tr_b16 {vr(r+2*hh, 2, fl)}, v{vTR+t} offset:{a - wb + hh*512}", ("wf", f)) for hh in range(2)]
    for f in range(LA):
        g, rd = frag_reads(f); o += g + rd
    valid = {0}
    VAL = {12: [12, 13, 14, 15], 16: [16, 17, 18, 19, 20, 21]}
    for f in range(LA, len(frags)):
        q = frags[f][0]; i = (f - LA)*4
        if q not in valid or (q > 16 and f % 16 == 0):
            qs = VAL.get(q, [q]); valid.update(qs); bar[q] = i - 1
            slots[i-1].alu += [W(vm=[("w", x) for x in qs]), I("s_barrier")]
        g, rd = frag_reads(f)
        slots[i-1].alu += flat(g)
        slots[i].mem.append(rd[0]); slots[i+1].mem.append(rd[1])
    def put(groups, b, step=4, where="mem"):
        for n, g in enumerate(groups): getattr(slots[b + step*n], where).append(g)
    def put2(groups, b):
        for n, g in enumerate(groups): slots[b + (n >> 1)*4 + (n & 1)].mem.append(g)
    def before_bar(q, items): slots[bar[q]].alu[0:0] = flat(items)
    for q in range(5, 12): put(w_dma(q), bar[q-3] + 3)
    put2(w_dma(2) + c_dma(2) + w_dma(3), 2)
    put2(w_dma(4), 74)
    if "tc1" in OPT: slots[0].mem += flat(tc)
    if "tk1" in OPT: slots[1].mem += flat(tk)
    if "tv" in OPT: slots[84].mem += flat(tv)
    for p in range(7):
        b = p*64 + (36 if p == 0 else 4)
        slots[b].mem.append(W(vm=[("c", p+1)]))
        put2(c_reads(p+1), b + 2)
        b2 = b + 20
        slots[b2].mem.append(W(lg=[("cr", p+1)]))
        if p + 3 < 8: put2(c_dma(p+3), b2 + 2)
        else: put2(w_dma(12 + 2*(p-5)) + w_dma(13 + 2*(p-5)), b2 + 2)
    MR = vT + 8
    put([LG(f"ds_read2st64_b32 v[{MR}:{MR+1}], v{vL4} offset0:0 offset1:1", "mr2"),
         LG(f"ds_read2st64_b32 v[{MR+2}:{MR+3}], v{vL4} offset0:2 offset1:3", "mr2")], 4)
    put([[W(lg="mr2"), f"v_add_f32 v{MR}, v{MR}, v{MR+1}"], f"v_add_f32 v{MR+2}, v{MR+2}, v{MR+3}", f"v_add_f32 v{MR}, v{MR}, v{MR+2}"], 12, 1, "alu")
    slots[18].mem.append(VM(f"buffer_store_dword v{MR}, v{vL4}, {WS}, s{sMST} offen sc1", "mst"))
    slots[102].mem += [W(vm=["mst", "zero"]), VM(f"buffer_atomic_add v{vONE}, v{vL256}, s[{sDBG}:{sDBG+3}], s{sATO} offen sc1")]
    XR, F0, F1, TT, AV, BV, PP, MF = 64, 72, 80, 88, 92, 100, 108, 124
    slots[104].alu += flat([f"""
    s_sub_u32 s{sHST}, 15, s{sJ}
    s_cmp_lt_u32 s{sC}, 16
    s_cselect_b32 s{sHST}, s{sJ}, s{sHST}
    s_lshl_b32 s{sHST}, s{sHST}, 4
    s_and_b32 s{sMF}, s{sC}, 15
    s_add_u32 s{sHST}, s{sHST}, s{sMF}
    s_lshl_b32 s{sMF}, s{sHST}, 13
    s_lshl_b32 s{sSPIN}, s{sW}, 11
    s_add_u32 s{sMF}, s{sMF}, s{sSPIN}
    """])
    put2([VM(f"buffer_load_dwordx4 {vr(XR+4*k,4)}, v{vL16}, s[{sX}:{sX+3}], s{sMF} offen offset:{1024*k}", "x") for k in range(2)], 106)
    g = []
    for j in range(4):
        for F, xr in ((F0, XR), (F1, XR+4)): g += [f"v_lshlrev_b32 v{F+2*j}, 16, v{xr+j}", f"v_and_b32 v{F+2*j+1}, 0xffff0000, v{xr+j}"]
    g[0] = [W(vm="x"), g[0]]
    def reduce2(sa, sb, post):
        r = []
        for m in ("quad_perm:[1,0,3,2]", "quad_perm:[2,3,0,1]", "row_ror:4", "row_ror:8"):
            r += [f"v_add_f32_dpp v{TT}, v{TT}, v{TT} {m} row_mask:0xf bank_mask:0xf", f"v_add_f32_dpp v{TT+1}, v{TT+1}, v{TT+1} {m} row_mask:0xf bank_mask:0xf"]
        r += [f"v_permlane16_swap_b32 v{TT}, v{TT+1}", f"v_add_f32 v{TT}, v{TT}, v{TT+1}", f"v_mov_b32 v{TT+1}, v{TT}",
              f"v_permlane32_swap_b32 v{TT}, v{TT+1}", f"v_add_f32 v{TT}, v{TT}, v{TT+1}"] + post
        return r + [f"v_readlane_b32 s{sa}, v{TT}, 0", f"v_readlane_b32 s{sb}, v{TT}, 16"]
    for j in range(1, 8):
        for k, F in enumerate((F0, F1)): g += [f"v_add_f32 v{TT+k}, v{F if j == 1 else TT+k}, v{F+j}"]
    g += reduce2(sMEAN0, sMEAN1, [f"v_mul_f32 v{TT}, {fbits(1/512)}, v{TT}"])
    for j in range(8):
        for F, sm in ((F0, sMEAN0), (F1, sMEAN1)): g += [f"v_subrev_f32 v{F+j}, s{sm}, v{F+j}"]
    for j in range(8):
        for k, F in enumerate((F0, F1)): g += [f"v_mul_f32 v{TT+k}, v{F}, v{F}" if j == 0 else f"v_fmac_f32 v{TT+k}, v{F+j}, v{F+j}"]
    g += reduce2(sRS0, sRS1, [f"v_mov_b32 v{TT+1}, {fbits(EPS)}", f"v_fmac_f32 v{TT+1}, {fbits(1/512)}, v{TT}", f"v_rsq_f32 v{TT}, v{TT+1}"])
    for j in range(8):
        for F, rs in ((F0, sRS0), (F1, sRS1)): g += [f"v_mul_f32 v{F+j}, s{rs}, v{F+j}"]
    spread(slots, g, 170, 340)
    ld = f"buffer_load_dword v{MR}, v{vL4}, s[{sDBG}:{sDBG+3}], 0 offen sc1"
    slots[238].mem.append(VM(ld, "poll1"))
    before_bar(5, check(ld, f"v_cmp_ne_u32 vcc, 4, v{MR}", sSPIN, "poll1"))
    b = bar[5] + 1
    slots[b].alu += flat([f"s_lshl_b32 s{sMF}, s{sW}, 10", f"s_add_u32 s{sMF}, s{sMF}, {WS_MODP}"])
    put([[VM(f"buffer_load_dwordx4 {vr(PP+4*n,4)}, v{vL16}, {WS}, s{sMF} offen sc1", "pp"), f"s_add_u32 s{sMF}, s{sMF}, 12288"] for n in range(4)], b + 3)
    slots[b + 16].alu += flat([f"s_lshl_b32 s{sMF}, s{sC}, 10", f"s_lshl_b32 s{sSPIN}, s{sW}, 8", f"s_add_u32 s{sMF}, s{sMF}, s{sSPIN}",
                               f"s_mul_i32 s{sSPIN}, s{sJ}, 12288", f"s_add_u32 s{sSPIN}, s{sSPIN}, s{sMF}", f"s_add_u32 s{sSPIN}, s{sSPIN}, {WS_MODF}",
                               f"s_add_u32 s{sMF}, s{sMF}, {WS_MODP}", f"s_cmp_lt_u32 s{sC}, 12",
                               f"s_cselect_b32 s{sMF}, s{sMF}, {OOB:#x}", f"s_cselect_b32 s{sSPIN}, s{sSPIN}, {OOB:#x}"])
    put([[VM(f"buffer_load_dword v{MF+n}, v{vL4}, {WS}, s{sMF} offen sc1", "mf"), f"s_add_u32 s{sMF}, s{sMF}, 12288"] for n in range(4)], b + 19)
    g = [[W(vm="pp"), f"v_add_f32 v{PP}, v{PP}, v{PP+4}"]] + [f"v_add_f32 v{PP+j}, v{PP+j}, v{PP+4+j}" for j in range(1, 4)]
    g += [f"v_add_f32 v{PP+8+j}, v{PP+8+j}, v{PP+12+j}" for j in range(4)] + [f"v_add_f32 v{PP+j}, v{PP+j}, v{PP+8+j}" for j in range(4)]
    g += rnd(PP, PP+1, PP+4) + rnd(PP+2, PP+3, PP+5) + [f"v_add_f32 v{PP+j}, s{sADD}, v{PP+j}" for j in range(4)]
    g += rnd(PP, PP+1, PP+4) + rnd(PP+2, PP+3, PP+5) + [f"v_mul_f32 v{PP+j}, {fbits(CSCALE)}, v{PP+j}" for j in range(4)]
    g += [f"s_lshl_b32 s{sMF}, s{sW}, 10", f"v_add_u32 v{PP+4}, s{sMF}, v{vL16}", f"v_lshlrev_b32 v{TT}, 5, v0"]
    g += [[W(vm="mf"), f"v_add_f32 v{MF}, v{MF}, v{MF+1}"], f"v_add_f32 v{MF+2}, v{MF+2}, v{MF+3}", f"v_add_f32 v{MF}, v{MF}, v{MF+2}",
          f"v_cvt_pk_bf16_f32 v{MF}, v{MF}, v{MF}", f"v_lshlrev_b32 v{vT+11}, 16, v{MF}"]
    spread(slots, g, 372, 424)
    slots[426].mem.append(LG(f"ds_write_b128 v{PP+4}, {vr(PP,4)} offset:{MODV}", "mv"))
    assert bar[7] > 427
    before_bar(7, [W(lg="mv")])
    put2([LG(f"ds_read_b128 {vr(r,4)}, v{TT} offset:{MODV+off}", "ab") for r, off in ((BV, 0), (BV+4, 16), (AV, 2048), (AV+4, 2064))], bar[7] + 3)
    g = []
    for j in range(8):
        for F in (F0, F1): g += [f"v_fma_f32 v{F+j}, v{F+j}, v{AV+j}, v{BV+j}"]
    g[0] = [W(lg="ab"), g[0]]
    for j in range(4):
        for F, xr in ((F0, XR), (F1, XR+4)): g += [f"v_cvt_pk_bf16_f32 v{xr+j}, v{F+2*j}, v{F+2*j+1}"]
    HA, HG, HD = vT+2, vT+3, vT+12
    g += [f"s_mul_i32 s{sMF}, s{sW}, 2080", f"v_add_u32 v{TT}, s{sMF}, v{vL16}"]
    g += [x.t for x in flat([f"""
    v_and_b32 v{HG}, 7, v0
    v_lshrrev_b32 v{TT+2}, 3, v0
    v_mul_u32_u24 v{HA}, 1040, v{HG}
    v_lshl_add_u32 v{HA}, v{TT+2}, 4, v{HA}
    s_lshl_b32 s{sMF}, s{sW}, 8
    v_add_u32 v{HA}, s{sMF}, v{HA}
    v_lshlrev_b32 v{HG}, 4, v{HG}
    v_and_b32 v{TT+3}, 3, v{TT+2}
    v_lshl_add_u32 v{HG}, v{TT+3}, 8, v{HG}
    v_lshrrev_b32 v{TT+2}, 2, v{TT+2}
    v_lshl_add_u32 v{HG}, v{TT+2}, 10, v{HG}
    s_and_b32 s{sMF}, s{sHST}, 1
    s_lshr_b32 s{sHST}, s{sHST}, 1
    s_lshl_b32 s{sHST}, s{sHST}, 14
    s_lshl_b32 s{sMF}, s{sMF}, 7
    s_add_u32 s{sHST}, s{sHST}, s{sMF}
    s_lshl_b32 s{sMF}, s{sW}, 12
    s_add_u32 s{sHST}, s{sHST}, s{sMF}
    s_add_u32 s{sHST}, s{sHST}, {WS_H}
    """])]
    spread(slots, g, bar[7] + 12, 488)
    put2([LG(f"ds_write_b128 v{TT}, {vr(XR+4*k,4)} offset:{HST+1040*k}", "hw") for k in range(2)], 490)
    assert bar[8] > 491
    before_bar(8, [W(lg="hw")])
    put2([LG(f"ds_read_b128 {vr(XR+56+4*k,4)}, v{HA} offset:{HST+128*k}", "hr") for k in range(2)], bar[8] + 3)
    slots[bar[8] + 7].mem += [VM(f"buffer_store_dword v{vT+11}, v{vL4}, {WS}, s{sSPIN} offen sc1", "hst")]
    put2([[W(lg="hr"), VM(f"buffer_store_dwordx4 {vr(XR+56+4*k,4)}, v{HG}, {WS}, s{sHST} offen offset:{2048*k} sc1", "hst")] for k in range(2)], bar[8] + 11)
    assert bar[8] + 12 < 512 + 4*14
    before_bar(9, [W(vm="hst")])
    slots[bar[9] - 4].alu += flat(flag_off(sMF, 0, True))
    slots[bar[9] + 1].alu += flat(publish(vT+2, sMF))
    def pack(dst, qa, qb):
        return [f"v_cvt_pk_bf16_f32 v{dst}, v{qa}, v{qa+1}", f"v_cvt_pk_bf16_f32 v{dst+1}, v{qa+2}, v{qa+3}",
                f"v_cvt_pk_bf16_f32 v{dst+2}, v{qb}, v{qb+1}", f"v_cvt_pk_bf16_f32 v{dst+3}, v{qb+2}, v{qb+3}"]
    def store(src, sreg, off, tag):
        return [f"s_add_u32 s{sT0}, s{sreg}, {off & ~4095}", VM(f"buffer_store_dwordx4 {vr(src,4)}, v{vL16}, {WS}, s{sT0} offen offset:{off & 4095} sc1", tag)]
    def at23(e):
        while (e & 3) < 2: e += 1
        return e
    kl = [(s4, kt) for s4 in (2, 3, 0, 1) for kt in range(4)]
    for n, (s4, kt) in enumerate(kl):
        dst = accK({2: 4, 3: 6, 0: 5, 1: 7}[s4], kt)
        b = 514 + n*(22 if n < 2 else 12) + (20 if n >= 2 else 0)
        put(pack(dst, accK(2*s4, kt), accK(2*s4+1, kt)), b, 2, "alu")
        slots[at23(524 + 22*n)].mem.append(store(dst, sKST, (kt >> 1)*8192 + ((kt & 1)*4 + s4)*1024, "kst"))
        assert b + 6 < 524 + 22*n and b + 6 < 764
    sH = 32; sUS, sUL = sMF, sHST
    put2(w_dma(16) + w_dma(17) + w_dma(19), bar[12] + 3)
    slots[815].alu += [I("s_barrier")]
    put2(w_dma(18) + w_dma(20) + w_dma(21), 818)
    slots[800].alu += flat(flag_off(sSPIN, 0, False) + [f"v_and_b32 v{vT+2}, 31, v0", f"v_lshlrev_b32 v{vT+2}, 2, v{vT+2}"])
    ld = f"buffer_load_dword v{vT+3}, v{vT+2}, {WS}, s{sSPIN} offen sc1"
    slots[843].mem.append(VM(ld, "poll2"))
    slots[860].alu += flat([f"""
    s_lshl_b32 s{sUS}, s{sJ}, 2
    s_sub_u32 s{sUL}, 60, s{sUS}
    s_add_u32 s{sUS}, s{sUS}, s{sW}
    s_add_u32 s{sUL}, s{sUL}, s{sW}
    s_lshl_b32 s{sH}, s{sUL}, 15
    s_add_u32 s{sH}, s{sH}, {WS_H}
    s_add_u32 s{sH+1}, s{sH}, 16384
    s_lshl_b32 s{sH+2}, s{sUS}, 15
    s_add_u32 s{sH+2}, s{sH+2}, {WS_H}
    s_add_u32 s{sH+3}, s{sH+2}, 16384
    """])
    slots[883].alu += check(ld, f"v_cmp_ne_u32 vcc, 1, v{vT+3}", sADD, "poll2") + [I("s_barrier")]
    def h_ld(s):
        g = []
        for qi in range(4):
            x = [VM(f"buffer_load_dwordx4 {Hf(s, qi)}, v{vL16}, {WS}, s{sH+qi} offen offset:{(s&3)*1024} sc1", ("h", s))]
            if (s & 3) == 3: x.append(f"s_add_u32 s{sH+qi}, s{sH+qi}, 4096")
            g.append(x)
        return g
    put2(h_ld(0) + h_ld(1) + h_ld(2) + h_ld(3), 886)
    if "tq" in OPT:
        slots[600].alu += flat(w_touch_addr(vT+8)); slots[606].mem += flat(w_touch(sWQ, vT+8, NTT))
    if "ts2" in OPT:
        slots[612].alu += flat([f"""
        s_lshl_b32 s{sSPIN}, s2, 2
        s_add_u32 s{sSPIN}, s{sSPIN}, s{sW}
        s_lshr_b32 s{sMST}, s{sSPIN}, 3
        s_lshl_b32 s{sMST}, s{sMST}, 15
        s_and_b32 s{sATO}, s{sSPIN}, 7
        s_lshl_b32 s{sATO}, s{sATO}, 7
        s_add_u32 s{sMST}, s{sMST}, s{sATO}
        s_sub_u32 s{sATO}, s{sSPIN}, 448
        s_and_b32 s{sADD}, s{sATO}, 15
        s_mul_i32 s{sADD}, s{sADD}, {32*3584}
        s_lshr_b32 s{sATO}, s{sATO}, 4
        s_lshl_b32 s{sATO}, s{sATO}, 7
        s_add_u32 s{sATO}, s{sATO}, s{sADD}
        s_cmp_lt_u32 s{sSPIN}, 448
        s_cselect_b32 s{sATO}, s{sMST}, s{sATO}
        s_movk_i32 s{sADD}, 1024
        s_cselect_b32 s{sADD}, s{sADD}, 3584
        v_and_b32 v{vT+10}, 31, v0
        v_mul_lo_u32 v{vT+11}, s{sADD}, v{vT+10}
        v_lshlrev_b32 v{vT+10}, 10, v{vT+10}
        """])
        slots[618].mem += [VM(f"buffer_load_dword v{vTD}, v{vT+10}, s[{sWO}:{sWO+3}], s{sMST} offen", "tch")]
        slots[619].mem += [VM(f"buffer_load_dword v{vTD}, v{vT+11}, s[{sU2}:{sU2+3}], s{sATO} offen", "tch")]
    if "th" in OPT:
        slots[884].alu += flat([f"s_bfe_u32 s{sT1}, s2, 0x20003", f"s_cmp_eq_u32 s{sT1}, 1", f"s_cselect_b32 s{sT0}, s{sH+1}, s{sH}", f"s_cmp_eq_u32 s{sT1}, 2",
                                f"s_cselect_b32 s{sT0}, s{sH+2}, s{sT0}", f"s_cmp_eq_u32 s{sT1}, 3", f"s_cselect_b32 s{sT0}, s{sH+3}, s{sT0}", f"v_lshlrev_b32 v{vT+8}, 7, v0",
                                VM(f"buffer_load_dword v{vTD}, v{vT+8}, {WS}, s{sT0} offen sc1", "tch"), f"s_add_u32 s{sT0}, s{sT0}, 8192",
                                VM(f"buffer_load_dword v{vTD}, v{vT+8}, {WS}, s{sT0} offen sc1", "tch")])
    for n in range(8):
        t, uu = n >> 1, n & 1; qa = X + (t*4+2*uu)*4
        put(pack(qa, qa, qa+4), 800 + 10*n, 2, "alu")
        slots[at23(920 + 12*n)].mem.append(store(qa, sVST, uu*8192 + t*1024, "vst"))
    for n in range(8):
        t, uu = n >> 1, n & 1; qa = ACC + (t*4+2*uu)*4
        put(pack(WF + 4*n, qa, qa+4), 1024 + 3*n, 1, "alu") if n < 4 else put(pack(WF + 4*n, qa, qa+4), 1024 + 12 + 3*(n-4), 1, "alu")
        slots[at23(1050 + 20*n)].mem.append(store(WF + 4*n, sVST, uu*8192 + (4+t)*1024, "vst"))
    def kvflag(dst, base, own):
        r = [f"s_lshl_b32 s{dst}, s{sHEAD}, 5", f"s_add_u32 s{dst}, s{dst}, {WS_FLAG + base}"]
        if own: r += [f"s_lshl_b32 s{sT0}, s{sJ}, 2", f"s_add_u32 s{dst}, s{dst}, s{sT0}"]
        return r + [f"s_cmp_eq_u32 s{sW}, 0", f"s_cselect_b32 s{dst}, s{dst}, {OOB:#x}"]
    before_bar(16, [W(vm="kst")])
    slots[bar[16] - 6].alu += flat(kvflag(sSPIN, KF, True))
    slots[bar[16] + 1].alu += flat(publish(vT+2, sSPIN))
    for p in (0, 4, 8, 12): slots[p*64].alu += st()
    for p in range(15): slots[p*64].alu += st("A")
    for p in range(9, 24): slots[p*64].alu += st("B")
    B0 = 1024
    slots[B0].alu += st()
    put2(h_ld(4) + h_ld(5) + h_ld(6) + h_ld(7), B0 + 2)
    for s in range(8, 16): put(h_ld(s), B0 + (s-7)*32 + 2)
    put(w_dma(22), bar[17] + 3); put(w_dma(23), bar[18] + 3)
    sK, sV, sMK, sCT = 12, 16, 24, 36
    sKO, sVO, sKM, sVM, sKR, sVR, sCNT, sMAT, sFL = 78, 80, 81, 82, 83, 85, 86, 87, 90
    vKB, vVB, ONES, LS, PB, CB, TMP = 2, 3, 12, 16, 32, 192, 224
    slots[bar[20]].alu += flat([f"""
    s_lshl_b32 s{sT0}, s{sHEAD}, 19
    s_add_u32 s{sK}, s{sWS}, s{sT0}
    s_addc_u32 s{sK+1}, s{sWS+1}, 0
    s_sub_u32 s{sK+2}, 16, s{sJ}
    s_lshl_b32 s{sK+2}, s{sK+2}, 15
    s_mov_b32 s{sK+3}, 0x20000
    s_add_u32 s{sV}, s{sK}, {WS_V}
    s_addc_u32 s{sV+1}, s{sK+1}, 0
    s_mov_b32 s{sV+2}, s{sK+2}
    s_mov_b32 s{sV+3}, 0x20000
    s_mov_b32 s{sKO}, s{sM0K}
    s_mov_b32 s{sVO}, s{sM0K}
    s_mov_b32 s{sKM}, s{sM0K}
    s_add_u32 s{sVM}, s{sM0K}, 65536
    s_mov_b32 s{sVR}, 65536
    """])
    vF = LS
    slots[bar[19] + 1].alu += flat(kvflag(sFL, KF, False) + [f"v_and_b32 v{vF}, 7, v0", f"v_lshlrev_b32 v{vF}, 2, v{vF}"])
    ld = f"buffer_load_dword v{vF+1}, v{vF}, {WS}, s{sFL} offen sc1"
    slots[bar[19] + 7].mem.append(VM(ld, "poll3"))
    before_bar(20, check(ld, f"v_cmp_ne_u32 vcc, 1, v{vF+1}", sCNT, "poll3"))
    before_bar(21, [W(vm="vst")])
    slots[bar[21] - 6].alu += flat(kvflag(sFL, VF, True))
    slots[bar[21] + 1].alu += flat(publish(vF+2, sFL) + kvflag(sFL, VF, False))
    slots[bar[23] + 3].mem.append(VM(ld, "poll4"))
    vcheck = check(ld, f"v_cmp_ne_u32 vcc, 1, v{vF+1}", sCNT, "poll4")
    def kv_dma(which, tag):
        sd, so, sm = (sK, sKO, sKM) if which == "K" else (sV, sVO, sVM)
        g = []; grp = [f"s_mov_b32 m0, s{sm}", f"s_add_u32 s{sm}, s{sm}, 16384"]
        for n in range(4):
            grp.append(VM(f"buffer_load_dwordx4 v{vL16}, s[{sd}:{sd+3}], s{so} offen offset:{n*1024} sc1 lds", tag))
            if n == 0: grp.append(f"s_and_b32 s{sm}, s{sm}, 0xffff")
            if n == 1 and which == "V": grp.append(f"s_or_b32 s{sm}, s{sm}, 0x10000")
            if n == 3: grp.append(f"s_add_u32 s{so}, s{so}, 16384")
            g.append(grp); grp = []
        return g
    put2(kv_dma("K", ("K", 0)) + kv_dma("K", ("K", 1)), bar[21] + 7)
    sS1, sD1, sS2 = 79, 7, 91; sD2 = [20, 21, 22, 23]; sX0, sX1 = sMAT, sKR
    vU1, vU2, vUT = PB+8, PB+12, PB+16
    g = [x.t for x in flat([f"""
    s_lshl_b32 s{sX0}, s2, 2
    s_add_u32 s{sX0}, s{sX0}, s{sW}
    s_lshr_b32 s{sS1}, s{sX0}, 3
    s_and_b32 s{sX1}, s{sX0}, 7
    s_lshl_b32 s{sD1}, s{sX1}, 7
    s_add_u32 s{sD1}, s{sD1}, s{sS1}
    s_lshl_b32 s{sD1}, s{sD1}, 12
    s_add_u32 s{sD1}, s{sD1}, {WS_WOF}
    s_mul_i32 s{sD2[0]}, s{sX1}, 56
    s_add_u32 s{sD2[0]}, s{sD2[0]}, s{sS1}
    s_lshl_b32 s{sD2[0]}, s{sD2[0]}, 12
    s_add_u32 s{sD2[0]}, s{sD2[0]}, {WS_W2F}
    s_lshl_b32 s{sS1}, s{sS1}, 15
    s_lshl_b32 s{sX1}, s{sX1}, 7
    s_add_u32 s{sS1}, s{sS1}, s{sX1}
    v_lshrrev_b32 v{vUT}, 3, v0
    v_and_b32 v{vUT+1}, 7, v0
    v_and_b32 v{vUT+2}, 6, v{vUT}
    v_xor_b32 v{vUT+2}, v{vUT+2}, v{vUT+1}
    v_lshlrev_b32 v{vUT+2}, 4, v{vUT+2}
    v_lshl_add_u32 v{vU1}, v{vUT}, 10, v{vUT+2}
    v_add_u32 v{vU1+1}, 7168, v{vU1}
    v_add_u32 v{vU1+2}, {2*7168}, v{vU1}
    v_add_u32 v{vU1+3}, {3*7168}, v{vU1}
    """])]
    br = flat([f"""
    s_mov_b32 s{sS2}, s{sS1}
    s_add_u32 s{sD2[1]}, s{sD2[0]}, 1024
    s_add_u32 s{sD2[2]}, s{sD2[0]}, 2048
    s_add_u32 s{sD2[3]}, s{sD2[0]}, 3072
    s_mov_b32 s{sX1}, 1024
    s_cmp_lt_u32 s{sX0}, 448
    s_cbranch_scc1 Lu2_{N}
    s_sub_u32 s{sX0}, s{sX0}, 448
    s_and_b32 s{sX1}, s{sX0}, 15
    s_lshr_b32 s{sX0}, s{sX0}, 4
    s_mul_i32 s{sS2}, s{sX1}, {32*3584}
    s_lshl_b32 s{sT0}, s{sX0}, 7
    s_add_u32 s{sS2}, s{sS2}, s{sT0}
    s_mul_i32 s{sX1}, s{sX1}, 7168
    s_add_u32 s{sX1}, s{sX1}, {WS_W1F}
    s_cmp_lt_u32 s{sX0}, 28
    s_cselect_b32 s{sX1}, s{sX1}, {OOB:#x}
    s_lshl_b32 s{sX0}, s{sX0}, 2
    """] + [f"""
    s_mul_i32 s{sT0}, s{sX0}, 9363
    s_lshr_b32 s{sT0}, s{sT0}, 16
    s_mul_i32 s{sT0}, s{sT0}, {114688-7168}
    s_lshl_b32 s{sD2[t]}, s{sX0}, 10
    s_add_u32 s{sD2[t]}, s{sD2[t]}, s{sT0}
    s_add_u32 s{sD2[t]}, s{sD2[t]}, s{sX1}
    s_add_u32 s{sX0}, s{sX0}, 1
    """ for t in range(4)] + [f"s_mov_b32 s{sX1}, 3584", f"Lu2_{N}:"])
    g += [br] + [x.t for x in flat([f"""
    v_mul_lo_u32 v{vU2}, s{sX1}, v{vUT}
    v_add_u32 v{vU2}, v{vU2}, v{vUT+2}
    s_lshl_b32 s{sX1}, s{sX1}, 3
    s_sub_u32 s{sX1}, s{sX1}, 1024
    v_add_u32 v{vU2+1}, s{sX1}, v{vU2}
    v_add_u32 v{vU2+2}, s{sX1}, v{vU2+1}
    v_add_u32 v{vU2+3}, s{sX1}, v{vU2+2}
    v_lshrrev_b32 v{vUT+1}, 4, v0
    v_bfe_u32 v{vUT+2}, v0, 2, 2
    v_lshl_add_u32 v{vUT+1}, v{vUT+1}, 2, v{vUT+2}
    v_bfe_u32 v{vUT+2}, v{vUT+1}, 1, 2
    v_lshlrev_b32 v{vUT+1}, 7, v{vUT+1}
    v_lshl_add_u32 v{vUT+1}, v{vUT+2}, 5, v{vUT+1}
    v_and_b32 v{vUT+2}, 3, v0
    v_lshl_add_u32 v{vUT+1}, v{vUT+2}, 3, v{vUT+1}
    s_lshl_b32 s{sX0}, s{sW}, 13
    s_add_u32 s{sX0}, s{sX0}, 131072
    v_add_u32 v{vUT}, s{sX0}, v{vUT+1}
    v_xor_b32 v{vUT+1}, 32, v{vUT}
    v_xor_b32 v{vUT+2}, 64, v{vUT}
    v_xor_b32 v{vUT+3}, 0x60, v{vUT}
    """])]
    spread(slots, g, bar[21] + 8, bar[22] + 28)
    ud = []
    for vo, sd, so, base in ((vU1, sWO, sS1, 0), (vU2, sU2, sS2, 4096)):
        grp = [f"s_add_u32 m0, s{sX0}, {base}", "s_nop 0"]
        for n in range(4):
            grp.append(VM(f"buffer_load_dwordx4 v{vo+n}, s[{sd}:{sd+3}], s{so} offen offset:{n*1024}{'' if 'ts2' in OPT else NT1} lds", "ud")); ud.append(grp); grp = []
    put2(ud, bar[22] + 35)
    UD = 192
    side_reads = [LG(f"ds_read_b64_tr_b16 {ar(UD + u*16 + t*4 + 2*hh, 2)}, v{vUT+t} offset:{u*4096 + hh*2048}", "ur") for u in range(2) for t in range(4) for hh in range(2)]
    side_stores = [VM(f"buffer_store_dwordx4 {ar(UD+4*t, 4)}, v{vL16}, {WS}, s{sD1} offen offset:{t*1024} sc1", "sst") for t in range(4)] + \
                  [VM(f"buffer_store_dwordx4 {ar(UD+16+4*t, 4)}, v{vL16}, {WS}, s{sD2[t]} offen sc1", "sst") for t in range(4)]
    init = [f"v_accvgpr_write_b32 a{r}, 0" for r in range(128)] + [f"v_mov_b32 v{ONES+r}, 0x3f803f80" for r in range(4)]
    spread(slots, init, B0 + 40, bar[21] - 8)
    init = [x.t for x in flat([f"""
    s_lshl_b32 s{sMAT}, s{sHEAD}, 12
    s_add_u32 s{sMAT}, s{sMAT}, {WS_CTX}
    s_lshl_b32 s{sCT}, s{sUL}, 18
    s_add_u32 s{sCT}, s{sCT}, s{sMAT}
    s_add_u32 s{sCT+1}, s{sCT}, 131072
    s_lshl_b32 s{sCT+2}, s{sUS}, 18
    s_add_u32 s{sCT+2}, s{sCT+2}, s{sMAT}
    s_add_u32 s{sCT+3}, s{sCT+2}, 131072
    v_lshrrev_b32 v{PB+4}, 4, v0
    v_lshlrev_b32 v{PB+4}, 2, v{PB+4}
    v_and_b32 v{PB+5}, 15, v0
    v_sub_u32 v{PB+5}, v{PB+5}, v{PB+4}
    v_cmp_le_i32 s[{sMK}:{sMK+1}], 0, v{PB+5}
    v_cmp_le_i32 s[{sMK+2}:{sMK+3}], 1, v{PB+5}
    v_cmp_le_i32 s[{sMK+4}:{sMK+5}], 2, v{PB+5}
    v_cmp_le_i32 s[{sMK+6}:{sMK+7}], 3, v{PB+5}
    v_mov_b32 v{vKB}, v{vL16}
    v_add_u32 v{vVB}, 65536, v{vL16}
    """])] + [f"v_mov_b32 v{LS+r}, 0" for r in range(2, 16)]
    spread(slots, init, bar[23] + 6, bar[23] + 70)
    o += emit_slots(slots)
    o += st()
    from fatt import attention
    from ftail import tail
    env.update(locals())
    o = resolve_waits(flat(o + attention(env, "prologue")))
    o += attention(env, "main")
    if upto >= 3: o += tail(env, upto)
    return o + finish()
```

```python
import sys
sys.path.insert(0, "gen")
from common import *
from fused import fused
KN = "adaLN_cond__compressed_kv_cla__mixer_channel_mlp__prompt_kernel"
HDR = open("adaLN_cond__compressed_kv_cla__mixer_channel_mlp__prompt.s.ref").read().split("; Override launch")[0]
DOC = '; One persistent launch, 256 workgroups (one per CU: 160 KB LDS, 4 waves x 512 registers), written by a generator script of my own.\n;  A  K/V projection (c_kv held in registers, weights streamed through LDS), silu(c) @ w_mod, first LayerNorm + modulation\n; Softmax guard: the fast path subtracts the row maximum of the first key tile.  After the loop every row sum is checked (finite and\n; below 2^90); if any row of the workgroup fails, the workgroup redoes its attention with the true running maximum (Lfallback_f).\n'
args = sys.argv[1:]
path = [a for a in args if a.endswith(".s")][0]
upto = 9
for a in args:
    if a.startswith("upto="): upto = int(a[5:])
items = fused("f", ts="ts" in args, opt=" ".join(args), upto=upto)
t, n = kernel_text(KN, items, "nops" in args)
line = f"; @launch kernel={KN} grid=(256,1,1) block=(256,1,1) lds=163840\n" if "list" in args else "; @launch grid=(256,1,1) block=(256,1,1) lds=163840\n"
open(path, "w").write(HDR + DOC + line + '.amdgcn_target "amdgcn-amd-amdhsa--gfx950"\n.text\n' + t + '.section .rodata,"a"\n' + descriptor(KN))
print(n, "instructions")
```

```python
import re

class It:
    __slots__ = ("t", "vm", "lg", "wvm", "wlg", "k", "seq")
    def __init__(self, t=None, vm=None, lg=None, wvm=None, wlg=None, k=None, seq=None):
        self.t = t; self.vm = vm; self.lg = lg; self.wvm = wvm; self.wlg = wlg; self.k = k; self.seq = seq
    def __repr__(self): return f"It({self.t},{self.vm},{self.lg},{self.wvm},{self.wlg})"

def I(t): return It(t)
def VM(t, tag="_"): return It(t, vm=tag)
def LG(t, tag="_"): return It(t, lg=tag)
def W(vm=None, lg=None): return It(None, wvm=vm, wlg=lg)
def L(name): return It(name + ":", k="label")
def RESET(): return It(None, k="reset")

def flat(x):
    out = []
    for e in x:
        if isinstance(e, (list, tuple)): out += flat(e)
        elif isinstance(e, str):
            for ln in e.strip().split("\n"):
                ln = ln.strip()
                if ln: out.append(L(ln[:-1]) if ln.endswith(":") else I(ln))
        elif e is not None: out.append(e)
    return out

def resolve_waits(items, pre_vm=(), pre_lg=()):
    vm = list(pre_vm); lg = list(pre_lg); vdone = 0; ldone = 0
    out = []
    for it in items:
        if it.k == "reset":
            vm = []; lg = []; vdone = 0; ldone = 0
            continue
        if it.t is None:
            parts = []
            for tags, lst, done, mx, nm in ((it.wvm, vm, vdone, 63, "vmcnt"), (it.wlg, lg, ldone, 15, "lgkmcnt")):
                if tags is None: continue
                if isinstance(tags, str) and tags.startswith("*") and len(tags) > 1:
                    parts.append(f"{nm}({tags[1:]})"); continue
                if tags == "*": idx = len(lst) - 1
                else:
                    if isinstance(tags, (str, tuple)): tags = [tags]
                    idx = -1
                    for tg in tags:
                        pos = [i for i, x in enumerate(lst) if x == tg]
                        assert pos, f"wait for unknown tag {tg}"
                        idx = max(idx, pos[-1])
                if idx + 1 <= done: continue
                n = min(len(lst) - 1 - idx, mx)
                parts.append(f"{nm}({n})")
                if nm == "vmcnt": vdone = len(lst) - n
                else: ldone = len(lst) - n
            if parts: out.append(I("s_waitcnt " + " ".join(parts)))
            continue
        if it.vm is not None: vm.append(it.vm)
        if it.lg is not None: lg.append(it.lg)
        m = re.match(r"s_waitcnt (.*)", it.t)
        if m and it.k != "cond":
            for nm, n in re.findall(r"(vmcnt|lgkmcnt)\((\d+)\)", m.group(1)):
                n = int(n)
                if nm == "vmcnt": vdone = max(vdone, len(vm) - n)
                else: ldone = max(ldone, len(lg) - n)
        out.append(it)
    return out

_reg = re.compile(r"(?<![\w.])(-|\|)?([vas])(?:(\d+)\b|\[(\d+)(?::(\d+))?\])")
def regs_of(op):
    s = set()
    for m in _reg.finditer(op):
        f = m.group(2)
        if m.group(3) is not None: s.add((f, int(m.group(3))))
        else:
            a = int(m.group(4)); b = int(m.group(5)) if m.group(5) else a
            s.update((f, i) for i in range(a, b + 1))
    if re.search(r"\bvcc\b", op): s.update({("s", "vcc")})
    if re.search(r"\bexec\b", op): s.add(("s", "exec"))
    if re.search(r"\bm0\b", op): s.add(("s", "m0"))
    return s

TRANS = ("v_exp_", "v_log_", "v_rcp_", "v_rsq_", "v_sqrt_", "v_sin_", "v_cos_")
class Dec:
    pass
def decode(t):
    d = Dec()
    t0 = t.split(";")[0].strip()
    sp = t0.split(None, 1)
    mn = sp[0]; rest = sp[1] if len(sp) > 1 else ""
    ops = [o.strip() for o in re.split(r",(?![^\[]*\])", rest)] if rest else []
    d.mn = mn; d.w = set(); d.r = set(); d.c = set(); d.ab = set()
    d.mfma = mn.startswith("v_mfma"); d.valu = mn.startswith("v_") and not d.mfma
    d.vmem = mn.startswith(("buffer_", "global_")); d.ds = mn.startswith("ds_"); d.salu = mn.startswith("s_")
    d.trans = mn.startswith(TRANS); d.dpp = ("_dpp" in mn) or ("row_" in rest) or ("quad_perm" in rest)
    d.perm = mn.startswith("v_permlane"); d.lds_dma = d.vmem and re.search(r"\blds\b", rest) is not None
    d.ws = 1; d.passes = 0; d.widestore = False; d.sdata = set()
    if mn == "s_nop": d.ws = int(ops[0]) + 1; return d
    if d.mfma:
        d.passes = 4 if "16x16" in mn else 8
        d.w = regs_of(ops[0]); d.ab = regs_of(ops[1]) | regs_of(ops[2]); d.c = regs_of(ops[3]); d.r = d.ab | d.c
    elif d.valu:
        if d.perm: d.w = regs_of(ops[0]) | regs_of(ops[1]); d.r = set(d.w)
        else:
            d.w = regs_of(ops[0]); srcs = ops[1:]
            if mn.startswith(("v_add_co", "v_sub_co", "v_addc_co", "v_subb_co")):
                d.w |= regs_of(ops[1]); srcs = ops[2:]
            for o in srcs: d.r |= regs_of(o)
            if mn.startswith(("v_fmac", "v_writelane", "v_pk_fmac")) or d.dpp: d.r |= regs_of(ops[0])
            if mn.startswith("v_cmpx"): d.w.add(("s", "exec"))
    elif d.vmem:
        if mn in ("buffer_inv", "buffer_wbl2"): return d
        if "_load" in mn and not d.lds_dma:
            d.w = regs_of(ops[0])
            for o in ops[1:]: d.r |= regs_of(o)
        else:
            for o in ops: d.r |= regs_of(o)
            if "_store" in mn or "_atomic" in mn:
                d.sdata = regs_of(ops[0])
                d.widestore = ("x3" in mn or "x4" in mn)
                if "_atomic" in mn and "sc0" in rest: d.w = regs_of(ops[0])
        if d.lds_dma: d.r.add(("s", "m0"))
    elif d.ds:
        if mn.startswith(("ds_read", "ds_bpermute", "ds_permute", "ds_swizzle")):
            d.w = regs_of(ops[0])
            for o in ops[1:]: d.r |= regs_of(o)
        else:
            for o in ops: d.r |= regs_of(o)
    elif d.salu:
        if mn.startswith(("s_cmp", "s_cbranch", "s_branch", "s_waitcnt", "s_barrier", "s_endpgm", "s_setprio", "s_sleep", "s_bitcmp")):
            for o in ops: d.r |= regs_of(o)
            if "vcc" in mn: d.r.add(("s", "vcc"))
        else:
            if ops: d.w = regs_of(ops[0])
            for o in ops[1:]: d.r |= regs_of(o)
            if "saveexec" in mn: d.w.add(("s", "exec"))
        if mn.startswith(("s_cselect", "s_addc", "s_subb", "s_cbranch_scc", "s_cmov")): d.r.add(("c", "scc"))
        if mn.startswith(("s_cmp", "s_bitcmp", "s_add", "s_sub", "s_and", "s_or", "s_xor", "s_lshl", "s_lshr", "s_ashr", "s_bfe", "s_min", "s_max", "s_not")): d.w.add(("c", "scc"))
    return d
def scc_groups(items):
    out = []
    for it in flat(items):
        if it.t is not None and it.k != "label" and ("c", "scc") in decode(it.t).r:
            k = len(out) - 1
            while not any(x.t is not None and ("c", "scc") in decode(x.t).w for x in out[k]): k -= 1
            out[k:] = [sum(out[k:], []) + [it]]
        else: out.append([it])
    return out

def need(p, c):
    n = 0
    vw = {r for r in p.w if r[0] in "va"}; sw = {r for r in p.w if r[0] == "s"}
    if p.mfma:
        big = {4: 8, 8: 12}[p.passes]
        if c.mfma:
            if vw & c.ab: n = max(n, big)
            if vw & c.c and not (vw == c.c and p.passes == c.passes): n = max(n, big - 2)
            if vw & c.w and not (vw == c.c and p.passes == c.passes) and not (vw & c.c): n = max(n, big - 2)
        elif c.valu or c.vmem or c.ds:
            if vw & (c.r | c.w): n = max(n, big)
        if c.valu and (p.c & c.w): n = max(n, {4: 3, 8: 7}[p.passes])
    if p.valu:
        if c.mfma and vw & c.r: n = max(n, 2)
        if p.trans and c.valu and vw & c.r: n = max(n, 1)
        if c.perm and vw & c.r: n = max(n, 2)
        if c.valu and c.dpp and vw & c.r: n = max(n, 2)
        if c.mn.startswith(("v_readfirstlane", "v_readlane")) and vw & c.r: n = max(n, 1)
        if sw:
            if c.vmem and sw & c.r: n = max(n, 5)
            if c.valu and sw & c.r: n = max(n, 4 if c.mn.startswith(("v_readlane", "v_writelane")) else 2)
            if c.salu and sw & c.r: n = max(n, 1)
            if ("s", "exec") in sw and (c.mfma or c.perm or c.mn.startswith(("v_readfirstlane", "v_readlane"))): n = max(n, 4)
            if ("s", "exec") in sw and c.dpp: n = max(n, 5)
    if p.salu and ("s", "m0") in p.w and c.lds_dma: n = max(n, 1)
    if p.widestore and (p.sdata & c.w): n = max(n, 2)
    return n

MAXWS = 12
def fix_hazards(items, stats=None):
    out = []; hist = []
    for it in items:
        if it.k == "label" or it.t.startswith("."):
            out.append(it); continue
        d = decode(it.t)
        dist = 0; pad = 0
        for p in reversed(hist):
            if dist >= MAXWS: break
            nd = need(p, d)
            if nd > dist: pad = max(pad, nd - dist)
            dist += p.ws
        if pad:
            out.append(I(f"s_nop {pad-1}")); hist.append(decode(f"s_nop {pad-1}"))
            if stats is not None: stats.append((pad, it.t))
        out.append(it); hist.append(d)
        if len(hist) > 40: hist = hist[-20:]
    return out

def check_branches(items):
    ins = []; lab = {}
    for it in items:
        if it.k == "label": lab[it.t[:-1]] = len(ins)
        elif not it.t.startswith("."): ins.append(it.t)
    dec = [decode(t) for t in ins]
    errs = []
    for i, t in enumerate(ins):
        m = re.match(r"s_c?branch\w*\s+(\S+)", t)
        if not m or m.group(1) not in lab: continue
        j0 = lab[m.group(1)]
        d0 = 0
        for j in range(j0, min(j0 + MAXWS, len(ins))):
            dist = d0
            for k in range(i, max(i - MAXWS, -1), -1):
                if dist >= MAXWS: break
                if need(dec[k], dec[j]) > dist: errs.append((ins[k], t, ins[j]))
                dist += dec[k].ws
            d0 += dec[j].ws
            if d0 >= MAXWS or ins[j].startswith(("s_branch", "s_endpgm")): break
    return errs

_seq = [0]
def SEQ(groups):
    _seq[0] += 1; out = []
    for g in groups:
        g = flat(g if isinstance(g, (list, tuple)) else [g])
        for it in g: it.seq = _seq[0]
        out.append(g)
    return out
def check_seq(items):
    lastw = {}; seqw = {}
    for it in items:
        if it.t is None or it.k == "label" or it.t.startswith("."): continue
        d = decode(it.t)
        if it.seq is not None:
            for r in d.r:
                if r in seqw.get(it.seq, ()) and lastw[r] != it.seq:
                    raise AssertionError(f"{r} clobbered inside sequence before: {it.t}")
        for r in d.w:
            lastw[r] = it.seq
            if it.seq is not None: seqw.setdefault(it.seq, set()).add(r)

def interleave(slots, bg, start=0, end=None):
    n = len(slots); end = n if end is None else end
    m = end - start; k = 0
    for i in range(start, end):
        tgt = ((i - start + 1) * len(bg) + m - 1) // m if bg else 0
        while k < min(tgt, len(bg)):
            slots[i].append(bg[k]); k += 1
    return slots

def vr(b, n=1, f="v"):
    return f"{f}{b}" if n == 1 else f"{f}[{b}:{b+n-1}]"
def ar(b, n=1): return vr(b, n, "a")
def sr(b, n=1): return vr(b, n, "s")

def srd(d, base, nbytes, off=0):
    o = []
    if off:
        o += [f"s_add_u32 s{d}, s{base}, {off:#x}", f"s_addc_u32 s{d+1}, s{base+1}, 0"]
    else:
        o += [f"s_mov_b32 s{d}, s{base}", f"s_mov_b32 s{d+1}, s{base+1}"]
    o += [f"s_mov_b32 s{d+2}, {nbytes:#x}", f"s_mov_b32 s{d+3}, 0x20000"]
    return o

def kernel_text(name, items, show_nops=False):
    items = resolve_waits(flat(items))
    check_seq(items)
    st = []
    items = fix_hazards(items, st)
    errs = check_branches(items)
    assert not errs, errs
    if show_nops:
        for p, t in st: print(f"  [{name}] nop {p} before {t}")
    body = "\n".join(("" if it.k == "label" else "  ") + it.t for it in items)
    n = sum(1 for it in items if it.k != "label")
    return f".globl {name}\n.p2align 8\n.type {name},@function\n{name}:\n{body}\n", n

def descriptor(name, vgpr=512, accum=256, sgpr=102):
    return f""".p2align 6
.amdhsa_kernel {name}
  .amdhsa_next_free_vgpr {vgpr}
  .amdhsa_next_free_sgpr {sgpr}
  .amdhsa_accum_offset {accum}
  .amdhsa_group_segment_fixed_size 0
  .amdhsa_kernarg_size 128
  .amdhsa_user_sgpr_count 2
  .amdhsa_user_sgpr_kernarg_segment_ptr 1
  .amdhsa_system_sgpr_workgroup_id_x 1
.end_amdhsa_kernel
"""
```

```python
from common import *
from flay import *

def attention(env, part):
    g_ = env
    (N, ts, st, sW, sK, sMK, sCT, sT0, sT1, sKO, sCNT, sODW, sUS, sUL, sFL, vL16, vKB, vVB, ONES, LS, PB, CB, TMP,
     aK, aV, acc, kv_dma, WS, upto) = [g_[k] for k in
     "N ts st sW sK sMK sCT sT0 sT1 sKO sCNT sODW sUS sUL sFL vL16 vKB vVB ONES LS PB CB TMP aK aV acc kv_dma WS upto".split()]
    FLAG = 131072; NINF = "0xff800000"; sG = 20
    def Q(qi, s4): return vr(acc(2*s4, qi), 4)
    def S(buf, qi, kt): return acc(2*(buf*2+kt)+1, qi)
    def Pq(buf, qi): return PB + (buf*4+qi)*4
    def C(qi, kt): return CB + (qi*2+kt)*4
    def O(t, qi): return ar((t*4+qi)*4, 4)
    def Kf(kt, ds): return ar(aK + (kt*4+ds)*4, 4)
    def Vf(t): return ar(aV + t*4, 4)
    GQ = {0: (0, 1), 1: (2, 3)}
    def mask(g):
        r = []
        for e in range(4):
            for qt in range(2):
                c = C(GQ[g][qt], qt) + e
                r.append(f"v_cndmask_b32 v{c}, v{TMP+31}, v{c}, s[{sMK[e]}:{sMK[e]+1}]")
            r.append(f"v_mov_b32 v{C(GQ[g][0], 1)+e}, v{TMP+31}")
        return r
    def k_reads(off): return [LG(f"ds_read_b128 {Kf(kt, ds)}, v{vKB} offset:{off + (kt*4+ds)*1024}", ("k", kt*4+ds)) for kt in range(2) for ds in range(4)]
    def v_reads(off): return [LG(f"ds_read_b128 {Vf(t)}, v{vVB} offset:{16384 + off + t*1024}", ("v", t)) for t in range(8)]
    def qk(buf, groups):
        r = []
        for kt in range(2):
            for g in groups:
                for qi in GQ[g]:
                    for ds in range(4):
                        d = vr(S(buf, qi, kt), 4)
                        r.append((I(f"v_mfma_f32_16x16x32_bf16 {d}, {Kf(kt, ds)}, {Q(qi, ds)}, {vr(C(qi, kt), 4) if ds == 0 else d}"), kt*4+ds))
        return r
    def pv(buf, groups):
        r = []
        for t in range(8):
            for g in groups:
                for qi in GQ[g]:
                    r.append((I(f"v_mfma_f32_16x16x32_bf16 {O(t, qi)}, {Vf(t)}, {vr(Pq(buf, qi), 4)}, {O(t, qi)}"), t))
        for g in groups:
            for qi in GQ[g]:
                r.append((I(f"v_mfma_f32_16x16x32_bf16 {vr(LS+4*qi, 4)}, {vr(ONES, 4)}, {vr(Pq(buf, qi), 4)}, {vr(LS+4*qi, 4)}"), None))
        return r
    def softmax(buf, groups):
        ex = []; cv = []
        for g in groups:
            for qi in GQ[g]:
                for kt in range(2):
                    s0 = S(buf, qi, kt)
                    for h in range(2):
                        ex += [f"v_exp_f32 v{s0+2*h}, v{s0+2*h}", f"v_exp_f32 v{s0+2*h+1}, v{s0+2*h+1}"]
                        cv += [f"v_cvt_pk_bf16_f32 v{Pq(buf, qi)+2*kt+h}, v{s0+2*h}, v{s0+2*h+1}"]
        return ex, cv
    if part == "prologue":
        o = env["vcheck"] + [W(vm=[("K", 0)]), "s_barrier", k_reads(0), kv_dma("V", ("V", 0), 0)]
        o += [f"v_mov_b32 v{CB+r}, 0" for r in range(32)] + [f"v_mov_b32 v{LS+r}, 0" for r in range(2)]
        dm = sum((kv_dma(wh, (wh, p), p) for wh, p in (("K", 2), ("V", 1), ("K", 3), ("V", 2))), [])
        for s4 in range(4):
            for qi in range(4):
                qa, qb = acc(2*s4, qi), acc(2*s4+1, qi)
                o += [f"v_cvt_pk_bf16_f32 v{qa}, v{qa}, v{qa+1}", f"v_cvt_pk_bf16_f32 v{qa+1}, v{qa+2}, v{qa+3}",
                      f"v_cvt_pk_bf16_f32 v{qa+2}, v{qb}, v{qb+1}", f"v_cvt_pk_bf16_f32 v{qa+3}, v{qb+2}, v{qb+3}"]
        o += [f"v_mov_b32 v{TMP+31}, {NINF}", f"s_cmp_lg_u32 s{sUS}, 0", f"s_cbranch_scc1 Lp0_{N}", mask(1), f"Lp0_{N}:", "s_nop 1"]
        q0 = [Slot(m) for m, _ in qk(0, (0, 1))]
        for k in range(8): q0[4*k + 1].mem.append(dm[k])
        o += [W(lg=[("k", 7)])] + emit_slots(q0)
        o += [k_reads(8192), "s_nop 3", f"s_cmp_lg_u32 s{sUS}, 1", f"s_cbranch_scc1 Lp1_{N}", mask(1), f"Lp1_{N}:", "s_nop 1"]
        q1 = [Slot(m) for m, _ in qk(1, (0, 1))]
        q1[0].pre.append(W(lg=[("k", 7)]))
        mx = []
        for qi in range(4):
            a, b, t = S(0, qi, 0), S(0, qi, 1), TMP + qi
            mx += [f"v_max3_f32 v{t}, v{a}, v{a+1}, v{a+2}", f"v_max3_f32 v{t}, v{t}, v{a+3}, v{b}",
                   f"v_max3_f32 v{t}, v{t}, v{b+1}, v{b+2}", f"v_max_f32 v{t}, v{t}, v{b+3}"]
        for sw in ("v_permlane16_swap_b32", "v_permlane32_swap_b32"):
            mx += [f"v_mov_b32 v{TMP+4+qi}, v{TMP+qi}" for qi in range(4)]
            mx += [f"{sw} v{TMP+qi}, v{TMP+4+qi}" for qi in range(4)]
            mx += [f"v_max_f32 v{TMP+qi}, v{TMP+qi}, v{TMP+4+qi}" for qi in range(4)]
        spread(q1, mx, 2, 32)
        for k in range(8): q1[4*k + 1].mem.append(dm[8 + k])
        o += emit_slots(q1)
        o += [W(vm=[("K", 1), ("V", 0)]), "s_barrier", f"v_add_u32 v{vKB}, 32768, v{vL16}", k_reads(0)]
        for qi in range(4):
            for kt in range(2): o += [f"v_sub_f32 v{S(0, qi, kt)+e}, v{S(0, qi, kt)+e}, v{TMP+qi}" for e in range(4)]
        ex, cv = softmax(0, (0, 1))
        for k in range(len(cv)): o += ex[2*k:2*k+2] + ([cv[k-1]] if k else [])
        o += [cv[-1]]
        for qi in range(4):
            for kt in range(2):
                o += [f"v_sub_f32 v{C(qi, kt)+e}, v{C(qi, kt)+e}, v{TMP+qi}" for e in range(4)]
                o += [f"v_sub_f32 v{S(1, qi, kt)+e}, v{S(1, qi, kt)+e}, v{TMP+qi}" for e in range(4)]
        return o + st()
    MODES = {"D": ((0, 1), (0, 1), (0, 1)), "T1": ((0,), (0, 1), (0, 1)), "T2": ((0,), (0,), (0, 1)),
             "S": ((0,), (0,), (0,)), "F1": ((), (0,), (0,)), "F2": ((), (), (0,))}
    def iteration(mode, par, last=False, tail=(), xlds=(), xvm=(), xseq=False):
        gq, gs, gp = MODES[mode]
        m1 = qk(par, gq); m2 = pv(par, gp)
        sl = [Slot(m) for m, _ in m1 + m2]; n1 = len(m1); n2 = len(m2); n = n1 + n2
        ex, cv = softmax(1 - par, gs)
        free = [8]*n; pre = []
        epos = [min(n - 2, 1 + (k*(n - 1))//len(ex)) for k in range(len(ex))] if ex else []
        for k, x in enumerate(ex): sl[epos[k]].alu.append(I(x)); free[epos[k]] -= 8
        def place(x, lo, hi=None, mem=False, after=None):
            hi = n - 1 if hi is None else min(hi, n - 1); lo = min(lo, hi)
            c = [i for i in range(lo, hi + 1) if free[i] >= 4]
            i = c[0] if c else max(range(lo, hi + 1), key=lambda k: (free[k], -k))
            (sl[i].mem if mem else sl[i].alu).append(x); free[i] -= 4
            return i
        first = lambda ms, f: next(i for i, (_, g) in enumerate(ms) if g == f)
        for k, x in enumerate(cv): place(I(x), epos[2*k+1] + 1)
        vrd = v_reads(par*8192)
        if n1:
            i = 0
            for k, r in enumerate(vrd): i = place(r, max(i, k*(n1*5//8)//8), n1 - 2, mem=True)
            place(W(lg=[("k", 7)]), max(0, first(m1, 4) - 3), first(m1, 4) - 1)
            place(W(lg=[("v", 3)]), n1 - 3, n1 - 1)
        else: pre += vrd + [W(lg=[("v", 3)])]
        wv = n1 + first(m2, 4) - 1
        if last: place(W(lg=[("v", 7)]), wv - 2, wv)
        else:
            if par == 0:
                place(W(lg=[("v", 7)]), wv - 2, wv); b = n1; krd = k_reads(8192)
            else:
                b = n1 + max(1, n2//9)
                while free[b] < 8 and b < wv: b += 1
                sl[b].alu += flat([W(lg=[("v", 7)], vm="*16"), "s_barrier"]); free[b] -= 8
                i = b
                for x in (f"v_mov_b32 v{vVB}, v{vKB}", f"v_add_u32 v{vKB}, 0x8000, v{vKB}", f"v_and_b32 v{vKB}, 0x1ffff, v{vKB}"):
                    i = place(I(x), max(n1 - 1, b - 4) if i == b else i, b - 1) if n1 else (pre.append(I(x)) or 0)
                b += 1; krd = k_reads(0)
            i = b
            for k, r in enumerate(krd): i = place(r, max(i, b + k*((n - b)*5//8)//8), n - 2, mem=True)
            dm = kv_dma("K" if par == 0 else "V", "d")
            hi = (n//3 if xseq else n - 2) if par == 0 else b - 2
            i = 2
            for k, x in enumerate(xlds): i = place(x, max(i, 2 + k*(n - 8)//len(xlds)), n - 4, mem=True)
            if hi < 8: pre += dm
            else:
                i = place(dm[0], 0, hi)
                for k, g in enumerate(dm[1:5]): i = place(g, max(i + 1, 2 + k*(hi - 2)//4), hi, mem=True)
                i = place(dm[5], i, hi)
            lo = i + 1 if xseq else 1
            for k, g in enumerate(xvm):
                i = place(flat(g), max(lo + k*(n - 2 - lo)//len(xvm), i + 1 if k else 0), n - 2, mem=True)
                free[i] -= 4*(len(flat(g)) - 1)
            place(W(lg=[("k", 3)]), n - 1)
        for x in tail: place(I(x), n - 3)
        env.setdefault("over", []).append((mode, par, n, sum(-f for f in free if f < 0), sum(f for f in free if f > 0)))
        return pre + emit_slots(sl)
    def epilogue(g, tsets, psets, rc):
        r = [f"v_rcp_f32 v{rc+k}, v{LS+4*qi}" for k, qi in enumerate(GQ[g])]
        n = 0
        for k, qi in enumerate(GQ[g]):
            for s4 in range(4):
                t = tsets[n % len(tsets)]; p = psets[n % len(psets)]; n += 1
                for h in range(2): r += [f"v_accvgpr_read_b32 v{t+4*h+e}, a{((2*s4+h)*4+qi)*4+e}" for e in range(4)]
                r += [f"v_pk_mul_f32 {vr(t+2*e, 2)}, {vr(t+2*e, 2)}, {vr(rc, 2)} op_sel:[0,{k}] op_sel_hi:[1,{k}]" for e in range(4)]
                r += [f"v_cvt_pk_bf16_f32 v{p+e}, v{t+2*e}, v{t+2*e+1}" for e in range(4)]
                r += [VM(f"buffer_store_dwordx4 {vr(p, 4)}, v{vL16}, {WS}, s{sCT+qi} offen offset:{s4*1024} sc1", "ctx")]
        return r
    epi_short = lambda: epilogue(1, [CB+16], [PB+8, PB+12], CB+28)
    epi_long = lambda: epilogue(0, [TMP], [TMP+8, TMP+12], TMP+24) + ([] if "epiend" not in env["opt"] else epi_short())
    def code_touch(a, b):
        env["npc"] = env.get("npc", 0) + 1; l = f"Lpc{env['npc']}_{N}"
        return ["s_getpc_b64 s[40:41]", f"{l}:", f"s_add_u32 s40, s40, {a}-{l}", "s_addc_u32 s41, s41, 0", f"s_mov_b32 s42, {b}-{a}", "s_mov_b32 s43, 0x20000",
                f"s_lshl_b32 s{sT0}, s{sW}, 13", f"v_lshlrev_b32 v{TMP+10}, 7, v0", VM(f"buffer_load_dword v{TMP+11}, v{TMP+10}, s[40:43], s{sT0} offen", "code")]
    KT = [("k", i) for i in range(8)]
    def region(items): return resolve_waits(flat(items), pre_lg=KT)
    def side_period(rnd):
        st_ = env["side_stores"](rnd); st_[0] = [W(lg="ur")] + st_[0]
        return region([iteration("D", 0, xlds=env["side_reads"]()), iteration("D", 1, xvm=st_)])
    def loop(mode, lbl, cuts=False):
        r = flat([f"{lbl}_go:", f"s_sub_u32 s{sCNT}, s{sCNT}, 1", f"s_cbranch_scc1 {lbl}_done", ".p2align 6", f"{lbl}:"])
        r += region([iteration(mode, 0), iteration(mode, 1, tail=[f"s_sub_u32 s{sCNT}, s{sCNT}, 1"])]) + flat([f"s_cbranch_scc0 {lbl}"])
        if cuts:
            r += flat(["s_sub_u32 s1, s1, 1", f"s_cbranch_scc1 {lbl}_done", "s_cmp_eq_u32 s1, 0", f"s_cbranch_scc1 {lbl}_pub"]) + side_period(1)
            r += flat([f"s_mov_b32 s{sCNT}, 2", f"s_branch {lbl}_go", f"{lbl}_pub:",
                       f"s_lshl_b32 s{sFL}, s2, 2", f"s_add_u32 s{sFL}, s{sFL}, {WS_FLAG + env['SF']}", f"s_cmp_eq_u32 s{sW}, 0",
                       f"s_cselect_b32 s{sFL}, s{sFL}, {OOB:#x}", [x if isinstance(x, str) else x.t for x in env["publish"](TMP+8, sFL)],
                       f"s_mov_b32 s{sCNT}, s0", f"s_branch {lbl}_go"])
        return r + flat([f"{lbl}_done:"])
    o = flat([f"""
    s_waitcnt lgkmcnt(4)
    s_and_b32 s{sODW}, s{sW}, 1
    s_sub_u32 s{sCNT}, s{sUS}, 1
    s_ashr_i32 s{sCNT}, s{sCNT}, 1
    s_sub_u32 s{sCNT}, s{sCNT}, s{sODW}
    s_max_i32 s{sCNT}, s{sCNT}, 0
    s_mov_b32 s1, 0
    s_cmp_lt_u32 s2, 128
    s_cbranch_scc1 Ldd_{N}_go
    s_mov_b32 s1, 2
    s_sub_u32 s0, s{sCNT}, 7
    s_mov_b32 s{sCNT}, 2
    """]) + side_period(0) + region([iteration("D", 0, xvm=env["side_dma"](1), xseq=True), iteration("D", 1)]) + loop("D", f"Ldd_{N}", True)
    o += flat([f"s_bitcmp1_b32 s{sW}, 0", f"s_cbranch_scc1 Lodd1_{N}", f"s_cmp_eq_u32 s{sUS}, 0", f"s_cbranch_scc1 Lt2s_{N}", mask(1), "s_nop 1"])
    o += region([iteration("D", 0), iteration("T1", 1)])
    o += flat([f"Lt2s_{N}:"]) + region([iteration("T2", 0), iteration("S", 1)])
    o += flat([f"s_branch Lss_entry_{N}", f"Lodd1_{N}:", f"s_cmp_eq_u32 s{sUS}, 1", f"s_cbranch_scc1 Lt12_{N}"])
    o += region([iteration("D", 0), mask(1), "s_nop 0", iteration("D", 1)])
    o += flat([f"Lt12_{N}:"]) + region([iteration("T1", 0), iteration("T2", 1)])
    o += flat([f"Lss_entry_{N}:"] + (["s_nop 7"] + epi_short() if "epiend" not in env["opt"] else []) + [f"""
    s_sub_u32 s{sCNT}, s{sUL}, s{sUS}
    s_lshr_b32 s{sCNT}, s{sCNT}, 1
    s_sub_u32 s{sCNT}, s{sCNT}, 2
    """]) + loop("S", f"Lss_{N}")
    sld = f"buffer_load_dwordx2 {vr(TMP+8, 2)}, v{TMP+10}, {WS}, s{sFL} offen sc1"
    o += flat([f"v_lshlrev_b32 v{TMP+10}, 3, v0", f"s_mov_b32 s{sFL}, {WS_FLAG + env['SF'] + 512}", sld])
    o += flat([f"s_bitcmp1_b32 s{sW}, 0", f"s_cbranch_scc1 Lodd2_{N}", mask(0), "s_nop 1"])
    o += region([iteration("S", 0), iteration("F1", 1)]) + region([iteration("F2", 0, last=True)])
    o += flat([f"s_branch Lfin_{N}", f"Lodd2_{N}:"]) + region([iteration("S", 0), mask(0), "s_nop 0", iteration("S", 1)])
    o += region([iteration("F1", 0, last=True), iteration("F2", 1, last=True)])
    if "over" in env["opt"].split(): print(env["over"])
    o += flat([f"Lfin_{N}:", f"s_cmp_ge_u32 s{sW}, 2", f"s_cbranch_scc1 Lepi_{N}", "s_waitcnt vmcnt(0)", "s_barrier", f"Lepi_{N}:"]) + flat(st())
    o += resolve_waits([VM("s_nop 0", "p5")] + env["check"](sld, [f"v_and_b32 v{TMP+8}, v{TMP+8}, v{TMP+9}", f"v_cmp_ne_u32 vcc, 1, v{TMP+8}"], sCNT, "p5", every=True))
    o += flat([f"s_mov_b32 s{sT0}, {fbits(2.0**90)}", f"s_mov_b64 s[{sG}:{sG+1}], 0", "s_nop 5"])
    for qi in range(4): o += flat([f"v_cmp_ngt_f32 vcc, s{sT0}, v{LS+4*qi}", f"s_or_b64 s[{sG}:{sG+1}], s[{sG}:{sG+1}], vcc"])
    o += flat([f"""
    s_cmp_lg_u64 s[{sG}:{sG+1}], 0
    s_cselect_b32 s{sFL}, 1, 0
    v_mov_b32 v{TMP}, s{sFL}
    s_lshl_b32 s{sT0}, s{sW}, 2
    s_add_u32 s{sT0}, s{sT0}, {FLAG}
    v_mov_b32 v{TMP+1}, s{sT0}
    ds_write_b32 v{TMP+1}, v{TMP}
    """])
    sWB, sCTL = 82, 80
    CTL = f"s_lshr_b32 s{sCTL}, s2, 5" if env["XL"] else f"s_and_b32 s{sCTL}, s2, 1\ns_lshl_b32 s{sCTL}, s{sCTL}, 2\ns_bfe_u32 s{sT0}, s2, 0x20003\ns_add_u32 s{sCTL}, s{sCTL}, s{sT0}"
    def first_w(): return sum(([VM(f"buffer_load_dwordx4 {ar(128 + 16*i + 4*t, 4)}, v{vL16}, {WS}, s{sWB} offen offset:{t*1024} sc1") for t in range(4)] +
                               [f"s_add_u32 s{sWB}, s{sWB}, 4096"] for i in range(8)), [])
    o += resolve_waits(flat([f"""
    {CTL}
    s_lshl_b32 s{sWB}, s{sCTL}, 19
    s_lshl_b32 s{sT0}, s{sW}, 17
    s_add_u32 s{sWB}, s{sWB}, s{sT0}
    s_add_u32 s{sWB}, s{sWB}, {WS_WOF}
    """, epi_long(), st("T"), first_w() if upto >= 3 else [], W(vm="ctx")]))
    o += flat([f"""
    v_mov_b32 v{TMP+1}, {FLAG}
    s_waitcnt lgkmcnt(0)
    s_barrier
    ds_read_b128 v[{TMP+4}:{TMP+7}], v{TMP+1}
    s_waitcnt lgkmcnt(0)
    v_or3_b32 v{TMP}, v{TMP+4}, v{TMP+5}, v{TMP+6}
    v_or_b32 v{TMP}, v{TMP}, v{TMP+7}
    v_readfirstlane_b32 s{sFL}, v{TMP}
    s_cmp_lg_u32 s{sFL}, 0
    s_cbranch_scc1 Lfallback_{N}
    Lnorm_{N}:
    """]) + flat(st("T"))
    MR = TMP + 16
    fb = [f"Lfallback_{N}:", "s_waitcnt vmcnt(0)"] + [f"v_accvgpr_write_b32 a{r}, 0" for r in range(128)] + [f"v_mov_b32 v{LS+r}, 0" for r in range(16)]
    fb += [f"v_mov_b32 v{MR+qi}, {NINF}" for qi in range(4)]
    fb += [f"s_mov_b32 s{sCNT}, 0", f"s_lshr_b32 s{sODW}, s{sK+2}, 14", f"v_mov_b32 v{vKB}, v{vL16}", f"v_mov_b32 v{vVB}, v{vL16}", f"Lfb_{N}:", "s_barrier",
           f"s_lshr_b32 s{sKO}, s{sCNT}, 1", f"s_lshl_b32 s{sKO}, s{sKO}, 15", f"s_and_b32 s{sT0}, s{sCNT}, 1", f"s_lshl_b32 s{sT0}, s{sT0}, 13",
           f"s_add_u32 s{sKO}, s{sKO}, s{sT0}", f"s_lshl_b32 s{sT0}, s{sW}, 11", f"s_add_u32 s{sKO}, s{sKO}, s{sT0}", f"s_mov_b32 m0, s{sT0}", f"s_add_u32 s{sT0}, s{sT0}, 16384",
           f"buffer_load_dwordx4 v{vL16}, s[{sK}:{sK+3}], s{sKO} offen sc1 lds", f"buffer_load_dwordx4 v{vL16}, s[{sK}:{sK+3}], s{sKO} offen offset:1024 sc1 lds",
           f"s_mov_b32 m0, s{sT0}", f"s_add_u32 s{sKO}, s{sKO}, 16384",
           f"buffer_load_dwordx4 v{vL16}, s[{sK}:{sK+3}], s{sKO} offen sc1 lds", f"buffer_load_dwordx4 v{vL16}, s[{sK}:{sK+3}], s{sKO} offen offset:1024 sc1 lds",
           "s_waitcnt vmcnt(0)", "s_barrier"]
    fb += [x.t for x in k_reads(0) + v_reads(0)] + ["s_waitcnt lgkmcnt(0)"]
    for g, su in ((0, sUL), (1, sUS)):
        fb += [f"s_cmp_gt_u32 s{sCNT}, s{su}", f"s_cbranch_scc1 Lfbs{g}_{N}"]
        fb += [f"v_mov_b32 v{C(qi, kt)+e}, 0" for qi in GQ[g] for kt in range(2) for e in range(4)]
        fb += [f"s_cmp_lg_u32 s{sCNT}, s{su}", f"s_cbranch_scc1 Lfbm{g}_{N}", mask(g), f"Lfbm{g}_{N}:", "s_nop 1"]
        fb += [m for m, _ in qk(0, (g,))] + ["s_nop 7"]
        for qi in GQ[g]:
            a, b, t = S(0, qi, 0), S(0, qi, 1), TMP
            fb += [f"v_max3_f32 v{t}, v{a}, v{a+1}, v{a+2}", f"v_max3_f32 v{t}, v{t}, v{a+3}, v{b}",
                   f"v_max3_f32 v{t}, v{t}, v{b+1}, v{b+2}", f"v_max3_f32 v{t}, v{t}, v{b+3}, v{MR+qi}"]
            for sw in ("v_permlane16_swap_b32", "v_permlane32_swap_b32"):
                fb += [f"v_mov_b32 v{t+1}, v{t}", f"{sw} v{t}, v{t+1}", f"v_max_f32 v{t}, v{t}, v{t+1}"]
            fb += [f"v_sub_f32 v{t+1}, v{MR+qi}, v{t}", f"v_exp_f32 v{t+1}, v{t+1}", f"v_mov_b32 v{MR+qi}, v{t}"]
            fb += [f"v_sub_f32 v{S(0, qi, kt)+e}, v{S(0, qi, kt)+e}, v{t}" for kt in range(2) for e in range(4)]
            fb += [f"v_mul_f32 v{LS+4*qi+e}, v{t+1}, v{LS+4*qi+e}" for e in range(4)]
            for tt in range(8):
                a0 = (tt*4+qi)*4
                fb += [f"v_accvgpr_read_b32 v{t+4+e}, a{a0+e}" for e in range(4)]
                fb += [f"v_mul_f32 v{t+4+e}, v{t+1}, v{t+4+e}" for e in range(4)]
                fb += [f"v_accvgpr_write_b32 a{a0+e}, v{t+4+e}" for e in range(4)]
        ex, cv = softmax(0, (g,))
        fb += ex + cv + [m for m, _ in pv(0, (g,))] + ["s_nop 7", f"Lfbs{g}_{N}:"]
    fb += [f"s_add_u32 s{sCNT}, s{sCNT}, 1", f"s_cmp_lt_u32 s{sCNT}, s{sODW}", f"s_cbranch_scc1 Lfb_{N}", "s_waitcnt vmcnt(0)"] + (epi_short() if "epiend" not in env["opt"] else []) + epi_long() + [f"s_sub_u32 s{sWB}, s{sWB}, {8*4096}"] + first_w()
    fb += ["s_waitcnt vmcnt(0)", "s_barrier", f"s_branch Lnorm_{N}"]
    env["fallback"] = flat(fb)
    return o
```

```python
from common import *
from flay import *

def tail(env, upto):
    (N, st, sW, sJ, sC, sT0, sT1, vL16, WS, pX, pB1, pB2, pOUT, flag_off, publish, check, rnd, opt) = [env[k] for k in
     "N st sW sJ sC sT0 sT1 vL16 WS pX pB1 pB2 pOUT flag_off publish check rnd opt".split()]
    sR = 12
    sA = 16
    sSUB = 20
    sK = 24
    sC0, sC1, sONE = 30, 32, 34
    sWB, sRB, sCTL, sRT, sMF, sFL, sCNT, sBLK, sN, sODD, sPAIR, sWD, sM0, sZ = 82, 79, 80, 81, 78, 83, 84, 85, 86, 87, 88, 89, 90, 40
    vG16, vRM, vP, vT = 2, 3, 4, 6
    GA, AV, BV, XR, ACC, AR = 8, 24, 40, 56, 64, 128
    RED = 98304
    o = []; XL = env['XL']; ids = [f"""
    s_and_b32 s{sT0}, s2, 7
    s_bfe_u32 s{sT1}, s2, 0x20003
    s_and_b32 s{sN}, s{sT0}, 3
    s_lshl_b32 s{sN}, s{sN}, 2
    s_add_u32 s{sN}, s{sN}, s{sT1}
    s_sub_u32 s{sBLK}, 15, s{sJ}
    s_mov_b32 s{sSUB}, 0x0f0f0f0f
    s_cmp_lt_u32 s{sT0}, 4
    s_cselect_b32 s{sBLK}, s{sJ}, s{sBLK}
    s_cselect_b32 s{sSUB}, s{sSUB}, 0xf0f0f0f0
    s_mov_b32 s{sSUB+1}, s{sSUB}
    s_bfe_u32 s{sT0}, s2, 0x10001
    s_lshl_b32 s{sRB}, s{sBLK}, 1
    s_add_u32 s{sRB}, s{sRB}, s{sT0}
    s_lshl_b32 s{sRT}, s{sRB}, 2
    s_add_u32 s{sRT}, s{sRT}, s{sW}
    """]
    if XL: ids = [f"""
    s_and_b32 s{sT0}, s2, 7
    s_lshl_b32 s{sRB}, s{sT0}, 2
    s_bfe_u32 s{sT1}, s2, 0x20003
    s_add_u32 s{sRB}, s{sRB}, s{sT1}
    s_lshr_b32 s{sBLK}, s{sRB}, 1
    s_lshl_b32 s{sN}, s{sCTL}, 1
    s_and_b32 s{sT1}, s{sT1}, 1
    s_add_u32 s{sN}, s{sN}, s{sT1}
    s_mov_b32 s{sSUB}, 0x33333333
    s_bitcmp0_b32 s2, 4
    s_cselect_b32 s{sSUB}, s{sSUB}, 0xcccccccc
    s_mov_b32 s{sSUB+1}, s{sSUB}
    s_lshl_b32 s{sRT}, s{sRB}, 2
    s_add_u32 s{sRT}, s{sRT}, s{sW}
    s_sub_u32 s{sPAIR}, 15, s{sBLK}
    s_min_u32 s{sPAIR}, s{sPAIR}, s{sBLK}
    """]
    def gemm_loads(kind):
        def w(i, reg):
            g = []
            for t in range(4):
                x = [VM(f"buffer_load_dwordx4 {ar(reg + 4*t, 4)}, v{vL16}, {WS}, s{sWB} offen offset:{t*1024} sc1", (kind + "w", i))]
                if t == 3: x.append(f"s_add_u32 s{sWB}, s{sWB}, 4096")
                g.append(x)
            return g
        def a(i):
            g = []
            for r in range(4):
                x = [VM(f"buffer_load_dwordx4 {vr(AR + (i % 8)*16 + 4*r, 4)}, v{vL16}, {WS}, s{sA+r} offen offset:{(i & 3)*1024} sc1", (kind + "a", i))]
                if (i & 3) == 3: x.append(f"s_add_u32 s{sA+r}, s{sA+r}, 4096")
                g.append(x)
            return g
        return w, a
    def wreg(i): return ((i + 8) % 16)*16
    NL = 10 if "nolw" not in opt else 0
    def gemm(kind, ns, wl, al, extra):
        r = []
        for i in range(ns):
            sl = []
            for t in range(4):
                for q in range(4):
                    d = vr(ACC + (t*4+q)*4, 4)
                    sl.append(Slot(I(f"v_mfma_f32_16x16x32_bf16 {d}, {ar(wreg(i) + 4*t, 4)}, {vr(AR + (i % 8)*16 + 4*q, 4)}, {'0' if i == 0 else d}")))
            if 16 <= i < 16 + NL: sl[0].pre.append(W(vm=[(kind + "a", i)], lg=[("lw", i)]))
            else: sl[0].pre.append(W(vm=[(kind + "a", i), (kind + "w", i)]))
            ld = []
            if i >= 1 and i + 7 < ns: ld += al(i + 7)
            if i >= 1 and i + 15 < ns:
                if i + 15 < 16 + NL: ld += [LG(f"ds_read_b128 {ar(wreg(i + 15) + 4*t, 4)}, v{vP} offset:{(i - 1)*4096 + t*1024}", ("lw", i + 15)) for t in range(4)]
                else: ld += wl(i + 15, wreg(i + 15))
            ld += extra(i)
            for k, g in enumerate(ld): sl[(2*k) % 16 + (2*k)//16].mem.append(g)
            r += emit_slots(sl)
            if kind == "c" and i in (0, 15): r += st("T")
        return r
    def reduce_waves():
        r = [f"s_lshl_b32 s{sT0}, s{sW}, 14", f"s_add_u32 s{sT0}, s{sT0}, {RED}", f"v_add_u32 v{vT}, s{sT0}, v{vL16}",
             f"s_lshl_b32 s{sT0}, s{sW}, 12", f"s_add_u32 s{sT0}, s{sT0}, {RED}", f"v_add_u32 v{vT+1}, s{sT0}, v{vL16}"]
        for t in range(4):
            for q in range(4): r += [LG(f"ds_write_b128 v{vT}, {vr(ACC + (t*4+q)*4, 4)} offset:{(q*4+t)*1024}", "rw")]
        r += [W(lg="rw"), "s_barrier"]
        for t in range(4):
            for src in range(4): r += [LG(f"ds_read_b128 {vr(ACC + (t*4+src)*4, 4)}, v{vT+1} offset:{src*16384 + t*1024}", ("rr", t))]
        return r
    def sum4(t):
        b = ACC + t*16; r = [W(lg=[("rr", t)])]
        for h in (0, 2): r += [f"v_pk_add_f32 {vr(b+h, 2)}, {vr(b+h, 2)}, {vr(b+4+h, 2)}", f"v_pk_add_f32 {vr(b+8+h, 2)}, {vr(b+8+h, 2)}, {vr(b+12+h, 2)}"]
        for h in (0, 2): r += [f"v_pk_add_f32 {vr(b+h, 2)}, {vr(b+h, 2)}, {vr(b+8+h, 2)}"]
        return r
    def modf(dst, vec):
        return [f"s_add_u32 s{sT0}, s{sMF}, {vec*2048}"] + [VM(f"buffer_load_dwordx4 {vr(dst+4*t, 4)}, v{vG16}, {WS}, s{sT0} offen offset:{t*64} sc1", "ep") for t in range(4)]
    def sync(kind, mask, between, after=()):
        ld = f"buffer_load_dword v{vP+1}, v{vP}, {WS}, s{sFL} offen sc1"
        line = sPAIR if XL and kind == 1 else None
        return (flag_off(sFL, kind, True) + publish(vP, sFL) + (ids if kind == 1 else []) + flag_off(sFL, kind, False, line) + [f"v_and_b32 v{vP}, 31, v0", f"v_lshlrev_b32 v{vP}, 2, v{vP}"]
                + between + [VM(ld, ("poll", kind))] + list(after) + check(ld, f"v_cmp_ne_u32 vcc, 1, v{vP+1}", sCNT, [("poll", kind)], mask) + ["s_barrier"])
    wl, al = gemm_loads("c")
    o += st()
    btw = [wl(i, wreg(i)) for i in range(8, 16)] + [f"s_mul_i32 s{sM0}, s{sW}, 40960"]
    for i in range(NL):
        btw += [f"s_add_u32 m0, s{sM0}, {i*4096}", "s_nop 0"] + [VM(f"buffer_load_dwordx4 v{vL16}, {WS}, s{sWB} offen offset:{t*1024} sc1 lds", "lwd") for t in range(4)]
        btw += [f"s_add_u32 s{sWB}, s{sWB}, 4096"]
    btw += [f"""
    v_lshrrev_b32 v{vT}, 4, v0
    v_lshlrev_b32 v{vG16}, 4, v{vT}
    v_and_b32 v{vT+1}, 15, v0
    v_lshlrev_b32 v{vRM}, 10, v{vT+1}
    v_lshl_add_u32 v{vRM}, v{vT}, 3, v{vRM}
    s_mul_i32 s{sMF}, s{sJ}, 12288
    s_lshl_b32 s{sT0}, s{sCTL}, 8
    s_add_u32 s{sMF}, s{sMF}, s{sT0}
    s_add_u32 s{sMF}, s{sMF}, {WS_MODF}
    s_lshl_b32 s{sA}, s{sRB}, 19
    s_lshl_b32 s{sT0}, s{sW}, 15
    s_add_u32 s{sA}, s{sA}, s{sT0}
    s_add_u32 s{sA}, s{sA}, {WS_CTX}
    """] + [f"s_add_u32 s{sA+r}, s{sA}, {r*131072}" for r in range(1, 4)] + srd(sR, pX, 2*MB)
    btw += modf(GA, 2) + modf(AV, 4) + modf(BV, 3)
    btw += [f"s_lshl_b32 s{sT0}, s{sRT}, 14", f"s_lshl_b32 s{sT1}, s{sCTL}, 7", f"s_add_u32 s{sT0}, s{sT0}, s{sT1}"]
    btw += [VM(f"buffer_load_dwordx2 {vr(XR+2*t, 2)}, v{vRM}, s[{sR}:{sR+3}], s{sT0} offen offset:{t*32}", "ep") for t in range(4)]
    o += sync(1, None, btw) + st() + st("T")
    o += [al(i) for i in range(8)] + [f"v_add_u32 v{vP}, s{sM0}, v{vL16}"]
    for j in range(0, 16, 2): o += [f"v_add_f32 v{AV+j}, 1.0, v{AV+j}", f"v_add_f32 v{AV+j+1}, 1.0, v{AV+j+1}"] + rnd(AV+j, AV+j+1, vT)
    def w1_dma(g):
        grp = [f"s_add_u32 m0, s{sM0}, {g*16384}", f"s_add_u32 s{sCNT}, s{sWD}, {g*16384}"]; r = []
        for n in range(4):
            grp.append(VM(f"buffer_load_dwordx4 v{vL16}, {WS}, s{sCNT} offen offset:{n*1024} sc1 lds", ("w1", g))); r.append(grp); grp = []
        return SEQ(r)
    o += [f"s_lshl_b32 s{sM0}, s{sW}, 12", f"s_mul_i32 s{sWD}, s{sN}, 114688", f"s_add_u32 s{sWD}, s{sWD}, s{sM0}", f"s_add_u32 s{sWD}, s{sWD}, {WS_W1F}"]
    o += gemm("c", 32, wl, al, lambda i: [["s_barrier"]] if i == 20 and NL else [])
    NW1 = int(env["OV"]("nw1", 6))
    w1q = sum((w1_dma(g) for g in range(NW1)), [])
    cepi = len(o) + 2
    o += st() + st("T") + reduce_waves()
    F, Z, ZP, ST = AR, AR+16, AR+32, AR+40
    for j in range(8): o += [f"v_lshlrev_b32 v{F+2*j}, 16, v{XR+j}", f"v_and_b32 v{F+2*j+1}, 0xffff0000, v{XR+j}"]
    o += [f"s_lshl_b32 s{sT0}, s{sRT}, 14", f"s_lshl_b32 s{sT1}, s{sCTL}, 11", f"s_add_u32 s{sT0}, s{sT0}, s{sT1}", f"s_add_u32 s{sFL}, s{sT0}, {WS_Z}"]
    for t in range(4):
        o += sum4(t)
        for h in (0, 2): o += [f"v_pk_fma_f32 {vr(F+4*t+h, 2)}, {vr(ACC+t*16+h, 2)}, {vr(GA+4*t+h, 2)}, {vr(F+4*t+h, 2)}"]
        for j in (2*t, 2*t+1): o += rnd(F+2*j, F+2*j+1, XR+j)
        for h in (0, 2): o += [f"v_pk_mul_f32 {vr(Z+4*t+h, 2)}, {vr(F+4*t+h, 2)}, {vr(AV+4*t+h, 2)}"]
        for j in (2*t, 2*t+1): o += [f"v_cvt_pk_bf16_f32 v{ZP+j}, v{Z+2*j}, v{Z+2*j+1}"]
        if t & 1: o += [VM(f"buffer_store_dwordx4 {vr(ZP+2*(t-1), 4)}, v{vL16}, {WS}, s{sFL} offen offset:{(t >> 1)*1024} sc1", "zst")]
    for j in range(0, 16, 2):
        x, z, a, b = vr(F+j, 2), vr(Z+j, 2), vr(AV+j, 2), vr(BV+j, 2); S = [vr(ST+2*k, 2) for k in range(6)]
        if j == 0:
            o += [f"v_pk_add_f32 {S[0]}, {x}, {vr(F+2, 2)}", f"v_pk_mul_f32 {S[1]}, {x}, {x}", f"v_pk_add_f32 {S[2]}, {z}, {vr(Z+2, 2)}",
                  f"v_pk_mul_f32 {S[3]}, {z}, {z}", f"v_pk_mul_f32 {S[4]}, {a}, {z}", f"v_pk_mul_f32 {S[5]}, {b}, {z}"]
        else:
            if j > 2: o += [f"v_pk_add_f32 {S[0]}, {S[0]}, {x}", f"v_pk_add_f32 {S[2]}, {S[2]}, {z}"]
            o += [f"v_pk_fma_f32 {S[1]}, {x}, {x}, {S[1]}", f"v_pk_fma_f32 {S[3]}, {z}, {z}, {S[3]}",
                  f"v_pk_fma_f32 {S[4]}, {a}, {z}, {S[4]}", f"v_pk_fma_f32 {S[5]}, {b}, {z}, {S[5]}"]
    o += [f"v_add_f32 v{ST+2*k}, v{ST+2*k}, v{ST+2*k+1}" for k in range(6)]
    o += [f"v_permlane16_swap_b32 v{ST+4*k}, v{ST+4*k+2}" for k in range(3)]
    o += [f"v_add_f32 v{ST+4*k}, v{ST+4*k}, v{ST+4*k+2}" for k in range(3)]
    o += [f"v_mov_b32 v{ST+10}, v{ST+8}", f"v_permlane32_swap_b32 v{ST}, v{ST+4}", f"v_permlane32_swap_b32 v{ST+8}, v{ST+10}",
          f"v_add_f32 v{ST}, v{ST}, v{ST+4}", f"v_add_f32 v{ST+1}, v{ST+8}, v{ST+10}",
          f"s_lshl_b32 s{sT0}, s{sRT}, 12", f"s_lshr_b32 s{sT1}, s{sCTL}, 1", f"s_lshl_b32 s{sT1}, s{sT1}, 10", f"s_add_u32 s{sT0}, s{sT0}, s{sT1}",
          f"s_and_b32 s{sT1}, s{sCTL}, 1", f"s_lshl_b32 s{sT1}, s{sT1}, 3", f"s_add_u32 s{sT0}, s{sT0}, s{sT1}", f"s_add_u32 s{sT0}, s{sT0}, {WS_STAT}",
          VM(f"buffer_store_dwordx2 {vr(ST, 2)}, v{vL16}, {WS}, s{sT0} offen sc1", "zst")]
    head, epi = flat(o[:cepi]), flat(o[cepi:])
    last = next(i for i, x in enumerate(epi) if x.vm == "zst")
    for k in reversed(range(len(w1q))): epi[(k*last)//len(w1q):(k*last)//len(w1q)] = flat(w1q[k])
    o = head + epi
    PRE = [("cw", i) for i in range(8) for t in range(4)]
    if upto < 4: return resolve_waits(flat(o), pre_vm=PRE)
    DA, XA, WF, DS, CO, B1, HB = 64, 120, 128, 160, 192, 200, 216
    EARR, UVS = 114688, 114688 + 3072
    vW, vW6, vWX, vE, vU, vU6, g4, c16 = 8, 9, 10, 11, 12, 13, 14, 15
    A2, B2_, TT = 16, 24, 32
    o += [f"v_lshlrev_b32 v{vT+1}, 5, v0", f"s_mul_i32 s{sT0}, s{sJ}, 12288", f"s_add_u32 s{sT0}, s{sT0}, {WS_MODF + 3*2048}"]
    o += [VM(f"buffer_load_dwordx4 {vr(r, 4)}, v{vT+1}, {WS}, s{sT0} offen offset:{off} sc1", "ab") for r, off in ((A2, 2048), (A2+4, 2064), (B2_, 0), (B2_+4, 16))]
    wl2, al2 = gemm_loads("e")
    if upto >= 5:
        o += [f"s_mul_i32 s{sWB}, s{sCTL}, {56*4096}", f"s_mul_i32 s{sT0}, s{sW}, {14*4096}", f"s_add_u32 s{sWB}, s{sWB}, s{sT0}", f"s_add_u32 s{sWB}, s{sWB}, {WS_W2F}"]
    o += [W(vm="zst"), "s_barrier"] + st() + st("T")
    btw = [[w1_dma(g) for g in range(NW1, 7)]] + srd(sR, pB1, 3584) + [f"""
    s_and_b32 s{sODD}, s{sN}, 1
    s_lshl_b32 s{sPAIR}, s{sBLK}, 2
    s_add_u32 s{sPAIR}, s{sPAIR}, s{sW}
    v_lshrrev_b32 v{g4}, 4, v0
    v_and_b32 v{c16}, 15, v0
    s_lshl_b32 s{sT0}, s{sODD}, 10
    v_add_u32 v{vW}, s{sT0}, v{vL16}
    s_cmp_eq_u32 s{sODD}, 0
    s_cselect_b32 s{sT0}, 6144, 0
    v_add_u32 v{vW6}, s{sT0}, v{vL16}
    s_lshl_b32 s{sT0}, s{sW}, 11
    v_add_u32 v{vWX}, s{sT0}, v{vL16}
    v_min_u32 v{vE}, 2, v{c16}
    v_lshlrev_b32 v{vE}, 10, v{vE}
    v_lshl_add_u32 v{vE}, v{g4}, 3, v{vE}
    v_add_u32 v{vE}, {EARR}, v{vE}
    v_lshlrev_b32 v{vT}, 3, v{g4}
    s_mul_i32 s{sT0}, s{sN}, 224
    s_lshl_b32 s{sT1}, s{sODD}, 5
    s_add_u32 s{sT1}, s{sT1}, s{sT0}
    """]
    btw += [VM(f"buffer_load_dwordx2 {vr(B1+2*i, 2)}, v{vT}, s[{sR}:{sR+3}], s{sT1} offen offset:{i*32}", "b1") for i in range(6)]
    btw += [f"s_cmp_eq_u32 s{sODD}, 0", f"s_cselect_b32 s{sT1}, 192, 0", f"s_add_u32 s{sT1}, s{sT1}, s{sT0}",
            VM(f"buffer_load_dwordx2 {vr(B1+12, 2)}, v{vT}, s[{sR}:{sR+3}], s{sT1} offen", "b1")]
    btw += [W(vm="ab")] + [f"v_add_f32 v{A2+j}, 1.0, v{A2+j}" for j in range(8)]
    for j in range(4):
        btw += [f"v_cvt_pk_bf16_f32 v{TT+j}, v{A2+2*j}, v{A2+2*j+1}", f"v_cvt_pk_bf16_f32 v{TT+4+j}, v{B2_+2*j}, v{B2_+2*j+1}", f"v_mov_b32 v{TT+8+j}, 0x3f803f80"]
    for j in range(4): btw += [f"v_lshlrev_b32 v{A2+2*j}, 16, v{TT+j}", f"v_and_b32 v{A2+2*j+1}, 0xffff0000, v{TT+j}"]
    btw += [f"v_add_u32 v{vT}, {EARR}, v{vL16}"] + [LG(f"ds_write_b128 v{vT}, {vr(TT+4*k, 4)} offset:{k*1024}", "ew") for k in range(3)]
    SS = TT+12
    for j in range(0, 8, 2):
        a, b = vr(A2+j, 2), vr(B2_+j, 2); S = [vr(SS+2*k, 2) for k in range(5)]
        if j == 0: btw += [f"v_pk_add_f32 {S[0]}, {a}, {vr(A2+2, 2)}", f"v_pk_mul_f32 {S[1]}, {a}, {a}", f"v_pk_mul_f32 {S[2]}, {a}, {b}",
                           f"v_pk_add_f32 {S[3]}, {b}, {vr(B2_+2, 2)}", f"v_pk_mul_f32 {S[4]}, {b}, {b}"]
        else:
            if j > 2: btw += [f"v_pk_add_f32 {S[0]}, {S[0]}, {a}", f"v_pk_add_f32 {S[3]}, {S[3]}, {b}"]
            btw += [f"v_pk_fma_f32 {S[1]}, {a}, {a}, {S[1]}", f"v_pk_fma_f32 {S[2]}, {a}, {b}, {S[2]}", f"v_pk_fma_f32 {S[4]}, {b}, {b}, {S[4]}"]
    btw += [f"v_add_f32 v{SS+2*k}, v{SS+2*k}, v{SS+2*k+1}" for k in range(5)]
    for m in ("quad_perm:[1,0,3,2]", "quad_perm:[2,3,0,1]", "row_ror:4", "row_ror:8"):
        btw += [f"v_add_f32_dpp v{SS+2*k}, v{SS+2*k}, v{SS+2*k} {m} row_mask:0xf bank_mask:0xf" for k in range(5)]
    for sw in ("v_permlane16_swap_b32", "v_permlane32_swap_b32"):
        btw += [f"v_mov_b32 v{SS+2*k+1}, v{SS+2*k}" for k in range(5)] + [f"{sw} v{SS+2*k}, v{SS+2*k+1}" for k in range(5)]
        btw += [f"v_add_f32 v{SS+2*k}, v{SS+2*k}, v{SS+2*k+1}" for k in range(5)]
    btw += [f"v_readfirstlane_b32 s{sK+k}, v{SS+2*k}" for k in range(5)]
    c0 = -2*0.7978845608028654*1.4426950408889634
    btw += [f"s_mov_b32 s{sC0}, {fbits(c0)}", f"s_mov_b32 s{sC0+1}, s{sC0}", f"s_mov_b32 s{sC1}, {fbits(c0*0.044715)}", f"s_mov_b32 s{sC1+1}, s{sC1}",
            f"s_mov_b32 s{sONE}, 1.0", f"s_mov_b32 s{sONE+1}, 1.0",
            f"s_lshl_b32 s{sZ}, s{sPAIR}, 15", f"s_add_u32 s{sZ}, s{sZ}, {WS_Z}", f"s_add_u32 s{sZ+1}, s{sZ}, 16384",
            f"s_lshl_b32 s{sZ+2}, s{sPAIR}, 13", f"s_add_u32 s{sZ+2}, s{sZ+2}, {WS_STAT}", f"s_add_u32 s{sZ+3}, s{sZ+2}, 4096"]
    btw += [W(vm=[("w1", 6)], lg="ew"), "s_barrier"]
    def xr(s):
        b = WF + (s % 3)*12
        return ([f"v_add_u32 v{vWX}, 57344, v{vWX}"] if s == 8 else []) + \
               [LG(f"ds_read_b128 {vr(b+4*k, 4)}, v{vWX} offset:{(s & 7)*7168 + k*1024}", ("x", s)) for k in range(2)] + \
               [LG(f"ds_read_b64 {vr(b+8+2*hh, 2)}, v{vE} offset:{s*64 + hh*32}", ("x", s)) for hh in range(2)]
    NE2 = int(env['OV']('ne2', 0)); aft = []
    early2 = sum((wl2(i, wreg(i)) for i in range(NE2)), []) if upto >= 5 else []
    aft += xr(0) + xr(1)
    for s in range(16):
        b = WF + (s % 3)*12
        aft += [W(lg=[("x", s)])] + [f"v_mfma_f32_16x16x32_bf16 {vr(XA+4*k, 4)}, {vr(b+4*k, 4)}, {vr(b+8, 4)}, {'0' if s == 0 else vr(XA+4*k, 4)}" for k in range(2)]
        if s + 2 < 16: aft += xr(s + 2)
        if s % 2 and early2: aft += early2.pop(0)
    aft += [f"v_lshlrev_b32 v{vT}, 9, v{c16}", f"v_lshl_add_u32 v{vT}, v{g4}, 4, v{vT}", f"s_lshl_b32 s{sT0}, s{sW}, 7", f"s_add_u32 s{sT0}, s{sT0}, {UVS}",
            f"v_add_u32 v{vT}, s{sT0}, v{vT}", f"v_lshlrev_b32 v{vU6}, 4, v{g4}", f"s_lshl_b32 s{sT0}, s{sODD}, 6", f"s_add_u32 s{sT0}, s{sT0}, {UVS}",
            f"v_add_u32 v{vU}, s{sT0}, v{vU6}", f"s_cmp_eq_u32 s{sODD}, 0", f"s_cselect_b32 s{sT0}, 384, 0", f"s_add_u32 s{sT0}, s{sT0}, {UVS}",
            f"v_add_u32 v{vU6}, s{sT0}, v{vU6}"]
    aft += [LG(f"ds_write_b128 v{vT}, {vr(XA+4*k, 4)} offset:{k*64}", "uw") for k in range(2)] + [f"v_lshlrev_b32 v{vT+1}, 3, v0", W(lg="uw")]
    o += sync(2, sSUB, btw, aft) + st() + st("T")
    def Zf(s, r): return ar((s*2+r)*4, 4)
    def z_ld(s):
        g = []
        for r in range(2):
            x = [VM(f"buffer_load_dwordx4 {Zf(s, r)}, v{vL16}, {WS}, s{sZ+r} offen offset:{(s & 3)*1024} sc1", ("z", s))]
            if (s & 3) == 3: x.append(f"s_add_u32 s{sZ+r}, s{sZ+r}, 4096")
            g.append(x)
        return g
    o += [z_ld(s) for s in range(4)]
    stat = [VM(f"buffer_load_dwordx4 {vr(DS + r*16 + 4*c2, 4)}, v{vL16}, {WS}, s{sZ+2+r} offen offset:{c2*1024} sc1", "stat") for r in range(2) for c2 in range(4)]
    LA = 4
    frags = [(s, i) for s in range(16) for i in range(7)]; slots = []
    for f, (s, i) in enumerate(frags):
        for r in range(2):
            d = vr(DA + (i*2+r)*4, 4)
            slots.append(Slot(I(f"v_mfma_f32_16x16x32_bf16 {d}, {vr(WF + (f % 8)*4, 4)}, {Zf(s, r)}, {'0' if s == 0 else d}")))
        if f % 2 == 0: slots[2*f].pre.append(W(lg=[("wf", f+1)]))
        if i == 0: slots[2*f].pre.append(W(vm=[("z", s)]))
    def rd(f):
        s, i = frags[f]
        g = [f"v_add_u32 v{vW}, 57344, v{vW}", f"v_add_u32 v{vW6}, 57344, v{vW6}"] if (s, i) == (8, 0) else []
        return g, LG(f"ds_read_b128 {vr(WF + (f % 8)*4, 4)}, v{vW if i < 6 else vW6} offset:{(s & 7)*7168 + (i*1024 if i < 6 else 0)}", ("wf", f))
    for f in range(LA): o += [rd(f)[1]]
    for f in range(LA, len(frags)):
        g, x = rd(f); i = 2*(f - LA)
        if g: slots[i-1].alu += flat(g)
        slots[i].mem.append(x)
    GB, B2 = 16, 32
    ld = sum((z_ld(s) for s in range(4, 16)), []) + stat
    for k, g in enumerate(ld): slots[1 + 2*k].mem.append(g)
    if upto >= 5:
        NM2 = int(env['OV']('nm2', 3))
        for k, g in enumerate(early2 + sum((wl2(i, wreg(i)) for i in range(NE2, NM2)), [])): slots[95 + 6*k].mem.append(g)
        ep = flat(srd(sR, pB2, 1024) + [f"v_lshlrev_b32 v{vT}, 3, v{g4}", modf(GB, 5), f"s_lshl_b32 s{sT0}, s{sCTL}, 7"] +
                  [VM(f"buffer_load_dwordx2 {vr(B2+2*t, 2)}, v{vT}, s[{sR}:{sR+3}], s{sT0} offen offset:{t*32}", "ep") for t in range(4)])
        for k, g in enumerate(ep): slots[171 + 2*k].mem.append(g)
    bg = []
    for r in range(2):
        b = DS + r*16
        for ct in range(1, 8): bg += [f"v_add_f32 v{b}, v{b}, v{b+2*ct}", f"v_add_f32 v{b+1}, v{b+1}, v{b+2*ct+1}"]
        S1, S5, S2, S3, S4, S6, M1, R1, T0, T1, T2 = b, b+1, b+2, b+3, b+4, b+5, b+6, b+7, b+8, b+9, b+10
        bg += [f"v_mov_b32 v{S2}, v{S1}", f"v_mov_b32 v{S6}, v{S5}", f"v_permlane16_swap_b32 v{S1}, v{S2}", f"v_permlane16_swap_b32 v{S5}, v{S6}",
               f"v_mov_b32 v{S3}, v{S1}", f"v_mov_b32 v{S4}, v{S2}", f"v_permlane32_swap_b32 v{S1}, v{S3}", f"v_permlane32_swap_b32 v{S2}, v{S4}"]
        n = fbits(1/512); al_, be, ga, de = CO+4*r, CO+4*r+1, CO+4*r+2, CO+4*r+3
        bg += [f"v_mul_f32 v{M1}, {n}, v{S1}",
               f"v_mul_f32 v{T0}, {n}, v{S2}", f"v_fma_f32 v{T0}, -v{M1}, v{M1}, v{T0}", f"v_add_f32 v{T0}, {fbits(EPS)}, v{T0}", f"v_rsq_f32 v{R1}, v{T0}",
               f"v_fma_f32 v{T0}, -v{M1}, s{sK}, v{S3}",
               f"v_mul_f32 v{T1}, s{sK+1}, v{M1}", f"v_fma_f32 v{T1}, -2.0, v{S5}, v{T1}", f"v_fma_f32 v{T1}, v{T1}, v{M1}, v{S4}",
               f"v_fma_f32 v{T2}, -v{M1}, s{sK+2}, v{S6}",
               f"v_fma_f32 v{T0}, v{T0}, v{R1}, s{sK+3}", f"v_mul_f32 v{T0}, {n}, v{T0}",
               f"v_mul_f32 v{T1}, v{T1}, v{R1}", f"v_fma_f32 v{T1}, 2.0, v{T2}, v{T1}", f"v_fma_f32 v{T1}, v{T1}, v{R1}, s{sK+4}",
               f"v_mul_f32 v{T1}, {n}, v{T1}", f"v_fma_f32 v{T1}, -v{T0}, v{T0}, v{T1}", f"v_add_f32 v{T1}, {fbits(EPS)}, v{T1}", f"v_rsq_f32 v{ga}, v{T1}",
               f"v_mul_f32 v{M1}, -1.0, v{M1}", f"v_mul_f32 v{al_}, v{R1}, v{ga}", f"v_mul_f32 v{de}, v{T0}, v{ga}", f"v_mul_f32 v{be}, v{M1}, v{al_}",
               f"v_mul_f32 v{de}, -1.0, v{de}"]
    bg[0] = [W(vm="stat"), bg[0]]
    spread(slots, bg, 130, 222)
    slots[14].alu += st("T")
    o += emit_slots(slots) + st() + st("T")
    U = [128, 140, 152]; BB, G = 164, 168
    def uvs(n): return [LG(f"ds_read_b128 {vr(U[n % 3]+4*k, 4)}, v{vU if n else vU6} offset:{k*512 + ((n-1)*64 if n else 0)}", ("u", n)) for k in range(3)]
    late = sum((wl2(i, wreg(i)) for i in range(NM2, 14)), []) if upto >= 5 else []
    sHF, sHH = sZ, sZ+2
    order = (6, 0, 1, 2, 3, 4, 5)
    o += uvs(0) + uvs(1) + [W(vm="b1"), f"v_mov_b32 v{BB+12}, s{sC0}", f"v_mov_b32 v{BB+13}, s{sC0}", f"""
    s_mul_i32 s{sT0}, s{sPAIR}, {2*57344}
    s_add_u32 s{sT0}, s{sT0}, {WS_H1}
    s_mul_i32 s{sT1}, s{sN}, 7
    s_add_u32 s{sT1}, s{sT1}, s{sODD}
    s_lshl_b32 s{sT1}, s{sT1}, 9
    s_add_u32 s{sHF}, s{sT0}, s{sT1}
    s_add_u32 s{sHF+1}, s{sHF}, 57344
    s_or_b32 s{sT1}, s{sN}, 1
    s_mul_i32 s{sT1}, s{sT1}, 7
    s_sub_u32 s{sT1}, s{sT1}, 1
    s_lshl_b32 s{sT1}, s{sT1}, 9
    s_add_u32 s{sHH}, s{sT0}, s{sT1}
    s_lshl_b32 s{sT1}, s{sODD}, 3
    s_add_u32 s{sHH}, s{sHH}, s{sT1}
    s_add_u32 s{sHH+1}, s{sHH}, 57344
    """]
    depi = []
    for n, i in enumerate(order):
        if n + 2 < 7: depi += uvs(n+2)
        depi += [f"v_lshlrev_b32 v{BB}, 16, v{B1+2*i}", f"v_and_b32 v{BB+1}, 0xffff0000, v{B1+2*i}",
                 f"v_lshlrev_b32 v{BB+2}, 16, v{B1+2*i+1}", f"v_and_b32 v{BB+3}, 0xffff0000, v{B1+2*i+1}", W(lg=[("u", n)])]
        u = U[n % 3]; cells = [(r, h) for r in range(2) for h in (0, 2)]
        Xv = lambda r, h: vr(DA + (i*2+r)*4 + h, 2)
        T = lambda r, h: vr(G + r*4 + h, 2)
        lo, hi = "op_sel:[0,0,0] op_sel_hi:[1,0,1]", "op_sel:[0,1,0] op_sel_hi:[1,1,1]"
        for r, h in cells: depi += [f"v_pk_fma_f32 {T(r,h)}, {vr(u+8+h,2)}, {vr(CO+4*r+2,2)}, {vr(BB+h,2)} {hi}"]
        for r, h in cells: depi += [f"v_pk_fma_f32 {T(r,h)}, {vr(u+4+h,2)}, {vr(CO+4*r+2,2)}, {T(r,h)} {lo}"]
        for r, h in cells: depi += [f"v_pk_fma_f32 {T(r,h)}, {vr(u+h,2)}, {vr(CO+4*r,2)}, {T(r,h)} {hi}"]
        for r, h in cells: depi += [f"v_pk_fma_f32 {Xv(r,h)}, {Xv(r,h)}, {vr(CO+4*r,2)}, {T(r,h)} {lo}"]
        for r, h in cells: depi += [f"v_pk_mul_f32 {T(r,h)}, {Xv(r,h)}, {Xv(r,h)}"]
        for r, h in cells: depi += [f"v_pk_fma_f32 {T(r,h)}, {T(r,h)}, s[{sC1}:{sC1+1}], {vr(BB+12,2)}"]
        for r, h in cells: depi += [f"v_pk_mul_f32 {T(r,h)}, {T(r,h)}, {Xv(r,h)}"]
        depi += [f"v_exp_f32 v{G+k}, v{G+k}" for k in range(8)]
        for r, h in cells: depi += [f"v_pk_add_f32 {T(r,h)}, {T(r,h)}, s[{sONE}:{sONE+1}]"]
        depi += [f"v_rcp_f32 v{G+k}, v{G+k}" for k in range(8)]
        for r, h in cells: depi += [f"v_pk_mul_f32 {Xv(r,h)}, {Xv(r,h)}, {T(r,h)}"]
        for r, h in cells:
            a = DA + (i*2+r)*4 + h
            depi += [f"v_cvt_pk_bf16_f32 v{HB + ((3*r + i//2)*4 + (i & 1)*2 if i < 6 else 24 + 2*r) + h//2}, v{a}, v{a+1}"]
        if i < 6 and i & 1:
            depi += [VM(f"buffer_store_dwordx4 {vr(HB+4*(3*r + i//2), 4)}, v{vL16}, {WS}, s{sHF+r} offen offset:{(i//2)*1024} sc1", "hst2") for r in range(2)]
        if i == 6:
            depi += [VM(f"buffer_store_dwordx2 {vr(HB+24+2*r, 2)}, v{vL16}, {WS}, s{sHH+r} offen sc1", "hst2") for r in range(2)]
    depi = flat(depi); NL2 = min(len(late), int(env['OV']('nl2', 28))); span = len(depi)*6//7
    for k in reversed(range(NL2)): depi[(k*span)//NL2:(k*span)//NL2] = flat(late[k])
    o += depi; late = late[NL2:]
    if upto < 5: return resolve_waits(flat(o), pre_vm=PRE)
    o += st("T") + [W(vm="hst2"), "s_barrier"] + st() + st("T")
    btw = [f"s_mul_i32 s{sA}, s{sRB}, {4*57344}", f"s_mul_i32 s{sT0}, s{sW}, {14*1024}", f"s_add_u32 s{sA}, s{sA}, s{sT0}", f"s_add_u32 s{sA}, s{sA}, {WS_H1}"]
    btw += [f"s_add_u32 s{sA+r}, s{sA}, {r*57344}" for r in range(1, 4)] + srd(sR, pOUT, 2*MB)
    F2, BF = 40, 8
    btw += [W(vm="ep")] + late
    for j in range(8): btw += [f"v_lshlrev_b32 v{F2+2*j}, 16, v{B2+j}", f"v_and_b32 v{F2+2*j+1}, 0xffff0000, v{B2+j}"]
    o += sync(3, sSUB, btw) + st() + st("T")
    o += [al2(i) for i in range(8)]
    o += gemm("e", 14, wl2, al2, lambda i: []) + st("T")
    o += reduce_waves()
    F = AR
    for j in range(8): o += [f"v_lshlrev_b32 v{F+2*j}, 16, v{XR+j}", f"v_and_b32 v{F+2*j+1}, 0xffff0000, v{XR+j}"]
    o += [f"s_lshl_b32 s{sT0}, s{sRT}, 14", f"s_lshl_b32 s{sT1}, s{sCTL}, 7", f"s_add_u32 s{sT0}, s{sT0}, s{sT1}"]
    for t in range(4):
        b = ACC + t*16
        o += sum4(t)
        for h in (0, 2): o += [f"v_pk_add_f32 {vr(b+h, 2)}, {vr(b+h, 2)}, {vr(F2+4*t+h, 2)}"]
        for h in (0, 2): o += [f"v_pk_fma_f32 {vr(F+4*t+h, 2)}, {vr(b+h, 2)}, {vr(GB+4*t+h, 2)}, {vr(F+4*t+h, 2)}"]
        o += [f"v_cvt_pk_bf16_f32 v{XR+2*t}, v{F+4*t}, v{F+4*t+1}", f"v_cvt_pk_bf16_f32 v{XR+2*t+1}, v{F+4*t+2}, v{F+4*t+3}",
              VM(f"buffer_store_dwordx2 {vr(XR+2*t, 2)}, v{vRM}, s[{sR}:{sR+3}], s{sT0} offen offset:{t*32}")]
    return resolve_waits(flat(o), pre_vm=PRE)
```

```python
from common import *
from flay import *

def fused(name, ts=False, opt="", upto=9):
    N = name
    NT = " nt" if "nt" in opt.split() else ""
    NT1 = " nt" if "nt1" in opt.split() or NT else ""
    NTT = " nt" if "ntt" in opt.split() or NT else ""
    sW, sHEAD, sJ, sC = 3, 4, 5, 6
    sWS = 8; WS = "s[8:11]"
    sT0, sT1 = 76, 77
    pX, pB1, pB2, pOUT = 92, 94, 96, 98
    vL16 = 1
    nstamp = [0]; env = {}
    SM = "A" if "stA" in opt else ("B" if "stB" in opt else ("P" if "stP" in opt else ("T" if "stT" in opt else "")))
    def st(kind=""):
        if not ts or nstamp[0] >= 15 or kind != SM: return []
        nstamp[0] += 1
        return [stamp(nstamp[0] - 1)]
    def finish():
        r = []
        if ts:
            r += ["s_waitcnt vmcnt(0)", stamp(15), "s_waitcnt lgkmcnt(0)", "v_mov_b32 v2, s100", "v_mov_b32 v3, s74",
                  "s_lshl_b32 s76, s2, 2", f"s_add_u32 s76, s76, s{sW}", "s_lshl_b32 s77, s76, 3", f"s_add_u32 s77, s77, {WS_TS}",
                  f"buffer_store_dwordx2 v[2:3], off, {WS}, s77", "s_lshl_b32 s77, s76, 6", f"s_add_u32 s77, s77, {WS_TS + 65536}"]
            for q in range(0, 16, 4):
                r += [f"v_mov_b32 v{4+j}, s{44+2*(q+j)}" for j in range(4)]
                r += [f"buffer_store_dwordx4 v[4:7], off, {WS}, s77 offset:{q*4}", "s_nop 1"]
        return flat(r + [f"Lend_{N}:", "s_endpgm"]) + env["fallback"] + flat([f"Lcode_end_{N}:", "s_endpgm"])
    def rnd(r0, r1, t): return [f"v_cvt_pk_bf16_f32 v{t}, v{r0}, v{r1}", f"v_lshlrev_b32 v{r0}, 16, v{t}", f"v_and_b32 v{r1}, 0xffff0000, v{t}"]
    XL = "noxl" not in opt.split()
    def flag_off(dst, kind, own, line=None):
        if XL and kind >= 2:
            r = [f"s_and_b32 s{dst}, s2, 7", f"s_lshl_b32 s{dst}, s{dst}, 7", f"s_add_u32 s{dst}, s{dst}, {WS_FLAG + 1024 + kind*1024}"]
            if own: r += [f"s_lshr_b32 s{sT0}, s2, 3", f"s_lshl_b32 s{sT0}, s{sT0}, 2", f"s_add_u32 s{dst}, s{dst}, s{sT0}"]
            return r + [f"s_cmp_eq_u32 s{sW}, 0", f"s_cselect_b32 s{dst}, s{dst}, {OOB:#x}"]
        r = [f"s_lshl_b32 s{dst}, s{sJ if line is None else line}, 7", f"s_add_u32 s{dst}, s{dst}, {WS_FLAG + 1024 + kind*1024}"]
        if own: r += [f"s_lshl_b32 s{sT0}, s{sC}, 2", f"s_add_u32 s{dst}, s{dst}, s{sT0}"]
        return r + [f"s_cmp_eq_u32 s{sW}, 0", f"s_cselect_b32 s{dst}, s{dst}, {OOB:#x}"]
    def publish(vt, soff):
        return [f"v_min_u32 v{vt}, 1, v0", f"v_lshlrev_b32 v{vt}, 27, v{vt}", f"v_mov_b32 v{vt+1}, 1",
                VM(f"buffer_store_dword v{vt+1}, v{vt}, {WS}, s{soff} offen sc1", "flag")]
    nsp = [0]
    def check(load, test, scnt, tag, mask=None, every=False):
        nsp[0] += 1; k = f"{N}_{nsp[0]}"
        test = [test, "s_cmp_lg_u64 vcc, 0" if mask is None else f"s_and_b64 vcc, vcc, s[{mask}:{mask+1}]"]
        return flat([W(vm=tag), [] if every else [f"s_cmp_lg_u32 s{sW}, 0", f"s_cbranch_scc1 Lok{k}"], test, f"s_cbranch_scc0 Lok{k}", f"s_mov_b32 s{scnt}, 0x80000",
                     f"Lsp{k}:", f"s_sub_u32 s{scnt}, s{scnt}, 1", f"s_cbranch_scc1 Lok{k}", "s_sleep 2", load, It("s_waitcnt vmcnt(0)", k="cond"), test,
                     f"s_cbranch_scc1 Lsp{k}", f"Lok{k}:"])

    sCKV, sWK, sWV, sMOD, sCV, sX, sDBG, sCODE = 12, 16, 20, 24, 28, 32, 36, 40
    sWQ, sWO, sU2 = sMOD, sCV, sCODE
    sCOFF, sWKOFF, sWVOFF, sKST, sVST, sM0C, sM0K, sMST, sATO, sADD, sMF, sHST, sSPIN, sRS0 = range(78, 92)
    sRS1 = 7; sMEAN0, sMEAN1 = sMST, sATO
    vWD, vTR, vCD, vCR, vT = 2, 6, 10, 14, 16
    WF, X, ACC = 32, 64, 128
    RING, CBUF, CW = 0, 65536, 24576
    MODRED, MODV, HSTA = 49152, CBUF + 16384, CBUF + CW + 16384
    o = ["s_cmp_ge_u32 s2, 256", f"s_cbranch_scc1 Lend_{N}"] + load_args()
    if ts: o += ["s_memrealtime s[100:101]" if not CYC else "s_memtime s[100:101]"]
    o += [f"s_getpc_b64 s[{sCODE}:{sCODE+1}]", f"Lpc_{N}:", f"s_mov_b32 s{sCODE+2}, Lcode_end_{N}-Lpc_{N}", f"s_mov_b32 s{sCODE+3}, 0x20000",
          f"v_lshlrev_b32 v{vT}, 7, v0", VM(f"buffer_load_dword v{vT+1}, v{vT}, s[{sCODE}:{sCODE+3}], 0 offen", "code")]
    o += [f"""
    v_lshrrev_b32 v{vT+2}, 6, v0
    v_and_b32 v0, 63, v0
    v_readfirstlane_b32 s{sW}, v{vT+2}
    v_lshlrev_b32 v{vL16}, 4, v0
    s_and_b32 s{sHEAD}, s2, 7
    s_lshl_b32 s{sHEAD}, s{sHEAD}, 2
    s_bfe_u32 s{sT0}, s2, 0x20003
    s_add_u32 s{sHEAD}, s{sHEAD}, s{sT0}
    s_lshr_b32 s{sJ}, s2, 5
    s_and_b32 s{sC}, s2, 31
    v_lshrrev_b32 v{vT+2}, 3, v0
    v_and_b32 v{vT+3}, 7, v0
    """]
    r8, c8 = vT+2, vT+3
    o += [f"""
    v_mul_u32_u24 v{vT+4}, 6144, v{r8}
    v_lshl_add_u32 v{vT+4}, v{c8}, 4, v{vT+4}
    v_lshlrev_b32 v{vT+5}, 1, v{r8}
    v_lshrrev_b32 v{vT+6}, 1, v{r8}
    v_xor_b32 v{vT+6}, v{vT+6}, v{c8}
    v_lshlrev_b32 v{vT+6}, 4, v{vT+6}
    v_lshl_add_u32 v{vCD}, v{r8}, 10, v{vT+6}
    v_xor_b32 v{vCD+1}, 64, v{vCD}
    v_add_u32 v{vCD+1}, {7*1024}, v{vCD+1}
    v_add_u32 v{vCD+2}, {14*1024}, v{vCD}
    v_add_u32 v{vCD+3}, {14*1024}, v{vCD+1}
    v_and_b32 v{vT+6}, 2, v{r8}
    v_xor_b32 v{vT+6}, v{vT+6}, v{c8}
    v_lshlrev_b32 v{vT+6}, 4, v{vT+6}
    v_lshl_add_u32 v{vWD}, v{r8}, 13, v{vT+6}
    v_xor_b32 v{vWD+1}, 64, v{vWD}
    v_add_u32 v{vWD+1}, {65536-1024}, v{vWD+1}
    v_add_u32 v{vWD+2}, {2*(65536-1024)}, v{vWD}
    v_add_u32 v{vWD+3}, {2*(65536-1024)}, v{vWD+1}
    s_and_b32 s{sT0}, s2, 3
    s_lshl_b32 s{sT0}, s{sT0}, 7
    s_lshl_b32 s{sT1}, s{sW}, 5
    s_add_u32 s{sMF}, s{sT0}, s{sT1}
    s_lshl_b32 s{sHST}, s{sMF}, 1
    s_mul_i32 s{sMF}, s{sMF}, 6144
    s_lshr_b32 s{sMST}, s2, 2
    s_lshl_b32 s{sMST}, s{sMST}, 7
    s_add_u32 s{sMF}, s{sMF}, s{sMST}
    s_lshl_b32 s{sCOFF}, s{sJ}, 18
    s_lshl_b32 s{sT0}, s{sW}, 16
    s_add_u32 s{sCOFF}, s{sCOFF}, s{sT0}
    s_mul_i32 s{sM0C}, s{sW}, {CW}
    s_add_u32 s{sM0C}, s{sM0C}, {CBUF}
    s_and_b32 s{sT0}, s{sW}, 1
    s_lshl_b32 s{sWKOFF}, s{sT0}, 18
    s_lshr_b32 s{sT1}, s{sW}, 1
    s_lshl_b32 s{sT1}, s{sT1}, 7
    s_add_u32 s{sWKOFF}, s{sWKOFF}, s{sT1}
    s_lshl_b32 s{sT1}, s{sHEAD}, 8
    s_add_u32 s{sWKOFF}, s{sWKOFF}, s{sT1}
    s_lshl_b32 s{sWVOFF}, s{sW}, 18
    s_add_u32 s{sWVOFF}, s{sWVOFF}, s{sT1}
    s_lshl_b32 s{sM0K}, s{sW}, 12
    s_waitcnt lgkmcnt(0)
    """]
    if SM == "P": o += ["s_memrealtime s[92:93]"]
    o += srd(sMOD, P("wmod"), 512*6144) + srd(sCV, P("c"), 1024) + ["s_cmp_lt_u32 s2, 192", f"s_cselect_b32 s{sMOD+2}, s{sMOD+2}, 0"]
    MW, MC, MA, MT = 64, 80, 84, 92
    for n in range(4): o += [VM(f"buffer_load_ushort v{MC+n}, v{vT+5}, s[{sCV}:{sCV+3}], s{sHST} offen offset:{16*n}", "modc")]
    for n in range(4):
        o += [VM(f"buffer_load_dwordx4 v[{MW+4*n}:{MW+4*n+3}], v{vT+4}, s[{sMOD}:{sMOD+3}], s{sMF} offen{NT1}", ("modw", n))]
        if n < 3: o += [f"s_add_u32 s{sMF}, s{sMF}, {8*6144}"]
    o += srd(sCKV, P("ckv"), 2*MB) + srd(sWK, P("wuk"), 4*MB)
    def c_dma(i):
        g = []
        for hh in range(2):
            grp = [f"s_add_u32 m0, s{sM0C}, {(i % 3)*8192 + hh*4096}", f"s_add_u32 s{sT0}, s{sCOFF}, {i*128 + hh*32768}"]
            for n in range(4):
                grp.append(VM(f"buffer_load_dwordx4 v{vCD+n}, s[{sCKV}:{sCKV+3}], s{sT0} offen offset:{n*1024}{' nt' if 'ntc' in opt.split() else ''} lds", ("c", i)))
                g.append(grp); grp = []
        return SEQ(g)
    def page(q): return RING + (q % 4) * 16384
    def w_dma(q):
        if q < 8: sd, off, m0 = sWK, f"s_add_u32 s{sT1}, s{sWKOFF}, {q*64*8192}", f"s{sM0K}, {page(q)}"
        elif q < 16:
            sd, off = sWV, f"s_add_u32 s{sT1}, s{sWVOFF}, {((q-8)&3)*128*8192 + ((q-8)>>2)*128}"
            m0 = f"s{sM0K}, {page(q)}" if q < 12 else f"s{sM0C}, {(q-12)*4096}"
        else: sd, off, m0 = sWQ, f"s_add_u32 s{sT1}, s{sWKOFF}, {(q-16)*64*8192}", f"s{sM0K}, {(q-16)*16384}"
        g = []; grp = [f"s_add_u32 m0, {m0}", off]
        for n in range(4):
            grp.append(VM(f"buffer_load_dwordx4 v{vWD+n}, s[{sd}:{sd+3}], s{sT1} offen offset:{n*1024}{' nt' if q < 8 and 'ntk' in opt.split() else NT} lds", ("w", q)))
            g.append(grp); grp = []
        return SEQ(g)
    o += [c_dma(0), w_dma(0)] + (["s_memrealtime s[94:95]"] if SM == "P" else []) + srd(sWV, P("wuv"), 4*MB)
    OPT = opt.split()
    def OV(k, d): return next((x.split("=")[1] for x in OPT if x.startswith(k + "=")), d)
    vTD = vT+1
    vPC, vPW = 96, 97
    def pf_addr(vc, vw):
        return [f"v_lshrrev_b32 v{vw}, 4, v0", f"v_and_b32 v{vc}, 15, v0", f"v_lshlrev_b32 v{vc}, 4, v{vc}",
                f"v_lshl_add_u32 v{vw+1}, v{vw}, 13, v{vc}", f"v_lshl_add_u32 v{vc}, v{vw}, 10, v{vc}", f"v_mov_b32 v{vw}, v{vw+1}"]
    def pf_c(dummy):
        g = []; grp = [f"s_add_u32 m0, s{sM0C}, {dummy}", f"s_bfe_u32 s{sRS0}, s2, 0x20003", f"s_lshl_b32 s{sRS0}, s{sRS0}, 16", f"s_lshl_b32 s{sRS1}, s{sJ}, 18",
                       f"s_add_u32 s{sRS0}, s{sRS0}, s{sRS1}", f"s_lshl_b32 s{sRS1}, s{sW}, 14", f"s_add_u32 s{sRS0}, s{sRS0}, s{sRS1}"]
        for col in range(1, 4):
            for rg in range(4):
                grp += [f"s_add_u32 s{sRS1}, s{sRS0}, {rg*4096 + col*256}", VM(f"buffer_load_dwordx4 v{vPC}, s[{sCKV}:{sCKV+3}], s{sRS1} offen lds", "pf")]
                g.append(grp); grp = []
        return SEQ(g)
    def pf_w(sd, vw, dummy, first, sRS0=sRS0, sRS1=sRS1):
        g = []; grp = [f"s_add_u32 m0, s{sM0C}, {dummy}", f"s_lshr_b32 s{sRS0}, s{sW}, 1", f"s_lshl_b32 s{sRS0}, s{sRS0}, 3", f"s_add_u32 s{sRS0}, s{sRS0}, s{sJ}",
                       f"s_lshl_b32 s{sRS0}, s{sRS0}, 1", f"s_and_b32 s{sRS1}, s{sW}, 1", f"s_add_u32 s{sRS0}, s{sRS0}, s{sRS1}", f"s_lshl_b32 s{sRS0}, s{sRS0}, 15",
                       f"s_lshl_b32 s{sRS1}, s{sHEAD}, 8", f"s_add_u32 s{sRS0}, s{sRS0}, s{sRS1}"]
        for q in range(first, 8, 2):
            grp += [f"s_add_u32 s{sRS1}, s{sRS0}, {q*64*8192}", VM(f"buffer_load_dwordx4 v{vw}, s[{sd}:{sd+3}], s{sRS1} offen{NTT} lds", "pf")]
            g.append(grp); grp = []
        return SEQ(g)
    PF = "nopf" not in OPT
    o += pf_addr(vPC, vPW)
    pfa = (pf_w(sWK, vPW, 16384, 2) if "pfk" in OPT else []) + (pf_c(16384) if "pfc" in OPT else [])
    o += [c_dma(1), w_dma(1)] + ([pfa] if "pfpre" in OPT else []) + (["s_memrealtime s[96:97]"] if SM == "P" else []) + srd(sWS, P("ws"), WS_SIZE)
    KF, VF, SF = 0, 5120, 6144
    vZA, vZD = vT+14, vT+15
    o += [f"""
    v_lshlrev_b32 v{vZA}, 10, v0
    s_lshl_b32 s{sT0}, s{sJ}, 7
    s_lshl_b32 s{sT1}, s{sC}, 2
    s_add_u32 s{sT0}, s{sT0}, s{sT1}
    v_add_u32 v{vZA}, s{sT0}, v{vZA}
    s_lshl_b32 s{sT0}, s{sHEAD}, 5
    s_lshl_b32 s{sT1}, s{sJ}, 2
    s_add_u32 s{sT0}, s{sT0}, s{sT1}
    v_writelane_b32 v{vZA}, s{sT0}, 0
    s_add_u32 s{sT0}, s{sT0}, {VF}
    v_writelane_b32 v{vZA}, s{sT0}, 5
    s_lshl_b32 s{sT0}, s2, 2
    s_add_u32 s{sT0}, s{sT0}, {SF}
    v_writelane_b32 v{vZA}, s{sT0}, 6
    v_mov_b32 v{vZD}, {1 << 27}
    v_cmp_gt_u32 vcc, 7, v0
    v_cndmask_b32 v{vZA}, v{vZD}, v{vZA}, vcc
    v_mov_b32 v{vZD}, 0
    s_mov_b32 s{sSPIN}, {WS_FLAG}
    s_cmp_eq_u32 s{sW}, 0
    s_cselect_b32 s{sSPIN}, s{sSPIN}, {OOB:#x}
    """, VM(f"buffer_store_dword v{vZD}, v{vZA}, {WS}, s{sSPIN} offen sc1", "zero")]
    for i in (32768, 65536):
        o += [f"s_mov_b32 s{sT0}, {i}", VM(f"buffer_load_dword v{vT+1}, v{vT}, s[{sCODE}:{sCODE+3}], s{sT0} offen", "code2")]
    o += srd(sX, P("x"), 2*MB) + srd(sDBG, P("dbg"), 256) + srd(sWQ, P("wq"), 4*MB) + srd(sWO, P("wo"), 4*MB)
    EARLY = "s_waitcnt lgkmcnt(0)\ns_mov_b32 s66, s92\ns_mov_b32 s68, s94\ns_mov_b32 s72, s96" if SM == "P" else ""
    o += srd(sU2, P("w1"), 1792*1024) + [f"""
    s_mov_b64 s[0:1], s[{P('w2')}:{P('w2')+1}]
    {EARLY}
    s_mov_b64 s[{pX}:{pX+1}], s[{P('x')}:{P('x')+1}]
    s_mov_b64 s[{pB1}:{pB1+1}], s[{P('b1')}:{P('b1')+1}]
    s_mov_b64 s[{pB2}:{pB2+1}], s[{P('b2')}:{P('b2')+1}]
    s_mov_b64 s[{pOUT}:{pOUT+1}], s[{P('out')}:{P('out')+1}]
    v_lshrrev_b32 v{vT+6}, 4, v0
    v_bfe_u32 v{vT+7}, v0, 2, 2
    v_lshl_add_u32 v{vT+8}, v{vT+6}, 3, v{vT+7}
    v_lshlrev_b32 v{vT+8}, 7, v{vT+8}
    v_and_b32 v{vT+9}, 3, v0
    v_lshl_add_u32 v{vT+8}, v{vT+9}, 3, v{vT+8}
    v_and_b32 v{vT+9}, 1, v{vT+6}
    v_lshlrev_b32 v{vT+9}, 1, v{vT+9}
    v_lshrrev_b32 v{vT+10}, 1, v{vT+7}
    v_or_b32 v{vT+9}, v{vT+9}, v{vT+10}
    v_lshl_add_u32 v{vTR}, v{vT+9}, 5, v{vT+8}
    v_xor_b32 v{vTR+1}, 32, v{vTR}
    v_xor_b32 v{vTR+2}, 64, v{vTR}
    v_xor_b32 v{vTR+3}, 0x60, v{vTR}
    v_and_b32 v{vT+7}, 15, v0
    v_lshrrev_b32 v{vT+8}, 1, v{vT+7}
    v_xor_b32 v{vT+8}, v{vT+8}, v{vT+6}
    v_lshlrev_b32 v{vT+8}, 4, v{vT+8}
    v_lshl_add_u32 v{vT+8}, v{vT+7}, 7, v{vT+8}
    v_add_u32 v{vCR}, s{sM0C}, v{vT+8}
    v_xor_b32 v{vCR+1}, 64, v{vCR}
    s_lshl_b32 s{sKST}, s{sHEAD}, 20
    s_lshl_b32 s{sT0}, s{sJ}, 17
    s_add_u32 s{sKST}, s{sKST}, s{sT0}
    s_lshl_b32 s{sT0}, s{sW}, 15
    s_add_u32 s{sKST}, s{sKST}, s{sT0}
    s_add_u32 s{sVST}, s{sKST}, 16384
    s_and_b32 s{sT0}, s2, 3
    s_mul_i32 s{sT0}, s{sT0}, 12288
    s_lshl_b32 s{sMST}, s{sMST}, 1
    s_add_u32 s{sMST}, s{sMST}, s{sT0}
    s_add_u32 s{sMST}, s{sMST}, {WS_MODP}
    s_cmp_lt_u32 s2, 192
    s_cselect_b32 s{sT0}, s{sW}, 1
    s_cmp_eq_u32 s{sT0}, 0
    s_cselect_b32 s{sMST}, s{sMST}, {OOB:#x}
    s_and_b32 s{sATO}, s2, 63
    s_lshl_b32 s{sATO}, s{sATO}, 2
    s_cmp_eq_u32 s{sW}, 0
    s_cselect_b32 s{sATO}, s{sATO}, 256
    s_cmp_ge_u32 s{sW}, 2
    s_cselect_b32 s{sADD}, 1.0, 0
    """]
    o += st("P") + [W(vm="code" if SM == "P" else "modc")] + st("P") + [W(vm="modc")] + st("P")
    for n in range(4): o += [f"v_lshlrev_b32 v{MC+n}, 16, v{MC+n}"]
    for n in range(4): o += [f"v_mul_f32 v{MT+n}, {fbits(-1.4426950408889634)}, v{MC+n}"]
    for n in range(4): o += [f"v_exp_f32 v{MT+n}, v{MT+n}"]
    for n in range(4): o += [f"v_add_f32 v{MT+n}, 1.0, v{MT+n}"]
    for n in range(4): o += [f"v_rcp_f32 v{MT+n}, v{MT+n}"]
    for n in range(4): o += [f"v_mul_f32 v{MC+n}, v{MC+n}, v{MT+n}"]
    for n in range(4): o += [f"v_cvt_pk_bf16_f32 v{MC+n}, v{MC+n}, v{MC+n}"]
    for n in range(4): o += [f"v_lshlrev_b32 v{MC+n}, 16, v{MC+n}"]
    for n in range(4):
        o += [W(vm=[("modw", n)])]
        for j in range(4):
            o += [f"v_lshlrev_b32 v{MT}, 16, v{MW+4*n+j}", f"v_and_b32 v{MT+1}, 0xffff0000, v{MW+4*n+j}"]
            if n == 0: o += [f"v_mul_f32 v{MA+2*j}, v{MC}, v{MT}", f"v_mul_f32 v{MA+2*j+1}, v{MC}, v{MT+1}"]
            else: o += [f"v_fmac_f32 v{MA+2*j}, v{MC+n}, v{MT}", f"v_fmac_f32 v{MA+2*j+1}, v{MC+n}, v{MT+1}"]
    for j in range(8): o += [f"v_add_f32_dpp v{MA+j}, v{MA+j}, v{MA+j} row_ror:8 row_mask:0xf bank_mask:0xf"]
    for j in range(0, 8, 2): o += [f"v_permlane16_swap_b32 v{MA+j}, v{MA+j+1}"]
    for j in range(0, 8, 2): o += [f"v_add_f32 v{MA+j}, v{MA+j}, v{MA+j+1}"]
    for j in (0, 4): o += [f"v_permlane32_swap_b32 v{MA+j}, v{MA+j+2}"]
    for j in (0, 4): o += [f"v_add_f32 v{MA+j}, v{MA+j}, v{MA+j+2}"]
    vL4, vL256, vONE = vT+4, vT+5, vT+6
    o += [f"""
    v_lshrrev_b32 v{MT}, 4, v0
    v_lshl_add_u32 v{MT}, v{c8}, 3, v{MT}
    v_lshlrev_b32 v{MT}, 2, v{MT}
    s_lshl_b32 s{sT0}, s{sW}, 8
    v_add_u32 v{MT}, s{sT0}, v{MT}
    """, LG(f"ds_write_b32 v{MT}, v{MA} offset:{MODRED}", "mr"), LG(f"ds_write_b32 v{MT}, v{MA+4} offset:{MODRED+16}", "mr"),
    f"v_lshlrev_b32 v{vL4}, 2, v0", f"v_lshlrev_b32 v{vL256}, 8, v0", f"v_mov_b32 v{vONE}, 1"]
    def Cfrag(kt, s): return ar((s*4+kt)*4, 4)
    def c_reads(i):
        return [LG(f"ds_read_b128 {Cfrag(kt, 2*i+sp)}, v{vCR+sp} offset:{(i % 3)*8192 + kt*2048}", ("cr", i)) for sp in range(2) for kt in range(4)]
    o += st("P") + [W(vm=[("c", 0)])] + st("P") + [c_reads(0), W(vm=[("w", 0)], lg="mr")] + st("P") + ["s_barrier"] + st("P")

    QA, HR = 64, 192
    aK, aV = 128, 160
    def accK(dt, kt): return ACC + (dt*4+kt)*4
    def acc(dt, qi): return QA + (dt*4+qi)*4
    def Hf(s, qi): return vr(HR + ((s & 3)*4+qi)*4, 4, "a" if s & 4 else "v")
    frags = []
    for s in range(16):
        for dt in range(8):
            frags.append((s >> 1, page(s >> 1) + (dt >> 2)*8192 + (s & 1)*4096, dt & 3, [(accK(dt, kt), "W", Cfrag(kt, s), s == 0) for kt in range(4)]))
    for s in range(16):
        for t in range(4):
            frags.append((8 + (s >> 2), page(8 + (s >> 2)) + (s & 3)*4096, t, [(X + (t*4+kt)*4, Cfrag(kt, s), "W", s == 0) for kt in range(4)]))
    for hb in range(2):
        for s in range(16):
            for t in (2*hb, 2*hb+1):
                frags.append((12 + (s >> 2), CBUF + (s & 3)*CW + (s >> 2)*4096, t, [(ACC + (t*4+kt)*4, Cfrag(kt, s), "W", s == 0) for kt in range(4)]))
    for s in range(16):
        for dt in range(8):
            frags.append((16 + (s >> 1), (s >> 1)*16384 + (dt >> 2)*8192 + (s & 1)*4096, dt & 3, [(acc(dt, qi), "W", Hf(s, qi), s == 0) for qi in range(4)]))
    def wreg(f): return ("v", WF + (f % 8)*4) if f < 256 else ("a", aK + (f % 16)*4)
    slots = []
    for f, (q, a, t, mf) in enumerate(frags):
        fl, r = wreg(f); wf = vr(r, 4, fl)
        for n, (d, a_, b_, first) in enumerate(mf):
            sl = Slot(I(f"v_mfma_f32_16x16x32_bf16 {vr(d,4)}, {wf if a_ == 'W' else a_}, {wf if b_ == 'W' else b_}, {'0' if first else vr(d,4)}"))
            if n == 0:
                if f % 2 == 0: sl.pre.append(W(lg=[("wf", f+1)]))
                if f < 128 and f % 16 == 0: sl.pre.append(W(lg=[("cr", f//16)]))
                if f >= 256 and f % 8 == 0: sl.pre.append(W(vm=[("h", (f-256)//8)]))
            slots.append(sl)
    LA = 4
    wbase = [0]; bar = {}
    vTR2 = vCD
    def frag_reads(f):
        q, a, t, _ = frags[f]; g = []
        fl, r = wreg(f)
        if a >= 131072: return g, [LG(f"ds_read_b64_tr_b16 {vr(r+2*hh, 2, fl)}, v{vTR2+t} offset:{a - 131072 + hh*512}", ("wf", f)) for hh in range(2)]
        wb = a & 65536
        if wb != wbase[0]:
            g += [f"v_xor_b32 v{vTR+i}, 0x10000, v{vTR+i}" for i in range(4)]; wbase[0] = wb
        return g, [LG(f"ds_read_b64_tr_b16 {vr(r+2*hh, 2, fl)}, v{vTR+t} offset:{a - wb + hh*512}", ("wf", f)) for hh in range(2)]
    for f in range(LA):
        g, rd = frag_reads(f); o += g + rd
    valid = {0}
    VAL = {12: [12, 13, 14, 15], 16: [16, 17, 18, 19]}
    for f in range(LA, len(frags)):
        q = frags[f][0]; i = (f - LA)*4
        if q not in valid or (q > 16 and f % 16 == 0):
            qs = VAL.get(q, [q]); valid.update(qs); bar[q] = i - 1
            slots[i-1].alu += [W(vm=[("w", x) for x in qs]), I("s_barrier")]
        g, rd = frag_reads(f)
        slots[i-1].alu += flat(g)
        slots[i].mem.append(rd[0]); slots[i+1].mem.append(rd[1])
    def put(groups, b, step=4, where="mem"):
        for n, g in enumerate(groups): getattr(slots[b + step*n], where).append(g)
    def up(b, r):
        while (b & 3) != r: b += 1
        return b
    def lq(groups, b):
        put(groups, up(b, 3)); return up(b, 3) + 4*(len(groups) - 1)
    vused = set()
    def vq(groups, b, stride=1):
        k = up(b, 2) >> 2
        for g in groups:
            while k in vused: k += 1
            vused.add(k); slots[4*k + 2].mem.append(g); last = 4*k + 2; k += stride
        return last
    def sq(text, b, e): spread(slots, SEQ(scc_groups(text)), b, e)
    def before_bar(q, items): slots[bar[q]].alu[0:0] = flat(items)
    def pre(items, groups): groups[0] = flat(items) + groups[0]; return groups
    cend = {}
    for p in range(7):
        rd = c_reads(p+1); rd[0] = [W(vm=[("c", p+1)]), rd[0]]
        cend[p+1] = lq(rd, p*64 + 20)
    MR = vT + 8
    vq([[W(lg="mr2"), f"v_add_f32 v{MR}, v{MR}, v{MR+1}", f"v_add_f32 v{MR+2}, v{MR+2}, v{MR+3}", f"v_add_f32 v{MR}, v{MR}, v{MR+2}",
         VM(f"buffer_store_dword v{MR}, v{vL4}, {WS}, s{sMST} offen sc1", "mst")]], 14)
    sq([f"v_and_b32 v{vTR2+i}, 0xffff, v{vTR+i}" for i in range(4)] + [f"v_or_b32 v{vTR2+i}, 0x20000, v{vTR2+i}" for i in range(4)], 520, 540)
    lq([LG(f"ds_read2st64_b32 v[{MR}:{MR+1}], v{vL4} offset0:192 offset1:193", "mr2"),
        LG(f"ds_read2st64_b32 v[{MR+2}:{MR+3}], v{vL4} offset0:194 offset1:195", "mr2")], 0)
    vq([[W(vm=["mst", "zero"]), VM(f"buffer_atomic_add v{vONE}, v{vL256}, s[{sDBG}:{sDBG+3}], s{sATO} offen sc1")]], 100)
    XR, F0, F1, TT, AV, BV, PP, MF = 64, 72, 80, 88, 92, 100, 108, 124
    sq([f"""
    s_sub_u32 s{sHST}, 15, s{sJ}
    s_cmp_lt_u32 s{sC}, 16
    s_cselect_b32 s{sHST}, s{sJ}, s{sHST}
    s_lshl_b32 s{sHST}, s{sHST}, 4
    s_and_b32 s{sMF}, s{sC}, 15
    s_add_u32 s{sHST}, s{sHST}, s{sMF}
    s_lshl_b32 s{sMF}, s{sHST}, 13
    s_lshl_b32 s{sSPIN}, s{sW}, 11
    s_add_u32 s{sMF}, s{sMF}, s{sSPIN}
    """], 20, 40)
    xe = vq([VM(f"buffer_load_dwordx4 {vr(XR+4*k,4)}, v{vL16}, s[{sX}:{sX+3}], s{sMF} offen offset:{1024*k}{' nt' if 'ntx' in OPT else ''}", "x") for k in range(2)], 104)

    g = []
    for j in range(4):
        for F, xr in ((F0, XR), (F1, XR+4)): g += [f"v_lshlrev_b32 v{F+2*j}, 16, v{xr+j}", f"v_and_b32 v{F+2*j+1}, 0xffff0000, v{xr+j}"]
    g[0] = [W(vm="x"), g[0]]
    def reduce2(sa, sb, post):
        r = []
        for m in ("quad_perm:[1,0,3,2]", "quad_perm:[2,3,0,1]", "row_ror:4", "row_ror:8"):
            r += [f"v_add_f32_dpp v{TT}, v{TT}, v{TT} {m} row_mask:0xf bank_mask:0xf", f"v_add_f32_dpp v{TT+1}, v{TT+1}, v{TT+1} {m} row_mask:0xf bank_mask:0xf"]
        r += [f"v_permlane16_swap_b32 v{TT}, v{TT+1}", f"v_add_f32 v{TT}, v{TT}, v{TT+1}", f"v_mov_b32 v{TT+1}, v{TT}",
              f"v_permlane32_swap_b32 v{TT}, v{TT+1}", f"v_add_f32 v{TT}, v{TT}, v{TT+1}"] + post
        return r + [f"v_readlane_b32 s{sa}, v{TT}, 0", f"v_readlane_b32 s{sb}, v{TT}, 16"]
    for j in range(1, 8):
        for k, F in enumerate((F0, F1)): g += [f"v_add_f32 v{TT+k}, v{F if j == 1 else TT+k}, v{F+j}"]
    g += reduce2(sMEAN0, sMEAN1, [f"v_mul_f32 v{TT}, {fbits(1/512)}, v{TT}"])
    for j in range(8):
        for F, sm in ((F0, sMEAN0), (F1, sMEAN1)): g += [f"v_subrev_f32 v{F+j}, s{sm}, v{F+j}"]
    for j in range(8):
        for k, F in enumerate((F0, F1)): g += [f"v_mul_f32 v{TT+k}, v{F}, v{F}" if j == 0 else f"v_fmac_f32 v{TT+k}, v{F+j}, v{F+j}"]
    g += reduce2(sRS0, sRS1, [f"v_mov_b32 v{TT+1}, {fbits(EPS)}", f"v_fmac_f32 v{TT+1}, {fbits(1/512)}, v{TT}", f"v_rsq_f32 v{TT}, v{TT+1}"])
    for j in range(8):
        for F, rs in ((F0, sRS0), (F1, sRS1)): g += [f"v_mul_f32 v{F+j}, s{rs}, v{F+j}"]
    assert xe < 200
    spread(slots, g, max(xe + 60, 200), 360)
    ld = f"buffer_load_dword v{MR}, v{vL4}, s[{sDBG}:{sDBG+3}], 0 offen sc1"
    vq([VM(ld, "poll1")], 226)
    e = 0
    if pfa and "pfpre" not in OPT:
        for k, g in enumerate(pfa): slots[2*k + 1].alu.append(g)
        e = 2*len(pfa) + 2
    e = vq(c_dma(2), e); e = vq(w_dma(2), e); e = vq(c_dma(3), e); e = vq(w_dma(3), max(e, bar[1]))
    for i in range(4, 8):
        e = vq(pre([W(lg=[("cr", i-3)])], c_dma(i)), max(e, cend[i-3] + 8))
        assert e < (i-1)*64 - 10, (i, e)
        if i < 7: e = vq(w_dma(i), max(e, bar[i-2]))
    before_bar(5, check(ld, f"v_cmp_gt_u32 vcc, 4, v{MR}", sSPIN, "poll1"))
    sq([f"s_lshl_b32 s{sMF}, s{sW}, 10", f"s_add_u32 s{sMF}, s{sMF}, {WS_MODP}"], bar[5] - 8, bar[5] - 4)
    e = vq([[VM(f"buffer_load_dwordx4 {vr(PP+4*n,4)}, v{vL16}, {WS}, s{sMF} offen sc1", "pp"), f"s_add_u32 s{sMF}, s{sMF}, 12288"] for n in range(4)], bar[5] + 1)
    g = [[VM(f"buffer_load_dword v{MF+n}, v{vL4}, {WS}, s{sMF} offen sc1", "mf"), f"s_add_u32 s{sMF}, s{sMF}, 12288"] for n in range(4)]
    e = vq(pre([f"s_lshl_b32 s{sMF}, s{sC}, 10", f"s_lshl_b32 s{sSPIN}, s{sW}, 8", f"s_add_u32 s{sMF}, s{sMF}, s{sSPIN}",
                f"s_mul_i32 s{sSPIN}, s{sJ}, 12288", f"s_add_u32 s{sSPIN}, s{sSPIN}, s{sMF}", f"s_add_u32 s{sSPIN}, s{sSPIN}, {WS_MODF}",
                f"s_add_u32 s{sMF}, s{sMF}, {WS_MODP}", f"s_cmp_lt_u32 s{sC}, 12",
                f"s_cselect_b32 s{sMF}, s{sMF}, {OOB:#x}", f"s_cselect_b32 s{sSPIN}, s{sSPIN}, {OOB:#x}"], g), e)
    assert e < 372
    e = vq(w_dma(7), max(e, bar[5])); assert e < bar[7] - 60
    if PF: e = vq(pre([W(lg=[("cr", 5)])], pf_w(sWV, vPW, 16384 + 6144, 0, sX, sX+1)), max(e, cend[5] + 8))
    e = vq(w_dma(8), max(e, bar[6]))
    if PF: e = vq(pf_w(sWQ, vPW, 16384 + 6144, 0, sX, sX+1), e + 16); assert e < bar[7]
    e = vq(w_dma(9), max(e, bar[7])); e = vq(w_dma(10), max(e, bar[8] + 14))
    e = vq(w_dma(12), e + 8); e = vq(w_dma(11), max(e, bar[9] + 6)); e = vq(w_dma(13), e + 8); e = vq(w_dma(14), e + 12); e = vq(w_dma(15), e + 12)
    assert e < 690
    g = [[W(vm="pp"), f"v_add_f32 v{PP}, v{PP}, v{PP+4}"]] + [f"v_add_f32 v{PP+j}, v{PP+j}, v{PP+4+j}" for j in range(1, 4)]
    g += [f"v_add_f32 v{PP+8+j}, v{PP+8+j}, v{PP+12+j}" for j in range(4)] + [f"v_add_f32 v{PP+j}, v{PP+j}, v{PP+8+j}" for j in range(4)]
    g += rnd(PP, PP+1, PP+4) + rnd(PP+2, PP+3, PP+5) + [f"v_add_f32 v{PP+j}, s{sADD}, v{PP+j}" for j in range(4)]
    g += rnd(PP, PP+1, PP+4) + rnd(PP+2, PP+3, PP+5) + [f"v_mul_f32 v{PP+j}, {fbits(CSCALE)}, v{PP+j}" for j in range(4)]
    g += [f"s_lshl_b32 s{sMF}, s{sW}, 10", f"s_add_u32 s{sMF}, s{sMF}, {MODV}", f"v_add_u32 v{PP+4}, s{sMF}, v{vL16}", f"v_lshlrev_b32 v{TT}, 5, v0", f"v_add_u32 v{TT}, {MODV}, v{TT}"]
    g += [[W(vm="mf"), f"v_add_f32 v{MF}, v{MF}, v{MF+1}"], f"v_add_f32 v{MF+2}, v{MF+2}, v{MF+3}", f"v_add_f32 v{MF}, v{MF}, v{MF+2}",
          f"v_cvt_pk_bf16_f32 v{MF}, v{MF}, v{MF}", f"v_lshlrev_b32 v{vT+11}, 16, v{MF}"]
    spread(slots, g, 372, 424)
    lq([LG(f"ds_write_b128 v{PP+4}, {vr(PP,4)}", "mv")], 425)
    assert bar[7] > 427
    before_bar(7, [W(lg="mv")])
    put([LG(f"ds_read_b128 {vr(r,4)}, v{TT} offset:{off}", "ab") for r, off in ((BV, 0), (BV+4, 16), (AV, 2048), (AV+4, 2064))], bar[7] + 1, 2)
    g = []
    for j in range(8):
        for F in (F0, F1): g += [f"v_fma_f32 v{F+j}, v{F+j}, v{AV+j}, v{BV+j}"]
    g[0] = [W(lg="ab"), g[0]]
    for j in range(4):
        for F, xr in ((F0, XR), (F1, XR+4)): g += [f"v_cvt_pk_bf16_f32 v{xr+j}, v{F+2*j}, v{F+2*j+1}"]
    HA, HG, HD = vT+2, vT+3, vT+12
    g += [f"s_lshr_b32 s{sMF}, s{sW}, 1", f"s_mul_i32 s{sMF}, s{sMF}, {CW - 4160}", f"s_mul_i32 s{sADD}, s{sW}, 2080", f"s_add_u32 s{sMF}, s{sMF}, s{sADD}",
          f"s_add_u32 s{sMF}, s{sMF}, {HSTA}", f"v_add_u32 v{TT}, s{sMF}, v{vL16}"]
    g += [x.t for x in flat([f"""
    v_and_b32 v{HG}, 7, v0
    v_lshrrev_b32 v{TT+2}, 3, v0
    v_mul_u32_u24 v{HA}, 1040, v{HG}
    v_lshrrev_b32 v{TT+3}, 2, v{HG}
    v_mul_u32_u24 v{TT+3}, {CW - 4160}, v{TT+3}
    v_add_u32 v{HA}, v{HA}, v{TT+3}
    v_lshl_add_u32 v{HA}, v{TT+2}, 4, v{HA}
    s_lshl_b32 s{sMF}, s{sW}, 8
    s_add_u32 s{sMF}, s{sMF}, {HSTA}
    v_add_u32 v{HA}, s{sMF}, v{HA}
    v_lshlrev_b32 v{HG}, 4, v{HG}
    v_and_b32 v{TT+3}, 3, v{TT+2}
    v_lshl_add_u32 v{HG}, v{TT+3}, 8, v{HG}
    v_lshrrev_b32 v{TT+2}, 2, v{TT+2}
    v_lshl_add_u32 v{HG}, v{TT+2}, 10, v{HG}
    s_and_b32 s{sMF}, s{sHST}, 1
    s_lshr_b32 s{sHST}, s{sHST}, 1
    s_lshl_b32 s{sHST}, s{sHST}, 14
    s_lshl_b32 s{sMF}, s{sMF}, 7
    s_add_u32 s{sHST}, s{sHST}, s{sMF}
    s_lshl_b32 s{sMF}, s{sW}, 12
    s_add_u32 s{sHST}, s{sHST}, s{sMF}
    s_add_u32 s{sHST}, s{sHST}, {WS_H}
    """])]
    spread(slots, g, bar[7] + 12, 488)
    put([LG(f"ds_write_b128 v{TT}, {vr(XR+4*k,4)} offset:{1040*k}", "hw") for k in range(2)], 489, 2)
    assert bar[8] > 491
    before_bar(8, [W(lg="hw")])
    put([LG(f"ds_read_b128 {vr(XR+56+4*k,4)}, v{HA} offset:{128*k}", "hr") for k in range(2)], bar[8] + 1, 1)
    e = vq([VM(f"buffer_store_dword v{vT+11}, v{vL4}, {WS}, s{sSPIN} offen sc1", "hst")] +
           [[W(lg="hr"), VM(f"buffer_store_dwordx4 {vr(XR+56+4*k,4)}, v{HG}, {WS}, s{sHST} offen offset:{2048*k} sc1", "hst")] for k in range(2)], bar[8] + 1)
    assert e < 524
    before_bar(9, [W(vm="hst")])
    sq(flag_off(sMF, 0, True), bar[9] - 12, bar[9] - 11)
    vq([publish(vT+2, sMF)], bar[9] + 1)
    def pack(dst, qa, qb):
        return [f"v_cvt_pk_bf16_f32 v{dst}, v{qa}, v{qa+1}", f"v_cvt_pk_bf16_f32 v{dst+1}, v{qa+2}, v{qa+3}",
                f"v_cvt_pk_bf16_f32 v{dst+2}, v{qb}, v{qb+1}", f"v_cvt_pk_bf16_f32 v{dst+3}, v{qb+2}, v{qb+3}"]
    def store(src, sreg, off, tag):
        return [f"s_add_u32 s{sT0}, s{sreg}, {off & ~4095}", VM(f"buffer_store_dwordx4 {vr(src,4)}, v{vL16}, {WS}, s{sT0} offen offset:{off & 4095} sc1", tag)]
    def at23(e):
        while (e & 3) < 2: e += 1
        return e
    kl = [(s4, kt) for s4 in (2, 3, 0, 1) for kt in range(4)]
    for n, (s4, kt) in enumerate(kl):
        dst = accK({2: 4, 3: 6, 0: 5, 1: 7}[s4], kt)
        b = 514 + n*(22 if n < 2 else 12) + (20 if n >= 2 else 0)
        put(pack(dst, accK(2*s4, kt), accK(2*s4+1, kt)), b, 2, "alu")
        e = vq([store(dst, sKST, (kt >> 1)*8192 + ((kt & 1)*4 + s4)*1024, "kst")], 530 + 21*n)
        assert b + 6 < 530 + 21*n and b + 6 < 764 and e < 880
    sH = 32; sUS, sUL = sMF, sHST
    slots[815].alu += [I("s_barrier")]
    for q, b in ((16, 690), (17, bar[11] + 30), (18, bar[12]), (19, 815)): e = vq(w_dma(q), b + 1)
    sq(flag_off(sSPIN, 0, False) + [f"v_and_b32 v{vT+2}, 31, v0", f"v_lshlrev_b32 v{vT+2}, 2, v{vT+2}"], 780, 800)
    ld = f"buffer_load_dword v{vT+3}, v{vT+2}, {WS}, s{sSPIN} offen sc1"
    vq([VM(ld, "poll2")], max(e, 836))
    sq([f"""
    s_lshl_b32 s{sUS}, s{sJ}, 2
    s_sub_u32 s{sUL}, 60, s{sUS}
    s_add_u32 s{sUS}, s{sUS}, s{sW}
    s_add_u32 s{sUL}, s{sUL}, s{sW}
    s_lshl_b32 s{sH}, s{sUL}, 15
    s_add_u32 s{sH}, s{sH}, {WS_H}
    s_add_u32 s{sH+1}, s{sH}, 16384
    s_lshl_b32 s{sH+2}, s{sUS}, 15
    s_add_u32 s{sH+2}, s{sH+2}, {WS_H}
    s_add_u32 s{sH+3}, s{sH+2}, 16384
    """], 850, 876)
    slots[883].alu += check(ld, f"v_cmp_ne_u32 vcc, 1, v{vT+3}", sADD, "poll2") + [I("s_barrier")]
    def h_ld(s):
        g = []
        for qi in range(4):
            x = [VM(f"buffer_load_dwordx4 {Hf(s, qi)}, v{vL16}, {WS}, s{sH+qi} offen offset:{(s&3)*1024} sc1", ("h", s))]
            if (s & 3) == 3: x.append(f"s_add_u32 s{sH+qi}, s{sH+qi}, 4096")
            g.append(x)
        return g
    for n in range(8):
        t, uu = n >> 1, n & 1; qa = X + (t*4+2*uu)*4
        put(pack(qa, qa, qa+4), 780 + 10*n, 2, "alu")
        e = vq([store(qa, sVST, uu*8192 + t*1024, "vst")], 872 + 19*n)
        assert e < 1020
    e = vq(h_ld(0) + h_ld(1) + h_ld(2) + h_ld(3), 884)
    assert e < 990
    for n in range(8):
        t, uu = n >> 1, n & 1; qa = ACC + (t*4+2*uu)*4
        put(pack(WF + 4*n, qa, qa+4), 1024 + 3*n, 1, "alu") if n < 4 else put(pack(WF + 4*n, qa, qa+4), 1024 + 12 + 3*(n-4), 1, "alu")
        e = vq([store(WF + 4*n, sVST, uu*8192 + (4+t)*1024, "vst")], 1050 + 20*n)
    def kvflag(dst, base, own):
        r = [f"s_lshl_b32 s{dst}, s{sHEAD}, 5", f"s_add_u32 s{dst}, s{dst}, {WS_FLAG + base}"]
        if own: r += [f"s_lshl_b32 s{sT0}, s{sJ}, 2", f"s_add_u32 s{dst}, s{dst}, s{sT0}"]
        return r + [f"s_cmp_eq_u32 s{sW}, 0", f"s_cselect_b32 s{dst}, s{dst}, {OOB:#x}"]
    before_bar(16, [W(vm="kst")])
    sq(kvflag(sSPIN, KF, True), bar[16] - 12, bar[16] - 11)
    vq([publish(vT+2, sSPIN)], bar[16] + 1)
    for p in (0, 4, 8, 12): slots[p*64].alu += st()
    for p in range(15): slots[p*64].alu += st("A")
    for p in range(9, 24): slots[p*64].alu += st("B")
    B0 = 1024
    slots[B0].alu += st()
    sK, sCT = 12, 36; sMK = [24, 26, 32, 34]
    sKO, sCNT, sODW, sFL = 78, 86, 87, 90
    vKB, vVB, ONES, LS, PB, CB, TMP = 2, 3, 12, 16, 32, 192, 224
    sq([f"""
    s_lshl_b32 s{sKO}, s{sHEAD}, 20
    s_add_u32 s{sK}, s{sWS}, s{sKO}
    s_addc_u32 s{sK+1}, s{sWS+1}, 0
    s_sub_u32 s{sK+2}, 16, s{sJ}
    s_lshl_b32 s{sK+2}, s{sK+2}, 16
    s_mov_b32 s{sK+3}, 0x20000
    s_add_u32 s{sKO}, s{sM0K}, {4*32768}
    """], bar[20] + 1, bar[20] + 12)
    vF = LS
    sq(kvflag(sFL, KF, False) + [f"v_and_b32 v{vF}, 7, v0", f"v_lshlrev_b32 v{vF}, 2, v{vF}"], bar[19] - 20, bar[19] - 4)
    ld = f"buffer_load_dword v{vF+1}, v{vF}, {WS}, s{sFL} offen sc1"
    e = vq([VM(ld, "poll3")], bar[19]); assert e < bar[20] - 20
    before_bar(20, check(ld, f"v_cmp_ne_u32 vcc, 1, v{vF+1}", sCNT, "poll3"))
    before_bar(21, [W(vm="vst")])
    sq(kvflag(sFL, VF, True), bar[21] - 12, bar[21] - 11)
    e = vq([publish(vF+2, sFL)], bar[21] + 1)
    sq(kvflag(sFL, VF, False), e + 4, e + 12)
    vq([VM(ld, "poll4")], bar[23] + 1)
    e = vq(h_ld(4) + h_ld(5) + h_ld(6) + h_ld(7), B0)
    for s in range(8, 16):
        if s < 12: e = vq(w_dma(12 + s), max(e, bar[17] + 1, bar[12 + s] - 170)); assert e < bar[12 + s] - 60
        e = vq(h_ld(s), max(e, B0 + (s-7)*32, B0 + s*32 - 180)); assert e < B0 + s*32 - 60, (s, e)
    hend = e
    vcheck = check(ld, f"v_cmp_ne_u32 vcc, 1, v{vF+1}", sCNT, "poll4")
    def kv_dma(which, tag, pair=None):
        if pair is None: so = sKO; grp = [f"s_and_b32 m0, s{sKO}, 0x1ffff"]
        else: so = sT1; grp = [f"s_add_u32 s{sT1}, s{sM0K}, {pair*32768 + (which == 'V')*16384}", f"s_mov_b32 m0, s{sT1}"]
        g = [grp]
        for n in range(4): g.append([VM(f"buffer_load_dwordx4 v{vL16}, s[{sK}:{sK+3}], s{so} offen offset:{n*1024} sc1 lds", tag)])
        if pair is None: return SEQ(g + [[f"s_sub_u32 s{sKO}, s{sKO}, 16384" if which == "K" else f"s_add_u32 s{sKO}, s{sKO}, 49152"]])
        return SEQ([g[0] + g[1]] + g[2:])
    e = vq(kv_dma("K", ("K", 0), 0) + kv_dma("K", ("K", 1), 1), max(hend, bar[21] + 1))
    sS1, sD1, sD3, sS2, sX0, sX1, sW2 = 80, 7, 81, 91, 85, 83, 16; sD2 = [20, 21, 22, 23]
    vU1, vU2, vUT = TMP+12, TMP+16, TMP+20
    g = srd(sW2, 0, 1792*1024) + [f"""
    s_lshl_b32 s{sX0}, s2, 2
    s_add_u32 s{sX0}, s{sX0}, s{sW}
    s_and_b32 s{sX0}, s{sX0}, 511
    s_lshr_b32 s{sS1}, s{sX0}, 3
    s_and_b32 s{sX1}, s{sX0}, 7
    s_lshl_b32 s{sD1}, s{sX1}, 7
    s_add_u32 s{sD1}, s{sD1}, s{sS1}
    s_lshl_b32 s{sD1}, s{sD1}, 12
    s_add_u32 s{sD1}, s{sD1}, {WS_WOF}
    s_mul_i32 s{sD3}, s{sX1}, 56
    s_add_u32 s{sD3}, s{sD3}, s{sS1}
    s_lshl_b32 s{sD3}, s{sD3}, 12
    s_add_u32 s{sD3}, s{sD3}, {WS_W2F}
    s_lshl_b32 s{sS1}, s{sS1}, 15
    s_lshl_b32 s{sX1}, s{sX1}, 7
    s_add_u32 s{sS1}, s{sS1}, s{sX1}
    s_and_b32 s{sX1}, s{sX0}, 15
    s_mul_i32 s{sS2}, s{sX1}, {32*3584}
    s_mul_i32 s{sX1}, s{sX1}, 7168
    s_add_u32 s{sX1}, s{sX1}, {WS_W1F}
    s_cmp_lt_u32 s{sX0}, 448
    s_cselect_b32 s{sX1}, s{sX1}, {OOB:#x}
    s_cselect_b32 s{sD3}, s{sD3}, {OOB:#x}
    s_cselect_b32 s{sU2+2}, s{sU2+2}, 0
    s_cmp_ge_u32 s2, 128
    s_cselect_b32 s{sWO+2}, s{sWO+2}, 0
    s_lshr_b32 s{sX0}, s{sX0}, 4
    s_lshl_b32 s{sD2[0]}, s{sX0}, 7
    s_add_u32 s{sS2}, s{sS2}, s{sD2[0]}
    s_lshl_b32 s{sX0}, s{sX0}, 2
    """] + [f"""
    s_mul_i32 s{sODW}, s{sX0}, 9363
    s_lshr_b32 s{sODW}, s{sODW}, 16
    s_mul_i32 s{sODW}, s{sODW}, {114688-7168}
    s_lshl_b32 s{sD2[t]}, s{sX0}, 10
    s_add_u32 s{sD2[t]}, s{sD2[t]}, s{sODW}
    s_add_u32 s{sD2[t]}, s{sD2[t]}, s{sX1}
    s_add_u32 s{sX0}, s{sX0}, 1
    """ for t in range(4)] + [f"""
    v_lshrrev_b32 v{vUT}, 3, v0
    v_and_b32 v{vUT+1}, 7, v0
    v_and_b32 v{vUT+2}, 6, v{vUT}
    v_xor_b32 v{vUT+2}, v{vUT+2}, v{vUT+1}
    v_lshlrev_b32 v{vUT+2}, 4, v{vUT+2}
    v_lshl_add_u32 v{vU1}, v{vUT}, 10, v{vUT+2}
    v_add_u32 v{vU1+1}, 7168, v{vU1}
    v_add_u32 v{vU1+2}, {2*7168}, v{vU1}
    v_add_u32 v{vU1+3}, {3*7168}, v{vU1}
    v_mul_u32_u24 v{vU2}, 3584, v{vUT}
    v_add_u32 v{vU2}, v{vU2}, v{vUT+2}
    v_add_u32 v{vU2+1}, {8*3584-1024}, v{vU2}
    v_add_u32 v{vU2+2}, {2*(8*3584-1024)}, v{vU2}
    v_add_u32 v{vU2+3}, {3*(8*3584-1024)}, v{vU2}
    v_lshrrev_b32 v{vUT+1}, 4, v0
    v_bfe_u32 v{vUT+2}, v0, 2, 2
    v_lshl_add_u32 v{vUT+1}, v{vUT+1}, 2, v{vUT+2}
    v_bfe_u32 v{vUT+2}, v{vUT+1}, 1, 2
    v_lshlrev_b32 v{vUT+1}, 7, v{vUT+1}
    v_lshl_add_u32 v{vUT+1}, v{vUT+2}, 5, v{vUT+1}
    v_and_b32 v{vUT+2}, 3, v0
    v_lshl_add_u32 v{vUT+1}, v{vUT+2}, 3, v{vUT+1}
    s_lshl_b32 s{sX0}, s{sW}, 13
    s_add_u32 s{sX0}, s{sX0}, 131072
    v_add_u32 v{vUT}, s{sX0}, v{vUT+1}
    v_xor_b32 v{vUT+1}, 32, v{vUT}
    v_xor_b32 v{vUT+2}, 64, v{vUT}
    v_xor_b32 v{vUT+3}, 0x60, v{vUT}
    """]
    sq(g, B0 + 12*32 + 8, bar[23] + 4)
    def side_dma(rnd_):
        r = []
        for u, (vo, sd, so) in enumerate((((vU1, sWO, f"s{sS1}, 0"), (vU1, sWO, f"s{sS1}, {64*32768}")), ((vU1, sW2, f"s{sS1}, 0"), (vU2, sU2, f"s{sS2}, 0")))[rnd_]):
            d = [[VM(f"buffer_load_dwordx4 v{vo+n}, s[{sd}:{sd+3}], s{sT0} offen offset:{n*1024}{NT1} lds", "ud")] for n in range(4)]
            d[0] = [f"s_add_u32 m0, s{sX0}, {u*4096}", f"s_add_u32 s{sT0}, {so}"] + d[0]
            r += SEQ(d)
        return r
    def side_reads(): return [LG(f"ds_read_b64_tr_b16 {ar(192 + u*16 + t*4 + 2*hh, 2)}, v{vUT+t} offset:{u*4096 + hh*2048}", "ur") for u in range(2) for t in range(4) for hh in range(2)]
    def side_stores(rnd_):
        st_ = lambda q, so, off: [VM(f"buffer_store_dwordx4 {ar(192 + 4*q, 4)}, v{vL16}, {WS}, s{so} offen offset:{off} sc1")]
        if rnd_ == 1: return [st_(t, sD3, t*1024) for t in range(4)] + [st_(4+t, sD2[t], 0) for t in range(4)]
        r = [st_(t & 3 | (t & 4), sD1, (t & 3)*1024) for t in range(8)]
        r[3] = r[3] + [f"s_add_u32 s{sD1}, s{sD1}, {64*4096}"]
        return r
    e = vq(side_dma(0), bar[23] + 8); assert e < B0 + 510
    init = [f"v_accvgpr_write_b32 a{r}, 0" for r in range(128)] + [f"v_mov_b32 v{ONES+r}, 0x3f803f80" for r in range(4)]
    spread(slots, init, B0 + 40, bar[21] - 8)
    init = [x.t for x in flat([f"""
    s_lshl_b32 s{sODW}, s{sHEAD}, 12
    s_add_u32 s{sODW}, s{sODW}, {WS_CTX}
    s_lshl_b32 s{sCT}, s{sUL}, 18
    s_add_u32 s{sCT}, s{sCT}, s{sODW}
    s_add_u32 s{sCT+1}, s{sCT}, 131072
    s_lshl_b32 s{sCT+2}, s{sUS}, 18
    s_add_u32 s{sCT+2}, s{sCT+2}, s{sODW}
    s_add_u32 s{sCT+3}, s{sCT+2}, 131072
    v_lshrrev_b32 v{PB+4}, 4, v0
    v_lshlrev_b32 v{PB+4}, 2, v{PB+4}
    v_and_b32 v{PB+5}, 15, v0
    v_sub_u32 v{PB+5}, v{PB+5}, v{PB+4}
    v_cmp_le_i32 s[{sMK[0]}:{sMK[0]+1}], 0, v{PB+5}
    v_cmp_le_i32 s[{sMK[1]}:{sMK[1]+1}], 1, v{PB+5}
    v_cmp_le_i32 s[{sMK[2]}:{sMK[2]+1}], 2, v{PB+5}
    v_cmp_le_i32 s[{sMK[3]}:{sMK[3]+1}], 3, v{PB+5}
    v_mov_b32 v{vKB}, v{vL16}
    v_mov_b32 v{vVB}, v{vL16}
    """])] + [f"v_mov_b32 v{LS+r}, 0" for r in range(2, 16)]
    spread(slots, init, bar[23] + 6, bar[23] + 70)
    if "vmap" in OPT: print("".join(("#" if k in vused else ".") + ("|" if k % 16 == 15 else "") for k in range(len(slots)//4)))
    o += emit_slots(slots) + [f"Latt_{N}:"]
    o += st()
    from fatt import attention
    from ftail import tail
    env.update(locals())
    o = resolve_waits(flat(o + attention(env, "prologue")))
    o += attention(env, "main")
    if upto >= 3: o += tail(env, upto)
    return o + finish()
```

```python
from core import *
MB = 1 << 20
WS_K = 0; WS_V = 16*MB; WS_H = 32*MB; WS_Z = 34*MB; WS_X1 = 36*MB; WS_STAT = 38*MB
WS_MODP = 39*MB; WS_MODF = 39*MB + 65536; WS_TS = 39*MB + 131072; WS_CTX = 40*MB; WS_H1 = 56*MB; WS_SIZE = 64*MB
OOB = 0x7ff00000
CSCALE = 1.4426950408889634 / (128 ** 0.5)
EPS = 1e-5
import struct
def fbits(x): return "0x%08x" % struct.unpack("<I", struct.pack("<f", x))[0]
ARG = dict(x=0, ckv=1, wq=2, wuk=3, wuv=4, wo=5, bx=6, w1=7, b1=8, w2=9, b2=10, c=11, wmod=12, out=13, dbg=14, ws=15)
def P(n): return 44 + 2*ARG[n]
def load_args():
    return ["s_load_dwordx16 s[44:59], s[0:1], 0", "s_load_dwordx16 s[60:75], s[0:1], 64"]

class Slot:
    def __init__(self, mf, pre=None):
        self.pre = pre or []; self.mf = mf; self.mem = []; self.alu = []
    def items(self): return [self.pre, self.mf, self.mem, self.alu]
def spread(slots, groups, start, end, where="alu"):
    m = end - start; n = len(groups)
    for k, g in enumerate(groups):
        i = start + (k * m) // max(n, 1)
        getattr(slots[i], where).append(g)
def emit_slots(slots): return [s.items() for s in slots]

def code_prefetch(lbl_start, nbytes, sreg, vtmp, vdst, tidreg="v0"):
    o = [f"s_getpc_b64 s[{sreg}:{sreg+1}]",
         f"s_add_u32 s{sreg}, s{sreg}, {lbl_start}-.+0",
         f"s_addc_u32 s{sreg+1}, s{sreg+1}, 0",
         f"s_mov_b32 s{sreg+2}, {nbytes}", f"s_mov_b32 s{sreg+3}, 0x20000",
         f"v_lshlrev_b32 v{vtmp}, 7, {tidreg}"]
    return o

import sys as _sys
CYC = "cyc" in _sys.argv
def stamp(i): return I(f"{'s_memtime' if CYC else 's_memrealtime'} s[{44+2*i}:{45+2*i}]")
def dump_stamps(kidx, sWS, sW, n=16, clk=False):
    o = ["s_waitcnt vmcnt(0)", "s_memrealtime s[98:99]", "s_waitcnt lgkmcnt(0)", "v_mov_b32 v2, s96", "v_mov_b32 v3, s98",
         "s_lshl_b32 s100, s2, 2", f"s_add_u32 s100, s100, s{sW}", "s_lshl_b32 s101, s100, 3", f"s_add_u32 s101, s101, {WS_TS + kidx*8192}",
         f"buffer_store_dwordx2 v[2:3], off, s[{sWS}:{sWS+3}], s101", "s_lshl_b32 s101, s100, 6", f"s_add_u32 s101, s101, {WS_TS + 65536 + kidx*65536}"]
    for q in range(0, n, 4):
        o += [f"v_mov_b32 v{4+j}, s{44+2*(q+j)}" for j in range(4)]
        o += [f"buffer_store_dwordx4 v[4:7], off, s[{sWS}:{sWS+3}], s101 offset:{q*4}", "s_nop 1"]
    return o

def _cost(items):
    c = 0
    for it in items:
        if it.k == "label": continue
        c += 8 if (it.t is not None and it.t.startswith(TRANS)) else 4
    return c
def _rw(items):
    r = set(); w = set()
    for it in items:
        if it.t is None or it.k == "label": continue
        d = decode(it.t); r |= d.r; w |= d.w
    return r, w
def pack_slots(slots, maxdelay=10):
    pend = []
    n = len(slots); over0 = over1 = 0
    fixed_next = lambda i: flat([slots[i].pre, slots[i].mf, slots[i].mem]) if i < n else []
    for i in range(n):
        sl = slots[i]; fixed = []
        groups = [flat([g]) for g in sl.alu]
        over0 += max(0, _cost(flat(sl.mem)) + _cost(flat(sl.alu)) + (_cost(flat(slots[i+1].pre)) if i + 1 < n else 0) - 8)
        hard = any(any(it.k == "label" or it.vm is not None or it.lg is not None or (it.t or "").startswith(("s_barrier", "s_cbranch", "s_memtime", "s_memrealtime")) for it in g) for g in groups)
        for g in groups: pend.append((i, g) + _rw(g) + (_cost(g),))
        room = 8 - _cost(flat(sl.mem)) - (_cost(flat(slots[i+1].pre)) if i + 1 < n else 0)
        must = len(pend) if hard or i == n - 1 else 0
        fr, fw = _rw(fixed_next(i + 1))
        fr.discard(("c", "scc")); fw.discard(("c", "scc"))
        for k, (j, g, r, w, c) in enumerate(pend):
            if (w & (fr | fw)) or (r & fw) or i - j >= maxdelay: must = max(must, k + 1)
        out = []
        while pend and (must > 0 or pend[0][4] <= room):
            j, g, r, w, c = pend.pop(0); out.append(g); room -= c; must -= 1
        sl.alu = out; over1 += max(0, -room)
    print(f"pack_slots: overflow cycles {over0} -> {over1}")
```

```python
from common import *
from flay import *

def attention(env, part):
    g_ = env
    (N, ts, st, sW, sK, sMK, sCT, sT0, sT1, sKO, sCNT, sODW, sUS, sUL, sFL, vL16, vKB, vVB, ONES, LS, PB, CB, TMP,
     aK, aV, acc, kv_dma, WS, upto) = [g_[k] for k in
     "N ts st sW sK sMK sCT sT0 sT1 sKO sCNT sODW sUS sUL sFL vL16 vKB vVB ONES LS PB CB TMP aK aV acc kv_dma WS upto".split()]
    FLAG = 131072; NINF = "0xff800000"; sG = 20
    def Q(qi, s4): return vr(acc(2*s4, qi), 4)
    def S(buf, qi, kt): return acc(2*(buf*2+kt)+1, qi)
    def Pq(buf, qi): return PB + (buf*4+qi)*4
    def C(qi, kt): return CB + (qi*2+kt)*4
    def O(t, qi): return ar((t*4+qi)*4, 4)
    def Kf(kt, ds): return ar(aK + (kt*4+ds)*4, 4)
    def Vf(t): return ar(aV + t*4, 4)
    GQ = {0: (0, 1), 1: (2, 3)}
    def mask(g):
        r = []
        for e in range(4):
            for qt in range(2):
                c = C(GQ[g][qt], qt) + e
                r.append(f"v_cndmask_b32 v{c}, v{TMP+31}, v{c}, s[{sMK[e]}:{sMK[e]+1}]")
            r.append(f"v_mov_b32 v{C(GQ[g][0], 1)+e}, v{TMP+31}")
        return r
    def k_reads(off): return [LG(f"ds_read_b128 {Kf(kt, ds)}, v{vKB} offset:{off + (kt*4+ds)*1024}", ("k", kt*4+ds)) for kt in range(2) for ds in range(4)]
    def v_reads(off): return [LG(f"ds_read_b128 {Vf(t)}, v{vVB} offset:{16384 + off + t*1024}", ("v", t)) for t in range(8)]
    def qk(buf, groups):
        r = []
        for kt in range(2):
            for g in groups:
                for qi in GQ[g]:
                    for ds in range(4):
                        d = vr(S(buf, qi, kt), 4)
                        r.append((I(f"v_mfma_f32_16x16x32_bf16 {d}, {Kf(kt, ds)}, {Q(qi, ds)}, {vr(C(qi, kt), 4) if ds == 0 else d}"), kt*4+ds))
        return r
    def pv(buf, groups):
        r = []
        for t in range(8):
            for g in groups:
                for qi in GQ[g]:
                    r.append((I(f"v_mfma_f32_16x16x32_bf16 {O(t, qi)}, {Vf(t)}, {vr(Pq(buf, qi), 4)}, {O(t, qi)}"), t))
        for g in groups:
            for qi in GQ[g]:
                r.append((I(f"v_mfma_f32_16x16x32_bf16 {vr(LS+4*qi, 4)}, {vr(ONES, 4)}, {vr(Pq(buf, qi), 4)}, {vr(LS+4*qi, 4)}"), None))
        return r
    def softmax(buf, groups):
        ex = []; cv = []
        for g in groups:
            for qi in GQ[g]:
                for kt in range(2):
                    s0 = S(buf, qi, kt)
                    for h in range(2):
                        ex += [f"v_exp_f32 v{s0+2*h}, v{s0+2*h}", f"v_exp_f32 v{s0+2*h+1}, v{s0+2*h+1}"]
                        cv += [f"v_cvt_pk_bf16_f32 v{Pq(buf, qi)+2*kt+h}, v{s0+2*h}, v{s0+2*h+1}"]
        return ex, cv
    if part == "prologue":
        o = env["vcheck"] + [W(vm=[("K", 0)]), "s_barrier", k_reads(0), kv_dma("V", ("V", 0), 0)]
        o += [f"v_mov_b32 v{LS+r}, 0" for r in range(2)]
        dm = sum((kv_dma(wh, (wh, p), p) for wh, p in (("K", 2), ("V", 1), ("K", 3), ("V", 2))), [])
        o += env["qpack"](3) + [f"s_cmp_lg_u32 s{sUS}, 0", f"s_cbranch_scc1 Lp0_{N}", mask(1), f"Lp0_{N}:", "s_nop 1"]
        q0 = [Slot(m) for m, _ in qk(0, (0, 1))]
        for k in range(8): q0[4*k + 1].mem.append(dm[k])
        o += [W(lg=[("k", 7)])] + emit_slots(q0)
        o += [k_reads(8192), "s_nop 3", f"s_cmp_lg_u32 s{sUS}, 1", f"s_cbranch_scc1 Lp1_{N}", mask(1), f"Lp1_{N}:", "s_nop 1"]
        q1 = [Slot(m) for m, _ in qk(1, (0, 1))]
        q1[0].pre.append(W(lg=[("k", 7)]))
        mx = []
        for qi in range(4):
            a, b, t = S(0, qi, 0), S(0, qi, 1), TMP + qi
            mx += [f"v_max3_f32 v{t}, v{a}, v{a+1}, v{a+2}", f"v_max3_f32 v{t}, v{t}, v{a+3}, v{b}",
                   f"v_max3_f32 v{t}, v{t}, v{b+1}, v{b+2}", f"v_max_f32 v{t}, v{t}, v{b+3}"]
        for sw in ("v_permlane16_swap_b32", "v_permlane32_swap_b32"):
            mx += [f"v_mov_b32 v{TMP+4+qi}, v{TMP+qi}" for qi in range(4)]
            mx += [f"{sw} v{TMP+qi}, v{TMP+4+qi}" for qi in range(4)]
            mx += [f"v_max_f32 v{TMP+qi}, v{TMP+qi}, v{TMP+4+qi}" for qi in range(4)]
        spread(q1, mx, 2, 32)
        for k in range(8): q1[4*k + 1].mem.append(dm[8 + k])
        o += emit_slots(q1)
        o += [W(vm=[("K", 1), ("V", 0)]), "s_barrier", f"v_add_u32 v{vKB}, 32768, v{vL16}", k_reads(0)]
        for qi in range(4):
            for kt in range(2): o += [f"v_sub_f32 v{S(0, qi, kt)+e}, v{S(0, qi, kt)+e}, v{TMP+qi}" for e in range(4)]
        ex, cv = softmax(0, (0, 1))
        for k in range(len(cv)): o += ex[2*k:2*k+2] + ([cv[k-1]] if k else [])
        o += [cv[-1]]
        for qi in range(4):
            for kt in range(2):
                o += [f"v_sub_f32 v{C(qi, kt)+e}, v{C(qi, kt)+e}, v{TMP+qi}" for e in range(4)]
                o += [f"v_sub_f32 v{S(1, qi, kt)+e}, v{S(1, qi, kt)+e}, v{TMP+qi}" for e in range(4)]
        return o + st()
    MODES = {"D": ((0, 1), (0, 1), (0, 1)), "T1": ((0,), (0, 1), (0, 1)), "T2": ((0,), (0,), (0, 1)),
             "S": ((0,), (0,), (0,)), "F1": ((), (0,), (0,)), "F2": ((), (), (0,))}
    def iteration(mode, par, last=False, tail=(), xlds=(), xvm=(), xseq=False):
        gq, gs, gp = MODES[mode]
        m1 = qk(par, gq); m2 = pv(par, gp)
        sl = [Slot(m) for m, _ in m1 + m2]; n1 = len(m1); n2 = len(m2); n = n1 + n2
        ex, cv = softmax(1 - par, gs)
        free = [8]*n; pre = []
        epos = [min(n - 2, 1 + (k*(n - 1))//len(ex)) for k in range(len(ex))] if ex else []
        for k, x in enumerate(ex): sl[epos[k]].alu.append(I(x)); free[epos[k]] -= 8
        def place(x, lo, hi=None, mem=False, after=None):
            hi = n - 1 if hi is None else min(hi, n - 1); lo = min(lo, hi)
            c = [i for i in range(lo, hi + 1) if free[i] >= 4]
            i = c[0] if c else max(range(lo, hi + 1), key=lambda k: (free[k], -k))
            (sl[i].mem if mem else sl[i].alu).append(x); free[i] -= 4
            return i
        first = lambda ms, f: next(i for i, (_, g) in enumerate(ms) if g == f)
        for k, x in enumerate(cv): place(I(x), epos[2*k+1] + 1)
        vrd = v_reads(par*8192)
        if n1:
            i = 0
            for k, r in enumerate(vrd): i = place(r, max(i, k*(n1*5//8)//8), n1 - 2, mem=True)
            place(W(lg=[("k", 7)]), max(0, first(m1, 4) - 3), first(m1, 4) - 1)
            place(W(lg=[("v", 3)]), n1 - 3, n1 - 1)
        else: pre += vrd + [W(lg=[("v", 3)])]
        wv = n1 + first(m2, 4) - 1
        if last:
            place(W(lg=[("v", 7)]), wv - 2, wv); i = 0
            for k, g in enumerate(xvm): i = place(flat(g), max(k*(n - 1)//len(xvm), i + 1 if k else 0), n - 1, mem=True)
        else:
            if par == 0:
                place(W(lg=[("v", 7)]), wv - 2, wv); b = n1; krd = k_reads(8192)
            else:
                b = n1 + max(1, n2//9)
                while free[b] < 8 and b < wv: b += 1
                sl[b].alu += flat([W(lg=[("v", 7)], vm="*16"), "s_barrier"]); free[b] -= 8
                i = b
                for x in (f"v_mov_b32 v{vVB}, v{vKB}", f"v_add_u32 v{vKB}, 0x8000, v{vKB}", f"v_and_b32 v{vKB}, 0x1ffff, v{vKB}"):
                    i = place(I(x), max(n1 - 1, b - 4) if i == b else i, b - 1) if n1 else (pre.append(I(x)) or 0)
                b += 1; krd = k_reads(0)
            i = b
            for k, r in enumerate(krd): i = place(r, max(i, b + k*((n - b)*5//8)//8), n - 2, mem=True)
            dm = kv_dma("K" if par == 0 else "V", "d")
            hi = (n//3 if xseq else n - 2) if par == 0 else b - 2
            i = 2
            for k, x in enumerate(xlds): i = place(x, max(i, 2 + k*(n - 8)//len(xlds)), n - 4, mem=True)
            if hi < 8: pre += dm
            else:
                i = place(dm[0], 0, hi)
                for k, g in enumerate(dm[1:5]): i = place(g, max(i + 1, 2 + k*(hi - 2)//4), hi, mem=True)
                i = place(dm[5], i, hi)
            lo = i + 1 if xseq else 1
            for k, g in enumerate(xvm):
                t_ = max(lo + k*(n - 2 - lo)//len(xvm), i + 1 if k else 0)
                i = place(flat(g), t_, min(t_ + 2, n - 2), mem=True)
                free[i] -= 4*(len(flat(g)) - 1)
            place(W(lg=[("k", 3)]), n - 1)
        for x in tail: place(I(x), n - 3)
        env.setdefault("over", []).append((mode, par, n, sum(-f for f in free if f < 0), sum(f for f in free if f > 0)))
        return pre + emit_slots(sl)
    def epilogue(g, tsets, psets, rc):
        r = [f"v_rcp_f32 v{rc+k}, v{LS+4*qi}" for k, qi in enumerate(GQ[g])]
        n = 0
        for k, qi in enumerate(GQ[g]):
            for s4 in range(4):
                t = tsets[n % len(tsets)]; p = psets[n % len(psets)]; n += 1
                for h in range(2): r += [f"v_accvgpr_read_b32 v{t+4*h+e}, a{((2*s4+h)*4+qi)*4+e}" for e in range(4)]
                r += [f"v_pk_mul_f32 {vr(t+2*e, 2)}, {vr(t+2*e, 2)}, {vr(rc, 2)} op_sel:[0,{k}] op_sel_hi:[1,{k}]" for e in range(4)]
                r += [f"v_cvt_pk_bf16_f32 v{p+e}, v{t+2*e}, v{t+2*e+1}" for e in range(4)]
                r += [VM(f"buffer_store_dwordx4 {vr(p, 4)}, v{vL16}, {WS}, s{sCT+qi} offen offset:{s4*1024} sc1", "ctx")]
        return r
    epi_short = lambda: epilogue(1, [CB+16], [PB+8, PB+12], CB+28)
    epi_long = lambda: epilogue(0, [TMP], [TMP+8, TMP+12], TMP+24) + ([] if "epiend" not in env["opt"] else epi_short())
    def code_touch(a, b):
        env["npc"] = env.get("npc", 0) + 1; l = f"Lpc{env['npc']}_{N}"
        return ["s_getpc_b64 s[40:41]", f"{l}:", f"s_add_u32 s40, s40, {a}-{l}", "s_addc_u32 s41, s41, 0", f"s_mov_b32 s42, {b}-{a}", "s_mov_b32 s43, 0x20000",
                f"s_lshl_b32 s{sT0}, s{sW}, 13", f"v_lshlrev_b32 v{TMP+10}, 7, v0", VM(f"buffer_load_dword v{TMP+11}, v{TMP+10}, s[40:43], s{sT0} offen", "code")]
    sWB, sCTL, sML, sROT = 82, 80, 81, 91
    ROT = env["ROT"] = not env["XL"] and "norot" not in env["opt"]
    CTL = f"s_lshr_b32 s{sCTL}, s2, 5" if env["XL"] else f"s_and_b32 s{sCTL}, s2, 1\ns_lshl_b32 s{sCTL}, s{sCTL}, 2\ns_bfe_u32 s{sT0}, s2, 0x20003\ns_add_u32 s{sCTL}, s{sCTL}, s{sT0}"
    def wreg(i): i %= 16; return 192 + 16*i if i < 4 else (64 + 16*i if i < 8 else 16*(i - 8))
    def w_step(i, lds=None):
        if lds is None: g = [[VM(f"buffer_load_dwordx4 {ar(wreg(i) + 4*t, 4)}, v{vL16}, {WS}, s{sT1} offen offset:{t*1024} sc1", ("cw", i))] for t in range(4)]
        else: g = [[VM(f"buffer_load_dwordx4 v{vL16}, {WS}, s{sT1} offen offset:{t*1024} sc1 lds", ("cw", i))] for t in range(4)]
        off = [f"s_add_u32 s{sT1}, s{sROT}, {i*4096}", f"s_and_b32 s{sT1}, s{sT1}, 0x1ffff", f"s_add_u32 s{sT1}, s{sT1}, s{sWB}"] if ROT else [f"s_add_u32 s{sT1}, s{sWB}, {i*4096}"]
        g[0] = ([] if lds is None else [f"s_add_u32 m0, {lds}"]) + off + g[0]
        return SEQ(g)
    EW = "noew" not in env["opt"]
    def early_w(force=False): return [] if not (EW or force) else sum((w_step(i) for i in range(4)), []) + w_step(16, f"s{sML}, 0") + w_step(17, f"s{sML}, 4096") if upto >= 3 else []
    def early_ep(): return [[VM(f"buffer_load_dwordx2 {vr(CB+16+2*t, 2)}, v{TMP+12}, s[16:19], s79 offen offset:{t*32}")] for t in range(4)] + \
                           [[VM(f"buffer_load_dword v{CB+24+k}, v{TMP+13}, {WS}, s83 offen offset:{k*2048 if k < 2 else 0} sc1")] + ([f"s_add_u32 s83, s83, 4096"] if k == 1 else []) for k in range(3)]
    def ep_addr():
        assert env["XL"]
        return srd(16, env["pX"], 2*MB) + [f"""
        s_and_b32 s79, s2, 7
        s_lshl_b32 s79, s79, 2
        s_bfe_u32 s{sT0}, s2, 0x20003
        s_add_u32 s79, s79, s{sT0}
        s_lshl_b32 s79, s79, 2
        s_add_u32 s79, s79, s{sW}
        s_lshl_b32 s79, s79, 14
        s_lshl_b32 s{sT0}, s{sCTL}, 7
        s_add_u32 s79, s79, s{sT0}
        s_mul_i32 s83, s{env['sJ']}, 12288
        s_lshl_b32 s{sT0}, s{sCTL}, 8
        s_add_u32 s83, s83, s{sT0}
        s_add_u32 s83, s83, {WS_MODF + 2*2048}
        v_lshrrev_b32 v{TMP+13}, 4, v0
        v_and_b32 v{TMP+12}, 15, v0
        v_lshlrev_b32 v{TMP+12}, 10, v{TMP+12}
        v_lshl_add_u32 v{TMP+12}, v{TMP+13}, 3, v{TMP+12}
        v_lshlrev_b32 v{TMP+13}, 2, v0
        """]
    env["wreg"] = wreg; env["w_step"] = w_step
    sld = f"buffer_load_dwordx2 {vr(TMP+8, 2)}, v{TMP+10}, {WS}, s{sFL} offen sc1"
    KT = [("k", i) for i in range(8)]
    def region(items): return resolve_waits(flat(items), pre_lg=KT)
    def side_period(rnd):
        st_ = env["side_stores"](rnd); st_[0] = [W(lg="ur")] + st_[0]
        return region([iteration("D", 0, xlds=env["side_reads"]()), iteration("D", 1, xvm=st_)])
    def loop(mode, lbl, cuts=False):
        r = flat([f"{lbl}_go:", f"s_sub_u32 s{sCNT}, s{sCNT}, 1", f"s_cbranch_scc1 {lbl}_done", ".p2align 6", f"{lbl}:"])
        r += region([iteration(mode, 0), iteration(mode, 1, tail=[f"s_sub_u32 s{sCNT}, s{sCNT}, 1"])]) + flat([f"s_cbranch_scc0 {lbl}"])
        if cuts == "poll":
            r += flat(["s_sub_u32 s1, s1, 1", f"s_cbranch_scc1 {lbl}_done", sld, f"s_mov_b32 s{sCNT}, 2", f"s_branch {lbl}_go"])
        elif cuts:
            r += flat(["s_sub_u32 s1, s1, 1", f"s_cbranch_scc1 {lbl}_done", "s_cmp_eq_u32 s1, 0", f"s_cbranch_scc1 {lbl}_pub"]) + side_period(1)
            r += flat([f"s_mov_b32 s{sCNT}, 2", f"s_branch {lbl}_go", f"{lbl}_pub:",
                       f"s_lshl_b32 s{sFL}, s2, 2", f"s_add_u32 s{sFL}, s{sFL}, {WS_FLAG + env['SF']}", f"s_cmp_eq_u32 s{sW}, 0",
                       f"s_cselect_b32 s{sFL}, s{sFL}, {OOB:#x}", [x if isinstance(x, str) else x.t for x in env["publish"](TMP+8, sFL)],
                       f"s_mov_b32 s{sCNT}, s0", f"s_branch {lbl}_go"])
        return r + flat([f"{lbl}_done:"])
    o = flat([f"""
    s_waitcnt lgkmcnt(4)
    s_and_b32 s{sODW}, s{sW}, 1
    s_sub_u32 s{sCNT}, s{sUS}, 1
    s_ashr_i32 s{sCNT}, s{sCNT}, 1
    s_sub_u32 s{sCNT}, s{sCNT}, s{sODW}
    s_max_i32 s{sCNT}, s{sCNT}, 0
    s_mov_b32 s1, 0
    s_cmp_lt_u32 s2, 128
    s_cbranch_scc1 Ldd_{N}_go
    s_mov_b32 s1, 2
    s_sub_u32 s0, s{sCNT}, 7
    s_mov_b32 s{sCNT}, 2
    """]) + side_period(0) + region([iteration("D", 0, xvm=env["side_dma"](1), xseq=True), iteration("D", 1)]) + loop("D", f"Ldd_{N}", True)
    o += flat([f"s_bitcmp1_b32 s{sW}, 0", f"s_cbranch_scc1 Lodd1_{N}", f"s_cmp_eq_u32 s{sUS}, 0", f"s_cbranch_scc1 Lt2s_{N}", mask(1), "s_nop 1"])
    o += region([iteration("D", 0), iteration("T1", 1)])
    o += flat([f"Lt2s_{N}:"]) + region([iteration("T2", 0), iteration("S", 1)])
    o += flat([f"s_branch Lss_entry_{N}", f"Lodd1_{N}:", f"s_cmp_eq_u32 s{sUS}, 1", f"s_cbranch_scc1 Lt12_{N}"])
    o += region([iteration("D", 0), mask(1), "s_nop 0", iteration("D", 1)])
    o += flat([f"Lt12_{N}:"]) + region([iteration("T1", 0), iteration("T2", 1)])
    o += flat([f"Lss_entry_{N}:", f"v_lshlrev_b32 v{TMP+10}, 3, v0", f"s_mov_b32 s{sFL}, {WS_FLAG + env['SF'] + 512}", sld] + (["s_nop 7"] + epi_short() if "epiend" not in env["opt"] else []) + [f"""
    s_sub_u32 s{sCNT}, s{sUL}, s{sUS}
    s_lshr_b32 s{sCNT}, s{sCNT}, 1
    s_sub_u32 s{sCNT}, s{sCNT}, 2
    s_cmp_ge_u32 s{sCNT}, 3
    s_cselect_b32 s1, 1, 0
    s_lshl_b32 s{sT0}, s1, 1
    s_sub_u32 s{sCNT}, s{sCNT}, s{sT0}
    """]) + loop("S", f"Lss_{N}", "poll")
    o += resolve_waits([VM("s_nop 0", "p5")] + [VM("s_nop 0")]*0 + env["check"](sld, [f"v_and_b32 v{TMP+8}, v{TMP+8}, v{TMP+9}", f"v_cmp_ne_u32 vcc, 1, v{TMP+8}"], sCNT, "*8", every=True))
    o += flat([CTL, f"s_lshl_b32 s{sWB}, s{sCTL}, 19", f"s_lshl_b32 s{sT0}, s{sW}, 17", f"s_add_u32 s{sWB}, s{sWB}, s{sT0}", f"s_add_u32 s{sWB}, s{sWB}, {WS_WOF}",
               f"s_lshl_b32 s{sROT}, s{env['sJ']}, 14", f"s_lshl_b32 s{sML}, s{sW}, 13", f"s_add_u32 s{sML}, s{sML}, 131072"] + ep_addr())
    o += flat([f"s_bitcmp1_b32 s{sW}, 0", f"s_cbranch_scc1 Lodd2_{N}", mask(0), "s_nop 1"])
    ew = early_w()
    o += region([iteration("S", 0, xvm=early_ep() + ew[:4]), iteration("F1", 1, xvm=ew[4:12])]) + region([iteration("F2", 0, last=True, xvm=ew[12:])])
    o += flat([f"s_branch Lfin_{N}", f"Lodd2_{N}:"]) + region([iteration("S", 0, xvm=early_ep() + (ew := early_w())[:4]), mask(0), "s_nop 0", iteration("S", 1, xvm=ew[4:16])])
    o += region([iteration("F1", 0, last=True, xvm=ew[16:20]), iteration("F2", 1, last=True, xvm=ew[20:])])
    if "over" in env["opt"].split(): print(env["over"])
    o += flat([f"Lfin_{N}:", f"s_cmp_ge_u32 s{sW}, 2", f"s_cbranch_scc1 Lepi_{N}", f"s_waitcnt vmcnt({24 if upto >= 3 and EW else 0})", "s_barrier", f"Lepi_{N}:",
               f"s_waitcnt vmcnt({24 if upto >= 3 and EW else 0})"]) + flat(st())
    o += flat([f"s_mov_b32 s{sT0}, {fbits(2.0**90)}", f"s_mov_b64 s[{sG}:{sG+1}], 0", "s_nop 5"])
    for qi in range(4): o += flat([f"v_cmp_ngt_f32 vcc, s{sT0}, v{LS+4*qi}", f"s_or_b64 s[{sG}:{sG+1}], s[{sG}:{sG+1}], vcc"])
    o += flat([f"""
    s_cmp_lg_u64 s[{sG}:{sG+1}], 0
    s_cselect_b32 s{sFL}, 1, 0
    v_mov_b32 v{TMP}, s{sFL}
    s_and_b32 s{sFL}, s{sK+2}, 0x1ffff
    s_lshl_b32 s{sT0}, s{sW}, 12
    s_add_u32 s{sT0}, s{sT0}, s{sFL}
    v_mov_b32 v{TMP+1}, s{sT0}
    ds_write_b32 v{TMP+1}, v{TMP}
    """])
    o += resolve_waits(flat([f"""
    """, epi_long(), st("T"), [] if EW else early_w(True)[:16], [w_step(i) for i in range(4, 8)] if upto >= 3 else [], W(vm="ctx"), [] if EW else early_w(True)[16:]]))
    o += flat([f"""
    v_mov_b32 v{TMP+1}, s{sFL}
    s_waitcnt lgkmcnt(0)
    s_barrier
    ds_read2st64_b32 v[{TMP+4}:{TMP+5}], v{TMP+1} offset0:0 offset1:16
    ds_read2st64_b32 v[{TMP+6}:{TMP+7}], v{TMP+1} offset0:32 offset1:48
    s_waitcnt lgkmcnt(0)
    v_or3_b32 v{TMP}, v{TMP+4}, v{TMP+5}, v{TMP+6}
    v_or_b32 v{TMP}, v{TMP}, v{TMP+7}
    v_readfirstlane_b32 s{sFL}, v{TMP}
    s_cmp_lg_u32 s{sFL}, 0
    s_cbranch_scc1 Lfallback_{N}
    Lnorm_{N}:
    """]) + flat(st("T"))
    MR = TMP + 16
    fb = [f"Lfallback_{N}:", "s_waitcnt vmcnt(0)"] + [f"v_accvgpr_write_b32 a{r}, 0" for r in range(128)] + [f"v_mov_b32 v{LS+r}, 0" for r in range(16)]
    fb += [f"v_mov_b32 v{MR+qi}, {NINF}" for qi in range(4)]
    fb += [f"s_mov_b32 s{sCNT}, 0", f"s_lshr_b32 s{sODW}, s{sK+2}, 14", f"v_mov_b32 v{vKB}, v{vL16}", f"v_mov_b32 v{vVB}, v{vL16}", f"Lfb_{N}:", "s_barrier",
           f"s_lshr_b32 s{sKO}, s{sCNT}, 1", f"s_lshl_b32 s{sKO}, s{sKO}, 15", f"s_and_b32 s{sT0}, s{sCNT}, 1", f"s_lshl_b32 s{sT0}, s{sT0}, 13",
           f"s_add_u32 s{sKO}, s{sKO}, s{sT0}", f"s_lshl_b32 s{sT0}, s{sW}, 11", f"s_add_u32 s{sKO}, s{sKO}, s{sT0}", f"s_mov_b32 m0, s{sT0}", f"s_add_u32 s{sT0}, s{sT0}, 16384",
           f"buffer_load_dwordx4 v{vL16}, s[{sK}:{sK+3}], s{sKO} offen sc1 lds", f"buffer_load_dwordx4 v{vL16}, s[{sK}:{sK+3}], s{sKO} offen offset:1024 sc1 lds",
           f"s_mov_b32 m0, s{sT0}", f"s_add_u32 s{sKO}, s{sKO}, 16384",
           f"buffer_load_dwordx4 v{vL16}, s[{sK}:{sK+3}], s{sKO} offen sc1 lds", f"buffer_load_dwordx4 v{vL16}, s[{sK}:{sK+3}], s{sKO} offen offset:1024 sc1 lds",
           "s_waitcnt vmcnt(0)", "s_barrier"]
    fb += [x.t for x in k_reads(0) + v_reads(0)] + ["s_waitcnt lgkmcnt(0)"]
    for g, su in ((0, sUL), (1, sUS)):
        fb += [f"s_cmp_gt_u32 s{sCNT}, s{su}", f"s_cbranch_scc1 Lfbs{g}_{N}"]
        fb += [f"v_mov_b32 v{C(qi, kt)+e}, 0" for qi in GQ[g] for kt in range(2) for e in range(4)]
        fb += [f"s_cmp_lg_u32 s{sCNT}, s{su}", f"s_cbranch_scc1 Lfbm{g}_{N}", mask(g), f"Lfbm{g}_{N}:", "s_nop 1"]
        fb += [m for m, _ in qk(0, (g,))] + ["s_nop 7"]
        for qi in GQ[g]:
            a, b, t = S(0, qi, 0), S(0, qi, 1), TMP
            fb += [f"v_max3_f32 v{t}, v{a}, v{a+1}, v{a+2}", f"v_max3_f32 v{t}, v{t}, v{a+3}, v{b}",
                   f"v_max3_f32 v{t}, v{t}, v{b+1}, v{b+2}", f"v_max3_f32 v{t}, v{t}, v{b+3}, v{MR+qi}"]
            for sw in ("v_permlane16_swap_b32", "v_permlane32_swap_b32"):
                fb += [f"v_mov_b32 v{t+1}, v{t}", f"{sw} v{t}, v{t+1}", f"v_max_f32 v{t}, v{t}, v{t+1}"]
            fb += [f"v_sub_f32 v{t+1}, v{MR+qi}, v{t}", f"v_exp_f32 v{t+1}, v{t+1}", f"v_mov_b32 v{MR+qi}, v{t}"]
            fb += [f"v_sub_f32 v{S(0, qi, kt)+e}, v{S(0, qi, kt)+e}, v{t}" for kt in range(2) for e in range(4)]
            fb += [f"v_mul_f32 v{LS+4*qi+e}, v{t+1}, v{LS+4*qi+e}" for e in range(4)]
            for tt in range(8):
                a0 = (tt*4+qi)*4
                fb += [f"v_accvgpr_read_b32 v{t+4+e}, a{a0+e}" for e in range(4)]
                fb += [f"v_mul_f32 v{t+4+e}, v{t+1}, v{t+4+e}" for e in range(4)]
                fb += [f"v_accvgpr_write_b32 a{a0+e}, v{t+4+e}" for e in range(4)]
        ex, cv = softmax(0, (g,))
        fb += ex + cv + [m for m, _ in pv(0, (g,))] + ["s_nop 7", f"Lfbs{g}_{N}:"]
    fb += [f"s_add_u32 s{sCNT}, s{sCNT}, 1", f"s_cmp_lt_u32 s{sCNT}, s{sODW}", f"s_cbranch_scc1 Lfb_{N}", "s_waitcnt vmcnt(0)"] + (epi_short() if "epiend" not in env["opt"] else []) + epi_long()
    if upto >= 3: fb += [w_step(i) for i in range(4, 8)] + ep_addr() + early_ep()
    fb += ["s_waitcnt vmcnt(0)", "s_barrier", f"s_branch Lnorm_{N}"]
    env["fallback"] = flat(fb)
    return o
```

```python
from common import *
from flay import *

def tail(env, upto):
    (N, st, sW, sJ, sC, sT0, sT1, vL16, WS, pX, pB1, pB2, pOUT, flag_off, publish, check, rnd, opt) = [env[k] for k in
     "N st sW sJ sC sT0 sT1 vL16 WS pX pB1 pB2 pOUT flag_off publish check rnd opt".split()]
    sR = 12
    sA = 16
    sSUB = 20
    sK = 24
    sC0, sC1, sONE = 30, 32, 34
    sWB, sRB, sCTL, sRT, sMF, sFL, sCNT, sBLK, sN, sODD, sPAIR, sWD, sM0, sZ = 82, 79, 80, 81, 78, 83, 84, 85, 86, 87, 88, 89, 90, 40
    vG16, vRM, vP, vT = 2, 3, 4, 6
    GA, AV, BV, XR, ACC, AR = 8, 24, 40, 56, 64, 128
    RED = 114688
    o = []; XL = env['XL']; ids = [f"""
    s_and_b32 s{sT0}, s2, 7
    s_bfe_u32 s{sT1}, s2, 0x20003
    s_and_b32 s{sN}, s{sT0}, 3
    s_lshl_b32 s{sN}, s{sN}, 2
    s_add_u32 s{sN}, s{sN}, s{sT1}
    s_sub_u32 s{sBLK}, 15, s{sJ}
    s_mov_b32 s{sSUB}, 0x0f0f0f0f
    s_cmp_lt_u32 s{sT0}, 4
    s_cselect_b32 s{sBLK}, s{sJ}, s{sBLK}
    s_cselect_b32 s{sSUB}, s{sSUB}, 0xf0f0f0f0
    s_mov_b32 s{sSUB+1}, s{sSUB}
    s_bfe_u32 s{sT0}, s2, 0x10001
    s_lshl_b32 s{sRB}, s{sBLK}, 1
    s_add_u32 s{sRB}, s{sRB}, s{sT0}
    s_lshl_b32 s{sRT}, s{sRB}, 2
    s_add_u32 s{sRT}, s{sRT}, s{sW}
    """]
    HY = env['HY']; ROT = env['ROT']
    if HY: ids += [f"s_lshr_b32 s{sN}, s2, 5", f"s_lshl_b32 s{sN}, s{sN}, 1", f"s_bfe_u32 s{sT0}, s2, 0x10003", f"s_add_u32 s{sN}, s{sN}, s{sT0}"]
    ids2 = [f"""
    s_and_b32 s{sT0}, s2, 7
    s_lshl_b32 s{sRB}, s{sT0}, 2
    s_bfe_u32 s{sT1}, s2, 0x20003
    s_add_u32 s{sRB}, s{sRB}, s{sT1}
    s_lshr_b32 s{sBLK}, s{sRB}, 1
    s_lshl_b32 s{sN}, s{sCTL}, 1
    s_and_b32 s{sT1}, s{sT1}, 1
    s_add_u32 s{sN}, s{sN}, s{sT1}
    s_mov_b32 s{sSUB}, 0x33333333
    s_bitcmp0_b32 s2, 4
    s_cselect_b32 s{sSUB}, s{sSUB}, 0xcccccccc
    s_lshr_b32 s{sT0}, s2, 3
    s_bitset0_b32 s{sSUB}, s{sT0}
    s_mov_b32 s{sSUB+1}, s{sSUB}
    s_lshl_b32 s{sRT}, s{sRB}, 2
    s_add_u32 s{sRT}, s{sRT}, s{sW}
    s_sub_u32 s{sPAIR}, 15, s{sBLK}
    s_min_u32 s{sPAIR}, s{sPAIR}, s{sBLK}
    """]
    if XL: ids = ids2
    sSUBZ = 22 if HY else sSUB
    ids2 = [f"s_lshr_b32 s{sCTL}, s2, 5"] + ids2 + [f"s_mov_b32 s{sSUBZ}, 0x0f0f0f0f", f"s_cmp_lt_u32 s{sBLK}, 8", f"s_cselect_b32 s{sSUBZ}, s{sSUBZ}, 0xf0f0f0f0",
            f"s_mov_b32 s{sSUBZ+1}, s{sSUBZ}", f"s_mul_i32 s{sMF}, s{sJ}, 12288", f"s_lshl_b32 s{sT0}, s{sCTL}, 8", f"s_add_u32 s{sMF}, s{sMF}, s{sT0}",
            f"s_add_u32 s{sMF}, s{sMF}, {WS_MODF}"]
    def gemm_loads(kind):
        def w(i, reg):
            g = []
            for t in range(4):
                x = [VM(f"buffer_load_dwordx4 {ar(reg + 4*t, 4)}, v{vL16}, {WS}, s{sWB} offen offset:{t*1024} sc1", (kind + "w", i))]
                if t == 3: x.append(f"s_add_u32 s{sWB}, s{sWB}, 4096")
                g.append(x)
            return g
        def a(i):
            g = []
            for r in range(4):
                if ROT and kind == "c":
                    x = [f"s_lshl_b32 s{sCNT}, s{sJ}, 12", f"s_add_u32 s{sCNT}, s{sCNT}, {i*1024}", f"s_and_b32 s{sCNT}, s{sCNT}, 0x7fff",
                         f"v_add_u32 v{vT+1}, s{sCNT}, v{vL16}"] if r == 0 and (i & 3) == 0 else []
                    g.append(x + [VM(f"buffer_load_dwordx4 {vr(AR + (i % 8)*16 + 4*r, 4)}, v{vT+1}, {WS}, s{sA+r} offen offset:{(i & 3)*1024} sc1", (kind + "a", i))])
                    continue
                x = [VM(f"buffer_load_dwordx4 {vr(AR + (i % 8)*16 + 4*r, 4)}, v{vL16}, {WS}, s{sA+r} offen offset:{(i & 3)*1024} sc1", (kind + "a", i))]
                if (i & 3) == 3: x.append(f"s_add_u32 s{sA+r}, s{sA+r}, 4096")
                g.append(x)
            return g
        return w, a
    wreg = env["wreg"]
    NL = 10
    def gemm(kind, ns, wl, al, extra):
        r = []
        for i in range(ns):
            sl = []
            for t in range(4):
                for q in range(4):
                    d = vr(ACC + (t*4+q)*4, 4)
                    sl.append(Slot(I(f"v_mfma_f32_16x16x32_bf16 {d}, {ar(wreg(i) + 4*t, 4)}, {vr(AR + (i % 8)*16 + 4*q, 4)}, {'0' if i == 0 else d}")))
            if 16 <= i < 16 + NL: sl[0].pre.append(W(vm=[(kind + "a", i)], lg=[("lw", i)]))
            else: sl[0].pre.append(W(vm=[(kind + "a", i), (kind + "w", i)]))
            ld = []
            if i >= 1 and i + 7 < ns: ld += al(i + 7)
            if i >= 1 and i + 15 < ns:
                if i + 15 < 16 + NL: ld += [LG(f"ds_read_b128 {ar(wreg(i + 15) + 4*t, 4)}, v{vP + 1 if i < 3 else vP} offset:{((i - 1) if i < 3 else (i - 3))*4096 + t*1024}", ("lw", i + 15)) for t in range(4)]
                else: ld += wl(i + 15, wreg(i + 15))
            ld += extra(i)
            for k, g in enumerate(ld): sl[k*16//len(ld)].mem.append(g)
            r += emit_slots(sl)
            if kind == "c" and i in (0, 15): r += st("T")
        return r
    def rot_rows(pitch):
        r = []
        for k in (1, 2, 3, 0):
            r += [f"s_add_u32 s{sT0}, s{sW}, {k}", f"s_and_b32 s{sT0}, s{sT0}, 3", f"s_mul_i32 s{sT0}, s{sT0}, {pitch}", f"s_add_u32 s{sA+k}, s{sA}, s{sT0}"]
        return r
    def reduce_waves():
        r = []
        for q in range(1, 5):
            r += [f"s_add_u32 s{sT0}, s{sW}, {q}", f"s_and_b32 s{sT0}, s{sT0}, 3", f"s_mul_i32 s{sT0}, s{sT0}, 12288", f"s_add_u32 s{sT0}, s{sT0}, {RED}",
                  f"v_add_u32 v{vT + (q & 1)}, s{sT0}, v{vL16}"]
            if q < 4: r += [LG(f"ds_write_b128 v{vT + (q & 1)}, {vr(ACC + (t*4+q)*4, 4)} offset:{(q-1)*4096 + t*1024}", "rw") for t in range(4)]
        r += [W(lg="rw"), "s_barrier"]
        for t in range(4):
            for q in range(1, 4): r += [LG(f"ds_read_b128 {vr(ACC + (t*4+q)*4, 4)}, v{vT} offset:{(q-1)*4096 + t*1024}", ("rr", t))]
        return r
    def sum4(t):
        b = ACC + t*16; r = [W(lg=[("rr", t)])]
        for h in (0, 2): r += [f"v_pk_add_f32 {vr(b+h, 2)}, {vr(b+h, 2)}, {vr(b+4+h, 2)}", f"v_pk_add_f32 {vr(b+8+h, 2)}, {vr(b+8+h, 2)}, {vr(b+12+h, 2)}"]
        for h in (0, 2): r += [f"v_pk_add_f32 {vr(b+h, 2)}, {vr(b+h, 2)}, {vr(b+8+h, 2)}"]
        return r
    def modf(dst, vec):
        return [f"s_add_u32 s{sT0}, s{sMF}, {vec*2048}"] + [VM(f"buffer_load_dwordx4 {vr(dst+4*t, 4)}, v{vG16}, {WS}, s{sT0} offen offset:{t*64} sc1", "ep") for t in range(4)]
    def sync(kind, mask, between, after=()):
        ld = f"buffer_load_dword v{vP+1}, v{vP}, {WS}, s{sFL} offen sc1"
        line = sPAIR if (XL and kind == 1) or (HY and kind == 2) else None
        return (flag_off(sFL, kind, True) + publish(vP, sFL) + (ids if kind == 1 else []) + flag_off(sFL, kind, False, line) + [f"v_and_b32 v{vP}, 31, v0", f"v_lshlrev_b32 v{vP}, 2, v{vP}"]
                + between + [VM(ld, ("poll", kind))] + list(after) + check(ld, f"v_cmp_ne_u32 vcc, 1, v{vP+1}", sCNT, [("poll", kind)], mask) + ["s_barrier"])
    wl, al = gemm_loads("c"); wl = lambda i, reg: env["w_step"](i)
    o += st()
    btw = []; wpre = [f"s_lshl_b32 s{sM0}, s{sW}, 15"] + [env["w_step"](i) for i in range(8, 16)] + [env["w_step"](i, f"s{sM0}, {(i - 18)*4096}") for i in range(18, 26)]
    btw += [f"""
    v_lshrrev_b32 v{vT}, 4, v0
    v_lshlrev_b32 v{vG16}, 4, v{vT}
    v_and_b32 v{vT+1}, 15, v0
    v_lshlrev_b32 v{vRM}, 10, v{vT+1}
    v_lshl_add_u32 v{vRM}, v{vT}, 3, v{vRM}
    s_mul_i32 s{sMF}, s{sJ}, 12288
    s_lshl_b32 s{sT0}, s{sCTL}, 8
    s_add_u32 s{sMF}, s{sMF}, s{sT0}
    s_add_u32 s{sMF}, s{sMF}, {WS_MODF}
    s_lshl_b32 s{sA}, s{sRB}, 19
    s_lshl_b32 s{sT0}, s{sW}, 15
    s_add_u32 s{sA}, s{sA}, s{sT0}
    s_add_u32 s{sA}, s{sA}, {WS_CTX}
    """] + rot_rows(131072)
    CBX = env["CB"] + 16
    aft1 = [f"v_mov_b32 v{XR+k}, v{CBX+k}" for k in range(8)]
    for dst, k in ((GA, 0), (BV, 1), (AV, 2)):
        aft1 += [LG(f"ds_bpermute_b32 v{dst+4*t+e}, v{vG16}, v{CBX+8+k} offset:{(16*t+e)*4}", "bp") for t in range(4) for e in range(4)]
    aft1 += [W(lg="bp")]
    for j in range(0, 16, 2): aft1 += [f"v_add_f32 v{AV+j}, 1.0, v{AV+j}", f"v_add_f32 v{AV+j+1}, 1.0, v{AV+j+1}"] + rnd(AV+j, AV+j+1, vT)
    o += sync(1, None, btw + wpre, aft1) + st() + st("T")
    o += [al(i) for i in range(8)] + [f"v_add_u32 v{vP}, s{sM0}, v{vL16}", f"s_lshl_b32 s{sT0}, s{sW}, 13", f"s_add_u32 s{sT0}, s{sT0}, 131072", f"v_add_u32 v{vP+1}, s{sT0}, v{vL16}"]
    def w1_dma(g):
        grp = [f"s_add_u32 m0, s{sM0}, {g*16384}", f"s_add_u32 s{sCNT}, s{sWD}, {g*16384}"]; r = []
        for n in range(4):
            grp.append(VM(f"buffer_load_dwordx4 v{vL16}, {WS}, s{sCNT} offen offset:{n*1024} sc1 lds", ("w1", g))); r.append(grp); grp = []
        return SEQ(r)
    o += [f"s_lshl_b32 s{sM0}, s{sW}, 12", f"s_mul_i32 s{sWD}, s{sN}, 114688", f"s_add_u32 s{sWD}, s{sWD}, s{sM0}", f"s_add_u32 s{sWD}, s{sWD}, {WS_W1F}"]
    NW0 = int(env["OV"]("nw0", 6)); NW1 = int(env["OV"]("nw1", 7))
    o += gemm("c", 32, wl, al, lambda i: [["s_barrier"]] if i == 20 and NL else (w1_dma(i - 32 + NW0) if i >= 32 - NW0 else []))
    w1q = sum((w1_dma(g) for g in range(NW0, NW1)), [])
    cepi = len(o) + 2
    o += st() + st("T") + reduce_waves()
    F, Z, ZP, ST = AR, AR+16, AR+32, AR+40
    for j in range(8): o += [f"v_lshlrev_b32 v{F+2*j}, 16, v{XR+j}", f"v_and_b32 v{F+2*j+1}, 0xffff0000, v{XR+j}"]
    o += [f"s_lshl_b32 s{sT0}, s{sRT}, 14", f"s_lshl_b32 s{sT1}, s{sCTL}, 11", f"s_add_u32 s{sT0}, s{sT0}, s{sT1}", f"s_add_u32 s{sFL}, s{sT0}, {WS_Z}"]
    for t in range(4):
        o += sum4(t)
        for h in (0, 2): o += [f"v_pk_fma_f32 {vr(F+4*t+h, 2)}, {vr(ACC+t*16+h, 2)}, {vr(GA+4*t+h, 2)}, {vr(F+4*t+h, 2)}"]
        for j in (2*t, 2*t+1): o += rnd(F+2*j, F+2*j+1, XR+j)
        for h in (0, 2): o += [f"v_pk_mul_f32 {vr(Z+4*t+h, 2)}, {vr(F+4*t+h, 2)}, {vr(AV+4*t+h, 2)}"]
        for j in (2*t, 2*t+1): o += [f"v_cvt_pk_bf16_f32 v{ZP+j}, v{Z+2*j}, v{Z+2*j+1}"]
        if t & 1: o += [VM(f"buffer_store_dwordx4 {vr(ZP+2*(t-1), 4)}, v{vL16}, {WS}, s{sFL} offen offset:{(t >> 1)*1024} sc1", "zst")]
    if HY:
        o += [f"s_add_u32 s{sFL}, s{sFL}, {WS_X1 - WS_Z}"]
        o += [VM(f"buffer_store_dwordx4 {vr(XR+4*p, 4)}, v{vL16}, {WS}, s{sFL} offen offset:{p*1024} sc1", "zst") for p in range(2)]
    for j in range(0, 16, 2):
        x, z, a, b = vr(F+j, 2), vr(Z+j, 2), vr(AV+j, 2), vr(BV+j, 2); S = [vr(ST+2*k, 2) for k in range(6)]
        if j == 0:
            o += [f"v_pk_add_f32 {S[0]}, {x}, {vr(F+2, 2)}", f"v_pk_mul_f32 {S[1]}, {x}, {x}", f"v_pk_add_f32 {S[2]}, {z}, {vr(Z+2, 2)}",
                  f"v_pk_mul_f32 {S[3]}, {z}, {z}", f"v_pk_mul_f32 {S[4]}, {a}, {z}", f"v_pk_mul_f32 {S[5]}, {b}, {z}"]
        else:
            if j > 2: o += [f"v_pk_add_f32 {S[0]}, {S[0]}, {x}", f"v_pk_add_f32 {S[2]}, {S[2]}, {z}"]
            o += [f"v_pk_fma_f32 {S[1]}, {x}, {x}, {S[1]}", f"v_pk_fma_f32 {S[3]}, {z}, {z}, {S[3]}",
                  f"v_pk_fma_f32 {S[4]}, {a}, {z}, {S[4]}", f"v_pk_fma_f32 {S[5]}, {b}, {z}, {S[5]}"]
    o += [f"v_add_f32 v{ST+2*k}, v{ST+2*k}, v{ST+2*k+1}" for k in range(6)]
    o += [f"v_permlane16_swap_b32 v{ST+4*k}, v{ST+4*k+2}" for k in range(3)]
    o += [f"v_add_f32 v{ST+4*k}, v{ST+4*k}, v{ST+4*k+2}" for k in range(3)]
    o += [f"v_mov_b32 v{ST+10}, v{ST+8}", f"v_permlane32_swap_b32 v{ST}, v{ST+4}", f"v_permlane32_swap_b32 v{ST+8}, v{ST+10}",
          f"v_add_f32 v{ST}, v{ST}, v{ST+4}", f"v_add_f32 v{ST+1}, v{ST+8}, v{ST+10}",
          f"s_lshl_b32 s{sT0}, s{sRT}, 12", f"s_lshr_b32 s{sT1}, s{sCTL}, 1", f"s_lshl_b32 s{sT1}, s{sT1}, 10", f"s_add_u32 s{sT0}, s{sT0}, s{sT1}",
          f"s_and_b32 s{sT1}, s{sCTL}, 1", f"s_lshl_b32 s{sT1}, s{sT1}, 3", f"s_add_u32 s{sT0}, s{sT0}, s{sT1}", f"s_add_u32 s{sT0}, s{sT0}, {WS_STAT}",
          VM(f"buffer_store_dwordx2 {vr(ST, 2)}, v{vL16}, {WS}, s{sT0} offen sc1", "zst")]
    head, epi = flat(o[:cepi]), flat(o[cepi:])
    last = next(i for i, x in enumerate(epi) if x.vm == "zst")
    for k in reversed(range(len(w1q))): epi[(k*last)//len(w1q):(k*last)//len(w1q)] = flat(w1q[k])
    o = head + epi
    PRE = [("cw", i) for i in range(8) for t in range(4)]
    if upto < 4: return resolve_waits(flat(o), pre_vm=PRE)
    DA, XA, WF, DS, CO, B1, HB = 64, 120, 128, 160, 192, 200, 216
    EARR, UVS = 114688, 114688 + 3072
    vW, vW6, vWX, vE, vU, vU6, g4, c16 = 8, 9, 10, 11, 12, 13, 14, 15
    A2, B2_, TT = 16, 24, 32
    o += [f"v_lshlrev_b32 v{vT+1}, 5, v0", f"s_mul_i32 s{sT0}, s{sJ}, 12288", f"s_add_u32 s{sT0}, s{sT0}, {WS_MODF + 3*2048}"]
    o += [VM(f"buffer_load_dwordx4 {vr(r, 4)}, v{vT+1}, {WS}, s{sT0} offen offset:{off} sc1", "ab") for r, off in ((A2, 2048), (A2+4, 2064), (B2_, 0), (B2_+4, 16))]
    wl2, al2 = gemm_loads("e")
    if HY: o += ids2
    if upto >= 5:
        o += [f"s_mul_i32 s{sWB}, s{sCTL}, {56*4096}", f"s_mul_i32 s{sT0}, s{sW}, {14*4096}", f"s_add_u32 s{sWB}, s{sWB}, s{sT0}", f"s_add_u32 s{sWB}, s{sWB}, {WS_W2F}"]
    o += [W(vm="zst"), "s_barrier"] + st() + st("T")
    btw = [[w1_dma(g) for g in range(NW1, 7)]] + srd(sR, pB1, 3584) + [f"""
    s_and_b32 s{sODD}, s{sN}, 1
    s_lshl_b32 s{sPAIR}, s{sBLK}, 2
    s_add_u32 s{sPAIR}, s{sPAIR}, s{sW}
    v_lshrrev_b32 v{g4}, 4, v0
    v_and_b32 v{c16}, 15, v0
    s_lshl_b32 s{sT0}, s{sODD}, 10
    v_add_u32 v{vW}, s{sT0}, v{vL16}
    s_cmp_eq_u32 s{sODD}, 0
    s_cselect_b32 s{sT0}, 6144, 0
    v_add_u32 v{vW6}, s{sT0}, v{vL16}
    s_lshl_b32 s{sT0}, s{sW}, 11
    v_add_u32 v{vWX}, s{sT0}, v{vL16}
    v_min_u32 v{vE}, 2, v{c16}
    v_lshlrev_b32 v{vE}, 10, v{vE}
    v_lshl_add_u32 v{vE}, v{g4}, 3, v{vE}
    v_add_u32 v{vE}, {EARR}, v{vE}
    v_lshlrev_b32 v{vT}, 3, v{g4}
    s_mul_i32 s{sT0}, s{sN}, 224
    s_lshl_b32 s{sT1}, s{sODD}, 5
    s_add_u32 s{sT1}, s{sT1}, s{sT0}
    """]
    btw += [VM(f"buffer_load_dwordx2 {vr(B1+2*i, 2)}, v{vT}, s[{sR}:{sR+3}], s{sT1} offen offset:{i*32}", "b1") for i in range(6)]
    btw += [f"s_cmp_eq_u32 s{sODD}, 0", f"s_cselect_b32 s{sT1}, 192, 0", f"s_add_u32 s{sT1}, s{sT1}, s{sT0}",
            VM(f"buffer_load_dwordx2 {vr(B1+12, 2)}, v{vT}, s[{sR}:{sR+3}], s{sT1} offen", "b1")]
    btw += [W(vm="ab")] + [f"v_add_f32 v{A2+j}, 1.0, v{A2+j}" for j in range(8)]
    for j in range(4):
        btw += [f"v_cvt_pk_bf16_f32 v{TT+j}, v{A2+2*j}, v{A2+2*j+1}", f"v_cvt_pk_bf16_f32 v{TT+4+j}, v{B2_+2*j}, v{B2_+2*j+1}", f"v_mov_b32 v{TT+8+j}, 0x3f803f80"]
    for j in range(4): btw += [f"v_lshlrev_b32 v{A2+2*j}, 16, v{TT+j}", f"v_and_b32 v{A2+2*j+1}, 0xffff0000, v{TT+j}"]
    btw += [f"v_add_u32 v{vT}, {EARR}, v{vL16}"] + [LG(f"ds_write_b128 v{vT}, {vr(TT+4*k, 4)} offset:{k*1024}", "ew") for k in range(3)]
    SS = TT+12
    for j in range(0, 8, 2):
        a, b = vr(A2+j, 2), vr(B2_+j, 2); S = [vr(SS+2*k, 2) for k in range(5)]
        if j == 0: btw += [f"v_pk_add_f32 {S[0]}, {a}, {vr(A2+2, 2)}", f"v_pk_mul_f32 {S[1]}, {a}, {a}", f"v_pk_mul_f32 {S[2]}, {a}, {b}",
                           f"v_pk_add_f32 {S[3]}, {b}, {vr(B2_+2, 2)}", f"v_pk_mul_f32 {S[4]}, {b}, {b}"]
        else:
            if j > 2: btw += [f"v_pk_add_f32 {S[0]}, {S[0]}, {a}", f"v_pk_add_f32 {S[3]}, {S[3]}, {b}"]
            btw += [f"v_pk_fma_f32 {S[1]}, {a}, {a}, {S[1]}", f"v_pk_fma_f32 {S[2]}, {a}, {b}, {S[2]}", f"v_pk_fma_f32 {S[4]}, {b}, {b}, {S[4]}"]
    btw += [f"v_add_f32 v{SS+2*k}, v{SS+2*k}, v{SS+2*k+1}" for k in range(5)]
    for m in ("quad_perm:[1,0,3,2]", "quad_perm:[2,3,0,1]", "row_ror:4", "row_ror:8"):
        btw += [f"v_add_f32_dpp v{SS+2*k}, v{SS+2*k}, v{SS+2*k} {m} row_mask:0xf bank_mask:0xf" for k in range(5)]
    for sw in ("v_permlane16_swap_b32", "v_permlane32_swap_b32"):
        btw += [f"v_mov_b32 v{SS+2*k+1}, v{SS+2*k}" for k in range(5)] + [f"{sw} v{SS+2*k}, v{SS+2*k+1}" for k in range(5)]
        btw += [f"v_add_f32 v{SS+2*k}, v{SS+2*k}, v{SS+2*k+1}" for k in range(5)]
    btw += [f"v_readfirstlane_b32 s{sK+k}, v{SS+2*k}" for k in range(5)]
    c0 = -2*0.7978845608028654*1.4426950408889634
    btw += [f"s_mov_b32 s{sC0}, {fbits(c0)}", f"s_mov_b32 s{sC0+1}, s{sC0}", f"s_mov_b32 s{sC1}, {fbits(c0*0.044715)}", f"s_mov_b32 s{sC1+1}, s{sC1}",
            f"s_mov_b32 s{sONE}, 1.0", f"s_mov_b32 s{sONE+1}, 1.0",
            f"s_lshl_b32 s{sZ}, s{sPAIR}, 15", f"s_add_u32 s{sZ}, s{sZ}, {WS_Z}", f"s_add_u32 s{sZ+1}, s{sZ}, 16384",
            f"s_lshl_b32 s{sZ+2}, s{sPAIR}, 13", f"s_add_u32 s{sZ+2}, s{sZ+2}, {WS_STAT}", f"s_add_u32 s{sZ+3}, s{sZ+2}, 4096"]
    btw += [W(vm=[("w1", 6)], lg="ew"), "s_barrier"]
    def xr(s):
        b = WF + (s % 3)*12
        return ([f"v_add_u32 v{vWX}, 57344, v{vWX}"] if s == 8 else []) + \
               [LG(f"ds_read_b128 {vr(b+4*k, 4)}, v{vWX} offset:{(s & 7)*7168 + k*1024}", ("x", s)) for k in range(2)] + \
               [LG(f"ds_read_b64 {vr(b+8+2*hh, 2)}, v{vE} offset:{s*64 + hh*32}", ("x", s)) for hh in range(2)]
    NE2 = int(env['OV']('ne2', 0)); aft = []
    early2 = sum((wl2(i, wreg(i)) for i in range(NE2)), []) if upto >= 5 else []
    aft += xr(0) + xr(1)
    for s in range(16):
        b = WF + (s % 3)*12
        aft += [W(lg=[("x", s)])] + [f"v_mfma_f32_16x16x32_bf16 {vr(XA+4*k, 4)}, {vr(b+4*k, 4)}, {vr(b+8, 4)}, {'0' if s == 0 else vr(XA+4*k, 4)}" for k in range(2)]
        if s + 2 < 16: aft += xr(s + 2)
        if s % 2 and early2: aft += early2.pop(0)
    aft += [f"v_lshlrev_b32 v{vT}, 9, v{c16}", f"v_lshl_add_u32 v{vT}, v{g4}, 4, v{vT}", f"s_lshl_b32 s{sT0}, s{sW}, 7", f"s_add_u32 s{sT0}, s{sT0}, {UVS}",
            f"v_add_u32 v{vT}, s{sT0}, v{vT}", f"v_lshlrev_b32 v{vU6}, 4, v{g4}", f"s_lshl_b32 s{sT0}, s{sODD}, 6", f"s_add_u32 s{sT0}, s{sT0}, {UVS}",
            f"v_add_u32 v{vU}, s{sT0}, v{vU6}", f"s_cmp_eq_u32 s{sODD}, 0", f"s_cselect_b32 s{sT0}, 384, 0", f"s_add_u32 s{sT0}, s{sT0}, {UVS}",
            f"v_add_u32 v{vU6}, s{sT0}, v{vU6}"]
    aft += [LG(f"ds_write_b128 v{vT}, {vr(XA+4*k, 4)} offset:{k*64}", "uw") for k in range(2)] + [f"v_lshlrev_b32 v{vT+1}, 3, v0", W(lg="uw")]
    o += sync(2, sSUBZ, btw, aft) + st() + st("T")
    def Zf(s, r): return ar((s*2+r)*4, 4)
    def z_ld(s):
        g = []
        for r in range(2):
            x = [VM(f"buffer_load_dwordx4 {Zf(s, r)}, v{vL16}, {WS}, s{sZ+r} offen offset:{(s & 3)*1024} sc1", ("z", s))]
            if (s & 3) == 3: x.append(f"s_add_u32 s{sZ+r}, s{sZ+r}, 4096")
            g.append(x)
        return g
    o += [z_ld(s) for s in range(4)]
    stat = [VM(f"buffer_load_dwordx4 {vr(DS + r*16 + 4*c2, 4)}, v{vL16}, {WS}, s{sZ+2+r} offen offset:{c2*1024} sc1", "stat") for r in range(2) for c2 in range(4)]
    LA = 4
    frags = [(s, i) for s in range(16) for i in range(7)]; slots = []
    for f, (s, i) in enumerate(frags):
        for r in range(2):
            d = vr(DA + (i*2+r)*4, 4)
            slots.append(Slot(I(f"v_mfma_f32_16x16x32_bf16 {d}, {vr(WF + (f % 8)*4, 4)}, {Zf(s, r)}, {'0' if s == 0 else d}")))
        if f % 2 == 0: slots[2*f].pre.append(W(lg=[("wf", f+1)]))
        if i == 0: slots[2*f].pre.append(W(vm=[("z", s)]))
    def rd(f):
        s, i = frags[f]
        g = [f"v_add_u32 v{vW}, 57344, v{vW}", f"v_add_u32 v{vW6}, 57344, v{vW6}"] if (s, i) == (8, 0) else []
        return g, LG(f"ds_read_b128 {vr(WF + (f % 8)*4, 4)}, v{vW if i < 6 else vW6} offset:{(s & 7)*7168 + (i*1024 if i < 6 else 0)}", ("wf", f))
    for f in range(LA): o += [rd(f)[1]]
    for f in range(LA, len(frags)):
        g, x = rd(f); i = 2*(f - LA)
        if g: slots[i-1].alu += flat(g)
        slots[i].mem.append(x)
    GB, B2 = 16, 32
    ld = sum((z_ld(s) for s in range(4, 16)), []) + stat
    for k, g in enumerate(ld): slots[1 + 2*k].mem.append(g)
    if upto >= 5:
        NM2 = int(env['OV']('nm2', 6))
        for k, g in enumerate(early2 + sum((wl2(i, wreg(i)) for i in range(NE2, NM2)), [])): slots[int(env["OV"]("m2s", 90)) + int(env["OV"]("m2d", 5))*k].mem.append(g)
        ep = flat(srd(sR, pB2, 1024) + [f"v_lshlrev_b32 v{vT}, 3, v{g4}", modf(GB, 5), f"s_lshl_b32 s{sT0}, s{sCTL}, 7"] +
                  [VM(f"buffer_load_dwordx2 {vr(B2+2*t, 2)}, v{vT}, s[{sR}:{sR+3}], s{sT0} offen offset:{t*32}", "ep") for t in range(4)])
        if HY: ep += flat([f"s_lshl_b32 s{sT0}, s{sRT}, 14", f"s_lshl_b32 s{sT1}, s{sCTL}, 11", f"s_add_u32 s{sT0}, s{sT0}, s{sT1}", f"s_add_u32 s{sT0}, s{sT0}, {WS_X1}"] +
                          [VM(f"buffer_load_dwordx4 {vr(XR+4*p, 4)}, v{vL16}, {WS}, s{sT0} offen offset:{p*1024} sc1", "ep") for p in range(2)])
        for k, g in enumerate(ep): slots[171 + 2*k].mem.append(g)
    bg = []
    for r in range(2):
        b = DS + r*16
        for ct in range(1, 8): bg += [f"v_add_f32 v{b}, v{b}, v{b+2*ct}", f"v_add_f32 v{b+1}, v{b+1}, v{b+2*ct+1}"]
        S1, S5, S2, S3, S4, S6, M1, R1, T0, T1, T2 = b, b+1, b+2, b+3, b+4, b+5, b+6, b+7, b+8, b+9, b+10
        bg += [f"v_mov_b32 v{S2}, v{S1}", f"v_mov_b32 v{S6}, v{S5}", f"v_permlane16_swap_b32 v{S1}, v{S2}", f"v_permlane16_swap_b32 v{S5}, v{S6}",
               f"v_mov_b32 v{S3}, v{S1}", f"v_mov_b32 v{S4}, v{S2}", f"v_permlane32_swap_b32 v{S1}, v{S3}", f"v_permlane32_swap_b32 v{S2}, v{S4}"]
        n = fbits(1/512); al_, be, ga, de = CO+4*r, CO+4*r+1, CO+4*r+2, CO+4*r+3
        bg += [f"v_mul_f32 v{M1}, {n}, v{S1}",
               f"v_mul_f32 v{T0}, {n}, v{S2}", f"v_fma_f32 v{T0}, -v{M1}, v{M1}, v{T0}", f"v_add_f32 v{T0}, {fbits(EPS)}, v{T0}", f"v_rsq_f32 v{R1}, v{T0}",
               f"v_fma_f32 v{T0}, -v{M1}, s{sK}, v{S3}",
               f"v_mul_f32 v{T1}, s{sK+1}, v{M1}", f"v_fma_f32 v{T1}, -2.0, v{S5}, v{T1}", f"v_fma_f32 v{T1}, v{T1}, v{M1}, v{S4}",
               f"v_fma_f32 v{T2}, -v{M1}, s{sK+2}, v{S6}",
               f"v_fma_f32 v{T0}, v{T0}, v{R1}, s{sK+3}", f"v_mul_f32 v{T0}, {n}, v{T0}",
               f"v_mul_f32 v{T1}, v{T1}, v{R1}", f"v_fma_f32 v{T1}, 2.0, v{T2}, v{T1}", f"v_fma_f32 v{T1}, v{T1}, v{R1}, s{sK+4}",
               f"v_mul_f32 v{T1}, {n}, v{T1}", f"v_fma_f32 v{T1}, -v{T0}, v{T0}, v{T1}", f"v_add_f32 v{T1}, {fbits(EPS)}, v{T1}", f"v_rsq_f32 v{ga}, v{T1}",
               f"v_mul_f32 v{M1}, -1.0, v{M1}", f"v_mul_f32 v{al_}, v{R1}, v{ga}", f"v_mul_f32 v{de}, v{T0}, v{ga}", f"v_mul_f32 v{be}, v{M1}, v{al_}",
               f"v_mul_f32 v{de}, -1.0, v{de}"]
    bg[0] = [W(vm="stat"), bg[0]]
    spread(slots, bg, 130, 222)
    slots[14].alu += st("T")
    o += emit_slots(slots) + st() + st("T")
    U = [128, 140, 152]; BB, G = 164, 168
    def uvs(n): return [LG(f"ds_read_b128 {vr(U[n % 3]+4*k, 4)}, v{vU if n else vU6} offset:{k*512 + ((n-1)*64 if n else 0)}", ("u", n)) for k in range(3)]
    late = sum((wl2(i, wreg(i)) for i in range(NM2, 14)), []) if upto >= 5 else []
    sHF, sHH = sZ, sZ+2
    order = (6, 0, 1, 2, 3, 4, 5)
    o += uvs(0) + uvs(1) + [W(vm="b1"), f"v_mov_b32 v{BB+12}, s{sC0}", f"v_mov_b32 v{BB+13}, s{sC0}", f"""
    s_mul_i32 s{sT0}, s{sPAIR}, {2*57344}
    s_add_u32 s{sT0}, s{sT0}, {WS_H1}
    s_mul_i32 s{sT1}, s{sN}, 7
    s_add_u32 s{sT1}, s{sT1}, s{sODD}
    s_lshl_b32 s{sT1}, s{sT1}, 9
    s_add_u32 s{sHF}, s{sT0}, s{sT1}
    s_add_u32 s{sHF+1}, s{sHF}, 57344
    s_or_b32 s{sT1}, s{sN}, 1
    s_mul_i32 s{sT1}, s{sT1}, 7
    s_sub_u32 s{sT1}, s{sT1}, 1
    s_lshl_b32 s{sT1}, s{sT1}, 9
    s_add_u32 s{sHH}, s{sT0}, s{sT1}
    s_lshl_b32 s{sT1}, s{sODD}, 3
    s_add_u32 s{sHH}, s{sHH}, s{sT1}
    s_add_u32 s{sHH+1}, s{sHH}, 57344
    """]
    depi = []
    for n, i in enumerate(order):
        if n + 2 < 7: depi += uvs(n+2)
        depi += [f"v_lshlrev_b32 v{BB}, 16, v{B1+2*i}", f"v_and_b32 v{BB+1}, 0xffff0000, v{B1+2*i}",
                 f"v_lshlrev_b32 v{BB+2}, 16, v{B1+2*i+1}", f"v_and_b32 v{BB+3}, 0xffff0000, v{B1+2*i+1}", W(lg=[("u", n)])]
        u = U[n % 3]; cells = [(r, h) for r in range(2) for h in (0, 2)]
        Xv = lambda r, h: vr(DA + (i*2+r)*4 + h, 2)
        T = lambda r, h: vr(G + r*4 + h, 2)
        lo, hi = "op_sel:[0,0,0] op_sel_hi:[1,0,1]", "op_sel:[0,1,0] op_sel_hi:[1,1,1]"
        for r, h in cells: depi += [f"v_pk_fma_f32 {T(r,h)}, {vr(u+8+h,2)}, {vr(CO+4*r+2,2)}, {vr(BB+h,2)} {hi}"]
        for r, h in cells: depi += [f"v_pk_fma_f32 {T(r,h)}, {vr(u+4+h,2)}, {vr(CO+4*r+2,2)}, {T(r,h)} {lo}"]
        for r, h in cells: depi += [f"v_pk_fma_f32 {T(r,h)}, {vr(u+h,2)}, {vr(CO+4*r,2)}, {T(r,h)} {hi}"]
        for r, h in cells: depi += [f"v_pk_fma_f32 {Xv(r,h)}, {Xv(r,h)}, {vr(CO+4*r,2)}, {T(r,h)} {lo}"]
        for r, h in cells: depi += [f"v_pk_mul_f32 {T(r,h)}, {Xv(r,h)}, {Xv(r,h)}"]
        for r, h in cells: depi += [f"v_pk_fma_f32 {T(r,h)}, {T(r,h)}, s[{sC1}:{sC1+1}], {vr(BB+12,2)}"]
        for r, h in cells: depi += [f"v_pk_mul_f32 {T(r,h)}, {T(r,h)}, {Xv(r,h)}"]
        depi += [f"v_exp_f32 v{G+k}, v{G+k}" for k in range(8)]
        for r, h in cells: depi += [f"v_pk_add_f32 {T(r,h)}, {T(r,h)}, s[{sONE}:{sONE+1}]"]
        depi += [f"v_rcp_f32 v{G+k}, v{G+k}" for k in range(8)]
        for r, h in cells: depi += [f"v_pk_mul_f32 {Xv(r,h)}, {Xv(r,h)}, {T(r,h)}"]
        for r, h in cells:
            a = DA + (i*2+r)*4 + h
            depi += [f"v_cvt_pk_bf16_f32 v{HB + ((3*r + i//2)*4 + (i & 1)*2 if i < 6 else 24 + 2*r) + h//2}, v{a}, v{a+1}"]
        if i < 6 and i & 1:
            depi += [VM(f"buffer_store_dwordx4 {vr(HB+4*(3*r + i//2), 4)}, v{vL16}, {WS}, s{sHF+r} offen offset:{(i//2)*1024} sc1", "hst2") for r in range(2)]
        if i == 6:
            depi += [VM(f"buffer_store_dwordx2 {vr(HB+24+2*r, 2)}, v{vL16}, {WS}, s{sHH+r} offen sc1", "hst2") for r in range(2)]
    depi = flat(depi); NL2 = min(len(late), int(env['OV']('nl2', 4))); span = len(depi)*6//7
    for k in reversed(range(NL2)): depi[(k*span)//NL2:(k*span)//NL2] = flat(late[k])
    o += depi; late = late[NL2:]
    if upto < 5: return resolve_waits(flat(o), pre_vm=PRE)
    o += st("T") + [W(vm="hst2"), "s_barrier"] + st() + st("T")
    btw = [f"s_mul_i32 s{sA}, s{sRB}, {4*57344}", f"s_mul_i32 s{sT0}, s{sW}, {14*1024}", f"s_add_u32 s{sA}, s{sA}, s{sT0}", f"s_add_u32 s{sA}, s{sA}, {WS_H1}"]
    btw += rot_rows(57344) + srd(sR, pOUT, 2*MB)
    F2, BF = 40, 8
    btw += [W(vm="ep")] + late
    vOW, vOR = 8, 9
    btw += [f"""
    s_mul_i32 s{sT0}, s{sW}, 2304
    v_mul_u32_u24 v{vOW}, 144, v{c16}
    v_lshl_add_u32 v{vOW}, v{g4}, 3, v{vOW}
    v_add_u32 v{vOW}, s{sT0}, v{vOW}
    v_lshrrev_b32 v{vRM}, 3, v0
    v_and_b32 v{vG16}, 7, v0
    v_lshlrev_b32 v{vG16}, 4, v{vG16}
    v_mul_u32_u24 v{vOR}, 144, v{vRM}
    v_add3_u32 v{vOR}, v{vOR}, v{vG16}, s{sT0}
    v_lshl_add_u32 v{vRM}, v{vRM}, 10, v{vG16}
    """]
    for j in range(8): btw += [f"v_lshlrev_b32 v{F2+2*j}, 16, v{B2+j}", f"v_and_b32 v{F2+2*j+1}, 0xffff0000, v{B2+j}"]
    o += sync(3, sSUB, btw) + st() + st("T")
    o += [al2(i) for i in range(8)]
    o += gemm("e", 14, wl2, al2, lambda i: []) + st("T")
    o += reduce_waves()
    F = AR
    for j in range(8): o += [f"v_lshlrev_b32 v{F+2*j}, 16, v{XR+j}", f"v_and_b32 v{F+2*j+1}, 0xffff0000, v{XR+j}"]
    o += [f"s_lshl_b32 s{sT0}, s{sRT}, 14", f"s_lshl_b32 s{sT1}, s{sCTL}, 7", f"s_add_u32 s{sT0}, s{sT0}, s{sT1}"]
    for t in range(4):
        b = ACC + t*16
        o += sum4(t)
        for h in (0, 2): o += [f"v_pk_add_f32 {vr(b+h, 2)}, {vr(b+h, 2)}, {vr(F2+4*t+h, 2)}"]
        for h in (0, 2): o += [f"v_pk_fma_f32 {vr(F+4*t+h, 2)}, {vr(b+h, 2)}, {vr(GB+4*t+h, 2)}, {vr(F+4*t+h, 2)}"]
        o += [f"v_cvt_pk_bf16_f32 v{XR+2*t}, v{F+4*t}, v{F+4*t+1}", f"v_cvt_pk_bf16_f32 v{XR+2*t+1}, v{F+4*t+2}, v{F+4*t+3}",
              LG(f"ds_write_b64 v{vOW}, {vr(XR+2*t, 2)} offset:{t*32}", "ow")]
    o += [W(lg="ow")] + [LG(f"ds_read_b128 {vr(XR+4*k, 4)}, v{vOR} offset:{k*8*144}", ("or", k)) for k in range(2)]
    for k in range(2): o += [W(lg=[("or", k)]), VM(f"buffer_store_dwordx4 {vr(XR+4*k, 4)}, v{vRM}, s[{sR}:{sR+3}], s{sT0} offen sc1"), f"s_add_u32 s{sT0}, s{sT0}, 8192"]
    return resolve_waits(flat(o), pre_vm=PRE)
```

```python
from common import *
from flay import *

def fused(name, ts=False, opt="", upto=9):
    N = name
    NT = " nt" if "nt" in opt.split() else ""
    NT1 = " nt" if "nt1" in opt.split() or NT else ""
    NTT = " nt" if "ntt" in opt.split() or NT else ""
    sW, sHEAD, sJ, sC = 3, 4, 5, 6
    sWS = 8; WS = "s[8:11]"
    sT0, sT1 = 76, 77
    pX, pB1, pB2, pOUT = 92, 94, 96, 98
    vL16 = 1
    nstamp = [0]; env = {}
    SM = "A" if "stA" in opt else ("B" if "stB" in opt else ("P" if "stP" in opt else ("T" if "stT" in opt else "")))
    def st(kind=""):
        if not ts or nstamp[0] >= 15 or kind != SM: return []
        nstamp[0] += 1
        return [stamp(nstamp[0] - 1)]
    def finish():
        r = []
        if ts:
            r += ["s_waitcnt vmcnt(0)", stamp(15), "s_waitcnt lgkmcnt(0)", "v_mov_b32 v2, s100", "v_mov_b32 v3, s74",
                  "s_lshl_b32 s76, s2, 2", f"s_add_u32 s76, s76, s{sW}", "s_lshl_b32 s77, s76, 3", f"s_add_u32 s77, s77, {WS_TS}",
                  f"buffer_store_dwordx2 v[2:3], off, {WS}, s77", "s_lshl_b32 s77, s76, 6", f"s_add_u32 s77, s77, {WS_TS + 65536}"]
            for q in range(0, 16, 4):
                r += [f"v_mov_b32 v{4+j}, s{44+2*(q+j)}" for j in range(4)]
                r += [f"buffer_store_dwordx4 v[4:7], off, {WS}, s77 offset:{q*4}", "s_nop 1"]
        return flat(r + [f"Lend_{N}:", "s_endpgm"]) + env["fallback"] + flat([f"Lcode_end_{N}:", "s_endpgm"])
    def rnd(r0, r1, t): return [f"v_cvt_pk_bf16_f32 v{t}, v{r0}, v{r1}", f"v_lshlrev_b32 v{r0}, 16, v{t}", f"v_and_b32 v{r1}, 0xffff0000, v{t}"]
    HY = "hy" in opt.split()
    XL = "noxl" not in opt.split() and not HY
    def flag_off(dst, kind, own, line=None):
        if (XL and kind >= 2) or (HY and kind == 3):
            r = [f"s_and_b32 s{dst}, s2, 7", f"s_lshl_b32 s{dst}, s{dst}, 7", f"s_add_u32 s{dst}, s{dst}, {WS_FLAG + 1024 + kind*1024}"]
            if own: r += [f"s_lshr_b32 s{sT0}, s2, 3", f"s_lshl_b32 s{sT0}, s{sT0}, 2", f"s_add_u32 s{dst}, s{dst}, s{sT0}"]
            return r + [f"s_cmp_eq_u32 s{sW}, 0", f"s_cselect_b32 s{dst}, s{dst}, {OOB:#x}"]
        r = [f"s_lshl_b32 s{dst}, s{sJ if line is None else line}, 7", f"s_add_u32 s{dst}, s{dst}, {WS_FLAG + 1024 + kind*1024}"]
        if own: r += [f"s_lshl_b32 s{sT0}, s{sC}, 2", f"s_add_u32 s{dst}, s{dst}, s{sT0}"]
        return r + [f"s_cmp_eq_u32 s{sW}, 0", f"s_cselect_b32 s{dst}, s{dst}, {OOB:#x}"]
    def publish(vt, soff):
        return [f"v_min_u32 v{vt}, 1, v0", f"v_lshlrev_b32 v{vt}, 27, v{vt}", f"v_mov_b32 v{vt+1}, 1",
                VM(f"buffer_store_dword v{vt+1}, v{vt}, {WS}, s{soff} offen sc1", "flag")]
    nsp = [0]
    def check(load, test, scnt, tag, mask=None, every=False):
        nsp[0] += 1; k = f"{N}_{nsp[0]}"
        test = [test, "s_cmp_lg_u64 vcc, 0" if mask is None else f"s_and_b64 vcc, vcc, s[{mask}:{mask+1}]"]
        return flat([W(vm=tag), [] if every else [f"s_cmp_lg_u32 s{sW}, 0", f"s_cbranch_scc1 Lok{k}"], test, f"s_cbranch_scc0 Lok{k}", f"s_mov_b32 s{scnt}, 0x80000",
                     f"Lsp{k}:", f"s_sub_u32 s{scnt}, s{scnt}, 1", f"s_cbranch_scc1 Lok{k}", "s_sleep 1", load, It("s_waitcnt vmcnt(0)", k="cond"), test,
                     f"s_cbranch_scc1 Lsp{k}", f"Lok{k}:"])

    sCKV, sWK, sWV, sMOD, sCV, sX, sDBG, sCODE = 12, 16, 20, 24, 28, 32, 36, 40
    sWQ, sWO, sU2 = sMOD, sCV, sCODE
    sCOFF, sWKOFF, sWVOFF, sKST, sVST, sM0C, sM0K, sMST, sATO, sADD, sMF, sHST, sSPIN, sRS0 = range(78, 92)
    sRS1 = 7; sMEAN0, sMEAN1 = sMST, sATO
    vWD, vTR, vCD, vCR, vT = 2, 6, 10, 14, 16
    WF, X, ACC = 32, 64, 128
    RING, CBUF, CW = 0, 65536, 24576
    MODRED, MODV, HSTA = 49152, CBUF + 16384, CBUF + CW + 16384
    o = ["s_cmp_ge_u32 s2, 256", f"s_cbranch_scc1 Lend_{N}"] + load_args()
    if ts: o += ["s_memrealtime s[100:101]" if not CYC else "s_memtime s[100:101]"]
    o += [f"s_getpc_b64 s[{sCODE}:{sCODE+1}]", f"Lpc_{N}:", f"s_mov_b32 s{sCODE+2}, Lcode_end_{N}-Lpc_{N}", f"s_mov_b32 s{sCODE+3}, 0x20000",
          f"v_lshlrev_b32 v{vT}, 7, v0", VM(f"buffer_load_dword v{vT+1}, v{vT}, s[{sCODE}:{sCODE+3}], 0 offen", "code")]
    o += [f"""
    v_lshrrev_b32 v{vT+2}, 6, v0
    v_and_b32 v0, 63, v0
    v_readfirstlane_b32 s{sW}, v{vT+2}
    v_lshlrev_b32 v{vL16}, 4, v0
    s_and_b32 s{sHEAD}, s2, 7
    s_lshl_b32 s{sHEAD}, s{sHEAD}, 2
    s_bfe_u32 s{sT0}, s2, 0x20003
    s_add_u32 s{sHEAD}, s{sHEAD}, s{sT0}
    s_lshr_b32 s{sJ}, s2, 5
    s_and_b32 s{sC}, s2, 31
    v_lshrrev_b32 v{vT+2}, 3, v0
    v_and_b32 v{vT+3}, 7, v0
    """]
    r8, c8 = vT+2, vT+3
    o += [f"""
    v_mul_u32_u24 v{vT+4}, 6144, v{r8}
    v_lshl_add_u32 v{vT+4}, v{c8}, 4, v{vT+4}
    v_lshlrev_b32 v{vT+5}, 1, v{r8}
    v_lshrrev_b32 v{vT+6}, 1, v{r8}
    v_xor_b32 v{vT+6}, v{vT+6}, v{c8}
    v_lshlrev_b32 v{vT+6}, 4, v{vT+6}
    v_lshl_add_u32 v{vCD}, v{r8}, 10, v{vT+6}
    v_xor_b32 v{vCD+1}, 64, v{vCD}
    v_add_u32 v{vCD+1}, {7*1024}, v{vCD+1}
    v_add_u32 v{vCD+2}, {14*1024}, v{vCD}
    v_add_u32 v{vCD+3}, {14*1024}, v{vCD+1}
    v_and_b32 v{vT+6}, 2, v{r8}
    v_xor_b32 v{vT+6}, v{vT+6}, v{c8}
    v_lshlrev_b32 v{vT+6}, 4, v{vT+6}
    v_lshl_add_u32 v{vWD}, v{r8}, 13, v{vT+6}
    v_xor_b32 v{vWD+1}, 64, v{vWD}
    v_add_u32 v{vWD+1}, {65536-1024}, v{vWD+1}
    v_add_u32 v{vWD+2}, {2*(65536-1024)}, v{vWD}
    v_add_u32 v{vWD+3}, {2*(65536-1024)}, v{vWD+1}
    s_and_b32 s{sT0}, s2, 3
    s_lshl_b32 s{sT0}, s{sT0}, 7
    s_lshl_b32 s{sT1}, s{sW}, 5
    s_add_u32 s{sMF}, s{sT0}, s{sT1}
    s_lshl_b32 s{sHST}, s{sMF}, 1
    s_mul_i32 s{sMF}, s{sMF}, 6144
    s_lshr_b32 s{sMST}, s2, 2
    s_lshl_b32 s{sMST}, s{sMST}, 7
    s_add_u32 s{sMF}, s{sMF}, s{sMST}
    s_lshl_b32 s{sCOFF}, s{sJ}, 18
    s_lshl_b32 s{sT0}, s{sW}, 16
    s_add_u32 s{sCOFF}, s{sCOFF}, s{sT0}
    s_mul_i32 s{sM0C}, s{sW}, {CW}
    s_add_u32 s{sM0C}, s{sM0C}, {CBUF}
    s_and_b32 s{sT0}, s{sW}, 1
    s_lshl_b32 s{sWKOFF}, s{sT0}, 18
    s_lshr_b32 s{sT1}, s{sW}, 1
    s_lshl_b32 s{sT1}, s{sT1}, 7
    s_add_u32 s{sWKOFF}, s{sWKOFF}, s{sT1}
    s_lshl_b32 s{sT1}, s{sHEAD}, 8
    s_add_u32 s{sWKOFF}, s{sWKOFF}, s{sT1}
    s_lshl_b32 s{sWVOFF}, s{sW}, 18
    s_add_u32 s{sWVOFF}, s{sWVOFF}, s{sT1}
    s_lshl_b32 s{sM0K}, s{sW}, 12
    s_waitcnt lgkmcnt(0)
    """]
    if SM == "P": o += ["s_memrealtime s[92:93]"]
    o += srd(sMOD, P("wmod"), 512*6144) + srd(sCV, P("c"), 1024) + ["s_cmp_lt_u32 s2, 192", f"s_cselect_b32 s{sMOD+2}, s{sMOD+2}, 0"]
    MW, MC, MA, MT = 64, 80, 84, 92
    for n in range(4): o += [VM(f"buffer_load_ushort v{MC+n}, v{vT+5}, s[{sCV}:{sCV+3}], s{sHST} offen offset:{16*n}", "modc")]
    for n in range(4):
        o += [VM(f"buffer_load_dwordx4 v[{MW+4*n}:{MW+4*n+3}], v{vT+4}, s[{sMOD}:{sMOD+3}], s{sMF} offen{NT1}", ("modw", n))]
        if n < 3: o += [f"s_add_u32 s{sMF}, s{sMF}, {8*6144}"]
    o += srd(sCKV, P("ckv"), 2*MB) + srd(sWK, P("wuk"), 4*MB)
    def c_dma(i):
        g = []
        for hh in range(2):
            grp = [f"s_add_u32 m0, s{sM0C}, {(i % 3)*8192 + hh*4096}", f"s_add_u32 s{sRS0}, s{sCOFF}, {i*128 + hh*32768}"]
            for n in range(4):
                grp.append(VM(f"buffer_load_dwordx4 v{vCD+n}, s[{sCKV}:{sCKV+3}], s{sRS0} offen offset:{n*1024}{' nt' if 'ntc' in opt.split() else ''} lds", ("c", i)))
                g.append(grp); grp = []
        return SEQ(g)
    def page(q): return RING + (q % 4) * 16384
    def w_dma(q):
        sTW = sRS1 if q <= 2 else sT1
        if q < 8: sd, off, m0 = sWK, f"s_add_u32 s{sTW}, s{sWKOFF}, {q*64*8192}", f"s{sM0K}, {page(q)}"
        elif q < 16:
            sd, off = sWV, f"s_add_u32 s{sTW}, s{sWVOFF}, {((q-8)&3)*128*8192 + ((q-8)>>2)*128}"
            m0 = f"s{sM0K}, {page(q)}" if q < 12 else f"s{sM0C}, {(q-12)*4096}"
        else: sd, off, m0 = sWQ, f"s_add_u32 s{sTW}, s{sWKOFF}, {(q-16)*64*8192}", f"s{sM0K}, {(q-16)*16384}"
        g = []; grp = [f"s_add_u32 m0, {m0}", off]
        for n in range(4):
            grp.append(VM(f"buffer_load_dwordx4 v{vWD+n}, s[{sd}:{sd+3}], s{sTW} offen offset:{n*1024}{' nt' if q < 8 and 'ntk' in opt.split() else NT} lds", ("w", q)))
            g.append(grp); grp = []
        return SEQ(g)
    o += [c_dma(0), w_dma(0)] + (["s_memrealtime s[94:95]"] if SM == "P" else []) + srd(sWV, P("wuv"), 4*MB)
    OPT = opt.split()
    def OV(k, d): return next((x.split("=")[1] for x in OPT if x.startswith(k + "=")), d)
    vTD = vT+1
    vPC, vPW = 96, 97
    def pf_addr(vc, vw):
        return [f"v_lshrrev_b32 v{vw}, 4, v0", f"v_and_b32 v{vc}, 15, v0", f"v_lshlrev_b32 v{vc}, 4, v{vc}",
                f"v_lshl_add_u32 v{vw+1}, v{vw}, 13, v{vc}", f"v_lshl_add_u32 v{vc}, v{vw}, 10, v{vc}", f"v_mov_b32 v{vw}, v{vw+1}"]
    def pf_c(dummy):
        g = []; grp = [f"s_add_u32 m0, s{sM0C}, {dummy}", f"s_bfe_u32 s{sRS0}, s2, 0x20003", f"s_lshl_b32 s{sRS0}, s{sRS0}, 16", f"s_lshl_b32 s{sRS1}, s{sJ}, 18",
                       f"s_add_u32 s{sRS0}, s{sRS0}, s{sRS1}", f"s_lshl_b32 s{sRS1}, s{sW}, 14", f"s_add_u32 s{sRS0}, s{sRS0}, s{sRS1}"]
        for col in range(1, 4):
            for rg in range(4):
                grp += [f"s_add_u32 s{sRS1}, s{sRS0}, {rg*4096 + col*256}", VM(f"buffer_load_dwordx4 v{vPC}, s[{sCKV}:{sCKV+3}], s{sRS1} offen lds", "pf")]
                g.append(grp); grp = []
        return SEQ(g)
    def pf_w(sd, vw, dummy, first, sRS0=sRS0, sRS1=sRS1):
        g = []; grp = [f"s_add_u32 m0, s{sM0C}, {dummy}", f"s_lshr_b32 s{sRS0}, s{sW}, 1", f"s_lshl_b32 s{sRS0}, s{sRS0}, 3", f"s_add_u32 s{sRS0}, s{sRS0}, s{sJ}",
                       f"s_lshl_b32 s{sRS0}, s{sRS0}, 1", f"s_and_b32 s{sRS1}, s{sW}, 1", f"s_add_u32 s{sRS0}, s{sRS0}, s{sRS1}", f"s_lshl_b32 s{sRS0}, s{sRS0}, 15",
                       f"s_lshl_b32 s{sRS1}, s{sHEAD}, 8", f"s_add_u32 s{sRS0}, s{sRS0}, s{sRS1}"]
        for q in range(first, 8, 2):
            grp += [f"s_add_u32 s{sRS1}, s{sRS0}, {q*64*8192}", VM(f"buffer_load_dwordx4 v{vw}, s[{sd}:{sd+3}], s{sRS1} offen{NTT} lds", "pf")]
            g.append(grp); grp = []
        return SEQ(g)
    PF = "nopf" not in OPT
    o += pf_addr(vPC, vPW)
    pfa = (pf_w(sWK, vPW, 16384, 2) if "pfk" in OPT else []) + (pf_c(16384) if "pfc" in OPT else [])
    NPRE = int(OV("npre", 2))
    ilv = sum((c_dma(i) + w_dma(i) for i in range(1, NPRE + 1)), []) if "ilv" in OPT else []
    pro0 = len(o)
    o += ([] if ilv else [c_dma(1), w_dma(1)]) + ([pfa] if "pfpre" in OPT else []) + (["s_memrealtime s[96:97]"] if SM == "P" else []) + srd(sWS, P("ws"), WS_SIZE)
    KF, VF, SF = 0, 5120, 6144
    vZA, vZD = vT+14, vT+15
    o += [f"""
    v_lshlrev_b32 v{vZA}, 10, v0
    s_lshl_b32 s{sT0}, s{sJ}, 7
    s_lshl_b32 s{sT1}, s{sC}, 2
    s_add_u32 s{sT0}, s{sT0}, s{sT1}
    v_add_u32 v{vZA}, s{sT0}, v{vZA}
    s_lshl_b32 s{sT0}, s{sHEAD}, 5
    s_lshl_b32 s{sT1}, s{sJ}, 2
    s_add_u32 s{sT0}, s{sT0}, s{sT1}
    v_writelane_b32 v{vZA}, s{sT0}, 0
    s_add_u32 s{sT0}, s{sT0}, {VF}
    v_writelane_b32 v{vZA}, s{sT0}, 5
    s_lshl_b32 s{sT0}, s2, 2
    s_add_u32 s{sT0}, s{sT0}, {SF}
    v_writelane_b32 v{vZA}, s{sT0}, 6
    v_mov_b32 v{vZD}, {1 << 27}
    v_cmp_gt_u32 vcc, 7, v0
    v_cndmask_b32 v{vZA}, v{vZD}, v{vZA}, vcc
    v_mov_b32 v{vZD}, 0
    s_mov_b32 s{sSPIN}, {WS_FLAG}
    s_cmp_eq_u32 s{sW}, 0
    s_cselect_b32 s{sSPIN}, s{sSPIN}, {OOB:#x}
    """, VM(f"buffer_store_dword v{vZD}, v{vZA}, {WS}, s{sSPIN} offen sc1", "zero")]
    for i in (32768, 65536):
        o += [f"s_mov_b32 s{sT0}, {i}", VM(f"buffer_load_dword v{vT+1}, v{vT}, s[{sCODE}:{sCODE+3}], s{sT0} offen", "code2")]
    o += srd(sX, P("x"), 2*MB) + srd(sDBG, P("dbg"), 256) + srd(sWQ, P("wq"), 4*MB) + srd(sWO, P("wo"), 4*MB)
    EARLY = "s_waitcnt lgkmcnt(0)\ns_mov_b32 s66, s92\ns_mov_b32 s68, s94\ns_mov_b32 s72, s96" if SM == "P" else ""
    o += srd(sU2, P("w1"), 1792*1024) + [f"""
    s_mov_b64 s[0:1], s[{P('w2')}:{P('w2')+1}]
    {EARLY}
    s_mov_b64 s[{pX}:{pX+1}], s[{P('x')}:{P('x')+1}]
    s_mov_b64 s[{pB1}:{pB1+1}], s[{P('b1')}:{P('b1')+1}]
    s_mov_b64 s[{pB2}:{pB2+1}], s[{P('b2')}:{P('b2')+1}]
    s_mov_b64 s[{pOUT}:{pOUT+1}], s[{P('out')}:{P('out')+1}]
    v_lshrrev_b32 v{vT+6}, 4, v0
    v_bfe_u32 v{vT+7}, v0, 2, 2
    v_lshl_add_u32 v{vT+8}, v{vT+6}, 3, v{vT+7}
    v_lshlrev_b32 v{vT+8}, 7, v{vT+8}
    v_and_b32 v{vT+9}, 3, v0
    v_lshl_add_u32 v{vT+8}, v{vT+9}, 3, v{vT+8}
    v_and_b32 v{vT+9}, 1, v{vT+6}
    v_lshlrev_b32 v{vT+9}, 1, v{vT+9}
    v_lshrrev_b32 v{vT+10}, 1, v{vT+7}
    v_or_b32 v{vT+9}, v{vT+9}, v{vT+10}
    v_lshl_add_u32 v{vTR}, v{vT+9}, 5, v{vT+8}
    v_xor_b32 v{vTR+1}, 32, v{vTR}
    v_xor_b32 v{vTR+2}, 64, v{vTR}
    v_xor_b32 v{vTR+3}, 0x60, v{vTR}
    v_and_b32 v{vT+7}, 15, v0
    v_lshrrev_b32 v{vT+8}, 1, v{vT+7}
    v_xor_b32 v{vT+8}, v{vT+8}, v{vT+6}
    v_lshlrev_b32 v{vT+8}, 4, v{vT+8}
    v_lshl_add_u32 v{vT+8}, v{vT+7}, 7, v{vT+8}
    v_add_u32 v{vCR}, s{sM0C}, v{vT+8}
    v_xor_b32 v{vCR+1}, 64, v{vCR}
    s_lshl_b32 s{sKST}, s{sHEAD}, 20
    s_lshl_b32 s{sT0}, s{sJ}, 17
    s_add_u32 s{sKST}, s{sKST}, s{sT0}
    s_lshl_b32 s{sT0}, s{sW}, 15
    s_add_u32 s{sKST}, s{sKST}, s{sT0}
    s_add_u32 s{sVST}, s{sKST}, 16384
    s_and_b32 s{sT0}, s2, 3
    s_mul_i32 s{sT0}, s{sT0}, 12288
    s_lshl_b32 s{sMST}, s{sMST}, 1
    s_add_u32 s{sMST}, s{sMST}, s{sT0}
    s_add_u32 s{sMST}, s{sMST}, {WS_MODP}
    s_cmp_lt_u32 s2, 192
    s_cselect_b32 s{sT0}, s{sW}, 1
    s_cmp_eq_u32 s{sT0}, 0
    s_cselect_b32 s{sMST}, s{sMST}, {OOB:#x}
    s_and_b32 s{sATO}, s2, 63
    s_lshl_b32 s{sATO}, s{sATO}, 2
    s_cmp_eq_u32 s{sW}, 0
    s_cselect_b32 s{sATO}, s{sATO}, 256
    s_cmp_ge_u32 s{sW}, 2
    s_cselect_b32 s{sADD}, 1.0, 0
    """]
    o += st("P") + [W(vm="code" if SM == "P" else "modc")] + st("P") + [W(vm="modc")] + st("P")
    for n in range(4): o += [f"v_lshlrev_b32 v{MC+n}, 16, v{MC+n}"]
    for n in range(4): o += [f"v_mul_f32 v{MT+n}, {fbits(-1.4426950408889634)}, v{MC+n}"]
    for n in range(4): o += [f"v_exp_f32 v{MT+n}, v{MT+n}"]
    for n in range(4): o += [f"v_add_f32 v{MT+n}, 1.0, v{MT+n}"]
    for n in range(4): o += [f"v_rcp_f32 v{MT+n}, v{MT+n}"]
    for n in range(4): o += [f"v_mul_f32 v{MC+n}, v{MC+n}, v{MT+n}"]
    for n in range(4): o += [f"v_cvt_pk_bf16_f32 v{MC+n}, v{MC+n}, v{MC+n}"]
    for n in range(4): o += [f"v_lshlrev_b32 v{MC+n}, 16, v{MC+n}"]
    for n in range(4):
        o += [W(vm=[("modw", n)])]
        for j in range(4):
            o += [f"v_lshlrev_b32 v{MT}, 16, v{MW+4*n+j}", f"v_and_b32 v{MT+1}, 0xffff0000, v{MW+4*n+j}"]
            if n == 0: o += [f"v_mul_f32 v{MA+2*j}, v{MC}, v{MT}", f"v_mul_f32 v{MA+2*j+1}, v{MC}, v{MT+1}"]
            else: o += [f"v_fmac_f32 v{MA+2*j}, v{MC+n}, v{MT}", f"v_fmac_f32 v{MA+2*j+1}, v{MC+n}, v{MT+1}"]
    for j in range(8): o += [f"v_add_f32_dpp v{MA+j}, v{MA+j}, v{MA+j} row_ror:8 row_mask:0xf bank_mask:0xf"]
    for j in range(0, 8, 2): o += [f"v_permlane16_swap_b32 v{MA+j}, v{MA+j+1}"]
    for j in range(0, 8, 2): o += [f"v_add_f32 v{MA+j}, v{MA+j}, v{MA+j+1}"]
    for j in (0, 4): o += [f"v_permlane32_swap_b32 v{MA+j}, v{MA+j+2}"]
    for j in (0, 4): o += [f"v_add_f32 v{MA+j}, v{MA+j}, v{MA+j+2}"]
    vL4, vL256, vONE = vT+4, vT+5, vT+6
    o += [f"""
    v_lshrrev_b32 v{MT}, 4, v0
    v_lshl_add_u32 v{MT}, v{c8}, 3, v{MT}
    v_lshlrev_b32 v{MT}, 2, v{MT}
    s_lshl_b32 s{sT0}, s{sW}, 8
    v_add_u32 v{MT}, s{sT0}, v{MT}
    """, LG(f"ds_write_b32 v{MT}, v{MA} offset:{MODRED}", "mr"), LG(f"ds_write_b32 v{MT}, v{MA+4} offset:{MODRED+16}", "mr"),
    f"v_lshlrev_b32 v{vL4}, 2, v0", f"v_lshlrev_b32 v{vL256}, 8, v0", f"v_mov_b32 v{vONE}, 1"]
    def Cfrag(kt, s): return ar((s*4+kt)*4, 4)
    def c_reads(i):
        return [LG(f"ds_read_b128 {Cfrag(kt, 2*i+sp)}, v{vCR+sp} offset:{(i % 3)*8192 + kt*2048}", ("cr", i)) for sp in range(2) for kt in range(4)]
    if ilv:
        rest = scc_groups(o[pro0:]); n_ = len(rest)
        for k in reversed(range(len(ilv))): rest.insert((k*n_)//len(ilv), ilv[k])
        o = o[:pro0] + rest
    o += st("P") + [W(vm=[("c", 0)])] + st("P") + [c_reads(0), W(vm=[("w", 0)], lg="mr")] + st("P") + ["s_barrier"] + st("P")

    QA, HR = 64, 192
    aK, aV = 128, 160
    def accK(dt, kt): return ACC + (dt*4+kt)*4
    def acc(dt, qi): return QA + (dt*4+qi)*4
    def Hf(s, qi): return vr(HR + ((s & 3)*4+qi)*4, 4, "a" if s & 4 else "v")
    frags = []
    for s2 in range(0, 16, 2):
        for dt in range(8):
            for s in (s2, s2+1):
                frags.append((s >> 1, page(s >> 1) + (dt >> 2)*8192 + (s & 1)*4096, dt & 3, [(accK(dt, kt), "W", Cfrag(kt, s), s == 0) for kt in range(4)]))
    for s2 in range(0, 16, 2):
        for t in range(4):
            for s in (s2, s2+1):
                frags.append((8 + (s >> 2), page(8 + (s >> 2)) + (s & 3)*4096, t, [(X + (t*4+kt)*4, Cfrag(kt, s), "W", s == 0) for kt in range(4)]))
    for hb in range(2):
        for s2 in range(0, 16, 2):
            for t in (2*hb, 2*hb+1):
                for s in (s2, s2+1):
                    frags.append((12 + (s >> 2), CBUF + (s & 3)*CW + (s >> 2)*4096, t, [(ACC + (t*4+kt)*4, Cfrag(kt, s), "W", s == 0) for kt in range(4)]))
    for s2 in range(0, 16, 2):
        for dt in range(8):
            for s in (s2, s2+1):
                frags.append((16 + (s >> 1), (s >> 1)*16384 + (dt >> 2)*8192 + (s & 1)*4096, dt & 3, [(acc(dt, qi), "W", Hf(s, qi), s == 0) for qi in range(4)]))
    def wreg(f): return ("v", WF + (f % 8)*4) if f < 256 else ("a", aK + (f % 16)*4)
    slots = []
    CH = "nochain" not in OPT
    for f in range(0, len(frags), 2):
        for n, k in ([(n, k) for n in range(4) for k in range(2)] if CH else [(n, k) for k in range(2) for n in range(4)]):
            fl, r = wreg(f + k); wf = vr(r, 4, fl); d, a_, b_, first = frags[f + k][3][n]
            sl = Slot(I(f"v_mfma_f32_16x16x32_bf16 {vr(d,4)}, {wf if a_ == 'W' else a_}, {wf if b_ == 'W' else b_}, {'0' if first else vr(d,4)}"))
            if n == 0 and k == 0:
                sl.pre.append(W(lg=[("wf", f+1)]))
                if f < 128 and f % 16 == 0: sl.pre.append(W(lg=[("cr", f//16)]))
                if f >= 256 and f % 16 == 0: sl.pre.append(W(vm=[("h", (f-256)//8 + 1)]))
            slots.append(sl)
    LA = 4
    wbase = [0]; bar = {}
    vTR2 = vCD
    def frag_reads(f):
        q, a, t, _ = frags[f]; g = []
        fl, r = wreg(f)
        if a >= 131072: return g, [LG(f"ds_read_b64_tr_b16 {vr(r+2*hh, 2, fl)}, v{vTR2+t} offset:{a - 131072 + hh*512}", ("wf", f)) for hh in range(2)]
        wb = a & 65536
        if wb != wbase[0]:
            g += [f"v_xor_b32 v{vTR+i}, 0x10000, v{vTR+i}" for i in range(4)]; wbase[0] = wb
        return g, [LG(f"ds_read_b64_tr_b16 {vr(r+2*hh, 2, fl)}, v{vTR+t} offset:{a - wb + hh*512}", ("wf", f)) for hh in range(2)]
    for f in range(LA):
        g, rd = frag_reads(f); o += g + rd
    valid = {0}
    VAL = {12: [12, 13, 14, 15], 16: [16, 17, 18, 19]}
    for f in range(LA, len(frags)):
        q = frags[f][0]; i = (f - LA)*4
        if q not in valid or (q > 16 and f % 16 == 0):
            qs = VAL.get(q, [q]); valid.update(qs); bar[q] = i - 1
            slots[i-1].alu += [W(vm=[("w", x) for x in qs]), I("s_barrier")]
        g, rd = frag_reads(f)
        slots[i-1].alu += flat(g)
        slots[i].mem.append(rd[0]); slots[i+1].mem.append(rd[1])
    def put(groups, b, step=4, where="mem"):
        for n, g in enumerate(groups): getattr(slots[b + step*n], where).append(g)
    def up(b, r):
        while (b & 3) != r: b += 1
        return b
    def lq(groups, b):
        put(groups, up(b, 3)); return up(b, 3) + 4*(len(groups) - 1)
    vused = set()
    def vq(groups, b, stride=1):
        k = up(b, 2) >> 2
        for g in groups:
            while k in vused: k += 1
            vused.add(k); slots[4*k + 2].mem.append(g); last = 4*k + 2; k += stride
        return last
    def sq(text, b, e): spread(slots, SEQ(scc_groups(text)), b, e)
    def before_bar(q, items): slots[bar[q]].alu[0:0] = flat(items)
    def pre(items, groups): groups[0] = flat(items) + groups[0]; return groups
    cend = {}
    for p in range(7):
        rd = c_reads(p+1); rd[0] = [W(vm=[("c", p+1)]), rd[0]]
        cend[p+1] = lq(rd, p*64 + 20)
    MR = vT + 8
    vq([[W(lg="mr2"), f"v_add_f32 v{MR}, v{MR}, v{MR+1}", f"v_add_f32 v{MR+2}, v{MR+2}, v{MR+3}", f"v_add_f32 v{MR}, v{MR}, v{MR+2}",
         VM(f"buffer_store_dword v{MR}, v{vL4}, {WS}, s{sMST} offen sc1", "mst")]], 14)
    sq([f"v_and_b32 v{vTR2+i}, 0xffff, v{vTR+i}" for i in range(4)] + [f"v_or_b32 v{vTR2+i}, 0x20000, v{vTR2+i}" for i in range(4)], 520, 540)
    lq([LG(f"ds_read2st64_b32 v[{MR}:{MR+1}], v{vL4} offset0:192 offset1:193", "mr2"),
        LG(f"ds_read2st64_b32 v[{MR+2}:{MR+3}], v{vL4} offset0:194 offset1:195", "mr2")], 0)
    vq([[W(vm=["mst", "zero"]), VM(f"buffer_atomic_add v{vONE}, v{vL256}, s[{sDBG}:{sDBG+3}], s{sATO} offen sc1")]], 100)
    XR, F0, F1, TT, AV, BV, PP, MF = 64, 72, 80, 88, 92, 100, 108, 124
    sq([f"""
    s_sub_u32 s{sHST}, 15, s{sJ}
    s_cmp_lt_u32 s{sC}, 16
    s_cselect_b32 s{sHST}, s{sJ}, s{sHST}
    s_lshl_b32 s{sHST}, s{sHST}, 4
    s_and_b32 s{sMF}, s{sC}, 15
    s_add_u32 s{sHST}, s{sHST}, s{sMF}
    s_lshl_b32 s{sMF}, s{sHST}, 13
    s_lshl_b32 s{sSPIN}, s{sW}, 11
    s_add_u32 s{sMF}, s{sMF}, s{sSPIN}
    """], 20, 40)
    xe = vq([VM(f"buffer_load_dwordx4 {vr(XR+4*k,4)}, v{vL16}, s[{sX}:{sX+3}], s{sMF} offen offset:{1024*k}{' nt' if 'ntx' in OPT else ''}", "x") for k in range(2)], 104)

    g = []
    for j in range(4):
        for F, xr in ((F0, XR), (F1, XR+4)): g += [f"v_lshlrev_b32 v{F+2*j}, 16, v{xr+j}", f"v_and_b32 v{F+2*j+1}, 0xffff0000, v{xr+j}"]
    g[0] = [W(vm="x"), g[0]]
    def reduce2(sa, sb, post):
        r = []
        for m in ("quad_perm:[1,0,3,2]", "quad_perm:[2,3,0,1]", "row_ror:4", "row_ror:8"):
            r += [f"v_add_f32_dpp v{TT}, v{TT}, v{TT} {m} row_mask:0xf bank_mask:0xf", f"v_add_f32_dpp v{TT+1}, v{TT+1}, v{TT+1} {m} row_mask:0xf bank_mask:0xf"]
        r += [f"v_permlane16_swap_b32 v{TT}, v{TT+1}", f"v_add_f32 v{TT}, v{TT}, v{TT+1}", f"v_mov_b32 v{TT+1}, v{TT}",
              f"v_permlane32_swap_b32 v{TT}, v{TT+1}", f"v_add_f32 v{TT}, v{TT}, v{TT+1}"] + post
        return r + [f"v_readlane_b32 s{sa}, v{TT}, 0", f"v_readlane_b32 s{sb}, v{TT}, 16"]
    for j in range(1, 8):
        for k, F in enumerate((F0, F1)): g += [f"v_add_f32 v{TT+k}, v{F if j == 1 else TT+k}, v{F+j}"]
    g += reduce2(sMEAN0, sMEAN1, [f"v_mul_f32 v{TT}, {fbits(1/512)}, v{TT}"])
    for j in range(8):
        for F, sm in ((F0, sMEAN0), (F1, sMEAN1)): g += [f"v_subrev_f32 v{F+j}, s{sm}, v{F+j}"]
    for j in range(8):
        for k, F in enumerate((F0, F1)): g += [f"v_mul_f32 v{TT+k}, v{F}, v{F}" if j == 0 else f"v_fmac_f32 v{TT+k}, v{F+j}, v{F+j}"]
    g += reduce2(sRS0, sRS1, [f"v_mov_b32 v{TT+1}, {fbits(EPS)}", f"v_fmac_f32 v{TT+1}, {fbits(1/512)}, v{TT}", f"v_rsq_f32 v{TT}, v{TT+1}"])
    for j in range(8):
        for F, rs in ((F0, sRS0), (F1, sRS1)): g += [f"v_mul_f32 v{F+j}, s{rs}, v{F+j}"]
    assert xe < 200
    spread(slots, g, max(xe + 60, 200), 360)
    ld = f"buffer_load_dword v{MR}, v{vL4}, s[{sDBG}:{sDBG+3}], 0 offen sc1"
    vq([VM(ld, "poll1")], 226)
    e = 0
    if pfa and "pfpre" not in OPT:
        for k, g in enumerate(pfa): slots[2*k + 1].alu.append(g)
        e = 2*len(pfa) + 2
    if not (ilv and NPRE >= 2): e = vq(c_dma(2), e); e = vq(w_dma(2), e)
    e = vq(c_dma(3), e); e = vq(w_dma(3), max(e, bar[1]))
    for i in range(4, 8):
        e = vq(pre([W(lg=[("cr", i-3)])], c_dma(i)), max(e, cend[i-3] + 8))
        assert e < (i-1)*64 - 10, (i, e)
        if i < 7: e = vq(w_dma(i), max(e, bar[i-2]))
    before_bar(5, check(ld, f"v_cmp_gt_u32 vcc, 4, v{MR}", sSPIN, "poll1"))
    sq([f"s_lshl_b32 s{sMF}, s{sW}, 10", f"s_add_u32 s{sMF}, s{sMF}, {WS_MODP}"], bar[5] - 8, bar[5] - 4)
    e = vq([[VM(f"buffer_load_dwordx4 {vr(PP+4*n,4)}, v{vL16}, {WS}, s{sMF} offen sc1", "pp"), f"s_add_u32 s{sMF}, s{sMF}, 12288"] for n in range(4)], bar[5] + 1)
    g = [[VM(f"buffer_load_dword v{MF+n}, v{vL4}, {WS}, s{sMF} offen sc1", "mf"), f"s_add_u32 s{sMF}, s{sMF}, 12288"] for n in range(4)]
    e = vq(pre([f"s_lshl_b32 s{sMF}, s{sC}, 10", f"s_lshl_b32 s{sSPIN}, s{sW}, 8", f"s_add_u32 s{sMF}, s{sMF}, s{sSPIN}",
                f"s_mul_i32 s{sSPIN}, s{sJ}, 12288", f"s_add_u32 s{sSPIN}, s{sSPIN}, s{sMF}", f"s_add_u32 s{sSPIN}, s{sSPIN}, {WS_MODF}",
                f"s_add_u32 s{sMF}, s{sMF}, {WS_MODP}", f"s_cmp_lt_u32 s{sC}, 12",
                f"s_cselect_b32 s{sMF}, s{sMF}, {OOB:#x}", f"s_cselect_b32 s{sSPIN}, s{sSPIN}, {OOB:#x}"], g), e)
    assert e < 372
    e = vq(w_dma(7), max(e, bar[5])); assert e < bar[7] - 60
    if PF: e = vq(pre([W(lg=[("cr", 5)])], pf_w(sWV, vPW, 16384 + 6144, 0, sX, sX+1)), max(e, cend[5] + 8))
    e = vq(w_dma(8), max(e, bar[6]))
    if PF and "pq1" in OPT: e = vq(pf_w(sWQ, vPW, 16384 + 6144, 0, sX, sX+1), e + 16); assert e < bar[7]
    e = vq(w_dma(9), max(e, bar[7]))
    if PF and "pq1" not in OPT:
        sq([f"v_mov_b32 v{vT+12}, v{vPW}"], 400, 401); e = vq(pf_w(sWQ, vT+12, 16384 + 6144, 0, sX, sX+1), max(e, 470)); assert e < bar[8]
    e = e; e = vq(w_dma(10), max(e, bar[8] + 14))
    e = vq(w_dma(12), e + 8); e = vq(w_dma(11), max(e, bar[9] + 6)); e = vq(w_dma(13), e + 8); e = vq(w_dma(14), e + 12); e = vq(w_dma(15), e + 12)
    assert e < 690
    g = [[W(vm="pp"), f"v_add_f32 v{PP}, v{PP}, v{PP+4}"]] + [f"v_add_f32 v{PP+j}, v{PP+j}, v{PP+4+j}" for j in range(1, 4)]
    g += [f"v_add_f32 v{PP+8+j}, v{PP+8+j}, v{PP+12+j}" for j in range(4)] + [f"v_add_f32 v{PP+j}, v{PP+j}, v{PP+8+j}" for j in range(4)]
    g += rnd(PP, PP+1, PP+4) + rnd(PP+2, PP+3, PP+5) + [f"v_add_f32 v{PP+j}, s{sADD}, v{PP+j}" for j in range(4)]
    g += rnd(PP, PP+1, PP+4) + rnd(PP+2, PP+3, PP+5) + [f"v_mul_f32 v{PP+j}, {fbits(CSCALE)}, v{PP+j}" for j in range(4)]
    g += [f"s_lshl_b32 s{sMF}, s{sW}, 10", f"s_add_u32 s{sMF}, s{sMF}, {MODV}", f"v_add_u32 v{PP+4}, s{sMF}, v{vL16}", f"v_lshlrev_b32 v{TT}, 5, v0", f"v_add_u32 v{TT}, {MODV}, v{TT}"]
    g += [[W(vm="mf"), f"v_add_f32 v{MF}, v{MF}, v{MF+1}"], f"v_add_f32 v{MF+2}, v{MF+2}, v{MF+3}", f"v_add_f32 v{MF}, v{MF}, v{MF+2}",
          f"v_cvt_pk_bf16_f32 v{MF}, v{MF}, v{MF}", f"v_lshlrev_b32 v{vT+11}, 16, v{MF}"]
    spread(slots, g, 372, 424)
    lq([LG(f"ds_write_b128 v{PP+4}, {vr(PP,4)}", "mv")], 425)
    assert bar[7] > 427
    before_bar(7, [W(lg="mv")])
    put([LG(f"ds_read_b128 {vr(r,4)}, v{TT} offset:{off}", "ab") for r, off in ((BV, 0), (BV+4, 16), (AV, 2048), (AV+4, 2064))], bar[7] + 1, 2)
    g = []
    for j in range(8):
        for F in (F0, F1): g += [f"v_fma_f32 v{F+j}, v{F+j}, v{AV+j}, v{BV+j}"]
    g[0] = [W(lg="ab"), g[0]]
    for j in range(4):
        for F, xr in ((F0, XR), (F1, XR+4)): g += [f"v_cvt_pk_bf16_f32 v{xr+j}, v{F+2*j}, v{F+2*j+1}"]
    HA, HG, HD = vT+2, vT+3, vT+12
    g += [f"s_lshr_b32 s{sMF}, s{sW}, 1", f"s_mul_i32 s{sMF}, s{sMF}, {CW - 4160}", f"s_mul_i32 s{sADD}, s{sW}, 2080", f"s_add_u32 s{sMF}, s{sMF}, s{sADD}",
          f"s_add_u32 s{sMF}, s{sMF}, {HSTA}", f"v_add_u32 v{TT}, s{sMF}, v{vL16}"]
    g += [x.t for x in flat([f"""
    v_and_b32 v{HG}, 7, v0
    v_lshrrev_b32 v{TT+2}, 3, v0
    v_mul_u32_u24 v{HA}, 1040, v{HG}
    v_lshrrev_b32 v{TT+3}, 2, v{HG}
    v_mul_u32_u24 v{TT+3}, {CW - 4160}, v{TT+3}
    v_add_u32 v{HA}, v{HA}, v{TT+3}
    v_lshl_add_u32 v{HA}, v{TT+2}, 4, v{HA}
    s_lshl_b32 s{sMF}, s{sW}, 8
    s_add_u32 s{sMF}, s{sMF}, {HSTA}
    v_add_u32 v{HA}, s{sMF}, v{HA}
    v_lshlrev_b32 v{HG}, 4, v{HG}
    v_and_b32 v{TT+3}, 3, v{TT+2}
    v_lshl_add_u32 v{HG}, v{TT+3}, 8, v{HG}
    v_lshrrev_b32 v{TT+2}, 2, v{TT+2}
    v_lshl_add_u32 v{HG}, v{TT+2}, 10, v{HG}
    s_and_b32 s{sMF}, s{sHST}, 1
    s_lshr_b32 s{sHST}, s{sHST}, 1
    s_lshl_b32 s{sHST}, s{sHST}, 14
    s_lshl_b32 s{sMF}, s{sMF}, 7
    s_add_u32 s{sHST}, s{sHST}, s{sMF}
    s_lshl_b32 s{sMF}, s{sW}, 12
    s_add_u32 s{sHST}, s{sHST}, s{sMF}
    s_add_u32 s{sHST}, s{sHST}, {WS_H}
    """])]
    spread(slots, g, bar[7] + 12, 488)
    put([LG(f"ds_write_b128 v{TT}, {vr(XR+4*k,4)} offset:{1040*k}", "hw") for k in range(2)], 489, 2)
    assert bar[8] > 491
    before_bar(8, [W(lg="hw")])
    put([LG(f"ds_read_b128 {vr(XR+56+4*k,4)}, v{HA} offset:{128*k}", "hr") for k in range(2)], bar[8] + 1, 1)
    e = vq([VM(f"buffer_store_dword v{vT+11}, v{vL4}, {WS}, s{sSPIN} offen sc1", "hst")] +
           [[W(lg="hr"), VM(f"buffer_store_dwordx4 {vr(XR+56+4*k,4)}, v{HG}, {WS}, s{sHST} offen offset:{2048*k} sc1", "hst")] for k in range(2)], bar[8] + 1)
    assert e < 524
    before_bar(9, [W(vm="hst")])
    sq(flag_off(sMF, 0, True), bar[9] - 12, bar[9] - 11)
    vq([publish(vT+2, sMF)], bar[9] + 1)
    def pack(dst, qa, qb):
        return [f"v_cvt_pk_bf16_f32 v{dst}, v{qa}, v{qa+1}", f"v_cvt_pk_bf16_f32 v{dst+1}, v{qa+2}, v{qa+3}",
                f"v_cvt_pk_bf16_f32 v{dst+2}, v{qb}, v{qb+1}", f"v_cvt_pk_bf16_f32 v{dst+3}, v{qb+2}, v{qb+3}"]
    def store(src, sreg, off, tag):
        return [f"s_add_u32 s{sT0}, s{sreg}, {off & ~4095}", VM(f"buffer_store_dwordx4 {vr(src,4)}, v{vL16}, {WS}, s{sT0} offen offset:{off & 4095} sc1", tag)]
    def at23(e):
        while (e & 3) < 2: e += 1
        return e
    kl = [(s4, kt) for s4 in (2, 3, 0, 1) for kt in range(4)]
    for n, (s4, kt) in enumerate(kl):
        dst = accK({2: 4, 3: 6, 0: 5, 1: 7}[s4], kt)
        b = 514 + n*(22 if n < 2 else 12) + (20 if n >= 2 else 0)
        put(pack(dst, accK(2*s4, kt), accK(2*s4+1, kt)), b, 2, "alu")
        e = vq([store(dst, sKST, (kt >> 1)*8192 + ((kt & 1)*4 + s4)*1024, "kst")], 530 + 21*n)
        assert b + 6 < 530 + 21*n and b + 6 < 764 and e < 880
    sH = 32; sUS, sUL = sMF, sHST
    slots[815].alu += [I("s_barrier")]
    for q, b in ((16, 690), (17, bar[11] + 30), (18, bar[12]), (19, 815)): e = vq(w_dma(q), b + 1)
    sq(flag_off(sSPIN, 0, False) + [f"v_and_b32 v{vT+2}, 31, v0", f"v_lshlrev_b32 v{vT+2}, 2, v{vT+2}"], 780, 800)
    ld = f"buffer_load_dword v{vT+3}, v{vT+2}, {WS}, s{sSPIN} offen sc1"
    vq([VM(ld, "poll2")], max(e, 836))
    sq([f"""
    s_lshl_b32 s{sUS}, s{sJ}, 2
    s_sub_u32 s{sUL}, 60, s{sUS}
    s_add_u32 s{sUS}, s{sUS}, s{sW}
    s_add_u32 s{sUL}, s{sUL}, s{sW}
    s_lshl_b32 s{sH}, s{sUL}, 15
    s_add_u32 s{sH}, s{sH}, {WS_H}
    s_add_u32 s{sH+1}, s{sH}, 16384
    s_lshl_b32 s{sH+2}, s{sUS}, 15
    s_add_u32 s{sH+2}, s{sH+2}, {WS_H}
    s_add_u32 s{sH+3}, s{sH+2}, 16384
    """], 850, 876)
    slots[883].alu += check(ld, f"v_cmp_ne_u32 vcc, 1, v{vT+3}", sADD, "poll2") + [I("s_barrier")]
    def h_ld(s):
        g = []
        for qi in range(4):
            x = [VM(f"buffer_load_dwordx4 {Hf(s, qi)}, v{vL16}, {WS}, s{sH+qi} offen offset:{(s&3)*1024} sc1", ("h", s))]
            if (s & 3) == 3: x.append(f"s_add_u32 s{sH+qi}, s{sH+qi}, 4096")
            g.append(x)
        return g
    for n in range(8):
        t, uu = n >> 1, n & 1; qa = X + (t*4+2*uu)*4
        put(pack(qa, qa, qa+4), 780 + 10*n, 2, "alu")
        e = vq([store(qa, sVST, uu*8192 + t*1024, "vst")], 872 + 19*n)
        assert e < 1020
    e = vq(h_ld(0) + h_ld(1) + h_ld(2) + h_ld(3), 884)
    assert e < 990
    for n in range(8):
        t, uu = n >> 1, n & 1; qa = ACC + (t*4+2*uu)*4
        put(pack(WF + 4*n, qa, qa+4), 1024 + 3*n, 1, "alu") if n < 4 else put(pack(WF + 4*n, qa, qa+4), 1024 + 12 + 3*(n-4), 1, "alu")
        e = vq([store(WF + 4*n, sVST, uu*8192 + (4+t)*1024, "vst")], 1050 + 20*n)
    def kvflag(dst, base, own):
        r = [f"s_lshl_b32 s{dst}, s{sHEAD}, 5", f"s_add_u32 s{dst}, s{dst}, {WS_FLAG + base}"]
        if own: r += [f"s_lshl_b32 s{sT0}, s{sJ}, 2", f"s_add_u32 s{dst}, s{dst}, s{sT0}"]
        return r + [f"s_cmp_eq_u32 s{sW}, 0", f"s_cselect_b32 s{dst}, s{dst}, {OOB:#x}"]
    before_bar(16, [W(vm="kst")])
    sq(kvflag(sSPIN, KF, True), bar[16] - 12, bar[16] - 11)
    vq([publish(vT+2, sSPIN)], bar[16] + 1)
    for p in (0, 4, 8, 12): slots[p*64].alu += st()
    for p in range(15): slots[p*64].alu += st("A")
    for p in range(9, 24): slots[p*64].alu += st("B")
    B0 = 1024
    slots[B0].alu += st()
    sK, sCT = 12, 36; sMK = [24, 26, 32, 34]
    sKO, sCNT, sODW, sFL = 78, 86, 87, 90
    vKB, vVB, ONES, LS, PB, CB, TMP = 2, 3, 12, 16, 32, 192, 224
    sq([f"""
    s_lshl_b32 s{sKO}, s{sHEAD}, 20
    s_add_u32 s{sK}, s{sWS}, s{sKO}
    s_addc_u32 s{sK+1}, s{sWS+1}, 0
    s_sub_u32 s{sK+2}, 16, s{sJ}
    s_lshl_b32 s{sK+2}, s{sK+2}, 16
    s_mov_b32 s{sK+3}, 0x20000
    s_add_u32 s{sKO}, s{sM0K}, {4*32768}
    """], bar[20] + 1, bar[20] + 12)
    vF = LS
    sq(kvflag(sFL, KF, False) + [f"v_and_b32 v{vF}, 7, v0", f"v_lshlrev_b32 v{vF}, 2, v{vF}"], bar[19] - 20, bar[19] - 4)
    ld = f"buffer_load_dword v{vF+1}, v{vF}, {WS}, s{sFL} offen sc1"
    e = vq([VM(ld, "poll3")], bar[19]); assert e < bar[20] - 20
    before_bar(20, check(ld, f"v_cmp_ne_u32 vcc, 1, v{vF+1}", sCNT, "poll3"))
    before_bar(21, [W(vm="vst")])
    sq(kvflag(sFL, VF, True), bar[21] - 12, bar[21] - 11)
    e = vq([publish(vF+2, sFL)], bar[21] + 1)
    sq(kvflag(sFL, VF, False), e + 4, e + 12)
    vq([VM(ld, "poll4")], bar[23] + 1)
    LEAD = int(OV("lead", 120)); e = B0
    for s in range(4, 16, 2):
        q = 16 + s//2
        if q >= 20: e = vq(w_dma(q), max(e, bar[17] + 1, bar[q] - LEAD)); assert e < bar[q] - 50
        e = vq(h_ld(s) + h_ld(s+1), max(e, B0 + (s-6)*32, B0 + s*32 - LEAD)); assert e < B0 + s*32 - 50, (s, e)
    hend = e
    vcheck = check(ld, f"v_cmp_ne_u32 vcc, 1, v{vF+1}", sCNT, "poll4")
    def kv_dma(which, tag, pair=None):
        if pair is None: so = sKO; grp = [f"s_and_b32 m0, s{sKO}, 0x1ffff"]
        else: so = sT1; grp = [f"s_add_u32 s{sT1}, s{sM0K}, {pair*32768 + (which == 'V')*16384}", f"s_mov_b32 m0, s{sT1}"]
        g = [grp]
        for n in range(4): g.append([VM(f"buffer_load_dwordx4 v{vL16}, s[{sK}:{sK+3}], s{so} offen offset:{n*1024} sc1 lds", tag)])
        if pair is None: return SEQ(g + [[f"s_sub_u32 s{sKO}, s{sKO}, 16384" if which == "K" else f"s_add_u32 s{sKO}, s{sKO}, 49152"]])
        return SEQ([g[0] + g[1]] + g[2:])
    e = vq(kv_dma("K", ("K", 0), 0) + kv_dma("K", ("K", 1), 1), max(hend, bar[21] + 1))
    sS1, sD1, sD3, sS2, sX0, sX1, sW2 = 80, 7, 81, 91, 85, 83, 16; sD2 = [20, 21, 22, 23]
    vU1, vU2, vUT = TMP+12, TMP+16, TMP+20
    g = srd(sW2, 0, 1792*1024) + [f"""
    s_lshl_b32 s{sX0}, s2, 2
    s_add_u32 s{sX0}, s{sX0}, s{sW}
    s_and_b32 s{sX0}, s{sX0}, 511
    s_lshr_b32 s{sS1}, s{sX0}, 3
    s_and_b32 s{sX1}, s{sX0}, 7
    s_lshl_b32 s{sD1}, s{sX1}, 7
    s_add_u32 s{sD1}, s{sD1}, s{sS1}
    s_lshl_b32 s{sD1}, s{sD1}, 12
    s_add_u32 s{sD1}, s{sD1}, {WS_WOF}
    s_mul_i32 s{sD3}, s{sX1}, 56
    s_add_u32 s{sD3}, s{sD3}, s{sS1}
    s_lshl_b32 s{sD3}, s{sD3}, 12
    s_add_u32 s{sD3}, s{sD3}, {WS_W2F}
    s_lshl_b32 s{sS1}, s{sS1}, 15
    s_lshl_b32 s{sX1}, s{sX1}, 7
    s_add_u32 s{sS1}, s{sS1}, s{sX1}
    s_and_b32 s{sX1}, s{sX0}, 15
    s_mul_i32 s{sS2}, s{sX1}, {32*3584}
    s_mul_i32 s{sX1}, s{sX1}, 7168
    s_add_u32 s{sX1}, s{sX1}, {WS_W1F}
    s_cmp_lt_u32 s{sX0}, 448
    s_cselect_b32 s{sX1}, s{sX1}, {OOB:#x}
    s_cselect_b32 s{sD3}, s{sD3}, {OOB:#x}
    s_cselect_b32 s{sU2+2}, s{sU2+2}, 0
    s_cmp_ge_u32 s2, 128
    s_cselect_b32 s{sWO+2}, s{sWO+2}, 0
    s_lshr_b32 s{sX0}, s{sX0}, 4
    s_lshl_b32 s{sD2[0]}, s{sX0}, 7
    s_add_u32 s{sS2}, s{sS2}, s{sD2[0]}
    s_lshl_b32 s{sX0}, s{sX0}, 2
    """] + [f"""
    s_mul_i32 s{sODW}, s{sX0}, 9363
    s_lshr_b32 s{sODW}, s{sODW}, 16
    s_mul_i32 s{sODW}, s{sODW}, {114688-7168}
    s_lshl_b32 s{sD2[t]}, s{sX0}, 10
    s_add_u32 s{sD2[t]}, s{sD2[t]}, s{sODW}
    s_add_u32 s{sD2[t]}, s{sD2[t]}, s{sX1}
    s_add_u32 s{sX0}, s{sX0}, 1
    """ for t in range(4)] + [f"""
    v_lshrrev_b32 v{vUT}, 3, v0
    v_and_b32 v{vUT+1}, 7, v0
    v_and_b32 v{vUT+2}, 6, v{vUT}
    v_xor_b32 v{vUT+2}, v{vUT+2}, v{vUT+1}
    v_lshlrev_b32 v{vUT+2}, 4, v{vUT+2}
    v_lshl_add_u32 v{vU1}, v{vUT}, 10, v{vUT+2}
    v_add_u32 v{vU1+1}, 7168, v{vU1}
    v_add_u32 v{vU1+2}, {2*7168}, v{vU1}
    v_add_u32 v{vU1+3}, {3*7168}, v{vU1}
    v_mul_u32_u24 v{vU2}, 3584, v{vUT}
    v_add_u32 v{vU2}, v{vU2}, v{vUT+2}
    v_add_u32 v{vU2+1}, {8*3584-1024}, v{vU2}
    v_add_u32 v{vU2+2}, {2*(8*3584-1024)}, v{vU2}
    v_add_u32 v{vU2+3}, {3*(8*3584-1024)}, v{vU2}
    v_lshrrev_b32 v{vUT+1}, 4, v0
    v_bfe_u32 v{vUT+2}, v0, 2, 2
    v_lshl_add_u32 v{vUT+1}, v{vUT+1}, 2, v{vUT+2}
    v_bfe_u32 v{vUT+2}, v{vUT+1}, 1, 2
    v_lshlrev_b32 v{vUT+1}, 7, v{vUT+1}
    v_lshl_add_u32 v{vUT+1}, v{vUT+2}, 5, v{vUT+1}
    v_and_b32 v{vUT+2}, 3, v0
    v_lshl_add_u32 v{vUT+1}, v{vUT+2}, 3, v{vUT+1}
    s_lshl_b32 s{sX0}, s{sW}, 13
    s_add_u32 s{sX0}, s{sX0}, 131072
    v_add_u32 v{vUT}, s{sX0}, v{vUT+1}
    v_xor_b32 v{vUT+1}, 32, v{vUT}
    v_xor_b32 v{vUT+2}, 64, v{vUT}
    v_xor_b32 v{vUT+3}, 0x60, v{vUT}
    """]
    sq(g[:-1], B0 + 250, B0 + 380); sq(g[-1:], B0 + 388, B0 + 432)
    def side_dma(rnd_):
        r = []
        for u, (vo, sd, so) in enumerate((((vU1, sWO, f"s{sS1}, 0"), (vU1, sWO, f"s{sS1}, {64*32768}")), ((vU1, sW2, f"s{sS1}, 0"), (vU2, sU2, f"s{sS2}, 0")))[rnd_]):
            d = [[VM(f"buffer_load_dwordx4 v{vo+n}, s[{sd}:{sd+3}], s{sT0} offen offset:{n*1024}{NT1} lds", "ud")] for n in range(4)]
            d[0] = [f"s_add_u32 m0, s{sX0}, {u*4096}", f"s_add_u32 s{sT0}, {so}"] + d[0]
            r += SEQ(d)
        return r
    def side_reads(): return [LG(f"ds_read_b64_tr_b16 {ar(192 + u*16 + t*4 + 2*hh, 2)}, v{vUT+t} offset:{u*4096 + hh*2048}", "ur") for u in range(2) for t in range(4) for hh in range(2)]
    def side_stores(rnd_):
        st_ = lambda q, so, off: [VM(f"buffer_store_dwordx4 {ar(192 + 4*q, 4)}, v{vL16}, {WS}, s{so} offen offset:{off} sc1")]
        if rnd_ == 1: return [st_(t, sD3, t*1024) for t in range(4)] + [st_(4+t, sD2[t], 0) for t in range(4)]
        r = [st_(t & 3 | (t & 4), sD1, (t & 3)*1024) for t in range(8)]
        r[3] = r[3] + [f"s_add_u32 s{sD1}, s{sD1}, {64*4096}"]
        return r
    e = vq(side_dma(0), bar[23] + 8); assert e < B0 + 510
    init = [f"v_accvgpr_write_b32 a{r}, 0" for r in range(128)] + [f"v_mov_b32 v{ONES+r}, 0x3f803f80" for r in range(4)]
    spread(slots, init, B0 + 40, bar[21] - 8)
    init = [x.t for x in flat([f"""
    s_lshl_b32 s{sODW}, s{sHEAD}, 12
    s_add_u32 s{sODW}, s{sODW}, {WS_CTX}
    s_lshl_b32 s{sCT}, s{sUL}, 18
    s_add_u32 s{sCT}, s{sCT}, s{sODW}
    s_add_u32 s{sCT+1}, s{sCT}, 131072
    s_lshl_b32 s{sCT+2}, s{sUS}, 18
    s_add_u32 s{sCT+2}, s{sCT+2}, s{sODW}
    s_add_u32 s{sCT+3}, s{sCT+2}, 131072
    v_lshrrev_b32 v{PB+4}, 4, v0
    v_lshlrev_b32 v{PB+4}, 2, v{PB+4}
    v_and_b32 v{PB+5}, 15, v0
    v_sub_u32 v{PB+5}, v{PB+5}, v{PB+4}
    v_cmp_le_i32 s[{sMK[0]}:{sMK[0]+1}], 0, v{PB+5}
    v_cmp_le_i32 s[{sMK[1]}:{sMK[1]+1}], 1, v{PB+5}
    v_cmp_le_i32 s[{sMK[2]}:{sMK[2]+1}], 2, v{PB+5}
    v_cmp_le_i32 s[{sMK[3]}:{sMK[3]+1}], 3, v{PB+5}
    v_mov_b32 v{vKB}, v{vL16}
    v_mov_b32 v{vVB}, v{vL16}
    """])] + [f"v_mov_b32 v{LS+r}, 0" for r in range(2, 16)]
    spread(slots, init, bar[23] - 30, bar[23] + 10)
    spread(slots, [f"v_mov_b32 v{CB+r}, 0" for r in range(32)] + [f"v_mov_b32 v{TMP+31}, 0xff800000"], B0 + 330, B0 + 400)
    def qpack(s4): return sum(([f"v_cvt_pk_bf16_f32 v{acc(2*s4, qi)+k}, v{acc(2*s4 + (k >> 1), qi) + 2*(k & 1)}, v{acc(2*s4 + (k >> 1), qi) + 2*(k & 1) + 1}"
                                for k in range(4)] for qi in range(4)), [])
    for s4 in range(3): spread(slots, qpack(s4), B0 + 448 + 16*s4 + 17, B0 + 448 + 16*s4 + 31 - (s4 == 2))
    if "vmap" in OPT: print("".join(("#" if k in vused else ".") + ("|" if k % 16 == 15 else "") for k in range(len(slots)//4)))
    if "nopack" not in OPT: pack_slots(slots)
    o += emit_slots(slots) + [f"Latt_{N}:"]
    o += st()
    from fatt import attention
    from ftail import tail
    env.update(locals())
    o = resolve_waits(flat(o + attention(env, "prologue")))
    o += attention(env, "main")
    if upto >= 3: o += tail(env, upto)
    return o + finish()
```

```python
from common import *
from flay import *

def attention(env, part):
    g_ = env
    (N, ts, st, sW, sK, sMK, sCT, sT0, sT1, sKO, sCNT, sODW, sUS, sUL, sFL, vL16, vKB, vVB, ONES, LS, PB, CB, TMP,
     aK, aV, acc, kv_dma, WS, upto) = [g_[k] for k in
     "N ts st sW sK sMK sCT sT0 sT1 sKO sCNT sODW sUS sUL sFL vL16 vKB vVB ONES LS PB CB TMP aK aV acc kv_dma WS upto".split()]
    FLAG = 131072; NINF = "0xff800000"; sG = 20
    def Q(qi, s4): return vr(acc(2*s4, qi), 4)
    def S(buf, qi, kt): return acc(2*(buf*2+kt)+1, qi)
    def Pq(buf, qi): return PB + (buf*4+qi)*4
    def C(qi, kt): return CB + (qi*2+kt)*4
    def O(t, qi): return ar((t*4+qi)*4, 4)
    def Kf(kt, ds): return ar(aK + (kt*4+ds)*4, 4)
    def Vf(t): return ar(aV + t*4, 4)
    GQ = {0: (0, 1), 1: (2, 3)}
    def mask(g):
        r = []
        for e in range(4):
            for qt in range(2):
                c = C(GQ[g][qt], qt) + e
                r.append(f"v_cndmask_b32 v{c}, v{TMP+31}, v{c}, s[{sMK[e]}:{sMK[e]+1}]")
            r.append(f"v_mov_b32 v{C(GQ[g][0], 1)+e}, v{TMP+31}")
        return r
    def k_reads(off): return [LG(f"ds_read_b128 {Kf(kt, ds)}, v{vKB} offset:{off + (kt*4+ds)*1024}", ("k", kt*4+ds)) for kt in range(2) for ds in range(4)]
    def v_reads(off): return [LG(f"ds_read_b128 {Vf(t)}, v{vVB} offset:{16384 + off + t*1024}", ("v", t)) for t in range(8)]
    def qk(buf, groups):
        r = []
        for kt in range(2):
            for g in groups:
                for qi in GQ[g]:
                    for ds in range(4):
                        d = vr(S(buf, qi, kt), 4)
                        r.append((I(f"v_mfma_f32_16x16x32_bf16 {d}, {Kf(kt, ds)}, {Q(qi, ds)}, {vr(C(qi, kt), 4) if ds == 0 else d}"), kt*4+ds))
        return r
    def pv(buf, groups):
        r = []
        for t in range(8):
            for g in groups:
                for qi in GQ[g]:
                    r.append((I(f"v_mfma_f32_16x16x32_bf16 {O(t, qi)}, {Vf(t)}, {vr(Pq(buf, qi), 4)}, {O(t, qi)}"), t))
        for g in groups:
            for qi in GQ[g]:
                r.append((I(f"v_mfma_f32_16x16x32_bf16 {vr(LS+4*qi, 4)}, {vr(ONES, 4)}, {vr(Pq(buf, qi), 4)}, {vr(LS+4*qi, 4)}"), None))
        return r
    def softmax(buf, groups):
        ex = []; cv = []
        for g in groups:
            for qi in GQ[g]:
                for kt in range(2):
                    s0 = S(buf, qi, kt)
                    for h in range(2):
                        ex += [f"v_exp_f32 v{s0+2*h}, v{s0+2*h}", f"v_exp_f32 v{s0+2*h+1}, v{s0+2*h+1}"]
                        cv += [f"v_cvt_pk_bf16_f32 v{Pq(buf, qi)+2*kt+h}, v{s0+2*h}, v{s0+2*h+1}"]
        return ex, cv
    if part == "prologue":
        o = env["vcheck"] + [W(vm=[("K", 0)]), "s_barrier", k_reads(0), kv_dma("V", ("V", 0), 0)]
        o += [f"v_mov_b32 v{LS+r}, 0" for r in range(2)]
        dm = sum((kv_dma(wh, (wh, p), p) for wh, p in (("K", 2), ("V", 1), ("K", 3), ("V", 2))), [])
        o += env["qpack"](3) + [f"s_cmp_lg_u32 s{sUS}, 0", f"s_cbranch_scc1 Lp0_{N}", mask(1), f"Lp0_{N}:", "s_nop 1"]
        q0 = [Slot(m) for m, _ in qk(0, (0, 1))]
        for k in range(8): q0[4*k + 1].mem.append(dm[k])
        o += [W(lg=[("k", 7)])] + emit_slots(q0)
        o += [k_reads(8192), "s_nop 3", f"s_cmp_lg_u32 s{sUS}, 1", f"s_cbranch_scc1 Lp1_{N}", mask(1), f"Lp1_{N}:", "s_nop 1"]
        q1 = [Slot(m) for m, _ in qk(1, (0, 1))]
        q1[0].pre.append(W(lg=[("k", 7)]))
        mx = []
        for qi in range(4):
            a, b, t = S(0, qi, 0), S(0, qi, 1), TMP + qi
            mx += [f"v_max3_f32 v{t}, v{a}, v{a+1}, v{a+2}", f"v_max3_f32 v{t}, v{t}, v{a+3}, v{b}",
                   f"v_max3_f32 v{t}, v{t}, v{b+1}, v{b+2}", f"v_max_f32 v{t}, v{t}, v{b+3}"]
        for sw in ("v_permlane16_swap_b32", "v_permlane32_swap_b32"):
            mx += [f"v_mov_b32 v{TMP+4+qi}, v{TMP+qi}" for qi in range(4)]
            mx += [f"{sw} v{TMP+qi}, v{TMP+4+qi}" for qi in range(4)]
            mx += [f"v_max_f32 v{TMP+qi}, v{TMP+qi}, v{TMP+4+qi}" for qi in range(4)]
        spread(q1, mx, 2, 32)
        for k in range(8): q1[4*k + 1].mem.append(dm[8 + k])
        o += emit_slots(q1)
        o += [W(vm=[("K", 1), ("V", 0)]), "s_barrier", f"v_add_u32 v{vKB}, 32768, v{vL16}", k_reads(0)]
        for qi in range(4):
            for kt in range(2): o += [f"v_sub_f32 v{S(0, qi, kt)+e}, v{S(0, qi, kt)+e}, v{TMP+qi}" for e in range(4)]
        ex, cv = softmax(0, (0, 1))
        for k in range(len(cv)): o += ex[2*k:2*k+2] + ([cv[k-1]] if k else [])
        o += [cv[-1]]
        for qi in range(4):
            for kt in range(2):
                o += [f"v_sub_f32 v{C(qi, kt)+e}, v{C(qi, kt)+e}, v{TMP+qi}" for e in range(4)]
                o += [f"v_sub_f32 v{S(1, qi, kt)+e}, v{S(1, qi, kt)+e}, v{TMP+qi}" for e in range(4)]
        return o + st()
    MODES = {"D": ((0, 1), (0, 1), (0, 1)), "T1": ((0,), (0, 1), (0, 1)), "T2": ((0,), (0,), (0, 1)),
             "S": ((0,), (0,), (0,)), "F1": ((), (0,), (0,)), "F2": ((), (), (0,))}
    def iteration(mode, par, last=False, tail=(), xlds=(), xvm=(), xseq=False):
        gq, gs, gp = MODES[mode]
        m1 = qk(par, gq); m2 = pv(par, gp)
        sl = [Slot(m) for m, _ in m1 + m2]; n1 = len(m1); n2 = len(m2); n = n1 + n2
        ex, cv = softmax(1 - par, gs)
        free = [8]*n; pre = []
        epos = [min(n - 2, 1 + (k*(n - 1))//len(ex)) for k in range(len(ex))] if ex else []
        for k, x in enumerate(ex): sl[epos[k]].alu.append(I(x)); free[epos[k]] -= 8
        def place(x, lo, hi=None, mem=False, after=None):
            hi = n - 1 if hi is None else min(hi, n - 1); lo = min(lo, hi)
            c = [i for i in range(lo, hi + 1) if free[i] >= 4]
            i = c[0] if c else max(range(lo, hi + 1), key=lambda k: (free[k], -k))
            (sl[i].mem if mem else sl[i].alu).append(x); free[i] -= 4
            return i
        first = lambda ms, f: next(i for i, (_, g) in enumerate(ms) if g == f)
        for k, x in enumerate(cv): place(I(x), epos[2*k+1] + 1)
        vrd = v_reads(par*8192)
        if n1:
            i = 0
            for k, r in enumerate(vrd): i = place(r, max(i, k*(n1*5//8)//8), n1 - 2, mem=True)
            place(W(lg=[("k", 7)]), max(0, first(m1, 4) - 3), first(m1, 4) - 1)
            place(W(lg=[("v", 3)]), n1 - 3, n1 - 1)
        else: pre += vrd + [W(lg=[("v", 3)])]
        wv = n1 + first(m2, 4) - 1
        if last:
            place(W(lg=[("v", 7)]), wv - 2, wv); i = 0
            for k, g in enumerate(xvm): i = place(flat(g), max(k*(n - 1)//len(xvm), i + 1 if k else 0), n - 1, mem=True)
        else:
            if par == 0:
                place(W(lg=[("v", 7)]), wv - 2, wv); b = n1; krd = k_reads(8192)
            else:
                b = n1 + max(1, n2//9)
                while free[b] < 8 and b < wv: b += 1
                sl[b].alu += flat([W(lg=[("v", 7)], vm="*16"), "s_barrier"]); free[b] -= 8
                i = b
                for x in (f"v_mov_b32 v{vVB}, v{vKB}", f"v_add_u32 v{vKB}, 0x8000, v{vKB}", f"v_and_b32 v{vKB}, 0x1ffff, v{vKB}"):
                    i = place(I(x), max(n1 - 1, b - 4) if i == b else i, b - 1) if n1 else (pre.append(I(x)) or 0)
                b += 1; krd = k_reads(0)
            i = b
            for k, r in enumerate(krd): i = place(r, max(i, b + k*((n - b)*5//8)//8), n - 2, mem=True)
            dm = kv_dma("K" if par == 0 else "V", "d")
            hi = (n//3 if xseq else n - 2) if par == 0 else b - 2
            i = 2
            for k, x in enumerate(xlds): i = place(x, max(i, 2 + k*(n - 8)//len(xlds)), n - 4, mem=True)
            if hi < 8: pre += dm
            else:
                i = place(dm[0], 0, hi)
                for k, g in enumerate(dm[1:5]): i = place(g, max(i + 1, 2 + k*(hi - 2)//4), hi, mem=True)
                i = place(dm[5], i, hi)
            lo = i + 1 if xseq else 1
            for k, g in enumerate(xvm):
                t_ = max(lo + k*(n - 2 - lo)//len(xvm), i + 1 if k else 0)
                i = place(flat(g), t_, min(t_ + 2, n - 2), mem=True)
                free[i] -= 4*(len(flat(g)) - 1)
            place(W(lg=[("k", 3)]), n - 1)
        for x in tail: place(I(x), n - 3)
        env.setdefault("over", []).append((mode, par, n, sum(-f for f in free if f < 0), sum(f for f in free if f > 0)))
        return pre + emit_slots(sl)
    def epilogue(g, tsets, psets, rc):
        r = [f"v_rcp_f32 v{rc+k}, v{LS+4*qi}" for k, qi in enumerate(GQ[g])]
        n = 0
        for k, qi in enumerate(GQ[g]):
            for s4 in range(4):
                t = tsets[n % len(tsets)]; p = psets[n % len(psets)]; n += 1
                for h in range(2): r += [f"v_accvgpr_read_b32 v{t+4*h+e}, a{((2*s4+h)*4+qi)*4+e}" for e in range(4)]
                r += [f"v_pk_mul_f32 {vr(t+2*e, 2)}, {vr(t+2*e, 2)}, {vr(rc, 2)} op_sel:[0,{k}] op_sel_hi:[1,{k}]" for e in range(4)]
                r += [f"v_cvt_pk_bf16_f32 v{p+e}, v{t+2*e}, v{t+2*e+1}" for e in range(4)]
                r += [VM(f"buffer_store_dwordx4 {vr(p, 4)}, v{vL16}, {WS}, s{sCT+qi} offen offset:{s4*1024} sc1", "ctx")]
        return r
    epi_short = lambda: epilogue(1, [CB+16], [PB+8, PB+12], CB+28)
    epi_long = lambda: epilogue(0, [TMP], [TMP+8, TMP+12], TMP+24) + ([] if "epiend" not in env["opt"] else epi_short())
    def code_touch(a, b):
        env["npc"] = env.get("npc", 0) + 1; l = f"Lpc{env['npc']}_{N}"
        return ["s_getpc_b64 s[40:41]", f"{l}:", f"s_add_u32 s40, s40, {a}-{l}", "s_addc_u32 s41, s41, 0", f"s_mov_b32 s42, {b}-{a}", "s_mov_b32 s43, 0x20000",
                f"s_lshl_b32 s{sT0}, s{sW}, 13", f"v_lshlrev_b32 v{TMP+10}, 7, v0", VM(f"buffer_load_dword v{TMP+11}, v{TMP+10}, s[40:43], s{sT0} offen", "code")]
    sWB, sCTL, sML, sROT = 82, 80, 81, 91
    ROT = env["ROT"] = not env["XL"] and "norot" not in env["opt"]
    CTL = f"s_lshr_b32 s{sCTL}, s2, 5" if env["XL"] else f"s_and_b32 s{sCTL}, s2, 1\ns_lshl_b32 s{sCTL}, s{sCTL}, 2\ns_bfe_u32 s{sT0}, s2, 0x20003\ns_add_u32 s{sCTL}, s{sCTL}, s{sT0}"
    def wreg(i, t):
        i %= 16
        if i < 8: return (192 + 16*i if i < 4 else 64 + 16*i) + 4*t
        return ((2*(i & 3) + (t >> 1))*4 + (2 if i < 12 else 0) + (t & 1))*4
    def w_step(i, lds=None):
        if lds is None: g = [[VM(f"buffer_load_dwordx4 {ar(wreg(i, t), 4)}, v{vL16}, {WS}, s{sT1} offen offset:{t*1024} sc1", ("cw", i))] for t in range(4)]
        else: g = [[VM(f"buffer_load_dwordx4 v{vL16}, {WS}, s{sT1} offen offset:{t*1024} sc1 lds", ("cw", i))] for t in range(4)]
        off = [f"s_add_u32 s{sT1}, s{sROT}, {i*4096}", f"s_and_b32 s{sT1}, s{sT1}, 0x1ffff", f"s_add_u32 s{sT1}, s{sT1}, s{sWB}"] if ROT else [f"s_add_u32 s{sT1}, s{sWB}, {i*4096}"]
        g[0] = ([] if lds is None else [f"s_add_u32 m0, {lds}"]) + off + g[0]
        return SEQ(g)
    EW = "noew" not in env["opt"]; XS = env["XS"] = "noxs" not in env["opt"] and upto >= 3
    def early_w(force=False): return [] if not (EW or force) else sum((w_step(i) for i in range(4)), []) + w_step(16, f"s{sML}, 0") + w_step(17, f"s{sML}, 4096") if upto >= 3 else []
    def early_ep(): return [[VM(f"buffer_load_dwordx2 {vr(CB+16+2*t, 2)}, v{TMP+12}, s[16:19], s79 offen offset:{t*32}")] for t in range(4)] + \
                           [[VM(f"buffer_load_dword v{CB+24+k}, v{TMP+13}, {WS}, s83 offen offset:{k*2048 if k < 2 else 0} sc1")] + ([f"s_add_u32 s83, s83, 4096"] if k == 1 else []) for k in range(3)]
    def ep_addr():
        assert env["XL"]
        return srd(16, env["pX"], 2*MB) + [f"""
        s_and_b32 s79, s2, 7
        s_lshl_b32 s79, s79, 2
        s_bfe_u32 s{sT0}, s2, 0x20003
        s_add_u32 s79, s79, s{sT0}
        s_lshl_b32 s79, s79, 2
        s_add_u32 s79, s79, s{sW}
        s_lshl_b32 s79, s79, 14
        s_lshl_b32 s{sT0}, s{sCTL}, 7
        s_add_u32 s79, s79, s{sT0}
        s_mul_i32 s83, s{env['sJ']}, 12288
        s_lshl_b32 s{sT0}, s{sCTL}, 8
        s_add_u32 s83, s83, s{sT0}
        s_add_u32 s83, s83, {WS_MODF + 2*2048}
        v_lshrrev_b32 v{TMP+13}, 4, v0
        v_and_b32 v{TMP+12}, 15, v0
        v_lshlrev_b32 v{TMP+12}, 10, v{TMP+12}
        v_lshl_add_u32 v{TMP+12}, v{TMP+13}, 3, v{TMP+12}
        v_lshlrev_b32 v{TMP+13}, 2, v0
        """]
    env["wreg"] = wreg; env["w_step"] = w_step
    sld = f"buffer_load_dwordx2 {vr(TMP+8, 2)}, v{TMP+10}, {WS}, s{sFL} offen sc1"
    KT = [("k", i) for i in range(8)]
    def region(items): return resolve_waits(flat(items), pre_lg=KT)
    def side_period(rnd):
        st_ = env["side_stores"](rnd); st_[0] = [W(lg="ur")] + st_[0]
        return region([iteration("D", 0, xlds=env["side_reads"]()), iteration("D", 1, xvm=st_)])
    def loop(mode, lbl, cuts=False):
        r = flat([f"{lbl}_go:", f"s_sub_u32 s{sCNT}, s{sCNT}, 1", f"s_cbranch_scc1 {lbl}_done", ".p2align 6", f"{lbl}:"])
        r += region([iteration(mode, 0), iteration(mode, 1, tail=[f"s_sub_u32 s{sCNT}, s{sCNT}, 1"])]) + flat([f"s_cbranch_scc0 {lbl}"])
        if cuts == "poll":
            r += flat(["s_sub_u32 s1, s1, 1", f"s_cbranch_scc1 {lbl}_done", sld, f"s_mov_b32 s{sCNT}, {1 if XS else 2}", f"s_branch {lbl}_go"])
        elif cuts:
            r += flat(["s_sub_u32 s1, s1, 1", f"s_cbranch_scc1 {lbl}_done", "s_cmp_eq_u32 s1, 0", f"s_cbranch_scc1 {lbl}_pub"]) + side_period(1)
            r += flat([f"s_mov_b32 s{sCNT}, 2", f"s_branch {lbl}_go", f"{lbl}_pub:",
                       f"s_lshl_b32 s{sFL}, s2, 2", f"s_add_u32 s{sFL}, s{sFL}, {WS_FLAG + env['SF']}", f"s_cmp_eq_u32 s{sW}, 0",
                       f"s_cselect_b32 s{sFL}, s{sFL}, {OOB:#x}", [x if isinstance(x, str) else x.t for x in env["publish"](TMP+8, sFL)],
                       f"s_mov_b32 s{sCNT}, s0", f"s_branch {lbl}_go"])
        return r + flat([f"{lbl}_done:"])
    o = flat([f"""
    s_waitcnt lgkmcnt(4)
    s_and_b32 s{sODW}, s{sW}, 1
    s_sub_u32 s{sCNT}, s{sUS}, 1
    s_ashr_i32 s{sCNT}, s{sCNT}, 1
    s_sub_u32 s{sCNT}, s{sCNT}, s{sODW}
    s_max_i32 s{sCNT}, s{sCNT}, 0
    s_mov_b32 s1, 0
    s_cmp_lt_u32 s2, 128
    s_cbranch_scc1 Ldd_{N}_go
    s_mov_b32 s1, 2
    s_sub_u32 s0, s{sCNT}, 7
    s_mov_b32 s{sCNT}, 2
    """]) + side_period(0) + region([iteration("D", 0, xvm=env["side_dma"](1), xseq=True), iteration("D", 1)]) + loop("D", f"Ldd_{N}", True)
    o += flat([f"s_bitcmp1_b32 s{sW}, 0", f"s_cbranch_scc1 Lodd1_{N}", f"s_cmp_eq_u32 s{sUS}, 0", f"s_cbranch_scc1 Lt2s_{N}", mask(1), "s_nop 1"])
    o += region([iteration("D", 0), iteration("T1", 1)])
    o += flat([f"Lt2s_{N}:"]) + region([iteration("T2", 0), iteration("S", 1)])
    o += flat([f"s_branch Lss_entry_{N}", f"Lodd1_{N}:", f"s_cmp_eq_u32 s{sUS}, 1", f"s_cbranch_scc1 Lt12_{N}"])
    o += region([iteration("D", 0), mask(1), "s_nop 0", iteration("D", 1)])
    o += flat([f"Lt12_{N}:"]) + region([iteration("T1", 0), iteration("T2", 1)])
    o += flat([f"Lss_entry_{N}:", f"v_lshlrev_b32 v{TMP+10}, 3, v0", f"s_mov_b32 s{sFL}, {WS_FLAG + env['SF'] + 512}", sld] + (["s_nop 7"] + epi_short() if "epiend" not in env["opt"] else []) + [f"""
    s_sub_u32 s{sCNT}, s{sUL}, s{sUS}
    s_lshr_b32 s{sCNT}, s{sCNT}, 1
    s_sub_u32 s{sCNT}, s{sCNT}, 2
    s_cmp_ge_u32 s{sCNT}, 4
    s_cselect_b32 s1, 1, 0
    s_mov_b32 s0, s1
    s_mul_i32 s{sT0}, s1, {3 if XS else 2}
    s_sub_u32 s{sCNT}, s{sCNT}, s{sT0}
    """]) + loop("S", f"Lss_{N}", "poll")
    o += resolve_waits([VM("s_nop 0", "p5")] + [VM("s_nop 0")]*0 + env["check"](sld, [f"v_and_b32 v{TMP+8}, v{TMP+8}, v{TMP+9}", f"v_cmp_ne_u32 vcc, 1, v{TMP+8}"], sCNT, "*8", every=True))
    o += flat([CTL, f"s_lshl_b32 s{sWB}, s{sCTL}, 19", f"s_lshl_b32 s{sT0}, s{sW}, 17", f"s_add_u32 s{sWB}, s{sWB}, s{sT0}", f"s_add_u32 s{sWB}, s{sWB}, {WS_WOF}",
               f"s_lshl_b32 s{sROT}, s{env['sJ']}, 14", f"s_lshl_b32 s{sML}, s{sW}, 13", f"s_add_u32 s{sML}, s{sML}, 131072"] + ep_addr())
    if XS:
        o += flat(["s_cmp_eq_u32 s0, 0", f"s_cbranch_scc1 Lxs_{N}"])
        for k in (8, 10): o += region([iteration("S", 0, xvm=w_step(k)), iteration("S", 1, xvm=w_step(k + 1))])
        o += flat([f"Lxs_{N}:"])
    o += flat([f"s_bitcmp1_b32 s{sW}, 0", f"s_cbranch_scc1 Lodd2_{N}", mask(0), "s_nop 1"])
    ew = early_w()
    o += region([iteration("S", 0, xvm=early_ep() + ew[:4]), iteration("F1", 1, xvm=ew[4:12])]) + region([iteration("F2", 0, last=True, xvm=ew[12:])])
    o += flat([f"s_branch Lfin_{N}", f"Lodd2_{N}:"]) + region([iteration("S", 0, xvm=early_ep() + (ew := early_w())[:4]), mask(0), "s_nop 0", iteration("S", 1, xvm=ew[4:16])])
    o += region([iteration("F1", 0, last=True, xvm=ew[16:20]), iteration("F2", 1, last=True, xvm=ew[20:])])
    if "over" in env["opt"].split(): print(env["over"])
    o += flat([f"Lfin_{N}:", f"s_cmp_ge_u32 s{sW}, 2", f"s_cbranch_scc1 Lepi_{N}", f"s_waitcnt vmcnt({24 if upto >= 3 and EW else 0})", "s_barrier", f"Lepi_{N}:",
               f"s_waitcnt vmcnt({24 if upto >= 3 and EW else 0})"]) + flat(st())
    o += flat([f"s_mov_b32 s{sT0}, {fbits(2.0**90)}", f"s_mov_b64 s[{sG}:{sG+1}], 0", "s_nop 5"])
    for qi in range(4): o += flat([f"v_cmp_ngt_f32 vcc, s{sT0}, v{LS+4*qi}", f"s_or_b64 s[{sG}:{sG+1}], s[{sG}:{sG+1}], vcc"])
    o += flat([f"""
    s_cmp_lg_u64 s[{sG}:{sG+1}], 0
    s_cselect_b32 s{sFL}, 1, 0
    v_mov_b32 v{TMP}, s{sFL}
    s_and_b32 s{sFL}, s{sK+2}, 0x1ffff
    s_lshl_b32 s{sT0}, s{sW}, 12
    s_add_u32 s{sT0}, s{sT0}, s{sFL}
    v_mov_b32 v{TMP+1}, s{sT0}
    ds_write_b32 v{TMP+1}, v{TMP}
    """])
    o += resolve_waits(flat([f"""
    """, epi_long(), st("T"), [] if EW else early_w(True)[:16], [w_step(i) for i in range(4, 8)] if upto >= 3 else [], W(vm="ctx"), [] if EW else early_w(True)[16:]]))
    o += flat([f"""
    v_mov_b32 v{TMP+1}, s{sFL}
    s_waitcnt lgkmcnt(0)
    s_barrier
    ds_read2st64_b32 v[{TMP+4}:{TMP+5}], v{TMP+1} offset0:0 offset1:16
    ds_read2st64_b32 v[{TMP+6}:{TMP+7}], v{TMP+1} offset0:32 offset1:48
    s_waitcnt lgkmcnt(0)
    v_or3_b32 v{TMP}, v{TMP+4}, v{TMP+5}, v{TMP+6}
    v_or_b32 v{TMP}, v{TMP}, v{TMP+7}
    v_readfirstlane_b32 s{sFL}, v{TMP}
    s_cmp_lg_u32 s{sFL}, 0
    s_cbranch_scc1 Lfallback_{N}
    Lnorm_{N}:
    """]) + flat(st("T"))
    MR = TMP + 16
    fb = [f"Lfallback_{N}:", "s_waitcnt vmcnt(0)", "s_mov_b32 s0, 0"] + [f"v_accvgpr_write_b32 a{r}, 0" for r in range(128)] + [f"v_mov_b32 v{LS+r}, 0" for r in range(16)]
    fb += [f"v_mov_b32 v{MR+qi}, {NINF}" for qi in range(4)]
    fb += [f"s_mov_b32 s{sCNT}, 0", f"s_lshr_b32 s{sODW}, s{sK+2}, 14", f"v_mov_b32 v{vKB}, v{vL16}", f"v_mov_b32 v{vVB}, v{vL16}", f"Lfb_{N}:", "s_barrier",
           f"s_lshr_b32 s{sKO}, s{sCNT}, 1", f"s_lshl_b32 s{sKO}, s{sKO}, 15", f"s_and_b32 s{sT0}, s{sCNT}, 1", f"s_lshl_b32 s{sT0}, s{sT0}, 13",
           f"s_add_u32 s{sKO}, s{sKO}, s{sT0}", f"s_lshl_b32 s{sT0}, s{sW}, 11", f"s_add_u32 s{sKO}, s{sKO}, s{sT0}", f"s_mov_b32 m0, s{sT0}", f"s_add_u32 s{sT0}, s{sT0}, 16384",
           f"buffer_load_dwordx4 v{vL16}, s[{sK}:{sK+3}], s{sKO} offen sc1 lds", f"buffer_load_dwordx4 v{vL16}, s[{sK}:{sK+3}], s{sKO} offen offset:1024 sc1 lds",
           f"s_mov_b32 m0, s{sT0}", f"s_add_u32 s{sKO}, s{sKO}, 16384",
           f"buffer_load_dwordx4 v{vL16}, s[{sK}:{sK+3}], s{sKO} offen sc1 lds", f"buffer_load_dwordx4 v{vL16}, s[{sK}:{sK+3}], s{sKO} offen offset:1024 sc1 lds",
           "s_waitcnt vmcnt(0)", "s_barrier"]
    fb += [x.t for x in k_reads(0) + v_reads(0)] + ["s_waitcnt lgkmcnt(0)"]
    for g, su in ((0, sUL), (1, sUS)):
        fb += [f"s_cmp_gt_u32 s{sCNT}, s{su}", f"s_cbranch_scc1 Lfbs{g}_{N}"]
        fb += [f"v_mov_b32 v{C(qi, kt)+e}, 0" for qi in GQ[g] for kt in range(2) for e in range(4)]
        fb += [f"s_cmp_lg_u32 s{sCNT}, s{su}", f"s_cbranch_scc1 Lfbm{g}_{N}", mask(g), f"Lfbm{g}_{N}:", "s_nop 1"]
        fb += [m for m, _ in qk(0, (g,))] + ["s_nop 7"]
        for qi in GQ[g]:
            a, b, t = S(0, qi, 0), S(0, qi, 1), TMP
            fb += [f"v_max3_f32 v{t}, v{a}, v{a+1}, v{a+2}", f"v_max3_f32 v{t}, v{t}, v{a+3}, v{b}",
                   f"v_max3_f32 v{t}, v{t}, v{b+1}, v{b+2}", f"v_max3_f32 v{t}, v{t}, v{b+3}, v{MR+qi}"]
            for sw in ("v_permlane16_swap_b32", "v_permlane32_swap_b32"):
                fb += [f"v_mov_b32 v{t+1}, v{t}", f"{sw} v{t}, v{t+1}", f"v_max_f32 v{t}, v{t}, v{t+1}"]
            fb += [f"v_sub_f32 v{t+1}, v{MR+qi}, v{t}", f"v_exp_f32 v{t+1}, v{t+1}", f"v_mov_b32 v{MR+qi}, v{t}"]
            fb += [f"v_sub_f32 v{S(0, qi, kt)+e}, v{S(0, qi, kt)+e}, v{t}" for kt in range(2) for e in range(4)]
            fb += [f"v_mul_f32 v{LS+4*qi+e}, v{t+1}, v{LS+4*qi+e}" for e in range(4)]
            for tt in range(8):
                a0 = (tt*4+qi)*4
                fb += [f"v_accvgpr_read_b32 v{t+4+e}, a{a0+e}" for e in range(4)]
                fb += [f"v_mul_f32 v{t+4+e}, v{t+1}, v{t+4+e}" for e in range(4)]
                fb += [f"v_accvgpr_write_b32 a{a0+e}, v{t+4+e}" for e in range(4)]
        ex, cv = softmax(0, (g,))
        fb += ex + cv + [m for m, _ in pv(0, (g,))] + ["s_nop 7", f"Lfbs{g}_{N}:"]
    fb += [f"s_add_u32 s{sCNT}, s{sCNT}, 1", f"s_cmp_lt_u32 s{sCNT}, s{sODW}", f"s_cbranch_scc1 Lfb_{N}", "s_waitcnt vmcnt(0)"] + (epi_short() if "epiend" not in env["opt"] else []) + epi_long()
    if upto >= 3: fb += [w_step(i) for i in range(4, 8)] + ep_addr() + early_ep()
    fb += ["s_waitcnt vmcnt(0)", "s_barrier", f"s_branch Lnorm_{N}"]
    env["fallback"] = flat(fb)
    return o
```

```python
from common import *
from flay import *

def tail(env, upto):
    (N, st, sW, sJ, sC, sT0, sT1, vL16, WS, pX, pB1, pB2, pOUT, flag_off, publish, check, rnd, opt) = [env[k] for k in
     "N st sW sJ sC sT0 sT1 vL16 WS pX pB1 pB2 pOUT flag_off publish check rnd opt".split()]
    sR = 12
    sA = 16
    sSUB = 20
    sK = 24
    sC0, sC1, sONE = 30, 32, 34
    sWB, sRB, sCTL, sRT, sMF, sFL, sCNT, sBLK, sN, sODD, sPAIR, sWD, sM0, sZ = 82, 79, 80, 81, 78, 83, 84, 85, 86, 87, 88, 89, 90, 40
    vG16, vRM, vP, vT = 2, 3, 4, 6
    GA, AV, BV, XR, ACC, AR = 8, 24, 40, 56, 64, 128
    RED = 114688
    o = []; XL = env['XL']; ids = [f"""
    s_and_b32 s{sT0}, s2, 7
    s_bfe_u32 s{sT1}, s2, 0x20003
    s_and_b32 s{sN}, s{sT0}, 3
    s_lshl_b32 s{sN}, s{sN}, 2
    s_add_u32 s{sN}, s{sN}, s{sT1}
    s_sub_u32 s{sBLK}, 15, s{sJ}
    s_mov_b32 s{sSUB}, 0x0f0f0f0f
    s_cmp_lt_u32 s{sT0}, 4
    s_cselect_b32 s{sBLK}, s{sJ}, s{sBLK}
    s_cselect_b32 s{sSUB}, s{sSUB}, 0xf0f0f0f0
    s_mov_b32 s{sSUB+1}, s{sSUB}
    s_bfe_u32 s{sT0}, s2, 0x10001
    s_lshl_b32 s{sRB}, s{sBLK}, 1
    s_add_u32 s{sRB}, s{sRB}, s{sT0}
    s_lshl_b32 s{sRT}, s{sRB}, 2
    s_add_u32 s{sRT}, s{sRT}, s{sW}
    """]
    HY = env['HY']; ROT = env['ROT']
    if HY: ids += [f"s_lshr_b32 s{sN}, s2, 5", f"s_lshl_b32 s{sN}, s{sN}, 1", f"s_bfe_u32 s{sT0}, s2, 0x10003", f"s_add_u32 s{sN}, s{sN}, s{sT0}"]
    ids2 = [f"""
    s_and_b32 s{sT0}, s2, 7
    s_lshl_b32 s{sRB}, s{sT0}, 2
    s_bfe_u32 s{sT1}, s2, 0x20003
    s_add_u32 s{sRB}, s{sRB}, s{sT1}
    s_lshr_b32 s{sBLK}, s{sRB}, 1
    s_lshl_b32 s{sN}, s{sCTL}, 1
    s_and_b32 s{sT1}, s{sT1}, 1
    s_add_u32 s{sN}, s{sN}, s{sT1}
    s_mov_b32 s{sSUB}, 0x33333333
    s_bitcmp0_b32 s2, 4
    s_cselect_b32 s{sSUB}, s{sSUB}, 0xcccccccc
    s_lshr_b32 s{sT0}, s2, 3
    s_bitset0_b32 s{sSUB}, s{sT0}
    s_mov_b32 s{sSUB+1}, s{sSUB}
    s_lshl_b32 s{sRT}, s{sRB}, 2
    s_add_u32 s{sRT}, s{sRT}, s{sW}
    s_sub_u32 s{sPAIR}, 15, s{sBLK}
    s_min_u32 s{sPAIR}, s{sPAIR}, s{sBLK}
    """]
    if XL: ids = ids2
    sSUBZ = 22 if HY else sSUB
    ids2 = [f"s_lshr_b32 s{sCTL}, s2, 5"] + ids2 + [f"s_mov_b32 s{sSUBZ}, 0x0f0f0f0f", f"s_cmp_lt_u32 s{sBLK}, 8", f"s_cselect_b32 s{sSUBZ}, s{sSUBZ}, 0xf0f0f0f0",
            f"s_mov_b32 s{sSUBZ+1}, s{sSUBZ}", f"s_mul_i32 s{sMF}, s{sJ}, 12288", f"s_lshl_b32 s{sT0}, s{sCTL}, 8", f"s_add_u32 s{sMF}, s{sMF}, s{sT0}",
            f"s_add_u32 s{sMF}, s{sMF}, {WS_MODF}"]
    def gemm_loads(kind):
        def w(i):
            g = []
            for t in range(4):
                x = [VM(f"buffer_load_dwordx4 {ar(env['wreg'](i, t), 4)}, v{vL16}, {WS}, s{sWB} offen offset:{t*1024} sc1", (kind + "w", i))]
                if t == 3: x.append(f"s_add_u32 s{sWB}, s{sWB}, 4096")
                g.append(x)
            return g
        def a(i):
            g = []
            for r in range(4):
                if ROT and kind == "c":
                    x = [f"s_lshl_b32 s{sCNT}, s{sJ}, 12", f"s_add_u32 s{sCNT}, s{sCNT}, {i*1024}", f"s_and_b32 s{sCNT}, s{sCNT}, 0x7fff",
                         f"v_add_u32 v{vT+1}, s{sCNT}, v{vL16}"] if r == 0 and (i & 3) == 0 else []
                    g.append(x + [VM(f"buffer_load_dwordx4 {vr(AR + (i % 8)*16 + 4*r, 4)}, v{vT+1}, {WS}, s{sA+r} offen offset:{(i & 3)*1024} sc1", (kind + "a", i))])
                    continue
                x = [VM(f"buffer_load_dwordx4 {vr(AR + (i % 8)*16 + 4*r, 4)}, v{vL16}, {WS}, s{sA+r} offen offset:{(i & 3)*1024} sc1", (kind + "a", i))]
                if (i & 3) == 3: x.append(f"s_add_u32 s{sA+r}, s{sA+r}, 4096")
                g.append(x)
            return g
        return w, a
    wreg = env["wreg"]
    NL = int(env['OV']('nl', 8))
    PD = dict(c=int(env['OV']('pdc', 4)), e=int(env['OV']('pde', 4)))
    def gemm(kind, ns, wl, al, extra):
        r = []
        for i in range(ns):
            sl = []
            for t in range(4):
                for q in range(4):
                    d = vr(ACC + (t*4+q)*4, 4)
                    sl.append(Slot(I(f"v_mfma_f32_16x16x32_bf16 {d}, {ar(wreg(i, t), 4)}, {vr(AR + (i % 8)*16 + 4*q, 4)}, {'0' if i == 0 else d}")))
            if 16 <= i < 16 + NL: sl[0].pre.append(W(vm=[(kind + "a", i)], lg=[("lw", i)]))
            else: sl[0].pre.append(W(vm=[(kind + "a", i), (kind + "w", i)]))
            ld = []
            pd = PD[kind]
            if (i >= 1 or pd < 8) and i + min(pd, 7) < ns: ld += al(i + min(pd, 7))
            if i >= 1 and i + 15 < ns:
                if i + 15 < 16 + NL: ld += [LG(f"ds_read_b128 {ar(wreg(i + 15, t), 4)}, v{vP + 1 if i < 3 else vP} offset:{((i - 1) if i < 3 else (i - 3))*4096 + t*1024}", ("lw", i + 15)) for t in range(4)]
                else: ld += wl(i + 15)
            ld += extra(i)
            for k, g in enumerate(ld): sl[k*16//len(ld)].mem.append(g)
            r += emit_slots(sl)
            if kind == "c" and i in (0, 15): r += st("T")
        return r
    def rot_rows(pitch):
        r = []
        for k in (1, 2, 3, 0):
            r += [f"s_add_u32 s{sT0}, s{sW}, {k}", f"s_and_b32 s{sT0}, s{sT0}, 3", f"s_mul_i32 s{sT0}, s{sT0}, {pitch}", f"s_add_u32 s{sA+k}, s{sA}, s{sT0}"]
        return r
    def reduce_waves():
        r = []
        for q in range(1, 5):
            r += [f"s_add_u32 s{sT0}, s{sW}, {q}", f"s_and_b32 s{sT0}, s{sT0}, 3", f"s_mul_i32 s{sT0}, s{sT0}, 12288", f"s_add_u32 s{sT0}, s{sT0}, {RED}",
                  f"v_add_u32 v{vT + (q & 1)}, s{sT0}, v{vL16}"]
            if q < 4: r += [LG(f"ds_write_b128 v{vT + (q & 1)}, {vr(ACC + (t*4+q)*4, 4)} offset:{(q-1)*4096 + t*1024}", "rw") for t in range(4)]
        r += [W(lg="rw"), "s_barrier"]
        for t in range(4):
            for q in range(1, 4): r += [LG(f"ds_read_b128 {vr(ACC + (t*4+q)*4, 4)}, v{vT} offset:{(q-1)*4096 + t*1024}", ("rr", t))]
        return r
    def sum4(t):
        b = ACC + t*16; r = [W(lg=[("rr", t)])]
        for h in (0, 2): r += [f"v_pk_add_f32 {vr(b+h, 2)}, {vr(b+h, 2)}, {vr(b+4+h, 2)}", f"v_pk_add_f32 {vr(b+8+h, 2)}, {vr(b+8+h, 2)}, {vr(b+12+h, 2)}"]
        for h in (0, 2): r += [f"v_pk_add_f32 {vr(b+h, 2)}, {vr(b+h, 2)}, {vr(b+8+h, 2)}"]
        return r
    def modf(dst, vec):
        return [f"s_add_u32 s{sT0}, s{sMF}, {vec*2048}"] + [VM(f"buffer_load_dwordx4 {vr(dst+4*t, 4)}, v{vG16}, {WS}, s{sT0} offen offset:{t*64} sc1", "ep") for t in range(4)]
    def sync(kind, mask, between, after=()):
        ld = f"buffer_load_dword v{vP+1}, v{vP}, {WS}, s{sFL} offen sc1"
        line = sPAIR if (XL and kind == 1) or (HY and kind == 2) else None
        return (flag_off(sFL, kind, True) + publish(vP, sFL) + (ids if kind == 1 else []) + flag_off(sFL, kind, False, line) + [f"v_and_b32 v{vP}, 31, v0", f"v_lshlrev_b32 v{vP}, 2, v{vP}"]
                + between + [VM(ld, ("poll", kind))] + list(after) + check(ld, f"v_cmp_ne_u32 vcc, 1, v{vP+1}", sCNT, [("poll", kind)], mask) + ["s_barrier"])
    wl, al = gemm_loads("c"); wl = lambda i: env["w_step"](i)
    o += st()
    btw = []; wpre = [f"s_lshl_b32 s{sM0}, s{sW}, 15"] + [env["w_step"](i) for i in range(12, 16)]
    w811 = [env["w_step"](i) for i in range(8, 12)]
    if env["XS"]: w811 = ["s_cmp_lg_u32 s0, 0", f"s_cbranch_scc1 Lw8_{N}"] + [x.t for x in flat(w811)] + [f"Lw8_{N}:"]
    wpre = wpre + w811 + [env["w_step"](i, f"s{sM0}, {(i - 18)*4096}") for i in range(18, 16 + NL)]
    btw += [f"""
    v_lshrrev_b32 v{vT}, 4, v0
    v_lshlrev_b32 v{vG16}, 4, v{vT}
    v_and_b32 v{vT+1}, 15, v0
    v_lshlrev_b32 v{vRM}, 10, v{vT+1}
    v_lshl_add_u32 v{vRM}, v{vT}, 3, v{vRM}
    s_mul_i32 s{sMF}, s{sJ}, 12288
    s_lshl_b32 s{sT0}, s{sCTL}, 8
    s_add_u32 s{sMF}, s{sMF}, s{sT0}
    s_add_u32 s{sMF}, s{sMF}, {WS_MODF}
    s_lshl_b32 s{sA}, s{sRB}, 19
    s_lshl_b32 s{sT0}, s{sW}, 15
    s_add_u32 s{sA}, s{sA}, s{sT0}
    s_add_u32 s{sA}, s{sA}, {WS_CTX}
    """] + rot_rows(131072)
    CBX = env["CB"] + 16
    aft1 = [f"v_mov_b32 v{XR+k}, v{CBX+k}" for k in range(8)]
    for dst, k in ((GA, 0), (BV, 1), (AV, 2)):
        aft1 += [LG(f"ds_bpermute_b32 v{dst+4*t+e}, v{vG16}, v{CBX+8+k} offset:{(16*t+e)*4}", "bp") for t in range(4) for e in range(4)]
    aft1 += [W(lg="bp")]
    for j in range(0, 16, 2): aft1 += [f"v_add_f32 v{AV+j}, 1.0, v{AV+j}", f"v_add_f32 v{AV+j+1}, 1.0, v{AV+j+1}"] + rnd(AV+j, AV+j+1, vT)
    o += sync(1, None, btw + wpre, aft1) + st() + st("T")
    o += [al(i) for i in range(PD["c"])] + [f"v_add_u32 v{vP}, s{sM0}, v{vL16}", f"s_lshl_b32 s{sT0}, s{sW}, 13", f"s_add_u32 s{sT0}, s{sT0}, 131072", f"v_add_u32 v{vP+1}, s{sT0}, v{vL16}"]
    def w1_dma(g):
        grp = [f"s_add_u32 m0, s{sM0}, {g*16384}", f"s_add_u32 s{sCNT}, s{sWD}, {g*16384}"]; r = []
        for n in range(4):
            grp.append(VM(f"buffer_load_dwordx4 v{vL16}, {WS}, s{sCNT} offen offset:{n*1024} sc1 lds", ("w1", g))); r.append(grp); grp = []
        return SEQ(r)
    o += [f"s_lshl_b32 s{sM0}, s{sW}, 12", f"s_mul_i32 s{sWD}, s{sN}, 114688", f"s_add_u32 s{sWD}, s{sWD}, s{sM0}", f"s_add_u32 s{sWD}, s{sWD}, {WS_W1F}"]
    NW0 = int(env["OV"]("nw0", 4)); NW1 = int(env["OV"]("nw1", 7))
    o += gemm("c", 32, wl, al, lambda i: [["s_barrier"]] if i == 20 and NL else (w1_dma(i - 32 + NW0) if i >= 32 - NW0 else []))
    w1q = sum((w1_dma(g) for g in range(NW0, NW1)), [])
    cepi = len(o) + 2
    o += st() + st("T") + reduce_waves()
    F, Z, ZP, ST = AR, AR+16, AR+32, AR+40
    for j in range(8): o += [f"v_lshlrev_b32 v{F+2*j}, 16, v{XR+j}", f"v_and_b32 v{F+2*j+1}, 0xffff0000, v{XR+j}"]
    o += [f"s_lshl_b32 s{sT0}, s{sRT}, 14", f"s_lshl_b32 s{sT1}, s{sCTL}, 11", f"s_add_u32 s{sT0}, s{sT0}, s{sT1}", f"s_add_u32 s{sFL}, s{sT0}, {WS_Z}"]
    for t in range(4):
        o += sum4(t)
        for h in (0, 2): o += [f"v_pk_fma_f32 {vr(F+4*t+h, 2)}, {vr(ACC+t*16+h, 2)}, {vr(GA+4*t+h, 2)}, {vr(F+4*t+h, 2)}"]
        for j in (2*t, 2*t+1): o += rnd(F+2*j, F+2*j+1, XR+j)
        for h in (0, 2): o += [f"v_pk_mul_f32 {vr(Z+4*t+h, 2)}, {vr(F+4*t+h, 2)}, {vr(AV+4*t+h, 2)}"]
        for j in (2*t, 2*t+1): o += [f"v_cvt_pk_bf16_f32 v{ZP+j}, v{Z+2*j}, v{Z+2*j+1}"]
        if t & 1: o += [VM(f"buffer_store_dwordx4 {vr(ZP+2*(t-1), 4)}, v{vL16}, {WS}, s{sFL} offen offset:{(t >> 1)*1024} sc1", "zst")]
    if HY:
        o += [f"s_add_u32 s{sFL}, s{sFL}, {WS_X1 - WS_Z}"]
        o += [VM(f"buffer_store_dwordx4 {vr(XR+4*p, 4)}, v{vL16}, {WS}, s{sFL} offen offset:{p*1024} sc1", "zst") for p in range(2)]
    for j in range(0, 16, 2):
        x, z, a, b = vr(F+j, 2), vr(Z+j, 2), vr(AV+j, 2), vr(BV+j, 2); S = [vr(ST+2*k, 2) for k in range(6)]
        if j == 0:
            o += [f"v_pk_add_f32 {S[0]}, {x}, {vr(F+2, 2)}", f"v_pk_mul_f32 {S[1]}, {x}, {x}", f"v_pk_add_f32 {S[2]}, {z}, {vr(Z+2, 2)}",
                  f"v_pk_mul_f32 {S[3]}, {z}, {z}", f"v_pk_mul_f32 {S[4]}, {a}, {z}", f"v_pk_mul_f32 {S[5]}, {b}, {z}"]
        else:
            if j > 2: o += [f"v_pk_add_f32 {S[0]}, {S[0]}, {x}", f"v_pk_add_f32 {S[2]}, {S[2]}, {z}"]
            o += [f"v_pk_fma_f32 {S[1]}, {x}, {x}, {S[1]}", f"v_pk_fma_f32 {S[3]}, {z}, {z}, {S[3]}",
                  f"v_pk_fma_f32 {S[4]}, {a}, {z}, {S[4]}", f"v_pk_fma_f32 {S[5]}, {b}, {z}, {S[5]}"]
    o += [f"v_add_f32 v{ST+2*k}, v{ST+2*k}, v{ST+2*k+1}" for k in range(6)]
    o += [f"v_permlane16_swap_b32 v{ST+4*k}, v{ST+4*k+2}" for k in range(3)]
    o += [f"v_add_f32 v{ST+4*k}, v{ST+4*k}, v{ST+4*k+2}" for k in range(3)]
    o += [f"v_mov_b32 v{ST+10}, v{ST+8}", f"v_permlane32_swap_b32 v{ST}, v{ST+4}", f"v_permlane32_swap_b32 v{ST+8}, v{ST+10}",
          f"v_add_f32 v{ST}, v{ST}, v{ST+4}", f"v_add_f32 v{ST+1}, v{ST+8}, v{ST+10}",
          f"s_lshl_b32 s{sT0}, s{sRT}, 12", f"s_lshr_b32 s{sT1}, s{sCTL}, 1", f"s_lshl_b32 s{sT1}, s{sT1}, 10", f"s_add_u32 s{sT0}, s{sT0}, s{sT1}",
          f"s_and_b32 s{sT1}, s{sCTL}, 1", f"s_lshl_b32 s{sT1}, s{sT1}, 3", f"s_add_u32 s{sT0}, s{sT0}, s{sT1}", f"s_add_u32 s{sT0}, s{sT0}, {WS_STAT}",
          VM(f"buffer_store_dwordx2 {vr(ST, 2)}, v{vL16}, {WS}, s{sT0} offen sc1", "zst")]
    head, epi = flat(o[:cepi]), flat(o[cepi:])
    last = next(i for i, x in enumerate(epi) if x.vm == "zst")
    for k in reversed(range(len(w1q))): epi[(k*last)//len(w1q):(k*last)//len(w1q)] = flat(w1q[k])
    o = head + epi
    PRE = [("cw", i) for i in range(12) for t in range(4)]
    if upto < 4: return resolve_waits(flat(o), pre_vm=PRE)
    DA, XA, WF, DS, CO, B1, HB = 64, 120, 128, 160, 192, 200, 216
    EARR, UVS = 114688, 114688 + 3072
    vW, vW6, vWX, vE, vU, vU6, g4, c16 = 8, 9, 10, 11, 12, 13, 14, 15
    A2, B2_, TT = 16, 24, 32
    o += [f"v_lshlrev_b32 v{vT+1}, 5, v0", f"s_mul_i32 s{sT0}, s{sJ}, 12288", f"s_add_u32 s{sT0}, s{sT0}, {WS_MODF + 3*2048}"]
    o += [VM(f"buffer_load_dwordx4 {vr(r, 4)}, v{vT+1}, {WS}, s{sT0} offen offset:{off} sc1", "ab") for r, off in ((A2, 2048), (A2+4, 2064), (B2_, 0), (B2_+4, 16))]
    wl2, al2 = gemm_loads("e")
    if HY: o += ids2
    if upto >= 5:
        o += [f"s_mul_i32 s{sWB}, s{sCTL}, {56*4096}", f"s_mul_i32 s{sT0}, s{sW}, {14*4096}", f"s_add_u32 s{sWB}, s{sWB}, s{sT0}", f"s_add_u32 s{sWB}, s{sWB}, {WS_W2F}"]
    o += [W(vm="zst"), "s_barrier"] + st() + st("T")
    btw = [[w1_dma(g) for g in range(NW1, 7)]] + srd(sR, pB1, 3584) + [f"""
    s_and_b32 s{sODD}, s{sN}, 1
    s_lshl_b32 s{sPAIR}, s{sBLK}, 2
    s_add_u32 s{sPAIR}, s{sPAIR}, s{sW}
    v_lshrrev_b32 v{g4}, 4, v0
    v_and_b32 v{c16}, 15, v0
    s_lshl_b32 s{sT0}, s{sODD}, 10
    v_add_u32 v{vW}, s{sT0}, v{vL16}
    s_cmp_eq_u32 s{sODD}, 0
    s_cselect_b32 s{sT0}, 6144, 0
    v_add_u32 v{vW6}, s{sT0}, v{vL16}
    s_lshl_b32 s{sT0}, s{sW}, 11
    v_add_u32 v{vWX}, s{sT0}, v{vL16}
    v_min_u32 v{vE}, 2, v{c16}
    v_lshlrev_b32 v{vE}, 10, v{vE}
    v_lshl_add_u32 v{vE}, v{g4}, 3, v{vE}
    v_add_u32 v{vE}, {EARR}, v{vE}
    v_lshlrev_b32 v{vT}, 3, v{g4}
    s_mul_i32 s{sT0}, s{sN}, 224
    s_lshl_b32 s{sT1}, s{sODD}, 5
    s_add_u32 s{sT1}, s{sT1}, s{sT0}
    """]
    btw += [VM(f"buffer_load_dwordx2 {vr(B1+2*i, 2)}, v{vT}, s[{sR}:{sR+3}], s{sT1} offen offset:{i*32}", "b1") for i in range(6)]
    btw += [f"s_cmp_eq_u32 s{sODD}, 0", f"s_cselect_b32 s{sT1}, 192, 0", f"s_add_u32 s{sT1}, s{sT1}, s{sT0}",
            VM(f"buffer_load_dwordx2 {vr(B1+12, 2)}, v{vT}, s[{sR}:{sR+3}], s{sT1} offen", "b1")]
    btw += [W(vm="ab")] + [f"v_add_f32 v{A2+j}, 1.0, v{A2+j}" for j in range(8)]
    for j in range(4):
        btw += [f"v_cvt_pk_bf16_f32 v{TT+j}, v{A2+2*j}, v{A2+2*j+1}", f"v_cvt_pk_bf16_f32 v{TT+4+j}, v{B2_+2*j}, v{B2_+2*j+1}", f"v_mov_b32 v{TT+8+j}, 0x3f803f80"]
    for j in range(4): btw += [f"v_lshlrev_b32 v{A2+2*j}, 16, v{TT+j}", f"v_and_b32 v{A2+2*j+1}, 0xffff0000, v{TT+j}"]
    btw += [f"v_add_u32 v{vT}, {EARR}, v{vL16}"] + [LG(f"ds_write_b128 v{vT}, {vr(TT+4*k, 4)} offset:{k*1024}", "ew") for k in range(3)]
    SS = TT+12
    for j in range(0, 8, 2):
        a, b = vr(A2+j, 2), vr(B2_+j, 2); S = [vr(SS+2*k, 2) for k in range(5)]
        if j == 0: btw += [f"v_pk_add_f32 {S[0]}, {a}, {vr(A2+2, 2)}", f"v_pk_mul_f32 {S[1]}, {a}, {a}", f"v_pk_mul_f32 {S[2]}, {a}, {b}",
                           f"v_pk_add_f32 {S[3]}, {b}, {vr(B2_+2, 2)}", f"v_pk_mul_f32 {S[4]}, {b}, {b}"]
        else:
            if j > 2: btw += [f"v_pk_add_f32 {S[0]}, {S[0]}, {a}", f"v_pk_add_f32 {S[3]}, {S[3]}, {b}"]
            btw += [f"v_pk_fma_f32 {S[1]}, {a}, {a}, {S[1]}", f"v_pk_fma_f32 {S[2]}, {a}, {b}, {S[2]}", f"v_pk_fma_f32 {S[4]}, {b}, {b}, {S[4]}"]
    btw += [f"v_add_f32 v{SS+2*k}, v{SS+2*k}, v{SS+2*k+1}" for k in range(5)]
    for m in ("quad_perm:[1,0,3,2]", "quad_perm:[2,3,0,1]", "row_ror:4", "row_ror:8"):
        btw += [f"v_add_f32_dpp v{SS+2*k}, v{SS+2*k}, v{SS+2*k} {m} row_mask:0xf bank_mask:0xf" for k in range(5)]
    for sw in ("v_permlane16_swap_b32", "v_permlane32_swap_b32"):
        btw += [f"v_mov_b32 v{SS+2*k+1}, v{SS+2*k}" for k in range(5)] + [f"{sw} v{SS+2*k}, v{SS+2*k+1}" for k in range(5)]
        btw += [f"v_add_f32 v{SS+2*k}, v{SS+2*k}, v{SS+2*k+1}" for k in range(5)]
    btw += [f"v_readfirstlane_b32 s{sK+k}, v{SS+2*k}" for k in range(5)]
    c0 = -2*0.7978845608028654*1.4426950408889634
    btw += [f"s_mov_b32 s{sC0}, {fbits(c0)}", f"s_mov_b32 s{sC0+1}, s{sC0}", f"s_mov_b32 s{sC1}, {fbits(c0*0.044715)}", f"s_mov_b32 s{sC1+1}, s{sC1}",
            f"s_mov_b32 s{sONE}, 1.0", f"s_mov_b32 s{sONE+1}, 1.0",
            f"s_lshl_b32 s{sZ}, s{sPAIR}, 15", f"s_add_u32 s{sZ}, s{sZ}, {WS_Z}", f"s_add_u32 s{sZ+1}, s{sZ}, 16384",
            f"s_lshl_b32 s{sZ+2}, s{sPAIR}, 13", f"s_add_u32 s{sZ+2}, s{sZ+2}, {WS_STAT}", f"s_add_u32 s{sZ+3}, s{sZ+2}, 4096"]
    btw += [W(vm=[("w1", 6)], lg="ew"), "s_barrier"]
    def xr(s):
        b = WF + (s % 3)*12
        return ([f"v_add_u32 v{vWX}, 57344, v{vWX}"] if s == 8 else []) + \
               [LG(f"ds_read_b128 {vr(b+4*k, 4)}, v{vWX} offset:{(s & 7)*7168 + k*1024}", ("x", s)) for k in range(2)] + \
               [LG(f"ds_read_b64 {vr(b+8+2*hh, 2)}, v{vE} offset:{s*64 + hh*32}", ("x", s)) for hh in range(2)]
    NE2 = int(env['OV']('ne2', 4)); aft = []
    early2 = sum((wl2(i) for i in range(NE2)), []) if upto >= 5 else []
    NB2 = int(env['OV']('nb2', 2))
    k_ = next(i for i, x in enumerate(btw) if isinstance(x, It) and x.wvm == "ab")
    btw[k_:k_] = early2[:4*NB2]; early2 = early2[4*NB2:]
    aft += xr(0) + xr(1)
    for s in range(16):
        b = WF + (s % 3)*12
        aft += [W(lg=[("x", s)])] + [f"v_mfma_f32_16x16x32_bf16 {vr(XA+4*k, 4)}, {vr(b+4*k, 4)}, {vr(b+8, 4)}, {'0' if s == 0 else vr(XA+4*k, 4)}" for k in range(2)]
        if s + 2 < 16: aft += xr(s + 2)
        if s % 2 and early2: aft += early2.pop(0)
    aft += [f"v_lshlrev_b32 v{vT}, 9, v{c16}", f"v_lshl_add_u32 v{vT}, v{g4}, 4, v{vT}", f"s_lshl_b32 s{sT0}, s{sW}, 7", f"s_add_u32 s{sT0}, s{sT0}, {UVS}",
            f"v_add_u32 v{vT}, s{sT0}, v{vT}", f"v_lshlrev_b32 v{vU6}, 4, v{g4}", f"s_lshl_b32 s{sT0}, s{sODD}, 6", f"s_add_u32 s{sT0}, s{sT0}, {UVS}",
            f"v_add_u32 v{vU}, s{sT0}, v{vU6}", f"s_cmp_eq_u32 s{sODD}, 0", f"s_cselect_b32 s{sT0}, 384, 0", f"s_add_u32 s{sT0}, s{sT0}, {UVS}",
            f"v_add_u32 v{vU6}, s{sT0}, v{vU6}"]
    aft += [LG(f"ds_write_b128 v{vT}, {vr(XA+4*k, 4)} offset:{k*64}", "uw") for k in range(2)] + [f"v_lshlrev_b32 v{vT+1}, 3, v0", W(lg="uw")]
    o += sync(2, sSUBZ, btw, aft) + st() + st("T")
    def Zf(s, r): return ar((s*2+r)*4, 4)
    def z_ld(s):
        g = []
        for r in range(2):
            x = [VM(f"buffer_load_dwordx4 {Zf(s, r)}, v{vL16}, {WS}, s{sZ+r} offen offset:{(s & 3)*1024} sc1", ("z", s))]
            if (s & 3) == 3: x.append(f"s_add_u32 s{sZ+r}, s{sZ+r}, 4096")
            g.append(x)
        return g
    o += [z_ld(s) for s in range(4)]
    stat = [VM(f"buffer_load_dwordx4 {vr(DS + r*16 + 4*c2, 4)}, v{vL16}, {WS}, s{sZ+2+r} offen offset:{c2*1024} sc1", "stat") for r in range(2) for c2 in range(4)]
    LA = 4
    frags = [(s, i) for s in range(16) for i in range(7)]; slots = []
    for f, (s, i) in enumerate(frags):
        for r in range(2):
            d = vr(DA + (i*2+r)*4, 4)
            slots.append(Slot(I(f"v_mfma_f32_16x16x32_bf16 {d}, {vr(WF + (f % 8)*4, 4)}, {Zf(s, r)}, {'0' if s == 0 else d}")))
        if f % 2 == 0: slots[2*f].pre.append(W(lg=[("wf", f+1)]))
        if i == 0: slots[2*f].pre.append(W(vm=[("z", s)]))
    def rd(f):
        s, i = frags[f]
        g = [f"v_add_u32 v{vW}, 57344, v{vW}", f"v_add_u32 v{vW6}, 57344, v{vW6}"] if (s, i) == (8, 0) else []
        return g, LG(f"ds_read_b128 {vr(WF + (f % 8)*4, 4)}, v{vW if i < 6 else vW6} offset:{(s & 7)*7168 + (i*1024 if i < 6 else 0)}", ("wf", f))
    for f in range(LA): o += [rd(f)[1]]
    for f in range(LA, len(frags)):
        g, x = rd(f); i = 2*(f - LA)
        if g: slots[i-1].alu += flat(g)
        slots[i].mem.append(x)
    GB, B2 = 16, 32
    ld = sum((z_ld(s) for s in range(4, 16)), []) + stat
    ZP_ = float(env["OV"]("zp", 3))
    ld = ld[:8] + stat + ld[8:24] if "statlate" not in opt else ld
    for k, g in enumerate(ld): slots[1 + 2*int(k*ZP_/2)].mem.append(g)
    if upto >= 5:
        NM2 = int(env['OV']('nm2', 8))
        for k, g in enumerate(early2 + sum((wl2(i) for i in range(NE2, NM2)), [])): slots[int(env["OV"]("m2s", 101)) + int(env["OV"]("m2d", 5))*k].mem.append(g)
        ep = flat(srd(sR, pB2, 1024) + [f"v_lshlrev_b32 v{vT}, 3, v{g4}", modf(GB, 5), f"s_lshl_b32 s{sT0}, s{sCTL}, 7"] +
                  [VM(f"buffer_load_dwordx2 {vr(B2+2*t, 2)}, v{vT}, s[{sR}:{sR+3}], s{sT0} offen offset:{t*32}", "ep") for t in range(4)])
        if HY: ep += flat([f"s_lshl_b32 s{sT0}, s{sRT}, 14", f"s_lshl_b32 s{sT1}, s{sCTL}, 11", f"s_add_u32 s{sT0}, s{sT0}, s{sT1}", f"s_add_u32 s{sT0}, s{sT0}, {WS_X1}"] +
                          [VM(f"buffer_load_dwordx4 {vr(XR+4*p, 4)}, v{vL16}, {WS}, s{sT0} offen offset:{p*1024} sc1", "ep") for p in range(2)])
        for k, g in enumerate(ep): slots[int(env["OV"]("eps", 189)) + 2*k].mem.append(g)
    bg = []
    for r in range(2):
        b = DS + r*16
        for ct in range(1, 8): bg += [f"v_add_f32 v{b}, v{b}, v{b+2*ct}", f"v_add_f32 v{b+1}, v{b+1}, v{b+2*ct+1}"]
        S1, S5, S2, S3, S4, S6, M1, R1, T0, T1, T2 = b, b+1, b+2, b+3, b+4, b+5, b+6, b+7, b+8, b+9, b+10
        bg += [f"v_mov_b32 v{S2}, v{S1}", f"v_mov_b32 v{S6}, v{S5}", f"v_permlane16_swap_b32 v{S1}, v{S2}", f"v_permlane16_swap_b32 v{S5}, v{S6}",
               f"v_mov_b32 v{S3}, v{S1}", f"v_mov_b32 v{S4}, v{S2}", f"v_permlane32_swap_b32 v{S1}, v{S3}", f"v_permlane32_swap_b32 v{S2}, v{S4}"]
        n = fbits(1/512); al_, be, ga, de = CO+4*r, CO+4*r+1, CO+4*r+2, CO+4*r+3
        bg += [f"v_mul_f32 v{M1}, {n}, v{S1}",
               f"v_mul_f32 v{T0}, {n}, v{S2}", f"v_fma_f32 v{T0}, -v{M1}, v{M1}, v{T0}", f"v_add_f32 v{T0}, {fbits(EPS)}, v{T0}", f"v_rsq_f32 v{R1}, v{T0}",
               f"v_fma_f32 v{T0}, -v{M1}, s{sK}, v{S3}",
               f"v_mul_f32 v{T1}, s{sK+1}, v{M1}", f"v_fma_f32 v{T1}, -2.0, v{S5}, v{T1}", f"v_fma_f32 v{T1}, v{T1}, v{M1}, v{S4}",
               f"v_fma_f32 v{T2}, -v{M1}, s{sK+2}, v{S6}",
               f"v_fma_f32 v{T0}, v{T0}, v{R1}, s{sK+3}", f"v_mul_f32 v{T0}, {n}, v{T0}",
               f"v_mul_f32 v{T1}, v{T1}, v{R1}", f"v_fma_f32 v{T1}, 2.0, v{T2}, v{T1}", f"v_fma_f32 v{T1}, v{T1}, v{R1}, s{sK+4}",
               f"v_mul_f32 v{T1}, {n}, v{T1}", f"v_fma_f32 v{T1}, -v{T0}, v{T0}, v{T1}", f"v_add_f32 v{T1}, {fbits(EPS)}, v{T1}", f"v_rsq_f32 v{ga}, v{T1}",
               f"v_mul_f32 v{M1}, -1.0, v{M1}", f"v_mul_f32 v{al_}, v{R1}, v{ga}", f"v_mul_f32 v{de}, v{T0}, v{ga}", f"v_mul_f32 v{be}, v{M1}, v{al_}",
               f"v_mul_f32 v{de}, -1.0, v{de}"]
    bg[0] = [W(vm="stat"), bg[0]]
    spread(slots, bg, int(env["OV"]("bgs", 90)), 222)
    if "nodpack" not in opt: pack_slots(slots)
    slots[14].alu += st("T")
    o += emit_slots(slots) + st() + st("T")
    U = [128, 140, 152]; BB, G = 164, 168
    def uvs(n): return [LG(f"ds_read_b128 {vr(U[n % 3]+4*k, 4)}, v{vU if n else vU6} offset:{k*512 + ((n-1)*64 if n else 0)}", ("u", n)) for k in range(3)]
    late = sum((wl2(i) for i in range(NM2, 14)), []) if upto >= 5 else []
    sHF, sHH = sZ, sZ+2
    order = (6, 0, 1, 2, 3, 4, 5)
    o += uvs(0) + uvs(1) + [W(vm="b1"), f"v_mov_b32 v{BB+12}, s{sC0}", f"v_mov_b32 v{BB+13}, s{sC0}", f"""
    s_mul_i32 s{sT0}, s{sPAIR}, {2*57344}
    s_add_u32 s{sT0}, s{sT0}, {WS_H1}
    s_mul_i32 s{sT1}, s{sN}, 7
    s_add_u32 s{sT1}, s{sT1}, s{sODD}
    s_lshl_b32 s{sT1}, s{sT1}, 9
    s_add_u32 s{sHF}, s{sT0}, s{sT1}
    s_add_u32 s{sHF+1}, s{sHF}, 57344
    s_or_b32 s{sT1}, s{sN}, 1
    s_mul_i32 s{sT1}, s{sT1}, 7
    s_sub_u32 s{sT1}, s{sT1}, 1
    s_lshl_b32 s{sT1}, s{sT1}, 9
    s_add_u32 s{sHH}, s{sT0}, s{sT1}
    s_lshl_b32 s{sT1}, s{sODD}, 3
    s_add_u32 s{sHH}, s{sHH}, s{sT1}
    s_add_u32 s{sHH+1}, s{sHH}, 57344
    """]
    depi = []
    for n, i in enumerate(order):
        if n + 2 < 7: depi += uvs(n+2)
        depi += [f"v_lshlrev_b32 v{BB}, 16, v{B1+2*i}", f"v_and_b32 v{BB+1}, 0xffff0000, v{B1+2*i}",
                 f"v_lshlrev_b32 v{BB+2}, 16, v{B1+2*i+1}", f"v_and_b32 v{BB+3}, 0xffff0000, v{B1+2*i+1}", W(lg=[("u", n)])]
        u = U[n % 3]; cells = [(r, h) for r in range(2) for h in (0, 2)]
        Xv = lambda r, h: vr(DA + (i*2+r)*4 + h, 2)
        T = lambda r, h: vr(G + r*4 + h, 2)
        lo, hi = "op_sel:[0,0,0] op_sel_hi:[1,0,1]", "op_sel:[0,1,0] op_sel_hi:[1,1,1]"
        for r, h in cells: depi += [f"v_pk_fma_f32 {T(r,h)}, {vr(u+8+h,2)}, {vr(CO+4*r+2,2)}, {vr(BB+h,2)} {hi}"]
        for r, h in cells: depi += [f"v_pk_fma_f32 {T(r,h)}, {vr(u+4+h,2)}, {vr(CO+4*r+2,2)}, {T(r,h)} {lo}"]
        for r, h in cells: depi += [f"v_pk_fma_f32 {T(r,h)}, {vr(u+h,2)}, {vr(CO+4*r,2)}, {T(r,h)} {hi}"]
        for r, h in cells: depi += [f"v_pk_fma_f32 {Xv(r,h)}, {Xv(r,h)}, {vr(CO+4*r,2)}, {T(r,h)} {lo}"]
        for r, h in cells: depi += [f"v_pk_mul_f32 {T(r,h)}, {Xv(r,h)}, {Xv(r,h)}"]
        for r, h in cells: depi += [f"v_pk_fma_f32 {T(r,h)}, {T(r,h)}, s[{sC1}:{sC1+1}], {vr(BB+12,2)}"]
        for r, h in cells: depi += [f"v_pk_mul_f32 {T(r,h)}, {T(r,h)}, {Xv(r,h)}"]
        depi += [f"v_exp_f32 v{G+k}, v{G+k}" for k in range(8)]
        for r, h in cells: depi += [f"v_pk_add_f32 {T(r,h)}, {T(r,h)}, s[{sONE}:{sONE+1}]"]
        depi += [f"v_rcp_f32 v{G+k}, v{G+k}" for k in range(8)]
        for r, h in cells: depi += [f"v_pk_mul_f32 {Xv(r,h)}, {Xv(r,h)}, {T(r,h)}"]
        for r, h in cells:
            a = DA + (i*2+r)*4 + h
            depi += [f"v_cvt_pk_bf16_f32 v{HB + ((3*r + i//2)*4 + (i & 1)*2 if i < 6 else 24 + 2*r) + h//2}, v{a}, v{a+1}"]
        if i < 6 and i & 1:
            depi += [VM(f"buffer_store_dwordx4 {vr(HB+4*(3*r + i//2), 4)}, v{vL16}, {WS}, s{sHF+r} offen offset:{(i//2)*1024} sc1", "hst2") for r in range(2)]
        if i == 6:
            depi += [VM(f"buffer_store_dwordx2 {vr(HB+24+2*r, 2)}, v{vL16}, {WS}, s{sHH+r} offen sc1", "hst2") for r in range(2)]
    depi = flat(depi); NL2 = min(len(late), int(env['OV']('nl2', 4))); span = len(depi)*6//7
    for k in reversed(range(NL2)): depi[(k*span)//NL2:(k*span)//NL2] = flat(late[k])
    o += depi; late = late[NL2:]
    if upto < 5: return resolve_waits(flat(o), pre_vm=PRE)
    o += st("T") + [W(vm="hst2"), "s_barrier"] + st() + st("T")
    btw = [f"s_mul_i32 s{sA}, s{sRB}, {4*57344}", f"s_mul_i32 s{sT0}, s{sW}, {14*1024}", f"s_add_u32 s{sA}, s{sA}, s{sT0}", f"s_add_u32 s{sA}, s{sA}, {WS_H1}"]
    btw += rot_rows(57344) + srd(sR, pOUT, 2*MB)
    F2, BF = 40, 8
    btw += [W(vm="ep")] + late
    vOW, vOR = 8, 9
    btw += [f"""
    s_mul_i32 s{sT0}, s{sW}, 2304
    v_mul_u32_u24 v{vOW}, 144, v{c16}
    v_lshl_add_u32 v{vOW}, v{g4}, 3, v{vOW}
    v_add_u32 v{vOW}, s{sT0}, v{vOW}
    v_lshrrev_b32 v{vRM}, 3, v0
    v_and_b32 v{vG16}, 7, v0
    v_lshlrev_b32 v{vG16}, 4, v{vG16}
    v_mul_u32_u24 v{vOR}, 144, v{vRM}
    v_add3_u32 v{vOR}, v{vOR}, v{vG16}, s{sT0}
    v_lshl_add_u32 v{vRM}, v{vRM}, 10, v{vG16}
    """]
    for j in range(8): btw += [f"v_lshlrev_b32 v{F2+2*j}, 16, v{B2+j}", f"v_and_b32 v{F2+2*j+1}, 0xffff0000, v{B2+j}"]
    o += sync(3, sSUB, btw) + st() + st("T")
    o += [al2(i) for i in range(PD["e"])]
    o += gemm("e", 14, wl2, al2, lambda i: []) + st("T")
    o += reduce_waves()
    F = AR
    for j in range(8): o += [f"v_lshlrev_b32 v{F+2*j}, 16, v{XR+j}", f"v_and_b32 v{F+2*j+1}, 0xffff0000, v{XR+j}"]
    o += [f"s_lshl_b32 s{sT0}, s{sRT}, 14", f"s_lshl_b32 s{sT1}, s{sCTL}, 7", f"s_add_u32 s{sT0}, s{sT0}, s{sT1}"]
    for t in range(4):
        b = ACC + t*16
        o += sum4(t)
        for h in (0, 2): o += [f"v_pk_add_f32 {vr(b+h, 2)}, {vr(b+h, 2)}, {vr(F2+4*t+h, 2)}"]
        for h in (0, 2): o += [f"v_pk_fma_f32 {vr(F+4*t+h, 2)}, {vr(b+h, 2)}, {vr(GB+4*t+h, 2)}, {vr(F+4*t+h, 2)}"]
        o += [f"v_cvt_pk_bf16_f32 v{XR+2*t}, v{F+4*t}, v{F+4*t+1}", f"v_cvt_pk_bf16_f32 v{XR+2*t+1}, v{F+4*t+2}, v{F+4*t+3}",
              LG(f"ds_write_b64 v{vOW}, {vr(XR+2*t, 2)} offset:{t*32}", "ow")]
    o += [W(lg="ow")] + [LG(f"ds_read_b128 {vr(XR+4*k, 4)}, v{vOR} offset:{k*8*144}", ("or", k)) for k in range(2)]
    for k in range(2): o += [W(lg=[("or", k)]), VM(f"buffer_store_dwordx4 {vr(XR+4*k, 4)}, v{vRM}, s[{sR}:{sR+3}], s{sT0} offen sc1"), f"s_add_u32 s{sT0}, s{sT0}, 8192"]
    return resolve_waits(flat(o), pre_vm=PRE)
```

```python
from common import *
from flay import *

def fused(name, ts=False, opt="", upto=9):
    N = name
    NT = " nt" if "nt" in opt.split() else ""
    NT1 = " nt" if "nt1" in opt.split() or NT else ""
    NTT = " nt" if "ntt" in opt.split() or NT else ""
    sW, sHEAD, sJ, sC = 3, 4, 5, 6
    sWS = 8; WS = "s[8:11]"
    sT0, sT1 = 76, 77
    pX, pB1, pB2, pOUT = 92, 94, 96, 98
    vL16 = 1
    nstamp = [0]; env = {}
    SM = "A" if "stA" in opt else ("B" if "stB" in opt else ("P" if "stP" in opt else ("T" if "stT" in opt else "")))
    def st(kind=""):
        if not ts or nstamp[0] >= 15 or kind != SM: return []
        nstamp[0] += 1
        return [stamp(nstamp[0] - 1)]
    def finish():
        r = []
        if ts:
            r += ["s_waitcnt vmcnt(0)", stamp(15), "s_waitcnt lgkmcnt(0)", "v_mov_b32 v2, s100", "v_mov_b32 v3, s74",
                  "s_lshl_b32 s76, s2, 2", f"s_add_u32 s76, s76, s{sW}", "s_lshl_b32 s77, s76, 3", f"s_add_u32 s77, s77, {WS_TS}",
                  f"buffer_store_dwordx2 v[2:3], off, {WS}, s77", "s_lshl_b32 s77, s76, 6", f"s_add_u32 s77, s77, {WS_TS + 65536}"]
            for q in range(0, 16, 4):
                r += [f"v_mov_b32 v{4+j}, s{44+2*(q+j)}" for j in range(4)]
                r += [f"buffer_store_dwordx4 v[4:7], off, {WS}, s77 offset:{q*4}", "s_nop 1"]
        return flat(r + [f"Lend_{N}:", "s_endpgm"]) + env["fallback"] + flat([f"Lcode_end_{N}:", "s_endpgm"])
    def rnd(r0, r1, t): return [f"v_cvt_pk_bf16_f32 v{t}, v{r0}, v{r1}", f"v_lshlrev_b32 v{r0}, 16, v{t}", f"v_and_b32 v{r1}, 0xffff0000, v{t}"]
    HY = "hy" in opt.split()
    XL = "noxl" not in opt.split() and not HY
    def flag_off(dst, kind, own, line=None):
        if (XL and kind >= 2) or (HY and kind == 3):
            r = [f"s_and_b32 s{dst}, s2, 7", f"s_lshl_b32 s{dst}, s{dst}, 7", f"s_add_u32 s{dst}, s{dst}, {WS_FLAG + 1024 + kind*1024}"]
            if own: r += [f"s_lshr_b32 s{sT0}, s2, 3", f"s_lshl_b32 s{sT0}, s{sT0}, 2", f"s_add_u32 s{dst}, s{dst}, s{sT0}"]
            return r + [f"s_cmp_eq_u32 s{sW}, 0", f"s_cselect_b32 s{dst}, s{dst}, {OOB:#x}"]
        r = [f"s_lshl_b32 s{dst}, s{sJ if line is None else line}, 7", f"s_add_u32 s{dst}, s{dst}, {WS_FLAG + 1024 + kind*1024}"]
        if own: r += [f"s_lshl_b32 s{sT0}, s{sC}, 2", f"s_add_u32 s{dst}, s{dst}, s{sT0}"]
        return r + [f"s_cmp_eq_u32 s{sW}, 0", f"s_cselect_b32 s{dst}, s{dst}, {OOB:#x}"]
    def publish(vt, soff):
        return [f"v_min_u32 v{vt}, 1, v0", f"v_lshlrev_b32 v{vt}, 27, v{vt}", f"v_mov_b32 v{vt+1}, 1",
                VM(f"buffer_store_dword v{vt+1}, v{vt}, {WS}, s{soff} offen sc1", "flag")]
    nsp = [0]
    def check(load, test, scnt, tag, mask=None, every=False):
        nsp[0] += 1; k = f"{N}_{nsp[0]}"
        test = [test, "s_cmp_lg_u64 vcc, 0" if mask is None else f"s_and_b64 vcc, vcc, s[{mask}:{mask+1}]"]
        return flat([W(vm=tag), [] if every else [f"s_cmp_lg_u32 s{sW}, 0", f"s_cbranch_scc1 Lok{k}"], test, f"s_cbranch_scc0 Lok{k}", f"s_mov_b32 s{scnt}, 0x80000",
                     f"Lsp{k}:", f"s_sub_u32 s{scnt}, s{scnt}, 1", f"s_cbranch_scc1 Lok{k}", "s_sleep 1", load, It("s_waitcnt vmcnt(0)", k="cond"), test,
                     f"s_cbranch_scc1 Lsp{k}", f"Lok{k}:"])

    sCKV, sWK, sWV, sMOD, sCV, sX, sDBG, sCODE = 12, 16, 20, 24, 28, 32, 36, 40
    sWQ, sWO, sU2 = sMOD, sCV, sCODE
    sCOFF, sWKOFF, sWVOFF, sKST, sVST, sM0C, sM0K, sMST, sATO, sADD, sMF, sHST, sSPIN, sRS0 = range(78, 92)
    sRS1 = 7; sMEAN0, sMEAN1 = sMST, sATO
    vWD, vTR, vCD, vCR, vT = 2, 6, 10, 14, 16
    WF, X, ACC = 32, 64, 128
    RING, CBUF, CW = 0, 65536, 24576
    MODRED, MODV, HSTA = 49152, CBUF + 16384, CBUF + CW + 16384
    o = ["s_cmp_ge_u32 s2, 256", f"s_cbranch_scc1 Lend_{N}"] + load_args()
    if ts: o += ["s_memrealtime s[100:101]" if not CYC else "s_memtime s[100:101]"]
    o += [f"s_getpc_b64 s[{sCODE}:{sCODE+1}]", f"Lpc_{N}:", f"s_mov_b32 s{sCODE+2}, Lcode_end_{N}-Lpc_{N}", f"s_mov_b32 s{sCODE+3}, 0x20000",
          f"v_lshlrev_b32 v{vT}, 7, v0", VM(f"buffer_load_dword v{vT+1}, v{vT}, s[{sCODE}:{sCODE+3}], 0 offen", "code")]
    o += [f"""
    v_lshrrev_b32 v{vT+2}, 6, v0
    v_and_b32 v0, 63, v0
    v_readfirstlane_b32 s{sW}, v{vT+2}
    v_lshlrev_b32 v{vL16}, 4, v0
    s_and_b32 s{sHEAD}, s2, 7
    s_lshl_b32 s{sHEAD}, s{sHEAD}, 2
    s_bfe_u32 s{sT0}, s2, 0x20003
    s_add_u32 s{sHEAD}, s{sHEAD}, s{sT0}
    s_lshr_b32 s{sJ}, s2, 5
    s_and_b32 s{sC}, s2, 31
    v_lshrrev_b32 v{vT+2}, 3, v0
    v_and_b32 v{vT+3}, 7, v0
    """]
    r8, c8 = vT+2, vT+3
    o += [f"""
    v_mul_u32_u24 v{vT+4}, 6144, v{r8}
    v_lshl_add_u32 v{vT+4}, v{c8}, 4, v{vT+4}
    v_lshlrev_b32 v{vT+5}, 1, v{r8}
    v_lshrrev_b32 v{vT+6}, 1, v{r8}
    v_xor_b32 v{vT+6}, v{vT+6}, v{c8}
    v_lshlrev_b32 v{vT+6}, 4, v{vT+6}
    v_lshl_add_u32 v{vCD}, v{r8}, 10, v{vT+6}
    v_xor_b32 v{vCD+1}, 64, v{vCD}
    v_add_u32 v{vCD+1}, {7*1024}, v{vCD+1}
    v_add_u32 v{vCD+2}, {14*1024}, v{vCD}
    v_add_u32 v{vCD+3}, {14*1024}, v{vCD+1}
    v_and_b32 v{vT+6}, 2, v{r8}
    v_xor_b32 v{vT+6}, v{vT+6}, v{c8}
    v_lshlrev_b32 v{vT+6}, 4, v{vT+6}
    v_lshl_add_u32 v{vWD}, v{r8}, 13, v{vT+6}
    v_xor_b32 v{vWD+1}, 64, v{vWD}
    v_add_u32 v{vWD+1}, {65536-1024}, v{vWD+1}
    v_add_u32 v{vWD+2}, {2*(65536-1024)}, v{vWD}
    v_add_u32 v{vWD+3}, {2*(65536-1024)}, v{vWD+1}
    s_and_b32 s{sT0}, s2, 3
    s_lshl_b32 s{sT0}, s{sT0}, 7
    s_lshl_b32 s{sT1}, s{sW}, 5
    s_add_u32 s{sMF}, s{sT0}, s{sT1}
    s_lshl_b32 s{sHST}, s{sMF}, 1
    s_mul_i32 s{sMF}, s{sMF}, 6144
    s_lshr_b32 s{sMST}, s2, 2
    s_lshl_b32 s{sMST}, s{sMST}, 7
    s_add_u32 s{sMF}, s{sMF}, s{sMST}
    s_lshl_b32 s{sCOFF}, s{sJ}, 18
    s_lshl_b32 s{sT0}, s{sW}, 16
    s_add_u32 s{sCOFF}, s{sCOFF}, s{sT0}
    s_mul_i32 s{sM0C}, s{sW}, {CW}
    s_add_u32 s{sM0C}, s{sM0C}, {CBUF}
    s_and_b32 s{sT0}, s{sW}, 1
    s_lshl_b32 s{sWKOFF}, s{sT0}, 18
    s_lshr_b32 s{sT1}, s{sW}, 1
    s_lshl_b32 s{sT1}, s{sT1}, 7
    s_add_u32 s{sWKOFF}, s{sWKOFF}, s{sT1}
    s_lshl_b32 s{sT1}, s{sHEAD}, 8
    s_add_u32 s{sWKOFF}, s{sWKOFF}, s{sT1}
    s_lshl_b32 s{sWVOFF}, s{sW}, 18
    s_add_u32 s{sWVOFF}, s{sWVOFF}, s{sT1}
    s_lshl_b32 s{sM0K}, s{sW}, 12
    s_waitcnt lgkmcnt(0)
    """]
    if SM == "P": o += ["s_memrealtime s[92:93]"]
    o += srd(sMOD, P("wmod"), 512*6144) + srd(sCV, P("c"), 1024) + ["s_cmp_lt_u32 s2, 192", f"s_cselect_b32 s{sMOD+2}, s{sMOD+2}, 0"]
    MW, MC, MA, MT = 64, 80, 84, 92
    for n in range(4): o += [VM(f"buffer_load_ushort v{MC+n}, v{vT+5}, s[{sCV}:{sCV+3}], s{sHST} offen offset:{16*n}", "modc")]
    for n in range(4):
        o += [VM(f"buffer_load_dwordx4 v[{MW+4*n}:{MW+4*n+3}], v{vT+4}, s[{sMOD}:{sMOD+3}], s{sMF} offen{NT1}", ("modw", n))]
        if n < 3: o += [f"s_add_u32 s{sMF}, s{sMF}, {8*6144}"]
    o += srd(sCKV, P("ckv"), 2*MB) + srd(sWK, P("wuk"), 4*MB)
    def c_dma(i):
        g = []
        for hh in range(2):
            grp = [f"s_add_u32 m0, s{sM0C}, {(i % 3)*8192 + hh*4096}", f"s_add_u32 s{sRS0}, s{sCOFF}, {i*128 + hh*32768}"]
            for n in range(4):
                grp.append(VM(f"buffer_load_dwordx4 v{vCD+n}, s[{sCKV}:{sCKV+3}], s{sRS0} offen offset:{n*1024}{' nt' if 'ntc' in opt.split() else ''} lds", ("c", i)))
                g.append(grp); grp = []
        return SEQ(g)
    def page(q): return RING + (q % 4) * 16384
    def w_dma(q):
        sTW = sRS1 if q <= 2 else sT1
        if q < 8: sd, off, m0 = sWK, f"s_add_u32 s{sTW}, s{sWKOFF}, {q*64*8192}", f"s{sM0K}, {page(q)}"
        elif q < 16:
            sd, off = sWV, f"s_add_u32 s{sTW}, s{sWVOFF}, {((q-8)&3)*128*8192 + ((q-8)>>2)*128}"
            m0 = f"s{sM0K}, {page(q)}" if q < 12 else f"s{sM0C}, {(q-12)*4096}"
        else: sd, off, m0 = sWQ, f"s_add_u32 s{sTW}, s{sWKOFF}, {(q-16)*64*8192}", f"s{sM0K}, {(q-16)*16384}"
        g = []; grp = [f"s_add_u32 m0, {m0}", off]
        for n in range(4):
            grp.append(VM(f"buffer_load_dwordx4 v{vWD+n}, s[{sd}:{sd+3}], s{sTW} offen offset:{n*1024}{' nt' if q < 8 and 'ntk' in opt.split() else NT} lds", ("w", q)))
            g.append(grp); grp = []
        return SEQ(g)
    o += [c_dma(0), w_dma(0)] + (["s_memrealtime s[94:95]"] if SM == "P" else []) + srd(sWV, P("wuv"), 4*MB)
    OPT = opt.split()
    def OV(k, d): return next((x.split("=")[1] for x in OPT if x.startswith(k + "=")), d)
    vTD = vT+1
    vPC, vPW = 96, 97
    def pf_addr(vc, vw):
        return [f"v_lshrrev_b32 v{vw}, 4, v0", f"v_and_b32 v{vc}, 15, v0", f"v_lshlrev_b32 v{vc}, 4, v{vc}",
                f"v_lshl_add_u32 v{vw+1}, v{vw}, 13, v{vc}", f"v_lshl_add_u32 v{vc}, v{vw}, 10, v{vc}", f"v_mov_b32 v{vw}, v{vw+1}"]
    def pf_c(dummy):
        g = []; grp = [f"s_add_u32 m0, s{sM0C}, {dummy}", f"s_bfe_u32 s{sRS0}, s2, 0x20003", f"s_lshl_b32 s{sRS0}, s{sRS0}, 16", f"s_lshl_b32 s{sRS1}, s{sJ}, 18",
                       f"s_add_u32 s{sRS0}, s{sRS0}, s{sRS1}", f"s_lshl_b32 s{sRS1}, s{sW}, 14", f"s_add_u32 s{sRS0}, s{sRS0}, s{sRS1}"]
        for col in range(1, 4):
            for rg in range(4):
                grp += [f"s_add_u32 s{sRS1}, s{sRS0}, {rg*4096 + col*256}", VM(f"buffer_load_dwordx4 v{vPC}, s[{sCKV}:{sCKV+3}], s{sRS1} offen lds", "pf")]
                g.append(grp); grp = []
        return SEQ(g)
    def pf_w(sd, vw, dummy, first, sRS0=sRS0, sRS1=sRS1):
        g = []; grp = [f"s_add_u32 m0, s{sM0C}, {dummy}", f"s_lshr_b32 s{sRS0}, s{sW}, 1", f"s_lshl_b32 s{sRS0}, s{sRS0}, 3", f"s_add_u32 s{sRS0}, s{sRS0}, s{sJ}",
                       f"s_lshl_b32 s{sRS0}, s{sRS0}, 1", f"s_and_b32 s{sRS1}, s{sW}, 1", f"s_add_u32 s{sRS0}, s{sRS0}, s{sRS1}", f"s_lshl_b32 s{sRS0}, s{sRS0}, 15",
                       f"s_lshl_b32 s{sRS1}, s{sHEAD}, 8", f"s_add_u32 s{sRS0}, s{sRS0}, s{sRS1}"]
        for q in range(first, 8, 2):
            grp += [f"s_add_u32 s{sRS1}, s{sRS0}, {q*64*8192}", VM(f"buffer_load_dwordx4 v{vw}, s[{sd}:{sd+3}], s{sRS1} offen{NTT} lds", "pf")]
            g.append(grp); grp = []
        return SEQ(g)
    PF = "nopf" not in OPT
    o += pf_addr(vPC, vPW)
    pfa = (pf_w(sWK, vPW, 16384, 2) if "pfk" in OPT else []) + (pf_c(16384) if "pfc" in OPT else [])
    NPRE = int(OV("npre", 2))
    ilv = sum((c_dma(i) + w_dma(i) for i in range(1, NPRE + 1)), []) if "ilv" in OPT else []
    pro0 = len(o)
    o += ([] if ilv else [c_dma(1), w_dma(1)]) + ([pfa] if "pfpre" in OPT else []) + (["s_memrealtime s[96:97]"] if SM == "P" else []) + srd(sWS, P("ws"), WS_SIZE)
    KF, VF, SF = 0, 5120, 6144
    vZA, vZD = vT+14, vT+15
    o += [f"""
    v_lshlrev_b32 v{vZA}, 10, v0
    s_lshl_b32 s{sT0}, s{sJ}, 7
    s_lshl_b32 s{sT1}, s{sC}, 2
    s_add_u32 s{sT0}, s{sT0}, s{sT1}
    v_add_u32 v{vZA}, s{sT0}, v{vZA}
    s_lshl_b32 s{sT0}, s{sHEAD}, 5
    s_lshl_b32 s{sT1}, s{sJ}, 2
    s_add_u32 s{sT0}, s{sT0}, s{sT1}
    v_writelane_b32 v{vZA}, s{sT0}, 0
    s_add_u32 s{sT0}, s{sT0}, {VF}
    v_writelane_b32 v{vZA}, s{sT0}, 5
    s_lshl_b32 s{sT0}, s2, 2
    s_add_u32 s{sT0}, s{sT0}, {SF}
    v_writelane_b32 v{vZA}, s{sT0}, 6
    v_mov_b32 v{vZD}, {1 << 27}
    v_cmp_gt_u32 vcc, 7, v0
    v_cndmask_b32 v{vZA}, v{vZD}, v{vZA}, vcc
    v_mov_b32 v{vZD}, 0
    s_mov_b32 s{sSPIN}, {WS_FLAG}
    s_cmp_eq_u32 s{sW}, 0
    s_cselect_b32 s{sSPIN}, s{sSPIN}, {OOB:#x}
    """, VM(f"buffer_store_dword v{vZD}, v{vZA}, {WS}, s{sSPIN} offen sc1", "zero")]
    for i in (32768, 65536):
        o += [f"s_mov_b32 s{sT0}, {i}", VM(f"buffer_load_dword v{vT+1}, v{vT}, s[{sCODE}:{sCODE+3}], s{sT0} offen", "code2")]
    o += srd(sX, P("x"), 2*MB) + srd(sDBG, P("dbg"), 256) + srd(sWQ, P("wq"), 4*MB) + srd(sWO, P("wo"), 4*MB)
    EARLY = "s_waitcnt lgkmcnt(0)\ns_mov_b32 s66, s92\ns_mov_b32 s68, s94\ns_mov_b32 s72, s96" if SM == "P" else ""
    o += srd(sU2, P("w1"), 1792*1024) + [f"""
    s_mov_b64 s[0:1], s[{P('w2')}:{P('w2')+1}]
    {EARLY}
    s_mov_b64 s[{pX}:{pX+1}], s[{P('x')}:{P('x')+1}]
    s_mov_b64 s[{pB1}:{pB1+1}], s[{P('b1')}:{P('b1')+1}]
    s_mov_b64 s[{pB2}:{pB2+1}], s[{P('b2')}:{P('b2')+1}]
    s_mov_b64 s[{pOUT}:{pOUT+1}], s[{P('out')}:{P('out')+1}]
    v_lshrrev_b32 v{vT+6}, 4, v0
    v_bfe_u32 v{vT+7}, v0, 2, 2
    v_lshl_add_u32 v{vT+8}, v{vT+6}, 3, v{vT+7}
    v_lshlrev_b32 v{vT+8}, 7, v{vT+8}
    v_and_b32 v{vT+9}, 3, v0
    v_lshl_add_u32 v{vT+8}, v{vT+9}, 3, v{vT+8}
    v_and_b32 v{vT+9}, 1, v{vT+6}
    v_lshlrev_b32 v{vT+9}, 1, v{vT+9}
    v_lshrrev_b32 v{vT+10}, 1, v{vT+7}
    v_or_b32 v{vT+9}, v{vT+9}, v{vT+10}
    v_lshl_add_u32 v{vTR}, v{vT+9}, 5, v{vT+8}
    v_xor_b32 v{vTR+1}, 32, v{vTR}
    v_xor_b32 v{vTR+2}, 64, v{vTR}
    v_xor_b32 v{vTR+3}, 0x60, v{vTR}
    v_and_b32 v{vT+7}, 15, v0
    v_lshrrev_b32 v{vT+8}, 1, v{vT+7}
    v_xor_b32 v{vT+8}, v{vT+8}, v{vT+6}
    v_lshlrev_b32 v{vT+8}, 4, v{vT+8}
    v_lshl_add_u32 v{vT+8}, v{vT+7}, 7, v{vT+8}
    v_add_u32 v{vCR}, s{sM0C}, v{vT+8}
    v_xor_b32 v{vCR+1}, 64, v{vCR}
    s_lshl_b32 s{sKST}, s{sHEAD}, 20
    s_lshl_b32 s{sT0}, s{sJ}, 17
    s_add_u32 s{sKST}, s{sKST}, s{sT0}
    s_lshl_b32 s{sT0}, s{sW}, 15
    s_add_u32 s{sKST}, s{sKST}, s{sT0}
    s_add_u32 s{sVST}, s{sKST}, 16384
    s_and_b32 s{sT0}, s2, 3
    s_mul_i32 s{sT0}, s{sT0}, 12288
    s_lshl_b32 s{sMST}, s{sMST}, 1
    s_add_u32 s{sMST}, s{sMST}, s{sT0}
    s_add_u32 s{sMST}, s{sMST}, {WS_MODP}
    s_cmp_lt_u32 s2, 192
    s_cselect_b32 s{sT0}, s{sW}, 1
    s_cmp_eq_u32 s{sT0}, 0
    s_cselect_b32 s{sMST}, s{sMST}, {OOB:#x}
    s_and_b32 s{sATO}, s2, 63
    s_lshl_b32 s{sATO}, s{sATO}, 2
    s_cmp_eq_u32 s{sW}, 0
    s_cselect_b32 s{sATO}, s{sATO}, 256
    s_cmp_ge_u32 s{sW}, 2
    s_cselect_b32 s{sADD}, 1.0, 0
    """]
    o += st("P") + [W(vm="code" if SM == "P" else "modc")] + st("P") + [W(vm="modc")] + st("P")
    for n in range(4): o += [f"v_lshlrev_b32 v{MC+n}, 16, v{MC+n}"]
    for n in range(4): o += [f"v_mul_f32 v{MT+n}, {fbits(-1.4426950408889634)}, v{MC+n}"]
    for n in range(4): o += [f"v_exp_f32 v{MT+n}, v{MT+n}"]
    for n in range(4): o += [f"v_add_f32 v{MT+n}, 1.0, v{MT+n}"]
    for n in range(4): o += [f"v_rcp_f32 v{MT+n}, v{MT+n}"]
    for n in range(4): o += [f"v_mul_f32 v{MC+n}, v{MC+n}, v{MT+n}"]
    for n in range(4): o += [f"v_cvt_pk_bf16_f32 v{MC+n}, v{MC+n}, v{MC+n}"]
    for n in range(4): o += [f"v_lshlrev_b32 v{MC+n}, 16, v{MC+n}"]
    for n in range(4):
        o += [W(vm=[("modw", n)])]
        for j in range(4):
            o += [f"v_lshlrev_b32 v{MT}, 16, v{MW+4*n+j}", f"v_and_b32 v{MT+1}, 0xffff0000, v{MW+4*n+j}"]
            if n == 0: o += [f"v_mul_f32 v{MA+2*j}, v{MC}, v{MT}", f"v_mul_f32 v{MA+2*j+1}, v{MC}, v{MT+1}"]
            else: o += [f"v_fmac_f32 v{MA+2*j}, v{MC+n}, v{MT}", f"v_fmac_f32 v{MA+2*j+1}, v{MC+n}, v{MT+1}"]
    for j in range(8): o += [f"v_add_f32_dpp v{MA+j}, v{MA+j}, v{MA+j} row_ror:8 row_mask:0xf bank_mask:0xf"]
    for j in range(0, 8, 2): o += [f"v_permlane16_swap_b32 v{MA+j}, v{MA+j+1}"]
    for j in range(0, 8, 2): o += [f"v_add_f32 v{MA+j}, v{MA+j}, v{MA+j+1}"]
    for j in (0, 4): o += [f"v_permlane32_swap_b32 v{MA+j}, v{MA+j+2}"]
    for j in (0, 4): o += [f"v_add_f32 v{MA+j}, v{MA+j}, v{MA+j+2}"]
    vL4, vL256, vONE = vT+4, vT+5, vT+6
    o += [f"""
    v_lshrrev_b32 v{MT}, 4, v0
    v_lshl_add_u32 v{MT}, v{c8}, 3, v{MT}
    v_lshlrev_b32 v{MT}, 2, v{MT}
    s_lshl_b32 s{sT0}, s{sW}, 8
    v_add_u32 v{MT}, s{sT0}, v{MT}
    """, LG(f"ds_write_b32 v{MT}, v{MA} offset:{MODRED}", "mr"), LG(f"ds_write_b32 v{MT}, v{MA+4} offset:{MODRED+16}", "mr"),
    f"v_lshlrev_b32 v{vL4}, 2, v0", f"v_lshlrev_b32 v{vL256}, 8, v0", f"v_mov_b32 v{vONE}, 1"]
    def Cfrag(kt, s): return ar((s*4+kt)*4, 4)
    def c_reads(i):
        return [LG(f"ds_read_b128 {Cfrag(kt, 2*i+sp)}, v{vCR+sp} offset:{(i % 3)*8192 + kt*2048}", ("cr", i)) for sp in range(2) for kt in range(4)]
    if ilv:
        rest = scc_groups(o[pro0:]); n_ = len(rest)
        for k in reversed(range(len(ilv))): rest.insert((k*n_)//len(ilv), ilv[k])
        o = o[:pro0] + rest
    o += st("P") + [W(vm=[("c", 0)])] + st("P") + [c_reads(0), W(vm=[("w", 0)], lg="mr")] + st("P") + ["s_barrier"] + st("P")

    QA, HR = 64, 192
    aK, aV = 128, 160
    def accK(dt, kt): return ACC + (dt*4+kt)*4
    def acc(dt, qi): return QA + (dt*4+qi)*4
    def Hf(s, qi): return vr(HR + ((s & 3)*4+qi)*4, 4, "a" if s & 4 else "v")
    frags = []
    for s2 in range(0, 16, 2):
        for dt in range(8):
            for s in (s2, s2+1):
                frags.append((s >> 1, page(s >> 1) + (dt >> 2)*8192 + (s & 1)*4096, dt & 3, [(accK(dt, kt), "W", Cfrag(kt, s), s == 0) for kt in range(4)]))
    for s2 in range(0, 16, 2):
        for t in range(4):
            for s in (s2, s2+1):
                frags.append((8 + (s >> 2), page(8 + (s >> 2)) + (s & 3)*4096, t, [(X + (t*4+kt)*4, Cfrag(kt, s), "W", s == 0) for kt in range(4)]))
    for hb in range(2):
        for s2 in range(0, 16, 2):
            for t in (2*hb, 2*hb+1):
                for s in (s2, s2+1):
                    frags.append((12 + (s >> 2), CBUF + (s & 3)*CW + (s >> 2)*4096, t, [(ACC + (t*4+kt)*4, Cfrag(kt, s), "W", s == 0) for kt in range(4)]))
    for s2 in range(0, 16, 2):
        for dt in range(8):
            for s in (s2, s2+1):
                frags.append((16 + (s >> 1), (s >> 1)*16384 + (dt >> 2)*8192 + (s & 1)*4096, dt & 3, [(acc(dt, qi), "W", Hf(s, qi), s == 0) for qi in range(4)]))
    def wreg(f): return ("v", WF + (f % 8)*4) if f < 256 else ("a", aK + (f % 16)*4)
    slots = []
    CH = "nochain" not in OPT
    for f in range(0, len(frags), 2):
        for n, k in ([(n, k) for n in range(4) for k in range(2)] if CH else [(n, k) for k in range(2) for n in range(4)]):
            fl, r = wreg(f + k); wf = vr(r, 4, fl); d, a_, b_, first = frags[f + k][3][n]
            sl = Slot(I(f"v_mfma_f32_16x16x32_bf16 {vr(d,4)}, {wf if a_ == 'W' else a_}, {wf if b_ == 'W' else b_}, {'0' if first else vr(d,4)}"))
            if n == 0 and k == 0:
                sl.pre.append(W(lg=[("wf", f+1)]))
                if f < 128 and f % 16 == 0: sl.pre.append(W(lg=[("cr", f//16)]))
                if f >= 256 and f % 16 == 0: sl.pre.append(W(vm=[("h", (f-256)//8 + 1)]))
            slots.append(sl)
    LA = 4
    wbase = [0]; bar = {}
    vTR2 = vCD
    def frag_reads(f):
        q, a, t, _ = frags[f]; g = []
        fl, r = wreg(f)
        if a >= 131072: return g, [LG(f"ds_read_b64_tr_b16 {vr(r+2*hh, 2, fl)}, v{vTR2+t} offset:{a - 131072 + hh*512}", ("wf", f)) for hh in range(2)]
        wb = a & 65536
        if wb != wbase[0]:
            g += [f"v_xor_b32 v{vTR+i}, 0x10000, v{vTR+i}" for i in range(4)]; wbase[0] = wb
        return g, [LG(f"ds_read_b64_tr_b16 {vr(r+2*hh, 2, fl)}, v{vTR+t} offset:{a - wb + hh*512}", ("wf", f)) for hh in range(2)]
    for f in range(LA):
        g, rd = frag_reads(f); o += g + rd
    valid = {0}
    VAL = {12: [12, 13, 14, 15], 16: [16, 17, 18, 19]}
    for f in range(LA, len(frags)):
        q = frags[f][0]; i = (f - LA)*4
        if q not in valid or (q > 16 and f % 16 == 0):
            qs = VAL.get(q, [q]); valid.update(qs); bar[q] = i - 1
            slots[i-1].alu += [W(vm=[("w", x) for x in qs]), I("s_barrier")]
        g, rd = frag_reads(f)
        slots[i-1].alu += flat(g)
        slots[i].mem.append(rd[0]); slots[i+1].mem.append(rd[1])
    def put(groups, b, step=4, where="mem"):
        for n, g in enumerate(groups): getattr(slots[b + step*n], where).append(g)
    def up(b, r):
        while (b & 3) != r: b += 1
        return b
    def lq(groups, b):
        put(groups, up(b, 3)); return up(b, 3) + 4*(len(groups) - 1)
    vused = set()
    def vq(groups, b, stride=1):
        k = up(b, 2) >> 2
        for g in groups:
            while k in vused: k += 1
            vused.add(k); slots[4*k + 2].mem.append(g); last = 4*k + 2; k += stride
        return last
    def sq(text, b, e): spread(slots, SEQ(scc_groups(text)), b, e)
    def before_bar(q, items): slots[bar[q]].alu[0:0] = flat(items)
    def pre(items, groups): groups[0] = flat(items) + groups[0]; return groups
    cend = {}
    for p in range(7):
        rd = c_reads(p+1); rd[0] = [W(vm=[("c", p+1)]), rd[0]]
        cend[p+1] = lq(rd, p*64 + 20)
    MR = vT + 8
    vq([[W(lg="mr2"), f"v_add_f32 v{MR}, v{MR}, v{MR+1}", f"v_add_f32 v{MR+2}, v{MR+2}, v{MR+3}", f"v_add_f32 v{MR}, v{MR}, v{MR+2}",
         VM(f"buffer_store_dword v{MR}, v{vL4}, {WS}, s{sMST} offen sc1", "mst")]], 14)
    sq([f"v_and_b32 v{vTR2+i}, 0xffff, v{vTR+i}" for i in range(4)] + [f"v_or_b32 v{vTR2+i}, 0x20000, v{vTR2+i}" for i in range(4)], 520, 540)
    lq([LG(f"ds_read2st64_b32 v[{MR}:{MR+1}], v{vL4} offset0:192 offset1:193", "mr2"),
        LG(f"ds_read2st64_b32 v[{MR+2}:{MR+3}], v{vL4} offset0:194 offset1:195", "mr2")], 0)
    vq([[W(vm=["mst", "zero"]), VM(f"buffer_atomic_add v{vONE}, v{vL256}, s[{sDBG}:{sDBG+3}], s{sATO} offen sc1")]], 100)
    XR, F0, F1, TT, AV, BV, PP, MF = 64, 72, 80, 88, 92, 100, 108, 124
    sq([f"""
    s_sub_u32 s{sHST}, 15, s{sJ}
    s_cmp_lt_u32 s{sC}, 16
    s_cselect_b32 s{sHST}, s{sJ}, s{sHST}
    s_lshl_b32 s{sHST}, s{sHST}, 4
    s_and_b32 s{sMF}, s{sC}, 15
    s_add_u32 s{sHST}, s{sHST}, s{sMF}
    s_lshl_b32 s{sMF}, s{sHST}, 13
    s_lshl_b32 s{sSPIN}, s{sW}, 11
    s_add_u32 s{sMF}, s{sMF}, s{sSPIN}
    """], 20, 40)
    xe = vq([VM(f"buffer_load_dwordx4 {vr(XR+4*k,4)}, v{vL16}, s[{sX}:{sX+3}], s{sMF} offen offset:{1024*k}{' nt' if 'ntx' in OPT else ''}", "x") for k in range(2)], 104)

    g = []
    for j in range(4):
        for F, xr in ((F0, XR), (F1, XR+4)): g += [f"v_lshlrev_b32 v{F+2*j}, 16, v{xr+j}", f"v_and_b32 v{F+2*j+1}, 0xffff0000, v{xr+j}"]
    g[0] = [W(vm="x"), g[0]]
    def reduce2(sa, sb, post):
        r = []
        for m in ("quad_perm:[1,0,3,2]", "quad_perm:[2,3,0,1]", "row_ror:4", "row_ror:8"):
            r += [f"v_add_f32_dpp v{TT}, v{TT}, v{TT} {m} row_mask:0xf bank_mask:0xf", f"v_add_f32_dpp v{TT+1}, v{TT+1}, v{TT+1} {m} row_mask:0xf bank_mask:0xf"]
        r += [f"v_permlane16_swap_b32 v{TT}, v{TT+1}", f"v_add_f32 v{TT}, v{TT}, v{TT+1}", f"v_mov_b32 v{TT+1}, v{TT}",
              f"v_permlane32_swap_b32 v{TT}, v{TT+1}", f"v_add_f32 v{TT}, v{TT}, v{TT+1}"] + post
        return r + [f"v_readlane_b32 s{sa}, v{TT}, 0", f"v_readlane_b32 s{sb}, v{TT}, 16"]
    for j in range(1, 8):
        for k, F in enumerate((F0, F1)): g += [f"v_add_f32 v{TT+k}, v{F if j == 1 else TT+k}, v{F+j}"]
    g += reduce2(sMEAN0, sMEAN1, [f"v_mul_f32 v{TT}, {fbits(1/512)}, v{TT}"])
    for j in range(8):
        for F, sm in ((F0, sMEAN0), (F1, sMEAN1)): g += [f"v_subrev_f32 v{F+j}, s{sm}, v{F+j}"]
    for j in range(8):
        for k, F in enumerate((F0, F1)): g += [f"v_mul_f32 v{TT+k}, v{F}, v{F}" if j == 0 else f"v_fmac_f32 v{TT+k}, v{F+j}, v{F+j}"]
    g += reduce2(sRS0, sRS1, [f"v_mov_b32 v{TT+1}, {fbits(EPS)}", f"v_fmac_f32 v{TT+1}, {fbits(1/512)}, v{TT}", f"v_rsq_f32 v{TT}, v{TT+1}"])
    for j in range(8):
        for F, rs in ((F0, sRS0), (F1, sRS1)): g += [f"v_mul_f32 v{F+j}, s{rs}, v{F+j}"]
    assert xe < 200
    spread(slots, g, max(xe + 60, 200), 360)
    ld = f"buffer_load_dword v{MR}, v{vL4}, s[{sDBG}:{sDBG+3}], 0 offen sc1"
    vq([VM(ld, "poll1")], 226)
    e = 0
    if pfa and "pfpre" not in OPT:
        for k, g in enumerate(pfa): slots[2*k + 1].alu.append(g)
        e = 2*len(pfa) + 2
    if not (ilv and NPRE >= 2): e = vq(c_dma(2), e); e = vq(w_dma(2), e)
    e = vq(c_dma(3), e); e = vq(w_dma(3), max(e, bar[1]))
    for i in range(4, 8):
        e = vq(pre([W(lg=[("cr", i-3)])], c_dma(i)), max(e, cend[i-3] + 8))
        assert e < (i-1)*64 - 10, (i, e)
        if i < 7: e = vq(w_dma(i), max(e, bar[i-2]))
    before_bar(5, check(ld, f"v_cmp_gt_u32 vcc, 4, v{MR}", sSPIN, "poll1"))
    sq([f"s_lshl_b32 s{sMF}, s{sW}, 10", f"s_add_u32 s{sMF}, s{sMF}, {WS_MODP}"], bar[5] - 8, bar[5] - 4)
    e = vq([[VM(f"buffer_load_dwordx4 {vr(PP+4*n,4)}, v{vL16}, {WS}, s{sMF} offen sc1", "pp"), f"s_add_u32 s{sMF}, s{sMF}, 12288"] for n in range(4)], bar[5] + 1)
    g = [[VM(f"buffer_load_dword v{MF+n}, v{vL4}, {WS}, s{sMF} offen sc1", "mf"), f"s_add_u32 s{sMF}, s{sMF}, 12288"] for n in range(4)]
    e = vq(pre([f"s_lshl_b32 s{sMF}, s{sC}, 10", f"s_lshl_b32 s{sSPIN}, s{sW}, 8", f"s_add_u32 s{sMF}, s{sMF}, s{sSPIN}",
                f"s_mul_i32 s{sSPIN}, s{sJ}, 12288", f"s_add_u32 s{sSPIN}, s{sSPIN}, s{sMF}", f"s_add_u32 s{sSPIN}, s{sSPIN}, {WS_MODF}",
                f"s_add_u32 s{sMF}, s{sMF}, {WS_MODP}", f"s_cmp_lt_u32 s{sC}, 12",
                f"s_cselect_b32 s{sMF}, s{sMF}, {OOB:#x}", f"s_cselect_b32 s{sSPIN}, s{sSPIN}, {OOB:#x}"], g), e)
    assert e < 372
    e = vq(w_dma(7), max(e, bar[5])); assert e < bar[7] - 60
    if PF: e = vq(pre([W(lg=[("cr", 5)])], pf_w(sWV, vPW, 16384 + 6144, 0, sX, sX+1)), max(e, cend[5] + 8))
    e = vq(w_dma(8), max(e, bar[6]))
    if PF and "pq1" in OPT: e = vq(pf_w(sWQ, vPW, 16384 + 6144, 0, sX, sX+1), e + 16); assert e < bar[7]
    e = vq(w_dma(9), max(e, bar[7]))
    if PF and "pq1" not in OPT:
        sq([f"v_mov_b32 v{vT+12}, v{vPW}"], 400, 401); e = vq(pf_w(sWQ, vT+12, 16384 + 6144, 0, sX, sX+1), max(e, 470)); assert e < bar[8]
    e = e; e = vq(w_dma(10), max(e, bar[8] + 14))
    e = vq(w_dma(12), e + 8); e = vq(w_dma(11), max(e, bar[9] + 6)); e = vq(w_dma(13), e + 8); e = vq(w_dma(14), e + 12); e = vq(w_dma(15), e + 12)
    assert e < 690
    g = [[W(vm="pp"), f"v_add_f32 v{PP}, v{PP}, v{PP+4}"]] + [f"v_add_f32 v{PP+j}, v{PP+j}, v{PP+4+j}" for j in range(1, 4)]
    g += [f"v_add_f32 v{PP+8+j}, v{PP+8+j}, v{PP+12+j}" for j in range(4)] + [f"v_add_f32 v{PP+j}, v{PP+j}, v{PP+8+j}" for j in range(4)]
    g += rnd(PP, PP+1, PP+4) + rnd(PP+2, PP+3, PP+5) + [f"v_add_f32 v{PP+j}, s{sADD}, v{PP+j}" for j in range(4)]
    g += rnd(PP, PP+1, PP+4) + rnd(PP+2, PP+3, PP+5) + [f"v_mul_f32 v{PP+j}, {fbits(CSCALE)}, v{PP+j}" for j in range(4)]
    g += [f"s_lshl_b32 s{sMF}, s{sW}, 10", f"s_add_u32 s{sMF}, s{sMF}, {MODV}", f"v_add_u32 v{PP+4}, s{sMF}, v{vL16}", f"v_lshlrev_b32 v{TT}, 5, v0", f"v_add_u32 v{TT}, {MODV}, v{TT}"]
    g += [[W(vm="mf"), f"v_add_f32 v{MF}, v{MF}, v{MF+1}"], f"v_add_f32 v{MF+2}, v{MF+2}, v{MF+3}", f"v_add_f32 v{MF}, v{MF}, v{MF+2}",
          f"v_cvt_pk_bf16_f32 v{MF}, v{MF}, v{MF}", f"v_lshlrev_b32 v{vT+11}, 16, v{MF}"]
    spread(slots, g, 372, 424)
    lq([LG(f"ds_write_b128 v{PP+4}, {vr(PP,4)}", "mv")], 425)
    assert bar[7] > 427
    before_bar(7, [W(lg="mv")])
    put([LG(f"ds_read_b128 {vr(r,4)}, v{TT} offset:{off}", "ab") for r, off in ((BV, 0), (BV+4, 16), (AV, 2048), (AV+4, 2064))], bar[7] + 1, 2)
    g = []
    for j in range(8):
        for F in (F0, F1): g += [f"v_fma_f32 v{F+j}, v{F+j}, v{AV+j}, v{BV+j}"]
    g[0] = [W(lg="ab"), g[0]]
    for j in range(4):
        for F, xr in ((F0, XR), (F1, XR+4)): g += [f"v_cvt_pk_bf16_f32 v{xr+j}, v{F+2*j}, v{F+2*j+1}"]
    HA, HG, HD = vT+2, vT+3, vT+12
    g += [f"s_lshr_b32 s{sMF}, s{sW}, 1", f"s_mul_i32 s{sMF}, s{sMF}, {CW - 4160}", f"s_mul_i32 s{sADD}, s{sW}, 2080", f"s_add_u32 s{sMF}, s{sMF}, s{sADD}",
          f"s_add_u32 s{sMF}, s{sMF}, {HSTA}", f"v_add_u32 v{TT}, s{sMF}, v{vL16}"]
    g += [x.t for x in flat([f"""
    v_and_b32 v{HG}, 7, v0
    v_lshrrev_b32 v{TT+2}, 3, v0
    v_mul_u32_u24 v{HA}, 1040, v{HG}
    v_lshrrev_b32 v{TT+3}, 2, v{HG}
    v_mul_u32_u24 v{TT+3}, {CW - 4160}, v{TT+3}
    v_add_u32 v{HA}, v{HA}, v{TT+3}
    v_lshl_add_u32 v{HA}, v{TT+2}, 4, v{HA}
    s_lshl_b32 s{sMF}, s{sW}, 8
    s_add_u32 s{sMF}, s{sMF}, {HSTA}
    v_add_u32 v{HA}, s{sMF}, v{HA}
    v_lshlrev_b32 v{HG}, 4, v{HG}
    v_and_b32 v{TT+3}, 3, v{TT+2}
    v_lshl_add_u32 v{HG}, v{TT+3}, 8, v{HG}
    v_lshrrev_b32 v{TT+2}, 2, v{TT+2}
    v_lshl_add_u32 v{HG}, v{TT+2}, 10, v{HG}
    s_and_b32 s{sMF}, s{sHST}, 1
    s_lshr_b32 s{sHST}, s{sHST}, 1
    s_lshl_b32 s{sHST}, s{sHST}, 14
    s_lshl_b32 s{sMF}, s{sMF}, 7
    s_add_u32 s{sHST}, s{sHST}, s{sMF}
    s_lshl_b32 s{sMF}, s{sW}, 12
    s_add_u32 s{sHST}, s{sHST}, s{sMF}
    s_add_u32 s{sHST}, s{sHST}, {WS_H}
    """])]
    spread(slots, g, bar[7] + 12, 488)
    put([LG(f"ds_write_b128 v{TT}, {vr(XR+4*k,4)} offset:{1040*k}", "hw") for k in range(2)], 489, 2)
    assert bar[8] > 491
    before_bar(8, [W(lg="hw")])
    put([LG(f"ds_read_b128 {vr(XR+56+4*k,4)}, v{HA} offset:{128*k}", "hr") for k in range(2)], bar[8] + 1, 1)
    e = vq([VM(f"buffer_store_dword v{vT+11}, v{vL4}, {WS}, s{sSPIN} offen sc1", "hst")] +
           [[W(lg="hr"), VM(f"buffer_store_dwordx4 {vr(XR+56+4*k,4)}, v{HG}, {WS}, s{sHST} offen offset:{2048*k} sc1", "hst")] for k in range(2)], bar[8] + 1)
    assert e < 524
    HB_ = int(OV("hb", 10))
    before_bar(HB_, [W(vm="hst")])
    sq(flag_off(sMF, 0, True), bar[HB_] - 12, bar[HB_] - 11)
    vq([publish(vT+2, sMF)], bar[HB_] + 1)
    def pack(dst, qa, qb):
        return [f"v_cvt_pk_bf16_f32 v{dst}, v{qa}, v{qa+1}", f"v_cvt_pk_bf16_f32 v{dst+1}, v{qa+2}, v{qa+3}",
                f"v_cvt_pk_bf16_f32 v{dst+2}, v{qb}, v{qb+1}", f"v_cvt_pk_bf16_f32 v{dst+3}, v{qb+2}, v{qb+3}"]
    def store(src, sreg, off, tag):
        return [f"s_add_u32 s{sT0}, s{sreg}, {off & ~4095}", VM(f"buffer_store_dwordx4 {vr(src,4)}, v{vL16}, {WS}, s{sT0} offen offset:{off & 4095} sc1", tag)]
    def at23(e):
        while (e & 3) < 2: e += 1
        return e
    kl = [(s4, kt) for s4 in (2, 3, 0, 1) for kt in range(4)]
    for n, (s4, kt) in enumerate(kl):
        dst = accK({2: 4, 3: 6, 0: 5, 1: 7}[s4], kt)
        b = 514 + n*(22 if n < 2 else 12) + (20 if n >= 2 else 0)
        put(pack(dst, accK(2*s4, kt), accK(2*s4+1, kt)), b, 2, "alu")
        e = vq([store(dst, sKST, (kt >> 1)*8192 + ((kt & 1)*4 + s4)*1024, "kst")], 530 + 21*n)
        assert b + 6 < 530 + 21*n and b + 6 < 764 and e < 880
    sH = 32; sUS, sUL = sMF, sHST
    slots[815].alu += [I("s_barrier")]
    for q, b in ((16, 690), (17, bar[11] + 30), (18, bar[12]), (19, 815)): e = vq(w_dma(q), b + 1)
    sq(flag_off(sSPIN, 0, False) + [f"v_and_b32 v{vT+2}, 31, v0", f"v_lshlrev_b32 v{vT+2}, 2, v{vT+2}"], 780, 800)
    ld = f"buffer_load_dword v{vT+3}, v{vT+2}, {WS}, s{sSPIN} offen sc1"
    vq([VM(ld, "poll2")], max(e, 836))
    sq([f"""
    s_lshl_b32 s{sUS}, s{sJ}, 2
    s_sub_u32 s{sUL}, 60, s{sUS}
    s_add_u32 s{sUS}, s{sUS}, s{sW}
    s_add_u32 s{sUL}, s{sUL}, s{sW}
    s_lshl_b32 s{sH}, s{sUL}, 15
    s_add_u32 s{sH}, s{sH}, {WS_H}
    s_add_u32 s{sH+1}, s{sH}, 16384
    s_lshl_b32 s{sH+2}, s{sUS}, 15
    s_add_u32 s{sH+2}, s{sH+2}, {WS_H}
    s_add_u32 s{sH+3}, s{sH+2}, 16384
    """], 850, 876)
    slots[883].alu += check(ld, f"v_cmp_ne_u32 vcc, 1, v{vT+3}", sADD, "poll2") + [I("s_barrier")]
    def h_ld(s):
        g = []
        for qi in range(4):
            x = [VM(f"buffer_load_dwordx4 {Hf(s, qi)}, v{vL16}, {WS}, s{sH+qi} offen offset:{(s&3)*1024} sc1", ("h", s))]
            if (s & 3) == 3: x.append(f"s_add_u32 s{sH+qi}, s{sH+qi}, 4096")
            g.append(x)
        return g
    for n in range(8):
        t, uu = n >> 1, n & 1; qa = X + (t*4+2*uu)*4
        put(pack(qa, qa, qa+4), 780 + 10*n, 2, "alu")
        e = vq([store(qa, sVST, uu*8192 + t*1024, "vst")], 872 + 19*n)
        assert e < 1020
    e = vq(h_ld(0) + h_ld(1) + h_ld(2) + h_ld(3), 884)
    assert e < 990
    for n in range(8):
        t, uu = n >> 1, n & 1; qa = ACC + (t*4+2*uu)*4
        put(pack(WF + 4*n, qa, qa+4), 1024 + 3*n, 1, "alu") if n < 4 else put(pack(WF + 4*n, qa, qa+4), 1024 + 12 + 3*(n-4), 1, "alu")
        e = vq([store(WF + 4*n, sVST, uu*8192 + (4+t)*1024, "vst")], 1050 + 20*n)
    def kvflag(dst, base, own):
        r = [f"s_lshl_b32 s{dst}, s{sHEAD}, 5", f"s_add_u32 s{dst}, s{dst}, {WS_FLAG + base}"]
        if own: r += [f"s_lshl_b32 s{sT0}, s{sJ}, 2", f"s_add_u32 s{dst}, s{dst}, s{sT0}"]
        return r + [f"s_cmp_eq_u32 s{sW}, 0", f"s_cselect_b32 s{dst}, s{dst}, {OOB:#x}"]
    before_bar(16, [W(vm="kst")])
    sq(kvflag(sSPIN, KF, True), bar[16] - 12, bar[16] - 11)
    vq([publish(vT+2, sSPIN)], bar[16] + 1)
    for p in (0, 4, 8, 12): slots[p*64].alu += st()
    for p in range(15): slots[p*64].alu += st("A")
    for p in range(9, 24): slots[p*64].alu += st("B")
    B0 = 1024
    slots[B0].alu += st()
    sK, sCT = 12, 36; sMK = [24, 26, 32, 34]
    sKO, sCNT, sODW, sFL = 78, 86, 87, 90
    vKB, vVB, ONES, LS, PB, CB, TMP = 2, 3, 12, 16, 32, 192, 224
    sq([f"""
    s_lshl_b32 s{sKO}, s{sHEAD}, 20
    s_add_u32 s{sK}, s{sWS}, s{sKO}
    s_addc_u32 s{sK+1}, s{sWS+1}, 0
    s_sub_u32 s{sK+2}, 16, s{sJ}
    s_lshl_b32 s{sK+2}, s{sK+2}, 16
    s_mov_b32 s{sK+3}, 0x20000
    s_add_u32 s{sKO}, s{sM0K}, {4*32768}
    """], bar[20] + 1, bar[20] + 12)
    vF = LS
    sq(kvflag(sFL, KF, False) + [f"v_and_b32 v{vF}, 7, v0", f"v_lshlrev_b32 v{vF}, 2, v{vF}"], bar[19] - 20, bar[19] - 4)
    ld = f"buffer_load_dword v{vF+1}, v{vF}, {WS}, s{sFL} offen sc1"
    e = vq([VM(ld, "poll3")], bar[19]); assert e < bar[20] - 20
    before_bar(20, check(ld, f"v_cmp_ne_u32 vcc, 1, v{vF+1}", sCNT, "poll3"))
    before_bar(21, [W(vm="vst")])
    sq(kvflag(sFL, VF, True), bar[21] - 12, bar[21] - 11)
    e = vq([publish(vF+2, sFL)], bar[21] + 1)
    sq(kvflag(sFL, VF, False), e + 4, e + 12)
    vq([VM(ld, "poll4")], bar[23] + 1)
    LEAD = int(OV("lead", 120)); e = B0
    for s in range(4, 16, 2):
        q = 16 + s//2
        if q >= 20: e = vq(w_dma(q), max(e, bar[17] + 1, bar[q] - LEAD)); assert e < bar[q] - 50
        e = vq(h_ld(s) + h_ld(s+1), max(e, B0 + (s-6)*32, B0 + s*32 - LEAD)); assert e < B0 + s*32 - 50, (s, e)
    hend = e
    vcheck = check(ld, f"v_cmp_ne_u32 vcc, 1, v{vF+1}", sCNT, "poll4")
    def kv_dma(which, tag, pair=None):
        if pair is None: so = sKO; grp = [f"s_and_b32 m0, s{sKO}, 0x1ffff"]
        else: so = sT1; grp = [f"s_add_u32 s{sT1}, s{sM0K}, {pair*32768 + (which == 'V')*16384}", f"s_mov_b32 m0, s{sT1}"]
        g = [grp]
        for n in range(4): g.append([VM(f"buffer_load_dwordx4 v{vL16}, s[{sK}:{sK+3}], s{so} offen offset:{n*1024} {OV('kvf', 'sc1').replace('none', '').replace('+', ' ')} lds", tag)])
        if pair is None: return SEQ(g + [[f"s_sub_u32 s{sKO}, s{sKO}, 16384" if which == "K" else f"s_add_u32 s{sKO}, s{sKO}, 49152"]])
        return SEQ([g[0] + g[1]] + g[2:])
    e = vq(kv_dma("K", ("K", 0), 0) + kv_dma("K", ("K", 1), 1), max(hend, bar[21] + 1))
    sS1, sD1, sD3, sS2, sX0, sX1, sW2 = 80, 7, 81, 91, 85, 83, 16; sD2 = [20, 21, 22, 23]
    vU1, vU2, vUT = TMP+12, TMP+16, TMP+20
    g = srd(sW2, 0, 1792*1024) + [f"""
    s_lshl_b32 s{sX0}, s2, 2
    s_add_u32 s{sX0}, s{sX0}, s{sW}
    s_and_b32 s{sX0}, s{sX0}, 511
    s_lshr_b32 s{sS1}, s{sX0}, 3
    s_and_b32 s{sX1}, s{sX0}, 7
    s_lshl_b32 s{sD1}, s{sX1}, 7
    s_add_u32 s{sD1}, s{sD1}, s{sS1}
    s_lshl_b32 s{sD1}, s{sD1}, 12
    s_add_u32 s{sD1}, s{sD1}, {WS_WOF}
    s_mul_i32 s{sD3}, s{sX1}, 56
    s_add_u32 s{sD3}, s{sD3}, s{sS1}
    s_lshl_b32 s{sD3}, s{sD3}, 12
    s_add_u32 s{sD3}, s{sD3}, {WS_W2F}
    s_lshl_b32 s{sS1}, s{sS1}, 15
    s_lshl_b32 s{sX1}, s{sX1}, 7
    s_add_u32 s{sS1}, s{sS1}, s{sX1}
    s_and_b32 s{sX1}, s{sX0}, 15
    s_mul_i32 s{sS2}, s{sX1}, {32*3584}
    s_mul_i32 s{sX1}, s{sX1}, 7168
    s_add_u32 s{sX1}, s{sX1}, {WS_W1F}
    s_cmp_lt_u32 s{sX0}, 448
    s_cselect_b32 s{sX1}, s{sX1}, {OOB:#x}
    s_cselect_b32 s{sD3}, s{sD3}, {OOB:#x}
    s_cselect_b32 s{sU2+2}, s{sU2+2}, 0
    s_cmp_ge_u32 s2, 128
    s_cselect_b32 s{sWO+2}, s{sWO+2}, 0
    s_lshr_b32 s{sX0}, s{sX0}, 4
    s_lshl_b32 s{sD2[0]}, s{sX0}, 7
    s_add_u32 s{sS2}, s{sS2}, s{sD2[0]}
    s_lshl_b32 s{sX0}, s{sX0}, 2
    """] + [f"""
    s_mul_i32 s{sODW}, s{sX0}, 9363
    s_lshr_b32 s{sODW}, s{sODW}, 16
    s_mul_i32 s{sODW}, s{sODW}, {114688-7168}
    s_lshl_b32 s{sD2[t]}, s{sX0}, 10
    s_add_u32 s{sD2[t]}, s{sD2[t]}, s{sODW}
    s_add_u32 s{sD2[t]}, s{sD2[t]}, s{sX1}
    s_add_u32 s{sX0}, s{sX0}, 1
    """ for t in range(4)] + [f"""
    v_lshrrev_b32 v{vUT}, 3, v0
    v_and_b32 v{vUT+1}, 7, v0
    v_and_b32 v{vUT+2}, 6, v{vUT}
    v_xor_b32 v{vUT+2}, v{vUT+2}, v{vUT+1}
    v_lshlrev_b32 v{vUT+2}, 4, v{vUT+2}
    v_lshl_add_u32 v{vU1}, v{vUT}, 10, v{vUT+2}
    v_add_u32 v{vU1+1}, 7168, v{vU1}
    v_add_u32 v{vU1+2}, {2*7168}, v{vU1}
    v_add_u32 v{vU1+3}, {3*7168}, v{vU1}
    v_mul_u32_u24 v{vU2}, 3584, v{vUT}
    v_add_u32 v{vU2}, v{vU2}, v{vUT+2}
    v_add_u32 v{vU2+1}, {8*3584-1024}, v{vU2}
    v_add_u32 v{vU2+2}, {2*(8*3584-1024)}, v{vU2}
    v_add_u32 v{vU2+3}, {3*(8*3584-1024)}, v{vU2}
    v_lshrrev_b32 v{vUT+1}, 4, v0
    v_bfe_u32 v{vUT+2}, v0, 2, 2
    v_lshl_add_u32 v{vUT+1}, v{vUT+1}, 2, v{vUT+2}
    v_bfe_u32 v{vUT+2}, v{vUT+1}, 1, 2
    v_lshlrev_b32 v{vUT+1}, 7, v{vUT+1}
    v_lshl_add_u32 v{vUT+1}, v{vUT+2}, 5, v{vUT+1}
    v_and_b32 v{vUT+2}, 3, v0
    v_lshl_add_u32 v{vUT+1}, v{vUT+2}, 3, v{vUT+1}
    s_lshl_b32 s{sX0}, s{sW}, 13
    s_add_u32 s{sX0}, s{sX0}, 131072
    v_add_u32 v{vUT}, s{sX0}, v{vUT+1}
    v_xor_b32 v{vUT+1}, 32, v{vUT}
    v_xor_b32 v{vUT+2}, 64, v{vUT}
    v_xor_b32 v{vUT+3}, 0x60, v{vUT}
    """]
    sq(g[:-1], B0 + 250, B0 + 380); sq(g[-1:], B0 + 388, B0 + 432)
    def side_dma(rnd_):
        r = []
        for u, (vo, sd, so) in enumerate((((vU1, sWO, f"s{sS1}, 0"), (vU1, sWO, f"s{sS1}, {64*32768}")), ((vU1, sW2, f"s{sS1}, 0"), (vU2, sU2, f"s{sS2}, 0")))[rnd_]):
            d = [[VM(f"buffer_load_dwordx4 v{vo+n}, s[{sd}:{sd+3}], s{sT0} offen offset:{n*1024}{NT1} lds", "ud")] for n in range(4)]
            d[0] = [f"s_add_u32 m0, s{sX0}, {u*4096}", f"s_add_u32 s{sT0}, {so}"] + d[0]
            r += SEQ(d)
        return r
    def side_reads(): return [LG(f"ds_read_b64_tr_b16 {ar(192 + u*16 + t*4 + 2*hh, 2)}, v{vUT+t} offset:{u*4096 + hh*2048}", "ur") for u in range(2) for t in range(4) for hh in range(2)]
    def side_stores(rnd_):
        st_ = lambda q, so, off: [VM(f"buffer_store_dwordx4 {ar(192 + 4*q, 4)}, v{vL16}, {WS}, s{so} offen offset:{off} sc1")]
        if rnd_ == 1: return [st_(t, sD3, t*1024) for t in range(4)] + [st_(4+t, sD2[t], 0) for t in range(4)]
        r = [st_(t & 3 | (t & 4), sD1, (t & 3)*1024) for t in range(8)]
        r[3] = r[3] + [f"s_add_u32 s{sD1}, s{sD1}, {64*4096}"]
        return r
    e = vq(side_dma(0), bar[23] + 8); assert e < B0 + 510
    init = [f"v_accvgpr_write_b32 a{r}, 0" for r in range(128)] + [f"v_mov_b32 v{ONES+r}, 0x3f803f80" for r in range(4)]
    spread(slots, init, B0 + 40, bar[21] - 8)
    init = [x.t for x in flat([f"""
    s_lshl_b32 s{sODW}, s{sHEAD}, 12
    s_add_u32 s{sODW}, s{sODW}, {WS_CTX}
    s_lshl_b32 s{sCT}, s{sUL}, 18
    s_add_u32 s{sCT}, s{sCT}, s{sODW}
    s_add_u32 s{sCT+1}, s{sCT}, 131072
    s_lshl_b32 s{sCT+2}, s{sUS}, 18
    s_add_u32 s{sCT+2}, s{sCT+2}, s{sODW}
    s_add_u32 s{sCT+3}, s{sCT+2}, 131072
    v_lshrrev_b32 v{PB+4}, 4, v0
    v_lshlrev_b32 v{PB+4}, 2, v{PB+4}
    v_and_b32 v{PB+5}, 15, v0
    v_sub_u32 v{PB+5}, v{PB+5}, v{PB+4}
    v_cmp_le_i32 s[{sMK[0]}:{sMK[0]+1}], 0, v{PB+5}
    v_cmp_le_i32 s[{sMK[1]}:{sMK[1]+1}], 1, v{PB+5}
    v_cmp_le_i32 s[{sMK[2]}:{sMK[2]+1}], 2, v{PB+5}
    v_cmp_le_i32 s[{sMK[3]}:{sMK[3]+1}], 3, v{PB+5}
    v_mov_b32 v{vKB}, v{vL16}
    v_mov_b32 v{vVB}, v{vL16}
    """])] + [f"v_mov_b32 v{LS+r}, 0" for r in range(2, 16)]
    spread(slots, init, bar[23] - 30, bar[23] + 10)
    spread(slots, [f"v_mov_b32 v{CB+r}, 0" for r in range(32)] + [f"v_mov_b32 v{TMP+31}, 0xff800000"], B0 + 330, B0 + 400)
    def qpack(s4): return sum(([f"v_cvt_pk_bf16_f32 v{acc(2*s4, qi)+k}, v{acc(2*s4 + (k >> 1), qi) + 2*(k & 1)}, v{acc(2*s4 + (k >> 1), qi) + 2*(k & 1) + 1}"
                                for k in range(4)] for qi in range(4)), [])
    for s4 in range(3): spread(slots, qpack(s4), B0 + 448 + 16*s4 + 17, B0 + 448 + 16*s4 + 31 - (s4 == 2))
    if "vmap" in OPT: print("".join(("#" if k in vused else ".") + ("|" if k % 16 == 15 else "") for k in range(len(slots)//4)))
    if "nopack" not in OPT: pack_slots(slots)
    o += emit_slots(slots) + [f"Latt_{N}:"]
    o += st()
    from fatt import attention
    from ftail import tail
    env.update(locals())
    o = resolve_waits(flat(o + attention(env, "prologue")))
    o += attention(env, "main")
    if upto >= 3: o += tail(env, upto)
    return o + finish()
```

```python
from common import *
from flay import *

def attention(env, part):
    g_ = env
    (N, ts, st, sW, sK, sMK, sCT, sT0, sT1, sKO, sCNT, sODW, sUS, sUL, sFL, vL16, vKB, vVB, ONES, LS, PB, CB, TMP,
     aK, aV, acc, kv_dma, WS, upto) = [g_[k] for k in
     "N ts st sW sK sMK sCT sT0 sT1 sKO sCNT sODW sUS sUL sFL vL16 vKB vVB ONES LS PB CB TMP aK aV acc kv_dma WS upto".split()]
    FLAG = 131072; NINF = "0xff800000"; sG = 20
    def Q(qi, s4): return vr(acc(2*s4, qi), 4)
    def S(buf, qi, kt): return acc(2*(buf*2+kt)+1, qi)
    def Pq(buf, qi): return PB + (buf*4+qi)*4
    def C(qi, kt): return CB + (qi*2+kt)*4
    def O(t, qi): return ar((t*4+qi)*4, 4)
    def Kf(kt, ds): return ar(aK + (kt*4+ds)*4, 4)
    def Vf(t): return ar(aV + t*4, 4)
    GQ = {0: (0, 1), 1: (2, 3)}
    def mask(g):
        r = []
        for e in range(4):
            for qt in range(2):
                c = C(GQ[g][qt], qt) + e
                r.append(f"v_cndmask_b32 v{c}, v{TMP+31}, v{c}, s[{sMK[e]}:{sMK[e]+1}]")
            r.append(f"v_mov_b32 v{C(GQ[g][0], 1)+e}, v{TMP+31}")
        return r
    def k_reads(off): return [LG(f"ds_read_b128 {Kf(kt, ds)}, v{vKB} offset:{off + (kt*4+ds)*1024}", ("k", kt*4+ds)) for kt in range(2) for ds in range(4)]
    def v_reads(off): return [LG(f"ds_read_b128 {Vf(t)}, v{vVB} offset:{16384 + off + t*1024}", ("v", t)) for t in range(8)]
    def qk(buf, groups):
        r = []
        for kt in range(2):
            for g in groups:
                for qi in GQ[g]:
                    for ds in range(4):
                        d = vr(S(buf, qi, kt), 4)
                        r.append((I(f"v_mfma_f32_16x16x32_bf16 {d}, {Kf(kt, ds)}, {Q(qi, ds)}, {vr(C(qi, kt), 4) if ds == 0 else d}"), kt*4+ds))
        return r
    def pv(buf, groups):
        r = []
        for t in range(8):
            for g in groups:
                for qi in GQ[g]:
                    r.append((I(f"v_mfma_f32_16x16x32_bf16 {O(t, qi)}, {Vf(t)}, {vr(Pq(buf, qi), 4)}, {O(t, qi)}"), t))
        for g in groups:
            for qi in GQ[g]:
                r.append((I(f"v_mfma_f32_16x16x32_bf16 {vr(LS+4*qi, 4)}, {vr(ONES, 4)}, {vr(Pq(buf, qi), 4)}, {vr(LS+4*qi, 4)}"), None))
        return r
    def softmax(buf, groups):
        ex = []; cv = []
        for g in groups:
            for qi in GQ[g]:
                for kt in range(2):
                    s0 = S(buf, qi, kt)
                    for h in range(2):
                        ex += [f"v_exp_f32 v{s0+2*h}, v{s0+2*h}", f"v_exp_f32 v{s0+2*h+1}, v{s0+2*h+1}"]
                        cv += [f"v_cvt_pk_bf16_f32 v{Pq(buf, qi)+2*kt+h}, v{s0+2*h}, v{s0+2*h+1}"]
        return ex, cv
    if part == "prologue":
        o = env["vcheck"] + [W(vm=[("K", 0)]), "s_barrier", k_reads(0), kv_dma("V", ("V", 0), 0)]
        o += [f"v_mov_b32 v{LS+r}, 0" for r in range(2)]
        dm = sum((kv_dma(wh, (wh, p), p) for wh, p in (("K", 2), ("V", 1), ("K", 3), ("V", 2))), [])
        o += env["qpack"](3) + [f"s_cmp_lg_u32 s{sUS}, 0", f"s_cbranch_scc1 Lp0_{N}", mask(1), f"Lp0_{N}:", "s_nop 1"]
        q0 = [Slot(m) for m, _ in qk(0, (0, 1))]
        for k in range(8): q0[4*k + 1].mem.append(dm[k])
        o += [W(lg=[("k", 7)])] + emit_slots(q0)
        o += [k_reads(8192), "s_nop 3", f"s_cmp_lg_u32 s{sUS}, 1", f"s_cbranch_scc1 Lp1_{N}", mask(1), f"Lp1_{N}:", "s_nop 1"]
        q1 = [Slot(m) for m, _ in qk(1, (0, 1))]
        q1[0].pre.append(W(lg=[("k", 7)]))
        mx = []
        for qi in range(4):
            a, b, t = S(0, qi, 0), S(0, qi, 1), TMP + qi
            mx += [f"v_max3_f32 v{t}, v{a}, v{a+1}, v{a+2}", f"v_max3_f32 v{t}, v{t}, v{a+3}, v{b}",
                   f"v_max3_f32 v{t}, v{t}, v{b+1}, v{b+2}", f"v_max_f32 v{t}, v{t}, v{b+3}"]
        for sw in ("v_permlane16_swap_b32", "v_permlane32_swap_b32"):
            mx += [f"v_mov_b32 v{TMP+4+qi}, v{TMP+qi}" for qi in range(4)]
            mx += [f"{sw} v{TMP+qi}, v{TMP+4+qi}" for qi in range(4)]
            mx += [f"v_max_f32 v{TMP+qi}, v{TMP+qi}, v{TMP+4+qi}" for qi in range(4)]
        spread(q1, mx, 2, 32)
        for k in range(8): q1[4*k + 1].mem.append(dm[8 + k])
        o += emit_slots(q1)
        o += [W(vm=[("K", 1), ("V", 0)]), "s_barrier", f"v_add_u32 v{vKB}, 32768, v{vL16}", k_reads(0)]
        for qi in range(4):
            for kt in range(2): o += [f"v_sub_f32 v{S(0, qi, kt)+e}, v{S(0, qi, kt)+e}, v{TMP+qi}" for e in range(4)]
        ex, cv = softmax(0, (0, 1))
        for k in range(len(cv)): o += ex[2*k:2*k+2] + ([cv[k-1]] if k else [])
        o += [cv[-1]]
        for qi in range(4):
            for kt in range(2):
                o += [f"v_sub_f32 v{C(qi, kt)+e}, v{C(qi, kt)+e}, v{TMP+qi}" for e in range(4)]
                o += [f"v_sub_f32 v{S(1, qi, kt)+e}, v{S(1, qi, kt)+e}, v{TMP+qi}" for e in range(4)]
        return o + st()
    MODES = {"D": ((0, 1), (0, 1), (0, 1)), "T1": ((0,), (0, 1), (0, 1)), "T2": ((0,), (0,), (0, 1)),
             "S": ((0,), (0,), (0,)), "F1": ((), (0,), (0,)), "F2": ((), (), (0,))}
    def iteration(mode, par, last=False, tail=(), xlds=(), xvm=(), xseq=False):
        gq, gs, gp = MODES[mode]
        m1 = qk(par, gq); m2 = pv(par, gp)
        sl = [Slot(m) for m, _ in m1 + m2]; n1 = len(m1); n2 = len(m2); n = n1 + n2
        ex, cv = softmax(1 - par, gs)
        free = [8]*n; pre = []
        epos = [min(n - 2, 1 + (k*(n - 1))//len(ex)) for k in range(len(ex))] if ex else []
        for k, x in enumerate(ex): sl[epos[k]].alu.append(I(x)); free[epos[k]] -= 8
        def place(x, lo, hi=None, mem=False, after=None):
            hi = n - 1 if hi is None else min(hi, n - 1); lo = min(lo, hi)
            c = [i for i in range(lo, hi + 1) if free[i] >= 4]
            i = c[0] if c else max(range(lo, hi + 1), key=lambda k: (free[k], -k))
            (sl[i].mem if mem else sl[i].alu).append(x); free[i] -= 4
            return i
        first = lambda ms, f: next(i for i, (_, g) in enumerate(ms) if g == f)
        for k, x in enumerate(cv): place(I(x), epos[2*k+1] + 1)
        vrd = v_reads(par*8192)
        DE = "dlate" not in env["opt"] and n1 == 16 and not last
        if DE:
            dm = kv_dma("K" if par == 0 else "V", "d")
            i = place(dm[0], 0, 0)
            for k, g in enumerate(dm[1:5]): i = place(g, 2 + 4*k, 2 + 4*k, mem=True)
            place(dm[5], i, i + 4)
        if n1:
            i = 0
            for k, r in enumerate(vrd): i = place(r, max(i, k*(n1*5//8)//8), n1 - 2, mem=True)
            place(W(lg=[("k", 7)]), max(0, first(m1, 4) - 3), first(m1, 4) - 1)
            place(W(lg=[("v", 3)]), n1 - 3, n1 - 1)
        else: pre += vrd + [W(lg=[("v", 3)])]
        wv = n1 + first(m2, 4) - 1
        if last:
            place(W(lg=[("v", 7)]), wv - 2, wv); i = 0
            for k, g in enumerate(xvm): i = place(flat(g), max(k*(n - 1)//len(xvm), i + 1 if k else 0), n - 1, mem=True)
        else:
            if par == 0:
                place(W(lg=[("v", 7)]), wv - 2, wv); b = n1; krd = k_reads(8192)
            else:
                b = n1 + max(1, n2//9)
                while free[b] < 8 and b < wv: b += 1
                sl[b].alu += flat([W(lg=[("v", 7)], vm="*16"), "s_barrier"]); free[b] -= 8
                i = b
                for x in (f"v_mov_b32 v{vVB}, v{vKB}", f"v_add_u32 v{vKB}, 0x8000, v{vKB}", f"v_and_b32 v{vKB}, 0x1ffff, v{vKB}"):
                    i = place(I(x), max(n1 - 1, b - 4) if i == b else i, b - 1) if n1 else (pre.append(I(x)) or 0)
                b += 1; krd = k_reads(0)
            i = b
            for k, r in enumerate(krd): i = place(r, max(i, b + k*((n - b)*5//8)//8), n - 2, mem=True)
            dm = kv_dma("K" if par == 0 else "V", "d")
            hi = (n//3 if xseq else n - 2) if par == 0 else b - 2
            i = 2
            for k, x in enumerate(xlds): i = place(x, max(i, 2 + k*(n - 8)//len(xlds)), n - 4, mem=True)
            if DE: pass
            elif hi < 8: pre += dm
            else:
                i = place(dm[0], 0, hi)
                for k, g in enumerate(dm[1:5]): i = place(g, max(i + 1, 2 + k*(hi - 2)//4), hi, mem=True)
                i = place(dm[5], i, hi)
            lo = i + 1 if xseq else 1
            for k, g in enumerate(xvm):
                t_ = max(lo + k*(n - 2 - lo)//len(xvm), i + 1 if k else 0)
                i = place(flat(g), t_, min(t_ + 2, n - 2), mem=True)
                free[i] -= 4*(len(flat(g)) - 1)
            place(W(lg=[("k", 3)]), n - 1)
        for x in tail: place(I(x), n - 3)
        env.setdefault("over", []).append((mode, par, n, sum(-f for f in free if f < 0), sum(f for f in free if f > 0)))
        return pre + emit_slots(sl)
    def epilogue(g, tsets, psets, rc):
        r = [f"v_rcp_f32 v{rc+k}, v{LS+4*qi}" for k, qi in enumerate(GQ[g])]
        n = 0
        for k, qi in enumerate(GQ[g]):
            for s4 in range(4):
                t = tsets[n % len(tsets)]; p = psets[n % len(psets)]; n += 1
                for h in range(2): r += [f"v_accvgpr_read_b32 v{t+4*h+e}, a{((2*s4+h)*4+qi)*4+e}" for e in range(4)]
                r += [f"v_pk_mul_f32 {vr(t+2*e, 2)}, {vr(t+2*e, 2)}, {vr(rc, 2)} op_sel:[0,{k}] op_sel_hi:[1,{k}]" for e in range(4)]
                r += [f"v_cvt_pk_bf16_f32 v{p+e}, v{t+2*e}, v{t+2*e+1}" for e in range(4)]
                r += [VM(f"buffer_store_dwordx4 {vr(p, 4)}, v{vL16}, {WS}, s{sCT+qi} offen offset:{s4*1024} sc1", "ctx")]
        return r
    epi_short = lambda: epilogue(1, [CB+16], [PB+8, PB+12], CB+28)
    epi_long = lambda: epilogue(0, [TMP], [TMP+8, TMP+12], TMP+24) + ([] if "epiend" not in env["opt"] else epi_short())
    def code_touch(a, b):
        env["npc"] = env.get("npc", 0) + 1; l = f"Lpc{env['npc']}_{N}"
        return ["s_getpc_b64 s[40:41]", f"{l}:", f"s_add_u32 s40, s40, {a}-{l}", "s_addc_u32 s41, s41, 0", f"s_mov_b32 s42, {b}-{a}", "s_mov_b32 s43, 0x20000",
                f"s_lshl_b32 s{sT0}, s{sW}, 13", f"v_lshlrev_b32 v{TMP+10}, 7, v0", VM(f"buffer_load_dword v{TMP+11}, v{TMP+10}, s[40:43], s{sT0} offen", "code")]
    sWB, sCTL, sML, sROT = 82, 80, 81, 91
    ROT = env["ROT"] = not env["XL"] and "norot" not in env["opt"]
    CTL = f"s_lshr_b32 s{sCTL}, s2, 5" if env["XL"] else f"s_and_b32 s{sCTL}, s2, 1\ns_lshl_b32 s{sCTL}, s{sCTL}, 2\ns_bfe_u32 s{sT0}, s2, 0x20003\ns_add_u32 s{sCTL}, s{sCTL}, s{sT0}"
    def wreg(i, t):
        i %= 16
        if i < 8: return (192 + 16*i if i < 4 else 64 + 16*i) + 4*t
        return ((2*(i & 3) + (t >> 1))*4 + (2 if i < 12 else 0) + (t & 1))*4
    def w_step(i, lds=None):
        if lds is None: g = [[VM(f"buffer_load_dwordx4 {ar(wreg(i, t), 4)}, v{vL16}, {WS}, s{sT1} offen offset:{t*1024} sc1", ("cw", i))] for t in range(4)]
        else: g = [[VM(f"buffer_load_dwordx4 v{vL16}, {WS}, s{sT1} offen offset:{t*1024} sc1 lds", ("cw", i))] for t in range(4)]
        off = [f"s_add_u32 s{sT1}, s{sROT}, {i*4096}", f"s_and_b32 s{sT1}, s{sT1}, 0x1ffff", f"s_add_u32 s{sT1}, s{sT1}, s{sWB}"] if ROT else [f"s_add_u32 s{sT1}, s{sWB}, {i*4096}"]
        g[0] = ([] if lds is None else [f"s_add_u32 m0, {lds}"]) + off + g[0]
        return SEQ(g)
    EW = "noew" not in env["opt"]; XS = env["XS"] = "noxs" not in env["opt"] and upto >= 3
    def early_w(force=False): return [] if not (EW or force) else sum((w_step(i) for i in range(4)), []) + w_step(16, f"s{sML}, 0") + w_step(17, f"s{sML}, 4096") if upto >= 3 else []
    def early_ep(): return [[VM(f"buffer_load_dwordx2 {vr(CB+16+2*t, 2)}, v{TMP+12}, s[16:19], s79 offen offset:{t*32}")] for t in range(4)] + \
                           [[VM(f"buffer_load_dword v{CB+24+k}, v{TMP+13}, {WS}, s83 offen offset:{k*2048 if k < 2 else 0} sc1")] + ([f"s_add_u32 s83, s83, 4096"] if k == 1 else []) for k in range(3)]
    def ep_addr():
        assert env["XL"]
        return srd(16, env["pX"], 2*MB) + [f"""
        s_and_b32 s79, s2, 7
        s_lshl_b32 s79, s79, 2
        s_bfe_u32 s{sT0}, s2, 0x20003
        s_add_u32 s79, s79, s{sT0}
        s_lshl_b32 s79, s79, 2
        s_add_u32 s79, s79, s{sW}
        s_lshl_b32 s79, s79, 14
        s_lshl_b32 s{sT0}, s{sCTL}, 7
        s_add_u32 s79, s79, s{sT0}
        s_mul_i32 s83, s{env['sJ']}, 12288
        s_lshl_b32 s{sT0}, s{sCTL}, 8
        s_add_u32 s83, s83, s{sT0}
        s_add_u32 s83, s83, {WS_MODF + 2*2048}
        v_lshrrev_b32 v{TMP+13}, 4, v0
        v_and_b32 v{TMP+12}, 15, v0
        v_lshlrev_b32 v{TMP+12}, 10, v{TMP+12}
        v_lshl_add_u32 v{TMP+12}, v{TMP+13}, 3, v{TMP+12}
        v_lshlrev_b32 v{TMP+13}, 2, v0
        """]
    env["wreg"] = wreg; env["w_step"] = w_step
    sld = f"buffer_load_dwordx2 {vr(TMP+8, 2)}, v{TMP+10}, {WS}, s{sFL} offen sc1"
    KT = [("k", i) for i in range(8)]
    def region(items): return resolve_waits(flat(items), pre_lg=KT)
    def side_period(rnd):
        st_ = env["side_stores"](rnd); st_[0] = [W(lg="ur")] + st_[0]
        return region([iteration("D", 0, xlds=env["side_reads"]()), iteration("D", 1, xvm=st_)])
    def loop(mode, lbl, cuts=False):
        r = flat([f"{lbl}_go:", f"s_sub_u32 s{sCNT}, s{sCNT}, 1", f"s_cbranch_scc1 {lbl}_done", ".p2align 6", f"{lbl}:"])
        r += region([iteration(mode, 0), iteration(mode, 1, tail=[f"s_sub_u32 s{sCNT}, s{sCNT}, 1"])]) + flat([f"s_cbranch_scc0 {lbl}"])
        if cuts == "poll":
            r += flat(["s_sub_u32 s1, s1, 1", f"s_cbranch_scc1 {lbl}_done", sld, f"s_mov_b32 s{sCNT}, {1 if XS else 2}", f"s_branch {lbl}_go"])
        elif cuts:
            r += flat(["s_sub_u32 s1, s1, 1", f"s_cbranch_scc1 {lbl}_done", "s_cmp_eq_u32 s1, 0", f"s_cbranch_scc1 {lbl}_pub"]) + side_period(1)
            r += flat([f"s_mov_b32 s{sCNT}, 2", f"s_branch {lbl}_go", f"{lbl}_pub:",
                       f"s_lshl_b32 s{sFL}, s2, 2", f"s_add_u32 s{sFL}, s{sFL}, {WS_FLAG + env['SF']}", f"s_cmp_eq_u32 s{sW}, 0",
                       f"s_cselect_b32 s{sFL}, s{sFL}, {OOB:#x}", [x if isinstance(x, str) else x.t for x in env["publish"](TMP+8, sFL)],
                       f"s_mov_b32 s{sCNT}, s0", f"s_branch {lbl}_go"])
        return r + flat([f"{lbl}_done:"])
    o = flat([f"""
    s_waitcnt lgkmcnt(4)
    s_and_b32 s{sODW}, s{sW}, 1
    s_sub_u32 s{sCNT}, s{sUS}, 1
    s_ashr_i32 s{sCNT}, s{sCNT}, 1
    s_sub_u32 s{sCNT}, s{sCNT}, s{sODW}
    s_max_i32 s{sCNT}, s{sCNT}, 0
    s_mov_b32 s1, 0
    s_cmp_lt_u32 s2, 128
    s_cbranch_scc1 Ldd_{N}_go
    s_mov_b32 s1, 2
    s_sub_u32 s0, s{sCNT}, 7
    s_mov_b32 s{sCNT}, 2
    """]) + side_period(0) + region([iteration("D", 0, xvm=env["side_dma"](1), xseq=True), iteration("D", 1)]) + loop("D", f"Ldd_{N}", True)
    o += flat([f"s_bitcmp1_b32 s{sW}, 0", f"s_cbranch_scc1 Lodd1_{N}", f"s_cmp_eq_u32 s{sUS}, 0", f"s_cbranch_scc1 Lt2s_{N}", mask(1), "s_nop 1"])
    o += region([iteration("D", 0), iteration("T1", 1)])
    o += flat([f"Lt2s_{N}:"]) + region([iteration("T2", 0), iteration("S", 1)])
    o += flat([f"s_branch Lss_entry_{N}", f"Lodd1_{N}:", f"s_cmp_eq_u32 s{sUS}, 1", f"s_cbranch_scc1 Lt12_{N}"])
    o += region([iteration("D", 0), mask(1), "s_nop 0", iteration("D", 1)])
    o += flat([f"Lt12_{N}:"]) + region([iteration("T1", 0), iteration("T2", 1)])
    o += flat([f"Lss_entry_{N}:", f"v_lshlrev_b32 v{TMP+10}, 3, v0", f"s_mov_b32 s{sFL}, {WS_FLAG + env['SF'] + 512}", sld] + (["s_nop 7"] + epi_short() if "epiend" not in env["opt"] else []) + [f"""
    s_sub_u32 s{sCNT}, s{sUL}, s{sUS}
    s_lshr_b32 s{sCNT}, s{sCNT}, 1
    s_sub_u32 s{sCNT}, s{sCNT}, 2
    s_cmp_ge_u32 s{sCNT}, 4
    s_cselect_b32 s1, 1, 0
    s_mov_b32 s0, s1
    s_mul_i32 s{sT0}, s1, {3 if XS else 2}
    s_sub_u32 s{sCNT}, s{sCNT}, s{sT0}
    """]) + loop("S", f"Lss_{N}", "poll")
    o += resolve_waits([VM("s_nop 0", "p5")] + [VM("s_nop 0")]*0 + env["check"](sld, [f"v_and_b32 v{TMP+8}, v{TMP+8}, v{TMP+9}", f"v_cmp_ne_u32 vcc, 1, v{TMP+8}"], sCNT, "*8", every=True))
    o += flat([CTL, f"s_lshl_b32 s{sWB}, s{sCTL}, 19", f"s_lshl_b32 s{sT0}, s{sW}, 17", f"s_add_u32 s{sWB}, s{sWB}, s{sT0}", f"s_add_u32 s{sWB}, s{sWB}, {WS_WOF}",
               f"s_lshl_b32 s{sROT}, s{env['sJ']}, 14", f"s_lshl_b32 s{sML}, s{sW}, 13", f"s_add_u32 s{sML}, s{sML}, 131072"] + ep_addr() +
               (env["code_part"](f"Lfin_{N}", f"Lend_{N}", 8, 40, TMP+14, I) if "ct3" in env["opt"] else []))
    fin_ep = early_ep
    if XS:
        X2 = "x1" not in env["opt"].split()
        xl = (early_ep() if X2 else []) + sum((w_step(k) for k in range(8, 12)), []); c = (0, 4, 11, 17, 23) if X2 else (0, 4, 8, 12, 16)
        o += flat(["s_cmp_eq_u32 s0, 0", f"s_cbranch_scc1 Lxt_{N}"])
        for k in (0, 2): o += region([iteration("S", 0, xvm=xl[c[k]:c[k+1]]), iteration("S", 1, xvm=xl[c[k+1]:c[k+2]])])
        o += flat([f"s_branch Lxs_{N}", f"Lxt_{N}:", early_ep() if X2 else [], f"Lxs_{N}:"])
        if X2: fin_ep = lambda: []
    o += flat([f"s_bitcmp1_b32 s{sW}, 0", f"s_cbranch_scc1 Lodd2_{N}", mask(0), "s_nop 1"])
    ew = early_w()
    o += region([iteration("S", 0, xvm=fin_ep() + ew[:(c0 := 4 if fin_ep() else 10)]), iteration("F1", 1, xvm=ew[c0:(c1 := 12 if fin_ep() else 16)])]) + region([iteration("F2", 0, last=True, xvm=ew[c1:])])
    o += flat([f"s_branch Lfin_{N}", f"Lodd2_{N}:"]) + region([iteration("S", 0, xvm=fin_ep() + (ew := early_w())[:(c0 := 4 if fin_ep() else 8)]), mask(0), "s_nop 0", iteration("S", 1, xvm=ew[c0:16])])
    o += region([iteration("F1", 0, last=True, xvm=ew[16:20]), iteration("F2", 1, last=True, xvm=ew[20:])])
    if "over" in env["opt"].split(): print(env["over"])
    o += flat([f"Lfin_{N}:", f"s_cmp_ge_u32 s{sW}, 2", f"s_cbranch_scc1 Lepi_{N}", f"s_waitcnt vmcnt({24 if upto >= 3 and EW else 0})", "s_barrier", f"Lepi_{N}:",
               f"s_waitcnt vmcnt({24 if upto >= 3 and EW else 0})"]) + flat(st())
    o += flat([f"s_mov_b32 s{sT0}, {fbits(2.0**90)}", f"s_mov_b64 s[{sG}:{sG+1}], 0", "s_nop 5"])
    for qi in range(4): o += flat([f"v_cmp_ngt_f32 vcc, s{sT0}, v{LS+4*qi}", f"s_or_b64 s[{sG}:{sG+1}], s[{sG}:{sG+1}], vcc"])
    o += flat([f"""
    s_cmp_lg_u64 s[{sG}:{sG+1}], 0
    s_cselect_b32 s{sFL}, 1, 0
    v_mov_b32 v{TMP}, s{sFL}
    s_and_b32 s{sFL}, s{sK+2}, 0x1ffff
    s_lshl_b32 s{sT0}, s{sW}, 12
    s_add_u32 s{sT0}, s{sT0}, s{sFL}
    v_mov_b32 v{TMP+1}, s{sT0}
    ds_write_b32 v{TMP+1}, v{TMP}
    """])
    o += resolve_waits(flat([f"""
    """, epi_long(), st("T"), [] if EW else early_w(True)[:16], [w_step(i) for i in range(4, 8)] if upto >= 3 else [], W(vm="ctx"), [] if EW else early_w(True)[16:]]))
    o += flat([f"""
    v_mov_b32 v{TMP+1}, s{sFL}
    s_waitcnt lgkmcnt(0)
    s_barrier
    ds_read2st64_b32 v[{TMP+4}:{TMP+5}], v{TMP+1} offset0:0 offset1:16
    ds_read2st64_b32 v[{TMP+6}:{TMP+7}], v{TMP+1} offset0:32 offset1:48
    s_waitcnt lgkmcnt(0)
    v_or3_b32 v{TMP}, v{TMP+4}, v{TMP+5}, v{TMP+6}
    v_or_b32 v{TMP}, v{TMP}, v{TMP+7}
    v_readfirstlane_b32 s{sFL}, v{TMP}
    s_cmp_lg_u32 s{sFL}, 0
    s_cbranch_scc1 Lfallback_{N}
    Lnorm_{N}:
    """]) + flat(st("T"))
    MR = TMP + 16
    fb = [f"Lfallback_{N}:", "s_waitcnt vmcnt(0)", "s_mov_b32 s0, 0"] + [f"v_accvgpr_write_b32 a{r}, 0" for r in range(128)] + [f"v_mov_b32 v{LS+r}, 0" for r in range(16)]
    fb += [f"v_mov_b32 v{MR+qi}, {NINF}" for qi in range(4)]
    fb += [f"s_mov_b32 s{sCNT}, 0", f"s_lshr_b32 s{sODW}, s{sK+2}, 14", f"v_mov_b32 v{vKB}, v{vL16}", f"v_mov_b32 v{vVB}, v{vL16}", f"Lfb_{N}:", "s_barrier",
           f"s_lshr_b32 s{sKO}, s{sCNT}, 1", f"s_lshl_b32 s{sKO}, s{sKO}, 15", f"s_and_b32 s{sT0}, s{sCNT}, 1", f"s_lshl_b32 s{sT0}, s{sT0}, 13",
           f"s_add_u32 s{sKO}, s{sKO}, s{sT0}", f"s_lshl_b32 s{sT0}, s{sW}, 11", f"s_add_u32 s{sKO}, s{sKO}, s{sT0}", f"s_mov_b32 m0, s{sT0}", f"s_add_u32 s{sT0}, s{sT0}, 16384",
           f"buffer_load_dwordx4 v{vL16}, s[{sK}:{sK+3}], s{sKO} offen sc1 lds", f"buffer_load_dwordx4 v{vL16}, s[{sK}:{sK+3}], s{sKO} offen offset:1024 sc1 lds",
           f"s_mov_b32 m0, s{sT0}", f"s_add_u32 s{sKO}, s{sKO}, 16384",
           f"buffer_load_dwordx4 v{vL16}, s[{sK}:{sK+3}], s{sKO} offen sc1 lds", f"buffer_load_dwordx4 v{vL16}, s[{sK}:{sK+3}], s{sKO} offen offset:1024 sc1 lds",
           "s_waitcnt vmcnt(0)", "s_barrier"]
    fb += [x.t for x in k_reads(0) + v_reads(0)] + ["s_waitcnt lgkmcnt(0)"]
    for g, su in ((0, sUL), (1, sUS)):
        fb += [f"s_cmp_gt_u32 s{sCNT}, s{su}", f"s_cbranch_scc1 Lfbs{g}_{N}"]
        fb += [f"v_mov_b32 v{C(qi, kt)+e}, 0" for qi in GQ[g] for kt in range(2) for e in range(4)]
        fb += [f"s_cmp_lg_u32 s{sCNT}, s{su}", f"s_cbranch_scc1 Lfbm{g}_{N}", mask(g), f"Lfbm{g}_{N}:", "s_nop 1"]
        fb += [m for m, _ in qk(0, (g,))] + ["s_nop 7"]
        for qi in GQ[g]:
            a, b, t = S(0, qi, 0), S(0, qi, 1), TMP
            fb += [f"v_max3_f32 v{t}, v{a}, v{a+1}, v{a+2}", f"v_max3_f32 v{t}, v{t}, v{a+3}, v{b}",
                   f"v_max3_f32 v{t}, v{t}, v{b+1}, v{b+2}", f"v_max3_f32 v{t}, v{t}, v{b+3}, v{MR+qi}"]
            for sw in ("v_permlane16_swap_b32", "v_permlane32_swap_b32"):
                fb += [f"v_mov_b32 v{t+1}, v{t}", f"{sw} v{t}, v{t+1}", f"v_max_f32 v{t}, v{t}, v{t+1}"]
            fb += [f"v_sub_f32 v{t+1}, v{MR+qi}, v{t}", f"v_exp_f32 v{t+1}, v{t+1}", f"v_mov_b32 v{MR+qi}, v{t}"]
            fb += [f"v_sub_f32 v{S(0, qi, kt)+e}, v{S(0, qi, kt)+e}, v{t}" for kt in range(2) for e in range(4)]
            fb += [f"v_mul_f32 v{LS+4*qi+e}, v{t+1}, v{LS+4*qi+e}" for e in range(4)]
            for tt in range(8):
                a0 = (tt*4+qi)*4
                fb += [f"v_accvgpr_read_b32 v{t+4+e}, a{a0+e}" for e in range(4)]
                fb += [f"v_mul_f32 v{t+4+e}, v{t+1}, v{t+4+e}" for e in range(4)]
                fb += [f"v_accvgpr_write_b32 a{a0+e}, v{t+4+e}" for e in range(4)]
        ex, cv = softmax(0, (g,))
        fb += ex + cv + [m for m, _ in pv(0, (g,))] + ["s_nop 7", f"Lfbs{g}_{N}:"]
    fb += [f"s_add_u32 s{sCNT}, s{sCNT}, 1", f"s_cmp_lt_u32 s{sCNT}, s{sODW}", f"s_cbranch_scc1 Lfb_{N}", "s_waitcnt vmcnt(0)"] + (epi_short() if "epiend" not in env["opt"] else []) + epi_long()
    if upto >= 3: fb += [w_step(i) for i in range(4, 8)] + ep_addr() + early_ep()
    fb += ["s_waitcnt vmcnt(0)", "s_barrier", f"s_branch Lnorm_{N}"]
    env["fallback"] = flat(fb)
    return o
```

```python
from common import *
from flay import *

def fused(name, ts=False, opt="", upto=9):
    N = name
    NT = " nt" if "nt" in opt.split() else ""
    NT1 = " nt" if "nt1" in opt.split() or NT else ""
    NTT = " nt" if "ntt" in opt.split() or NT else ""
    sW, sHEAD, sJ, sC = 3, 4, 5, 6
    sWS = 8; WS = "s[8:11]"
    sT0, sT1 = 76, 77
    pX, pB1, pB2, pOUT = 92, 94, 96, 98
    vL16 = 1
    nstamp = [0]; env = {}
    SM = "A" if "stA" in opt else ("B" if "stB" in opt else ("P" if "stP" in opt else ("T" if "stT" in opt else "")))
    def st(kind=""):
        if not ts or nstamp[0] >= 15 or kind != SM: return []
        nstamp[0] += 1
        return [stamp(nstamp[0] - 1)]
    def finish():
        r = []
        if ts:
            r += ["s_waitcnt vmcnt(0)", stamp(15), "s_waitcnt lgkmcnt(0)", "v_mov_b32 v2, s100", "v_mov_b32 v3, s74",
                  "s_lshl_b32 s76, s2, 2", f"s_add_u32 s76, s76, s{sW}", "s_lshl_b32 s77, s76, 3", f"s_add_u32 s77, s77, {WS_TS}",
                  f"buffer_store_dwordx2 v[2:3], off, {WS}, s77", "s_lshl_b32 s77, s76, 6", f"s_add_u32 s77, s77, {WS_TS + 65536}"]
            for q in range(0, 16, 4):
                r += [f"v_mov_b32 v{4+j}, s{44+2*(q+j)}" for j in range(4)]
                r += [f"buffer_store_dwordx4 v[4:7], off, {WS}, s77 offset:{q*4}", "s_nop 1"]
        return flat(r + [f"Lend_{N}:", "s_endpgm"]) + env["fallback"] + flat([f"Lcode_end_{N}:", "s_endpgm"])
    def rnd(r0, r1, t): return [f"v_cvt_pk_bf16_f32 v{t}, v{r0}, v{r1}", f"v_lshlrev_b32 v{r0}, 16, v{t}", f"v_and_b32 v{r1}, 0xffff0000, v{t}"]
    HY = "hy" in opt.split()
    XL = "noxl" not in opt.split() and not HY
    def flag_off(dst, kind, own, line=None):
        if (XL and kind >= 2) or (HY and kind == 3):
            r = [f"s_and_b32 s{dst}, s2, 7", f"s_lshl_b32 s{dst}, s{dst}, 7", f"s_add_u32 s{dst}, s{dst}, {WS_FLAG + 1024 + kind*1024}"]
            if own: r += [f"s_lshr_b32 s{sT0}, s2, 3", f"s_lshl_b32 s{sT0}, s{sT0}, 2", f"s_add_u32 s{dst}, s{dst}, s{sT0}"]
            return r + [f"s_cmp_eq_u32 s{sW}, 0", f"s_cselect_b32 s{dst}, s{dst}, {OOB:#x}"]
        r = [f"s_lshl_b32 s{dst}, s{sJ if line is None else line}, 7", f"s_add_u32 s{dst}, s{dst}, {WS_FLAG + 1024 + kind*1024}"]
        if own: r += [f"s_lshl_b32 s{sT0}, s{sC}, 2", f"s_add_u32 s{dst}, s{dst}, s{sT0}"]
        return r + [f"s_cmp_eq_u32 s{sW}, 0", f"s_cselect_b32 s{dst}, s{dst}, {OOB:#x}"]
    def publish(vt, soff):
        return [f"v_min_u32 v{vt}, 1, v0", f"v_lshlrev_b32 v{vt}, 27, v{vt}", f"v_mov_b32 v{vt+1}, 1",
                VM(f"buffer_store_dword v{vt+1}, v{vt}, {WS}, s{soff} offen sc1", "flag")]
    nsp = [0]
    def check(load, test, scnt, tag, mask=None, every=False):
        nsp[0] += 1; k = f"{N}_{nsp[0]}"
        test = [test, "s_cmp_lg_u64 vcc, 0" if mask is None else f"s_and_b64 vcc, vcc, s[{mask}:{mask+1}]"]
        return flat([W(vm=tag), [] if every else [f"s_cmp_lg_u32 s{sW}, 0", f"s_cbranch_scc1 Lok{k}"], test, f"s_cbranch_scc0 Lok{k}", f"s_mov_b32 s{scnt}, 0x80000",
                     f"Lsp{k}:", f"s_sub_u32 s{scnt}, s{scnt}, 1", f"s_cbranch_scc1 Lok{k}", "s_sleep 1", load, It("s_waitcnt vmcnt(0)", k="cond"), test,
                     f"s_cbranch_scc1 Lsp{k}", f"Lok{k}:"])

    sCKV, sWK, sWV, sMOD, sCV, sX, sDBG, sCODE = 12, 16, 20, 24, 28, 32, 36, 40
    sWQ, sWO, sU2 = sMOD, sCV, sCODE
    sCOFF, sWKOFF, sWVOFF, sKST, sVST, sM0C, sM0K, sMST, sATO, sADD, sMF, sHST, sSPIN, sRS0 = range(78, 92)
    sRS1 = 7; sMEAN0, sMEAN1 = sMST, sATO
    vWD, vTR, vCD, vCR, vT = 2, 6, 10, 14, 16
    WF, X, ACC = 32, 64, 128
    RING, CBUF, CW = 0, 65536, 24576
    MODRED, MODV, HSTA = 49152, CBUF + 16384, CBUF + CW + 16384
    o = ["s_cmp_ge_u32 s2, 256", f"s_cbranch_scc1 Lend_{N}"] + load_args()
    if ts: o += ["s_memrealtime s[100:101]" if not CYC else "s_memtime s[100:101]"]
    o += [f"s_getpc_b64 s[{sCODE}:{sCODE+1}]", f"Lpc_{N}:", f"s_mov_b32 s{sCODE+2}, Lcode_end_{N}-Lpc_{N}", f"s_mov_b32 s{sCODE+3}, 0x20000",
          f"v_lshlrev_b32 v{vT}, 7, v0", VM(f"buffer_load_dword v{vT+1}, v{vT}, s[{sCODE}:{sCODE+3}], 0 offen", "code")]
    o += [f"""
    v_lshrrev_b32 v{vT+2}, 6, v0
    v_and_b32 v0, 63, v0
    v_readfirstlane_b32 s{sW}, v{vT+2}
    v_lshlrev_b32 v{vL16}, 4, v0
    s_and_b32 s{sHEAD}, s2, 7
    s_lshl_b32 s{sHEAD}, s{sHEAD}, 2
    s_bfe_u32 s{sT0}, s2, 0x20003
    s_add_u32 s{sHEAD}, s{sHEAD}, s{sT0}
    s_lshr_b32 s{sJ}, s2, 5
    s_and_b32 s{sC}, s2, 31
    v_lshrrev_b32 v{vT+2}, 3, v0
    v_and_b32 v{vT+3}, 7, v0
    """]
    r8, c8 = vT+2, vT+3
    o += [f"""
    v_mul_u32_u24 v{vT+4}, 6144, v{r8}
    v_lshl_add_u32 v{vT+4}, v{c8}, 4, v{vT+4}
    v_lshlrev_b32 v{vT+5}, 1, v{r8}
    v_lshrrev_b32 v{vT+6}, 1, v{r8}
    v_xor_b32 v{vT+6}, v{vT+6}, v{c8}
    v_lshlrev_b32 v{vT+6}, 4, v{vT+6}
    v_lshl_add_u32 v{vCD}, v{r8}, 10, v{vT+6}
    v_xor_b32 v{vCD+1}, 64, v{vCD}
    v_add_u32 v{vCD+1}, {7*1024}, v{vCD+1}
    v_add_u32 v{vCD+2}, {14*1024}, v{vCD}
    v_add_u32 v{vCD+3}, {14*1024}, v{vCD+1}
    v_and_b32 v{vT+6}, 2, v{r8}
    v_xor_b32 v{vT+6}, v{vT+6}, v{c8}
    v_lshlrev_b32 v{vT+6}, 4, v{vT+6}
    v_lshl_add_u32 v{vWD}, v{r8}, 13, v{vT+6}
    v_xor_b32 v{vWD+1}, 64, v{vWD}
    v_add_u32 v{vWD+1}, {65536-1024}, v{vWD+1}
    v_add_u32 v{vWD+2}, {2*(65536-1024)}, v{vWD}
    v_add_u32 v{vWD+3}, {2*(65536-1024)}, v{vWD+1}
    s_and_b32 s{sT0}, s2, 3
    s_lshl_b32 s{sT0}, s{sT0}, 7
    s_lshl_b32 s{sT1}, s{sW}, 5
    s_add_u32 s{sMF}, s{sT0}, s{sT1}
    s_lshl_b32 s{sHST}, s{sMF}, 1
    s_mul_i32 s{sMF}, s{sMF}, 6144
    s_lshr_b32 s{sMST}, s2, 2
    s_lshl_b32 s{sMST}, s{sMST}, 7
    s_add_u32 s{sMF}, s{sMF}, s{sMST}
    s_lshl_b32 s{sCOFF}, s{sJ}, 18
    s_lshl_b32 s{sT0}, s{sW}, 16
    s_add_u32 s{sCOFF}, s{sCOFF}, s{sT0}
    s_mul_i32 s{sM0C}, s{sW}, {CW}
    s_add_u32 s{sM0C}, s{sM0C}, {CBUF}
    s_and_b32 s{sT0}, s{sW}, 1
    s_lshl_b32 s{sWKOFF}, s{sT0}, 18
    s_lshr_b32 s{sT1}, s{sW}, 1
    s_lshl_b32 s{sT1}, s{sT1}, 7
    s_add_u32 s{sWKOFF}, s{sWKOFF}, s{sT1}
    s_lshl_b32 s{sT1}, s{sHEAD}, 8
    s_add_u32 s{sWKOFF}, s{sWKOFF}, s{sT1}
    s_lshl_b32 s{sWVOFF}, s{sW}, 18
    s_add_u32 s{sWVOFF}, s{sWVOFF}, s{sT1}
    s_lshl_b32 s{sM0K}, s{sW}, 12
    s_waitcnt lgkmcnt(0)
    """]
    if SM == "P": o += ["s_memrealtime s[92:93]"]
    o += srd(sMOD, P("wmod"), 512*6144) + srd(sCV, P("c"), 1024) + ["s_cmp_lt_u32 s2, 192", f"s_cselect_b32 s{sMOD+2}, s{sMOD+2}, 0"]
    MW, MC, MA, MT = 64, 80, 84, 92
    for n in range(4): o += [VM(f"buffer_load_ushort v{MC+n}, v{vT+5}, s[{sCV}:{sCV+3}], s{sHST} offen offset:{16*n}", "modc")]
    for n in range(4):
        o += [VM(f"buffer_load_dwordx4 v[{MW+4*n}:{MW+4*n+3}], v{vT+4}, s[{sMOD}:{sMOD+3}], s{sMF} offen{NT1}", ("modw", n))]
        if n < 3: o += [f"s_add_u32 s{sMF}, s{sMF}, {8*6144}"]
    o += srd(sCKV, P("ckv"), 2*MB) + srd(sWK, P("wuk"), 4*MB)
    def c_dma(i):
        g = []
        for hh in range(2):
            grp = [f"s_add_u32 m0, s{sM0C}, {(i % 3)*8192 + hh*4096}", f"s_add_u32 s{sRS0}, s{sCOFF}, {i*128 + hh*32768}"]
            for n in range(4):
                grp.append(VM(f"buffer_load_dwordx4 v{vCD+n}, s[{sCKV}:{sCKV+3}], s{sRS0} offen offset:{n*1024}{' nt' if 'ntc' in opt.split() else ''} lds", ("c", i)))
                g.append(grp); grp = []
        return SEQ(g)
    def page(q): return RING + (q % 4) * 16384
    def w_dma(q):
        sTW = sRS1 if q <= 2 else sT1
        if q < 8: sd, off, m0 = sWK, f"s_add_u32 s{sTW}, s{sWKOFF}, {q*64*8192}", f"s{sM0K}, {page(q)}"
        elif q < 16:
            sd, off = sWV, f"s_add_u32 s{sTW}, s{sWVOFF}, {((q-8)&3)*128*8192 + ((q-8)>>2)*128}"
            m0 = f"s{sM0K}, {page(q)}" if q < 12 else f"s{sM0C}, {(q-12)*4096}"
        else: sd, off, m0 = sWQ, f"s_add_u32 s{sTW}, s{sWKOFF}, {(q-16)*64*8192}", f"s{sM0K}, {(q-16)*16384}"
        g = []; grp = [f"s_add_u32 m0, {m0}", off]
        for n in range(4):
            grp.append(VM(f"buffer_load_dwordx4 v{vWD+n}, s[{sd}:{sd+3}], s{sTW} offen offset:{n*1024}{' nt' if (q < 8 and 'ntk' in opt.split()) or (8 <= q < int(OV('ntv', 0))) else NT} lds", ("w", q)))
            g.append(grp); grp = []
        return SEQ(g)
    OPT = opt.split()
    def OV(k, d): return next((x.split("=")[1] for x in OPT if x.startswith(k + "=")), d)
    o += [c_dma(0), w_dma(0)] + (["s_memrealtime s[94:95]"] if SM == "P" else []) + srd(sWV, P("wuv"), 4*MB)
    OPT = opt.split()
    def OV(k, d): return next((x.split("=")[1] for x in OPT if x.startswith(k + "=")), d)
    vTD = vT+1
    vPC, vPW = 96, 97
    def pf_addr(vc, vw):
        return [f"v_lshrrev_b32 v{vw}, 4, v0", f"v_and_b32 v{vc}, 15, v0", f"v_lshlrev_b32 v{vc}, 4, v{vc}",
                f"v_lshl_add_u32 v{vw+1}, v{vw}, 13, v{vc}", f"v_lshl_add_u32 v{vc}, v{vw}, 10, v{vc}", f"v_mov_b32 v{vw}, v{vw+1}"]
    def pf_c(dummy):
        g = []; grp = [f"s_add_u32 m0, s{sM0C}, {dummy}", f"s_bfe_u32 s{sRS0}, s2, 0x20003", f"s_lshl_b32 s{sRS0}, s{sRS0}, 16", f"s_lshl_b32 s{sRS1}, s{sJ}, 18",
                       f"s_add_u32 s{sRS0}, s{sRS0}, s{sRS1}", f"s_lshl_b32 s{sRS1}, s{sW}, 14", f"s_add_u32 s{sRS0}, s{sRS0}, s{sRS1}"]
        for col in range(1, 4):
            for rg in range(4):
                grp += [f"s_add_u32 s{sRS1}, s{sRS0}, {rg*4096 + col*256}", VM(f"buffer_load_dwordx4 v{vPC}, s[{sCKV}:{sCKV+3}], s{sRS1} offen lds", "pf")]
                g.append(grp); grp = []
        return SEQ(g)
    def pf_w(sd, vw, dummy, first, sRS0=sRS0, sRS1=sRS1):
        g = []; grp = [f"s_add_u32 m0, s{sM0C}, {dummy}", f"s_lshr_b32 s{sRS0}, s{sW}, 1", f"s_lshl_b32 s{sRS0}, s{sRS0}, 3", f"s_add_u32 s{sRS0}, s{sRS0}, s{sJ}",
                       f"s_lshl_b32 s{sRS0}, s{sRS0}, 1", f"s_and_b32 s{sRS1}, s{sW}, 1", f"s_add_u32 s{sRS0}, s{sRS0}, s{sRS1}", f"s_lshl_b32 s{sRS0}, s{sRS0}, 15",
                       f"s_lshl_b32 s{sRS1}, s{sHEAD}, 8", f"s_add_u32 s{sRS0}, s{sRS0}, s{sRS1}"]
        for q in range(first, 8, 2):
            grp += [f"s_add_u32 s{sRS1}, s{sRS0}, {q*64*8192}", VM(f"buffer_load_dwordx4 v{vw}, s[{sd}:{sd+3}], s{sRS1} offen{NTT} lds", "pf")]
            g.append(grp); grp = []
        return SEQ(g)
    PF = "nopf" not in OPT
    o += pf_addr(vPC, vPW)
    pfa = (pf_w(sWK, vPW, 16384, 2) if "pfk" in OPT else []) + (pf_c(16384) if "pfc" in OPT else [])
    NPRE = int(OV("npre", 2))
    ilv = sum((c_dma(i) + w_dma(i) for i in range(1, NPRE + 1)), []) if "ilv" in OPT else []
    pro0 = len(o)
    o += ([] if ilv else [c_dma(1), w_dma(1)]) + ([pfa] if "pfpre" in OPT else []) + (["s_memrealtime s[96:97]"] if SM == "P" else []) + srd(sWS, P("ws"), WS_SIZE)
    KF, VF, SF = 0, 5120, 6144
    vZA, vZD = vT+14, vT+15
    o += [f"""
    v_lshlrev_b32 v{vZA}, 10, v0
    s_lshl_b32 s{sT0}, s{sJ}, 7
    s_lshl_b32 s{sT1}, s{sC}, 2
    s_add_u32 s{sT0}, s{sT0}, s{sT1}
    v_add_u32 v{vZA}, s{sT0}, v{vZA}
    s_lshl_b32 s{sT0}, s{sHEAD}, 5
    s_lshl_b32 s{sT1}, s{sJ}, 2
    s_add_u32 s{sT0}, s{sT0}, s{sT1}
    v_writelane_b32 v{vZA}, s{sT0}, 0
    s_add_u32 s{sT0}, s{sT0}, {VF}
    v_writelane_b32 v{vZA}, s{sT0}, 5
    s_lshl_b32 s{sT0}, s2, 2
    s_add_u32 s{sT0}, s{sT0}, {SF}
    v_writelane_b32 v{vZA}, s{sT0}, 6
    v_mov_b32 v{vZD}, {1 << 27}
    v_cmp_gt_u32 vcc, 7, v0
    v_cndmask_b32 v{vZA}, v{vZD}, v{vZA}, vcc
    v_mov_b32 v{vZD}, 0
    s_mov_b32 s{sSPIN}, {WS_FLAG}
    s_cmp_eq_u32 s{sW}, 0
    s_cselect_b32 s{sSPIN}, s{sSPIN}, {OOB:#x}
    """, VM(f"buffer_store_dword v{vZD}, v{vZA}, {WS}, s{sSPIN} offen sc1", "zero")]
    for i in (32768, 65536):
        o += [f"s_mov_b32 s{sT0}, {i}", VM(f"buffer_load_dword v{vT+1}, v{vT}, s[{sCODE}:{sCODE+3}], s{sT0} offen", "code2")]
    o += srd(sX, P("x"), 2*MB) + srd(sDBG, P("dbg"), 256) + srd(sWQ, P("wq"), 4*MB) + srd(sWO, P("wo"), 4*MB)
    EARLY = "s_waitcnt lgkmcnt(0)\ns_mov_b32 s66, s92\ns_mov_b32 s68, s94\ns_mov_b32 s72, s96" if SM == "P" else ""
    o += srd(sU2, P("w1"), 1792*1024) + [f"""
    s_mov_b64 s[0:1], s[{P('w2')}:{P('w2')+1}]
    {EARLY}
    s_mov_b64 s[{pX}:{pX+1}], s[{P('x')}:{P('x')+1}]
    s_mov_b64 s[{pB1}:{pB1+1}], s[{P('b1')}:{P('b1')+1}]
    s_mov_b64 s[{pB2}:{pB2+1}], s[{P('b2')}:{P('b2')+1}]
    s_mov_b64 s[{pOUT}:{pOUT+1}], s[{P('out')}:{P('out')+1}]
    v_lshrrev_b32 v{vT+6}, 4, v0
    v_bfe_u32 v{vT+7}, v0, 2, 2
    v_lshl_add_u32 v{vT+8}, v{vT+6}, 3, v{vT+7}
    v_lshlrev_b32 v{vT+8}, 7, v{vT+8}
    v_and_b32 v{vT+9}, 3, v0
    v_lshl_add_u32 v{vT+8}, v{vT+9}, 3, v{vT+8}
    v_and_b32 v{vT+9}, 1, v{vT+6}
    v_lshlrev_b32 v{vT+9}, 1, v{vT+9}
    v_lshrrev_b32 v{vT+10}, 1, v{vT+7}
    v_or_b32 v{vT+9}, v{vT+9}, v{vT+10}
    v_lshl_add_u32 v{vTR}, v{vT+9}, 5, v{vT+8}
    v_xor_b32 v{vTR+1}, 32, v{vTR}
    v_xor_b32 v{vTR+2}, 64, v{vTR}
    v_xor_b32 v{vTR+3}, 0x60, v{vTR}
    v_and_b32 v{vT+7}, 15, v0
    v_lshrrev_b32 v{vT+8}, 1, v{vT+7}
    v_xor_b32 v{vT+8}, v{vT+8}, v{vT+6}
    v_lshlrev_b32 v{vT+8}, 4, v{vT+8}
    v_lshl_add_u32 v{vT+8}, v{vT+7}, 7, v{vT+8}
    v_add_u32 v{vCR}, s{sM0C}, v{vT+8}
    v_xor_b32 v{vCR+1}, 64, v{vCR}
    s_lshl_b32 s{sKST}, s{sHEAD}, 20
    s_lshl_b32 s{sT0}, s{sJ}, 17
    s_add_u32 s{sKST}, s{sKST}, s{sT0}
    s_lshl_b32 s{sT0}, s{sW}, 15
    s_add_u32 s{sKST}, s{sKST}, s{sT0}
    s_add_u32 s{sVST}, s{sKST}, 16384
    s_and_b32 s{sT0}, s2, 3
    s_mul_i32 s{sT0}, s{sT0}, 12288
    s_lshl_b32 s{sMST}, s{sMST}, 1
    s_add_u32 s{sMST}, s{sMST}, s{sT0}
    s_add_u32 s{sMST}, s{sMST}, {WS_MODP}
    s_cmp_lt_u32 s2, 192
    s_cselect_b32 s{sT0}, s{sW}, 1
    s_cmp_eq_u32 s{sT0}, 0
    s_cselect_b32 s{sMST}, s{sMST}, {OOB:#x}
    s_and_b32 s{sATO}, s2, 63
    s_lshl_b32 s{sATO}, s{sATO}, 2
    s_cmp_eq_u32 s{sW}, 0
    s_cselect_b32 s{sATO}, s{sATO}, 256
    s_cmp_ge_u32 s{sW}, 2
    s_cselect_b32 s{sADD}, 1.0, 0
    """]
    o += st("P") + [W(vm="code" if SM == "P" else "modc")] + st("P") + [W(vm="modc")] + st("P")
    for n in range(4): o += [f"v_lshlrev_b32 v{MC+n}, 16, v{MC+n}"]
    for n in range(4): o += [f"v_mul_f32 v{MT+n}, {fbits(-1.4426950408889634)}, v{MC+n}"]
    for n in range(4): o += [f"v_exp_f32 v{MT+n}, v{MT+n}"]
    for n in range(4): o += [f"v_add_f32 v{MT+n}, 1.0, v{MT+n}"]
    for n in range(4): o += [f"v_rcp_f32 v{MT+n}, v{MT+n}"]
    for n in range(4): o += [f"v_mul_f32 v{MC+n}, v{MC+n}, v{MT+n}"]
    for n in range(4): o += [f"v_cvt_pk_bf16_f32 v{MC+n}, v{MC+n}, v{MC+n}"]
    for n in range(4): o += [f"v_lshlrev_b32 v{MC+n}, 16, v{MC+n}"]
    for n in range(4):
        o += [W(vm=[("modw", n)])]
        for j in range(4):
            o += [f"v_lshlrev_b32 v{MT}, 16, v{MW+4*n+j}", f"v_and_b32 v{MT+1}, 0xffff0000, v{MW+4*n+j}"]
            if n == 0: o += [f"v_mul_f32 v{MA+2*j}, v{MC}, v{MT}", f"v_mul_f32 v{MA+2*j+1}, v{MC}, v{MT+1}"]
            else: o += [f"v_fmac_f32 v{MA+2*j}, v{MC+n}, v{MT}", f"v_fmac_f32 v{MA+2*j+1}, v{MC+n}, v{MT+1}"]
    for j in range(8): o += [f"v_add_f32_dpp v{MA+j}, v{MA+j}, v{MA+j} row_ror:8 row_mask:0xf bank_mask:0xf"]
    for j in range(0, 8, 2): o += [f"v_permlane16_swap_b32 v{MA+j}, v{MA+j+1}"]
    for j in range(0, 8, 2): o += [f"v_add_f32 v{MA+j}, v{MA+j}, v{MA+j+1}"]
    for j in (0, 4): o += [f"v_permlane32_swap_b32 v{MA+j}, v{MA+j+2}"]
    for j in (0, 4): o += [f"v_add_f32 v{MA+j}, v{MA+j}, v{MA+j+2}"]
    vL4, vL256, vONE = vT+4, vT+5, vT+6
    o += [f"""
    v_lshrrev_b32 v{MT}, 4, v0
    v_lshl_add_u32 v{MT}, v{c8}, 3, v{MT}
    v_lshlrev_b32 v{MT}, 2, v{MT}
    s_lshl_b32 s{sT0}, s{sW}, 8
    v_add_u32 v{MT}, s{sT0}, v{MT}
    """, LG(f"ds_write_b32 v{MT}, v{MA} offset:{MODRED}", "mr"), LG(f"ds_write_b32 v{MT}, v{MA+4} offset:{MODRED+16}", "mr"),
    f"v_lshlrev_b32 v{vL4}, 2, v0", f"v_lshlrev_b32 v{vL256}, 8, v0", f"v_mov_b32 v{vONE}, 1"]
    def Cfrag(kt, s): return ar((s*4+kt)*4, 4)
    def c_reads(i):
        return [LG(f"ds_read_b128 {Cfrag(kt, 2*i+sp)}, v{vCR+sp} offset:{(i % 3)*8192 + kt*2048}", ("cr", i)) for sp in range(2) for kt in range(4)]
    if ilv:
        rest = scc_groups(o[pro0:]); n_ = len(rest)
        for k in reversed(range(len(ilv))): rest.insert((k*n_)//len(ilv), ilv[k])
        o = o[:pro0] + rest
    o += st("P") + [W(vm=[("c", 0)])] + st("P") + [c_reads(0), W(vm=[("w", 0)], lg="mr")] + st("P") + ["s_barrier"] + st("P")

    QA, HR = 64, 192
    aK, aV = 128, 160
    def accK(dt, kt): return ACC + (dt*4+kt)*4
    def acc(dt, qi): return QA + (dt*4+qi)*4
    def Hf(s, qi): return vr(HR + ((s & 3)*4+qi)*4, 4, "a" if s & 4 else "v")
    frags = []
    for s2 in range(0, 16, 2):
        for dt in range(8):
            for s in (s2, s2+1):
                frags.append((s >> 1, page(s >> 1) + (dt >> 2)*8192 + (s & 1)*4096, dt & 3, [(accK(dt, kt), "W", Cfrag(kt, s), s == 0) for kt in range(4)]))
    for s2 in range(0, 16, 2):
        for t in range(4):
            for s in (s2, s2+1):
                frags.append((8 + (s >> 2), page(8 + (s >> 2)) + (s & 3)*4096, t, [(X + (t*4+kt)*4, Cfrag(kt, s), "W", s == 0) for kt in range(4)]))
    for hb in range(2):
        for s2 in range(0, 16, 2):
            for t in (2*hb, 2*hb+1):
                for s in (s2, s2+1):
                    frags.append((12 + (s >> 2), CBUF + (s & 3)*CW + (s >> 2)*4096, t, [(ACC + (t*4+kt)*4, Cfrag(kt, s), "W", s == 0) for kt in range(4)]))
    for s2 in range(0, 16, 2):
        for dt in range(8):
            for s in (s2, s2+1):
                frags.append((16 + (s >> 1), (s >> 1)*16384 + (dt >> 2)*8192 + (s & 1)*4096, dt & 3, [(acc(dt, qi), "W", Hf(s, qi), s == 0) for qi in range(4)]))
    def wreg(f): return ("v", WF + (f % 8)*4) if f < 256 else ("a", aK + (f % 16)*4)
    slots = []
    CH = "nochain" not in OPT
    for f in range(0, len(frags), 2):
        for n, k in ([(n, k) for n in range(4) for k in range(2)] if CH else [(n, k) for k in range(2) for n in range(4)]):
            fl, r = wreg(f + k); wf = vr(r, 4, fl); d, a_, b_, first = frags[f + k][3][n]
            sl = Slot(I(f"v_mfma_f32_16x16x32_bf16 {vr(d,4)}, {wf if a_ == 'W' else a_}, {wf if b_ == 'W' else b_}, {'0' if first else vr(d,4)}"))
            if n == 0 and k == 0:
                sl.pre.append(W(lg=[("wf", f+1)]))
                if f < 128 and f % 16 == 0: sl.pre.append(W(lg=[("cr", f//16)]))
                if f >= 256 and f % 16 == 0: sl.pre.append(W(vm=[("h", (f-256)//8 + 1)]))
            slots.append(sl)
    LA = 4
    wbase = [0]; bar = {}
    vTR2 = vCD
    def frag_reads(f):
        q, a, t, _ = frags[f]; g = []
        fl, r = wreg(f)
        if a >= 131072: return g, [LG(f"ds_read_b64_tr_b16 {vr(r+2*hh, 2, fl)}, v{vTR2+t} offset:{a - 131072 + hh*512}", ("wf", f)) for hh in range(2)]
        wb = a & 65536
        if wb != wbase[0]:
            g += [f"v_xor_b32 v{vTR+i}, 0x10000, v{vTR+i}" for i in range(4)]; wbase[0] = wb
        return g, [LG(f"ds_read_b64_tr_b16 {vr(r+2*hh, 2, fl)}, v{vTR+t} offset:{a - wb + hh*512}", ("wf", f)) for hh in range(2)]
    for f in range(LA):
        g, rd = frag_reads(f); o += g + rd
    valid = {0}
    VAL = {12: [12, 13, 14, 15], 16: [16, 17, 18, 19]}
    for f in range(LA, len(frags)):
        q = frags[f][0]; i = (f - LA)*4
        if q not in valid or (q > 16 and f % 16 == 0):
            qs = VAL.get(q, [q]); valid.update(qs); bar[q] = i - 1
            slots[i-1].alu += [W(vm=[("w", x) for x in qs]), I("s_barrier")]
        g, rd = frag_reads(f)
        slots[i-1].alu += flat(g)
        slots[i].mem.append(rd[0]); slots[i+1].mem.append(rd[1])
    def put(groups, b, step=4, where="mem"):
        for n, g in enumerate(groups): getattr(slots[b + step*n], where).append(g)
    def up(b, r):
        while (b & 3) != r: b += 1
        return b
    def lq(groups, b):
        put(groups, up(b, 3)); return up(b, 3) + 4*(len(groups) - 1)
    vused = set()
    def vq(groups, b, stride=1):
        k = up(b, 2) >> 2
        for g in groups:
            while k in vused: k += 1
            vused.add(k); slots[4*k + 2].mem.append(g); last = 4*k + 2; k += stride
        return last
    def sq(text, b, e): spread(slots, SEQ(scc_groups(text)), b, e)
    def before_bar(q, items): slots[bar[q]].alu[0:0] = flat(items)
    def pre(items, groups): groups[0] = flat(items) + groups[0]; return groups
    cend = {}
    for p in range(7):
        rd = c_reads(p+1); rd[0] = [W(vm=[("c", p+1)]), rd[0]]
        cend[p+1] = lq(rd, p*64 + 20)
    MR = vT + 8
    vq([[W(lg="mr2"), f"v_add_f32 v{MR}, v{MR}, v{MR+1}", f"v_add_f32 v{MR+2}, v{MR+2}, v{MR+3}", f"v_add_f32 v{MR}, v{MR}, v{MR+2}",
         VM(f"buffer_store_dword v{MR}, v{vL4}, {WS}, s{sMST} offen sc1", "mst")]], 14)
    sq([f"v_and_b32 v{vTR2+i}, 0xffff, v{vTR+i}" for i in range(4)] + [f"v_or_b32 v{vTR2+i}, 0x20000, v{vTR2+i}" for i in range(4)], 520, 540)
    lq([LG(f"ds_read2st64_b32 v[{MR}:{MR+1}], v{vL4} offset0:192 offset1:193", "mr2"),
        LG(f"ds_read2st64_b32 v[{MR+2}:{MR+3}], v{vL4} offset0:194 offset1:195", "mr2")], 0)
    vq([[W(vm=["mst", "zero"]), VM(f"buffer_atomic_add v{vONE}, v{vL256}, s[{sDBG}:{sDBG+3}], s{sATO} offen sc1")]], 100)
    XR, F0, F1, TT, AV, BV, PP, MF = 64, 72, 80, 88, 92, 100, 108, 124
    sq([f"""
    s_sub_u32 s{sHST}, 15, s{sJ}
    s_cmp_lt_u32 s{sC}, 16
    s_cselect_b32 s{sHST}, s{sJ}, s{sHST}
    s_lshl_b32 s{sHST}, s{sHST}, 4
    s_and_b32 s{sMF}, s{sC}, 15
    s_add_u32 s{sHST}, s{sHST}, s{sMF}
    s_lshl_b32 s{sMF}, s{sHST}, 13
    s_lshl_b32 s{sSPIN}, s{sW}, 11
    s_add_u32 s{sMF}, s{sMF}, s{sSPIN}
    """], 20, 40)
    xe = vq([VM(f"buffer_load_dwordx4 {vr(XR+4*k,4)}, v{vL16}, s[{sX}:{sX+3}], s{sMF} offen offset:{1024*k}{' nt' if 'ntx' in OPT else ''}", "x") for k in range(2)], 104)

    g = []
    for j in range(4):
        for F, xr in ((F0, XR), (F1, XR+4)): g += [f"v_lshlrev_b32 v{F+2*j}, 16, v{xr+j}", f"v_and_b32 v{F+2*j+1}, 0xffff0000, v{xr+j}"]
    g[0] = [W(vm="x"), g[0]]
    def reduce2(sa, sb, post):
        r = []
        for m in ("quad_perm:[1,0,3,2]", "quad_perm:[2,3,0,1]", "row_ror:4", "row_ror:8"):
            r += [f"v_add_f32_dpp v{TT}, v{TT}, v{TT} {m} row_mask:0xf bank_mask:0xf", f"v_add_f32_dpp v{TT+1}, v{TT+1}, v{TT+1} {m} row_mask:0xf bank_mask:0xf"]
        r += [f"v_permlane16_swap_b32 v{TT}, v{TT+1}", f"v_add_f32 v{TT}, v{TT}, v{TT+1}", f"v_mov_b32 v{TT+1}, v{TT}",
              f"v_permlane32_swap_b32 v{TT}, v{TT+1}", f"v_add_f32 v{TT}, v{TT}, v{TT+1}"] + post
        return r + [f"v_readlane_b32 s{sa}, v{TT}, 0", f"v_readlane_b32 s{sb}, v{TT}, 16"]
    for j in range(1, 8):
        for k, F in enumerate((F0, F1)): g += [f"v_add_f32 v{TT+k}, v{F if j == 1 else TT+k}, v{F+j}"]
    g += reduce2(sMEAN0, sMEAN1, [f"v_mul_f32 v{TT}, {fbits(1/512)}, v{TT}"])
    for j in range(8):
        for F, sm in ((F0, sMEAN0), (F1, sMEAN1)): g += [f"v_subrev_f32 v{F+j}, s{sm}, v{F+j}"]
    for j in range(8):
        for k, F in enumerate((F0, F1)): g += [f"v_mul_f32 v{TT+k}, v{F}, v{F}" if j == 0 else f"v_fmac_f32 v{TT+k}, v{F+j}, v{F+j}"]
    g += reduce2(sRS0, sRS1, [f"v_mov_b32 v{TT+1}, {fbits(EPS)}", f"v_fmac_f32 v{TT+1}, {fbits(1/512)}, v{TT}", f"v_rsq_f32 v{TT}, v{TT+1}"])
    for j in range(8):
        for F, rs in ((F0, sRS0), (F1, sRS1)): g += [f"v_mul_f32 v{F+j}, s{rs}, v{F+j}"]
    assert xe < 200
    spread(slots, g, max(xe + 60, 200), 360)
    ld = f"buffer_load_dword v{MR}, v{vL4}, s[{sDBG}:{sDBG+3}], 0 offen sc1"
    vq([VM(ld, "poll1")], 226)
    e = 0
    if pfa and "pfpre" not in OPT:
        for k, g in enumerate(pfa): slots[2*k + 1].alu.append(g)
        e = 2*len(pfa) + 2
    if not (ilv and NPRE >= 2): e = vq(c_dma(2), e); e = vq(w_dma(2), e)
    e = vq(c_dma(3), e); e = vq(w_dma(3), max(e, bar[1]))
    for i in range(4, 8):
        e = vq(pre([W(lg=[("cr", i-3)])], c_dma(i)), max(e, cend[i-3] + 8))
        assert e < (i-1)*64 - 10, (i, e)
        if i < 7: e = vq(w_dma(i), max(e, bar[i-2]))
    before_bar(5, check(ld, f"v_cmp_gt_u32 vcc, 4, v{MR}", sSPIN, "poll1"))
    sq([f"s_lshl_b32 s{sMF}, s{sW}, 10", f"s_add_u32 s{sMF}, s{sMF}, {WS_MODP}"], bar[5] - 8, bar[5] - 4)
    e = vq([[VM(f"buffer_load_dwordx4 {vr(PP+4*n,4)}, v{vL16}, {WS}, s{sMF} offen sc1", "pp"), f"s_add_u32 s{sMF}, s{sMF}, 12288"] for n in range(4)], bar[5] + 1)
    g = [[VM(f"buffer_load_dword v{MF+n}, v{vL4}, {WS}, s{sMF} offen sc1", "mf"), f"s_add_u32 s{sMF}, s{sMF}, 12288"] for n in range(4)]
    e = vq(pre([f"s_lshl_b32 s{sMF}, s{sC}, 10", f"s_lshl_b32 s{sSPIN}, s{sW}, 8", f"s_add_u32 s{sMF}, s{sMF}, s{sSPIN}",
                f"s_mul_i32 s{sSPIN}, s{sJ}, 12288", f"s_add_u32 s{sSPIN}, s{sSPIN}, s{sMF}", f"s_add_u32 s{sSPIN}, s{sSPIN}, {WS_MODF}",
                f"s_add_u32 s{sMF}, s{sMF}, {WS_MODP}", f"s_cmp_lt_u32 s{sC}, 12",
                f"s_cselect_b32 s{sMF}, s{sMF}, {OOB:#x}", f"s_cselect_b32 s{sSPIN}, s{sSPIN}, {OOB:#x}"], g), e)
    assert e < 372
    e = vq(w_dma(7), max(e, bar[5])); assert e < bar[7] - 60
    if PF and "nopv" not in OPT: e = vq(pre([W(lg=[("cr", 5)])], pf_w(sWV, vPW, 16384 + 6144, 0, sX, sX+1)), max(e, cend[5] + 8))
    e = vq(w_dma(8), max(e, bar[6]))
    if PF and "pq1" in OPT: e = vq(pf_w(sWQ, vPW, 16384 + 6144, 0, sX, sX+1), e + 16); assert e < bar[7]
    e = vq(w_dma(9), max(e, bar[7]))
    if PF and "pq1" not in OPT:
        sq([f"v_mov_b32 v{vT+12}, v{vPW}"], 400, 401); e = vq(pf_w(sWQ, vT+12, 16384 + 6144, 0, sX, sX+1), max(e, 470)); assert e < bar[8]
    e = e; e = vq(w_dma(10), max(e, bar[8] + 14))
    e = vq(w_dma(12), e + 8); e = vq(w_dma(11), max(e, bar[9] + 6)); e = vq(w_dma(13), e + 8); e = vq(w_dma(14), e + 12); e = vq(w_dma(15), e + 12)
    assert e < 690
    g = [[W(vm="pp"), f"v_add_f32 v{PP}, v{PP}, v{PP+4}"]] + [f"v_add_f32 v{PP+j}, v{PP+j}, v{PP+4+j}" for j in range(1, 4)]
    g += [f"v_add_f32 v{PP+8+j}, v{PP+8+j}, v{PP+12+j}" for j in range(4)] + [f"v_add_f32 v{PP+j}, v{PP+j}, v{PP+8+j}" for j in range(4)]
    g += rnd(PP, PP+1, PP+4) + rnd(PP+2, PP+3, PP+5) + [f"v_add_f32 v{PP+j}, s{sADD}, v{PP+j}" for j in range(4)]
    g += rnd(PP, PP+1, PP+4) + rnd(PP+2, PP+3, PP+5) + [f"v_mul_f32 v{PP+j}, {fbits(CSCALE)}, v{PP+j}" for j in range(4)]
    g += [f"s_lshl_b32 s{sMF}, s{sW}, 10", f"s_add_u32 s{sMF}, s{sMF}, {MODV}", f"v_add_u32 v{PP+4}, s{sMF}, v{vL16}", f"v_lshlrev_b32 v{TT}, 5, v0", f"v_add_u32 v{TT}, {MODV}, v{TT}"]
    g += [[W(vm="mf"), f"v_add_f32 v{MF}, v{MF}, v{MF+1}"], f"v_add_f32 v{MF+2}, v{MF+2}, v{MF+3}", f"v_add_f32 v{MF}, v{MF}, v{MF+2}",
          f"v_cvt_pk_bf16_f32 v{MF}, v{MF}, v{MF}", f"v_lshlrev_b32 v{vT+11}, 16, v{MF}"]
    spread(slots, g, 372, 424)
    lq([LG(f"ds_write_b128 v{PP+4}, {vr(PP,4)}", "mv")], 425)
    assert bar[7] > 427
    before_bar(7, [W(lg="mv")])
    put([LG(f"ds_read_b128 {vr(r,4)}, v{TT} offset:{off}", "ab") for r, off in ((BV, 0), (BV+4, 16), (AV, 2048), (AV+4, 2064))], bar[7] + 1, 2)
    g = []
    for j in range(8):
        for F in (F0, F1): g += [f"v_fma_f32 v{F+j}, v{F+j}, v{AV+j}, v{BV+j}"]
    g[0] = [W(lg="ab"), g[0]]
    for j in range(4):
        for F, xr in ((F0, XR), (F1, XR+4)): g += [f"v_cvt_pk_bf16_f32 v{xr+j}, v{F+2*j}, v{F+2*j+1}"]
    HA, HG, HD = vT+2, vT+3, vT+12
    g += [f"s_lshr_b32 s{sMF}, s{sW}, 1", f"s_mul_i32 s{sMF}, s{sMF}, {CW - 4160}", f"s_mul_i32 s{sADD}, s{sW}, 2080", f"s_add_u32 s{sMF}, s{sMF}, s{sADD}",
          f"s_add_u32 s{sMF}, s{sMF}, {HSTA}", f"v_add_u32 v{TT}, s{sMF}, v{vL16}"]
    g += [x.t for x in flat([f"""
    v_and_b32 v{HG}, 7, v0
    v_lshrrev_b32 v{TT+2}, 3, v0
    v_mul_u32_u24 v{HA}, 1040, v{HG}
    v_lshrrev_b32 v{TT+3}, 2, v{HG}
    v_mul_u32_u24 v{TT+3}, {CW - 4160}, v{TT+3}
    v_add_u32 v{HA}, v{HA}, v{TT+3}
    v_lshl_add_u32 v{HA}, v{TT+2}, 4, v{HA}
    s_lshl_b32 s{sMF}, s{sW}, 8
    s_add_u32 s{sMF}, s{sMF}, {HSTA}
    v_add_u32 v{HA}, s{sMF}, v{HA}
    v_lshlrev_b32 v{HG}, 4, v{HG}
    v_and_b32 v{TT+3}, 3, v{TT+2}
    v_lshl_add_u32 v{HG}, v{TT+3}, 8, v{HG}
    v_lshrrev_b32 v{TT+2}, 2, v{TT+2}
    v_lshl_add_u32 v{HG}, v{TT+2}, 10, v{HG}
    s_and_b32 s{sMF}, s{sHST}, 1
    s_lshr_b32 s{sHST}, s{sHST}, 1
    s_lshl_b32 s{sHST}, s{sHST}, 14
    s_lshl_b32 s{sMF}, s{sMF}, 7
    s_add_u32 s{sHST}, s{sHST}, s{sMF}
    s_lshl_b32 s{sMF}, s{sW}, 12
    s_add_u32 s{sHST}, s{sHST}, s{sMF}
    s_add_u32 s{sHST}, s{sHST}, {WS_H}
    """])]
    spread(slots, g, bar[7] + 12, 488)
    put([LG(f"ds_write_b128 v{TT}, {vr(XR+4*k,4)} offset:{1040*k}", "hw") for k in range(2)], 489, 2)
    assert bar[8] > 491
    before_bar(8, [W(lg="hw")])
    put([LG(f"ds_read_b128 {vr(XR+56+4*k,4)}, v{HA} offset:{128*k}", "hr") for k in range(2)], bar[8] + 1, 1)
    e = vq([VM(f"buffer_store_dword v{vT+11}, v{vL4}, {WS}, s{sSPIN} offen sc1", "hst")] +
           [[W(lg="hr"), VM(f"buffer_store_dwordx4 {vr(XR+56+4*k,4)}, v{HG}, {WS}, s{sHST} offen offset:{2048*k} sc1", "hst")] for k in range(2)], bar[8] + 1)
    assert e < 524
    HB_ = int(OV("hb", 10))
    before_bar(HB_, [W(vm="hst")])
    sq(flag_off(sMF, 0, True), bar[HB_] - 12, bar[HB_] - 11)
    vq([publish(vT+2, sMF)], bar[HB_] + 1)
    def pack(dst, qa, qb):
        return [f"v_cvt_pk_bf16_f32 v{dst}, v{qa}, v{qa+1}", f"v_cvt_pk_bf16_f32 v{dst+1}, v{qa+2}, v{qa+3}",
                f"v_cvt_pk_bf16_f32 v{dst+2}, v{qb}, v{qb+1}", f"v_cvt_pk_bf16_f32 v{dst+3}, v{qb+2}, v{qb+3}"]
    def store(src, sreg, off, tag):
        return [f"s_add_u32 s{sT0}, s{sreg}, {off & ~4095}", VM(f"buffer_store_dwordx4 {vr(src,4)}, v{vL16}, {WS}, s{sT0} offen offset:{off & 4095} sc1", tag)]
    def at23(e):
        while (e & 3) < 2: e += 1
        return e
    kl = [(s4, kt) for s4 in (2, 3, 0, 1) for kt in range(4)]
    for n, (s4, kt) in enumerate(kl):
        dst = accK({2: 4, 3: 6, 0: 5, 1: 7}[s4], kt)
        b = 514 + n*(22 if n < 2 else 12) + (20 if n >= 2 else 0)
        put(pack(dst, accK(2*s4, kt), accK(2*s4+1, kt)), b, 2, "alu")
        e = vq([store(dst, sKST, (kt >> 1)*8192 + ((kt & 1)*4 + s4)*1024, "kst")], 530 + int(OV("ksp", 21))*n)
        assert b + 6 < 530 + int(OV("ksp", 21))*n and b + 6 < 764 and e < 880
    sH = 32; sUS, sUL = sMF, sHST
    slots[815].alu += [I("s_barrier")]
    for q, b in ((16, 690), (17, bar[11] + 30), (18, bar[12]), (19, 815)): e = vq(w_dma(q), b + 1)
    sq(flag_off(sSPIN, 0, False) + [f"v_and_b32 v{vT+2}, 31, v0", f"v_lshlrev_b32 v{vT+2}, 2, v{vT+2}"], 780, 800)
    ld = f"buffer_load_dword v{vT+3}, v{vT+2}, {WS}, s{sSPIN} offen sc1"
    vq([VM(ld, "poll2")], max(e, 836))
    sq([f"""
    s_lshl_b32 s{sUS}, s{sJ}, 2
    s_sub_u32 s{sUL}, 60, s{sUS}
    s_add_u32 s{sUS}, s{sUS}, s{sW}
    s_add_u32 s{sUL}, s{sUL}, s{sW}
    s_lshl_b32 s{sH}, s{sUL}, 15
    s_add_u32 s{sH}, s{sH}, {WS_H}
    s_add_u32 s{sH+1}, s{sH}, 16384
    s_lshl_b32 s{sH+2}, s{sUS}, 15
    s_add_u32 s{sH+2}, s{sH+2}, {WS_H}
    s_add_u32 s{sH+3}, s{sH+2}, 16384
    """], 850, 876)
    slots[883].alu += check(ld, f"v_cmp_ne_u32 vcc, 1, v{vT+3}", sADD, "poll2") + [I("s_barrier")]
    def h_ld(s):
        g = []
        for qi in range(4):
            x = [VM(f"buffer_load_dwordx4 {Hf(s, qi)}, v{vL16}, {WS}, s{sH+qi} offen offset:{(s&3)*1024} sc1", ("h", s))]
            if (s & 3) == 3: x.append(f"s_add_u32 s{sH+qi}, s{sH+qi}, 4096")
            g.append(x)
        return g
    for n in range(8):
        t, uu = n >> 1, n & 1; qa = X + (t*4+2*uu)*4
        put(pack(qa, qa, qa+4), 780 + 10*n, 2, "alu")
        e = vq([store(qa, sVST, uu*8192 + t*1024, "vst")], int(OV("va0", 872)) + int(OV("vap", 19))*n)
        assert e < 1020
    e = vq(h_ld(0) + h_ld(1) + h_ld(2) + h_ld(3), 884)
    assert e < 990
    for n in range(8):
        t, uu = n >> 1, n & 1; qa = ACC + (t*4+2*uu)*4
        put(pack(WF + 4*n, qa, qa+4), 1024 + 3*n, 1, "alu") if n < 4 else put(pack(WF + 4*n, qa, qa+4), 1024 + 12 + 3*(n-4), 1, "alu")
        e = vq([store(WF + 4*n, sVST, uu*8192 + (4+t)*1024, "vst")], int(OV("vs0", 1050)) + int(OV("vsp", 20))*n); vend = e
    def kvflag(dst, base, own):
        r = [f"s_lshl_b32 s{dst}, s{sHEAD}, 5", f"s_add_u32 s{dst}, s{dst}, {WS_FLAG + base}"]
        if own: r += [f"s_lshl_b32 s{sT0}, s{sJ}, 2", f"s_add_u32 s{dst}, s{dst}, s{sT0}"]
        return r + [f"s_cmp_eq_u32 s{sW}, 0", f"s_cselect_b32 s{dst}, s{dst}, {OOB:#x}"]
    before_bar(16, [W(vm="kst")])
    sq(kvflag(sSPIN, KF, True), bar[16] - 12, bar[16] - 11)
    vq([publish(vT+2, sSPIN)], bar[16] + 1)
    for p in (0, 4, 8, 12): slots[p*64].alu += st()
    for p in range(15): slots[p*64].alu += st("A")
    for p in range(9, 24): slots[p*64].alu += st("B")
    B0 = 1024
    slots[B0].alu += st()
    sK, sCT = 12, 36; sMK = [24, 26, 32, 34]
    sKO, sCNT, sODW, sFL = 78, 86, 87, 90
    vKB, vVB, ONES, LS, PB, CB, TMP = 2, 3, 12, 16, 32, 192, 224
    sq([f"""
    s_lshl_b32 s{sKO}, s{sHEAD}, 20
    s_add_u32 s{sK}, s{sWS}, s{sKO}
    s_addc_u32 s{sK+1}, s{sWS+1}, 0
    s_sub_u32 s{sK+2}, 16, s{sJ}
    s_lshl_b32 s{sK+2}, s{sK+2}, 16
    s_mov_b32 s{sK+3}, 0x20000
    s_add_u32 s{sKO}, s{sM0K}, {4*32768}
    """], bar[20] + 1, bar[20] + 12)
    vF = LS
    sq(kvflag(sFL, KF, False) + [f"v_and_b32 v{vF}, 7, v0", f"v_lshlrev_b32 v{vF}, 2, v{vF}"], bar[19] - 20, bar[19] - 4)
    ld = f"buffer_load_dword v{vF+1}, v{vF}, {WS}, s{sFL} offen sc1"
    e = vq([VM(ld, "poll3")], bar[19]); assert e < bar[20] - 20
    before_bar(20, check(ld, f"v_cmp_ne_u32 vcc, 1, v{vF+1}", sCNT, "poll3"))
    VB = int(OV("vb", 21)); assert vend < bar[VB] - 20 and vend < bar[20] + 100
    before_bar(VB, [W(vm="vst")])
    sq(kvflag(sFL, VF, True), bar[VB] - 12, bar[VB] - 11)
    e = vq([publish(vF+2, sFL)], bar[VB] + 1)
    sq(kvflag(sFL, VF, False), e + 4, e + 12)
    vq([VM(ld, "poll4")], bar[23] + 1)
    LEAD = int(OV("lead", 120)); e = B0
    for s in range(4, 16, 2):
        q = 16 + s//2
        if q >= 20: e = vq(w_dma(q), max(e, bar[17] + 1, bar[q] - LEAD)); assert e < bar[q] - 50
        e = vq(h_ld(s) + h_ld(s+1), max(e, B0 + (s-6)*32, B0 + s*32 - LEAD)); assert e < B0 + s*32 - 50, (s, e)
    hend = e
    vcheck = check(ld, f"v_cmp_ne_u32 vcc, 1, v{vF+1}", sCNT, "poll4")
    def kv_dma(which, tag, pair=None):
        if pair is None: so = sKO; grp = [f"s_and_b32 m0, s{sKO}, 0x1ffff"]
        else: so = sT1; grp = [f"s_add_u32 s{sT1}, s{sM0K}, {pair*32768 + (which == 'V')*16384}", f"s_mov_b32 m0, s{sT1}"]
        g = [grp]
        for n in range(4): g.append([VM(f"buffer_load_dwordx4 v{vL16}, s[{sK}:{sK+3}], s{so} offen offset:{n*1024} {OV('kvf', 'sc1').replace('none', '').replace('+', ' ')} lds", tag)])
        if pair is None: return SEQ(g + [[f"s_sub_u32 s{sKO}, s{sKO}, 16384" if which == "K" else f"s_add_u32 s{sKO}, s{sKO}, 49152"]])
        return SEQ([g[0] + g[1]] + g[2:])
    e = vq(kv_dma("K", ("K", 0), 0) + kv_dma("K", ("K", 1), 1), max(hend, bar[21] + 1))
    sS1, sD1, sD3, sS2, sX0, sX1, sW2 = 80, 7, 81, 91, 85, 83, 16; sD2 = [20, 21, 22, 23]
    vU1, vU2, vUT = TMP+12, TMP+16, TMP+20
    g = srd(sW2, 0, 1792*1024) + [f"""
    s_lshl_b32 s{sX0}, s2, 2
    s_add_u32 s{sX0}, s{sX0}, s{sW}
    s_and_b32 s{sX0}, s{sX0}, 511
    s_lshr_b32 s{sS1}, s{sX0}, 3
    s_and_b32 s{sX1}, s{sX0}, 7
    s_lshl_b32 s{sD1}, s{sX1}, 7
    s_add_u32 s{sD1}, s{sD1}, s{sS1}
    s_lshl_b32 s{sD1}, s{sD1}, 12
    s_add_u32 s{sD1}, s{sD1}, {WS_WOF}
    s_mul_i32 s{sD3}, s{sX1}, 56
    s_add_u32 s{sD3}, s{sD3}, s{sS1}
    s_lshl_b32 s{sD3}, s{sD3}, 12
    s_add_u32 s{sD3}, s{sD3}, {WS_W2F}
    s_lshl_b32 s{sS1}, s{sS1}, 15
    s_lshl_b32 s{sX1}, s{sX1}, 7
    s_add_u32 s{sS1}, s{sS1}, s{sX1}
    s_and_b32 s{sX1}, s{sX0}, 15
    s_mul_i32 s{sS2}, s{sX1}, {32*3584}
    s_mul_i32 s{sX1}, s{sX1}, 7168
    s_add_u32 s{sX1}, s{sX1}, {WS_W1F}
    s_cmp_lt_u32 s{sX0}, 448
    s_cselect_b32 s{sX1}, s{sX1}, {OOB:#x}
    s_cselect_b32 s{sD3}, s{sD3}, {OOB:#x}
    s_cselect_b32 s{sU2+2}, s{sU2+2}, 0
    s_cmp_ge_u32 s2, 128
    s_cselect_b32 s{sWO+2}, s{sWO+2}, 0
    s_lshr_b32 s{sX0}, s{sX0}, 4
    s_lshl_b32 s{sD2[0]}, s{sX0}, 7
    s_add_u32 s{sS2}, s{sS2}, s{sD2[0]}
    s_lshl_b32 s{sX0}, s{sX0}, 2
    """] + [f"""
    s_mul_i32 s{sODW}, s{sX0}, 9363
    s_lshr_b32 s{sODW}, s{sODW}, 16
    s_mul_i32 s{sODW}, s{sODW}, {114688-7168}
    s_lshl_b32 s{sD2[t]}, s{sX0}, 10
    s_add_u32 s{sD2[t]}, s{sD2[t]}, s{sODW}
    s_add_u32 s{sD2[t]}, s{sD2[t]}, s{sX1}
    s_add_u32 s{sX0}, s{sX0}, 1
    """ for t in range(4)] + [f"""
    v_lshrrev_b32 v{vUT}, 3, v0
    v_and_b32 v{vUT+1}, 7, v0
    v_and_b32 v{vUT+2}, 6, v{vUT}
    v_xor_b32 v{vUT+2}, v{vUT+2}, v{vUT+1}
    v_lshlrev_b32 v{vUT+2}, 4, v{vUT+2}
    v_lshl_add_u32 v{vU1}, v{vUT}, 10, v{vUT+2}
    v_add_u32 v{vU1+1}, 7168, v{vU1}
    v_add_u32 v{vU1+2}, {2*7168}, v{vU1}
    v_add_u32 v{vU1+3}, {3*7168}, v{vU1}
    v_mul_u32_u24 v{vU2}, 3584, v{vUT}
    v_add_u32 v{vU2}, v{vU2}, v{vUT+2}
    v_add_u32 v{vU2+1}, {8*3584-1024}, v{vU2}
    v_add_u32 v{vU2+2}, {2*(8*3584-1024)}, v{vU2}
    v_add_u32 v{vU2+3}, {3*(8*3584-1024)}, v{vU2}
    v_lshrrev_b32 v{vUT+1}, 4, v0
    v_bfe_u32 v{vUT+2}, v0, 2, 2
    v_lshl_add_u32 v{vUT+1}, v{vUT+1}, 2, v{vUT+2}
    v_bfe_u32 v{vUT+2}, v{vUT+1}, 1, 2
    v_lshlrev_b32 v{vUT+1}, 7, v{vUT+1}
    v_lshl_add_u32 v{vUT+1}, v{vUT+2}, 5, v{vUT+1}
    v_and_b32 v{vUT+2}, 3, v0
    v_lshl_add_u32 v{vUT+1}, v{vUT+2}, 3, v{vUT+1}
    s_lshl_b32 s{sX0}, s{sW}, 13
    s_add_u32 s{sX0}, s{sX0}, 131072
    v_add_u32 v{vUT}, s{sX0}, v{vUT+1}
    v_xor_b32 v{vUT+1}, 32, v{vUT}
    v_xor_b32 v{vUT+2}, 64, v{vUT}
    v_xor_b32 v{vUT+3}, 0x60, v{vUT}
    """]
    sq(g[:-1], B0 + 250, B0 + 380); sq(g[-1:], B0 + 388, B0 + 432)
    def side_dma(rnd_):
        r = []
        for u, (vo, sd, so) in enumerate((((vU1, sWO, f"s{sS1}, 0"), (vU1, sWO, f"s{sS1}, {64*32768}")), ((vU1, sW2, f"s{sS1}, 0"), (vU2, sU2, f"s{sS2}, 0")))[rnd_]):
            d = [[VM(f"buffer_load_dwordx4 v{vo+n}, s[{sd}:{sd+3}], s{sT0} offen offset:{n*1024}{NT1} lds", "ud")] for n in range(4)]
            d[0] = [f"s_add_u32 m0, s{sX0}, {u*4096}", f"s_add_u32 s{sT0}, {so}"] + d[0]
            r += SEQ(d)
        return r
    def side_reads(): return [LG(f"ds_read_b64_tr_b16 {ar(192 + u*16 + t*4 + 2*hh, 2)}, v{vUT+t} offset:{u*4096 + hh*2048}", "ur") for u in range(2) for t in range(4) for hh in range(2)]
    def side_stores(rnd_):
        st_ = lambda q, so, off: [VM(f"buffer_store_dwordx4 {ar(192 + 4*q, 4)}, v{vL16}, {WS}, s{so} offen offset:{off} sc1")]
        if rnd_ == 1: return [st_(t, sD3, t*1024) for t in range(4)] + [st_(4+t, sD2[t], 0) for t in range(4)]
        r = [st_(t & 3 | (t & 4), sD1, (t & 3)*1024) for t in range(8)]
        r[3] = r[3] + [f"s_add_u32 s{sD1}, s{sD1}, {64*4096}"]
        return r
    e = vq(side_dma(0), bar[23] + 8); assert e < B0 + 510
    init = [f"v_accvgpr_write_b32 a{r}, 0" for r in range(128)] + [f"v_mov_b32 v{ONES+r}, 0x3f803f80" for r in range(4)]
    spread(slots, init, B0 + 40, bar[21] - 8)
    init = [x.t for x in flat([f"""
    s_lshl_b32 s{sODW}, s{sHEAD}, 12
    s_add_u32 s{sODW}, s{sODW}, {WS_CTX}
    s_lshl_b32 s{sCT}, s{sUL}, 18
    s_add_u32 s{sCT}, s{sCT}, s{sODW}
    s_add_u32 s{sCT+1}, s{sCT}, 131072
    s_lshl_b32 s{sCT+2}, s{sUS}, 18
    s_add_u32 s{sCT+2}, s{sCT+2}, s{sODW}
    s_add_u32 s{sCT+3}, s{sCT+2}, 131072
    v_lshrrev_b32 v{PB+4}, 4, v0
    v_lshlrev_b32 v{PB+4}, 2, v{PB+4}
    v_and_b32 v{PB+5}, 15, v0
    v_sub_u32 v{PB+5}, v{PB+5}, v{PB+4}
    v_cmp_le_i32 s[{sMK[0]}:{sMK[0]+1}], 0, v{PB+5}
    v_cmp_le_i32 s[{sMK[1]}:{sMK[1]+1}], 1, v{PB+5}
    v_cmp_le_i32 s[{sMK[2]}:{sMK[2]+1}], 2, v{PB+5}
    v_cmp_le_i32 s[{sMK[3]}:{sMK[3]+1}], 3, v{PB+5}
    v_mov_b32 v{vKB}, v{vL16}
    v_mov_b32 v{vVB}, v{vL16}
    """])] + [f"v_mov_b32 v{LS+r}, 0" for r in range(2, 16)]
    spread(slots, init, bar[23] - 30, bar[23] + 10)
    spread(slots, [f"v_mov_b32 v{CB+r}, 0" for r in range(32)] + [f"v_mov_b32 v{TMP+31}, 0xff800000"], B0 + 330, B0 + 400)
    def qpack(s4): return sum(([f"v_cvt_pk_bf16_f32 v{acc(2*s4, qi)+k}, v{acc(2*s4 + (k >> 1), qi) + 2*(k & 1)}, v{acc(2*s4 + (k >> 1), qi) + 2*(k & 1) + 1}"
                                for k in range(4)] for qi in range(4)), [])
    for s4 in range(3): spread(slots, qpack(s4), B0 + 448 + 16*s4 + 17, B0 + 448 + 16*s4 + 31 - (s4 == 2))
    if "vmap" in OPT: print("".join(("#" if k in vused else ".") + ("|" if k % 16 == 15 else "") for k in range(len(slots)//4)))
    if "nopack" not in OPT: pack_slots(slots)
    o += emit_slots(slots) + [f"Latt_{N}:"]
    o += st()
    from fatt import attention
    from ftail import tail
    env.update(locals())
    o = resolve_waits(flat(o + attention(env, "prologue")))
    o += attention(env, "main")
    if upto >= 3: o += tail(env, upto)
    return o + finish()
```

```python
from common import *
from flay import *

def fused(name, ts=False, opt="", upto=9):
    N = name
    NT = " nt" if "nt" in opt.split() else ""
    NT1 = " nt" if "nt1" in opt.split() or NT else ""
    NTT = " nt" if "ntt" in opt.split() or NT else ""
    sW, sHEAD, sJ, sC = 3, 4, 5, 6
    sWS = 8; WS = "s[8:11]"
    sT0, sT1 = 76, 77
    pX, pB1, pB2, pOUT = 92, 94, 96, 98
    vL16 = 1
    nstamp = [0]; env = {}
    SM = "A" if "stA" in opt else ("B" if "stB" in opt else ("P" if "stP" in opt else ("T" if "stT" in opt else "")))
    def st(kind=""):
        if not ts or nstamp[0] >= 15 or kind != SM: return []
        nstamp[0] += 1
        return [stamp(nstamp[0] - 1)]
    def finish():
        r = []
        if ts:
            r += ["s_waitcnt vmcnt(0)", stamp(15), "s_waitcnt lgkmcnt(0)", "v_mov_b32 v2, s100", "v_mov_b32 v3, s74",
                  "s_lshl_b32 s76, s2, 2", f"s_add_u32 s76, s76, s{sW}", "s_lshl_b32 s77, s76, 3", f"s_add_u32 s77, s77, {WS_TS}",
                  f"buffer_store_dwordx2 v[2:3], off, {WS}, s77", "s_lshl_b32 s77, s76, 6", f"s_add_u32 s77, s77, {WS_TS + 65536}"]
            for q in range(0, 16, 4):
                r += [f"v_mov_b32 v{4+j}, s{44+2*(q+j)}" for j in range(4)]
                r += [f"buffer_store_dwordx4 v[4:7], off, {WS}, s77 offset:{q*4}", "s_nop 1"]
        return flat(r + [f"Lend_{N}:", "s_endpgm"]) + env["fallback"] + flat([f"Lcode_end_{N}:", "s_endpgm"])
    def rnd(r0, r1, t): return [f"v_cvt_pk_bf16_f32 v{t}, v{r0}, v{r1}", f"v_lshlrev_b32 v{r0}, 16, v{t}", f"v_and_b32 v{r1}, 0xffff0000, v{t}"]
    HY = "hy" in opt.split()
    XL = "noxl" not in opt.split() and not HY
    def flag_off(dst, kind, own, line=None):
        if (XL and kind >= 2) or (HY and kind == 3):
            r = [f"s_and_b32 s{dst}, s2, 7", f"s_lshl_b32 s{dst}, s{dst}, 7", f"s_add_u32 s{dst}, s{dst}, {WS_FLAG + 1024 + kind*1024}"]
            if own: r += [f"s_lshr_b32 s{sT0}, s2, 3", f"s_lshl_b32 s{sT0}, s{sT0}, 2", f"s_add_u32 s{dst}, s{dst}, s{sT0}"]
            return r + [f"s_cmp_eq_u32 s{sW}, 0", f"s_cselect_b32 s{dst}, s{dst}, {OOB:#x}"]
        r = [f"s_lshl_b32 s{dst}, s{sJ if line is None else line}, 7", f"s_add_u32 s{dst}, s{dst}, {WS_FLAG + 1024 + kind*1024}"]
        if own: r += [f"s_lshl_b32 s{sT0}, s{sC}, 2", f"s_add_u32 s{dst}, s{dst}, s{sT0}"]
        return r + [f"s_cmp_eq_u32 s{sW}, 0", f"s_cselect_b32 s{dst}, s{dst}, {OOB:#x}"]
    def publish(vt, soff):
        return [f"v_min_u32 v{vt}, 1, v0", f"v_lshlrev_b32 v{vt}, 27, v{vt}", f"v_mov_b32 v{vt+1}, 1",
                VM(f"buffer_store_dword v{vt+1}, v{vt}, {WS}, s{soff} offen sc1", "flag")]
    nct = [0]
    def code_part(a, b, lines, sd, vt, emit=VM):
        nct[0] += 1; l = f"Lct{nct[0]}_{N}"
        return [f"s_getpc_b64 s[{sd}:{sd+1}]", f"{l}:", f"s_add_u32 s{sd}, s{sd}, {a}-{l}", f"s_addc_u32 s{sd+1}, s{sd+1}, 0", f"s_mov_b32 s{sd+2}, {b}-{a}",
                f"s_mov_b32 s{sd+3}, 0x20000", f"s_cmp_eq_u32 s{sW}, 0", f"s_cselect_b32 s{sd+2}, s{sd+2}, 0", f"s_lshr_b32 s{sT0}, s2, 3", f"s_mul_i32 s{sT0}, s{sT0}, {lines*128}",
                f"v_min_u32 v{vt}, {lines - 1}, v0", f"v_lshlrev_b32 v{vt}, 7, v{vt}", emit(f"buffer_load_dword v{vt+1}, v{vt}, s[{sd}:{sd+3}], s{sT0} offen")]
    nsp = [0]
    def check(load, test, scnt, tag, mask=None, every=False):
        nsp[0] += 1; k = f"{N}_{nsp[0]}"
        test = [test, "s_cmp_lg_u64 vcc, 0" if mask is None else f"s_and_b64 vcc, vcc, s[{mask}:{mask+1}]"]
        return flat([W(vm=tag), [] if every else [f"s_cmp_lg_u32 s{sW}, 0", f"s_cbranch_scc1 Lok{k}"], test, f"s_cbranch_scc0 Lok{k}", f"s_mov_b32 s{scnt}, 0x80000",
                     f"Lsp{k}:", f"s_sub_u32 s{scnt}, s{scnt}, 1", f"s_cbranch_scc1 Lok{k}", "s_sleep 1", load, It("s_waitcnt vmcnt(0)", k="cond"), test,
                     f"s_cbranch_scc1 Lsp{k}", f"Lok{k}:"])

    sCKV, sWK, sWV, sMOD, sCV, sX, sDBG, sCODE = 12, 16, 20, 24, 28, 32, 36, 40
    sWQ, sWO, sU2 = sMOD, sCV, sCODE
    sCOFF, sWKOFF, sWVOFF, sKST, sVST, sM0C, sM0K, sMST, sATO, sADD, sMF, sHST, sSPIN, sRS0 = range(78, 92)
    sRS1 = 7; sMEAN0, sMEAN1 = sMST, sATO
    vWD, vTR, vCD, vCR, vT = 2, 6, 10, 14, 16
    WF, X, ACC = 32, 64, 128
    RING, CBUF, CW = 0, 65536, 24576
    MODRED, MODV, HSTA = 49152, CBUF + 16384, CBUF + CW + 16384
    o = ["s_cmp_ge_u32 s2, 256", f"s_cbranch_scc1 Lend_{N}"] + load_args()
    if ts: o += ["s_memrealtime s[100:101]" if not CYC else "s_memtime s[100:101]"]
    o += [f"s_getpc_b64 s[{sCODE}:{sCODE+1}]", f"Lpc_{N}:", f"s_mov_b32 s{sCODE+2}, Lcode_end_{N}-Lpc_{N}", f"s_mov_b32 s{sCODE+3}, 0x20000",
          f"v_lshlrev_b32 v{vT}, 7, v0"]
    CPM = next((x[4:] for x in opt.split() if x.startswith("cpm=")), "part")
    if CPM == "all": o += [VM(f"buffer_load_dword v{vT+1}, v{vT}, s[{sCODE}:{sCODE+3}], 0 offen", "code")]
    elif CPM == "part":
        o += [f"s_lshr_b32 s{sT0}, s2, 3", f"s_mul_i32 s{sT0}, s{sT0}, 3072", f"v_cmp_gt_u32 vcc, 24, v0", f"v_mov_b32 v{vT+1}, {1 << 27}",
              f"v_cndmask_b32 v{vT}, v{vT+1}, v{vT}, vcc", VM(f"buffer_load_dword v{vT+1}, v{vT}, s[{sCODE}:{sCODE+3}], s{sT0} offen", "code")]
    o += [f"""
    v_lshrrev_b32 v{vT+2}, 6, v0
    v_and_b32 v0, 63, v0
    v_readfirstlane_b32 s{sW}, v{vT+2}
    v_lshlrev_b32 v{vL16}, 4, v0
    s_and_b32 s{sHEAD}, s2, 7
    s_lshl_b32 s{sHEAD}, s{sHEAD}, 2
    s_bfe_u32 s{sT0}, s2, 0x20003
    s_add_u32 s{sHEAD}, s{sHEAD}, s{sT0}
    s_lshr_b32 s{sJ}, s2, 5
    s_and_b32 s{sC}, s2, 31
    v_lshrrev_b32 v{vT+2}, 3, v0
    v_and_b32 v{vT+3}, 7, v0
    """]
    r8, c8 = vT+2, vT+3
    o += [f"""
    v_mul_u32_u24 v{vT+4}, 6144, v{r8}
    v_lshl_add_u32 v{vT+4}, v{c8}, 4, v{vT+4}
    v_lshlrev_b32 v{vT+5}, 1, v{r8}
    v_lshrrev_b32 v{vT+6}, 1, v{r8}
    v_xor_b32 v{vT+6}, v{vT+6}, v{c8}
    v_lshlrev_b32 v{vT+6}, 4, v{vT+6}
    v_lshl_add_u32 v{vCD}, v{r8}, 10, v{vT+6}
    v_xor_b32 v{vCD+1}, 64, v{vCD}
    v_add_u32 v{vCD+1}, {7*1024}, v{vCD+1}
    v_add_u32 v{vCD+2}, {14*1024}, v{vCD}
    v_add_u32 v{vCD+3}, {14*1024}, v{vCD+1}
    v_and_b32 v{vT+6}, 2, v{r8}
    v_xor_b32 v{vT+6}, v{vT+6}, v{c8}
    v_lshlrev_b32 v{vT+6}, 4, v{vT+6}
    v_lshl_add_u32 v{vWD}, v{r8}, 13, v{vT+6}
    v_xor_b32 v{vWD+1}, 64, v{vWD}
    v_add_u32 v{vWD+1}, {65536-1024}, v{vWD+1}
    v_add_u32 v{vWD+2}, {2*(65536-1024)}, v{vWD}
    v_add_u32 v{vWD+3}, {2*(65536-1024)}, v{vWD+1}
    s_and_b32 s{sT0}, s2, 3
    s_lshl_b32 s{sT0}, s{sT0}, 7
    s_lshl_b32 s{sT1}, s{sW}, 5
    s_add_u32 s{sMF}, s{sT0}, s{sT1}
    s_lshl_b32 s{sHST}, s{sMF}, 1
    s_mul_i32 s{sMF}, s{sMF}, 6144
    s_lshr_b32 s{sMST}, s2, 2
    s_lshl_b32 s{sMST}, s{sMST}, 7
    s_add_u32 s{sMF}, s{sMF}, s{sMST}
    s_lshl_b32 s{sCOFF}, s{sJ}, 18
    s_lshl_b32 s{sT0}, s{sW}, 16
    s_add_u32 s{sCOFF}, s{sCOFF}, s{sT0}
    s_mul_i32 s{sM0C}, s{sW}, {CW}
    s_add_u32 s{sM0C}, s{sM0C}, {CBUF}
    s_and_b32 s{sT0}, s{sW}, 1
    s_lshl_b32 s{sWKOFF}, s{sT0}, 18
    s_lshr_b32 s{sT1}, s{sW}, 1
    s_lshl_b32 s{sT1}, s{sT1}, 7
    s_add_u32 s{sWKOFF}, s{sWKOFF}, s{sT1}
    s_lshl_b32 s{sT1}, s{sHEAD}, 8
    s_add_u32 s{sWKOFF}, s{sWKOFF}, s{sT1}
    s_lshl_b32 s{sWVOFF}, s{sW}, 18
    s_add_u32 s{sWVOFF}, s{sWVOFF}, s{sT1}
    s_lshl_b32 s{sM0K}, s{sW}, 12
    s_waitcnt lgkmcnt(0)
    """]
    if SM == "P": o += ["s_memrealtime s[92:93]"]
    o += srd(sMOD, P("wmod"), 512*6144) + srd(sCV, P("c"), 1024) + ["s_cmp_lt_u32 s2, 192", f"s_cselect_b32 s{sMOD+2}, s{sMOD+2}, 0"]
    MW, MC, MA, MT = 64, 80, 84, 92
    for n in range(4): o += [VM(f"buffer_load_ushort v{MC+n}, v{vT+5}, s[{sCV}:{sCV+3}], s{sHST} offen offset:{16*n}", "modc")]
    for n in range(4):
        o += [VM(f"buffer_load_dwordx4 v[{MW+4*n}:{MW+4*n+3}], v{vT+4}, s[{sMOD}:{sMOD+3}], s{sMF} offen{NT1}", ("modw", n))]
        if n < 3: o += [f"s_add_u32 s{sMF}, s{sMF}, {8*6144}"]
    o += srd(sCKV, P("ckv"), 2*MB) + srd(sWK, P("wuk"), 4*MB)
    def c_dma(i):
        g = []
        for hh in range(2):
            grp = [f"s_add_u32 m0, s{sM0C}, {(i % 3)*8192 + hh*4096}", f"s_add_u32 s{sRS0}, s{sCOFF}, {i*128 + hh*32768}"]
            for n in range(4):
                grp.append(VM(f"buffer_load_dwordx4 v{vCD+n}, s[{sCKV}:{sCKV+3}], s{sRS0} offen offset:{n*1024}{' nt' if 'ntc' in opt.split() else ''} lds", ("c", i)))
                g.append(grp); grp = []
        return SEQ(g)
    def page(q): return RING + (q % 4) * 16384
    def w_dma(q):
        sTW = sRS1 if q <= 2 else sT1
        if q < 8: sd, off, m0 = sWK, f"s_add_u32 s{sTW}, s{sWKOFF}, {q*64*8192}", f"s{sM0K}, {page(q)}"
        elif q < 16:
            sd, off = sWV, f"s_add_u32 s{sTW}, s{sWVOFF}, {((q-8)&3)*128*8192 + ((q-8)>>2)*128}"
            m0 = f"s{sM0K}, {page(q)}" if q < 12 else f"s{sM0C}, {(q-12)*4096}"
        else: sd, off, m0 = sWQ, f"s_add_u32 s{sTW}, s{sWKOFF}, {(q-16)*64*8192}", f"s{sM0K}, {(q-16)*16384}"
        g = []; grp = [f"s_add_u32 m0, {m0}", off]
        for n in range(4):
            grp.append(VM(f"buffer_load_dwordx4 v{vWD+n}, s[{sd}:{sd+3}], s{sTW} offen offset:{n*1024}{' nt' if (q < 8 and 'ntk' in opt.split()) or (8 <= q < int(OV('ntv', 0))) else NT} lds", ("w", q)))
            g.append(grp); grp = []
        return SEQ(g)
    OPT = opt.split()
    def OV(k, d): return next((x.split("=")[1] for x in OPT if x.startswith(k + "=")), d)
    o += [c_dma(0), w_dma(0)] + (["s_memrealtime s[94:95]"] if SM == "P" else []) + srd(sWV, P("wuv"), 4*MB)
    OPT = opt.split()
    def OV(k, d): return next((x.split("=")[1] for x in OPT if x.startswith(k + "=")), d)
    vTD = vT+1
    vPC, vPW = 96, 97
    def pf_addr(vc, vw):
        return [f"v_lshrrev_b32 v{vw}, 4, v0", f"v_and_b32 v{vc}, 15, v0", f"v_lshlrev_b32 v{vc}, 4, v{vc}",
                f"v_lshl_add_u32 v{vw+1}, v{vw}, 13, v{vc}", f"v_lshl_add_u32 v{vc}, v{vw}, 10, v{vc}", f"v_mov_b32 v{vw}, v{vw+1}"]
    def pf_c(dummy):
        g = []; grp = [f"s_add_u32 m0, s{sM0C}, {dummy}", f"s_bfe_u32 s{sRS0}, s2, 0x20003", f"s_lshl_b32 s{sRS0}, s{sRS0}, 16", f"s_lshl_b32 s{sRS1}, s{sJ}, 18",
                       f"s_add_u32 s{sRS0}, s{sRS0}, s{sRS1}", f"s_lshl_b32 s{sRS1}, s{sW}, 14", f"s_add_u32 s{sRS0}, s{sRS0}, s{sRS1}"]
        for col in range(1, 4):
            for rg in range(4):
                grp += [f"s_add_u32 s{sRS1}, s{sRS0}, {rg*4096 + col*256}", VM(f"buffer_load_dwordx4 v{vPC}, s[{sCKV}:{sCKV+3}], s{sRS1} offen lds", "pf")]
                g.append(grp); grp = []
        return SEQ(g)
    def pf_w(sd, vw, dummy, first, sRS0=sRS0, sRS1=sRS1):
        g = []; grp = [f"s_add_u32 m0, s{sM0C}, {dummy}", f"s_lshr_b32 s{sRS0}, s{sW}, 1", f"s_lshl_b32 s{sRS0}, s{sRS0}, 3", f"s_add_u32 s{sRS0}, s{sRS0}, s{sJ}",
                       f"s_lshl_b32 s{sRS0}, s{sRS0}, 1", f"s_and_b32 s{sRS1}, s{sW}, 1", f"s_add_u32 s{sRS0}, s{sRS0}, s{sRS1}", f"s_lshl_b32 s{sRS0}, s{sRS0}, 15",
                       f"s_lshl_b32 s{sRS1}, s{sHEAD}, 8", f"s_add_u32 s{sRS0}, s{sRS0}, s{sRS1}"]
        for q in range(first, 8, 2):
            grp += [f"s_add_u32 s{sRS1}, s{sRS0}, {q*64*8192}", VM(f"buffer_load_dwordx4 v{vw}, s[{sd}:{sd+3}], s{sRS1} offen{NTT} lds", "pf")]
            g.append(grp); grp = []
        return SEQ(g)
    PF = "nopf" not in OPT
    o += pf_addr(vPC, vPW)
    pfa = (pf_w(sWK, vPW, 16384, 2) if "pfk" in OPT else []) + (pf_c(16384) if "pfc" in OPT else [])
    NPRE = int(OV("npre", 2))
    ilv = sum((c_dma(i) + w_dma(i) for i in range(1, NPRE + 1)), []) if "ilv" in OPT else []
    pro0 = len(o)
    o += ([] if ilv else [c_dma(1), w_dma(1)]) + ([pfa] if "pfpre" in OPT else []) + (["s_memrealtime s[96:97]"] if SM == "P" else []) + srd(sWS, P("ws"), WS_SIZE)
    KF, VF, SF = 0, 5120, 6144
    vZA, vZD = vT+14, vT+15
    o += [f"""
    v_lshlrev_b32 v{vZA}, 10, v0
    s_lshl_b32 s{sT0}, s{sJ}, 7
    s_lshl_b32 s{sT1}, s{sC}, 2
    s_add_u32 s{sT0}, s{sT0}, s{sT1}
    v_add_u32 v{vZA}, s{sT0}, v{vZA}
    s_lshl_b32 s{sT0}, s{sHEAD}, 5
    s_lshl_b32 s{sT1}, s{sJ}, 2
    s_add_u32 s{sT0}, s{sT0}, s{sT1}
    v_writelane_b32 v{vZA}, s{sT0}, 0
    s_add_u32 s{sT0}, s{sT0}, {VF}
    v_writelane_b32 v{vZA}, s{sT0}, 5
    s_lshl_b32 s{sT0}, s2, 2
    s_add_u32 s{sT0}, s{sT0}, {SF}
    v_writelane_b32 v{vZA}, s{sT0}, 6
    v_mov_b32 v{vZD}, {1 << 27}
    v_cmp_gt_u32 vcc, 7, v0
    v_cndmask_b32 v{vZA}, v{vZD}, v{vZA}, vcc
    v_mov_b32 v{vZD}, 0
    s_mov_b32 s{sSPIN}, {WS_FLAG}
    s_cmp_eq_u32 s{sW}, 0
    s_cselect_b32 s{sSPIN}, s{sSPIN}, {OOB:#x}
    """, VM(f"buffer_store_dword v{vZD}, v{vZA}, {WS}, s{sSPIN} offen sc1", "zero")]
    for i in (32768, 65536) if CPM == "all" else ():
        o += [f"s_mov_b32 s{sT0}, {i}", VM(f"buffer_load_dword v{vT+1}, v{vT}, s[{sCODE}:{sCODE+3}], s{sT0} offen", "code2")]
    o += srd(sX, P("x"), 2*MB) + srd(sDBG, P("dbg"), 256) + srd(sWQ, P("wq"), 4*MB) + srd(sWO, P("wo"), 4*MB)
    EARLY = "s_waitcnt lgkmcnt(0)\ns_mov_b32 s66, s92\ns_mov_b32 s68, s94\ns_mov_b32 s72, s96" if SM == "P" else ""
    PW2 = 100 if not ts else 74
    o += srd(sU2, P("w1"), 1792*1024) + [f"""
    s_mov_b64 s[{PW2}:{PW2+1}], s[{P('w2')}:{P('w2')+1}]
    {EARLY}
    s_mov_b64 s[{pX}:{pX+1}], s[{P('x')}:{P('x')+1}]
    s_mov_b64 s[{pB1}:{pB1+1}], s[{P('b1')}:{P('b1')+1}]
    s_mov_b64 s[{pB2}:{pB2+1}], s[{P('b2')}:{P('b2')+1}]
    s_mov_b64 s[{pOUT}:{pOUT+1}], s[{P('out')}:{P('out')+1}]
    v_lshrrev_b32 v{vT+6}, 4, v0
    v_bfe_u32 v{vT+7}, v0, 2, 2
    v_lshl_add_u32 v{vT+8}, v{vT+6}, 3, v{vT+7}
    v_lshlrev_b32 v{vT+8}, 7, v{vT+8}
    v_and_b32 v{vT+9}, 3, v0
    v_lshl_add_u32 v{vT+8}, v{vT+9}, 3, v{vT+8}
    v_and_b32 v{vT+9}, 1, v{vT+6}
    v_lshlrev_b32 v{vT+9}, 1, v{vT+9}
    v_lshrrev_b32 v{vT+10}, 1, v{vT+7}
    v_or_b32 v{vT+9}, v{vT+9}, v{vT+10}
    v_lshl_add_u32 v{vTR}, v{vT+9}, 5, v{vT+8}
    v_xor_b32 v{vTR+1}, 32, v{vTR}
    v_xor_b32 v{vTR+2}, 64, v{vTR}
    v_xor_b32 v{vTR+3}, 0x60, v{vTR}
    v_and_b32 v{vT+7}, 15, v0
    v_lshrrev_b32 v{vT+8}, 1, v{vT+7}
    v_xor_b32 v{vT+8}, v{vT+8}, v{vT+6}
    v_lshlrev_b32 v{vT+8}, 4, v{vT+8}
    v_lshl_add_u32 v{vT+8}, v{vT+7}, 7, v{vT+8}
    v_add_u32 v{vCR}, s{sM0C}, v{vT+8}
    v_xor_b32 v{vCR+1}, 64, v{vCR}
    s_lshl_b32 s{sKST}, s{sHEAD}, 20
    s_lshl_b32 s{sT0}, s{sJ}, 17
    s_add_u32 s{sKST}, s{sKST}, s{sT0}
    s_lshl_b32 s{sT0}, s{sW}, 15
    s_add_u32 s{sKST}, s{sKST}, s{sT0}
    s_add_u32 s{sVST}, s{sKST}, 16384
    s_and_b32 s{sT0}, s2, 3
    s_mul_i32 s{sT0}, s{sT0}, 12288
    s_lshl_b32 s{sMST}, s{sMST}, 1
    s_add_u32 s{sMST}, s{sMST}, s{sT0}
    s_add_u32 s{sMST}, s{sMST}, {WS_MODP}
    s_cmp_lt_u32 s2, 192
    s_cselect_b32 s{sT0}, s{sW}, 1
    s_cmp_eq_u32 s{sT0}, 0
    s_cselect_b32 s{sMST}, s{sMST}, {OOB:#x}
    s_and_b32 s{sATO}, s2, 63
    s_lshl_b32 s{sATO}, s{sATO}, 2
    s_cmp_eq_u32 s{sW}, 0
    s_cselect_b32 s{sATO}, s{sATO}, 256
    s_cmp_ge_u32 s{sW}, 2
    s_cselect_b32 s{sADD}, 1.0, 0
    """]
    o += st("P") + [W(vm="code" if SM == "P" else "modc")] + st("P") + [W(vm="modc")] + st("P")
    for n in range(4): o += [f"v_lshlrev_b32 v{MC+n}, 16, v{MC+n}"]
    for n in range(4): o += [f"v_mul_f32 v{MT+n}, {fbits(-1.4426950408889634)}, v{MC+n}"]
    for n in range(4): o += [f"v_exp_f32 v{MT+n}, v{MT+n}"]
    for n in range(4): o += [f"v_add_f32 v{MT+n}, 1.0, v{MT+n}"]
    for n in range(4): o += [f"v_rcp_f32 v{MT+n}, v{MT+n}"]
    for n in range(4): o += [f"v_mul_f32 v{MC+n}, v{MC+n}, v{MT+n}"]
    for n in range(4): o += [f"v_cvt_pk_bf16_f32 v{MC+n}, v{MC+n}, v{MC+n}"]
    for n in range(4): o += [f"v_lshlrev_b32 v{MC+n}, 16, v{MC+n}"]
    for n in range(4):
        o += [W(vm=[("modw", n)])]
        for j in range(4):
            o += [f"v_lshlrev_b32 v{MT}, 16, v{MW+4*n+j}", f"v_and_b32 v{MT+1}, 0xffff0000, v{MW+4*n+j}"]
            if n == 0: o += [f"v_mul_f32 v{MA+2*j}, v{MC}, v{MT}", f"v_mul_f32 v{MA+2*j+1}, v{MC}, v{MT+1}"]
            else: o += [f"v_fmac_f32 v{MA+2*j}, v{MC+n}, v{MT}", f"v_fmac_f32 v{MA+2*j+1}, v{MC+n}, v{MT+1}"]
    for j in range(8): o += [f"v_add_f32_dpp v{MA+j}, v{MA+j}, v{MA+j} row_ror:8 row_mask:0xf bank_mask:0xf"]
    for j in range(0, 8, 2): o += [f"v_permlane16_swap_b32 v{MA+j}, v{MA+j+1}"]
    for j in range(0, 8, 2): o += [f"v_add_f32 v{MA+j}, v{MA+j}, v{MA+j+1}"]
    for j in (0, 4): o += [f"v_permlane32_swap_b32 v{MA+j}, v{MA+j+2}"]
    for j in (0, 4): o += [f"v_add_f32 v{MA+j}, v{MA+j}, v{MA+j+2}"]
    vL4, vL256, vONE = vT+4, vT+5, vT+6
    o += [f"""
    v_lshrrev_b32 v{MT}, 4, v0
    v_lshl_add_u32 v{MT}, v{c8}, 3, v{MT}
    v_lshlrev_b32 v{MT}, 2, v{MT}
    s_lshl_b32 s{sT0}, s{sW}, 8
    v_add_u32 v{MT}, s{sT0}, v{MT}
    """, LG(f"ds_write_b32 v{MT}, v{MA} offset:{MODRED}", "mr"), LG(f"ds_write_b32 v{MT}, v{MA+4} offset:{MODRED+16}", "mr"),
    f"v_lshlrev_b32 v{vL4}, 2, v0", f"v_lshlrev_b32 v{vL256}, 8, v0", f"v_mov_b32 v{vONE}, 1"]
    def Cfrag(kt, s): return ar((s*4+kt)*4, 4)
    def c_reads(i):
        return [LG(f"ds_read_b128 {Cfrag(kt, 2*i+sp)}, v{vCR+sp} offset:{(i % 3)*8192 + kt*2048}", ("cr", i)) for sp in range(2) for kt in range(4)]
    if ilv:
        rest = scc_groups(o[pro0:]); n_ = len(rest)
        for k in reversed(range(len(ilv))): rest.insert((k*n_)//len(ilv), ilv[k])
        o = o[:pro0] + rest
    o += st("P") + [W(vm=[("c", 0)])] + st("P") + [c_reads(0), W(vm=[("w", 0)], lg="mr")] + st("P") + ["s_barrier"] + st("P")

    QA, HR = 64, 192
    aK, aV = 128, 160
    def accK(dt, kt): return ACC + (dt*4+kt)*4
    def acc(dt, qi): return QA + (dt*4+qi)*4
    def Hf(s, qi): return vr(HR + ((s & 3)*4+qi)*4, 4, "a" if s & 4 else "v")
    frags = []
    for s2 in range(0, 16, 2):
        for dt in range(8):
            for s in (s2, s2+1):
                frags.append((s >> 1, page(s >> 1) + (dt >> 2)*8192 + (s & 1)*4096, dt & 3, [(accK(dt, kt), "W", Cfrag(kt, s), s == 0) for kt in range(4)]))
    for s2 in range(0, 16, 2):
        for t in range(4):
            for s in (s2, s2+1):
                frags.append((8 + (s >> 2), page(8 + (s >> 2)) + (s & 3)*4096, t, [(X + (t*4+kt)*4, Cfrag(kt, s), "W", s == 0) for kt in range(4)]))
    for hb in range(2):
        for s2 in range(0, 16, 2):
            for t in (2*hb, 2*hb+1):
                for s in (s2, s2+1):
                    frags.append((12 + (s >> 2), CBUF + (s & 3)*CW + (s >> 2)*4096, t, [(ACC + (t*4+kt)*4, Cfrag(kt, s), "W", s == 0) for kt in range(4)]))
    for s2 in range(0, 16, 2):
        for dt in range(8):
            for s in (s2, s2+1):
                frags.append((16 + (s >> 1), (s >> 1)*16384 + (dt >> 2)*8192 + (s & 1)*4096, dt & 3, [(acc(dt, qi), "W", Hf(s, qi), s == 0) for qi in range(4)]))
    def wreg(f): return ("v", WF + (f % 8)*4) if f < 256 else ("a", aK + (f % 16)*4)
    slots = []
    CH = "nochain" not in OPT
    for f in range(0, len(frags), 2):
        for n, k in ([(n, k) for n in range(4) for k in range(2)] if CH else [(n, k) for k in range(2) for n in range(4)]):
            fl, r = wreg(f + k); wf = vr(r, 4, fl); d, a_, b_, first = frags[f + k][3][n]
            sl = Slot(I(f"v_mfma_f32_16x16x32_bf16 {vr(d,4)}, {wf if a_ == 'W' else a_}, {wf if b_ == 'W' else b_}, {'0' if first else vr(d,4)}"))
            if n == 0 and k == 0:
                sl.pre.append(W(lg=[("wf", f+1)]))
                if f < 128 and f % 16 == 0: sl.pre.append(W(lg=[("cr", f//16)]))
                if f >= 256 and f % 16 == 0: sl.pre.append(W(vm=[("h", (f-256)//8 + 1)]))
            slots.append(sl)
    LA = 4
    wbase = [0]; bar = {}
    vTR2 = vCD
    def frag_reads(f):
        q, a, t, _ = frags[f]; g = []
        fl, r = wreg(f)
        if a >= 131072: return g, [LG(f"ds_read_b64_tr_b16 {vr(r+2*hh, 2, fl)}, v{vTR2+t} offset:{a - 131072 + hh*512}", ("wf", f)) for hh in range(2)]
        wb = a & 65536
        if wb != wbase[0]:
            g += [f"v_xor_b32 v{vTR+i}, 0x10000, v{vTR+i}" for i in range(4)]; wbase[0] = wb
        return g, [LG(f"ds_read_b64_tr_b16 {vr(r+2*hh, 2, fl)}, v{vTR+t} offset:{a - wb + hh*512}", ("wf", f)) for hh in range(2)]
    for f in range(LA):
        g, rd = frag_reads(f); o += g + rd
    valid = {0}
    VAL = {12: [12, 13, 14, 15], 16: [16, 17, 18, 19]}
    for f in range(LA, len(frags)):
        q = frags[f][0]; i = (f - LA)*4
        if q not in valid or (q > 16 and f % 16 == 0):
            qs = VAL.get(q, [q]); valid.update(qs); bar[q] = i - 1
            slots[i-1].alu += [W(vm=[("w", x) for x in qs]), I("s_barrier")]
        g, rd = frag_reads(f)
        slots[i-1].alu += flat(g)
        slots[i].mem.append(rd[0]); slots[i+1].mem.append(rd[1])
    def put(groups, b, step=4, where="mem"):
        for n, g in enumerate(groups): getattr(slots[b + step*n], where).append(g)
    def up(b, r):
        while (b & 3) != r: b += 1
        return b
    def lq(groups, b):
        put(groups, up(b, 3)); return up(b, 3) + 4*(len(groups) - 1)
    vused = set()
    def vq(groups, b, stride=1):
        k = up(b, 2) >> 2; last = b
        for g in groups:
            while k in vused: k += 1
            vused.add(k); slots[4*k + 2].mem.append(g); last = 4*k + 2; k += stride
        return last
    def sq(text, b, e): spread(slots, SEQ(scc_groups(text)), b, e)
    def before_bar(q, items): slots[bar[q]].alu[0:0] = flat(items)
    def pre(items, groups): groups[0] = flat(items) + groups[0]; return groups
    cend = {}
    for p in range(7):
        rd = c_reads(p+1); rd[0] = [W(vm=[("c", p+1)]), rd[0]]
        cend[p+1] = lq(rd, p*64 + int(OV('crd', 20)))
    MR = vT + 8
    vq([[W(lg="mr2"), f"v_add_f32 v{MR}, v{MR}, v{MR+1}", f"v_add_f32 v{MR+2}, v{MR+2}, v{MR+3}", f"v_add_f32 v{MR}, v{MR}, v{MR+2}",
         VM(f"buffer_store_dword v{MR}, v{vL4}, {WS}, s{sMST} offen sc1", "mst")]], 14)
    sq([f"v_and_b32 v{vTR2+i}, 0xffff, v{vTR+i}" for i in range(4)] + [f"v_or_b32 v{vTR2+i}, 0x20000, v{vTR2+i}" for i in range(4)], 520, 540)
    lq([LG(f"ds_read2st64_b32 v[{MR}:{MR+1}], v{vL4} offset0:192 offset1:193", "mr2"),
        LG(f"ds_read2st64_b32 v[{MR+2}:{MR+3}], v{vL4} offset0:194 offset1:195", "mr2")], 0)
    vq([[W(vm=["mst", "zero"]), VM(f"buffer_atomic_add v{vONE}, v{vL256}, s[{sDBG}:{sDBG+3}], s{sATO} offen sc1")]], 100)
    XR, F0, F1, TT, AV, BV, PP, MF = 64, 72, 80, 88, 92, 100, 108, 124
    sq([f"""
    s_sub_u32 s{sHST}, 15, s{sJ}
    s_cmp_lt_u32 s{sC}, 16
    s_cselect_b32 s{sHST}, s{sJ}, s{sHST}
    s_lshl_b32 s{sHST}, s{sHST}, 4
    s_and_b32 s{sMF}, s{sC}, 15
    s_add_u32 s{sHST}, s{sHST}, s{sMF}
    s_lshl_b32 s{sMF}, s{sHST}, 13
    s_lshl_b32 s{sSPIN}, s{sW}, 11
    s_add_u32 s{sMF}, s{sMF}, s{sSPIN}
    """], 20, 40)
    xe = vq([VM(f"buffer_load_dwordx4 {vr(XR+4*k,4)}, v{vL16}, s[{sX}:{sX+3}], s{sMF} offen offset:{1024*k}{' nt' if 'ntx' in OPT else ''}", "x") for k in range(2)], 104)

    g = []
    for j in range(4):
        for F, xr in ((F0, XR), (F1, XR+4)): g += [f"v_lshlrev_b32 v{F+2*j}, 16, v{xr+j}", f"v_and_b32 v{F+2*j+1}, 0xffff0000, v{xr+j}"]
    g[0] = [W(vm="x"), g[0]]
    def reduce2(sa, sb, post):
        r = []
        for m in ("quad_perm:[1,0,3,2]", "quad_perm:[2,3,0,1]", "row_ror:4", "row_ror:8"):
            r += [f"v_add_f32_dpp v{TT}, v{TT}, v{TT} {m} row_mask:0xf bank_mask:0xf", f"v_add_f32_dpp v{TT+1}, v{TT+1}, v{TT+1} {m} row_mask:0xf bank_mask:0xf"]
        r += [f"v_permlane16_swap_b32 v{TT}, v{TT+1}", f"v_add_f32 v{TT}, v{TT}, v{TT+1}", f"v_mov_b32 v{TT+1}, v{TT}",
              f"v_permlane32_swap_b32 v{TT}, v{TT+1}", f"v_add_f32 v{TT}, v{TT}, v{TT+1}"] + post
        return r + [f"v_readlane_b32 s{sa}, v{TT}, 0", f"v_readlane_b32 s{sb}, v{TT}, 16"]
    for j in range(1, 8):
        for k, F in enumerate((F0, F1)): g += [f"v_add_f32 v{TT+k}, v{F if j == 1 else TT+k}, v{F+j}"]
    g += reduce2(sMEAN0, sMEAN1, [f"v_mul_f32 v{TT}, {fbits(1/512)}, v{TT}"])
    for j in range(8):
        for F, sm in ((F0, sMEAN0), (F1, sMEAN1)): g += [f"v_subrev_f32 v{F+j}, s{sm}, v{F+j}"]
    for j in range(8):
        for k, F in enumerate((F0, F1)): g += [f"v_mul_f32 v{TT+k}, v{F}, v{F}" if j == 0 else f"v_fmac_f32 v{TT+k}, v{F+j}, v{F+j}"]
    g += reduce2(sRS0, sRS1, [f"v_mov_b32 v{TT+1}, {fbits(EPS)}", f"v_fmac_f32 v{TT+1}, {fbits(1/512)}, v{TT}", f"v_rsq_f32 v{TT}, v{TT+1}"])
    for j in range(8):
        for F, rs in ((F0, sRS0), (F1, sRS1)): g += [f"v_mul_f32 v{F+j}, s{rs}, v{F+j}"]
    assert xe < 200
    spread(slots, g, max(xe + 60, 200), 360)
    ld = f"buffer_load_dword v{MR}, v{vL4}, s[{sDBG}:{sDBG+3}], 0 offen sc1"
    vq([VM(ld, "poll1")], 226)
    e = 0
    if pfa and "pfpre" not in OPT:
        for k, g in enumerate(pfa): slots[2*k + 1].alu.append(g)
        e = 2*len(pfa) + 2
    CP = int(OV("cp", 0))
    sPC, sPW = sWVOFF + 0, sVST + 0
    def cp_c(i): return [[VM(f"buffer_load_dwordx4 v[28:31], v{vCD}, s[{sCKV}:{sCKV+3}], s0 offen offset:{i*128}", "pf")] + ([f"s_xor_b32 s0, s0, 8192"])for n in range(2)] if CP and i < 8 else []
    def cp_w(q): return [[VM(f"buffer_load_dwordx4 v[28:31], v{vPW}, s[{sWK}:{sWK+3}], s1 offen", "pf"), f"s_add_u32 s1, s1, {2*64*8192}"]] if CP > 1 and q < 8 else []
    if CP:
        def vx(groups, b): put(groups, up(b, 0))
        vx(cp_c(3) + cp_w(3), 0); e = vq(c_dma(2), 0); e = vq(w_dma(2), e)
        for i in range(3, 8):
            vx(cp_c(i+1) + (cp_w(i+2) if i & 1 else []), max(e, cend.get(i-3, 0) + 8) - int(OV("cpl", 0)))
            e = vq(pre([W(lg=[("cr", i-3)])], c_dma(i)), max(e, cend.get(i-3, 0) + 8)); assert e < (i-1)*64 + 10, (i, e)
            if i < 7: e = vq(w_dma(i), max(e, bar[i-2]))
    BU = int(OV("burst", 0))
    if BU:
        first = c_dma(2) + w_dma(2) + c_dma(3)
        for k, g in enumerate(first): slots[k*BU//2].mem.append(g)
        for k in range((len(first)*BU//2)//4 + 1): vused.add(k)
        e = len(first)*BU//2
    elif not CP: e = vq(c_dma(2), e); e = vq(w_dma(2), e)
    if not BU and not CP: e = vq(c_dma(3), e)
    if not CP: e = vq(w_dma(3), max(e, bar[1]))
    for i in range(4, 8 if not CP else 0):
        e = vq(pre([W(lg=[("cr", i-3)])], c_dma(i)), max(e, cend[i-3] + 8))
        assert e < (i-1)*64 - 10, (i, e)
        if i < 7: e = vq(w_dma(i), max(e, bar[i-2]))
    before_bar(5, check(ld, f"v_cmp_gt_u32 vcc, 4, v{MR}", sSPIN, "poll1"))
    sq([f"s_lshl_b32 s{sMF}, s{sW}, 10", f"s_add_u32 s{sMF}, s{sMF}, {WS_MODP}"], bar[5] - 8, bar[5] - 4)
    e = vq([[VM(f"buffer_load_dwordx4 {vr(PP+4*n,4)}, v{vL16}, {WS}, s{sMF} offen sc1", "pp"), f"s_add_u32 s{sMF}, s{sMF}, 12288"] for n in range(4)], bar[5] + 1)
    g = [[VM(f"buffer_load_dword v{MF+n}, v{vL4}, {WS}, s{sMF} offen sc1", "mf"), f"s_add_u32 s{sMF}, s{sMF}, 12288"] for n in range(4)]
    e = vq(pre([f"s_lshl_b32 s{sMF}, s{sC}, 10", f"s_lshl_b32 s{sSPIN}, s{sW}, 8", f"s_add_u32 s{sMF}, s{sMF}, s{sSPIN}",
                f"s_mul_i32 s{sSPIN}, s{sJ}, 12288", f"s_add_u32 s{sSPIN}, s{sSPIN}, s{sMF}", f"s_add_u32 s{sSPIN}, s{sSPIN}, {WS_MODF}",
                f"s_add_u32 s{sMF}, s{sMF}, {WS_MODP}", f"s_cmp_lt_u32 s{sC}, 12",
                f"s_cselect_b32 s{sMF}, s{sMF}, {OOB:#x}", f"s_cselect_b32 s{sSPIN}, s{sSPIN}, {OOB:#x}"], g), e)
    assert e < 372
    e = vq(w_dma(7), max(e, bar[5])); assert e < bar[7] - 60
    if PF and "nopv" not in OPT: e = vq(pre([W(lg=[("cr", 5)])], pf_w(sWV, vPW, 16384 + 6144, 0, sX, sX+1)), max(e, cend[5] + 8))
    e = vq(w_dma(8), max(e, bar[6]))
    if PF and "pq1" in OPT: e = vq(pf_w(sWQ, vPW, 16384 + 6144, 0, sX, sX+1), e + 16); assert e < bar[7]
    e = vq(w_dma(9), max(e, bar[7]))
    if PF and "pq1" not in OPT:
        sq([f"v_mov_b32 v{vT+12}, v{vPW}"], 400, 401); e = vq(pf_w(sWQ, vT+12, 16384 + 6144, 0, sX, sX+1), max(e, 470)); assert e < bar[8]
    e = e; e = vq(w_dma(10), max(e, bar[8] + 14))
    e = vq(w_dma(12), e + 8); e = vq(w_dma(11), max(e, bar[9] + 6)); e = vq(w_dma(13), e + 8); e = vq(w_dma(14), e + 12); e = vq(w_dma(15), e + 12)
    assert e < 690
    g = [[W(vm="pp"), f"v_add_f32 v{PP}, v{PP}, v{PP+4}"]] + [f"v_add_f32 v{PP+j}, v{PP+j}, v{PP+4+j}" for j in range(1, 4)]
    g += [f"v_add_f32 v{PP+8+j}, v{PP+8+j}, v{PP+12+j}" for j in range(4)] + [f"v_add_f32 v{PP+j}, v{PP+j}, v{PP+8+j}" for j in range(4)]
    g += rnd(PP, PP+1, PP+4) + rnd(PP+2, PP+3, PP+5) + [f"v_add_f32 v{PP+j}, s{sADD}, v{PP+j}" for j in range(4)]
    g += rnd(PP, PP+1, PP+4) + rnd(PP+2, PP+3, PP+5) + [f"v_mul_f32 v{PP+j}, {fbits(CSCALE)}, v{PP+j}" for j in range(4)]
    g += [f"s_lshl_b32 s{sMF}, s{sW}, 10", f"s_add_u32 s{sMF}, s{sMF}, {MODV}", f"v_add_u32 v{PP+4}, s{sMF}, v{vL16}", f"v_lshlrev_b32 v{TT}, 5, v0", f"v_add_u32 v{TT}, {MODV}, v{TT}"]
    g += [[W(vm="mf"), f"v_add_f32 v{MF}, v{MF}, v{MF+1}"], f"v_add_f32 v{MF+2}, v{MF+2}, v{MF+3}", f"v_add_f32 v{MF}, v{MF}, v{MF+2}",
          f"v_cvt_pk_bf16_f32 v{MF}, v{MF}, v{MF}", f"v_lshlrev_b32 v{vT+11}, 16, v{MF}"]
    spread(slots, g, 372, 424)
    lq([LG(f"ds_write_b128 v{PP+4}, {vr(PP,4)}", "mv")], 425)
    assert bar[7] > 427
    before_bar(7, [W(lg="mv")])
    put([LG(f"ds_read_b128 {vr(r,4)}, v{TT} offset:{off}", "ab") for r, off in ((BV, 0), (BV+4, 16), (AV, 2048), (AV+4, 2064))], bar[7] + 1, 2)
    g = []
    for j in range(8):
        for F in (F0, F1): g += [f"v_fma_f32 v{F+j}, v{F+j}, v{AV+j}, v{BV+j}"]
    g[0] = [W(lg="ab"), g[0]]
    for j in range(4):
        for F, xr in ((F0, XR), (F1, XR+4)): g += [f"v_cvt_pk_bf16_f32 v{xr+j}, v{F+2*j}, v{F+2*j+1}"]
    HA, HG, HD = vT+2, vT+3, vT+12
    g += [f"s_lshr_b32 s{sMF}, s{sW}, 1", f"s_mul_i32 s{sMF}, s{sMF}, {CW - 4160}", f"s_mul_i32 s{sADD}, s{sW}, 2080", f"s_add_u32 s{sMF}, s{sMF}, s{sADD}",
          f"s_add_u32 s{sMF}, s{sMF}, {HSTA}", f"v_add_u32 v{TT}, s{sMF}, v{vL16}"]
    g += [x.t for x in flat([f"""
    v_and_b32 v{HG}, 7, v0
    v_lshrrev_b32 v{TT+2}, 3, v0
    v_mul_u32_u24 v{HA}, 1040, v{HG}
    v_lshrrev_b32 v{TT+3}, 2, v{HG}
    v_mul_u32_u24 v{TT+3}, {CW - 4160}, v{TT+3}
    v_add_u32 v{HA}, v{HA}, v{TT+3}
    v_lshl_add_u32 v{HA}, v{TT+2}, 4, v{HA}
    s_lshl_b32 s{sMF}, s{sW}, 8
    s_add_u32 s{sMF}, s{sMF}, {HSTA}
    v_add_u32 v{HA}, s{sMF}, v{HA}
    v_lshlrev_b32 v{HG}, 4, v{HG}
    v_and_b32 v{TT+3}, 3, v{TT+2}
    v_lshl_add_u32 v{HG}, v{TT+3}, 8, v{HG}
    v_lshrrev_b32 v{TT+2}, 2, v{TT+2}
    v_lshl_add_u32 v{HG}, v{TT+2}, 10, v{HG}
    s_and_b32 s{sMF}, s{sHST}, 1
    s_lshr_b32 s{sHST}, s{sHST}, 1
    s_lshl_b32 s{sHST}, s{sHST}, 14
    s_lshl_b32 s{sMF}, s{sMF}, 7
    s_add_u32 s{sHST}, s{sHST}, s{sMF}
    s_lshl_b32 s{sMF}, s{sW}, 12
    s_add_u32 s{sHST}, s{sHST}, s{sMF}
    s_add_u32 s{sHST}, s{sHST}, {WS_H}
    """])]
    spread(slots, g, bar[7] + 12, 488)
    put([LG(f"ds_write_b128 v{TT}, {vr(XR+4*k,4)} offset:{1040*k}", "hw") for k in range(2)], 489, 2)
    assert bar[8] > 491
    before_bar(8, [W(lg="hw")])
    put([LG(f"ds_read_b128 {vr(XR+56+4*k,4)}, v{HA} offset:{128*k}", "hr") for k in range(2)], bar[8] + 1, 1)
    e = vq([VM(f"buffer_store_dword v{vT+11}, v{vL4}, {WS}, s{sSPIN} offen sc1", "hst")] +
           [[W(lg="hr"), VM(f"buffer_store_dwordx4 {vr(XR+56+4*k,4)}, v{HG}, {WS}, s{sHST} offen offset:{2048*k} sc1", "hst")] for k in range(2)], bar[8] + 1)
    assert e < 524
    HB_ = int(OV("hb", 10))
    before_bar(HB_, [W(vm="hst")])
    sq(flag_off(sMF, 0, True), bar[HB_] - 12, bar[HB_] - 11)
    vq([publish(vT+2, sMF)], bar[HB_] + 1)
    def pack(dst, qa, qb):
        return [f"v_cvt_pk_bf16_f32 v{dst}, v{qa}, v{qa+1}", f"v_cvt_pk_bf16_f32 v{dst+1}, v{qa+2}, v{qa+3}",
                f"v_cvt_pk_bf16_f32 v{dst+2}, v{qb}, v{qb+1}", f"v_cvt_pk_bf16_f32 v{dst+3}, v{qb+2}, v{qb+3}"]
    def store(src, sreg, off, tag):
        return [f"s_add_u32 s{sT0}, s{sreg}, {off & ~4095}", VM(f"buffer_store_dwordx4 {vr(src,4)}, v{vL16}, {WS}, s{sT0} offen offset:{off & 4095} sc1", tag)]
    def at23(e):
        while (e & 3) < 2: e += 1
        return e
    kl = [(s4, kt) for s4 in (2, 3, 0, 1) for kt in range(4)]
    for n, (s4, kt) in enumerate(kl):
        dst = accK({2: 4, 3: 6, 0: 5, 1: 7}[s4], kt)
        b = 514 + n*(22 if n < 2 else 12) + (20 if n >= 2 else 0)
        put(pack(dst, accK(2*s4, kt), accK(2*s4+1, kt)), b, 2, "alu")
        e = vq([store(dst, sKST, (kt >> 1)*8192 + ((kt & 1)*4 + s4)*1024, "kst")], 530 + int(OV("ksp", 21))*n)
        assert b + 6 < 530 + int(OV("ksp", 21))*n and b + 6 < 764 and e < 880
    sH = 32; sUS, sUL = sMF, sHST
    slots[815].alu += [I("s_barrier")]
    if "ct2" in OPT:
        slots[860].alu.append(flat([f"Lb0_{N}:"])); vq([code_part(f"Lb0_{N}", f"Lfin_{N}", 14, 32, vT+10)], 640)
    for q, b in ((16, 690), (17, bar[11] + 30), (18, bar[12]), (19, 815)): e = vq(w_dma(q), b + 1)
    sq(flag_off(sSPIN, 0, False) + [f"v_and_b32 v{vT+2}, 31, v0", f"v_lshlrev_b32 v{vT+2}, 2, v{vT+2}"], 780, 800)
    ld = f"buffer_load_dword v{vT+3}, v{vT+2}, {WS}, s{sSPIN} offen sc1"
    vq([VM(ld, "poll2")], max(e, 836))
    sq([f"""
    s_lshl_b32 s{sUS}, s{sJ}, 2
    s_sub_u32 s{sUL}, 60, s{sUS}
    s_add_u32 s{sUS}, s{sUS}, s{sW}
    s_add_u32 s{sUL}, s{sUL}, s{sW}
    s_lshl_b32 s{sH}, s{sUL}, 15
    s_add_u32 s{sH}, s{sH}, {WS_H}
    s_add_u32 s{sH+1}, s{sH}, 16384
    s_lshl_b32 s{sH+2}, s{sUS}, 15
    s_add_u32 s{sH+2}, s{sH+2}, {WS_H}
    s_add_u32 s{sH+3}, s{sH+2}, 16384
    """], 850, 876)
    slots[883].alu += check(ld, f"v_cmp_ne_u32 vcc, 1, v{vT+3}", sADD, "poll2") + [I("s_barrier")]
    def h_ld(s):
        g = []
        for qi in range(4):
            x = [VM(f"buffer_load_dwordx4 {Hf(s, qi)}, v{vL16}, {WS}, s{sH+qi} offen offset:{(s&3)*1024} sc1", ("h", s))]
            if (s & 3) == 3: x.append(f"s_add_u32 s{sH+qi}, s{sH+qi}, 4096")
            g.append(x)
        return g
    for n in range(8):
        t, uu = n >> 1, n & 1; qa = X + (t*4+2*uu)*4
        put(pack(qa, qa, qa+4), 780 + 10*n, 2, "alu")
        e = vq([store(qa, sVST, uu*8192 + t*1024, "vst")], int(OV("va0", 872)) + int(OV("vap", 19))*n)
        assert e < 1020
    e = vq(h_ld(0) + h_ld(1) + h_ld(2) + h_ld(3), 884)
    assert e < 990
    for n in range(8):
        t, uu = n >> 1, n & 1; qa = ACC + (t*4+2*uu)*4
        put(pack(WF + 4*n, qa, qa+4), 1024 + 3*n, 1, "alu") if n < 4 else put(pack(WF + 4*n, qa, qa+4), 1024 + 12 + 3*(n-4), 1, "alu")
        e = vq([store(WF + 4*n, sVST, uu*8192 + (4+t)*1024, "vst")], int(OV("vs0", 1050)) + int(OV("vsp", 20))*n); vend = e
    def kvflag(dst, base, own):
        r = [f"s_lshl_b32 s{dst}, s{sHEAD}, 5", f"s_add_u32 s{dst}, s{dst}, {WS_FLAG + base}"]
        if own: r += [f"s_lshl_b32 s{sT0}, s{sJ}, 2", f"s_add_u32 s{dst}, s{dst}, s{sT0}"]
        return r + [f"s_cmp_eq_u32 s{sW}, 0", f"s_cselect_b32 s{dst}, s{dst}, {OOB:#x}"]
    before_bar(16, [W(vm="kst")])
    sq(kvflag(sSPIN, KF, True), bar[16] - 12, bar[16] - 11)
    vq([publish(vT+2, sSPIN)], bar[16] + 1)
    for p in (0, 4, 8, 12): slots[p*64].alu += st()
    for p in range(15): slots[p*64].alu += st("A")
    for p in range(9, 24): slots[p*64].alu += st("B")
    B0 = 1024
    slots[B0].alu += st()
    sK, sCT = 12, 36; sMK = [24, 26, 32, 34]
    sKO, sCNT, sODW, sFL = 78, 86, 87, 90
    vKB, vVB, ONES, LS, PB, CB, TMP = 2, 3, 12, 16, 32, 192, 224
    sq([f"""
    s_lshl_b32 s{sKO}, s{sHEAD}, 20
    s_add_u32 s{sK}, s{sWS}, s{sKO}
    s_addc_u32 s{sK+1}, s{sWS+1}, 0
    s_sub_u32 s{sK+2}, 16, s{sJ}
    s_lshl_b32 s{sK+2}, s{sK+2}, 16
    s_mov_b32 s{sK+3}, 0x20000
    s_add_u32 s{sKO}, s{sM0K}, {4*32768}
    """], bar[20] + 1, bar[20] + 12)
    vF = LS
    sq(kvflag(sFL, KF, False) + [f"v_and_b32 v{vF}, 7, v0", f"v_lshlrev_b32 v{vF}, 2, v{vF}"], bar[19] - 20, bar[19] - 4)
    ld = f"buffer_load_dword v{vF+1}, v{vF}, {WS}, s{sFL} offen sc1"
    e = vq([VM(ld, "poll3")], bar[19]); assert e < bar[20] - 20
    before_bar(20, check(ld, f"v_cmp_ne_u32 vcc, 1, v{vF+1}", sCNT, "poll3"))
    VB = int(OV("vb", 21)); assert vend < bar[VB] - 20 and vend < bar[20] + 100
    before_bar(VB, [W(vm="vst")])
    sq(kvflag(sFL, VF, True), bar[VB] - 12, bar[VB] - 11)
    e = vq([publish(vF+2, sFL)], bar[VB] + 1)
    sq(kvflag(sFL, VF, False), e + 4, e + 12)
    vq([VM(ld, "poll4")], bar[23] + 1)
    LEAD = int(OV("lead", 120)); e = B0
    for s in range(4, 16, 2):
        q = 16 + s//2
        if q >= 20: e = vq(w_dma(q), max(e, bar[17] + 1, bar[q] - LEAD)); assert e < bar[q] - 50
        e = vq(h_ld(s) + h_ld(s+1), max(e, B0 + (s-6)*32, B0 + s*32 - LEAD)); assert e < B0 + s*32 - 50, (s, e)
    hend = e
    vcheck = check(ld, f"v_cmp_ne_u32 vcc, 1, v{vF+1}", sCNT, "poll4")
    def kv_dma(which, tag, pair=None):
        if pair is None: so = sKO; grp = [f"s_and_b32 m0, s{sKO}, 0x1ffff"]
        else: so = sT1; grp = [f"s_add_u32 s{sT1}, s{sM0K}, {pair*32768 + (which == 'V')*16384}", f"s_mov_b32 m0, s{sT1}"]
        g = [grp]
        for n in range(4): g.append([VM(f"buffer_load_dwordx4 v{vL16}, s[{sK}:{sK+3}], s{so} offen offset:{n*1024} {OV('kvf', 'sc1').replace('none', '').replace('+', ' ')} lds", tag)])
        if pair is None: return SEQ(g + [[f"s_sub_u32 s{sKO}, s{sKO}, 16384" if which == "K" else f"s_add_u32 s{sKO}, s{sKO}, 49152"]])
        return SEQ([g[0] + g[1]] + g[2:])
    e = vq(kv_dma("K", ("K", 0), 0) + kv_dma("K", ("K", 1), 1), max(hend, bar[21] + 1))
    sS1, sD1, sD3, sS2, sX0, sX1, sW2 = 80, 7, 81, 91, 85, 83, 16; sD2 = [20, 21, 22, 23]
    vU1, vU2, vUT = TMP+12, TMP+16, TMP+20
    g = srd(sW2, PW2, 1792*1024) + [f"""
    s_lshl_b32 s{sX0}, s2, 2
    s_add_u32 s{sX0}, s{sX0}, s{sW}
    s_and_b32 s{sX0}, s{sX0}, 511
    s_lshr_b32 s{sS1}, s{sX0}, 3
    s_and_b32 s{sX1}, s{sX0}, 7
    s_lshl_b32 s{sD1}, s{sX1}, 7
    s_add_u32 s{sD1}, s{sD1}, s{sS1}
    s_lshl_b32 s{sD1}, s{sD1}, 12
    s_add_u32 s{sD1}, s{sD1}, {WS_WOF}
    s_mul_i32 s{sD3}, s{sX1}, 56
    s_add_u32 s{sD3}, s{sD3}, s{sS1}
    s_lshl_b32 s{sD3}, s{sD3}, 12
    s_add_u32 s{sD3}, s{sD3}, {WS_W2F}
    s_lshl_b32 s{sS1}, s{sS1}, 15
    s_lshl_b32 s{sX1}, s{sX1}, 7
    s_add_u32 s{sS1}, s{sS1}, s{sX1}
    s_and_b32 s{sX1}, s{sX0}, 15
    s_mul_i32 s{sS2}, s{sX1}, {32*3584}
    s_mul_i32 s{sX1}, s{sX1}, 7168
    s_add_u32 s{sX1}, s{sX1}, {WS_W1F}
    s_cmp_lt_u32 s{sX0}, 448
    s_cselect_b32 s{sX1}, s{sX1}, {OOB:#x}
    s_cselect_b32 s{sD3}, s{sD3}, {OOB:#x}
    s_cselect_b32 s{sU2+2}, s{sU2+2}, 0
    s_cmp_ge_u32 s2, 128
    s_cselect_b32 s{sWO+2}, s{sWO+2}, 0
    s_lshr_b32 s{sX0}, s{sX0}, 4
    s_lshl_b32 s{sD2[0]}, s{sX0}, 7
    s_add_u32 s{sS2}, s{sS2}, s{sD2[0]}
    s_lshl_b32 s{sX0}, s{sX0}, 2
    """] + [f"""
    s_mul_i32 s{sODW}, s{sX0}, 9363
    s_lshr_b32 s{sODW}, s{sODW}, 16
    s_mul_i32 s{sODW}, s{sODW}, {114688-7168}
    s_lshl_b32 s{sD2[t]}, s{sX0}, 10
    s_add_u32 s{sD2[t]}, s{sD2[t]}, s{sODW}
    s_add_u32 s{sD2[t]}, s{sD2[t]}, s{sX1}
    s_add_u32 s{sX0}, s{sX0}, 1
    """ for t in range(4)] + [f"""
    v_lshrrev_b32 v{vUT}, 3, v0
    v_and_b32 v{vUT+1}, 7, v0
    v_and_b32 v{vUT+2}, 6, v{vUT}
    v_xor_b32 v{vUT+2}, v{vUT+2}, v{vUT+1}
    v_lshlrev_b32 v{vUT+2}, 4, v{vUT+2}
    v_lshl_add_u32 v{vU1}, v{vUT}, 10, v{vUT+2}
    v_add_u32 v{vU1+1}, 7168, v{vU1}
    v_add_u32 v{vU1+2}, {2*7168}, v{vU1}
    v_add_u32 v{vU1+3}, {3*7168}, v{vU1}
    v_mul_u32_u24 v{vU2}, 3584, v{vUT}
    v_add_u32 v{vU2}, v{vU2}, v{vUT+2}
    v_add_u32 v{vU2+1}, {8*3584-1024}, v{vU2}
    v_add_u32 v{vU2+2}, {2*(8*3584-1024)}, v{vU2}
    v_add_u32 v{vU2+3}, {3*(8*3584-1024)}, v{vU2}
    v_lshrrev_b32 v{vUT+1}, 4, v0
    v_bfe_u32 v{vUT+2}, v0, 2, 2
    v_lshl_add_u32 v{vUT+1}, v{vUT+1}, 2, v{vUT+2}
    v_bfe_u32 v{vUT+2}, v{vUT+1}, 1, 2
    v_lshlrev_b32 v{vUT+1}, 7, v{vUT+1}
    v_lshl_add_u32 v{vUT+1}, v{vUT+2}, 5, v{vUT+1}
    v_and_b32 v{vUT+2}, 3, v0
    v_lshl_add_u32 v{vUT+1}, v{vUT+2}, 3, v{vUT+1}
    s_lshl_b32 s{sX0}, s{sW}, 13
    s_add_u32 s{sX0}, s{sX0}, 131072
    v_add_u32 v{vUT}, s{sX0}, v{vUT+1}
    v_xor_b32 v{vUT+1}, 32, v{vUT}
    v_xor_b32 v{vUT+2}, 64, v{vUT}
    v_xor_b32 v{vUT+3}, 0x60, v{vUT}
    """]
    sq(g[:-1], B0 + 250, B0 + 380); sq(g[-1:], B0 + 388, B0 + 432)
    def side_dma(rnd_):
        r = []
        for u, (vo, sd, so) in enumerate((((vU1, sWO, f"s{sS1}, 0"), (vU1, sWO, f"s{sS1}, {64*32768}")), ((vU1, sW2, f"s{sS1}, 0"), (vU2, sU2, f"s{sS2}, 0")))[rnd_]):
            d = [[VM(f"buffer_load_dwordx4 v{vo+n}, s[{sd}:{sd+3}], s{sT0} offen offset:{n*1024}{NT1} lds", "ud")] for n in range(4)]
            d[0] = [f"s_add_u32 m0, s{sX0}, {u*4096}", f"s_add_u32 s{sT0}, {so}"] + d[0]
            r += SEQ(d)
        return r
    def side_reads(): return [LG(f"ds_read_b64_tr_b16 {ar(192 + u*16 + t*4 + 2*hh, 2)}, v{vUT+t} offset:{u*4096 + hh*2048}", "ur") for u in range(2) for t in range(4) for hh in range(2)]
    def side_stores(rnd_):
        st_ = lambda q, so, off: [VM(f"buffer_store_dwordx4 {ar(192 + 4*q, 4)}, v{vL16}, {WS}, s{so} offen offset:{off} sc1")]
        if rnd_ == 1: return [st_(t, sD3, t*1024) for t in range(4)] + [st_(4+t, sD2[t], 0) for t in range(4)]
        r = [st_(t & 3 | (t & 4), sD1, (t & 3)*1024) for t in range(8)]
        r[3] = r[3] + [f"s_add_u32 s{sD1}, s{sD1}, {64*4096}"]
        return r
    e = vq(side_dma(0), bar[23] + 8); assert e < B0 + 510
    init = [f"v_accvgpr_write_b32 a{r}, 0" for r in range(128)] + [f"v_mov_b32 v{ONES+r}, 0x3f803f80" for r in range(4)]
    spread(slots, init, B0 + 40, bar[21] - 8)
    init = [x.t for x in flat([f"""
    s_lshl_b32 s{sODW}, s{sHEAD}, 12
    s_add_u32 s{sODW}, s{sODW}, {WS_CTX}
    s_lshl_b32 s{sCT}, s{sUL}, 18
    s_add_u32 s{sCT}, s{sCT}, s{sODW}
    s_add_u32 s{sCT+1}, s{sCT}, 131072
    s_lshl_b32 s{sCT+2}, s{sUS}, 18
    s_add_u32 s{sCT+2}, s{sCT+2}, s{sODW}
    s_add_u32 s{sCT+3}, s{sCT+2}, 131072
    v_lshrrev_b32 v{PB+4}, 4, v0
    v_lshlrev_b32 v{PB+4}, 2, v{PB+4}
    v_and_b32 v{PB+5}, 15, v0
    v_sub_u32 v{PB+5}, v{PB+5}, v{PB+4}
    v_cmp_le_i32 s[{sMK[0]}:{sMK[0]+1}], 0, v{PB+5}
    v_cmp_le_i32 s[{sMK[1]}:{sMK[1]+1}], 1, v{PB+5}
    v_cmp_le_i32 s[{sMK[2]}:{sMK[2]+1}], 2, v{PB+5}
    v_cmp_le_i32 s[{sMK[3]}:{sMK[3]+1}], 3, v{PB+5}
    v_mov_b32 v{vKB}, v{vL16}
    v_mov_b32 v{vVB}, v{vL16}
    """])] + [f"v_mov_b32 v{LS+r}, 0" for r in range(2, 16)]
    spread(slots, init, bar[23] - 30, bar[23] + 10)
    spread(slots, [f"v_mov_b32 v{CB+r}, 0" for r in range(32)] + [f"v_mov_b32 v{TMP+31}, 0xff800000"], B0 + 330, B0 + 400)
    def qpack(s4): return sum(([f"v_cvt_pk_bf16_f32 v{acc(2*s4, qi)+k}, v{acc(2*s4 + (k >> 1), qi) + 2*(k & 1)}, v{acc(2*s4 + (k >> 1), qi) + 2*(k & 1) + 1}"
                                for k in range(4)] for qi in range(4)), [])
    for s4 in range(3): spread(slots, qpack(s4), B0 + 448 + 16*s4 + 17, B0 + 448 + 16*s4 + 31 - (s4 == 2))
    if "vmap" in OPT: print("".join(("#" if k in vused else ".") + ("|" if k % 16 == 15 else "") for k in range(len(slots)//4)))
    if "nopack" not in OPT: pack_slots(slots)
    o += emit_slots(slots) + [f"Latt_{N}:"]
    o += st()
    from fatt import attention
    from ftail import tail
    env.update(locals())
    o = resolve_waits(flat(o + attention(env, "prologue")))
    o += attention(env, "main")
    if upto >= 3: o += tail(env, upto)
    return o + finish()
```

```python
from common import *
from flay import *

def attention(env, part):
    g_ = env
    (N, ts, st, sW, sK, sMK, sCT, sT0, sT1, sKO, sCNT, sODW, sUS, sUL, sFL, vL16, vKB, vVB, ONES, LS, PB, CB, TMP,
     aK, aV, acc, kv_dma, WS, upto) = [g_[k] for k in
     "N ts st sW sK sMK sCT sT0 sT1 sKO sCNT sODW sUS sUL sFL vL16 vKB vVB ONES LS PB CB TMP aK aV acc kv_dma WS upto".split()]
    FLAG = 131072; NINF = "0xff800000"; sG = 20
    def Q(qi, s4): return vr(acc(2*s4, qi), 4)
    def S(buf, qi, kt): return acc(2*(buf*2+kt)+1, qi)
    def Pq(buf, qi): return PB + (buf*4+qi)*4
    def C(qi, kt): return CB + (qi*2+kt)*4
    def O(t, qi): return ar((t*4+qi)*4, 4)
    def Kf(kt, ds): return ar(aK + (kt*4+ds)*4, 4)
    def Vf(t): return ar(aV + t*4, 4)
    GQ = {0: (0, 1), 1: (2, 3)}
    def mask(g):
        r = []
        for e in range(4):
            for qt in range(2):
                c = C(GQ[g][qt], qt) + e
                r.append(f"v_cndmask_b32 v{c}, v{TMP+31}, v{c}, s[{sMK[e]}:{sMK[e]+1}]")
            r.append(f"v_mov_b32 v{C(GQ[g][0], 1)+e}, v{TMP+31}")
        return r
    def k_reads(off): return [LG(f"ds_read_b128 {Kf(kt, ds)}, v{vKB} offset:{off + (kt*4+ds)*1024}", ("k", kt*4+ds)) for kt in range(2) for ds in range(4)]
    def v_reads(off): return [LG(f"ds_read_b128 {Vf(t)}, v{vVB} offset:{16384 + off + t*1024}", ("v", t)) for t in range(8)]
    def qk(buf, groups):
        r = []
        for kt in range(2):
            for g in groups:
                for qi in GQ[g]:
                    for ds in range(4):
                        d = vr(S(buf, qi, kt), 4)
                        r.append((I(f"v_mfma_f32_16x16x32_bf16 {d}, {Kf(kt, ds)}, {Q(qi, ds)}, {vr(C(qi, kt), 4) if ds == 0 else d}"), kt*4+ds))
        return r
    def pv(buf, groups):
        r = []
        for t in range(8):
            for g in groups:
                for qi in GQ[g]:
                    r.append((I(f"v_mfma_f32_16x16x32_bf16 {O(t, qi)}, {Vf(t)}, {vr(Pq(buf, qi), 4)}, {O(t, qi)}"), t))
        for g in groups:
            for qi in GQ[g]:
                r.append((I(f"v_mfma_f32_16x16x32_bf16 {vr(LS+4*qi, 4)}, {vr(ONES, 4)}, {vr(Pq(buf, qi), 4)}, {vr(LS+4*qi, 4)}"), None))
        return r
    def softmax(buf, groups):
        ex = []; cv = []
        for g in groups:
            for qi in GQ[g]:
                for kt in range(2):
                    s0 = S(buf, qi, kt)
                    for h in range(2):
                        ex += [f"v_exp_f32 v{s0+2*h}, v{s0+2*h}", f"v_exp_f32 v{s0+2*h+1}, v{s0+2*h+1}"]
                        cv += [f"v_cvt_pk_bf16_f32 v{Pq(buf, qi)+2*kt+h}, v{s0+2*h}, v{s0+2*h+1}"]
        return ex, cv
    if part == "prologue":
        o = env["vcheck"] + [W(vm=[("K", 0)]), "s_barrier", k_reads(0), kv_dma("V", ("V", 0), 0)]
        o += [f"v_mov_b32 v{LS+r}, 0" for r in range(2)]
        dm = sum((kv_dma(wh, (wh, p), p) for wh, p in (("K", 2), ("V", 1), ("K", 3), ("V", 2))), [])
        o += env["qpack"](3) + [f"s_cmp_lg_u32 s{sUS}, 0", f"s_cbranch_scc1 Lp0_{N}", mask(1), f"Lp0_{N}:", "s_nop 1"]
        q0 = [Slot(m) for m, _ in qk(0, (0, 1))]
        for k in range(8): q0[4*k + 1].mem.append(dm[k])
        o += [W(lg=[("k", 7)])] + emit_slots(q0)
        o += [k_reads(8192), "s_nop 3", f"s_cmp_lg_u32 s{sUS}, 1", f"s_cbranch_scc1 Lp1_{N}", mask(1), f"Lp1_{N}:", "s_nop 1"]
        q1 = [Slot(m) for m, _ in qk(1, (0, 1))]
        q1[0].pre.append(W(lg=[("k", 7)]))
        mx = []
        for qi in range(4):
            a, b, t = S(0, qi, 0), S(0, qi, 1), TMP + qi
            mx += [f"v_max3_f32 v{t}, v{a}, v{a+1}, v{a+2}", f"v_max3_f32 v{t}, v{t}, v{a+3}, v{b}",
                   f"v_max3_f32 v{t}, v{t}, v{b+1}, v{b+2}", f"v_max_f32 v{t}, v{t}, v{b+3}"]
        for sw in ("v_permlane16_swap_b32", "v_permlane32_swap_b32"):
            mx += [f"v_mov_b32 v{TMP+4+qi}, v{TMP+qi}" for qi in range(4)]
            mx += [f"{sw} v{TMP+qi}, v{TMP+4+qi}" for qi in range(4)]
            mx += [f"v_max_f32 v{TMP+qi}, v{TMP+qi}, v{TMP+4+qi}" for qi in range(4)]
        spread(q1, mx, 2, 32)
        for k in range(8): q1[4*k + 1].mem.append(dm[8 + k])
        o += emit_slots(q1)
        o += [W(vm=[("K", 1), ("V", 0)]), "s_barrier", f"v_add_u32 v{vKB}, 32768, v{vL16}", k_reads(0)]
        for qi in range(4):
            for kt in range(2): o += [f"v_sub_f32 v{S(0, qi, kt)+e}, v{S(0, qi, kt)+e}, v{TMP+qi}" for e in range(4)]
        ex, cv = softmax(0, (0, 1))
        for k in range(len(cv)): o += ex[2*k:2*k+2] + ([cv[k-1]] if k else [])
        o += [cv[-1]]
        for qi in range(4):
            for kt in range(2):
                o += [f"v_sub_f32 v{C(qi, kt)+e}, v{C(qi, kt)+e}, v{TMP+qi}" for e in range(4)]
                o += [f"v_sub_f32 v{S(1, qi, kt)+e}, v{S(1, qi, kt)+e}, v{TMP+qi}" for e in range(4)]
        return o + st()
    MODES = {"D": ((0, 1), (0, 1), (0, 1)), "T1": ((0,), (0, 1), (0, 1)), "T2": ((0,), (0,), (0, 1)),
             "S": ((0,), (0,), (0,)), "F1": ((), (0,), (0,)), "F2": ((), (), (0,))}
    def iteration(mode, par, last=False, tail=(), xlds=(), xvm=(), xseq=False):
        gq, gs, gp = MODES[mode]
        m1 = qk(par, gq); m2 = pv(par, gp)
        sl = [Slot(m) for m, _ in m1 + m2]; n1 = len(m1); n2 = len(m2); n = n1 + n2
        ex, cv = softmax(1 - par, gs)
        free = [8]*n; pre = []
        epos = [min(n - 2, 1 + (k*(n - 1))//len(ex)) for k in range(len(ex))] if ex else []
        for k, x in enumerate(ex): sl[epos[k]].alu.append(I(x)); free[epos[k]] -= 8
        def place(x, lo, hi=None, mem=False, after=None):
            hi = n - 1 if hi is None else min(hi, n - 1); lo = min(lo, hi)
            c = [i for i in range(lo, hi + 1) if free[i] >= 4]
            i = c[0] if c else max(range(lo, hi + 1), key=lambda k: (free[k], -k))
            (sl[i].mem if mem else sl[i].alu).append(x); free[i] -= 4
            return i
        first = lambda ms, f: next(i for i, (_, g) in enumerate(ms) if g == f)
        for k, x in enumerate(cv): place(I(x), epos[2*k+1] + 1)
        vrd = v_reads(par*8192)
        DE = "dlate" not in env["opt"] and n1 == 16 and not last
        if DE:
            dm = kv_dma("K" if par == 0 else "V", "d")
            i = place(dm[0], 0, 0)
            for k, g in enumerate(dm[1:5]): i = place(g, 2 + 4*k, 2 + 4*k, mem=True)
            place(dm[5], i, i + 4)
        if n1:
            i = 0
            for k, r in enumerate(vrd): i = place(r, max(i, k*(n1*int(env['OV']('vs', 5))//8)//8), n1 - 2, mem=True)
            place(W(lg=[("k", 7)]), max(0, first(m1, 4) - 3), first(m1, 4) - 1)
            place(W(lg=[("v", 3)]), n1 - 3, n1 - 1)
        else: pre += vrd + [W(lg=[("v", 3)])]
        wv = n1 + first(m2, 4) - 1
        if last:
            place(W(lg=[("v", 7)]), wv - 2, wv); i = 0
            for k, g in enumerate(xvm): i = place(flat(g), max(k*(n - 1)//len(xvm), i + 1 if k else 0), n - 1, mem=True)
        else:
            if par == 0:
                place(W(lg=[("v", 7)]), wv - 2, wv); b = n1; krd = k_reads(8192)
            else:
                b = n1 + max(1, n2*int(env['OV']('bo', 2))//18)
                while free[b] < 8 and b < wv: b += 1
                sl[b].alu += flat([W(lg=[("v", 7)], vm="*16"), "s_barrier"]); free[b] -= 8
                i = b
                for x in (f"v_mov_b32 v{vVB}, v{vKB}", f"v_add_u32 v{vKB}, 0x8000, v{vKB}", f"v_and_b32 v{vKB}, 0x1ffff, v{vKB}"):
                    i = place(I(x), max(n1 - 1, b - 4) if i == b else i, b - 1) if n1 else (pre.append(I(x)) or 0)
                b += 1; krd = k_reads(0)
            i = b
            for k, r in enumerate(krd): i = place(r, max(i, b + k*((n - b)*int(env['OV']('ks', 5))//8)//8), n - 2, mem=True)
            dm = kv_dma("K" if par == 0 else "V", "d")
            hi = (n//3 if xseq else n - 2) if par == 0 else b - 2
            i = 2
            for k, x in enumerate(xlds): i = place(x, max(i, 2 + k*(n - 8)//len(xlds)), n - 4, mem=True)
            if DE: pass
            elif hi < 8: pre += dm
            else:
                i = place(dm[0], 0, hi)
                for k, g in enumerate(dm[1:5]): i = place(g, max(i + 1, 2 + k*(hi - 2)//4), hi, mem=True)
                i = place(dm[5], i, hi)
            lo = i + 1 if xseq else 1
            for k, g in enumerate(xvm):
                t_ = max(lo + k*(n - 2 - lo)//len(xvm), i + 1 if k else 0)
                i = place(flat(g), t_, min(t_ + 2, n - 2), mem=True)
                free[i] -= 4*(len(flat(g)) - 1)
            place(W(lg=[("k", 3)]), n - 1)
        for x in tail: place(I(x), n - 3)
        env.setdefault("over", []).append((mode, par, n, sum(-f for f in free if f < 0), sum(f for f in free if f > 0)))
        return pre + emit_slots(sl)
    def epilogue(g, tsets, psets, rc):
        r = [f"v_rcp_f32 v{rc+k}, v{LS+4*qi}" for k, qi in enumerate(GQ[g])]
        n = 0
        for k, qi in enumerate(GQ[g]):
            for s4 in range(4):
                t = tsets[n % len(tsets)]; p = psets[n % len(psets)]; n += 1
                for h in range(2): r += [f"v_accvgpr_read_b32 v{t+4*h+e}, a{((2*s4+h)*4+qi)*4+e}" for e in range(4)]
                r += [f"v_pk_mul_f32 {vr(t+2*e, 2)}, {vr(t+2*e, 2)}, {vr(rc, 2)} op_sel:[0,{k}] op_sel_hi:[1,{k}]" for e in range(4)]
                r += [f"v_cvt_pk_bf16_f32 v{p+e}, v{t+2*e}, v{t+2*e+1}" for e in range(4)]
                r += [VM(f"buffer_store_dwordx4 {vr(p, 4)}, v{vL16}, {WS}, s{sCT+qi} offen offset:{s4*1024} sc1", "ctx")]
        return r
    epi_short = lambda: epilogue(1, [CB+16], [PB+8, PB+12], CB+28)
    epi_long = lambda: epilogue(0, [TMP], [TMP+8, TMP+12], TMP+24) + ([] if "epiend" not in env["opt"] else epi_short())
    def code_touch(a, b):
        env["npc"] = env.get("npc", 0) + 1; l = f"Lpc{env['npc']}_{N}"
        return ["s_getpc_b64 s[40:41]", f"{l}:", f"s_add_u32 s40, s40, {a}-{l}", "s_addc_u32 s41, s41, 0", f"s_mov_b32 s42, {b}-{a}", "s_mov_b32 s43, 0x20000",
                f"s_lshl_b32 s{sT0}, s{sW}, 13", f"v_lshlrev_b32 v{TMP+10}, 7, v0", VM(f"buffer_load_dword v{TMP+11}, v{TMP+10}, s[40:43], s{sT0} offen", "code")]
    sWB, sCTL, sML, sROT = 82, 80, 81, 91
    ROT = env["ROT"] = not env["XL"] and "norot" not in env["opt"]
    CTL = f"s_lshr_b32 s{sCTL}, s2, 5" if env["XL"] else f"s_and_b32 s{sCTL}, s2, 1\ns_lshl_b32 s{sCTL}, s{sCTL}, 2\ns_bfe_u32 s{sT0}, s2, 0x20003\ns_add_u32 s{sCTL}, s{sCTL}, s{sT0}"
    def wreg(i, t):
        i %= 16
        if i < 8: return (192 + 16*i if i < 4 else 64 + 16*i) + 4*t
        return ((2*(i & 3) + (t >> 1))*4 + (2 if i < 12 else 0) + (t & 1))*4
    def w_step(i, lds=None):
        if lds is None: g = [[VM(f"buffer_load_dwordx4 {ar(wreg(i, t), 4)}, v{vL16}, {WS}, s{sT1} offen offset:{t*1024} sc1", ("cw", i))] for t in range(4)]
        else: g = [[VM(f"buffer_load_dwordx4 v{vL16}, {WS}, s{sT1} offen offset:{t*1024} sc1 lds", ("cw", i))] for t in range(4)]
        off = [f"s_add_u32 s{sT1}, s{sROT}, {i*4096}", f"s_and_b32 s{sT1}, s{sT1}, 0x1ffff", f"s_add_u32 s{sT1}, s{sT1}, s{sWB}"] if ROT else [f"s_add_u32 s{sT1}, s{sWB}, {i*4096}"]
        g[0] = ([] if lds is None else [f"s_add_u32 m0, {lds}"]) + off + g[0]
        return SEQ(g)
    EW = "noew" not in env["opt"]; XS = env["XS"] = "noxs" not in env["opt"] and upto >= 3
    def early_w(force=False): return [] if not (EW or force) else sum((w_step(i) for i in range(4)), []) + w_step(16, f"s{sML}, 0") + w_step(17, f"s{sML}, 4096") if upto >= 3 else []
    def early_ep(): return [[VM(f"buffer_load_dwordx2 {vr(CB+16+2*t, 2)}, v{TMP+12}, s[16:19], s79 offen offset:{t*32}")] for t in range(4)] + \
                           [[VM(f"buffer_load_dword v{CB+24+k}, v{TMP+13}, {WS}, s83 offen offset:{k*2048 if k < 2 else 0} sc1")] + ([f"s_add_u32 s83, s83, 4096"] if k == 1 else []) for k in range(3)]
    def ep_addr():
        assert env["XL"]
        return srd(16, env["pX"], 2*MB) + [f"""
        s_and_b32 s79, s2, 7
        s_lshl_b32 s79, s79, 2
        s_bfe_u32 s{sT0}, s2, 0x20003
        s_add_u32 s79, s79, s{sT0}
        s_lshl_b32 s79, s79, 2
        s_add_u32 s79, s79, s{sW}
        s_lshl_b32 s79, s79, 14
        s_lshl_b32 s{sT0}, s{sCTL}, 7
        s_add_u32 s79, s79, s{sT0}
        s_mul_i32 s83, s{env['sJ']}, 12288
        s_lshl_b32 s{sT0}, s{sCTL}, 8
        s_add_u32 s83, s83, s{sT0}
        s_add_u32 s83, s83, {WS_MODF + 2*2048}
        v_lshrrev_b32 v{TMP+13}, 4, v0
        v_and_b32 v{TMP+12}, 15, v0
        v_lshlrev_b32 v{TMP+12}, 10, v{TMP+12}
        v_lshl_add_u32 v{TMP+12}, v{TMP+13}, 3, v{TMP+12}
        v_lshlrev_b32 v{TMP+13}, 2, v0
        """]
    env["wreg"] = wreg; env["w_step"] = w_step
    sld = f"buffer_load_dwordx2 {vr(TMP+8, 2)}, v{TMP+10}, {WS}, s{sFL} offen sc1"
    KT = [("k", i) for i in range(8)]
    def region(items): return resolve_waits(flat(items), pre_lg=KT)
    def side_period(rnd):
        st_ = env["side_stores"](rnd); st_[0] = [W(lg="ur")] + st_[0]
        return region([iteration("D", 0, xlds=env["side_reads"]()), iteration("D", 1, xvm=st_)])
    def loop(mode, lbl, cuts=False):
        r = flat([f"{lbl}_go:", f"s_sub_u32 s{sCNT}, s{sCNT}, 1", f"s_cbranch_scc1 {lbl}_done", ".p2align 6", f"{lbl}:"])
        r += region([iteration(mode, 0), iteration(mode, 1, tail=[f"s_sub_u32 s{sCNT}, s{sCNT}, 1"])]) + flat([f"s_cbranch_scc0 {lbl}"])
        if cuts == "poll":
            r += flat(["s_sub_u32 s1, s1, 1", f"s_cbranch_scc1 {lbl}_done", sld, f"s_mov_b32 s{sCNT}, {1 if XS else 2}", f"s_branch {lbl}_go"])
        elif cuts:
            r += flat(["s_sub_u32 s1, s1, 1", f"s_cbranch_scc1 {lbl}_done", "s_cmp_eq_u32 s1, 0", f"s_cbranch_scc1 {lbl}_pub"]) + side_period(1)
            r += flat([f"s_mov_b32 s{sCNT}, 2", f"s_branch {lbl}_go", f"{lbl}_pub:",
                       f"s_lshl_b32 s{sFL}, s2, 2", f"s_add_u32 s{sFL}, s{sFL}, {WS_FLAG + env['SF']}", f"s_cmp_eq_u32 s{sW}, 0",
                       f"s_cselect_b32 s{sFL}, s{sFL}, {OOB:#x}", [x if isinstance(x, str) else x.t for x in env["publish"](TMP+8, sFL)],
                       f"s_mov_b32 s{sCNT}, s0", f"s_branch {lbl}_go"])
        return r + flat([f"{lbl}_done:"])
    o = flat([f"""
    s_waitcnt lgkmcnt(4)
    s_and_b32 s{sODW}, s{sW}, 1
    s_sub_u32 s{sCNT}, s{sUS}, 1
    s_ashr_i32 s{sCNT}, s{sCNT}, 1
    s_sub_u32 s{sCNT}, s{sCNT}, s{sODW}
    s_max_i32 s{sCNT}, s{sCNT}, 0
    s_mov_b32 s1, 0
    s_cmp_lt_u32 s2, 128
    s_cbranch_scc1 Ldd_{N}_go
    s_mov_b32 s1, 2
    s_sub_u32 s0, s{sCNT}, 7
    s_mov_b32 s{sCNT}, 2
    """]) + side_period(0) + region([iteration("D", 0, xvm=env["side_dma"](1), xseq=True), iteration("D", 1)]) + loop("D", f"Ldd_{N}", True)
    o += flat([f"s_bitcmp1_b32 s{sW}, 0", f"s_cbranch_scc1 Lodd1_{N}", f"s_cmp_eq_u32 s{sUS}, 0", f"s_cbranch_scc1 Lt2s_{N}", mask(1), "s_nop 1"])
    o += region([iteration("D", 0), iteration("T1", 1)])
    o += flat([f"Lt2s_{N}:"]) + region([iteration("T2", 0), iteration("S", 1)])
    o += flat([f"s_branch Lss_entry_{N}", f"Lodd1_{N}:", f"s_cmp_eq_u32 s{sUS}, 1", f"s_cbranch_scc1 Lt12_{N}"])
    o += region([iteration("D", 0), mask(1), "s_nop 0", iteration("D", 1)])
    o += flat([f"Lt12_{N}:"]) + region([iteration("T1", 0), iteration("T2", 1)])
    o += flat([f"Lss_entry_{N}:", f"v_lshlrev_b32 v{TMP+10}, 3, v0", f"s_mov_b32 s{sFL}, {WS_FLAG + env['SF'] + 512}", sld] + (["s_nop 7"] + epi_short() if "epiend" not in env["opt"] else []) + [f"""
    s_sub_u32 s{sCNT}, s{sUL}, s{sUS}
    s_lshr_b32 s{sCNT}, s{sCNT}, 1
    s_sub_u32 s{sCNT}, s{sCNT}, 2
    s_cmp_ge_u32 s{sCNT}, 4
    s_cselect_b32 s1, 1, 0
    s_mov_b32 s0, s1
    s_mul_i32 s{sT0}, s1, {3 if XS else 2}
    s_sub_u32 s{sCNT}, s{sCNT}, s{sT0}
    """]) + loop("S", f"Lss_{N}", "poll")
    o += resolve_waits([VM("s_nop 0", "p5")] + [VM("s_nop 0")]*0 + env["check"](sld, [f"v_and_b32 v{TMP+8}, v{TMP+8}, v{TMP+9}", f"v_cmp_ne_u32 vcc, 1, v{TMP+8}"], sCNT, "*8", every=True))
    o += flat([CTL, f"s_lshl_b32 s{sWB}, s{sCTL}, 19", f"s_lshl_b32 s{sT0}, s{sW}, 17", f"s_add_u32 s{sWB}, s{sWB}, s{sT0}", f"s_add_u32 s{sWB}, s{sWB}, {WS_WOF}",
               f"s_lshl_b32 s{sROT}, s{env['sJ']}, 14", f"s_lshl_b32 s{sML}, s{sW}, 13", f"s_add_u32 s{sML}, s{sML}, 131072"] + ep_addr() +
               (env["code_part"](f"Lfin_{N}", f"Lend_{N}", 8, 40, TMP+14, I) if "noct3" not in env["opt"] else []))
    fin_ep = early_ep
    if XS:
        X2 = "x1" not in env["opt"].split()
        xl = (early_ep() if X2 else []) + sum((w_step(k) for k in range(8, 12)), []); c = (0, 4, 11, 17, 23) if X2 else (0, 4, 8, 12, 16)
        o += flat(["s_cmp_eq_u32 s0, 0", f"s_cbranch_scc1 Lxt_{N}"])
        for k in (0, 2): o += region([iteration("S", 0, xvm=xl[c[k]:c[k+1]]), iteration("S", 1, xvm=xl[c[k+1]:c[k+2]])])
        o += flat([f"s_branch Lxs_{N}", f"Lxt_{N}:", early_ep() if X2 else [], f"Lxs_{N}:"])
        if X2: fin_ep = lambda: []
    o += flat([f"s_bitcmp1_b32 s{sW}, 0", f"s_cbranch_scc1 Lodd2_{N}", mask(0), "s_nop 1"])
    ew = early_w()
    o += region([iteration("S", 0, xvm=fin_ep() + ew[:(c0 := 4 if fin_ep() else 10)]), iteration("F1", 1, xvm=ew[c0:(c1 := 12 if fin_ep() else 16)])]) + region([iteration("F2", 0, last=True, xvm=ew[c1:])])
    o += flat([f"s_branch Lfin_{N}", f"Lodd2_{N}:"]) + region([iteration("S", 0, xvm=fin_ep() + (ew := early_w())[:(c0 := 4 if fin_ep() else 8)]), mask(0), "s_nop 0", iteration("S", 1, xvm=ew[c0:16])])
    o += region([iteration("F1", 0, last=True, xvm=ew[16:20]), iteration("F2", 1, last=True, xvm=ew[20:])])
    if "over" in env["opt"].split(): print(env["over"])
    o += flat([f"Lfin_{N}:", f"s_cmp_ge_u32 s{sW}, 2", f"s_cbranch_scc1 Lepi_{N}", f"s_waitcnt vmcnt({24 if upto >= 3 and EW else 0})", "s_barrier", f"Lepi_{N}:",
               f"s_waitcnt vmcnt({24 if upto >= 3 and EW else 0})"]) + flat(st())
    o += flat([f"s_mov_b32 s{sT0}, {fbits(2.0**90)}", f"s_mov_b64 s[{sG}:{sG+1}], 0", "s_nop 5"])
    for qi in range(4): o += flat([f"v_cmp_ngt_f32 vcc, s{sT0}, v{LS+4*qi}", f"s_or_b64 s[{sG}:{sG+1}], s[{sG}:{sG+1}], vcc"])
    o += flat([f"""
    s_cmp_lg_u64 s[{sG}:{sG+1}], 0
    s_cselect_b32 s{sFL}, 1, 0
    v_mov_b32 v{TMP}, s{sFL}
    s_and_b32 s{sFL}, s{sK+2}, 0x1ffff
    s_lshl_b32 s{sT0}, s{sW}, 12
    s_add_u32 s{sT0}, s{sT0}, s{sFL}
    v_mov_b32 v{TMP+1}, s{sT0}
    ds_write_b32 v{TMP+1}, v{TMP}
    """])
    o += resolve_waits(flat([f"""
    """, epi_long(), st("T"), [] if EW else early_w(True)[:16], [w_step(i) for i in range(4, 8)] if upto >= 3 else [], W(vm="ctx"), [] if EW else early_w(True)[16:]]))
    o += flat([f"""
    v_mov_b32 v{TMP+1}, s{sFL}
    s_waitcnt lgkmcnt(0)
    s_barrier
    ds_read2st64_b32 v[{TMP+4}:{TMP+5}], v{TMP+1} offset0:0 offset1:16
    ds_read2st64_b32 v[{TMP+6}:{TMP+7}], v{TMP+1} offset0:32 offset1:48
    s_waitcnt lgkmcnt(0)
    v_or3_b32 v{TMP}, v{TMP+4}, v{TMP+5}, v{TMP+6}
    v_or_b32 v{TMP}, v{TMP}, v{TMP+7}
    v_readfirstlane_b32 s{sFL}, v{TMP}
    s_cmp_lg_u32 s{sFL}, 0
    s_cbranch_scc1 Lfallback_{N}
    Lnorm_{N}:
    """]) + flat(st("T"))
    MR = TMP + 16
    fb = [f"Lfallback_{N}:", "s_waitcnt vmcnt(0)", "s_mov_b32 s0, 0"] + [f"v_accvgpr_write_b32 a{r}, 0" for r in range(128)] + [f"v_mov_b32 v{LS+r}, 0" for r in range(16)]
    fb += [f"v_mov_b32 v{MR+qi}, {NINF}" for qi in range(4)]
    fb += [f"s_mov_b32 s{sCNT}, 0", f"s_lshr_b32 s{sODW}, s{sK+2}, 14", f"v_mov_b32 v{vKB}, v{vL16}", f"v_mov_b32 v{vVB}, v{vL16}", f"Lfb_{N}:", "s_barrier",
           f"s_lshr_b32 s{sKO}, s{sCNT}, 1", f"s_lshl_b32 s{sKO}, s{sKO}, 15", f"s_and_b32 s{sT0}, s{sCNT}, 1", f"s_lshl_b32 s{sT0}, s{sT0}, 13",
           f"s_add_u32 s{sKO}, s{sKO}, s{sT0}", f"s_lshl_b32 s{sT0}, s{sW}, 11", f"s_add_u32 s{sKO}, s{sKO}, s{sT0}", f"s_mov_b32 m0, s{sT0}", f"s_add_u32 s{sT0}, s{sT0}, 16384",
           f"buffer_load_dwordx4 v{vL16}, s[{sK}:{sK+3}], s{sKO} offen sc1 lds", f"buffer_load_dwordx4 v{vL16}, s[{sK}:{sK+3}], s{sKO} offen offset:1024 sc1 lds",
           f"s_mov_b32 m0, s{sT0}", f"s_add_u32 s{sKO}, s{sKO}, 16384",
           f"buffer_load_dwordx4 v{vL16}, s[{sK}:{sK+3}], s{sKO} offen sc1 lds", f"buffer_load_dwordx4 v{vL16}, s[{sK}:{sK+3}], s{sKO} offen offset:1024 sc1 lds",
           "s_waitcnt vmcnt(0)", "s_barrier"]
    fb += [x.t for x in k_reads(0) + v_reads(0)] + ["s_waitcnt lgkmcnt(0)"]
    for g, su in ((0, sUL), (1, sUS)):
        fb += [f"s_cmp_gt_u32 s{sCNT}, s{su}", f"s_cbranch_scc1 Lfbs{g}_{N}"]
        fb += [f"v_mov_b32 v{C(qi, kt)+e}, 0" for qi in GQ[g] for kt in range(2) for e in range(4)]
        fb += [f"s_cmp_lg_u32 s{sCNT}, s{su}", f"s_cbranch_scc1 Lfbm{g}_{N}", mask(g), f"Lfbm{g}_{N}:", "s_nop 1"]
        fb += [m for m, _ in qk(0, (g,))] + ["s_nop 7"]
        for qi in GQ[g]:
            a, b, t = S(0, qi, 0), S(0, qi, 1), TMP
            fb += [f"v_max3_f32 v{t}, v{a}, v{a+1}, v{a+2}", f"v_max3_f32 v{t}, v{t}, v{a+3}, v{b}",
                   f"v_max3_f32 v{t}, v{t}, v{b+1}, v{b+2}", f"v_max3_f32 v{t}, v{t}, v{b+3}, v{MR+qi}"]
            for sw in ("v_permlane16_swap_b32", "v_permlane32_swap_b32"):
                fb += [f"v_mov_b32 v{t+1}, v{t}", f"{sw} v{t}, v{t+1}", f"v_max_f32 v{t}, v{t}, v{t+1}"]
            fb += [f"v_sub_f32 v{t+1}, v{MR+qi}, v{t}", f"v_exp_f32 v{t+1}, v{t+1}", f"v_mov_b32 v{MR+qi}, v{t}"]
            fb += [f"v_sub_f32 v{S(0, qi, kt)+e}, v{S(0, qi, kt)+e}, v{t}" for kt in range(2) for e in range(4)]
            fb += [f"v_mul_f32 v{LS+4*qi+e}, v{t+1}, v{LS+4*qi+e}" for e in range(4)]
            for tt in range(8):
                a0 = (tt*4+qi)*4
                fb += [f"v_accvgpr_read_b32 v{t+4+e}, a{a0+e}" for e in range(4)]
                fb += [f"v_mul_f32 v{t+4+e}, v{t+1}, v{t+4+e}" for e in range(4)]
                fb += [f"v_accvgpr_write_b32 a{a0+e}, v{t+4+e}" for e in range(4)]
        ex, cv = softmax(0, (g,))
        fb += ex + cv + [m for m, _ in pv(0, (g,))] + ["s_nop 7", f"Lfbs{g}_{N}:"]
    fb += [f"s_add_u32 s{sCNT}, s{sCNT}, 1", f"s_cmp_lt_u32 s{sCNT}, s{sODW}", f"s_cbranch_scc1 Lfb_{N}", "s_waitcnt vmcnt(0)"] + (epi_short() if "epiend" not in env["opt"] else []) + epi_long()
    if upto >= 3: fb += [w_step(i) for i in range(4, 8)] + ep_addr() + early_ep()
    fb += ["s_waitcnt vmcnt(0)", "s_barrier", f"s_branch Lnorm_{N}"]
    env["fallback"] = flat(fb)
    return o
```

```python
from common import *
from flay import *

def tail(env, upto):
    (N, st, sW, sJ, sC, sT0, sT1, vL16, WS, pX, pB1, pB2, pOUT, flag_off, publish, check, rnd, opt) = [env[k] for k in
     "N st sW sJ sC sT0 sT1 vL16 WS pX pB1 pB2 pOUT flag_off publish check rnd opt".split()]
    sR = 12
    sA = 16
    sSUB = 20
    sK = 24
    sC0, sC1, sONE = 30, 32, 34
    sWB, sRB, sCTL, sRT, sMF, sFL, sCNT, sBLK, sN, sODD, sPAIR, sWD, sM0, sZ = 82, 79, 80, 81, 78, 83, 84, 85, 86, 87, 88, 89, 90, 40
    vG16, vRM, vP, vT = 2, 3, 4, 6
    GA, AV, BV, XR, ACC, AR = 8, 24, 40, 56, 64, 128
    RED = 114688
    o = []; XL = env['XL']; ids = [f"""
    s_and_b32 s{sT0}, s2, 7
    s_bfe_u32 s{sT1}, s2, 0x20003
    s_and_b32 s{sN}, s{sT0}, 3
    s_lshl_b32 s{sN}, s{sN}, 2
    s_add_u32 s{sN}, s{sN}, s{sT1}
    s_sub_u32 s{sBLK}, 15, s{sJ}
    s_mov_b32 s{sSUB}, 0x0f0f0f0f
    s_cmp_lt_u32 s{sT0}, 4
    s_cselect_b32 s{sBLK}, s{sJ}, s{sBLK}
    s_cselect_b32 s{sSUB}, s{sSUB}, 0xf0f0f0f0
    s_mov_b32 s{sSUB+1}, s{sSUB}
    s_bfe_u32 s{sT0}, s2, 0x10001
    s_lshl_b32 s{sRB}, s{sBLK}, 1
    s_add_u32 s{sRB}, s{sRB}, s{sT0}
    s_lshl_b32 s{sRT}, s{sRB}, 2
    s_add_u32 s{sRT}, s{sRT}, s{sW}
    """]
    HY = env['HY']; ROT = env['ROT']
    if HY: ids += [f"s_lshr_b32 s{sN}, s2, 5", f"s_lshl_b32 s{sN}, s{sN}, 1", f"s_bfe_u32 s{sT0}, s2, 0x10003", f"s_add_u32 s{sN}, s{sN}, s{sT0}"]
    ids2 = [f"""
    s_and_b32 s{sT0}, s2, 7
    s_lshl_b32 s{sRB}, s{sT0}, 2
    s_bfe_u32 s{sT1}, s2, 0x20003
    s_add_u32 s{sRB}, s{sRB}, s{sT1}
    s_lshr_b32 s{sBLK}, s{sRB}, 1
    s_lshl_b32 s{sN}, s{sCTL}, 1
    s_and_b32 s{sT1}, s{sT1}, 1
    s_add_u32 s{sN}, s{sN}, s{sT1}
    s_mov_b32 s{sSUB}, 0x33333333
    s_bitcmp0_b32 s2, 4
    s_cselect_b32 s{sSUB}, s{sSUB}, 0xcccccccc
    s_lshr_b32 s{sT0}, s2, 3
    s_bitset0_b32 s{sSUB}, s{sT0}
    s_mov_b32 s{sSUB+1}, s{sSUB}
    s_lshl_b32 s{sRT}, s{sRB}, 2
    s_add_u32 s{sRT}, s{sRT}, s{sW}
    s_sub_u32 s{sPAIR}, 15, s{sBLK}
    s_min_u32 s{sPAIR}, s{sPAIR}, s{sBLK}
    """]
    if XL: ids = ids2
    sSUBZ = 22 if HY else sSUB
    ids2 = [f"s_lshr_b32 s{sCTL}, s2, 5"] + ids2 + [f"s_mov_b32 s{sSUBZ}, 0x0f0f0f0f", f"s_cmp_lt_u32 s{sBLK}, 8", f"s_cselect_b32 s{sSUBZ}, s{sSUBZ}, 0xf0f0f0f0",
            f"s_mov_b32 s{sSUBZ+1}, s{sSUBZ}", f"s_mul_i32 s{sMF}, s{sJ}, 12288", f"s_lshl_b32 s{sT0}, s{sCTL}, 8", f"s_add_u32 s{sMF}, s{sMF}, s{sT0}",
            f"s_add_u32 s{sMF}, s{sMF}, {WS_MODF}"]
    def gemm_loads(kind):
        def w(i):
            g = []
            for t in range(4):
                x = [VM(f"buffer_load_dwordx4 {ar(env['wreg'](i, t), 4)}, v{vL16}, {WS}, s{sWB} offen offset:{t*1024} sc1", (kind + "w", i))]
                if t == 3: x.append(f"s_add_u32 s{sWB}, s{sWB}, 4096")
                g.append(x)
            return g
        def a(i):
            g = []
            for r in range(4):
                if ROT and kind == "c":
                    x = [f"s_lshl_b32 s{sCNT}, s{sJ}, 12", f"s_add_u32 s{sCNT}, s{sCNT}, {i*1024}", f"s_and_b32 s{sCNT}, s{sCNT}, 0x7fff",
                         f"v_add_u32 v{vT+1}, s{sCNT}, v{vL16}"] if r == 0 and (i & 3) == 0 else []
                    g.append(x + [VM(f"buffer_load_dwordx4 {vr(AR + (i % 8)*16 + 4*r, 4)}, v{vT+1}, {WS}, s{sA+r} offen offset:{(i & 3)*1024} sc1", (kind + "a", i))])
                    continue
                x = [VM(f"buffer_load_dwordx4 {vr(AR + (i % 8)*16 + 4*r, 4)}, v{vL16}, {WS}, s{sA+r} offen offset:{(i & 3)*1024} sc1", (kind + "a", i))]
                if (i & 3) == 3: x.append(f"s_add_u32 s{sA+r}, s{sA+r}, 4096")
                g.append(x)
            return g
        return w, a
    wreg = env["wreg"]
    NL = int(env['OV']('nl', 8))
    PD = dict(c=int(env['OV']('pdc', 4)), e=int(env['OV']('pde', 4)))
    def gemm(kind, ns, wl, al, extra):
        r = []
        for i in range(ns):
            sl = []
            for t in range(4):
                for q in range(4):
                    d = vr(ACC + (t*4+q)*4, 4)
                    sl.append(Slot(I(f"v_mfma_f32_16x16x32_bf16 {d}, {ar(wreg(i, t), 4)}, {vr(AR + (i % 8)*16 + 4*q, 4)}, {'0' if i == 0 else d}")))
            if 16 <= i < 16 + NL: sl[0].pre.append(W(vm=[(kind + "a", i)], lg=[("lw", i)]))
            else: sl[0].pre.append(W(vm=[(kind + "a", i), (kind + "w", i)]))
            ld = []
            pd = PD[kind]
            if (i >= 1 or pd < 8) and i + min(pd, 7) < ns: ld += al(i + min(pd, 7))
            if i >= 1 and i + 15 < ns:
                if i + 15 < 16 + NL: ld += [LG(f"ds_read_b128 {ar(wreg(i + 15, t), 4)}, v{vP + 1 if i < 3 else vP} offset:{((i - 1) if i < 3 else (i - 3))*4096 + t*1024}", ("lw", i + 15)) for t in range(4)]
                else: ld += wl(i + 15)
            ld += extra(i)
            for k, g in enumerate(ld): sl[k*16//len(ld)].mem.append(g)
            r += emit_slots(sl)
            if kind == "c" and i in (0, 15): r += st("T")
        return r
    def rot_rows(pitch):
        r = []
        for k in (1, 2, 3, 0):
            r += [f"s_add_u32 s{sT0}, s{sW}, {k}", f"s_and_b32 s{sT0}, s{sT0}, 3", f"s_mul_i32 s{sT0}, s{sT0}, {pitch}", f"s_add_u32 s{sA+k}, s{sA}, s{sT0}"]
        return r
    RA = {1: vP, 2: vP+1, 3: vT+1, 0: vT}
    def reduce_addr(): return [[f"s_add_u32 s{sT0}, s{sW}, {q}", f"s_and_b32 s{sT0}, s{sT0}, 3", f"s_mul_i32 s{sT0}, s{sT0}, 12288", f"s_add_u32 s{sT0}, s{sT0}, {RED}",
                                f"v_add_u32 v{RA[q]}, s{sT0}, v{vL16}"] for q in range(4)]
    def reduce_waves():
        r = []
        for q in range(1, 4):
            if q < 4: r += [LG(f"ds_write_b128 v{RA[q]}, {vr(ACC + (t*4+q)*4, 4)} offset:{(q-1)*4096 + t*1024}", "rw") for t in range(4)]
        r += [W(lg="rw"), "s_barrier"]
        for t in range(4):
            for q in range(1, 4): r += [LG(f"ds_read_b128 {vr(ACC + (t*4+q)*4, 4)}, v{vT} offset:{(q-1)*4096 + t*1024}", ("rr", t))]
        return r
    def sum4(t):
        b = ACC + t*16; r = [W(lg=[("rr", t)])]
        for h in (0, 2): r += [f"v_pk_add_f32 {vr(b+h, 2)}, {vr(b+h, 2)}, {vr(b+4+h, 2)}", f"v_pk_add_f32 {vr(b+8+h, 2)}, {vr(b+8+h, 2)}, {vr(b+12+h, 2)}"]
        for h in (0, 2): r += [f"v_pk_add_f32 {vr(b+h, 2)}, {vr(b+h, 2)}, {vr(b+8+h, 2)}"]
        return r
    def modf(dst, vec):
        return [f"s_add_u32 s{sT0}, s{sMF}, {vec*2048}"] + [VM(f"buffer_load_dwordx4 {vr(dst+4*t, 4)}, v{vG16}, {WS}, s{sT0} offen offset:{t*64} sc1", "ep") for t in range(4)]
    def prep(kind): return flag_off(sFL, kind, True) + publish(vP, sFL)[:-1]
    def sync(kind, mask, between, after=()):
        ld = f"buffer_load_dword v{vP+1}, v{vP}, {WS}, s{sFL} offen sc1"
        line = sPAIR if (XL and kind == 1) or (HY and kind == 2) else None
        return (([] if kind > 1 else prep(kind)) + publish(vP, sFL)[-1:] + (ids if kind == 1 else []) + flag_off(sFL, kind, False, line) + [f"v_and_b32 v{vP}, 31, v0", f"v_lshlrev_b32 v{vP}, 2, v{vP}"]
                + between + [VM(ld, ("poll", kind))] + list(after) + check(ld, f"v_cmp_ne_u32 vcc, 1, v{vP+1}", sCNT, [("poll", kind)], mask) + ["s_barrier"])
    wl, al = gemm_loads("c"); wl = lambda i: env["w_step"](i)
    o += st()
    btw = []; wpre = [f"s_lshl_b32 s{sM0}, s{sW}, 15"] + [env["w_step"](i) for i in range(12, 16)]
    w811 = [env["w_step"](i) for i in range(8, 12)]
    if env["XS"]: w811 = ["s_cmp_lg_u32 s0, 0", f"s_cbranch_scc1 Lw8_{N}"] + [x.t for x in flat(w811)] + [f"Lw8_{N}:"]
    wpre = wpre + w811 + [env["w_step"](i, f"s{sM0}, {(i - 18)*4096}") for i in range(18, 16 + NL)]
    btw += [f"""
    v_lshrrev_b32 v{vT}, 4, v0
    v_lshlrev_b32 v{vG16}, 4, v{vT}
    v_and_b32 v{vT+1}, 15, v0
    v_lshlrev_b32 v{vRM}, 10, v{vT+1}
    v_lshl_add_u32 v{vRM}, v{vT}, 3, v{vRM}
    s_mul_i32 s{sMF}, s{sJ}, 12288
    s_lshl_b32 s{sT0}, s{sCTL}, 8
    s_add_u32 s{sMF}, s{sMF}, s{sT0}
    s_add_u32 s{sMF}, s{sMF}, {WS_MODF}
    s_lshl_b32 s{sA}, s{sRB}, 19
    s_lshl_b32 s{sT0}, s{sW}, 15
    s_add_u32 s{sA}, s{sA}, s{sT0}
    s_add_u32 s{sA}, s{sA}, {WS_CTX}
    """] + rot_rows(131072)
    CBX = env["CB"] + 16
    aft1 = [f"v_mov_b32 v{XR+k}, v{CBX+k}" for k in range(8)]
    for dst, k in ((GA, 0), (BV, 1), (AV, 2)):
        aft1 += [LG(f"ds_bpermute_b32 v{dst+4*t+e}, v{vG16}, v{CBX+8+k} offset:{(16*t+e)*4}", "bp") for t in range(4) for e in range(4)]
    aft1 += [W(lg="bp")]
    for j in range(0, 16, 2): aft1 += [f"v_add_f32 v{AV+j}, 1.0, v{AV+j}", f"v_add_f32 v{AV+j+1}, 1.0, v{AV+j+1}"] + rnd(AV+j, AV+j+1, vT)
    o += sync(1, None, btw + wpre, aft1) + st() + st("T")
    o += [al(i) for i in range(PD["c"])] + [f"v_add_u32 v{vP}, s{sM0}, v{vL16}", f"s_lshl_b32 s{sT0}, s{sW}, 13", f"s_add_u32 s{sT0}, s{sT0}, 131072", f"v_add_u32 v{vP+1}, s{sT0}, v{vL16}"]
    def w1_dma(g):
        grp = [f"s_add_u32 m0, s{sM0}, {g*16384}", f"s_add_u32 s{sCNT}, s{sWD}, {g*16384}"]; r = []
        for n in range(4):
            grp.append(VM(f"buffer_load_dwordx4 v{vL16}, {WS}, s{sCNT} offen offset:{n*1024} sc1 lds", ("w1", g))); r.append(grp); grp = []
        return SEQ(r)
    o += [f"s_lshl_b32 s{sM0}, s{sW}, 12", f"s_mul_i32 s{sWD}, s{sN}, 114688", f"s_add_u32 s{sWD}, s{sWD}, s{sM0}", f"s_add_u32 s{sWD}, s{sWD}, {WS_W1F}"]
    NW0 = int(env["OV"]("nw0", 4)); NW1 = int(env["OV"]("nw1", 7))
    o += gemm("c", 32, wl, al, lambda i: [["s_barrier"]] + reduce_addr() if i == 20 and NL else (w1_dma(i - 32 + NW0) if i >= 32 - NW0 else []))
    w1q = sum((w1_dma(g) for g in range(NW0, NW1)), [])
    cepi = len(o) + 2
    o += st() + st("T") + reduce_waves()
    F, Z, ZP, ST = AR, AR+16, AR+32, AR+40
    for j in range(8): o += [f"v_lshlrev_b32 v{F+2*j}, 16, v{XR+j}", f"v_and_b32 v{F+2*j+1}, 0xffff0000, v{XR+j}"]
    o += [f"s_lshl_b32 s{sT0}, s{sRT}, 14", f"s_lshl_b32 s{sT1}, s{sCTL}, 11", f"s_add_u32 s{sT0}, s{sT0}, s{sT1}", f"s_add_u32 s{sFL}, s{sT0}, {WS_Z}"]
    for t in range(4):
        o += sum4(t)
        for h in (0, 2): o += [f"v_pk_fma_f32 {vr(F+4*t+h, 2)}, {vr(ACC+t*16+h, 2)}, {vr(GA+4*t+h, 2)}, {vr(F+4*t+h, 2)}"]
        for j in (2*t, 2*t+1): o += rnd(F+2*j, F+2*j+1, XR+j)
        for h in (0, 2): o += [f"v_pk_mul_f32 {vr(Z+4*t+h, 2)}, {vr(F+4*t+h, 2)}, {vr(AV+4*t+h, 2)}"]
        for j in (2*t, 2*t+1): o += [f"v_cvt_pk_bf16_f32 v{ZP+j}, v{Z+2*j}, v{Z+2*j+1}"]
        if t & 1: o += [VM(f"buffer_store_dwordx4 {vr(ZP+2*(t-1), 4)}, v{vL16}, {WS}, s{sFL} offen offset:{(t >> 1)*1024} sc1", "zst")]
    if HY:
        o += [f"s_add_u32 s{sFL}, s{sFL}, {WS_X1 - WS_Z}"]
        o += [VM(f"buffer_store_dwordx4 {vr(XR+4*p, 4)}, v{vL16}, {WS}, s{sFL} offen offset:{p*1024} sc1", "zst") for p in range(2)]
    for j in range(0, 16, 2):
        x, z, a, b = vr(F+j, 2), vr(Z+j, 2), vr(AV+j, 2), vr(BV+j, 2); S = [vr(ST+2*k, 2) for k in range(6)]
        if j == 0:
            o += [f"v_pk_add_f32 {S[0]}, {x}, {vr(F+2, 2)}", f"v_pk_mul_f32 {S[1]}, {x}, {x}", f"v_pk_add_f32 {S[2]}, {z}, {vr(Z+2, 2)}",
                  f"v_pk_mul_f32 {S[3]}, {z}, {z}", f"v_pk_mul_f32 {S[4]}, {a}, {z}", f"v_pk_mul_f32 {S[5]}, {b}, {z}"]
        else:
            if j > 2: o += [f"v_pk_add_f32 {S[0]}, {S[0]}, {x}", f"v_pk_add_f32 {S[2]}, {S[2]}, {z}"]
            o += [f"v_pk_fma_f32 {S[1]}, {x}, {x}, {S[1]}", f"v_pk_fma_f32 {S[3]}, {z}, {z}, {S[3]}",
                  f"v_pk_fma_f32 {S[4]}, {a}, {z}, {S[4]}", f"v_pk_fma_f32 {S[5]}, {b}, {z}, {S[5]}"]
    o += [f"v_add_f32 v{ST+2*k}, v{ST+2*k}, v{ST+2*k+1}" for k in range(6)]
    o += [f"v_permlane16_swap_b32 v{ST+4*k}, v{ST+4*k+2}" for k in range(3)]
    o += [f"v_add_f32 v{ST+4*k}, v{ST+4*k}, v{ST+4*k+2}" for k in range(3)]
    o += [f"v_mov_b32 v{ST+10}, v{ST+8}", f"v_permlane32_swap_b32 v{ST}, v{ST+4}", f"v_permlane32_swap_b32 v{ST+8}, v{ST+10}",
          f"v_add_f32 v{ST}, v{ST}, v{ST+4}", f"v_add_f32 v{ST+1}, v{ST+8}, v{ST+10}",
          f"s_lshl_b32 s{sT0}, s{sRT}, 12", f"s_lshr_b32 s{sT1}, s{sCTL}, 1", f"s_lshl_b32 s{sT1}, s{sT1}, 10", f"s_add_u32 s{sT0}, s{sT0}, s{sT1}",
          f"s_and_b32 s{sT1}, s{sCTL}, 1", f"s_lshl_b32 s{sT1}, s{sT1}, 3", f"s_add_u32 s{sT0}, s{sT0}, s{sT1}", f"s_add_u32 s{sT0}, s{sT0}, {WS_STAT}",
          VM(f"buffer_store_dwordx2 {vr(ST, 2)}, v{vL16}, {WS}, s{sT0} offen sc1", "zst")]
    head, epi = flat(o[:cepi]), flat(o[cepi:])
    last = next(i for i, x in enumerate(epi) if x.vm == "zst")
    for k in reversed(range(len(w1q))): epi[(k*last)//len(w1q):(k*last)//len(w1q)] = flat(w1q[k])
    o = head + epi
    PRE = [("cw", i) for i in range(12) for t in range(4)]
    if upto < 4: return resolve_waits(flat(o), pre_vm=PRE)
    DA, XA, WF, DS, CO, B1, HB = 64, 120, 128, 160, 192, 200, 216
    EARR, UVS = 114688, 114688 + 3072
    vW, vW6, vWX, vE, vU, vU6, g4, c16 = 8, 9, 10, 11, 12, 13, 14, 15
    A2, B2_, TT = 16, 24, 32
    o += [f"v_lshlrev_b32 v{vT+1}, 5, v0", f"s_mul_i32 s{sT0}, s{sJ}, 12288", f"s_add_u32 s{sT0}, s{sT0}, {WS_MODF + 3*2048}"]
    o += [VM(f"buffer_load_dwordx4 {vr(r, 4)}, v{vT+1}, {WS}, s{sT0} offen offset:{off} sc1", "ab") for r, off in ((A2, 2048), (A2+4, 2064), (B2_, 0), (B2_+4, 16))]
    wl2, al2 = gemm_loads("e")
    if HY: o += ids2
    if upto >= 5:
        o += [f"s_mul_i32 s{sWB}, s{sCTL}, {56*4096}", f"s_mul_i32 s{sT0}, s{sW}, {14*4096}", f"s_add_u32 s{sWB}, s{sWB}, s{sT0}", f"s_add_u32 s{sWB}, s{sWB}, {WS_W2F}"]
    o += prep(2) + [W(vm="zst"), "s_barrier"] + st() + st("T")
    btw = [[w1_dma(g) for g in range(NW1, 7)]] + srd(sR, pB1, 3584) + [f"""
    s_and_b32 s{sODD}, s{sN}, 1
    s_lshl_b32 s{sPAIR}, s{sBLK}, 2
    s_add_u32 s{sPAIR}, s{sPAIR}, s{sW}
    v_lshrrev_b32 v{g4}, 4, v0
    v_and_b32 v{c16}, 15, v0
    s_lshl_b32 s{sT0}, s{sODD}, 10
    v_add_u32 v{vW}, s{sT0}, v{vL16}
    s_cmp_eq_u32 s{sODD}, 0
    s_cselect_b32 s{sT0}, 6144, 0
    v_add_u32 v{vW6}, s{sT0}, v{vL16}
    s_lshl_b32 s{sT0}, s{sW}, 11
    v_add_u32 v{vWX}, s{sT0}, v{vL16}
    v_min_u32 v{vE}, 2, v{c16}
    v_lshlrev_b32 v{vE}, 10, v{vE}
    v_lshl_add_u32 v{vE}, v{g4}, 3, v{vE}
    v_add_u32 v{vE}, {EARR}, v{vE}
    v_lshlrev_b32 v{vT}, 3, v{g4}
    s_mul_i32 s{sT0}, s{sN}, 224
    s_lshl_b32 s{sT1}, s{sODD}, 5
    s_add_u32 s{sT1}, s{sT1}, s{sT0}
    """]
    btw += [VM(f"buffer_load_dwordx2 {vr(B1+2*i, 2)}, v{vT}, s[{sR}:{sR+3}], s{sT1} offen offset:{i*32}", "b1") for i in range(6)]
    btw += [f"s_cmp_eq_u32 s{sODD}, 0", f"s_cselect_b32 s{sT1}, 192, 0", f"s_add_u32 s{sT1}, s{sT1}, s{sT0}",
            VM(f"buffer_load_dwordx2 {vr(B1+12, 2)}, v{vT}, s[{sR}:{sR+3}], s{sT1} offen", "b1")]
    btw += [W(vm="ab")] + [f"v_add_f32 v{A2+j}, 1.0, v{A2+j}" for j in range(8)]
    for j in range(4):
        btw += [f"v_cvt_pk_bf16_f32 v{TT+j}, v{A2+2*j}, v{A2+2*j+1}", f"v_cvt_pk_bf16_f32 v{TT+4+j}, v{B2_+2*j}, v{B2_+2*j+1}", f"v_mov_b32 v{TT+8+j}, 0x3f803f80"]
    for j in range(4): btw += [f"v_lshlrev_b32 v{A2+2*j}, 16, v{TT+j}", f"v_and_b32 v{A2+2*j+1}, 0xffff0000, v{TT+j}"]
    btw += [f"v_add_u32 v{vT}, {EARR}, v{vL16}"] + [LG(f"ds_write_b128 v{vT}, {vr(TT+4*k, 4)} offset:{k*1024}", "ew") for k in range(3)]
    SS = TT+12
    for j in range(0, 8, 2):
        a, b = vr(A2+j, 2), vr(B2_+j, 2); S = [vr(SS+2*k, 2) for k in range(5)]
        if j == 0: btw += [f"v_pk_add_f32 {S[0]}, {a}, {vr(A2+2, 2)}", f"v_pk_mul_f32 {S[1]}, {a}, {a}", f"v_pk_mul_f32 {S[2]}, {a}, {b}",
                           f"v_pk_add_f32 {S[3]}, {b}, {vr(B2_+2, 2)}", f"v_pk_mul_f32 {S[4]}, {b}, {b}"]
        else:
            if j > 2: btw += [f"v_pk_add_f32 {S[0]}, {S[0]}, {a}", f"v_pk_add_f32 {S[3]}, {S[3]}, {b}"]
            btw += [f"v_pk_fma_f32 {S[1]}, {a}, {a}, {S[1]}", f"v_pk_fma_f32 {S[2]}, {a}, {b}, {S[2]}", f"v_pk_fma_f32 {S[4]}, {b}, {b}, {S[4]}"]
    btw += [f"v_add_f32 v{SS+2*k}, v{SS+2*k}, v{SS+2*k+1}" for k in range(5)]
    for m in ("quad_perm:[1,0,3,2]", "quad_perm:[2,3,0,1]", "row_ror:4", "row_ror:8"):
        btw += [f"v_add_f32_dpp v{SS+2*k}, v{SS+2*k}, v{SS+2*k} {m} row_mask:0xf bank_mask:0xf" for k in range(5)]
    for sw in ("v_permlane16_swap_b32", "v_permlane32_swap_b32"):
        btw += [f"v_mov_b32 v{SS+2*k+1}, v{SS+2*k}" for k in range(5)] + [f"{sw} v{SS+2*k}, v{SS+2*k+1}" for k in range(5)]
        btw += [f"v_add_f32 v{SS+2*k}, v{SS+2*k}, v{SS+2*k+1}" for k in range(5)]
    btw += [f"v_readfirstlane_b32 s{sK+k}, v{SS+2*k}" for k in range(5)]
    c0 = -2*0.7978845608028654*1.4426950408889634
    btw += [f"s_mov_b32 s{sC0}, {fbits(c0)}", f"s_mov_b32 s{sC0+1}, s{sC0}", f"s_mov_b32 s{sC1}, {fbits(c0*0.044715)}", f"s_mov_b32 s{sC1+1}, s{sC1}",
            f"s_mov_b32 s{sONE}, 1.0", f"s_mov_b32 s{sONE+1}, 1.0",
            f"s_lshl_b32 s{sZ}, s{sPAIR}, 15", f"s_add_u32 s{sZ}, s{sZ}, {WS_Z}", f"s_add_u32 s{sZ+1}, s{sZ}, 16384",
            f"s_lshl_b32 s{sZ+2}, s{sPAIR}, 13", f"s_add_u32 s{sZ+2}, s{sZ+2}, {WS_STAT}", f"s_add_u32 s{sZ+3}, s{sZ+2}, 4096"]
    btw += [W(vm=[("w1", 6)], lg="ew"), "s_barrier"]
    def xr(s):
        b = WF + (s % 3)*12
        return ([f"v_add_u32 v{vWX}, 57344, v{vWX}"] if s == 8 else []) + \
               [LG(f"ds_read_b128 {vr(b+4*k, 4)}, v{vWX} offset:{(s & 7)*7168 + k*1024}", ("x", s)) for k in range(2)] + \
               [LG(f"ds_read_b64 {vr(b+8+2*hh, 2)}, v{vE} offset:{s*64 + hh*32}", ("x", s)) for hh in range(2)]
    NE2 = int(env['OV']('ne2', 4)); aft = []
    early2 = sum((wl2(i) for i in range(NE2)), []) if upto >= 5 else []
    NB2 = int(env['OV']('nb2', 2))
    k_ = next(i for i, x in enumerate(btw) if isinstance(x, It) and x.wvm == "ab")
    btw[k_:k_] = early2[:4*NB2]; early2 = early2[4*NB2:]
    aft += xr(0) + xr(1)
    for s in range(16):
        b = WF + (s % 3)*12
        aft += [W(lg=[("x", s)])] + [f"v_mfma_f32_16x16x32_bf16 {vr(XA+4*k, 4)}, {vr(b+4*k, 4)}, {vr(b+8, 4)}, {'0' if s == 0 else vr(XA+4*k, 4)}" for k in range(2)]
        if s + 2 < 16: aft += xr(s + 2)
        if s % 2 and early2: aft += early2.pop(0)
    aft += [f"v_lshlrev_b32 v{vT}, 9, v{c16}", f"v_lshl_add_u32 v{vT}, v{g4}, 4, v{vT}", f"s_lshl_b32 s{sT0}, s{sW}, 7", f"s_add_u32 s{sT0}, s{sT0}, {UVS}",
            f"v_add_u32 v{vT}, s{sT0}, v{vT}", f"v_lshlrev_b32 v{vU6}, 4, v{g4}", f"s_lshl_b32 s{sT0}, s{sODD}, 6", f"s_add_u32 s{sT0}, s{sT0}, {UVS}",
            f"v_add_u32 v{vU}, s{sT0}, v{vU6}", f"s_cmp_eq_u32 s{sODD}, 0", f"s_cselect_b32 s{sT0}, 384, 0", f"s_add_u32 s{sT0}, s{sT0}, {UVS}",
            f"v_add_u32 v{vU6}, s{sT0}, v{vU6}"]
    aft += [LG(f"ds_write_b128 v{vT}, {vr(XA+4*k, 4)} offset:{k*64}", "uw") for k in range(2)] + [f"v_lshlrev_b32 v{vT+1}, 3, v0", W(lg="uw")]
    o += sync(2, sSUBZ, btw, aft) + st() + st("T")
    def Zf(s, r): return ar((s*2+r)*4, 4)
    def z_ld(s):
        g = []
        for r in range(2):
            x = [VM(f"buffer_load_dwordx4 {Zf(s, r)}, v{vL16}, {WS}, s{sZ+r} offen offset:{(s & 3)*1024} sc1", ("z", s))]
            if (s & 3) == 3: x.append(f"s_add_u32 s{sZ+r}, s{sZ+r}, 4096")
            g.append(x)
        return g
    o += [z_ld(s) for s in range(4)]
    stat = [VM(f"buffer_load_dwordx4 {vr(DS + r*16 + 4*c2, 4)}, v{vL16}, {WS}, s{sZ+2+r} offen offset:{c2*1024} sc1", "stat") for r in range(2) for c2 in range(4)]
    LA = 4
    frags = [(s, i) for s in range(16) for i in range(7)]; slots = []
    for f, (s, i) in enumerate(frags):
        for r in range(2):
            d = vr(DA + (i*2+r)*4, 4)
            slots.append(Slot(I(f"v_mfma_f32_16x16x32_bf16 {d}, {vr(WF + (f % 8)*4, 4)}, {Zf(s, r)}, {'0' if s == 0 else d}")))
        if f % 2 == 0: slots[2*f].pre.append(W(lg=[("wf", f+1)]))
        if i == 0: slots[2*f].pre.append(W(vm=[("z", s)]))
    def rd(f):
        s, i = frags[f]
        g = [f"v_add_u32 v{vW}, 57344, v{vW}", f"v_add_u32 v{vW6}, 57344, v{vW6}"] if (s, i) == (8, 0) else []
        return g, LG(f"ds_read_b128 {vr(WF + (f % 8)*4, 4)}, v{vW if i < 6 else vW6} offset:{(s & 7)*7168 + (i*1024 if i < 6 else 0)}", ("wf", f))
    for f in range(LA): o += [rd(f)[1]]
    for f in range(LA, len(frags)):
        g, x = rd(f); i = 2*(f - LA)
        if g: slots[i-1].alu += flat(g)
        slots[i].mem.append(x)
    GB, B2 = 16, 32
    ld = sum((z_ld(s) for s in range(4, 16)), []) + stat
    ZP_ = float(env["OV"]("zp", 3))
    ld = ld[:8] + stat + ld[8:24] if "statlate" not in opt else ld
    for k, g in enumerate(ld): slots[1 + 2*int(k*ZP_/2)].mem.append(g)
    if upto >= 5:
        NM2 = int(env['OV']('nm2', 8))
        for k, g in enumerate(early2 + sum((wl2(i) for i in range(NE2, NM2)), [])): slots[int(env["OV"]("m2s", 101)) + int(env["OV"]("m2d", 5))*k].mem.append(g)
        ep = flat(srd(sR, pB2, 1024) + [f"v_lshlrev_b32 v{vT}, 3, v{g4}", modf(GB, 5), f"s_lshl_b32 s{sT0}, s{sCTL}, 7"] +
                  [VM(f"buffer_load_dwordx2 {vr(B2+2*t, 2)}, v{vT}, s[{sR}:{sR+3}], s{sT0} offen offset:{t*32}", "ep") for t in range(4)])
        if HY: ep += flat([f"s_lshl_b32 s{sT0}, s{sRT}, 14", f"s_lshl_b32 s{sT1}, s{sCTL}, 11", f"s_add_u32 s{sT0}, s{sT0}, s{sT1}", f"s_add_u32 s{sT0}, s{sT0}, {WS_X1}"] +
                          [VM(f"buffer_load_dwordx4 {vr(XR+4*p, 4)}, v{vL16}, {WS}, s{sT0} offen offset:{p*1024} sc1", "ep") for p in range(2)])
        for k, g in enumerate(ep): slots[int(env["OV"]("eps", 189)) + 2*k].mem.append(g)
    bg = []
    for r in range(2):
        b = DS + r*16
        for ct in range(1, 8): bg += [f"v_add_f32 v{b}, v{b}, v{b+2*ct}", f"v_add_f32 v{b+1}, v{b+1}, v{b+2*ct+1}"]
        S1, S5, S2, S3, S4, S6, M1, R1, T0, T1, T2 = b, b+1, b+2, b+3, b+4, b+5, b+6, b+7, b+8, b+9, b+10
        bg += [f"v_mov_b32 v{S2}, v{S1}", f"v_mov_b32 v{S6}, v{S5}", f"v_permlane16_swap_b32 v{S1}, v{S2}", f"v_permlane16_swap_b32 v{S5}, v{S6}",
               f"v_mov_b32 v{S3}, v{S1}", f"v_mov_b32 v{S4}, v{S2}", f"v_permlane32_swap_b32 v{S1}, v{S3}", f"v_permlane32_swap_b32 v{S2}, v{S4}"]
        n = fbits(1/512); al_, be, ga, de = CO+4*r, CO+4*r+1, CO+4*r+2, CO+4*r+3
        bg += [f"v_mul_f32 v{M1}, {n}, v{S1}",
               f"v_mul_f32 v{T0}, {n}, v{S2}", f"v_fma_f32 v{T0}, -v{M1}, v{M1}, v{T0}", f"v_add_f32 v{T0}, {fbits(EPS)}, v{T0}", f"v_rsq_f32 v{R1}, v{T0}",
               f"v_fma_f32 v{T0}, -v{M1}, s{sK}, v{S3}",
               f"v_mul_f32 v{T1}, s{sK+1}, v{M1}", f"v_fma_f32 v{T1}, -2.0, v{S5}, v{T1}", f"v_fma_f32 v{T1}, v{T1}, v{M1}, v{S4}",
               f"v_fma_f32 v{T2}, -v{M1}, s{sK+2}, v{S6}",
               f"v_fma_f32 v{T0}, v{T0}, v{R1}, s{sK+3}", f"v_mul_f32 v{T0}, {n}, v{T0}",
               f"v_mul_f32 v{T1}, v{T1}, v{R1}", f"v_fma_f32 v{T1}, 2.0, v{T2}, v{T1}", f"v_fma_f32 v{T1}, v{T1}, v{R1}, s{sK+4}",
               f"v_mul_f32 v{T1}, {n}, v{T1}", f"v_fma_f32 v{T1}, -v{T0}, v{T0}, v{T1}", f"v_add_f32 v{T1}, {fbits(EPS)}, v{T1}", f"v_rsq_f32 v{ga}, v{T1}",
               f"v_mul_f32 v{M1}, -1.0, v{M1}", f"v_mul_f32 v{al_}, v{R1}, v{ga}", f"v_mul_f32 v{de}, v{T0}, v{ga}", f"v_mul_f32 v{be}, v{M1}, v{al_}",
               f"v_mul_f32 v{de}, -1.0, v{de}"]
    bg[0] = [W(vm="stat"), bg[0]]
    spread(slots, bg, int(env["OV"]("bgs", 90)), 222)
    if "nodpack" not in opt: pack_slots(slots)
    slots[14].alu += st("T")
    o += emit_slots(slots) + st() + st("T")
    U = [128, 140, 152]; BB, G = 164, 168
    def uvs(n): return [LG(f"ds_read_b128 {vr(U[n % 3]+4*k, 4)}, v{vU if n else vU6} offset:{k*512 + ((n-1)*64 if n else 0)}", ("u", n)) for k in range(3)]
    late = sum((wl2(i) for i in range(NM2, 14)), []) if upto >= 5 else []
    sHF, sHH = sZ, sZ+2
    order = (6, 0, 1, 2, 3, 4, 5)
    o += uvs(0) + uvs(1) + [W(vm="b1"), f"v_mov_b32 v{BB+12}, s{sC0}", f"v_mov_b32 v{BB+13}, s{sC0}", f"""
    s_mul_i32 s{sT0}, s{sPAIR}, {2*57344}
    s_add_u32 s{sT0}, s{sT0}, {WS_H1}
    s_mul_i32 s{sT1}, s{sN}, 7
    s_add_u32 s{sT1}, s{sT1}, s{sODD}
    s_lshl_b32 s{sT1}, s{sT1}, 9
    s_add_u32 s{sHF}, s{sT0}, s{sT1}
    s_add_u32 s{sHF+1}, s{sHF}, 57344
    s_or_b32 s{sT1}, s{sN}, 1
    s_mul_i32 s{sT1}, s{sT1}, 7
    s_sub_u32 s{sT1}, s{sT1}, 1
    s_lshl_b32 s{sT1}, s{sT1}, 9
    s_add_u32 s{sHH}, s{sT0}, s{sT1}
    s_lshl_b32 s{sT1}, s{sODD}, 3
    s_add_u32 s{sHH}, s{sHH}, s{sT1}
    s_add_u32 s{sHH+1}, s{sHH}, 57344
    """]
    depi = []
    for n, i in enumerate(order):
        if n + 2 < 7: depi += uvs(n+2)
        depi += [f"v_lshlrev_b32 v{BB}, 16, v{B1+2*i}", f"v_and_b32 v{BB+1}, 0xffff0000, v{B1+2*i}",
                 f"v_lshlrev_b32 v{BB+2}, 16, v{B1+2*i+1}", f"v_and_b32 v{BB+3}, 0xffff0000, v{B1+2*i+1}", W(lg=[("u", n)])]
        u = U[n % 3]; cells = [(r, h) for r in range(2) for h in (0, 2)]
        Xv = lambda r, h: vr(DA + (i*2+r)*4 + h, 2)
        T = lambda r, h: vr(G + r*4 + h, 2)
        lo, hi = "op_sel:[0,0,0] op_sel_hi:[1,0,1]", "op_sel:[0,1,0] op_sel_hi:[1,1,1]"
        for r, h in cells: depi += [f"v_pk_fma_f32 {T(r,h)}, {vr(u+8+h,2)}, {vr(CO+4*r+2,2)}, {vr(BB+h,2)} {hi}"]
        for r, h in cells: depi += [f"v_pk_fma_f32 {T(r,h)}, {vr(u+4+h,2)}, {vr(CO+4*r+2,2)}, {T(r,h)} {lo}"]
        for r, h in cells: depi += [f"v_pk_fma_f32 {T(r,h)}, {vr(u+h,2)}, {vr(CO+4*r,2)}, {T(r,h)} {hi}"]
        for r, h in cells: depi += [f"v_pk_fma_f32 {Xv(r,h)}, {Xv(r,h)}, {vr(CO+4*r,2)}, {T(r,h)} {lo}"]
        for r, h in cells: depi += [f"v_pk_mul_f32 {T(r,h)}, {Xv(r,h)}, {Xv(r,h)}"]
        for r, h in cells: depi += [f"v_pk_fma_f32 {T(r,h)}, {T(r,h)}, s[{sC1}:{sC1+1}], {vr(BB+12,2)}"]
        for r, h in cells: depi += [f"v_pk_mul_f32 {T(r,h)}, {T(r,h)}, {Xv(r,h)}"]
        depi += [f"v_exp_f32 v{G+k}, v{G+k}" for k in range(8)]
        for r, h in cells: depi += [f"v_pk_add_f32 {T(r,h)}, {T(r,h)}, s[{sONE}:{sONE+1}]"]
        depi += [f"v_rcp_f32 v{G+k}, v{G+k}" for k in range(8)]
        for r, h in cells: depi += [f"v_pk_mul_f32 {Xv(r,h)}, {Xv(r,h)}, {T(r,h)}"]
        for r, h in cells:
            a = DA + (i*2+r)*4 + h
            depi += [f"v_cvt_pk_bf16_f32 v{HB + ((3*r + i//2)*4 + (i & 1)*2 if i < 6 else 24 + 2*r) + h//2}, v{a}, v{a+1}"]
        if i < 6 and i & 1:
            depi += [VM(f"buffer_store_dwordx4 {vr(HB+4*(3*r + i//2), 4)}, v{vL16}, {WS}, s{sHF+r} offen offset:{(i//2)*1024} sc1", "hst2") for r in range(2)]
        if i == 6:
            depi += [VM(f"buffer_store_dwordx2 {vr(HB+24+2*r, 2)}, v{vL16}, {WS}, s{sHH+r} offen sc1", "hst2") for r in range(2)]
    depi = flat(depi); NL2 = min(len(late), int(env['OV']('nl2', 4))); span = len(depi)*6//7
    for k in reversed(range(NL2)): depi[(k*span)//NL2:(k*span)//NL2] = flat(late[k])
    o += depi; late = late[NL2:]
    if upto < 5: return resolve_waits(flat(o), pre_vm=PRE)
    o += st("T") + prep(3) + [W(vm="hst2"), "s_barrier"] + st() + st("T")
    btw = [f"s_mul_i32 s{sA}, s{sRB}, {4*57344}", f"s_mul_i32 s{sT0}, s{sW}, {14*1024}", f"s_add_u32 s{sA}, s{sA}, s{sT0}", f"s_add_u32 s{sA}, s{sA}, {WS_H1}"]
    btw += rot_rows(57344) + srd(sR, pOUT, 2*MB)
    F2, BF = 40, 8
    btw += [W(vm="ep")] + late
    vOW, vOR = 8, 9
    btw += [f"""
    s_mul_i32 s{sT0}, s{sW}, 2304
    v_mul_u32_u24 v{vOW}, 144, v{c16}
    v_lshl_add_u32 v{vOW}, v{g4}, 3, v{vOW}
    v_add_u32 v{vOW}, s{sT0}, v{vOW}
    v_lshrrev_b32 v{vRM}, 3, v0
    v_and_b32 v{vG16}, 7, v0
    v_lshlrev_b32 v{vG16}, 4, v{vG16}
    v_mul_u32_u24 v{vOR}, 144, v{vRM}
    v_add3_u32 v{vOR}, v{vOR}, v{vG16}, s{sT0}
    v_lshl_add_u32 v{vRM}, v{vRM}, 10, v{vG16}
    """]
    for j in range(8): btw += [f"v_lshlrev_b32 v{F2+2*j}, 16, v{B2+j}", f"v_and_b32 v{F2+2*j+1}, 0xffff0000, v{B2+j}"]
    o += sync(3, sSUB, btw) + st() + st("T")
    o += [al2(i) for i in range(PD["e"])]
    o += gemm("e", 14, wl2, al2, lambda i: reduce_addr() if i == 11 else []) + st("T")
    o += reduce_waves()
    F = AR
    for j in range(8): o += [f"v_lshlrev_b32 v{F+2*j}, 16, v{XR+j}", f"v_and_b32 v{F+2*j+1}, 0xffff0000, v{XR+j}"]
    o += [f"s_lshl_b32 s{sT0}, s{sRT}, 14", f"s_lshl_b32 s{sT1}, s{sCTL}, 7", f"s_add_u32 s{sT0}, s{sT0}, s{sT1}"]
    for t in range(4):
        b = ACC + t*16
        o += sum4(t)
        for h in (0, 2): o += [f"v_pk_add_f32 {vr(b+h, 2)}, {vr(b+h, 2)}, {vr(F2+4*t+h, 2)}"]
        for h in (0, 2): o += [f"v_pk_fma_f32 {vr(F+4*t+h, 2)}, {vr(b+h, 2)}, {vr(GB+4*t+h, 2)}, {vr(F+4*t+h, 2)}"]
        o += [f"v_cvt_pk_bf16_f32 v{XR+2*t}, v{F+4*t}, v{F+4*t+1}", f"v_cvt_pk_bf16_f32 v{XR+2*t+1}, v{F+4*t+2}, v{F+4*t+3}",
              LG(f"ds_write_b64 v{vOW}, {vr(XR+2*t, 2)} offset:{t*32}", "ow")]
    o += [W(lg="ow")] + [LG(f"ds_read_b128 {vr(XR+4*k, 4)}, v{vOR} offset:{k*8*144}", ("or", k)) for k in range(2)]
    for k in range(2): o += [W(lg=[("or", k)]), VM(f"buffer_store_dwordx4 {vr(XR+4*k, 4)}, v{vRM}, s[{sR}:{sR+3}], s{sT0} offen sc1"), f"s_add_u32 s{sT0}, s{sT0}, 8192"]
    return resolve_waits(flat(o), pre_vm=PRE)
```

```python
from common import *
from flay import *

def fused(name, ts=False, opt="", upto=9):
    N = name
    NT = " nt" if "nt" in opt.split() else ""
    NT1 = " nt" if "nt1" in opt.split() or NT else ""
    NTT = " nt" if "ntt" in opt.split() or NT else ""
    sW, sHEAD, sJ, sC = 3, 4, 5, 6
    sWS = 8; WS = "s[8:11]"
    sT0, sT1 = 76, 77
    pX, pB1, pB2, pOUT = 92, 94, 96, 98
    vL16 = 1
    nstamp = [0]; env = {}
    SM = "A" if "stA" in opt else ("B" if "stB" in opt else ("P" if "stP" in opt else ("T" if "stT" in opt else "")))
    def st(kind=""):
        if not ts or nstamp[0] >= 15 or kind != SM: return []
        nstamp[0] += 1
        return [stamp(nstamp[0] - 1)]
    def finish():
        r = []
        if ts:
            r += ["s_waitcnt vmcnt(0)", stamp(15), "s_waitcnt lgkmcnt(0)", "v_mov_b32 v2, s100", "v_mov_b32 v3, s74",
                  "s_lshl_b32 s76, s2, 2", f"s_add_u32 s76, s76, s{sW}", "s_lshl_b32 s77, s76, 3", f"s_add_u32 s77, s77, {WS_TS}",
                  f"buffer_store_dwordx2 v[2:3], off, {WS}, s77", "s_lshl_b32 s77, s76, 6", f"s_add_u32 s77, s77, {WS_TS + 65536}"]
            for q in range(0, 16, 4):
                r += [f"v_mov_b32 v{4+j}, s{44+2*(q+j)}" for j in range(4)]
                r += [f"buffer_store_dwordx4 v[4:7], off, {WS}, s77 offset:{q*4}", "s_nop 1"]
        return flat(r + [f"Lend_{N}:", "s_endpgm"]) + env["fallback"] + flat([f"Lcode_end_{N}:", "s_endpgm"])
    def rnd(r0, r1, t): return [f"v_cvt_pk_bf16_f32 v{t}, v{r0}, v{r1}", f"v_lshlrev_b32 v{r0}, 16, v{t}", f"v_and_b32 v{r1}, 0xffff0000, v{t}"]
    HY = "hy" in opt.split()
    XL = "noxl" not in opt.split() and not HY
    def flag_off(dst, kind, own, line=None):
        if (XL and kind >= 2) or (HY and kind == 3):
            r = [f"s_and_b32 s{dst}, s2, 7", f"s_lshl_b32 s{dst}, s{dst}, 7", f"s_add_u32 s{dst}, s{dst}, {WS_FLAG + 1024 + kind*1024}"]
            if own: r += [f"s_lshr_b32 s{sT0}, s2, 3", f"s_lshl_b32 s{sT0}, s{sT0}, 2", f"s_add_u32 s{dst}, s{dst}, s{sT0}"]
            return r + [f"s_cmp_eq_u32 s{sW}, 0", f"s_cselect_b32 s{dst}, s{dst}, {OOB:#x}"]
        r = [f"s_lshl_b32 s{dst}, s{sJ if line is None else line}, 7", f"s_add_u32 s{dst}, s{dst}, {WS_FLAG + 1024 + kind*1024}"]
        if own: r += [f"s_lshl_b32 s{sT0}, s{sC}, 2", f"s_add_u32 s{dst}, s{dst}, s{sT0}"]
        return r + [f"s_cmp_eq_u32 s{sW}, 0", f"s_cselect_b32 s{dst}, s{dst}, {OOB:#x}"]
    def publish(vt, soff):
        return [f"v_min_u32 v{vt}, 1, v0", f"v_lshlrev_b32 v{vt}, 27, v{vt}", f"v_mov_b32 v{vt+1}, 1",
                VM(f"buffer_store_dword v{vt+1}, v{vt}, {WS}, s{soff} offen sc1", "flag")]
    nct = [0]
    def code_part(a, b, lines, sd, vt, emit=VM):
        nct[0] += 1; l = f"Lct{nct[0]}_{N}"
        return [f"s_getpc_b64 s[{sd}:{sd+1}]", f"{l}:", f"s_add_u32 s{sd}, s{sd}, {a}-{l}", f"s_addc_u32 s{sd+1}, s{sd+1}, 0", f"s_mov_b32 s{sd+2}, {b}-{a}",
                f"s_mov_b32 s{sd+3}, 0x20000", f"s_cmp_eq_u32 s{sW}, 0", f"s_cselect_b32 s{sd+2}, s{sd+2}, 0", f"s_lshr_b32 s{sT0}, s2, 3", f"s_mul_i32 s{sT0}, s{sT0}, {lines*128}",
                f"v_min_u32 v{vt}, {lines - 1}, v0", f"v_lshlrev_b32 v{vt}, 7, v{vt}", emit(f"buffer_load_dword v{vt+1}, v{vt}, s[{sd}:{sd+3}], s{sT0} offen")]
    nsp = [0]
    def check(load, test, scnt, tag, mask=None, every=False):
        nsp[0] += 1; k = f"{N}_{nsp[0]}"
        test = [test, "s_cmp_lg_u64 vcc, 0" if mask is None else f"s_and_b64 vcc, vcc, s[{mask}:{mask+1}]"]
        return flat([W(vm=tag), [] if every else [f"s_cmp_lg_u32 s{sW}, 0", f"s_cbranch_scc1 Lok{k}"], test, f"s_cbranch_scc0 Lok{k}", f"s_mov_b32 s{scnt}, 0x80000",
                     f"Lsp{k}:", f"s_sub_u32 s{scnt}, s{scnt}, 1", f"s_cbranch_scc1 Lok{k}", "s_sleep 1", load, It("s_waitcnt vmcnt(0)", k="cond"), test,
                     f"s_cbranch_scc1 Lsp{k}", f"Lok{k}:"])

    sCKV, sWK, sWV, sMOD, sCV, sX, sDBG, sCODE = 12, 16, 20, 24, 28, 32, 36, 40
    sWQ, sWO, sU2 = sMOD, sCV, sCODE
    sCOFF, sWKOFF, sWVOFF, sKST, sVST, sM0C, sM0K, sMST, sATO, sADD, sMF, sHST, sSPIN, sRS0 = range(78, 92)
    sRS1 = 7; sMEAN0, sMEAN1 = sMST, sATO
    vWD, vTR, vCD, vCR, vT = 2, 6, 10, 14, 16
    WF, X, ACC = 32, 64, 128
    RING, CBUF, CW = 0, 65536, 24576
    MODRED, MODV, HSTA = 49152, CBUF + 16384, CBUF + CW + 16384
    o = ["s_cmp_ge_u32 s2, 256", f"s_cbranch_scc1 Lend_{N}"] + load_args()
    if ts: o += ["s_memrealtime s[100:101]" if not CYC else "s_memtime s[100:101]"]
    o += [f"s_getpc_b64 s[{sCODE}:{sCODE+1}]", f"Lpc_{N}:", f"s_mov_b32 s{sCODE+2}, Lcode_end_{N}-Lpc_{N}", f"s_mov_b32 s{sCODE+3}, 0x20000",
          f"v_lshlrev_b32 v{vT}, 7, v0"]
    CPM = next((x[4:] for x in opt.split() if x.startswith("cpm=")), "part")
    if CPM == "all": o += [VM(f"buffer_load_dword v{vT+1}, v{vT}, s[{sCODE}:{sCODE+3}], 0 offen", "code")]
    elif CPM == "part":
        o += [f"s_lshr_b32 s{sT0}, s2, 3", f"s_mul_i32 s{sT0}, s{sT0}, 3072", f"v_cmp_gt_u32 vcc, 24, v0", f"v_mov_b32 v{vT+1}, {1 << 27}",
              f"v_cndmask_b32 v{vT}, v{vT+1}, v{vT}, vcc", VM(f"buffer_load_dword v{vT+1}, v{vT}, s[{sCODE}:{sCODE+3}], s{sT0} offen", "code")]
    o += [f"""
    v_lshrrev_b32 v{vT+2}, 6, v0
    v_and_b32 v0, 63, v0
    v_readfirstlane_b32 s{sW}, v{vT+2}
    v_lshlrev_b32 v{vL16}, 4, v0
    s_and_b32 s{sHEAD}, s2, 7
    s_lshl_b32 s{sHEAD}, s{sHEAD}, 2
    s_bfe_u32 s{sT0}, s2, 0x20003
    s_add_u32 s{sHEAD}, s{sHEAD}, s{sT0}
    s_lshr_b32 s{sJ}, s2, 5
    s_and_b32 s{sC}, s2, 31
    v_lshrrev_b32 v{vT+2}, 3, v0
    v_and_b32 v{vT+3}, 7, v0
    """]
    r8, c8 = vT+2, vT+3
    o += [f"""
    v_mul_u32_u24 v{vT+4}, 6144, v{r8}
    v_lshl_add_u32 v{vT+4}, v{c8}, 4, v{vT+4}
    v_lshlrev_b32 v{vT+5}, 1, v{r8}
    v_lshrrev_b32 v{vT+6}, 1, v{r8}
    v_xor_b32 v{vT+6}, v{vT+6}, v{c8}
    v_lshlrev_b32 v{vT+6}, 4, v{vT+6}
    v_lshl_add_u32 v{vCD}, v{r8}, 10, v{vT+6}
    v_xor_b32 v{vCD+1}, 64, v{vCD}
    v_add_u32 v{vCD+1}, {7*1024}, v{vCD+1}
    v_add_u32 v{vCD+2}, {14*1024}, v{vCD}
    v_add_u32 v{vCD+3}, {14*1024}, v{vCD+1}
    v_and_b32 v{vT+6}, 2, v{r8}
    v_xor_b32 v{vT+6}, v{vT+6}, v{c8}
    v_lshlrev_b32 v{vT+6}, 4, v{vT+6}
    v_lshl_add_u32 v{vWD}, v{r8}, 13, v{vT+6}
    v_xor_b32 v{vWD+1}, 64, v{vWD}
    v_add_u32 v{vWD+1}, {65536-1024}, v{vWD+1}
    v_add_u32 v{vWD+2}, {2*(65536-1024)}, v{vWD}
    v_add_u32 v{vWD+3}, {2*(65536-1024)}, v{vWD+1}
    s_and_b32 s{sT0}, s2, 3
    s_lshl_b32 s{sT0}, s{sT0}, 7
    s_lshl_b32 s{sT1}, s{sW}, 5
    s_add_u32 s{sMF}, s{sT0}, s{sT1}
    s_lshl_b32 s{sHST}, s{sMF}, 1
    s_mul_i32 s{sMF}, s{sMF}, 6144
    s_lshr_b32 s{sMST}, s2, 2
    s_lshl_b32 s{sMST}, s{sMST}, 7
    s_add_u32 s{sMF}, s{sMF}, s{sMST}
    s_lshl_b32 s{sCOFF}, s{sJ}, 18
    s_lshl_b32 s{sT0}, s{sW}, 16
    s_add_u32 s{sCOFF}, s{sCOFF}, s{sT0}
    s_mul_i32 s{sM0C}, s{sW}, {CW}
    s_add_u32 s{sM0C}, s{sM0C}, {CBUF}
    s_and_b32 s{sT0}, s{sW}, 1
    s_lshl_b32 s{sWKOFF}, s{sT0}, 18
    s_lshr_b32 s{sT1}, s{sW}, 1
    s_lshl_b32 s{sT1}, s{sT1}, 7
    s_add_u32 s{sWKOFF}, s{sWKOFF}, s{sT1}
    s_lshl_b32 s{sT1}, s{sHEAD}, 8
    s_add_u32 s{sWKOFF}, s{sWKOFF}, s{sT1}
    s_lshl_b32 s{sWVOFF}, s{sW}, 18
    s_add_u32 s{sWVOFF}, s{sWVOFF}, s{sT1}
    s_lshl_b32 s{sM0K}, s{sW}, 12
    s_waitcnt lgkmcnt(0)
    """]
    if SM == "P": o += ["s_memrealtime s[92:93]"]
    o += srd(sMOD, P("wmod"), 512*6144) + srd(sCV, P("c"), 1024) + ["s_cmp_lt_u32 s2, 192", f"s_cselect_b32 s{sMOD+2}, s{sMOD+2}, 0"]
    MW, MC, MA, MT = 64, 80, 84, 92
    for n in range(4): o += [VM(f"buffer_load_ushort v{MC+n}, v{vT+5}, s[{sCV}:{sCV+3}], s{sHST} offen offset:{16*n}", "modc")]
    for n in range(4):
        o += [VM(f"buffer_load_dwordx4 v[{MW+4*n}:{MW+4*n+3}], v{vT+4}, s[{sMOD}:{sMOD+3}], s{sMF} offen{NT1}", ("modw", n))]
        if n < 3: o += [f"s_add_u32 s{sMF}, s{sMF}, {8*6144}"]
    o += srd(sCKV, P("ckv"), 2*MB) + srd(sWK, P("wuk"), 4*MB)
    def c_dma(i):
        g = []
        for hh in range(2):
            grp = [f"s_add_u32 m0, s{sM0C}, {(i % 3)*8192 + hh*4096}", f"s_add_u32 s{sRS0}, s{sCOFF}, {i*128 + hh*32768}"]
            for n in range(4):
                grp.append(VM(f"buffer_load_dwordx4 v{vCD+n}, s[{sCKV}:{sCKV+3}], s{sRS0} offen offset:{n*1024}{' nt' if 'ntc' in opt.split() else ''} lds", ("c", i)))
                g.append(grp); grp = []
        return SEQ(g)
    def page(q): return RING + (q % 4) * 16384
    def w_dma(q):
        sTW = sRS1 if q <= 2 else sT1
        if q < 8: sd, off, m0 = sWK, f"s_add_u32 s{sTW}, s{sWKOFF}, {q*64*8192}", f"s{sM0K}, {page(q)}"
        elif q < 16:
            sd, off = sWV, f"s_add_u32 s{sTW}, s{sWVOFF}, {((q-8)&3)*128*8192 + ((q-8)>>2)*128}"
            m0 = f"s{sM0K}, {page(q)}" if q < 12 else f"s{sM0C}, {(q-12)*4096}"
        else: sd, off, m0 = sWQ, f"s_add_u32 s{sTW}, s{sWKOFF}, {(q-16)*64*8192}", f"s{sM0K}, {(q-16)*16384}"
        g = []; grp = [f"s_add_u32 m0, {m0}", off]
        for n in range(4):
            grp.append(VM(f"buffer_load_dwordx4 v{vWD+n}, s[{sd}:{sd+3}], s{sTW} offen offset:{n*1024}{' nt' if (q < 8 and 'ntk' in opt.split()) or (8 <= q < int(OV('ntv', 0))) else NT} lds", ("w", q)))
            g.append(grp); grp = []
        return SEQ(g)
    OPT = opt.split()
    def OV(k, d): return next((x.split("=")[1] for x in OPT if x.startswith(k + "=")), d)
    o += [c_dma(0), w_dma(0)] + (["s_memrealtime s[94:95]"] if SM == "P" else []) + srd(sWV, P("wuv"), 4*MB)
    OPT = opt.split()
    def OV(k, d): return next((x.split("=")[1] for x in OPT if x.startswith(k + "=")), d)
    vTD = vT+1
    vPC, vPW = 96, 97
    def pf_addr(vc, vw):
        return [f"v_lshrrev_b32 v{vw}, 4, v0", f"v_and_b32 v{vc}, 15, v0", f"v_lshlrev_b32 v{vc}, 4, v{vc}",
                f"v_lshl_add_u32 v{vw+1}, v{vw}, 13, v{vc}", f"v_lshl_add_u32 v{vc}, v{vw}, 10, v{vc}", f"v_mov_b32 v{vw}, v{vw+1}"]
    def pf_c(dummy):
        g = []; grp = [f"s_add_u32 m0, s{sM0C}, {dummy}", f"s_bfe_u32 s{sRS0}, s2, 0x20003", f"s_lshl_b32 s{sRS0}, s{sRS0}, 16", f"s_lshl_b32 s{sRS1}, s{sJ}, 18",
                       f"s_add_u32 s{sRS0}, s{sRS0}, s{sRS1}", f"s_lshl_b32 s{sRS1}, s{sW}, 14", f"s_add_u32 s{sRS0}, s{sRS0}, s{sRS1}"]
        for col in range(1, 4):
            for rg in range(4):
                grp += [f"s_add_u32 s{sRS1}, s{sRS0}, {rg*4096 + col*256}", VM(f"buffer_load_dwordx4 v{vPC}, s[{sCKV}:{sCKV+3}], s{sRS1} offen lds", "pf")]
                g.append(grp); grp = []
        return SEQ(g)
    def pf_w(sd, vw, dummy, first, sRS0=sRS0, sRS1=sRS1):
        g = []; grp = [f"s_add_u32 m0, s{sM0C}, {dummy}", f"s_lshr_b32 s{sRS0}, s{sW}, 1", f"s_lshl_b32 s{sRS0}, s{sRS0}, 3", f"s_add_u32 s{sRS0}, s{sRS0}, s{sJ}",
                       f"s_lshl_b32 s{sRS0}, s{sRS0}, 1", f"s_and_b32 s{sRS1}, s{sW}, 1", f"s_add_u32 s{sRS0}, s{sRS0}, s{sRS1}", f"s_lshl_b32 s{sRS0}, s{sRS0}, 15",
                       f"s_lshl_b32 s{sRS1}, s{sHEAD}, 8", f"s_add_u32 s{sRS0}, s{sRS0}, s{sRS1}"]
        for q in range(first, 8, 2):
            grp += [f"s_add_u32 s{sRS1}, s{sRS0}, {q*64*8192}", VM(f"buffer_load_dwordx4 v{vw}, s[{sd}:{sd+3}], s{sRS1} offen{NTT} lds", "pf")]
            g.append(grp); grp = []
        return SEQ(g)
    PF = "nopf" not in OPT
    o += pf_addr(vPC, vPW)
    pfa = (pf_w(sWK, vPW, 16384, 2) if "pfk" in OPT else []) + (pf_c(16384) if "pfc" in OPT else [])
    NPRE = int(OV("npre", 2))
    ilv = sum((c_dma(i) + w_dma(i) for i in range(1, NPRE + 1)), []) if "ilv" in OPT else []
    pro0 = len(o)
    o += ([] if ilv else [c_dma(1), w_dma(1)]) + ([pfa] if "pfpre" in OPT else []) + (["s_memrealtime s[96:97]"] if SM == "P" else []) + srd(sWS, P("ws"), WS_SIZE)
    KF, VF, SF = 0, 5120, 6144
    vZA, vZD = vT+14, vT+15
    o += [f"""
    v_lshlrev_b32 v{vZA}, 10, v0
    s_lshl_b32 s{sT0}, s{sJ}, 7
    s_lshl_b32 s{sT1}, s{sC}, 2
    s_add_u32 s{sT0}, s{sT0}, s{sT1}
    v_add_u32 v{vZA}, s{sT0}, v{vZA}
    s_lshl_b32 s{sT0}, s{sHEAD}, 5
    s_lshl_b32 s{sT1}, s{sJ}, 2
    s_add_u32 s{sT0}, s{sT0}, s{sT1}
    v_writelane_b32 v{vZA}, s{sT0}, 0
    s_add_u32 s{sT0}, s{sT0}, {VF}
    v_writelane_b32 v{vZA}, s{sT0}, 5
    s_lshl_b32 s{sT0}, s2, 2
    s_add_u32 s{sT0}, s{sT0}, {SF}
    v_writelane_b32 v{vZA}, s{sT0}, 6
    v_mov_b32 v{vZD}, {1 << 27}
    v_cmp_gt_u32 vcc, 7, v0
    v_cndmask_b32 v{vZA}, v{vZD}, v{vZA}, vcc
    v_mov_b32 v{vZD}, 0
    s_mov_b32 s{sSPIN}, {WS_FLAG}
    s_cmp_eq_u32 s{sW}, 0
    s_cselect_b32 s{sSPIN}, s{sSPIN}, {OOB:#x}
    """, VM(f"buffer_store_dword v{vZD}, v{vZA}, {WS}, s{sSPIN} offen sc1", "zero")]
    for i in (32768, 65536) if CPM == "all" else ():
        o += [f"s_mov_b32 s{sT0}, {i}", VM(f"buffer_load_dword v{vT+1}, v{vT}, s[{sCODE}:{sCODE+3}], s{sT0} offen", "code2")]
    o += srd(sX, P("x"), 2*MB) + srd(sDBG, P("dbg"), 256) + srd(sWQ, P("wq"), 4*MB) + srd(sWO, P("wo"), 4*MB)
    EARLY = "s_waitcnt lgkmcnt(0)\ns_mov_b32 s66, s92\ns_mov_b32 s68, s94\ns_mov_b32 s72, s96" if SM == "P" else ""
    PW2 = 100 if not ts else 74
    o += srd(sU2, P("w1"), 1792*1024) + [f"""
    s_mov_b64 s[{PW2}:{PW2+1}], s[{P('w2')}:{P('w2')+1}]
    {EARLY}
    s_mov_b64 s[{pX}:{pX+1}], s[{P('x')}:{P('x')+1}]
    s_mov_b64 s[{pB1}:{pB1+1}], s[{P('b1')}:{P('b1')+1}]
    s_mov_b64 s[{pB2}:{pB2+1}], s[{P('b2')}:{P('b2')+1}]
    s_mov_b64 s[{pOUT}:{pOUT+1}], s[{P('out')}:{P('out')+1}]
    v_lshrrev_b32 v{vT+6}, 4, v0
    v_bfe_u32 v{vT+7}, v0, 2, 2
    v_lshl_add_u32 v{vT+8}, v{vT+6}, 3, v{vT+7}
    v_lshlrev_b32 v{vT+8}, 7, v{vT+8}
    v_and_b32 v{vT+9}, 3, v0
    v_lshl_add_u32 v{vT+8}, v{vT+9}, 3, v{vT+8}
    v_and_b32 v{vT+9}, 1, v{vT+6}
    v_lshlrev_b32 v{vT+9}, 1, v{vT+9}
    v_lshrrev_b32 v{vT+10}, 1, v{vT+7}
    v_or_b32 v{vT+9}, v{vT+9}, v{vT+10}
    v_lshl_add_u32 v{vTR}, v{vT+9}, 5, v{vT+8}
    v_xor_b32 v{vTR+1}, 32, v{vTR}
    v_xor_b32 v{vTR+2}, 64, v{vTR}
    v_xor_b32 v{vTR+3}, 0x60, v{vTR}
    v_and_b32 v{vT+7}, 15, v0
    v_lshrrev_b32 v{vT+8}, 1, v{vT+7}
    v_xor_b32 v{vT+8}, v{vT+8}, v{vT+6}
    v_lshlrev_b32 v{vT+8}, 4, v{vT+8}
    v_lshl_add_u32 v{vT+8}, v{vT+7}, 7, v{vT+8}
    v_add_u32 v{vCR}, s{sM0C}, v{vT+8}
    v_xor_b32 v{vCR+1}, 64, v{vCR}
    s_lshl_b32 s{sKST}, s{sHEAD}, 20
    s_lshl_b32 s{sT0}, s{sJ}, 17
    s_add_u32 s{sKST}, s{sKST}, s{sT0}
    s_lshl_b32 s{sT0}, s{sW}, 15
    s_add_u32 s{sKST}, s{sKST}, s{sT0}
    s_add_u32 s{sVST}, s{sKST}, 16384
    s_and_b32 s{sT0}, s2, 3
    s_mul_i32 s{sT0}, s{sT0}, 12288
    s_lshl_b32 s{sMST}, s{sMST}, 1
    s_add_u32 s{sMST}, s{sMST}, s{sT0}
    s_add_u32 s{sMST}, s{sMST}, {WS_MODP}
    s_cmp_lt_u32 s2, 192
    s_cselect_b32 s{sT0}, s{sW}, 1
    s_cmp_eq_u32 s{sT0}, 0
    s_cselect_b32 s{sMST}, s{sMST}, {OOB:#x}
    s_and_b32 s{sATO}, s2, 63
    s_lshl_b32 s{sATO}, s{sATO}, 2
    s_cmp_eq_u32 s{sW}, 0
    s_cselect_b32 s{sATO}, s{sATO}, 256
    s_cmp_ge_u32 s{sW}, 2
    s_cselect_b32 s{sADD}, 1.0, 0
    """]
    o += st("P") + [W(vm="code" if SM == "P" else "modc")] + st("P") + [W(vm="modc")] + st("P")
    for n in range(4): o += [f"v_lshlrev_b32 v{MC+n}, 16, v{MC+n}"]
    for n in range(4): o += [f"v_mul_f32 v{MT+n}, {fbits(-1.4426950408889634)}, v{MC+n}"]
    for n in range(4): o += [f"v_exp_f32 v{MT+n}, v{MT+n}"]
    for n in range(4): o += [f"v_add_f32 v{MT+n}, 1.0, v{MT+n}"]
    for n in range(4): o += [f"v_rcp_f32 v{MT+n}, v{MT+n}"]
    for n in range(4): o += [f"v_mul_f32 v{MC+n}, v{MC+n}, v{MT+n}"]
    for n in range(4): o += [f"v_cvt_pk_bf16_f32 v{MC+n}, v{MC+n}, v{MC+n}"]
    for n in range(4): o += [f"v_lshlrev_b32 v{MC+n}, 16, v{MC+n}"]
    for n in range(4):
        o += [W(vm=[("modw", n)])]
        for j in range(4):
            o += [f"v_lshlrev_b32 v{MT}, 16, v{MW+4*n+j}", f"v_and_b32 v{MT+1}, 0xffff0000, v{MW+4*n+j}"]
            if n == 0: o += [f"v_mul_f32 v{MA+2*j}, v{MC}, v{MT}", f"v_mul_f32 v{MA+2*j+1}, v{MC}, v{MT+1}"]
            else: o += [f"v_fmac_f32 v{MA+2*j}, v{MC+n}, v{MT}", f"v_fmac_f32 v{MA+2*j+1}, v{MC+n}, v{MT+1}"]
    for j in range(8): o += [f"v_add_f32_dpp v{MA+j}, v{MA+j}, v{MA+j} row_ror:8 row_mask:0xf bank_mask:0xf"]
    for j in range(0, 8, 2): o += [f"v_permlane16_swap_b32 v{MA+j}, v{MA+j+1}"]
    for j in range(0, 8, 2): o += [f"v_add_f32 v{MA+j}, v{MA+j}, v{MA+j+1}"]
    for j in (0, 4): o += [f"v_permlane32_swap_b32 v{MA+j}, v{MA+j+2}"]
    for j in (0, 4): o += [f"v_add_f32 v{MA+j}, v{MA+j}, v{MA+j+2}"]
    vL4, vL256, vONE = vT+4, vT+5, vT+6
    o += [f"""
    v_lshrrev_b32 v{MT}, 4, v0
    v_lshl_add_u32 v{MT}, v{c8}, 3, v{MT}
    v_lshlrev_b32 v{MT}, 2, v{MT}
    s_lshl_b32 s{sT0}, s{sW}, 8
    v_add_u32 v{MT}, s{sT0}, v{MT}
    """, LG(f"ds_write_b32 v{MT}, v{MA} offset:{MODRED}", "mr"), LG(f"ds_write_b32 v{MT}, v{MA+4} offset:{MODRED+16}", "mr"),
    f"v_lshlrev_b32 v{vL4}, 2, v0", f"v_lshlrev_b32 v{vL256}, 8, v0", f"v_mov_b32 v{vONE}, 1"]
    def Cfrag(kt, s): return ar((s*4+kt)*4, 4)
    def c_reads(i):
        return [LG(f"ds_read_b128 {Cfrag(kt, 2*i+sp)}, v{vCR+sp} offset:{(i % 3)*8192 + kt*2048}", ("cr", i)) for sp in range(2) for kt in range(4)]
    if ilv:
        rest = scc_groups(o[pro0:]); n_ = len(rest)
        for k in reversed(range(len(ilv))): rest.insert((k*n_)//len(ilv), ilv[k])
        o = o[:pro0] + rest
    o += st("P") + [W(vm=[("c", 0)])] + st("P") + [c_reads(0), W(vm=[("w", 0)], lg="mr")] + st("P") + ["s_barrier"] + st("P")

    QA, HR = 64, 192
    aK, aV = 128, 160
    def accK(dt, kt): return ACC + (dt*4+kt)*4
    def acc(dt, qi): return QA + (dt*4+qi)*4
    HE = "he" in OPT
    def Hf(s, qi): return vr((0 if HE and 4 <= s < 8 else HR) + ((s & 3)*4+qi)*4, 4, "a" if s & 4 else "v")
    frags = []
    for s2 in range(0, 16, 2):
        for dt in range(8):
            for s in (s2, s2+1):
                frags.append((s >> 1, page(s >> 1) + (dt >> 2)*8192 + (s & 1)*4096, dt & 3, [(accK(dt, kt), "W", Cfrag(kt, s), s == 0) for kt in range(4)]))
    for s2 in range(0, 16, 2):
        for t in range(4):
            for s in (s2, s2+1):
                frags.append((8 + (s >> 2), page(8 + (s >> 2)) + (s & 3)*4096, t, [(X + (t*4+kt)*4, Cfrag(kt, s), "W", s == 0) for kt in range(4)]))
    for hb in range(2):
        for s2 in range(0, 16, 2):
            for t in (2*hb, 2*hb+1):
                for s in (s2, s2+1):
                    frags.append((12 + (s >> 2), CBUF + (s & 3)*CW + (s >> 2)*4096, t, [(ACC + (t*4+kt)*4, Cfrag(kt, s), "W", s == 0) for kt in range(4)]))
    for s2 in range(0, 16, 2):
        for dt in range(8):
            for s in (s2, s2+1):
                frags.append((16 + (s >> 1), (s >> 1)*16384 + (dt >> 2)*8192 + (s & 1)*4096, dt & 3, [(acc(dt, qi), "W", Hf(s, qi), s == 0) for qi in range(4)]))
    def wreg(f): return ("v", WF + (f % 8)*4) if f < 256 else ("a", aK + (f % 16)*4)
    slots = []
    CH = "nochain" not in OPT
    for f in range(0, len(frags), 2):
        for n, k in ([(n, k) for n in range(4) for k in range(2)] if CH else [(n, k) for k in range(2) for n in range(4)]):
            fl, r = wreg(f + k); wf = vr(r, 4, fl); d, a_, b_, first = frags[f + k][3][n]
            sl = Slot(I(f"v_mfma_f32_16x16x32_bf16 {vr(d,4)}, {wf if a_ == 'W' else a_}, {wf if b_ == 'W' else b_}, {'0' if first else vr(d,4)}"))
            if n == 0 and k == 0:
                sl.pre.append(W(lg=[("wf", f+1)]))
                if f < 128 and f % 16 == 0: sl.pre.append(W(lg=[("cr", f//16)]))
                if f >= 256 and f % 16 == 0: sl.pre.append(W(vm=[("h", (f-256)//8 + 1)]))
            slots.append(sl)
    LA = 4
    wbase = [0]; bar = {}
    vTR2 = vCD
    def frag_reads(f):
        q, a, t, _ = frags[f]; g = []
        fl, r = wreg(f)
        if a >= 131072: return g, [LG(f"ds_read_b64_tr_b16 {vr(r+2*hh, 2, fl)}, v{vTR2+t} offset:{a - 131072 + hh*512}", ("wf", f)) for hh in range(2)]
        wb = a & 65536
        if wb != wbase[0]:
            g += [f"v_xor_b32 v{vTR+i}, 0x10000, v{vTR+i}" for i in range(4)]; wbase[0] = wb
        return g, [LG(f"ds_read_b64_tr_b16 {vr(r+2*hh, 2, fl)}, v{vTR+t} offset:{a - wb + hh*512}", ("wf", f)) for hh in range(2)]
    for f in range(LA):
        g, rd = frag_reads(f); o += g + rd
    valid = {0}
    VAL = {12: [12, 13, 14, 15], 16: [16, 17, 18, 19]}
    for f in range(LA, len(frags)):
        q = frags[f][0]; i = (f - LA)*4
        if q not in valid or (q > 16 and f % 16 == 0):
            qs = VAL.get(q, [q]); valid.update(qs); bar[q] = i - 1
            slots[i-1].alu += [W(vm=[("w", x) for x in qs]), I("s_barrier")]
        g, rd = frag_reads(f)
        slots[i-1].alu += flat(g)
        slots[i].mem.append(rd[0]); slots[i+1].mem.append(rd[1])
    def put(groups, b, step=4, where="mem"):
        for n, g in enumerate(groups): getattr(slots[b + step*n], where).append(g)
    def up(b, r):
        while (b & 3) != r: b += 1
        return b
    def lq(groups, b):
        put(groups, up(b, 3)); return up(b, 3) + 4*(len(groups) - 1)
    vused = set()
    def vq(groups, b, stride=1):
        k = up(b, 2) >> 2; last = b
        for g in groups:
            while k in vused: k += 1
            vused.add(k); slots[4*k + 2].mem.append(g); last = 4*k + 2; k += stride
        return last
    def sq(text, b, e): spread(slots, SEQ(scc_groups(text)), b, e)
    def before_bar(q, items): slots[bar[q]].alu[0:0] = flat(items)
    def pre(items, groups): groups[0] = flat(items) + groups[0]; return groups
    cend = {}
    for p in range(7):
        rd = c_reads(p+1); rd[0] = [W(vm=[("c", p+1)]), rd[0]]
        cend[p+1] = lq(rd, p*64 + int(OV('crd', 20)))
    MR = vT + 8
    vq([[W(lg="mr2"), f"v_add_f32 v{MR}, v{MR}, v{MR+1}", f"v_add_f32 v{MR+2}, v{MR+2}, v{MR+3}", f"v_add_f32 v{MR}, v{MR}, v{MR+2}",
         VM(f"buffer_store_dword v{MR}, v{vL4}, {WS}, s{sMST} offen sc1", "mst")]], 14)
    sq([f"v_and_b32 v{vTR2+i}, 0xffff, v{vTR+i}" for i in range(4)] + [f"v_or_b32 v{vTR2+i}, 0x20000, v{vTR2+i}" for i in range(4)], 520, 540)
    lq([LG(f"ds_read2st64_b32 v[{MR}:{MR+1}], v{vL4} offset0:192 offset1:193", "mr2"),
        LG(f"ds_read2st64_b32 v[{MR+2}:{MR+3}], v{vL4} offset0:194 offset1:195", "mr2")], 0)
    vq([[W(vm=["mst", "zero"]), VM(f"buffer_atomic_add v{vONE}, v{vL256}, s[{sDBG}:{sDBG+3}], s{sATO} offen sc1")]], 100)
    XR, F0, F1, TT, AV, BV, PP, MF = 64, 72, 80, 88, 92, 100, 108, 124
    sq([f"""
    s_sub_u32 s{sHST}, 15, s{sJ}
    s_cmp_lt_u32 s{sC}, 16
    s_cselect_b32 s{sHST}, s{sJ}, s{sHST}
    s_lshl_b32 s{sHST}, s{sHST}, 4
    s_and_b32 s{sMF}, s{sC}, 15
    s_add_u32 s{sHST}, s{sHST}, s{sMF}
    s_lshl_b32 s{sMF}, s{sHST}, 13
    s_lshl_b32 s{sSPIN}, s{sW}, 11
    s_add_u32 s{sMF}, s{sMF}, s{sSPIN}
    """], 20, 40)
    xe = vq([VM(f"buffer_load_dwordx4 {vr(XR+4*k,4)}, v{vL16}, s[{sX}:{sX+3}], s{sMF} offen offset:{1024*k}{' nt' if 'ntx' in OPT else ''}", "x") for k in range(2)], 104)

    g = []
    for j in range(4):
        for F, xr in ((F0, XR), (F1, XR+4)): g += [f"v_lshlrev_b32 v{F+2*j}, 16, v{xr+j}", f"v_and_b32 v{F+2*j+1}, 0xffff0000, v{xr+j}"]
    g[0] = [W(vm="x"), g[0]]
    def reduce2(sa, sb, post):
        r = []
        for m in ("quad_perm:[1,0,3,2]", "quad_perm:[2,3,0,1]", "row_ror:4", "row_ror:8"):
            r += [f"v_add_f32_dpp v{TT}, v{TT}, v{TT} {m} row_mask:0xf bank_mask:0xf", f"v_add_f32_dpp v{TT+1}, v{TT+1}, v{TT+1} {m} row_mask:0xf bank_mask:0xf"]
        r += [f"v_permlane16_swap_b32 v{TT}, v{TT+1}", f"v_add_f32 v{TT}, v{TT}, v{TT+1}", f"v_mov_b32 v{TT+1}, v{TT}",
              f"v_permlane32_swap_b32 v{TT}, v{TT+1}", f"v_add_f32 v{TT}, v{TT}, v{TT+1}"] + post
        return r + [f"v_readlane_b32 s{sa}, v{TT}, 0", f"v_readlane_b32 s{sb}, v{TT}, 16"]
    for j in range(1, 8):
        for k, F in enumerate((F0, F1)): g += [f"v_add_f32 v{TT+k}, v{F if j == 1 else TT+k}, v{F+j}"]
    g += reduce2(sMEAN0, sMEAN1, [f"v_mul_f32 v{TT}, {fbits(1/512)}, v{TT}"])
    for j in range(8):
        for F, sm in ((F0, sMEAN0), (F1, sMEAN1)): g += [f"v_subrev_f32 v{F+j}, s{sm}, v{F+j}"]
    for j in range(8):
        for k, F in enumerate((F0, F1)): g += [f"v_mul_f32 v{TT+k}, v{F}, v{F}" if j == 0 else f"v_fmac_f32 v{TT+k}, v{F+j}, v{F+j}"]
    g += reduce2(sRS0, sRS1, [f"v_mov_b32 v{TT+1}, {fbits(EPS)}", f"v_fmac_f32 v{TT+1}, {fbits(1/512)}, v{TT}", f"v_rsq_f32 v{TT}, v{TT+1}"])
    for j in range(8):
        for F, rs in ((F0, sRS0), (F1, sRS1)): g += [f"v_mul_f32 v{F+j}, s{rs}, v{F+j}"]
    assert xe < 200
    spread(slots, g, max(xe + 60, 200), 360)
    ld = f"buffer_load_dword v{MR}, v{vL4}, s[{sDBG}:{sDBG+3}], 0 offen sc1"
    vq([VM(ld, "poll1")], 226)
    e = 0
    if pfa and "pfpre" not in OPT:
        for k, g in enumerate(pfa): slots[2*k + 1].alu.append(g)
        e = 2*len(pfa) + 2
    CP = int(OV("cp", 0))
    sPC, sPW = sWVOFF + 0, sVST + 0
    def cp_c(i): return [[VM(f"buffer_load_dwordx4 v[28:31], v{vCD}, s[{sCKV}:{sCKV+3}], s0 offen offset:{i*128}", "pf")] + ([f"s_xor_b32 s0, s0, 8192"])for n in range(2)] if CP and i < 8 else []
    def cp_w(q): return [[VM(f"buffer_load_dwordx4 v[28:31], v{vPW}, s[{sWK}:{sWK+3}], s1 offen", "pf"), f"s_add_u32 s1, s1, {2*64*8192}"]] if CP > 1 and q < 8 else []
    if CP:
        def vx(groups, b): put(groups, up(b, 0))
        vx(cp_c(3) + cp_w(3), 0); e = vq(c_dma(2), 0); e = vq(w_dma(2), e)
        for i in range(3, 8):
            vx(cp_c(i+1) + (cp_w(i+2) if i & 1 else []), max(e, cend.get(i-3, 0) + 8) - int(OV("cpl", 0)))
            e = vq(pre([W(lg=[("cr", i-3)])], c_dma(i)), max(e, cend.get(i-3, 0) + 8)); assert e < (i-1)*64 + 10, (i, e)
            if i < 7: e = vq(w_dma(i), max(e, bar[i-2]))
    BU = int(OV("burst", 0))
    if BU:
        first = c_dma(2) + w_dma(2) + c_dma(3)
        for k, g in enumerate(first): slots[k*BU//2].mem.append(g)
        for k in range((len(first)*BU//2)//4 + 1): vused.add(k)
        e = len(first)*BU//2
    elif not CP: e = vq(c_dma(2), e); e = vq(w_dma(2), e)
    if not BU and not CP: e = vq(c_dma(3), e)
    if not CP: e = vq(w_dma(3), max(e, bar[1]))
    for i in range(4, 8 if not CP else 0):
        e = vq(pre([W(lg=[("cr", i-3)])], c_dma(i)), max(e, cend[i-3] + 8))
        assert e < (i-1)*64 - 10, (i, e)
        if i < 7: e = vq(w_dma(i), max(e, bar[i-2]))
    before_bar(5, check(ld, f"v_cmp_gt_u32 vcc, 4, v{MR}", sSPIN, "poll1"))
    sq([f"s_lshl_b32 s{sMF}, s{sW}, 10", f"s_add_u32 s{sMF}, s{sMF}, {WS_MODP}"], bar[5] - 8, bar[5] - 4)
    e = vq([[VM(f"buffer_load_dwordx4 {vr(PP+4*n,4)}, v{vL16}, {WS}, s{sMF} offen sc1", "pp"), f"s_add_u32 s{sMF}, s{sMF}, 12288"] for n in range(4)], bar[5] + 1)
    g = [[VM(f"buffer_load_dword v{MF+n}, v{vL4}, {WS}, s{sMF} offen sc1", "mf"), f"s_add_u32 s{sMF}, s{sMF}, 12288"] for n in range(4)]
    e = vq(pre([f"s_lshl_b32 s{sMF}, s{sC}, 10", f"s_lshl_b32 s{sSPIN}, s{sW}, 8", f"s_add_u32 s{sMF}, s{sMF}, s{sSPIN}",
                f"s_mul_i32 s{sSPIN}, s{sJ}, 12288", f"s_add_u32 s{sSPIN}, s{sSPIN}, s{sMF}", f"s_add_u32 s{sSPIN}, s{sSPIN}, {WS_MODF}",
                f"s_add_u32 s{sMF}, s{sMF}, {WS_MODP}", f"s_cmp_lt_u32 s{sC}, 12",
                f"s_cselect_b32 s{sMF}, s{sMF}, {OOB:#x}", f"s_cselect_b32 s{sSPIN}, s{sSPIN}, {OOB:#x}"], g), e)
    assert e < 372
    e = vq(w_dma(7), max(e, bar[5])); assert e < bar[7] - 60
    if PF and "nopv" not in OPT: e = vq(pre([W(lg=[("cr", 5)])], pf_w(sWV, vPW, 16384 + 6144, 0, sX, sX+1)), max(e, cend[5] + 8))
    e = vq(w_dma(8), max(e, bar[6]))
    if PF and "pq1" in OPT: e = vq(pf_w(sWQ, vPW, 16384 + 6144, 0, sX, sX+1), e + 16); assert e < bar[7]
    e = vq(w_dma(9), max(e, bar[7]))
    if PF and "pq1" not in OPT:
        sq([f"v_mov_b32 v{vT+12}, v{vPW}"], 400, 401); e = vq(pf_w(sWQ, vT+12, 16384 + 6144, 0, sX, sX+1), max(e, 470)); assert e < bar[8]
    e = e; e = vq(w_dma(10), max(e, bar[8] + 14))
    e = vq(w_dma(12), e + 8); e = vq(w_dma(11), max(e, bar[9] + 6)); e = vq(w_dma(13), e + 8); e = vq(w_dma(14), e + 12); e = vq(w_dma(15), e + 12)
    assert e < 690
    g = [[W(vm="pp"), f"v_add_f32 v{PP}, v{PP}, v{PP+4}"]] + [f"v_add_f32 v{PP+j}, v{PP+j}, v{PP+4+j}" for j in range(1, 4)]
    g += [f"v_add_f32 v{PP+8+j}, v{PP+8+j}, v{PP+12+j}" for j in range(4)] + [f"v_add_f32 v{PP+j}, v{PP+j}, v{PP+8+j}" for j in range(4)]
    g += rnd(PP, PP+1, PP+4) + rnd(PP+2, PP+3, PP+5) + [f"v_add_f32 v{PP+j}, s{sADD}, v{PP+j}" for j in range(4)]
    g += rnd(PP, PP+1, PP+4) + rnd(PP+2, PP+3, PP+5) + [f"v_mul_f32 v{PP+j}, {fbits(CSCALE)}, v{PP+j}" for j in range(4)]
    g += [f"s_lshl_b32 s{sMF}, s{sW}, 10", f"s_add_u32 s{sMF}, s{sMF}, {MODV}", f"v_add_u32 v{PP+4}, s{sMF}, v{vL16}", f"v_lshlrev_b32 v{TT}, 5, v0", f"v_add_u32 v{TT}, {MODV}, v{TT}"]
    g += [[W(vm="mf"), f"v_add_f32 v{MF}, v{MF}, v{MF+1}"], f"v_add_f32 v{MF+2}, v{MF+2}, v{MF+3}", f"v_add_f32 v{MF}, v{MF}, v{MF+2}",
          f"v_cvt_pk_bf16_f32 v{MF}, v{MF}, v{MF}", f"v_lshlrev_b32 v{vT+11}, 16, v{MF}"]
    spread(slots, g, 372, 424)
    lq([LG(f"ds_write_b128 v{PP+4}, {vr(PP,4)}", "mv")], 425)
    assert bar[7] > 427
    before_bar(7, [W(lg="mv")])
    put([LG(f"ds_read_b128 {vr(r,4)}, v{TT} offset:{off}", "ab") for r, off in ((BV, 0), (BV+4, 16), (AV, 2048), (AV+4, 2064))], bar[7] + 1, 2)
    g = []
    for j in range(8):
        for F in (F0, F1): g += [f"v_fma_f32 v{F+j}, v{F+j}, v{AV+j}, v{BV+j}"]
    g[0] = [W(lg="ab"), g[0]]
    for j in range(4):
        for F, xr in ((F0, XR), (F1, XR+4)): g += [f"v_cvt_pk_bf16_f32 v{xr+j}, v{F+2*j}, v{F+2*j+1}"]
    HA, HG, HD = vT+2, vT+3, vT+12
    g += [f"s_lshr_b32 s{sMF}, s{sW}, 1", f"s_mul_i32 s{sMF}, s{sMF}, {CW - 4160}", f"s_mul_i32 s{sADD}, s{sW}, 2080", f"s_add_u32 s{sMF}, s{sMF}, s{sADD}",
          f"s_add_u32 s{sMF}, s{sMF}, {HSTA}", f"v_add_u32 v{TT}, s{sMF}, v{vL16}"]
    g += [x.t for x in flat([f"""
    v_and_b32 v{HG}, 7, v0
    v_lshrrev_b32 v{TT+2}, 3, v0
    v_mul_u32_u24 v{HA}, 1040, v{HG}
    v_lshrrev_b32 v{TT+3}, 2, v{HG}
    v_mul_u32_u24 v{TT+3}, {CW - 4160}, v{TT+3}
    v_add_u32 v{HA}, v{HA}, v{TT+3}
    v_lshl_add_u32 v{HA}, v{TT+2}, 4, v{HA}
    s_lshl_b32 s{sMF}, s{sW}, 8
    s_add_u32 s{sMF}, s{sMF}, {HSTA}
    v_add_u32 v{HA}, s{sMF}, v{HA}
    v_lshlrev_b32 v{HG}, 4, v{HG}
    v_and_b32 v{TT+3}, 3, v{TT+2}
    v_lshl_add_u32 v{HG}, v{TT+3}, 8, v{HG}
    v_lshrrev_b32 v{TT+2}, 2, v{TT+2}
    v_lshl_add_u32 v{HG}, v{TT+2}, 10, v{HG}
    s_and_b32 s{sMF}, s{sHST}, 1
    s_lshr_b32 s{sHST}, s{sHST}, 1
    s_lshl_b32 s{sHST}, s{sHST}, 14
    s_lshl_b32 s{sMF}, s{sMF}, 7
    s_add_u32 s{sHST}, s{sHST}, s{sMF}
    s_lshl_b32 s{sMF}, s{sW}, 12
    s_add_u32 s{sHST}, s{sHST}, s{sMF}
    s_add_u32 s{sHST}, s{sHST}, {WS_H}
    """])]
    spread(slots, g, bar[7] + 12, 488)
    put([LG(f"ds_write_b128 v{TT}, {vr(XR+4*k,4)} offset:{1040*k}", "hw") for k in range(2)], 489, 2)
    assert bar[8] > 491
    before_bar(8, [W(lg="hw")])
    put([LG(f"ds_read_b128 {vr(XR+56+4*k,4)}, v{HA} offset:{128*k}", "hr") for k in range(2)], bar[8] + 1, 1)
    e = vq([VM(f"buffer_store_dword v{vT+11}, v{vL4}, {WS}, s{sSPIN} offen sc1", "hst")] +
           [[W(lg="hr"), VM(f"buffer_store_dwordx4 {vr(XR+56+4*k,4)}, v{HG}, {WS}, s{sHST} offen offset:{2048*k} sc1", "hst")] for k in range(2)], bar[8] + 1)
    assert e < 524
    HB_ = int(OV("hb", 10))
    before_bar(HB_, [W(vm="hst")])
    sq(flag_off(sMF, 0, True), bar[HB_] - 12, bar[HB_] - 11)
    vq([publish(vT+2, sMF)], bar[HB_] + 1)
    def pack(dst, qa, qb):
        return [f"v_cvt_pk_bf16_f32 v{dst}, v{qa}, v{qa+1}", f"v_cvt_pk_bf16_f32 v{dst+1}, v{qa+2}, v{qa+3}",
                f"v_cvt_pk_bf16_f32 v{dst+2}, v{qb}, v{qb+1}", f"v_cvt_pk_bf16_f32 v{dst+3}, v{qb+2}, v{qb+3}"]
    def store(src, sreg, off, tag):
        return [f"s_add_u32 s{sT0}, s{sreg}, {off & ~4095}", VM(f"buffer_store_dwordx4 {vr(src,4)}, v{vL16}, {WS}, s{sT0} offen offset:{off & 4095} sc1", tag)]
    def at23(e):
        while (e & 3) < 2: e += 1
        return e
    kl = [(s4, kt) for s4 in (2, 3, 0, 1) for kt in range(4)]
    for n, (s4, kt) in enumerate(kl):
        dst = accK({2: 4, 3: 6, 0: 5, 1: 7}[s4], kt)
        b = 514 + n*(22 if n < 2 else 12) + (20 if n >= 2 else 0)
        put(pack(dst, accK(2*s4, kt), accK(2*s4+1, kt)), b, 2, "alu")
        e = vq([store(dst, sKST, (kt >> 1)*8192 + ((kt & 1)*4 + s4)*1024, "kst")], 530 + int(OV("ksp", 21))*n)
        assert b + 6 < 530 + int(OV("ksp", 21))*n and b + 6 < 764 and e < 880
    sH = 32; sUS, sUL = sMF, sHST
    slots[815].alu += [I("s_barrier")]
    if "ct2" in OPT:
        slots[860].alu.append(flat([f"Lb0_{N}:"])); vq([code_part(f"Lb0_{N}", f"Lfin_{N}", 14, 32, vT+10)], 640)
    for q, b in ((16, 690), (17, bar[11] + 30), (18, bar[12]), (19, 815)): e = vq(w_dma(q), b + 1)
    sq(flag_off(sSPIN, 0, False) + [f"v_and_b32 v{vT+2}, 31, v0", f"v_lshlrev_b32 v{vT+2}, 2, v{vT+2}"], 780, 800)
    ld = f"buffer_load_dword v{vT+3}, v{vT+2}, {WS}, s{sSPIN} offen sc1"
    vq([VM(ld, "poll2")], max(e, 836))
    sq([f"""
    s_lshl_b32 s{sUS}, s{sJ}, 2
    s_sub_u32 s{sUL}, 60, s{sUS}
    s_add_u32 s{sUS}, s{sUS}, s{sW}
    s_add_u32 s{sUL}, s{sUL}, s{sW}
    s_lshl_b32 s{sH}, s{sUL}, 15
    s_add_u32 s{sH}, s{sH}, {WS_H}
    s_add_u32 s{sH+1}, s{sH}, 16384
    s_lshl_b32 s{sH+2}, s{sUS}, 15
    s_add_u32 s{sH+2}, s{sH+2}, {WS_H}
    s_add_u32 s{sH+3}, s{sH+2}, 16384
    """], 850, 876)
    slots[883].alu += check(ld, f"v_cmp_ne_u32 vcc, 1, v{vT+3}", sADD, "poll2") + [I("s_barrier")]
    def h_ld(s):
        g = []
        for qi in range(4):
            x = [VM(f"buffer_load_dwordx4 {Hf(s, qi)}, v{vL16}, {WS}, s{sH+qi} offen offset:{(s&3)*1024} sc1", ("h", s))]
            if (s & 3) == 3: x.append(f"s_add_u32 s{sH+qi}, s{sH+qi}, 4096")
            g.append(x)
        return g
    for n in range(8):
        t, uu = n >> 1, n & 1; qa = X + (t*4+2*uu)*4
        put(pack(qa, qa, qa+4), 780 + 10*n, 2, "alu")
        e = vq([store(qa, sVST, uu*8192 + t*1024, "vst")], int(OV("va0", 872)) + int(OV("vap", 19))*n)
        assert e < 1020
    e = vq(h_ld(0) + h_ld(1) + h_ld(2) + h_ld(3), 884)
    assert e < 990
    if HE: e = vq(h_ld(4) + h_ld(5) + h_ld(6) + h_ld(7), max(e, 936)); assert e < 1060
    for n in range(8):
        t, uu = n >> 1, n & 1; qa = ACC + (t*4+2*uu)*4
        put(pack(WF + 4*n, qa, qa+4), 1024 + 3*n, 1, "alu") if n < 4 else put(pack(WF + 4*n, qa, qa+4), 1024 + 12 + 3*(n-4), 1, "alu")
        e = vq([store(WF + 4*n, sVST, uu*8192 + (4+t)*1024, "vst")], int(OV("vs0", 1050)) + int(OV("vsp", 20))*n); vend = e
    def kvflag(dst, base, own):
        r = [f"s_lshl_b32 s{dst}, s{sHEAD}, 5", f"s_add_u32 s{dst}, s{dst}, {WS_FLAG + base}"]
        if own: r += [f"s_lshl_b32 s{sT0}, s{sJ}, 2", f"s_add_u32 s{dst}, s{dst}, s{sT0}"]
        return r + [f"s_cmp_eq_u32 s{sW}, 0", f"s_cselect_b32 s{dst}, s{dst}, {OOB:#x}"]
    before_bar(16, [W(vm="kst")])
    sq(kvflag(sSPIN, KF, True), bar[16] - 12, bar[16] - 11)
    vq([publish(vT+2, sSPIN)], bar[16] + 1)
    for p in (0, 4, 8, 12): slots[p*64].alu += st()
    for p in range(15): slots[p*64].alu += st("A")
    for p in range(9, 24): slots[p*64].alu += st("B")
    B0 = 1024
    slots[B0].alu += st()
    sK, sCT = 12, 36; sMK = [24, 26, 32, 34]
    sKO, sCNT, sODW, sFL = 78, 86, 87, 90
    vKB, vVB, ONES, LS, PB, CB, TMP = 2, 3, 12, 16, 32, 192, 224
    sq([f"""
    s_lshl_b32 s{sKO}, s{sHEAD}, 20
    s_add_u32 s{sK}, s{sWS}, s{sKO}
    s_addc_u32 s{sK+1}, s{sWS+1}, 0
    s_sub_u32 s{sK+2}, 16, s{sJ}
    s_lshl_b32 s{sK+2}, s{sK+2}, 16
    s_mov_b32 s{sK+3}, 0x20000
    s_add_u32 s{sKO}, s{sM0K}, {4*32768}
    """], bar[20] + 1, bar[20] + 12)
    vF = LS
    sq(kvflag(sFL, KF, False) + [f"v_and_b32 v{vF}, 7, v0", f"v_lshlrev_b32 v{vF}, 2, v{vF}"], bar[19] - 20, bar[19] - 4)
    ld = f"buffer_load_dword v{vF+1}, v{vF}, {WS}, s{sFL} offen sc1"
    e = vq([VM(ld, "poll3")], bar[19]); assert e < bar[20] - 20
    before_bar(20, check(ld, f"v_cmp_ne_u32 vcc, 1, v{vF+1}", sCNT, "poll3"))
    VB = int(OV("vb", 21)); assert vend < bar[VB] - 20 and vend < bar[20] + 100
    before_bar(VB, [W(vm="vst")])
    sq(kvflag(sFL, VF, True), bar[VB] - 12, bar[VB] - 11)
    e = vq([publish(vF+2, sFL)], bar[VB] + 1)
    sq(kvflag(sFL, VF, False), e + 4, e + 12)
    vq([VM(ld, "poll4")], bar[23] + 1)
    LEAD = int(OV("lead", 120)); LEADH = int(OV("leadh", LEAD)); e = B0
    for s in range(8 if HE else 4, 16, 2):
        q = 16 + s//2
        if q >= 20: e = vq(w_dma(q), max(e, bar[17] + 1, bar[q] - LEAD)); assert e < bar[q] - 50
        e = vq(h_ld(s) + h_ld(s+1), max(e, B0 + (s-6)*32 if s < 12 or not HE else 0, B0 + s*32 - LEADH)); assert e < B0 + s*32 - 50, (s, e)
    hend = e
    vcheck = check(ld, f"v_cmp_ne_u32 vcc, 1, v{vF+1}", sCNT, "poll4")
    def kv_dma(which, tag, pair=None):
        if pair is None: so = sKO; grp = [f"s_and_b32 m0, s{sKO}, 0x1ffff"]
        else: so = sT1; grp = [f"s_add_u32 s{sT1}, s{sM0K}, {pair*32768 + (which == 'V')*16384}", f"s_mov_b32 m0, s{sT1}"]
        g = [grp]
        for n in range(4): g.append([VM(f"buffer_load_dwordx4 v{vL16}, s[{sK}:{sK+3}], s{so} offen offset:{n*1024} {OV('kvf', 'sc1').replace('none', '').replace('+', ' ')} lds", tag)])
        if pair is None: return SEQ(g + [[f"s_sub_u32 s{sKO}, s{sKO}, 16384" if which == "K" else f"s_add_u32 s{sKO}, s{sKO}, 49152"]])
        return SEQ([g[0] + g[1]] + g[2:])
    e = vq(kv_dma("K", ("K", 0), 0) + kv_dma("K", ("K", 1), 1), max(hend, bar[21] + 1))
    sS1, sD1, sD3, sS2, sX0, sX1, sW2 = 80, 7, 81, 91, 85, 83, 16; sD2 = [20, 21, 22, 23]
    vU1, vU2, vUT = TMP+12, TMP+16, TMP+20
    g = srd(sW2, PW2, 1792*1024) + [f"""
    s_lshl_b32 s{sX0}, s2, 2
    s_add_u32 s{sX0}, s{sX0}, s{sW}
    s_and_b32 s{sX0}, s{sX0}, 511
    s_lshr_b32 s{sS1}, s{sX0}, 3
    s_and_b32 s{sX1}, s{sX0}, 7
    s_lshl_b32 s{sD1}, s{sX1}, 7
    s_add_u32 s{sD1}, s{sD1}, s{sS1}
    s_lshl_b32 s{sD1}, s{sD1}, 12
    s_add_u32 s{sD1}, s{sD1}, {WS_WOF}
    s_mul_i32 s{sD3}, s{sX1}, 56
    s_add_u32 s{sD3}, s{sD3}, s{sS1}
    s_lshl_b32 s{sD3}, s{sD3}, 12
    s_add_u32 s{sD3}, s{sD3}, {WS_W2F}
    s_lshl_b32 s{sS1}, s{sS1}, 15
    s_lshl_b32 s{sX1}, s{sX1}, 7
    s_add_u32 s{sS1}, s{sS1}, s{sX1}
    s_and_b32 s{sX1}, s{sX0}, 15
    s_mul_i32 s{sS2}, s{sX1}, {32*3584}
    s_mul_i32 s{sX1}, s{sX1}, 7168
    s_add_u32 s{sX1}, s{sX1}, {WS_W1F}
    s_cmp_lt_u32 s{sX0}, 448
    s_cselect_b32 s{sX1}, s{sX1}, {OOB:#x}
    s_cselect_b32 s{sD3}, s{sD3}, {OOB:#x}
    s_cselect_b32 s{sU2+2}, s{sU2+2}, 0
    s_cmp_ge_u32 s2, 128
    s_cselect_b32 s{sWO+2}, s{sWO+2}, 0
    s_lshr_b32 s{sX0}, s{sX0}, 4
    s_lshl_b32 s{sD2[0]}, s{sX0}, 7
    s_add_u32 s{sS2}, s{sS2}, s{sD2[0]}
    s_lshl_b32 s{sX0}, s{sX0}, 2
    """] + [f"""
    s_mul_i32 s{sODW}, s{sX0}, 9363
    s_lshr_b32 s{sODW}, s{sODW}, 16
    s_mul_i32 s{sODW}, s{sODW}, {114688-7168}
    s_lshl_b32 s{sD2[t]}, s{sX0}, 10
    s_add_u32 s{sD2[t]}, s{sD2[t]}, s{sODW}
    s_add_u32 s{sD2[t]}, s{sD2[t]}, s{sX1}
    s_add_u32 s{sX0}, s{sX0}, 1
    """ for t in range(4)] + [f"""
    v_lshrrev_b32 v{vUT}, 3, v0
    v_and_b32 v{vUT+1}, 7, v0
    v_and_b32 v{vUT+2}, 6, v{vUT}
    v_xor_b32 v{vUT+2}, v{vUT+2}, v{vUT+1}
    v_lshlrev_b32 v{vUT+2}, 4, v{vUT+2}
    v_lshl_add_u32 v{vU1}, v{vUT}, 10, v{vUT+2}
    v_add_u32 v{vU1+1}, 7168, v{vU1}
    v_add_u32 v{vU1+2}, {2*7168}, v{vU1}
    v_add_u32 v{vU1+3}, {3*7168}, v{vU1}
    v_mul_u32_u24 v{vU2}, 3584, v{vUT}
    v_add_u32 v{vU2}, v{vU2}, v{vUT+2}
    v_add_u32 v{vU2+1}, {8*3584-1024}, v{vU2}
    v_add_u32 v{vU2+2}, {2*(8*3584-1024)}, v{vU2}
    v_add_u32 v{vU2+3}, {3*(8*3584-1024)}, v{vU2}
    v_lshrrev_b32 v{vUT+1}, 4, v0
    v_bfe_u32 v{vUT+2}, v0, 2, 2
    v_lshl_add_u32 v{vUT+1}, v{vUT+1}, 2, v{vUT+2}
    v_bfe_u32 v{vUT+2}, v{vUT+1}, 1, 2
    v_lshlrev_b32 v{vUT+1}, 7, v{vUT+1}
    v_lshl_add_u32 v{vUT+1}, v{vUT+2}, 5, v{vUT+1}
    v_and_b32 v{vUT+2}, 3, v0
    v_lshl_add_u32 v{vUT+1}, v{vUT+2}, 3, v{vUT+1}
    s_lshl_b32 s{sX0}, s{sW}, 13
    s_add_u32 s{sX0}, s{sX0}, 131072
    v_add_u32 v{vUT}, s{sX0}, v{vUT+1}
    v_xor_b32 v{vUT+1}, 32, v{vUT}
    v_xor_b32 v{vUT+2}, 64, v{vUT}
    v_xor_b32 v{vUT+3}, 0x60, v{vUT}
    """]
    sq(g[:-1], B0 + 250, B0 + 380); sq(g[-1:], B0 + 388, B0 + 432)
    def side_dma(rnd_):
        r = []
        for u, (vo, sd, so) in enumerate((((vU1, sWO, f"s{sS1}, 0"), (vU1, sWO, f"s{sS1}, {64*32768}")), ((vU1, sW2, f"s{sS1}, 0"), (vU2, sU2, f"s{sS2}, 0")))[rnd_]):
            d = [[VM(f"buffer_load_dwordx4 v{vo+n}, s[{sd}:{sd+3}], s{sT0} offen offset:{n*1024}{NT1} lds", "ud")] for n in range(4)]
            d[0] = [f"s_add_u32 m0, s{sX0}, {u*4096}", f"s_add_u32 s{sT0}, {so}"] + d[0]
            r += SEQ(d)
        return r
    def side_reads(): return [LG(f"ds_read_b64_tr_b16 {ar(192 + u*16 + t*4 + 2*hh, 2)}, v{vUT+t} offset:{u*4096 + hh*2048}", "ur") for u in range(2) for t in range(4) for hh in range(2)]
    def side_stores(rnd_):
        st_ = lambda q, so, off: [VM(f"buffer_store_dwordx4 {ar(192 + 4*q, 4)}, v{vL16}, {WS}, s{so} offen offset:{off} sc1")]
        if rnd_ == 1: return [st_(t, sD3, t*1024) for t in range(4)] + [st_(4+t, sD2[t], 0) for t in range(4)]
        r = [st_(t & 3 | (t & 4), sD1, (t & 3)*1024) for t in range(8)]
        r[3] = r[3] + [f"s_add_u32 s{sD1}, s{sD1}, {64*4096}"]
        return r
    e = vq(side_dma(0), bar[23] + 8); assert e < B0 + 510
    init = [f"v_accvgpr_write_b32 a{r}, 0" for r in range(64, 128)] + [f"v_mov_b32 v{ONES+r}, 0x3f803f80" for r in range(4)]
    spread(slots, init, B0 + 52, B0 + 250)
    spread(slots, [f"v_accvgpr_write_b32 a{r}, 0" for r in range(64)], B0 + 260, B0 + 440)
    init = [x.t for x in flat([f"""
    s_lshl_b32 s{sODW}, s{sHEAD}, 12
    s_add_u32 s{sODW}, s{sODW}, {WS_CTX}
    s_lshl_b32 s{sCT}, s{sUL}, 18
    s_add_u32 s{sCT}, s{sCT}, s{sODW}
    s_add_u32 s{sCT+1}, s{sCT}, 131072
    s_lshl_b32 s{sCT+2}, s{sUS}, 18
    s_add_u32 s{sCT+2}, s{sCT+2}, s{sODW}
    s_add_u32 s{sCT+3}, s{sCT+2}, 131072
    v_lshrrev_b32 v{PB+4}, 4, v0
    v_lshlrev_b32 v{PB+4}, 2, v{PB+4}
    v_and_b32 v{PB+5}, 15, v0
    v_sub_u32 v{PB+5}, v{PB+5}, v{PB+4}
    v_cmp_le_i32 s[{sMK[0]}:{sMK[0]+1}], 0, v{PB+5}
    v_cmp_le_i32 s[{sMK[1]}:{sMK[1]+1}], 1, v{PB+5}
    v_cmp_le_i32 s[{sMK[2]}:{sMK[2]+1}], 2, v{PB+5}
    v_cmp_le_i32 s[{sMK[3]}:{sMK[3]+1}], 3, v{PB+5}
    v_mov_b32 v{vKB}, v{vL16}
    v_mov_b32 v{vVB}, v{vL16}
    """])] + [f"v_mov_b32 v{LS+r}, 0" for r in range(2, 16)]
    spread(slots, init, bar[23] - 30, bar[23] + 10)
    spread(slots, [f"v_mov_b32 v{CB+r}, 0" for r in range(32)] + [f"v_mov_b32 v{TMP+31}, 0xff800000"], B0 + 330, B0 + 400)
    def qpack(s4): return sum(([f"v_cvt_pk_bf16_f32 v{acc(2*s4, qi)+k}, v{acc(2*s4 + (k >> 1), qi) + 2*(k & 1)}, v{acc(2*s4 + (k >> 1), qi) + 2*(k & 1) + 1}"
                                for k in range(4)] for qi in range(4)), [])
    for s4 in range(3): spread(slots, qpack(s4), B0 + 448 + 16*s4 + 17, B0 + 448 + 16*s4 + 31 - (s4 == 2))
    if "vmap" in OPT: print("".join(("#" if k in vused else ".") + ("|" if k % 16 == 15 else "") for k in range(len(slots)//4)))
    if "nopack" not in OPT: pack_slots(slots)
    o += emit_slots(slots) + [f"Latt_{N}:"]
    o += st()
    from fatt import attention
    from ftail import tail
    env.update(locals())
    o = resolve_waits(flat(o + attention(env, "prologue")))
    o += attention(env, "main")
    if upto >= 3: o += tail(env, upto)
    return o + finish()
```

```python
from common import *
from flay import *

def attention(env, part):
    g_ = env
    (N, ts, st, sW, sK, sMK, sCT, sT0, sT1, sKO, sCNT, sODW, sUS, sUL, sFL, vL16, vKB, vVB, ONES, LS, PB, CB, TMP,
     aK, aV, acc, kv_dma, WS, upto) = [g_[k] for k in
     "N ts st sW sK sMK sCT sT0 sT1 sKO sCNT sODW sUS sUL sFL vL16 vKB vVB ONES LS PB CB TMP aK aV acc kv_dma WS upto".split()]
    FLAG = 131072; NINF = "0xff800000"; sG = 20
    def Q(qi, s4): return vr(acc(2*s4, qi), 4)
    def S(buf, qi, kt): return acc(2*(buf*2+kt)+1, qi)
    def Pq(buf, qi): return PB + (buf*4+qi)*4
    def C(qi, kt): return CB + (qi*2+kt)*4
    def O(t, qi): return ar((t*4+qi)*4, 4)
    def Kf(kt, ds): return ar(aK + (kt*4+ds)*4, 4)
    def Vf(t): return ar(aV + t*4, 4)
    GQ = {0: (0, 1), 1: (2, 3)}
    def mask(g):
        r = []
        for e in range(4):
            for qt in range(2):
                c = C(GQ[g][qt], qt) + e
                r.append(f"v_cndmask_b32 v{c}, v{TMP+31}, v{c}, s[{sMK[e]}:{sMK[e]+1}]")
            r.append(f"v_mov_b32 v{C(GQ[g][0], 1)+e}, v{TMP+31}")
        return r
    def k_reads(off): return [LG(f"ds_read_b128 {Kf(kt, ds)}, v{vKB} offset:{off + (kt*4+ds)*1024}", ("k", kt*4+ds)) for kt in range(2) for ds in range(4)]
    def v_reads(off): return [LG(f"ds_read_b128 {Vf(t)}, v{vVB} offset:{16384 + off + t*1024}", ("v", t)) for t in range(8)]
    def qk(buf, groups):
        r = []
        for kt in range(2):
            for g in groups:
                for qi in GQ[g]:
                    for ds in range(4):
                        d = vr(S(buf, qi, kt), 4)
                        r.append((I(f"v_mfma_f32_16x16x32_bf16 {d}, {Kf(kt, ds)}, {Q(qi, ds)}, {vr(C(qi, kt), 4) if ds == 0 else d}"), kt*4+ds))
        return r
    def pv(buf, groups):
        r = []
        for t in range(8):
            for g in groups:
                for qi in GQ[g]:
                    r.append((I(f"v_mfma_f32_16x16x32_bf16 {O(t, qi)}, {Vf(t)}, {vr(Pq(buf, qi), 4)}, {O(t, qi)}"), t))
        for g in groups:
            for qi in GQ[g]:
                r.append((I(f"v_mfma_f32_16x16x32_bf16 {vr(LS+4*qi, 4)}, {vr(ONES, 4)}, {vr(Pq(buf, qi), 4)}, {vr(LS+4*qi, 4)}"), None))
        return r
    def softmax(buf, groups):
        ex = []; cv = []
        for g in groups:
            for qi in GQ[g]:
                for kt in range(2):
                    s0 = S(buf, qi, kt)
                    for h in range(2):
                        ex += [f"v_exp_f32 v{s0+2*h}, v{s0+2*h}", f"v_exp_f32 v{s0+2*h+1}, v{s0+2*h+1}"]
                        cv += [f"v_cvt_pk_bf16_f32 v{Pq(buf, qi)+2*kt+h}, v{s0+2*h}, v{s0+2*h+1}"]
        return ex, cv
    if part == "prologue":
        o = env["vcheck"] + [W(vm=[("K", 0)]), "s_barrier", k_reads(0), kv_dma("V", ("V", 0), 0)]
        o += [f"v_mov_b32 v{LS+r}, 0" for r in range(2)]
        dm = sum((kv_dma(wh, (wh, p), p) for wh, p in (("K", 2), ("V", 1), ("K", 3), ("V", 2))), [])
        o += env["qpack"](3) + [f"s_cmp_lg_u32 s{sUS}, 0", f"s_cbranch_scc1 Lp0_{N}", mask(1), f"Lp0_{N}:", "s_nop 1"]
        q0 = [Slot(m) for m, _ in qk(0, (0, 1))]
        for k in range(8): q0[4*k + 1].mem.append(dm[k])
        o += [W(lg=[("k", 7)])] + emit_slots(q0)
        o += [k_reads(8192), "s_nop 3", f"s_cmp_lg_u32 s{sUS}, 1", f"s_cbranch_scc1 Lp1_{N}", mask(1), f"Lp1_{N}:", "s_nop 1"]
        q1 = [Slot(m) for m, _ in qk(1, (0, 1))]
        q1[0].pre.append(W(lg=[("k", 7)]))
        mx = []
        for qi in range(4):
            a, b, t = S(0, qi, 0), S(0, qi, 1), TMP + qi
            mx += [f"v_max3_f32 v{t}, v{a}, v{a+1}, v{a+2}", f"v_max3_f32 v{t}, v{t}, v{a+3}, v{b}",
                   f"v_max3_f32 v{t}, v{t}, v{b+1}, v{b+2}", f"v_max_f32 v{t}, v{t}, v{b+3}"]
        for sw in ("v_permlane16_swap_b32", "v_permlane32_swap_b32"):
            mx += [f"v_mov_b32 v{TMP+4+qi}, v{TMP+qi}" for qi in range(4)]
            mx += [f"{sw} v{TMP+qi}, v{TMP+4+qi}" for qi in range(4)]
            mx += [f"v_max_f32 v{TMP+qi}, v{TMP+qi}, v{TMP+4+qi}" for qi in range(4)]
        spread(q1, mx, 2, 32)
        for k in range(8): q1[4*k + 1].mem.append(dm[8 + k])
        o += emit_slots(q1)
        o += [W(vm=[("K", 1), ("V", 0)]), "s_barrier", f"v_add_u32 v{vKB}, 32768, v{vL16}", k_reads(0)]
        for qi in range(4):
            for kt in range(2): o += [f"v_sub_f32 v{S(0, qi, kt)+e}, v{S(0, qi, kt)+e}, v{TMP+qi}" for e in range(4)]
        ex, cv = softmax(0, (0, 1))
        for k in range(len(cv)): o += ex[2*k:2*k+2] + ([cv[k-1]] if k else [])
        o += [cv[-1]]
        for qi in range(4):
            for kt in range(2):
                o += [f"v_sub_f32 v{C(qi, kt)+e}, v{C(qi, kt)+e}, v{TMP+qi}" for e in range(4)]
                o += [f"v_sub_f32 v{S(1, qi, kt)+e}, v{S(1, qi, kt)+e}, v{TMP+qi}" for e in range(4)]
        return o + st()
    MODES = {"D": ((0, 1), (0, 1), (0, 1)), "T1": ((0,), (0, 1), (0, 1)), "T2": ((0,), (0,), (0, 1)),
             "S": ((0,), (0,), (0,)), "F1": ((), (0,), (0,)), "F2": ((), (), (0,))}
    def iteration(mode, par, last=False, tail=(), xlds=(), xvm=(), xseq=False):
        gq, gs, gp = MODES[mode]
        m1 = qk(par, gq); m2 = pv(par, gp)
        sl = [Slot(m) for m, _ in m1 + m2]; n1 = len(m1); n2 = len(m2); n = n1 + n2
        ex, cv = softmax(1 - par, gs)
        free = [8]*n; pre = []
        epos = [min(n - 2, 1 + (k*(n - 1))//len(ex)) for k in range(len(ex))] if ex else []
        for k, x in enumerate(ex): sl[epos[k]].alu.append(I(x)); free[epos[k]] -= 8
        def place(x, lo, hi=None, mem=False, after=None):
            hi = n - 1 if hi is None else min(hi, n - 1); lo = min(lo, hi)
            c = [i for i in range(lo, hi + 1) if free[i] >= 4]
            i = c[0] if c else max(range(lo, hi + 1), key=lambda k: (free[k], -k))
            (sl[i].mem if mem else sl[i].alu).append(x); free[i] -= 4
            return i
        first = lambda ms, f: next(i for i, (_, g) in enumerate(ms) if g == f)
        for k, x in enumerate(cv): place(I(x), epos[2*k+1] + 1)
        vrd = v_reads(par*8192)
        DE = "dlate" not in env["opt"] and n1 == 16 and not last
        if DE:
            dm = kv_dma("K" if par == 0 else "V", "d")
            i = place(dm[0], 0, 0)
            for k, g in enumerate(dm[1:5]): i = place(g, 2 + 4*k, 2 + 4*k, mem=True)
            place(dm[5], i, i + 4)
        if n1:
            i = 0
            for k, r in enumerate(vrd): i = place(r, max(i, k*(n1*int(env['OV']('vs', 5))//8)//8), n1 - 2, mem=True)
            place(W(lg=[("k", 7)]), max(0, first(m1, 4) - 3), first(m1, 4) - 1)
            place(W(lg=[("v", 3)]), n1 - 3, n1 - 1)
        else: pre += vrd + [W(lg=[("v", 3)])]
        wv = n1 + first(m2, 4) - 1
        if last:
            place(W(lg=[("v", 7)]), wv - 2, wv); i = 0
            for k, g in enumerate(xvm): i = place(flat(g), max(k*(n - 1)//len(xvm), i + 1 if k else 0), n - 1, mem=True)
        else:
            if par == 0:
                place(W(lg=[("v", 7)]), wv - 2, wv); b = n1; krd = k_reads(8192)
            else:
                b = n1 + max(1, n2*int(env['OV']('bo', 2))//18)
                while free[b] < 8 and b < wv: b += 1
                sl[b].alu += flat([W(lg=[("v", 7)], vm="*16"), "s_barrier"]); free[b] -= 8
                i = b
                for x in (f"v_mov_b32 v{vVB}, v{vKB}", f"v_add_u32 v{vKB}, 0x8000, v{vKB}", f"v_and_b32 v{vKB}, 0x1ffff, v{vKB}"):
                    i = place(I(x), max(n1 - 1, b - 4) if i == b else i, b - 1) if n1 else (pre.append(I(x)) or 0)
                b += 1; krd = k_reads(0)
            i = b
            for k, r in enumerate(krd): i = place(r, max(i, b + k*((n - b)*int(env['OV']('ks', 5))//8)//8), n - 2, mem=True)
            dm = kv_dma("K" if par == 0 else "V", "d")
            hi = (n//3 if xseq else n - 2) if par == 0 else b - 2
            i = 2
            for k, x in enumerate(xlds): i = place(x, max(i, 2 + k*(n - 8)//len(xlds)), n - 4, mem=True)
            if DE: pass
            elif hi < 8: pre += dm
            else:
                i = place(dm[0], 0, hi)
                for k, g in enumerate(dm[1:5]): i = place(g, max(i + 1, 2 + k*(hi - 2)//4), hi, mem=True)
                i = place(dm[5], i, hi)
            lo = i + 1 if xseq else 1
            for k, g in enumerate(xvm):
                t_ = max(lo + k*(n - 2 - lo)//len(xvm), i + 1 if k else 0)
                i = place(flat(g), t_, min(t_ + 2, n - 2), mem=True)
                free[i] -= 4*(len(flat(g)) - 1)
            place(W(lg=[("k", 3)]), n - 1)
        for x in tail: place(I(x), n - 3)
        env.setdefault("over", []).append((mode, par, n, sum(-f for f in free if f < 0), sum(f for f in free if f > 0)))
        return pre + emit_slots(sl)
    def epilogue(g, tsets, psets, rc):
        r = [f"v_rcp_f32 v{rc+k}, v{LS+4*qi}" for k, qi in enumerate(GQ[g])]
        n = 0
        for k, qi in enumerate(GQ[g]):
            for s4 in range(4):
                t = tsets[n % len(tsets)]; p = psets[n % len(psets)]; n += 1
                for h in range(2): r += [f"v_accvgpr_read_b32 v{t+4*h+e}, a{((2*s4+h)*4+qi)*4+e}" for e in range(4)]
                r += [f"v_pk_mul_f32 {vr(t+2*e, 2)}, {vr(t+2*e, 2)}, {vr(rc, 2)} op_sel:[0,{k}] op_sel_hi:[1,{k}]" for e in range(4)]
                r += [f"v_cvt_pk_bf16_f32 v{p+e}, v{t+2*e}, v{t+2*e+1}" for e in range(4)]
                r += [VM(f"buffer_store_dwordx4 {vr(p, 4)}, v{vL16}, {WS}, s{sCT+qi} offen offset:{s4*1024} sc1", "ctx")]
        return r
    epi_short = lambda: epilogue(1, [CB+16], [PB+8, PB+12], CB+28)
    epi_long = lambda: epilogue(0, [TMP], [TMP+8, TMP+12], TMP+24) + ([] if "epiend" not in env["opt"] else epi_short())
    def code_touch(a, b):
        env["npc"] = env.get("npc", 0) + 1; l = f"Lpc{env['npc']}_{N}"
        return ["s_getpc_b64 s[40:41]", f"{l}:", f"s_add_u32 s40, s40, {a}-{l}", "s_addc_u32 s41, s41, 0", f"s_mov_b32 s42, {b}-{a}", "s_mov_b32 s43, 0x20000",
                f"s_lshl_b32 s{sT0}, s{sW}, 13", f"v_lshlrev_b32 v{TMP+10}, 7, v0", VM(f"buffer_load_dword v{TMP+11}, v{TMP+10}, s[40:43], s{sT0} offen", "code")]
    sWB, sCTL, sML, sROT = 82, 80, 81, 91
    ROT = env["ROT"] = not env["XL"] and "norot" not in env["opt"]
    CTL = f"s_lshr_b32 s{sCTL}, s2, 5" if env["XL"] else f"s_and_b32 s{sCTL}, s2, 1\ns_lshl_b32 s{sCTL}, s{sCTL}, 2\ns_bfe_u32 s{sT0}, s2, 0x20003\ns_add_u32 s{sCTL}, s{sCTL}, s{sT0}"
    def wreg(i, t):
        i %= 16
        if i < 8: return (192 + 16*i if i < 4 else 64 + 16*i) + 4*t
        return ((2*(i & 3) + (t >> 1))*4 + (2 if i < 12 else 0) + (t & 1))*4
    def w_step(i, lds=None):
        if lds is None: g = [[VM(f"buffer_load_dwordx4 {ar(wreg(i, t), 4)}, v{vL16}, {WS}, s{sT1} offen offset:{t*1024} sc1", ("cw", i))] for t in range(4)]
        else: g = [[VM(f"buffer_load_dwordx4 v{vL16}, {WS}, s{sT1} offen offset:{t*1024} sc1 lds", ("cw", i))] for t in range(4)]
        off = [f"s_add_u32 s{sT1}, s{sROT}, {i*4096}", f"s_and_b32 s{sT1}, s{sT1}, 0x1ffff", f"s_add_u32 s{sT1}, s{sT1}, s{sWB}"] if ROT else [f"s_add_u32 s{sT1}, s{sWB}, {i*4096}"]
        g[0] = ([] if lds is None else [f"s_add_u32 m0, {lds}"]) + off + g[0]
        return SEQ(g)
    EW = "noew" not in env["opt"]; XS = env["XS"] = "noxs" not in env["opt"] and upto >= 3
    def early_w(force=False): return [] if not (EW or force) else sum((w_step(i) for i in range(4)), []) + w_step(16, f"s{sML}, 0") + w_step(17, f"s{sML}, 4096") if upto >= 3 else []
    def early_ep(): return [[VM(f"buffer_load_dwordx2 {vr(CB+16+2*t, 2)}, v{TMP+12}, s[16:19], s79 offen offset:{t*32}")] for t in range(4)] + \
                           [[VM(f"buffer_load_dword v{CB+24+k}, v{TMP+13}, {WS}, s83 offen offset:{k*2048 if k < 2 else 0} sc1")] + ([f"s_add_u32 s83, s83, 4096"] if k == 1 else []) for k in range(3)]
    def ep_addr():
        assert env["XL"]
        return srd(16, env["pX"], 2*MB) + [f"""
        s_and_b32 s79, s2, 7
        s_lshl_b32 s79, s79, 2
        s_bfe_u32 s{sT0}, s2, 0x20003
        s_add_u32 s79, s79, s{sT0}
        s_lshl_b32 s79, s79, 2
        s_add_u32 s79, s79, s{sW}
        s_lshl_b32 s79, s79, 14
        s_lshl_b32 s{sT0}, s{sCTL}, 7
        s_add_u32 s79, s79, s{sT0}
        s_mul_i32 s83, s{env['sJ']}, 12288
        s_lshl_b32 s{sT0}, s{sCTL}, 8
        s_add_u32 s83, s83, s{sT0}
        s_add_u32 s83, s83, {WS_MODF + 2*2048}
        v_lshrrev_b32 v{TMP+13}, 4, v0
        v_and_b32 v{TMP+12}, 15, v0
        v_lshlrev_b32 v{TMP+12}, 10, v{TMP+12}
        v_lshl_add_u32 v{TMP+12}, v{TMP+13}, 3, v{TMP+12}
        v_lshlrev_b32 v{TMP+13}, 2, v0
        """]
    env["wreg"] = wreg; env["w_step"] = w_step
    sld = f"buffer_load_dwordx2 {vr(TMP+8, 2)}, v{TMP+10}, {WS}, s{sFL} offen sc1"
    KT = [("k", i) for i in range(8)]
    def region(items): return resolve_waits(flat(items), pre_lg=KT)
    def side_period(rnd):
        st_ = env["side_stores"](rnd); st_[0] = [W(lg="ur")] + st_[0]
        return region([iteration("D", 0, xlds=env["side_reads"]()), iteration("D", 1, xvm=st_)])
    def loop(mode, lbl, cuts=False):
        r = flat([f"{lbl}_go:", f"s_sub_u32 s{sCNT}, s{sCNT}, 1", f"s_cbranch_scc1 {lbl}_done", ".p2align 6", f"{lbl}:"])
        r += region([iteration(mode, 0), iteration(mode, 1, tail=[f"s_sub_u32 s{sCNT}, s{sCNT}, 1"])]) + flat([f"s_cbranch_scc0 {lbl}"])
        if cuts == "poll":
            r += flat(["s_sub_u32 s1, s1, 1", f"s_cbranch_scc1 {lbl}_done", sld, f"s_mov_b32 s{sCNT}, {1 if XS else 2}", f"s_branch {lbl}_go"])
        elif cuts:
            r += flat(["s_sub_u32 s1, s1, 1", f"s_cbranch_scc1 {lbl}_done", "s_cmp_eq_u32 s1, 0", f"s_cbranch_scc1 {lbl}_pub"]) + side_period(1)
            r += flat([f"s_mov_b32 s{sCNT}, 2", f"s_branch {lbl}_go", f"{lbl}_pub:",
                       f"s_lshl_b32 s{sFL}, s2, 2", f"s_add_u32 s{sFL}, s{sFL}, {WS_FLAG + env['SF']}", f"s_cmp_eq_u32 s{sW}, 0",
                       f"s_cselect_b32 s{sFL}, s{sFL}, {OOB:#x}", [x if isinstance(x, str) else x.t for x in env["publish"](TMP+8, sFL)],
                       f"s_mov_b32 s{sCNT}, s0", f"s_branch {lbl}_go"])
        return r + flat([f"{lbl}_done:"])
    o = flat([f"""
    s_waitcnt lgkmcnt(4)
    s_and_b32 s{sODW}, s{sW}, 1
    s_sub_u32 s{sCNT}, s{sUS}, 1
    s_ashr_i32 s{sCNT}, s{sCNT}, 1
    s_sub_u32 s{sCNT}, s{sCNT}, s{sODW}
    s_max_i32 s{sCNT}, s{sCNT}, 0
    s_mov_b32 s1, 0
    s_cmp_lt_u32 s2, 128
    s_cbranch_scc1 Ldd_{N}_go
    s_mov_b32 s1, 2
    s_sub_u32 s0, s{sCNT}, 7
    s_mov_b32 s{sCNT}, 2
    """]) + side_period(0) + region([iteration("D", 0, xvm=env["side_dma"](1), xseq=True), iteration("D", 1)]) + loop("D", f"Ldd_{N}", True)
    o += flat([f"s_bitcmp1_b32 s{sW}, 0", f"s_cbranch_scc1 Lodd1_{N}", f"s_cmp_eq_u32 s{sUS}, 0", f"s_cbranch_scc1 Lt2s_{N}", mask(1), "s_nop 1"])
    o += region([iteration("D", 0), iteration("T1", 1)])
    o += flat([f"Lt2s_{N}:"]) + region([iteration("T2", 0), iteration("S", 1)])
    o += flat([f"s_branch Lss_entry_{N}", f"Lodd1_{N}:", f"s_cmp_eq_u32 s{sUS}, 1", f"s_cbranch_scc1 Lt12_{N}"])
    o += region([iteration("D", 0), mask(1), "s_nop 0", iteration("D", 1)])
    o += flat([f"Lt12_{N}:"]) + region([iteration("T1", 0), iteration("T2", 1)])
    o += flat([f"Lss_entry_{N}:", f"v_lshlrev_b32 v{TMP+10}, 3, v0", f"s_mov_b32 s{sFL}, {WS_FLAG + env['SF'] + 512}", sld] + (["s_nop 7"] + epi_short() if "epiend" not in env["opt"] else []) + [f"""
    s_sub_u32 s{sCNT}, s{sUL}, s{sUS}
    s_lshr_b32 s{sCNT}, s{sCNT}, 1
    s_sub_u32 s{sCNT}, s{sCNT}, 2
    s_cmp_ge_u32 s{sCNT}, 4
    s_cselect_b32 s1, 1, 0
    s_mov_b32 s0, s1
    s_mul_i32 s{sT0}, s1, {3 if XS else 2}
    s_sub_u32 s{sCNT}, s{sCNT}, s{sT0}
    """]) + loop("S", f"Lss_{N}", "poll")
    o += resolve_waits([VM("s_nop 0", "p5")] + [VM("s_nop 0")]*0 + env["check"](sld, [f"v_and_b32 v{TMP+8}, v{TMP+8}, v{TMP+9}", f"v_cmp_ne_u32 vcc, 1, v{TMP+8}"], sCNT, "*8", every=True))
    o += flat([CTL, f"s_lshl_b32 s{sWB}, s{sCTL}, 19", f"s_lshl_b32 s{sT0}, s{sW}, 17", f"s_add_u32 s{sWB}, s{sWB}, s{sT0}", f"s_add_u32 s{sWB}, s{sWB}, {WS_WOF}",
               f"s_lshl_b32 s{sROT}, s{env['sJ']}, 14", f"s_lshl_b32 s{sML}, s{sW}, 13", f"s_add_u32 s{sML}, s{sML}, 131072"] + ep_addr() +
               (env["code_part"](f"Lfin_{N}", f"Lend_{N}", 8, 40, TMP+14, I) if "noct3" not in env["opt"] else []))
    fin_ep = early_ep
    if XS:
        X2 = "x1" not in env["opt"].split()
        xl = (early_ep() if X2 else []) + sum((w_step(k) for k in range(8, 12)), []); c = (0, 4, 11, 17, 23) if X2 else (0, 4, 8, 12, 16)
        o += flat(["s_cmp_eq_u32 s0, 0", f"s_cbranch_scc1 Lxt_{N}"])
        for k in (0, 2): o += region([iteration("S", 0, xvm=xl[c[k]:c[k+1]]), iteration("S", 1, xvm=xl[c[k+1]:c[k+2]])])
        o += flat([f"s_branch Lxs_{N}", f"Lxt_{N}:", early_ep() if X2 else [], f"Lxs_{N}:"])
        if X2: fin_ep = lambda: []
    o += flat([f"s_bitcmp1_b32 s{sW}, 0", f"s_cbranch_scc1 Lodd2_{N}", mask(0), "s_nop 1"])
    ew = early_w()
    o += region([iteration("S", 0, xvm=fin_ep() + ew[:(c0 := 4 if fin_ep() else 10)]), iteration("F1", 1, xvm=ew[c0:(c1 := 12 if fin_ep() else 16)])]) + region([iteration("F2", 0, last=True, xvm=ew[c1:])])
    o += flat([f"s_branch Lfin_{N}", f"Lodd2_{N}:"]) + region([iteration("S", 0, xvm=fin_ep() + (ew := early_w())[:(c0 := 4 if fin_ep() else 8)]), mask(0), "s_nop 0", iteration("S", 1, xvm=ew[c0:16])])
    o += region([iteration("F1", 0, last=True, xvm=ew[16:20]), iteration("F2", 1, last=True, xvm=ew[20:])])
    if "over" in env["opt"].split(): print(env["over"])
    o += flat([f"Lfin_{N}:", f"s_cmp_ge_u32 s{sW}, 2", f"s_cbranch_scc1 Lepi_{N}", f"s_waitcnt vmcnt({24 if upto >= 3 and EW else 0})", "s_barrier", f"Lepi_{N}:",
               f"s_waitcnt vmcnt({24 if upto >= 3 and EW else 0})"]) + flat(st())
    o += flat([f"s_mov_b32 s{sT0}, {fbits(2.0**90)}", f"s_mov_b64 s[{sG}:{sG+1}], 0", "s_nop 5"])
    for qi in range(4): o += flat([f"v_cmp_ngt_f32 vcc, s{sT0}, v{LS+4*qi}", f"s_or_b64 s[{sG}:{sG+1}], s[{sG}:{sG+1}], vcc"])
    o += flat([f"""
    s_cmp_lg_u64 s[{sG}:{sG+1}], 0
    s_cselect_b32 s{sFL}, 1, 0
    v_mov_b32 v{TMP}, s{sFL}
    s_and_b32 s{sFL}, s{sK+2}, 0x1ffff
    s_lshl_b32 s{sT0}, s{sW}, 12
    s_add_u32 s{sT0}, s{sT0}, s{sFL}
    v_mov_b32 v{TMP+1}, s{sT0}
    ds_write_b32 v{TMP+1}, v{TMP}
    """])
    def epi_mix():
        e_ = flat(epi_long()); w_ = sum((w_step(i) for i in range(4, 8)), []) if upto >= 3 else []
        NI = int(env["OV"]("ni", 8)); pos = [i for i, x in enumerate(e_) if x.vm is not None]
        for k in reversed(range(min(NI, len(w_)))):
            p_ = pos[k*len(pos)//NI] - (12 if (k*len(pos)) % NI == 0 else 4); e_[p_:p_] = flat(w_[k])
        return e_ + st("T") + ([] if EW else early_w(True)[:16]) + w_[NI:]
    o += resolve_waits(flat([f"""
    """, epi_mix(), W(vm="ctx"), [] if EW else early_w(True)[16:]]))
    o += flat([f"""
    v_mov_b32 v{TMP+1}, s{sFL}
    s_waitcnt lgkmcnt(0)
    s_barrier
    ds_read2st64_b32 v[{TMP+4}:{TMP+5}], v{TMP+1} offset0:0 offset1:16
    ds_read2st64_b32 v[{TMP+6}:{TMP+7}], v{TMP+1} offset0:32 offset1:48
    s_waitcnt lgkmcnt(0)
    v_or3_b32 v{TMP}, v{TMP+4}, v{TMP+5}, v{TMP+6}
    v_or_b32 v{TMP}, v{TMP}, v{TMP+7}
    v_readfirstlane_b32 s{sFL}, v{TMP}
    s_cmp_lg_u32 s{sFL}, 0
    s_cbranch_scc1 Lfallback_{N}
    Lnorm_{N}:
    """]) + flat(st("T"))
    MR = TMP + 16
    fb = [f"Lfallback_{N}:", "s_waitcnt vmcnt(0)", "s_mov_b32 s0, 0"] + [f"v_accvgpr_write_b32 a{r}, 0" for r in range(128)] + [f"v_mov_b32 v{LS+r}, 0" for r in range(16)]
    fb += [f"v_mov_b32 v{MR+qi}, {NINF}" for qi in range(4)]
    fb += [f"s_mov_b32 s{sCNT}, 0", f"s_lshr_b32 s{sODW}, s{sK+2}, 14", f"v_mov_b32 v{vKB}, v{vL16}", f"v_mov_b32 v{vVB}, v{vL16}", f"Lfb_{N}:", "s_barrier",
           f"s_lshr_b32 s{sKO}, s{sCNT}, 1", f"s_lshl_b32 s{sKO}, s{sKO}, 15", f"s_and_b32 s{sT0}, s{sCNT}, 1", f"s_lshl_b32 s{sT0}, s{sT0}, 13",
           f"s_add_u32 s{sKO}, s{sKO}, s{sT0}", f"s_lshl_b32 s{sT0}, s{sW}, 11", f"s_add_u32 s{sKO}, s{sKO}, s{sT0}", f"s_mov_b32 m0, s{sT0}", f"s_add_u32 s{sT0}, s{sT0}, 16384",
           f"buffer_load_dwordx4 v{vL16}, s[{sK}:{sK+3}], s{sKO} offen sc1 lds", f"buffer_load_dwordx4 v{vL16}, s[{sK}:{sK+3}], s{sKO} offen offset:1024 sc1 lds",
           f"s_mov_b32 m0, s{sT0}", f"s_add_u32 s{sKO}, s{sKO}, 16384",
           f"buffer_load_dwordx4 v{vL16}, s[{sK}:{sK+3}], s{sKO} offen sc1 lds", f"buffer_load_dwordx4 v{vL16}, s[{sK}:{sK+3}], s{sKO} offen offset:1024 sc1 lds",
           "s_waitcnt vmcnt(0)", "s_barrier"]
    fb += [x.t for x in k_reads(0) + v_reads(0)] + ["s_waitcnt lgkmcnt(0)"]
    for g, su in ((0, sUL), (1, sUS)):
        fb += [f"s_cmp_gt_u32 s{sCNT}, s{su}", f"s_cbranch_scc1 Lfbs{g}_{N}"]
        fb += [f"v_mov_b32 v{C(qi, kt)+e}, 0" for qi in GQ[g] for kt in range(2) for e in range(4)]
        fb += [f"s_cmp_lg_u32 s{sCNT}, s{su}", f"s_cbranch_scc1 Lfbm{g}_{N}", mask(g), f"Lfbm{g}_{N}:", "s_nop 1"]
        fb += [m for m, _ in qk(0, (g,))] + ["s_nop 7"]
        for qi in GQ[g]:
            a, b, t = S(0, qi, 0), S(0, qi, 1), TMP
            fb += [f"v_max3_f32 v{t}, v{a}, v{a+1}, v{a+2}", f"v_max3_f32 v{t}, v{t}, v{a+3}, v{b}",
                   f"v_max3_f32 v{t}, v{t}, v{b+1}, v{b+2}", f"v_max3_f32 v{t}, v{t}, v{b+3}, v{MR+qi}"]
            for sw in ("v_permlane16_swap_b32", "v_permlane32_swap_b32"):
                fb += [f"v_mov_b32 v{t+1}, v{t}", f"{sw} v{t}, v{t+1}", f"v_max_f32 v{t}, v{t}, v{t+1}"]
            fb += [f"v_sub_f32 v{t+1}, v{MR+qi}, v{t}", f"v_exp_f32 v{t+1}, v{t+1}", f"v_mov_b32 v{MR+qi}, v{t}"]
            fb += [f"v_sub_f32 v{S(0, qi, kt)+e}, v{S(0, qi, kt)+e}, v{t}" for kt in range(2) for e in range(4)]
            fb += [f"v_mul_f32 v{LS+4*qi+e}, v{t+1}, v{LS+4*qi+e}" for e in range(4)]
            for tt in range(8):
                a0 = (tt*4+qi)*4
                fb += [f"v_accvgpr_read_b32 v{t+4+e}, a{a0+e}" for e in range(4)]
                fb += [f"v_mul_f32 v{t+4+e}, v{t+1}, v{t+4+e}" for e in range(4)]
                fb += [f"v_accvgpr_write_b32 a{a0+e}, v{t+4+e}" for e in range(4)]
        ex, cv = softmax(0, (g,))
        fb += ex + cv + [m for m, _ in pv(0, (g,))] + ["s_nop 7", f"Lfbs{g}_{N}:"]
    fb += [f"s_add_u32 s{sCNT}, s{sCNT}, 1", f"s_cmp_lt_u32 s{sCNT}, s{sODW}", f"s_cbranch_scc1 Lfb_{N}", "s_waitcnt vmcnt(0)"] + (epi_short() if "epiend" not in env["opt"] else []) + epi_long()
    if upto >= 3: fb += [w_step(i) for i in range(4, 8)] + ep_addr() + early_ep()
    fb += ["s_waitcnt vmcnt(0)", "s_barrier", f"s_branch Lnorm_{N}"]
    env["fallback"] = flat(fb)
    return o
```

```python
from common import *
from flay import *

def tail(env, upto):
    (N, st, sW, sJ, sC, sT0, sT1, vL16, WS, pX, pB1, pB2, pOUT, flag_off, publish, check, rnd, opt) = [env[k] for k in
     "N st sW sJ sC sT0 sT1 vL16 WS pX pB1 pB2 pOUT flag_off publish check rnd opt".split()]
    sR = 12
    sA = 16
    sSUB = 20
    sK = 24
    sC0, sC1, sONE = 30, 32, 34
    sWB, sRB, sCTL, sRT, sMF, sFL, sCNT, sBLK, sN, sODD, sPAIR, sWD, sM0, sZ = 82, 79, 80, 81, 78, 83, 84, 85, 86, 87, 88, 89, 90, 40
    vG16, vRM, vP, vT = 2, 3, 4, 6
    GA, AV, BV, XR, ACC, AR = 8, 24, 40, 56, 64, 128
    RED = 114688
    o = []; XL = env['XL']; ids = [f"""
    s_and_b32 s{sT0}, s2, 7
    s_bfe_u32 s{sT1}, s2, 0x20003
    s_and_b32 s{sN}, s{sT0}, 3
    s_lshl_b32 s{sN}, s{sN}, 2
    s_add_u32 s{sN}, s{sN}, s{sT1}
    s_sub_u32 s{sBLK}, 15, s{sJ}
    s_mov_b32 s{sSUB}, 0x0f0f0f0f
    s_cmp_lt_u32 s{sT0}, 4
    s_cselect_b32 s{sBLK}, s{sJ}, s{sBLK}
    s_cselect_b32 s{sSUB}, s{sSUB}, 0xf0f0f0f0
    s_mov_b32 s{sSUB+1}, s{sSUB}
    s_bfe_u32 s{sT0}, s2, 0x10001
    s_lshl_b32 s{sRB}, s{sBLK}, 1
    s_add_u32 s{sRB}, s{sRB}, s{sT0}
    s_lshl_b32 s{sRT}, s{sRB}, 2
    s_add_u32 s{sRT}, s{sRT}, s{sW}
    """]
    HY = env['HY']; ROT = env['ROT']
    if HY: ids += [f"s_lshr_b32 s{sN}, s2, 5", f"s_lshl_b32 s{sN}, s{sN}, 1", f"s_bfe_u32 s{sT0}, s2, 0x10003", f"s_add_u32 s{sN}, s{sN}, s{sT0}"]
    ids2 = [f"""
    s_and_b32 s{sT0}, s2, 7
    s_lshl_b32 s{sRB}, s{sT0}, 2
    s_bfe_u32 s{sT1}, s2, 0x20003
    s_add_u32 s{sRB}, s{sRB}, s{sT1}
    s_lshr_b32 s{sBLK}, s{sRB}, 1
    s_lshl_b32 s{sN}, s{sCTL}, 1
    s_and_b32 s{sT1}, s{sT1}, 1
    s_add_u32 s{sN}, s{sN}, s{sT1}
    s_mov_b32 s{sSUB}, 0x33333333
    s_bitcmp0_b32 s2, 4
    s_cselect_b32 s{sSUB}, s{sSUB}, 0xcccccccc
    s_lshr_b32 s{sT0}, s2, 3
    s_bitset0_b32 s{sSUB}, s{sT0}
    s_mov_b32 s{sSUB+1}, s{sSUB}
    s_lshl_b32 s{sRT}, s{sRB}, 2
    s_add_u32 s{sRT}, s{sRT}, s{sW}
    s_sub_u32 s{sPAIR}, 15, s{sBLK}
    s_min_u32 s{sPAIR}, s{sPAIR}, s{sBLK}
    """]
    if XL: ids = ids2
    sSUBZ = 22 if HY else sSUB
    ids2 = [f"s_lshr_b32 s{sCTL}, s2, 5"] + ids2 + [f"s_mov_b32 s{sSUBZ}, 0x0f0f0f0f", f"s_cmp_lt_u32 s{sBLK}, 8", f"s_cselect_b32 s{sSUBZ}, s{sSUBZ}, 0xf0f0f0f0",
            f"s_mov_b32 s{sSUBZ+1}, s{sSUBZ}", f"s_mul_i32 s{sMF}, s{sJ}, 12288", f"s_lshl_b32 s{sT0}, s{sCTL}, 8", f"s_add_u32 s{sMF}, s{sMF}, s{sT0}",
            f"s_add_u32 s{sMF}, s{sMF}, {WS_MODF}"]
    def gemm_loads(kind):
        def w(i):
            g = []
            for t in range(4):
                x = [VM(f"buffer_load_dwordx4 {ar(env['wreg'](i, t), 4)}, v{vL16}, {WS}, s{sWB} offen offset:{t*1024} sc1", (kind + "w", i))]
                if t == 3: x.append(f"s_add_u32 s{sWB}, s{sWB}, 4096")
                g.append(x)
            return g
        def a(i):
            g = []
            for r in range(4):
                if ROT and kind == "c":
                    x = [f"s_lshl_b32 s{sCNT}, s{sJ}, 12", f"s_add_u32 s{sCNT}, s{sCNT}, {i*1024}", f"s_and_b32 s{sCNT}, s{sCNT}, 0x7fff",
                         f"v_add_u32 v{vT+1}, s{sCNT}, v{vL16}"] if r == 0 and (i & 3) == 0 else []
                    g.append(x + [VM(f"buffer_load_dwordx4 {vr(AR + (i % 7)*16 + 4*r, 4)}, v{vT+1}, {WS}, s{sA+r} offen offset:{(i & 3)*1024} sc1", (kind + "a", i))])
                    continue
                x = [VM(f"buffer_load_dwordx4 {vr(AR + (i % 7)*16 + 4*r, 4)}, v{vL16}, {WS}, s{sA+r} offen offset:{(i & 3)*1024} sc1", (kind + "a", i))]
                if (i & 3) == 3: x.append(f"s_add_u32 s{sA+r}, s{sA+r}, 4096")
                g.append(x)
            return g
        return w, a
    wreg = env["wreg"]
    NL = int(env['OV']('nl', 8))
    PD = dict(c=int(env['OV']('pdc', 4)), e=int(env['OV']('pde', 4)))
    def gemm(kind, ns, wl, al, extra):
        r = []
        for i in range(ns):
            sl = []
            for t in range(4):
                for q in range(4):
                    d = vr(ACC + (t*4+q)*4, 4)
                    sl.append(Slot(I(f"v_mfma_f32_16x16x32_bf16 {d}, {ar(wreg(i, t), 4)}, {vr(AR + (i % 7)*16 + 4*q, 4)}, {'0' if i == 0 else d}")))
            if 16 <= i < 16 + NL: sl[0].pre.append(W(vm=[(kind + "a", i)], lg=[("lw", i)]))
            else: sl[0].pre.append(W(vm=[(kind + "a", i), (kind + "w", i)]))
            ld = []
            pd = PD[kind]
            if (i >= 1 or pd < 8) and i + min(pd, 7) < ns: ld += al(i + min(pd, 7))
            if i >= 1 and i + 15 < ns:
                if i + 15 < 16 + NL: ld += [LG(f"ds_read_b128 {ar(wreg(i + 15, t), 4)}, v{vP + 1 if i < 3 else vP} offset:{((i - 1) if i < 3 else (i - 3))*4096 + t*1024}", ("lw", i + 15)) for t in range(4)]
                else: ld += wl(i + 15)
            ld += extra(i)
            for k, g in enumerate(ld): sl[k*16//len(ld)].mem.append(g)
            r += emit_slots(sl)
            if kind == "c" and i in (0, 15): r += st("T")
        return r
    def rot_rows(pitch):
        r = []
        for k in (1, 2, 3, 0):
            r += [f"s_add_u32 s{sT0}, s{sW}, {k}", f"s_and_b32 s{sT0}, s{sT0}, 3", f"s_mul_i32 s{sT0}, s{sT0}, {pitch}", f"s_add_u32 s{sA+k}, s{sA}, s{sT0}"]
        return r
    RA = {1: vP, 2: vP+1, 3: vT+1, 0: vT}
    def reduce_addr(): return [[f"s_add_u32 s{sT0}, s{sW}, {q}", f"s_and_b32 s{sT0}, s{sT0}, 3", f"s_mul_i32 s{sT0}, s{sT0}, 12288", f"s_add_u32 s{sT0}, s{sT0}, {RED}",
                                f"v_add_u32 v{RA[q]}, s{sT0}, v{vL16}"] for q in range(4)]
    def reduce_waves():
        r = []
        for q in range(1, 4):
            if q < 4: r += [LG(f"ds_write_b128 v{RA[q]}, {vr(ACC + (t*4+q)*4, 4)} offset:{(q-1)*4096 + t*1024}", "rw") for t in range(4)]
        r += [W(lg="rw"), "s_barrier"]
        for t in range(4):
            for q in range(1, 4): r += [LG(f"ds_read_b128 {vr(ACC + (t*4+q)*4, 4)}, v{vT} offset:{(q-1)*4096 + t*1024}", ("rr", t))]
        return r
    def sum4(t):
        b = ACC + t*16; r = [W(lg=[("rr", t)])]
        for h in (0, 2): r += [f"v_pk_add_f32 {vr(b+h, 2)}, {vr(b+h, 2)}, {vr(b+4+h, 2)}", f"v_pk_add_f32 {vr(b+8+h, 2)}, {vr(b+8+h, 2)}, {vr(b+12+h, 2)}"]
        for h in (0, 2): r += [f"v_pk_add_f32 {vr(b+h, 2)}, {vr(b+h, 2)}, {vr(b+8+h, 2)}"]
        return r
    def modf(dst, vec):
        return [f"s_add_u32 s{sT0}, s{sMF}, {vec*2048}"] + [VM(f"buffer_load_dwordx4 {vr(dst+4*t, 4)}, v{vG16}, {WS}, s{sT0} offen offset:{t*64} sc1", "ep") for t in range(4)]
    def prep(kind): return flag_off(sFL, kind, True) + publish(vP, sFL)[:-1]
    def sync(kind, mask, between, after=()):
        ld = f"buffer_load_dword v{vP+1}, v{vP}, {WS}, s{sFL} offen sc1"
        line = sPAIR if (XL and kind == 1) or (HY and kind == 2) else None
        return (([] if kind > 1 else prep(kind)) + publish(vP, sFL)[-1:] + ([env["w_step"](12), env["w_step"](13)] + ids if kind == 1 else []) + flag_off(sFL, kind, False, line) + [f"v_and_b32 v{vP}, 31, v0", f"v_lshlrev_b32 v{vP}, {env['FS']}, v{vP}"]
                + between + [VM(ld, ("poll", kind))] + list(after) + check(ld, f"v_cmp_ne_u32 vcc, 1, v{vP+1}", sCNT, [("poll", kind)], mask) + ["s_barrier"])
    wl, al = gemm_loads("c"); wl = lambda i: env["w_step"](i)
    o += st()
    btw = []; wpre = [f"s_lshl_b32 s{sM0}, s{sW}, 15"] + [env["w_step"](i) for i in range(14, 16)]
    w811 = [env["w_step"](i) for i in range(8, 12)]
    if env["XS"]: w811 = ["s_cmp_lg_u32 s0, 0", f"s_cbranch_scc1 Lw8_{N}"] + [x.t for x in flat(w811)] + [f"Lw8_{N}:"]
    wpre = wpre + w811 + [env["w_step"](i, f"s{sM0}, {(i - 18)*4096}") for i in range(18, 16 + NL)]
    btw += [f"""
    v_lshrrev_b32 v{vT}, 4, v0
    v_lshlrev_b32 v{vG16}, 4, v{vT}
    v_and_b32 v{vT+1}, 15, v0
    v_lshlrev_b32 v{vRM}, 10, v{vT+1}
    v_lshl_add_u32 v{vRM}, v{vT}, 3, v{vRM}
    s_mul_i32 s{sMF}, s{sJ}, 12288
    s_lshl_b32 s{sT0}, s{sCTL}, 8
    s_add_u32 s{sMF}, s{sMF}, s{sT0}
    s_add_u32 s{sMF}, s{sMF}, {WS_MODF}
    s_lshl_b32 s{sA}, s{sRB}, 19
    s_lshl_b32 s{sT0}, s{sW}, 15
    s_add_u32 s{sA}, s{sA}, s{sT0}
    s_add_u32 s{sA}, s{sA}, {WS_CTX}
    """] + rot_rows(131072)
    CBX = env["CB"] + 16
    aft1 = [f"v_mov_b32 v{XR+k}, v{CBX+k}" for k in range(8)]
    for dst, k in ((GA, 0), (BV, 1), (AV, 2)):
        aft1 += [LG(f"ds_bpermute_b32 v{dst+4*t+e}, v{vG16}, v{CBX+8+k} offset:{(16*t+e)*4}", "bp") for t in range(4) for e in range(4)]
    aft1 += [W(lg="bp")]
    for j in range(0, 16, 2): aft1 += [f"v_add_f32 v{AV+j}, 1.0, v{AV+j}", f"v_add_f32 v{AV+j+1}, 1.0, v{AV+j+1}"] + rnd(AV+j, AV+j+1, vT)
    A2, B2_, TT = 128, 136, 244
    btw = [f"v_lshlrev_b32 v{vT+1}, 5, v0", f"s_mul_i32 s{sT0}, s{sJ}, 12288", f"s_add_u32 s{sT0}, s{sT0}, {WS_MODF + 3*2048}"] + \
          [VM(f"buffer_load_dwordx4 {vr(r, 4)}, v{vT+1}, {WS}, s{sT0} offen offset:{off} sc1", "ab") for r, off in ((A2, 2048), (A2+4, 2064), (B2_, 0), (B2_+4, 16))] + btw
    aft1 += [W(vm="ab")] + [f"v_add_f32 v{A2+j}, 1.0, v{A2+j}" for j in range(8)]
    for j in range(4):
        aft1 += [f"v_cvt_pk_bf16_f32 v{TT+j}, v{A2+2*j}, v{A2+2*j+1}", f"v_cvt_pk_bf16_f32 v{TT+4+j}, v{B2_+2*j}, v{B2_+2*j+1}", f"v_mov_b32 v{TT+8+j}, 0x3f803f80"]
    for j in range(4): aft1 += [f"v_lshlrev_b32 v{A2+2*j}, 16, v{TT+j}", f"v_and_b32 v{A2+2*j+1}, 0xffff0000, v{TT+j}"]
    SS = 144
    for j in range(0, 8, 2):
        a, b = vr(A2+j, 2), vr(B2_+j, 2); S = [vr(SS+2*k, 2) for k in range(5)]
        if j == 0: aft1 += [f"v_pk_add_f32 {S[0]}, {a}, {vr(A2+2, 2)}", f"v_pk_mul_f32 {S[1]}, {a}, {a}", f"v_pk_mul_f32 {S[2]}, {a}, {b}",
                           f"v_pk_add_f32 {S[3]}, {b}, {vr(B2_+2, 2)}", f"v_pk_mul_f32 {S[4]}, {b}, {b}"]
        else:
            if j > 2: aft1 += [f"v_pk_add_f32 {S[0]}, {S[0]}, {a}", f"v_pk_add_f32 {S[3]}, {S[3]}, {b}"]
            aft1 += [f"v_pk_fma_f32 {S[1]}, {a}, {a}, {S[1]}", f"v_pk_fma_f32 {S[2]}, {a}, {b}, {S[2]}", f"v_pk_fma_f32 {S[4]}, {b}, {b}, {S[4]}"]
    aft1 += [f"v_add_f32 v{SS+2*k}, v{SS+2*k}, v{SS+2*k+1}" for k in range(5)]
    for m in ("quad_perm:[1,0,3,2]", "quad_perm:[2,3,0,1]", "row_ror:4", "row_ror:8"):
        aft1 += [f"v_add_f32_dpp v{SS+2*k}, v{SS+2*k}, v{SS+2*k} {m} row_mask:0xf bank_mask:0xf" for k in range(5)]
    for sw in ("v_permlane16_swap_b32", "v_permlane32_swap_b32"):
        aft1 += [f"v_mov_b32 v{SS+2*k+1}, v{SS+2*k}" for k in range(5)] + [f"{sw} v{SS+2*k}, v{SS+2*k+1}" for k in range(5)]
        aft1 += [f"v_add_f32 v{SS+2*k}, v{SS+2*k}, v{SS+2*k+1}" for k in range(5)]
    aft1 += [f"v_readfirstlane_b32 s{sK+k}, v{SS+2*k}" for k in range(5)]
    c0 = -2*0.7978845608028654*1.4426950408889634
    aft1 += [f"s_mov_b32 s{sC0}, {fbits(c0)}", f"s_mov_b32 s{sC0+1}, s{sC0}", f"s_mov_b32 s{sC1}, {fbits(c0*0.044715)}", f"s_mov_b32 s{sC1+1}, s{sC1}",
            f"s_mov_b32 s{sONE}, 1.0", f"s_mov_b32 s{sONE+1}, 1.0"]
    if "noil" not in opt:
        k0 = wpre.index(f"Lw8_{N}:") + 1 if env["XS"] else 0
        head_, rest_ = flat(wpre[:k0]), flat(wpre[k0:]); alu_ = scc_groups(aft1)
        h0 = next(i for i, x in enumerate(head_) if x.t.startswith("s_cmp_lg_u32 s0")) if env["XS"] else 0
        pos = [i for i, x in enumerate(head_[:h0]) if x.vm is not None]
        n1_ = len(alu_)*len(pos)//(len(pos) + sum(x.vm is not None for x in rest_))
        def mix(lst, ps, groups):
            for k in reversed(range(len(groups))): lst[ps[k*len(ps)//len(groups)] + 1:ps[k*len(ps)//len(groups)] + 1] = groups[k]
            return lst
        wpre = mix(head_, pos, alu_[:n1_]) + mix(rest_, [i for i, x in enumerate(rest_) if x.vm is not None], alu_[n1_:]); aft1 = []
    o += sync(1, None, btw + wpre, aft1) + st() + st("T")
    o += [al(i) for i in range(PD["c"])] + [f"v_add_u32 v{vP}, s{sM0}, v{vL16}", f"s_lshl_b32 s{sT0}, s{sW}, 13", f"s_add_u32 s{sT0}, s{sT0}, 131072", f"v_add_u32 v{vP+1}, s{sT0}, v{vL16}"]
    def w1_dma(g):
        grp = [f"s_add_u32 m0, s{sM0}, {g*16384}", f"s_add_u32 s{sCNT}, s{sWD}, {g*16384}"]; r = []
        for n in range(4):
            grp.append(VM(f"buffer_load_dwordx4 v{vL16}, {WS}, s{sCNT} offen offset:{n*1024} sc1 lds", ("w1", g))); r.append(grp); grp = []
        return SEQ(r)
    o += [f"s_lshl_b32 s{sM0}, s{sW}, 12", f"s_mul_i32 s{sWD}, s{sN}, 114688", f"s_add_u32 s{sWD}, s{sWD}, s{sM0}", f"s_add_u32 s{sWD}, s{sWD}, {WS_W1F}"]
    NW0 = int(env["OV"]("nw0", 4)); NW1 = int(env["OV"]("nw1", 7))
    o += gemm("c", 32, wl, al, lambda i: [["s_barrier"]] + reduce_addr() if i == 20 and NL else (w1_dma(i - 32 + NW0) if i >= 32 - NW0 else []))
    w1q = sum((w1_dma(g) for g in range(NW0, NW1)), [])
    cepi = len(o) + 2
    o += st() + st("T") + reduce_waves()
    F, Z, ZP, ST = AR, AR+16, AR+32, AR+40
    for j in range(8): o += [f"v_lshlrev_b32 v{F+2*j}, 16, v{XR+j}", f"v_and_b32 v{F+2*j+1}, 0xffff0000, v{XR+j}"]
    o += [f"s_lshl_b32 s{sT0}, s{sRT}, 14", f"s_lshl_b32 s{sT1}, s{sCTL}, 11", f"s_add_u32 s{sT0}, s{sT0}, s{sT1}", f"s_add_u32 s{sFL}, s{sT0}, {WS_Z}"]
    for t in range(4):
        o += sum4(t)
        for h in (0, 2): o += [f"v_pk_fma_f32 {vr(F+4*t+h, 2)}, {vr(ACC+t*16+h, 2)}, {vr(GA+4*t+h, 2)}, {vr(F+4*t+h, 2)}"]
        for j in (2*t, 2*t+1): o += rnd(F+2*j, F+2*j+1, XR+j)
        for h in (0, 2): o += [f"v_pk_mul_f32 {vr(Z+4*t+h, 2)}, {vr(F+4*t+h, 2)}, {vr(AV+4*t+h, 2)}"]
        for j in (2*t, 2*t+1): o += [f"v_cvt_pk_bf16_f32 v{ZP+j}, v{Z+2*j}, v{Z+2*j+1}"]
        if t & 1: o += [VM(f"buffer_store_dwordx4 {vr(ZP+2*(t-1), 4)}, v{vL16}, {WS}, s{sFL} offen offset:{(t >> 1)*1024} sc1", "zst")]
    if HY:
        o += [f"s_add_u32 s{sFL}, s{sFL}, {WS_X1 - WS_Z}"]
        o += [VM(f"buffer_store_dwordx4 {vr(XR+4*p, 4)}, v{vL16}, {WS}, s{sFL} offen offset:{p*1024} sc1", "zst") for p in range(2)]
    for j in range(0, 16, 2):
        x, z, a, b = vr(F+j, 2), vr(Z+j, 2), vr(AV+j, 2), vr(BV+j, 2); S = [vr(ST+2*k, 2) for k in range(6)]
        if j == 0:
            o += [f"v_pk_add_f32 {S[0]}, {x}, {vr(F+2, 2)}", f"v_pk_mul_f32 {S[1]}, {x}, {x}", f"v_pk_add_f32 {S[2]}, {z}, {vr(Z+2, 2)}",
                  f"v_pk_mul_f32 {S[3]}, {z}, {z}", f"v_pk_mul_f32 {S[4]}, {a}, {z}", f"v_pk_mul_f32 {S[5]}, {b}, {z}"]
        else:
            if j > 2: o += [f"v_pk_add_f32 {S[0]}, {S[0]}, {x}", f"v_pk_add_f32 {S[2]}, {S[2]}, {z}"]
            o += [f"v_pk_fma_f32 {S[1]}, {x}, {x}, {S[1]}", f"v_pk_fma_f32 {S[3]}, {z}, {z}, {S[3]}",
                  f"v_pk_fma_f32 {S[4]}, {a}, {z}, {S[4]}", f"v_pk_fma_f32 {S[5]}, {b}, {z}, {S[5]}"]
    o += [f"v_add_f32 v{ST+2*k}, v{ST+2*k}, v{ST+2*k+1}" for k in range(6)]
    o += [f"v_permlane16_swap_b32 v{ST+4*k}, v{ST+4*k+2}" for k in range(3)]
    o += [f"v_add_f32 v{ST+4*k}, v{ST+4*k}, v{ST+4*k+2}" for k in range(3)]
    o += [f"v_mov_b32 v{ST+10}, v{ST+8}", f"v_permlane32_swap_b32 v{ST}, v{ST+4}", f"v_permlane32_swap_b32 v{ST+8}, v{ST+10}",
          f"v_add_f32 v{ST}, v{ST}, v{ST+4}", f"v_add_f32 v{ST+1}, v{ST+8}, v{ST+10}",
          f"s_lshl_b32 s{sT0}, s{sRT}, 12", f"s_lshr_b32 s{sT1}, s{sCTL}, 1", f"s_lshl_b32 s{sT1}, s{sT1}, 10", f"s_add_u32 s{sT0}, s{sT0}, s{sT1}",
          f"s_and_b32 s{sT1}, s{sCTL}, 1", f"s_lshl_b32 s{sT1}, s{sT1}, 3", f"s_add_u32 s{sT0}, s{sT0}, s{sT1}", f"s_add_u32 s{sT0}, s{sT0}, {WS_STAT}",
          VM(f"buffer_store_dwordx2 {vr(ST, 2)}, v{vL16}, {WS}, s{sT0} offen sc1", "zst")]
    head, epi = flat(o[:cepi]), flat(o[cepi:])
    last = next(i for i, x in enumerate(epi) if x.vm == "zst")
    for k in reversed(range(len(w1q))): epi[(k*last)//len(w1q):(k*last)//len(w1q)] = flat(w1q[k])
    o = head + epi
    PRE = [("cw", i) for i in range(12) for t in range(4)]
    if upto < 4: return resolve_waits(flat(o), pre_vm=PRE)
    DA, XA, WF, DS, CO, B1, HB = 64, 120, 128, 160, 192, 200, 216
    EARR, UVS = 114688, 114688 + 3072
    vW, vW6, vWX, vE, vU, vU6, g4, c16 = 8, 9, 10, 11, 12, 13, 14, 15
    wl2, al2 = gemm_loads("e")
    if HY: o += ids2
    if upto >= 5:
        o += [f"s_mul_i32 s{sWB}, s{sCTL}, {56*4096}", f"s_mul_i32 s{sT0}, s{sW}, {14*4096}", f"s_add_u32 s{sWB}, s{sWB}, s{sT0}", f"s_add_u32 s{sWB}, s{sWB}, {WS_W2F}"]
    setup = [f"""
    s_and_b32 s{sODD}, s{sN}, 1
    s_lshl_b32 s{sPAIR}, s{sBLK}, 2
    s_add_u32 s{sPAIR}, s{sPAIR}, s{sW}
    v_lshrrev_b32 v{g4}, 4, v0
    v_and_b32 v{c16}, 15, v0
    s_lshl_b32 s{sT0}, s{sODD}, 10
    v_add_u32 v{vW}, s{sT0}, v{vL16}
    s_cmp_eq_u32 s{sODD}, 0
    s_cselect_b32 s{sT0}, 6144, 0
    v_add_u32 v{vW6}, s{sT0}, v{vL16}
    s_lshl_b32 s{sT0}, s{sW}, 11
    v_add_u32 v{vWX}, s{sT0}, v{vL16}
    v_min_u32 v{vE}, 2, v{c16}
    v_lshlrev_b32 v{vE}, 10, v{vE}
    v_lshl_add_u32 v{vE}, v{g4}, 3, v{vE}
    v_add_u32 v{vE}, {EARR}, v{vE}
    """]
    b1l = srd(sR, pB1, 3584) + [f"v_lshlrev_b32 v{vT}, 3, v{g4}", f"s_mul_i32 s{sT0}, s{sN}, 224", f"s_lshl_b32 s{sT1}, s{sODD}, 5", f"s_add_u32 s{sT1}, s{sT1}, s{sT0}"]
    b1l += [VM(f"buffer_load_dwordx2 {vr(B1+2*i, 2)}, v{vT}, s[{sR}:{sR+3}], s{sT1} offen offset:{i*32}", "b1") for i in range(6)]
    b1l += [f"s_cmp_eq_u32 s{sODD}, 0", f"s_cselect_b32 s{sT1}, 192, 0", f"s_add_u32 s{sT1}, s{sT1}, s{sT0}",
            VM(f"buffer_load_dwordx2 {vr(B1+12, 2)}, v{vT}, s[{sR}:{sR+3}], s{sT1} offen", "b1")]
    setup += [
            f"s_lshl_b32 s{sZ}, s{sPAIR}, 15", f"s_add_u32 s{sZ}, s{sZ}, {WS_Z}", f"s_add_u32 s{sZ+1}, s{sZ}, 16384",
            f"s_lshl_b32 s{sZ+2}, s{sPAIR}, 13", f"s_add_u32 s{sZ+2}, s{sZ+2}, {WS_STAT}", f"s_add_u32 s{sZ+3}, s{sZ+2}, 4096"]
    B1P = env["OV"]("b1p", "pre")
    o += setup + (b1l if B1P == "pre" else []) + prep(2) + [W(vm="zst"), "s_barrier"] + st() + st("T")
    btw = [[w1_dma(g) for g in range(NW1, 7)], It(None, wvm="ab")] + (b1l if B1P == "btw" else [])
    btw += [f"v_add_u32 v{vT}, {EARR}, v{vL16}"] + [LG(f"ds_write_b128 v{vT}, {vr(TT+4*k, 4)} offset:{k*1024}", "ew") for k in range(3)]
    btw += [W(vm=[("w1", 6)], lg="ew"), "s_barrier"]
    def xr(s):
        b = WF + (s % 3)*12
        return ([f"v_add_u32 v{vWX}, 57344, v{vWX}"] if s == 8 else []) + \
               [LG(f"ds_read_b128 {vr(b+4*k, 4)}, v{vWX} offset:{(s & 7)*7168 + k*1024}", ("x", s)) for k in range(2)] + \
               [LG(f"ds_read_b64 {vr(b+8+2*hh, 2)}, v{vE} offset:{s*64 + hh*32}", ("x", s)) for hh in range(2)]
    NE2 = int(env['OV']('ne2', 4)); aft = []
    early2 = sum((wl2(i) for i in range(NE2)), []) if upto >= 5 else []
    NB2 = int(env['OV']('nb2', 2))
    k_ = next(i for i, x in enumerate(btw) if isinstance(x, It) and x.wvm == "ab")
    btw[k_:k_] = early2[:4*NB2]; early2 = early2[4*NB2:]
    aft += xr(0) + xr(1)
    for s in range(16):
        b = WF + (s % 3)*12
        aft += [W(lg=[("x", s)])] + [f"v_mfma_f32_16x16x32_bf16 {vr(XA+4*k, 4)}, {vr(b+4*k, 4)}, {vr(b+8, 4)}, {'0' if s == 0 else vr(XA+4*k, 4)}" for k in range(2)]
        if s + 2 < 16: aft += xr(s + 2)
        if s % 2 and early2: aft += early2.pop(0)
    aft += [f"v_lshlrev_b32 v{vT}, 9, v{c16}", f"v_lshl_add_u32 v{vT}, v{g4}, 4, v{vT}", f"s_lshl_b32 s{sT0}, s{sW}, 7", f"s_add_u32 s{sT0}, s{sT0}, {UVS}",
            f"v_add_u32 v{vT}, s{sT0}, v{vT}", f"v_lshlrev_b32 v{vU6}, 4, v{g4}", f"s_lshl_b32 s{sT0}, s{sODD}, 6", f"s_add_u32 s{sT0}, s{sT0}, {UVS}",
            f"v_add_u32 v{vU}, s{sT0}, v{vU6}", f"s_cmp_eq_u32 s{sODD}, 0", f"s_cselect_b32 s{sT0}, 384, 0", f"s_add_u32 s{sT0}, s{sT0}, {UVS}",
            f"v_add_u32 v{vU6}, s{sT0}, v{vU6}"]
    aft += [LG(f"ds_write_b128 v{vT}, {vr(XA+4*k, 4)} offset:{k*64}", "uw") for k in range(2)] + [f"v_lshlrev_b32 v{vT+1}, 3, v0", W(lg="uw")]
    o += sync(2, sSUBZ, btw, aft) + st() + st("T")
    def Zf(s, r): return ar((s*2+r)*4, 4)
    def z_ld(s):
        g = []
        for r in range(2):
            x = [VM(f"buffer_load_dwordx4 {Zf(s, r)}, v{vL16}, {WS}, s{sZ+r} offen offset:{(s & 3)*1024} sc1", ("z", s))]
            if (s & 3) == 3: x.append(f"s_add_u32 s{sZ+r}, s{sZ+r}, 4096")
            g.append(x)
        return g
    o += [z_ld(s) for s in range(4)]
    stat = [VM(f"buffer_load_dwordx4 {vr(DS + r*16 + 4*c2, 4)}, v{vL16}, {WS}, s{sZ+2+r} offen offset:{c2*1024} sc1", "stat") for r in range(2) for c2 in range(4)]
    LA = 4
    frags = [(s, i) for s in range(16) for i in range(7)]; slots = []
    for f, (s, i) in enumerate(frags):
        for r in range(2):
            d = vr(DA + (i*2+r)*4, 4)
            slots.append(Slot(I(f"v_mfma_f32_16x16x32_bf16 {d}, {vr(WF + (f % 8)*4, 4)}, {Zf(s, r)}, {'0' if s == 0 else d}")))
        if f % 2 == 0: slots[2*f].pre.append(W(lg=[("wf", f+1)]))
        if i == 0: slots[2*f].pre.append(W(vm=[("z", s)]))
    def rd(f):
        s, i = frags[f]
        g = [f"v_add_u32 v{vW}, 57344, v{vW}", f"v_add_u32 v{vW6}, 57344, v{vW6}"] if (s, i) == (8, 0) else []
        return g, LG(f"ds_read_b128 {vr(WF + (f % 8)*4, 4)}, v{vW if i < 6 else vW6} offset:{(s & 7)*7168 + (i*1024 if i < 6 else 0)}", ("wf", f))
    for f in range(LA): o += [rd(f)[1]]
    for f in range(LA, len(frags)):
        g, x = rd(f); i = 2*(f - LA)
        if g: slots[i-1].alu += flat(g)
        slots[i].mem.append(x)
    GB, B2 = 16, 32
    ld = sum((z_ld(s) for s in range(4, 16)), []) + stat
    ZP_ = float(env["OV"]("zp", 3))
    ld = ld[:8] + stat + ld[8:24] if "statlate" not in opt else ld
    for k, g in enumerate(ld): slots[1 + 2*int(k*ZP_/2)].mem.append(g)
    if upto >= 5:
        NM2 = int(env['OV']('nm2', 8))
        for k, g in enumerate(early2 + sum((wl2(i) for i in range(NE2, NM2)), [])): slots[int(env["OV"]("m2s", 101)) + int(env["OV"]("m2d", 5))*k].mem.append(g)
        ep = flat(srd(sR, pB2, 1024) + [f"v_lshlrev_b32 v{vT}, 3, v{g4}", modf(GB, 5), f"s_lshl_b32 s{sT0}, s{sCTL}, 7"] +
                  [VM(f"buffer_load_dwordx2 {vr(B2+2*t, 2)}, v{vT}, s[{sR}:{sR+3}], s{sT0} offen offset:{t*32}", "ep") for t in range(4)])
        if HY: ep += flat([f"s_lshl_b32 s{sT0}, s{sRT}, 14", f"s_lshl_b32 s{sT1}, s{sCTL}, 11", f"s_add_u32 s{sT0}, s{sT0}, s{sT1}", f"s_add_u32 s{sT0}, s{sT0}, {WS_X1}"] +
                          [VM(f"buffer_load_dwordx4 {vr(XR+4*p, 4)}, v{vL16}, {WS}, s{sT0} offen offset:{p*1024} sc1", "ep") for p in range(2)])
        for k, g in enumerate(ep): slots[int(env["OV"]("eps", 189)) + 2*k].mem.append(g)
    bg = []
    for r in range(2):
        b = DS + r*16
        for ct in range(1, 8): bg += [f"v_add_f32 v{b}, v{b}, v{b+2*ct}", f"v_add_f32 v{b+1}, v{b+1}, v{b+2*ct+1}"]
        S1, S5, S2, S3, S4, S6, M1, R1, T0, T1, T2 = b, b+1, b+2, b+3, b+4, b+5, b+6, b+7, b+8, b+9, b+10
        bg += [f"v_mov_b32 v{S2}, v{S1}", f"v_mov_b32 v{S6}, v{S5}", f"v_permlane16_swap_b32 v{S1}, v{S2}", f"v_permlane16_swap_b32 v{S5}, v{S6}",
               f"v_mov_b32 v{S3}, v{S1}", f"v_mov_b32 v{S4}, v{S2}", f"v_permlane32_swap_b32 v{S1}, v{S3}", f"v_permlane32_swap_b32 v{S2}, v{S4}"]
        n = fbits(1/512); al_, be, ga, de = CO+4*r, CO+4*r+1, CO+4*r+2, CO+4*r+3
        bg += [f"v_mul_f32 v{M1}, {n}, v{S1}",
               f"v_mul_f32 v{T0}, {n}, v{S2}", f"v_fma_f32 v{T0}, -v{M1}, v{M1}, v{T0}", f"v_add_f32 v{T0}, {fbits(EPS)}, v{T0}", f"v_rsq_f32 v{R1}, v{T0}",
               f"v_fma_f32 v{T0}, -v{M1}, s{sK}, v{S3}",
               f"v_mul_f32 v{T1}, s{sK+1}, v{M1}", f"v_fma_f32 v{T1}, -2.0, v{S5}, v{T1}", f"v_fma_f32 v{T1}, v{T1}, v{M1}, v{S4}",
               f"v_fma_f32 v{T2}, -v{M1}, s{sK+2}, v{S6}",
               f"v_fma_f32 v{T0}, v{T0}, v{R1}, s{sK+3}", f"v_mul_f32 v{T0}, {n}, v{T0}",
               f"v_mul_f32 v{T1}, v{T1}, v{R1}", f"v_fma_f32 v{T1}, 2.0, v{T2}, v{T1}", f"v_fma_f32 v{T1}, v{T1}, v{R1}, s{sK+4}",
               f"v_mul_f32 v{T1}, {n}, v{T1}", f"v_fma_f32 v{T1}, -v{T0}, v{T0}, v{T1}", f"v_add_f32 v{T1}, {fbits(EPS)}, v{T1}", f"v_rsq_f32 v{ga}, v{T1}",
               f"v_mul_f32 v{M1}, -1.0, v{M1}", f"v_mul_f32 v{al_}, v{R1}, v{ga}", f"v_mul_f32 v{de}, v{T0}, v{ga}", f"v_mul_f32 v{be}, v{M1}, v{al_}",
               f"v_mul_f32 v{de}, -1.0, v{de}"]
    bg[0] = [W(vm="stat"), bg[0]]
    spread(slots, bg, int(env["OV"]("bgs", 90)), 222)
    if "nodpack" not in opt: pack_slots(slots)
    slots[14].alu += st("T")
    o += emit_slots(slots) + st() + st("T")
    U = [128, 140, 152]; BB, G = 164, 168
    def uvs(n): return [LG(f"ds_read_b128 {vr(U[n % 3]+4*k, 4)}, v{vU if n else vU6} offset:{k*512 + ((n-1)*64 if n else 0)}", ("u", n)) for k in range(3)]
    late = sum((wl2(i) for i in range(NM2, 14)), []) if upto >= 5 else []
    sHF, sHH = sZ, sZ+2
    order = (6, 0, 1, 2, 3, 4, 5)
    o += uvs(0) + uvs(1) + [W(vm="b1"), f"v_mov_b32 v{BB+12}, s{sC0}", f"v_mov_b32 v{BB+13}, s{sC0}", f"""
    s_mul_i32 s{sT0}, s{sPAIR}, {2*57344}
    s_add_u32 s{sT0}, s{sT0}, {WS_H1}
    s_mul_i32 s{sT1}, s{sN}, 7
    s_add_u32 s{sT1}, s{sT1}, s{sODD}
    s_lshl_b32 s{sT1}, s{sT1}, 9
    s_add_u32 s{sHF}, s{sT0}, s{sT1}
    s_add_u32 s{sHF+1}, s{sHF}, 57344
    s_or_b32 s{sT1}, s{sN}, 1
    s_mul_i32 s{sT1}, s{sT1}, 7
    s_sub_u32 s{sT1}, s{sT1}, 1
    s_lshl_b32 s{sT1}, s{sT1}, 9
    s_add_u32 s{sHH}, s{sT0}, s{sT1}
    s_lshl_b32 s{sT1}, s{sODD}, 3
    s_add_u32 s{sHH}, s{sHH}, s{sT1}
    s_add_u32 s{sHH+1}, s{sHH}, 57344
    """]
    depi = []
    for n, i in enumerate(order):
        if n + 2 < 7: depi += uvs(n+2)
        depi += [f"v_lshlrev_b32 v{BB}, 16, v{B1+2*i}", f"v_and_b32 v{BB+1}, 0xffff0000, v{B1+2*i}",
                 f"v_lshlrev_b32 v{BB+2}, 16, v{B1+2*i+1}", f"v_and_b32 v{BB+3}, 0xffff0000, v{B1+2*i+1}", W(lg=[("u", n)])]
        u = U[n % 3]; cells = [(r, h) for r in range(2) for h in (0, 2)]
        Xv = lambda r, h: vr(DA + (i*2+r)*4 + h, 2)
        T = lambda r, h: vr(G + r*4 + h, 2)
        lo, hi = "op_sel:[0,0,0] op_sel_hi:[1,0,1]", "op_sel:[0,1,0] op_sel_hi:[1,1,1]"
        for r, h in cells: depi += [f"v_pk_fma_f32 {T(r,h)}, {vr(u+8+h,2)}, {vr(CO+4*r+2,2)}, {vr(BB+h,2)} {hi}"]
        for r, h in cells: depi += [f"v_pk_fma_f32 {T(r,h)}, {vr(u+4+h,2)}, {vr(CO+4*r+2,2)}, {T(r,h)} {lo}"]
        for r, h in cells: depi += [f"v_pk_fma_f32 {T(r,h)}, {vr(u+h,2)}, {vr(CO+4*r,2)}, {T(r,h)} {hi}"]
        for r, h in cells: depi += [f"v_pk_fma_f32 {Xv(r,h)}, {Xv(r,h)}, {vr(CO+4*r,2)}, {T(r,h)} {lo}"]
        for r, h in cells: depi += [f"v_pk_mul_f32 {T(r,h)}, {Xv(r,h)}, {Xv(r,h)}"]
        for r, h in cells: depi += [f"v_pk_fma_f32 {T(r,h)}, {T(r,h)}, s[{sC1}:{sC1+1}], {vr(BB+12,2)}"]
        for r, h in cells: depi += [f"v_pk_mul_f32 {T(r,h)}, {T(r,h)}, {Xv(r,h)}"]
        depi += [f"v_exp_f32 v{G+k}, v{G+k}" for k in range(8)]
        for r, h in cells: depi += [f"v_pk_add_f32 {T(r,h)}, {T(r,h)}, s[{sONE}:{sONE+1}]"]
        depi += [f"v_rcp_f32 v{G+k}, v{G+k}" for k in range(8)]
        for r, h in cells: depi += [f"v_pk_mul_f32 {Xv(r,h)}, {Xv(r,h)}, {T(r,h)}"]
        for r, h in cells:
            a = DA + (i*2+r)*4 + h
            depi += [f"v_cvt_pk_bf16_f32 v{HB + ((3*r + i//2)*4 + (i & 1)*2 if i < 6 else 24 + 2*r) + h//2}, v{a}, v{a+1}"]
        if i < 6 and i & 1:
            depi += [VM(f"buffer_store_dwordx4 {vr(HB+4*(3*r + i//2), 4)}, v{vL16}, {WS}, s{sHF+r} offen offset:{(i//2)*1024} sc1", "hst2") for r in range(2)]
        if i == 6:
            depi += [VM(f"buffer_store_dwordx2 {vr(HB+24+2*r, 2)}, v{vL16}, {WS}, s{sHH+r} offen sc1", "hst2") for r in range(2)]
    depi = flat(depi); NL2 = min(len(late), int(env['OV']('nl2', 0))); span = len(depi)*6//7
    for k in reversed(range(NL2)): depi[(k*span)//NL2:(k*span)//NL2] = flat(late[k])
    o += depi; late = late[NL2:]
    if upto < 5: return resolve_waits(flat(o), pre_vm=PRE)
    btw = [f"s_mul_i32 s{sA}, s{sRB}, {4*57344}", f"s_mul_i32 s{sT0}, s{sW}, {14*1024}", f"s_add_u32 s{sA}, s{sA}, s{sT0}", f"s_add_u32 s{sA}, s{sA}, {WS_H1}"]
    btw += rot_rows(57344) + srd(sR, pOUT, 2*MB)
    F2, BF = 40, 8
    btw += [W(vm="ep")]
    vOW, vOR = 8, 9
    btw += [f"""
    s_mul_i32 s{sT0}, s{sW}, 2304
    v_mul_u32_u24 v{vOW}, 144, v{c16}
    v_lshl_add_u32 v{vOW}, v{g4}, 3, v{vOW}
    v_add_u32 v{vOW}, s{sT0}, v{vOW}
    v_lshrrev_b32 v{vRM}, 3, v0
    v_and_b32 v{vG16}, 7, v0
    v_lshlrev_b32 v{vG16}, 4, v{vG16}
    v_mul_u32_u24 v{vOR}, 144, v{vRM}
    v_add3_u32 v{vOR}, v{vOR}, v{vG16}, s{sT0}
    v_lshl_add_u32 v{vRM}, v{vRM}, 10, v{vG16}
    """]
    for j in range(8): btw += [f"v_lshlrev_b32 v{F2+2*j}, 16, v{B2+j}", f"v_and_b32 v{F2+2*j+1}, 0xffff0000, v{B2+j}"]
    for j in range(8):
        btw += [f"v_lshlrev_b32 v{B2}, 16, v{XR+j}", f"v_and_b32 v{B2+1}, 0xffff0000, v{XR+j}", f"v_pk_fma_f32 {vr(F2+2*j, 2)}, {vr(F2+2*j, 2)}, {vr(GB+2*j, 2)}, {vr(B2, 2)}"]
    NL3 = int(env["OV"]("nl3", 8))
    o += st("T") + late[:NL3] + btw + prep(3) + [W(vm="hst2"), "s_barrier"] + st() + st("T")
    o += sync(3, sSUB, late[NL3:]) + st() + st("T")
    o += [al2(i) for i in range(PD["e"])]
    o += gemm("e", 14, wl2, al2, lambda i: reduce_addr() if i == 11 else []) + st("T")
    o += reduce_waves()
    F = F2
    o += [f"s_lshl_b32 s{sT0}, s{sRT}, 14", f"s_lshl_b32 s{sT1}, s{sCTL}, 7", f"s_add_u32 s{sT0}, s{sT0}, s{sT1}"]
    for t in range(4):
        b = ACC + t*16
        o += sum4(t)
        for h in (0, 2): o += [f"v_pk_fma_f32 {vr(F+4*t+h, 2)}, {vr(b+h, 2)}, {vr(GB+4*t+h, 2)}, {vr(F+4*t+h, 2)}"]
        o += [f"v_cvt_pk_bf16_f32 v{XR+2*t}, v{F+4*t}, v{F+4*t+1}", f"v_cvt_pk_bf16_f32 v{XR+2*t+1}, v{F+4*t+2}, v{F+4*t+3}",
              LG(f"ds_write_b64 v{vOW}, {vr(XR+2*t, 2)} offset:{t*32}", "ow")]
    o += [W(lg="ow")] + [LG(f"ds_read_b128 {vr(XR+4*k, 4)}, v{vOR} offset:{k*8*144}", ("or", k)) for k in range(2)]
    for k in range(2): o += [W(lg=[("or", k)]), VM(f"buffer_store_dwordx4 {vr(XR+4*k, 4)}, v{vRM}, s[{sR}:{sR+3}], s{sT0} offen sc1"), f"s_add_u32 s{sT0}, s{sT0}, 8192"]
    return resolve_waits(flat(o), pre_vm=PRE)
```

```python
from common import *
from flay import *

def fused(name, ts=False, opt="", upto=9):
    N = name
    NT = " nt" if "nt" in opt.split() else ""
    NT1 = " nt" if "nt1" in opt.split() or NT else ""
    NTT = " nt" if "ntt" in opt.split() or NT else ""
    sW, sHEAD, sJ, sC = 3, 4, 5, 6
    sWS = 8; WS = "s[8:11]"
    sT0, sT1 = 76, 77
    pX, pB1, pB2, pOUT = 92, 94, 96, 98
    vL16 = 1
    nstamp = [0]; env = {}
    SM = "A" if "stA" in opt else ("B" if "stB" in opt else ("P" if "stP" in opt else ("T" if "stT" in opt else "")))
    def st(kind=""):
        if not ts or nstamp[0] >= 15 or kind != SM: return []
        nstamp[0] += 1
        return [stamp(nstamp[0] - 1)]
    def finish():
        r = []
        if ts:
            r += ["s_waitcnt vmcnt(0)", stamp(15), "s_waitcnt lgkmcnt(0)", "v_mov_b32 v2, s100", "v_mov_b32 v3, s74",
                  "s_lshl_b32 s76, s2, 2", f"s_add_u32 s76, s76, s{sW}", "s_lshl_b32 s77, s76, 3", f"s_add_u32 s77, s77, {WS_TS}",
                  f"buffer_store_dwordx2 v[2:3], off, {WS}, s77", "s_lshl_b32 s77, s76, 6", f"s_add_u32 s77, s77, {WS_TS + 65536}"]
            for q in range(0, 16, 4):
                r += [f"v_mov_b32 v{4+j}, s{44+2*(q+j)}" for j in range(4)]
                r += [f"buffer_store_dwordx4 v[4:7], off, {WS}, s77 offset:{q*4}", "s_nop 1"]
        return flat(r + [f"Lend_{N}:", "s_endpgm"]) + env["fallback"] + flat([f"Lcode_end_{N}:", "s_endpgm"])
    def rnd(r0, r1, t): return [f"v_cvt_pk_bf16_f32 v{t}, v{r0}, v{r1}", f"v_lshlrev_b32 v{r0}, 16, v{t}", f"v_and_b32 v{r1}, 0xffff0000, v{t}"]
    HY = "hy" in opt.split()
    XL = "noxl" not in opt.split() and not HY
    FS = int(next((x[3:] for x in opt.split() if x.startswith("fs=")), 5))
    FB = lambda kind: WS_FLAG + 8192 + (kind + 1)*(256 << FS)
    def flag_off(dst, kind, own, line=None):
        if (XL and kind >= 2) or (HY and kind == 3):
            r = [f"s_and_b32 s{dst}, s2, 7", f"s_lshl_b32 s{dst}, s{dst}, {5 + FS}", f"s_add_u32 s{dst}, s{dst}, {FB(kind)}"]
            if own: r += [f"s_lshr_b32 s{sT0}, s2, 3", f"s_lshl_b32 s{sT0}, s{sT0}, {FS}", f"s_add_u32 s{dst}, s{dst}, s{sT0}"]
            return r + [f"s_cmp_eq_u32 s{sW}, 0", f"s_cselect_b32 s{dst}, s{dst}, {OOB:#x}"]
        r = [f"s_lshl_b32 s{dst}, s{sJ if line is None else line}, {5 + FS}", f"s_add_u32 s{dst}, s{dst}, {FB(kind)}"]
        if own: r += [f"s_lshl_b32 s{sT0}, s{sC}, {FS}", f"s_add_u32 s{dst}, s{dst}, s{sT0}"]
        return r + [f"s_cmp_eq_u32 s{sW}, 0", f"s_cselect_b32 s{dst}, s{dst}, {OOB:#x}"]
    def publish(vt, soff):
        return [f"v_min_u32 v{vt}, 1, v0", f"v_lshlrev_b32 v{vt}, 27, v{vt}", f"v_mov_b32 v{vt+1}, 1",
                VM(f"buffer_store_dword v{vt+1}, v{vt}, {WS}, s{soff} offen sc1", "flag")]
    nct = [0]
    def code_part(a, b, lines, sd, vt, emit=VM):
        nct[0] += 1; l = f"Lct{nct[0]}_{N}"
        return [f"s_getpc_b64 s[{sd}:{sd+1}]", f"{l}:", f"s_add_u32 s{sd}, s{sd}, {a}-{l}", f"s_addc_u32 s{sd+1}, s{sd+1}, 0", f"s_mov_b32 s{sd+2}, {b}-{a}",
                f"s_mov_b32 s{sd+3}, 0x20000", f"s_cmp_eq_u32 s{sW}, 0", f"s_cselect_b32 s{sd+2}, s{sd+2}, 0", f"s_lshr_b32 s{sT0}, s2, 3", f"s_mul_i32 s{sT0}, s{sT0}, {lines*128}",
                f"v_min_u32 v{vt}, {lines - 1}, v0", f"v_lshlrev_b32 v{vt}, 7, v{vt}", emit(f"buffer_load_dword v{vt+1}, v{vt}, s[{sd}:{sd+3}], s{sT0} offen")]
    nsp = [0]
    def check(load, test, scnt, tag, mask=None, every=False):
        nsp[0] += 1; k = f"{N}_{nsp[0]}"
        test = [test, "s_cmp_lg_u64 vcc, 0" if mask is None else f"s_and_b64 vcc, vcc, s[{mask}:{mask+1}]"]
        return flat([W(vm=tag), [] if every else [f"s_cmp_lg_u32 s{sW}, 0", f"s_cbranch_scc1 Lok{k}"], test, f"s_cbranch_scc0 Lok{k}", f"s_mov_b32 s{scnt}, 0x80000",
                     f"Lsp{k}:", f"s_sub_u32 s{scnt}, s{scnt}, 1", f"s_cbranch_scc1 Lok{k}", "s_sleep 1", load, It("s_waitcnt vmcnt(0)", k="cond"), test,
                     f"s_cbranch_scc1 Lsp{k}", f"Lok{k}:"])

    sCKV, sWK, sWV, sMOD, sCV, sX, sDBG, sCODE = 12, 16, 20, 24, 28, 32, 36, 40
    sWQ, sWO, sU2 = sMOD, sCV, sCODE
    sCOFF, sWKOFF, sWVOFF, sKST, sVST, sM0C, sM0K, sMST, sATO, sADD, sMF, sHST, sSPIN, sRS0 = range(78, 92)
    sRS1 = 7; sMEAN0, sMEAN1 = sMST, sATO
    vWD, vTR, vCD, vCR, vT = 2, 6, 10, 14, 16
    WF, X, ACC = 32, 64, 128
    RING, CBUF, CW = 0, 65536, 24576
    MODRED, MODV, HSTA = 49152, CBUF + 16384, CBUF + CW + 16384
    o = ["s_cmp_ge_u32 s2, 256", f"s_cbranch_scc1 Lend_{N}"] + load_args()
    if ts: o += ["s_memrealtime s[100:101]" if not CYC else "s_memtime s[100:101]"]
    o += [f"s_getpc_b64 s[{sCODE}:{sCODE+1}]", f"Lpc_{N}:", f"s_mov_b32 s{sCODE+2}, Lcode_end_{N}-Lpc_{N}", f"s_mov_b32 s{sCODE+3}, 0x20000",
          f"v_lshlrev_b32 v{vT}, 7, v0"]
    CPM = next((x[4:] for x in opt.split() if x.startswith("cpm=")), "part")
    if CPM == "all": o += [VM(f"buffer_load_dword v{vT+1}, v{vT}, s[{sCODE}:{sCODE+3}], 0 offen", "code")]
    elif CPM == "part":
        o += [f"s_lshr_b32 s{sT0}, s2, 3", f"s_mul_i32 s{sT0}, s{sT0}, 3072", f"v_cmp_gt_u32 vcc, 24, v0", f"v_mov_b32 v{vT+1}, {1 << 27}",
              f"v_cndmask_b32 v{vT}, v{vT+1}, v{vT}, vcc", VM(f"buffer_load_dword v{vT+1}, v{vT}, s[{sCODE}:{sCODE+3}], s{sT0} offen", "code")]
    o += [f"""
    v_lshrrev_b32 v{vT+2}, 6, v0
    v_and_b32 v0, 63, v0
    v_readfirstlane_b32 s{sW}, v{vT+2}
    v_lshlrev_b32 v{vL16}, 4, v0
    s_and_b32 s{sHEAD}, s2, 7
    s_lshl_b32 s{sHEAD}, s{sHEAD}, 2
    s_bfe_u32 s{sT0}, s2, 0x20003
    s_add_u32 s{sHEAD}, s{sHEAD}, s{sT0}
    s_lshr_b32 s{sJ}, s2, 5
    s_and_b32 s{sC}, s2, 31
    v_lshrrev_b32 v{vT+2}, 3, v0
    v_and_b32 v{vT+3}, 7, v0
    """]
    r8, c8 = vT+2, vT+3
    o += [f"""
    v_mul_u32_u24 v{vT+4}, 6144, v{r8}
    v_lshl_add_u32 v{vT+4}, v{c8}, 4, v{vT+4}
    v_lshlrev_b32 v{vT+5}, 1, v{r8}
    v_lshrrev_b32 v{vT+6}, 1, v{r8}
    v_xor_b32 v{vT+6}, v{vT+6}, v{c8}
    v_lshlrev_b32 v{vT+6}, 4, v{vT+6}
    v_lshl_add_u32 v{vCD}, v{r8}, 10, v{vT+6}
    v_xor_b32 v{vCD+1}, 64, v{vCD}
    v_add_u32 v{vCD+1}, {7*1024}, v{vCD+1}
    v_add_u32 v{vCD+2}, {14*1024}, v{vCD}
    v_add_u32 v{vCD+3}, {14*1024}, v{vCD+1}
    v_and_b32 v{vT+6}, 2, v{r8}
    v_xor_b32 v{vT+6}, v{vT+6}, v{c8}
    v_lshlrev_b32 v{vT+6}, 4, v{vT+6}
    v_lshl_add_u32 v{vWD}, v{r8}, 13, v{vT+6}
    v_xor_b32 v{vWD+1}, 64, v{vWD}
    v_add_u32 v{vWD+1}, {65536-1024}, v{vWD+1}
    v_add_u32 v{vWD+2}, {2*(65536-1024)}, v{vWD}
    v_add_u32 v{vWD+3}, {2*(65536-1024)}, v{vWD+1}
    s_and_b32 s{sT0}, s2, 3
    s_lshl_b32 s{sT0}, s{sT0}, 7
    s_lshl_b32 s{sT1}, s{sW}, 5
    s_add_u32 s{sMF}, s{sT0}, s{sT1}
    s_lshl_b32 s{sHST}, s{sMF}, 1
    s_mul_i32 s{sMF}, s{sMF}, 6144
    s_lshr_b32 s{sMST}, s2, 2
    s_lshl_b32 s{sMST}, s{sMST}, 7
    s_add_u32 s{sMF}, s{sMF}, s{sMST}
    s_lshl_b32 s{sCOFF}, s{sJ}, 18
    s_lshl_b32 s{sT0}, s{sW}, 16
    s_add_u32 s{sCOFF}, s{sCOFF}, s{sT0}
    s_mul_i32 s{sM0C}, s{sW}, {CW}
    s_add_u32 s{sM0C}, s{sM0C}, {CBUF}
    s_and_b32 s{sT0}, s{sW}, 1
    s_lshl_b32 s{sWKOFF}, s{sT0}, 18
    s_lshr_b32 s{sT1}, s{sW}, 1
    s_lshl_b32 s{sT1}, s{sT1}, 7
    s_add_u32 s{sWKOFF}, s{sWKOFF}, s{sT1}
    s_lshl_b32 s{sT1}, s{sHEAD}, 8
    s_add_u32 s{sWKOFF}, s{sWKOFF}, s{sT1}
    s_lshl_b32 s{sWVOFF}, s{sW}, 18
    s_add_u32 s{sWVOFF}, s{sWVOFF}, s{sT1}
    s_lshl_b32 s{sM0K}, s{sW}, 12
    s_waitcnt lgkmcnt(0)
    """]
    if SM == "P": o += ["s_memrealtime s[92:93]"]
    o += srd(sMOD, P("wmod"), 512*6144) + srd(sCV, P("c"), 1024) + ["s_cmp_lt_u32 s2, 192", f"s_cselect_b32 s{sMOD+2}, s{sMOD+2}, 0"]
    MW, MC, MA, MT = 64, 80, 84, 92
    for n in range(4): o += [VM(f"buffer_load_ushort v{MC+n}, v{vT+5}, s[{sCV}:{sCV+3}], s{sHST} offen offset:{16*n}", "modc")]
    for n in range(4):
        o += [VM(f"buffer_load_dwordx4 v[{MW+4*n}:{MW+4*n+3}], v{vT+4}, s[{sMOD}:{sMOD+3}], s{sMF} offen{NT1}", ("modw", n))]
        if n < 3: o += [f"s_add_u32 s{sMF}, s{sMF}, {8*6144}"]
    o += srd(sCKV, P("ckv"), 2*MB) + srd(sWK, P("wuk"), 4*MB)
    def c_dma(i):
        g = []
        for hh in range(2):
            grp = [f"s_add_u32 m0, s{sM0C}, {(i % 3)*8192 + hh*4096}", f"s_add_u32 s{sRS0}, s{sCOFF}, {i*128 + hh*32768}"]
            for n in range(4):
                grp.append(VM(f"buffer_load_dwordx4 v{vCD+n}, s[{sCKV}:{sCKV+3}], s{sRS0} offen offset:{n*1024}{' nt' if 'ntc' in opt.split() else ''} lds", ("c", i)))
                g.append(grp); grp = []
        return SEQ(g)
    def page(q): return RING + (q % 4) * 16384
    def w_dma(q):
        sTW = sRS1 if q <= 2 else sT1
        if q < 8: sd, off, m0 = sWK, f"s_add_u32 s{sTW}, s{sWKOFF}, {q*64*8192}", f"s{sM0K}, {page(q)}"
        elif q < 16:
            sd, off = sWV, f"s_add_u32 s{sTW}, s{sWVOFF}, {((q-8)&3)*128*8192 + ((q-8)>>2)*128}"
            m0 = f"s{sM0K}, {page(q)}" if q < 12 else f"s{sM0C}, {(q-12)*4096}"
        else: sd, off, m0 = sWQ, f"s_add_u32 s{sTW}, s{sWKOFF}, {(q-16)*64*8192}", f"s{sM0K}, {(q-16)*16384}"
        g = []; grp = [f"s_add_u32 m0, {m0}", off]
        for n in range(4):
            grp.append(VM(f"buffer_load_dwordx4 v{vWD+n}, s[{sd}:{sd+3}], s{sTW} offen offset:{n*1024}{' nt' if (q < 8 and 'ntk' in opt.split()) or (8 <= q < int(OV('ntv', 0))) else NT} lds", ("w", q)))
            g.append(grp); grp = []
        return SEQ(g)
    OPT = opt.split()
    def OV(k, d): return next((x.split("=")[1] for x in OPT if x.startswith(k + "=")), d)
    o += [c_dma(0), w_dma(0)] + (["s_memrealtime s[94:95]"] if SM == "P" else []) + srd(sWV, P("wuv"), 4*MB)
    OPT = opt.split()
    def OV(k, d): return next((x.split("=")[1] for x in OPT if x.startswith(k + "=")), d)
    vTD = vT+1
    vPC, vPW = 96, 97
    def pf_addr(vc, vw):
        return [f"v_lshrrev_b32 v{vw}, 4, v0", f"v_and_b32 v{vc}, 15, v0", f"v_lshlrev_b32 v{vc}, 4, v{vc}",
                f"v_lshl_add_u32 v{vw+1}, v{vw}, 13, v{vc}", f"v_lshl_add_u32 v{vc}, v{vw}, 10, v{vc}", f"v_mov_b32 v{vw}, v{vw+1}"]
    def pf_c(dummy):
        g = []; grp = [f"s_add_u32 m0, s{sM0C}, {dummy}", f"s_bfe_u32 s{sRS0}, s2, 0x20003", f"s_lshl_b32 s{sRS0}, s{sRS0}, 16", f"s_lshl_b32 s{sRS1}, s{sJ}, 18",
                       f"s_add_u32 s{sRS0}, s{sRS0}, s{sRS1}", f"s_lshl_b32 s{sRS1}, s{sW}, 14", f"s_add_u32 s{sRS0}, s{sRS0}, s{sRS1}"]
        for col in range(1, 4):
            for rg in range(4):
                grp += [f"s_add_u32 s{sRS1}, s{sRS0}, {rg*4096 + col*256}", VM(f"buffer_load_dwordx4 v{vPC}, s[{sCKV}:{sCKV+3}], s{sRS1} offen lds", "pf")]
                g.append(grp); grp = []
        return SEQ(g)
    def pf_w(sd, vw, dummy, first, sRS0=sRS0, sRS1=sRS1, reg=None):
        g = []; grp = [f"s_add_u32 m0, s{sM0C}, {dummy}", f"s_lshr_b32 s{sRS0}, s{sW}, 1", f"s_lshl_b32 s{sRS0}, s{sRS0}, 3", f"s_add_u32 s{sRS0}, s{sRS0}, s{sJ}",
                       f"s_lshl_b32 s{sRS0}, s{sRS0}, 1", f"s_and_b32 s{sRS1}, s{sW}, 1", f"s_add_u32 s{sRS0}, s{sRS0}, s{sRS1}", f"s_lshl_b32 s{sRS0}, s{sRS0}, 15",
                       f"s_lshl_b32 s{sRS1}, s{sHEAD}, 8", f"s_add_u32 s{sRS0}, s{sRS0}, s{sRS1}"]
        for q in range(first, 8, 2):
            if reg is not None and q == first: grp = grp[1:]
            grp += [f"s_add_u32 s{sRS1}, s{sRS0}, {q*64*8192}", VM(f"buffer_load_dwordx4 v{vw}, s[{sd}:{sd+3}], s{sRS1} offen{NTT} lds" if reg is None else
                                                                    f"buffer_load_dwordx4 {vr(reg, 4)}, v{vw}, s[{sd}:{sd+3}], s{sRS1} offen{NTT}", "pf")]
            g.append(grp); grp = []
        return SEQ(g)
    PF = "nopf" not in OPT
    o += pf_addr(vPC, vPW)
    pfa = (pf_w(sWK, vPW, 16384, 2) if "pfk" in OPT else []) + (pf_c(16384) if "pfc" in OPT else [])
    NPRE = int(OV("npre", 2))
    ilv = sum((c_dma(i) + w_dma(i) for i in range(1, NPRE + 1)), []) if "ilv" in OPT else []
    pro0 = len(o)
    o += ([] if ilv else [c_dma(1), w_dma(1)]) + ([pfa] if "pfpre" in OPT else []) + (["s_memrealtime s[96:97]"] if SM == "P" else []) + srd(sWS, P("ws"), WS_SIZE)
    KF, VF, SF = 0, 5120, 6144
    vZA, vZD = vT+14, vT+15
    o += [f"""
    v_lshlrev_b32 v{vZA}, {8 + FS}, v0
    s_lshl_b32 s{sT0}, s2, {FS}
    s_add_u32 s{sT0}, s{sT0}, 8192
    v_add_u32 v{vZA}, s{sT0}, v{vZA}
    s_lshl_b32 s{sT0}, s{sHEAD}, 5
    s_lshl_b32 s{sT1}, s{sJ}, 2
    s_add_u32 s{sT0}, s{sT0}, s{sT1}
    v_writelane_b32 v{vZA}, s{sT0}, 0
    s_add_u32 s{sT0}, s{sT0}, {VF}
    v_writelane_b32 v{vZA}, s{sT0}, 5
    s_lshl_b32 s{sT0}, s2, 2
    s_add_u32 s{sT0}, s{sT0}, {SF}
    v_writelane_b32 v{vZA}, s{sT0}, 6
    v_mov_b32 v{vZD}, {1 << 27}
    v_cmp_gt_u32 vcc, 7, v0
    v_cndmask_b32 v{vZA}, v{vZD}, v{vZA}, vcc
    v_mov_b32 v{vZD}, 0
    s_mov_b32 s{sSPIN}, {WS_FLAG}
    s_cmp_eq_u32 s{sW}, 0
    s_cselect_b32 s{sSPIN}, s{sSPIN}, {OOB:#x}
    """, VM(f"buffer_store_dword v{vZD}, v{vZA}, {WS}, s{sSPIN} offen sc1", "zero")]
    for i in (32768, 65536) if CPM == "all" else ():
        o += [f"s_mov_b32 s{sT0}, {i}", VM(f"buffer_load_dword v{vT+1}, v{vT}, s[{sCODE}:{sCODE+3}], s{sT0} offen", "code2")]
    o += srd(sX, P("x"), 2*MB) + srd(sDBG, P("dbg"), 256) + srd(sWQ, P("wq"), 4*MB) + srd(sWO, P("wo"), 4*MB)
    EARLY = "s_waitcnt lgkmcnt(0)\ns_mov_b32 s66, s92\ns_mov_b32 s68, s94\ns_mov_b32 s72, s96" if SM == "P" else ""
    PW2 = 100 if not ts else 74
    o += srd(sU2, P("w1"), 1792*1024) + [f"""
    s_mov_b64 s[{PW2}:{PW2+1}], s[{P('w2')}:{P('w2')+1}]
    {EARLY}
    s_mov_b64 s[{pX}:{pX+1}], s[{P('x')}:{P('x')+1}]
    s_mov_b64 s[{pB1}:{pB1+1}], s[{P('b1')}:{P('b1')+1}]
    s_mov_b64 s[{pB2}:{pB2+1}], s[{P('b2')}:{P('b2')+1}]
    s_mov_b64 s[{pOUT}:{pOUT+1}], s[{P('out')}:{P('out')+1}]
    v_lshrrev_b32 v{vT+6}, 4, v0
    v_bfe_u32 v{vT+7}, v0, 2, 2
    v_lshl_add_u32 v{vT+8}, v{vT+6}, 3, v{vT+7}
    v_lshlrev_b32 v{vT+8}, 7, v{vT+8}
    v_and_b32 v{vT+9}, 3, v0
    v_lshl_add_u32 v{vT+8}, v{vT+9}, 3, v{vT+8}
    v_and_b32 v{vT+9}, 1, v{vT+6}
    v_lshlrev_b32 v{vT+9}, 1, v{vT+9}
    v_lshrrev_b32 v{vT+10}, 1, v{vT+7}
    v_or_b32 v{vT+9}, v{vT+9}, v{vT+10}
    v_lshl_add_u32 v{vTR}, v{vT+9}, 5, v{vT+8}
    v_xor_b32 v{vTR+1}, 32, v{vTR}
    v_xor_b32 v{vTR+2}, 64, v{vTR}
    v_xor_b32 v{vTR+3}, 0x60, v{vTR}
    v_and_b32 v{vT+7}, 15, v0
    v_lshrrev_b32 v{vT+8}, 1, v{vT+7}
    v_xor_b32 v{vT+8}, v{vT+8}, v{vT+6}
    v_lshlrev_b32 v{vT+8}, 4, v{vT+8}
    v_lshl_add_u32 v{vT+8}, v{vT+7}, 7, v{vT+8}
    v_add_u32 v{vCR}, s{sM0C}, v{vT+8}
    v_xor_b32 v{vCR+1}, 64, v{vCR}
    s_lshl_b32 s{sKST}, s{sHEAD}, 20
    s_lshl_b32 s{sT0}, s{sJ}, 17
    s_add_u32 s{sKST}, s{sKST}, s{sT0}
    s_lshl_b32 s{sT0}, s{sW}, 15
    s_add_u32 s{sKST}, s{sKST}, s{sT0}
    s_add_u32 s{sVST}, s{sKST}, 16384
    s_and_b32 s{sT0}, s2, 3
    s_mul_i32 s{sT0}, s{sT0}, 12288
    s_lshl_b32 s{sMST}, s{sMST}, 1
    s_add_u32 s{sMST}, s{sMST}, s{sT0}
    s_add_u32 s{sMST}, s{sMST}, {WS_MODP}
    s_cmp_lt_u32 s2, 192
    s_cselect_b32 s{sT0}, s{sW}, 1
    s_cmp_eq_u32 s{sT0}, 0
    s_cselect_b32 s{sMST}, s{sMST}, {OOB:#x}
    s_and_b32 s{sATO}, s2, 63
    s_lshl_b32 s{sATO}, s{sATO}, 2
    s_cmp_eq_u32 s{sW}, 0
    s_cselect_b32 s{sATO}, s{sATO}, 256
    s_cmp_ge_u32 s{sW}, 2
    s_cselect_b32 s{sADD}, 1.0, 0
    """]
    o += st("P") + [W(vm="code" if SM == "P" else "modc")] + st("P") + [W(vm="modc")] + st("P")
    for n in range(4): o += [f"v_lshlrev_b32 v{MC+n}, 16, v{MC+n}"]
    for n in range(4): o += [f"v_mul_f32 v{MT+n}, {fbits(-1.4426950408889634)}, v{MC+n}"]
    for n in range(4): o += [f"v_exp_f32 v{MT+n}, v{MT+n}"]
    for n in range(4): o += [f"v_add_f32 v{MT+n}, 1.0, v{MT+n}"]
    for n in range(4): o += [f"v_rcp_f32 v{MT+n}, v{MT+n}"]
    for n in range(4): o += [f"v_mul_f32 v{MC+n}, v{MC+n}, v{MT+n}"]
    for n in range(4): o += [f"v_cvt_pk_bf16_f32 v{MC+n}, v{MC+n}, v{MC+n}"]
    for n in range(4): o += [f"v_lshlrev_b32 v{MC+n}, 16, v{MC+n}"]
    for n in range(4):
        o += [W(vm=[("modw", n)])]
        for j in range(4):
            o += [f"v_lshlrev_b32 v{MT}, 16, v{MW+4*n+j}", f"v_and_b32 v{MT+1}, 0xffff0000, v{MW+4*n+j}"]
            if n == 0: o += [f"v_mul_f32 v{MA+2*j}, v{MC}, v{MT}", f"v_mul_f32 v{MA+2*j+1}, v{MC}, v{MT+1}"]
            else: o += [f"v_fmac_f32 v{MA+2*j}, v{MC+n}, v{MT}", f"v_fmac_f32 v{MA+2*j+1}, v{MC+n}, v{MT+1}"]
    for j in range(8): o += [f"v_add_f32_dpp v{MA+j}, v{MA+j}, v{MA+j} row_ror:8 row_mask:0xf bank_mask:0xf"]
    for j in range(0, 8, 2): o += [f"v_permlane16_swap_b32 v{MA+j}, v{MA+j+1}"]
    for j in range(0, 8, 2): o += [f"v_add_f32 v{MA+j}, v{MA+j}, v{MA+j+1}"]
    for j in (0, 4): o += [f"v_permlane32_swap_b32 v{MA+j}, v{MA+j+2}"]
    for j in (0, 4): o += [f"v_add_f32 v{MA+j}, v{MA+j}, v{MA+j+2}"]
    vL4, vL256, vONE = vT+4, vT+5, vT+6
    o += [f"""
    v_lshrrev_b32 v{MT}, 4, v0
    v_lshl_add_u32 v{MT}, v{c8}, 3, v{MT}
    v_lshlrev_b32 v{MT}, 2, v{MT}
    s_lshl_b32 s{sT0}, s{sW}, 8
    v_add_u32 v{MT}, s{sT0}, v{MT}
    """, LG(f"ds_write_b32 v{MT}, v{MA} offset:{MODRED}", "mr"), LG(f"ds_write_b32 v{MT}, v{MA+4} offset:{MODRED+16}", "mr"),
    f"v_lshlrev_b32 v{vL4}, 2, v0", f"v_lshlrev_b32 v{vL256}, 8, v0", f"v_mov_b32 v{vONE}, 1"]
    def Cfrag(kt, s): return ar((s*4+kt)*4, 4)
    def c_reads(i):
        return [LG(f"ds_read_b128 {Cfrag(kt, 2*i+sp)}, v{vCR+sp} offset:{(i % 3)*8192 + kt*2048}", ("cr", i)) for sp in range(2) for kt in range(4)]
    if ilv:
        rest = scc_groups(o[pro0:]); n_ = len(rest)
        for k in reversed(range(len(ilv))): rest.insert((k*n_)//len(ilv), ilv[k])
        o = o[:pro0] + rest
    o += st("P") + [W(vm=[("c", 0)])] + st("P") + [c_reads(0), W(vm=[("w", 0)], lg="mr")] + st("P") + ["s_barrier"] + st("P")

    QA, HR = 64, 192
    aK, aV = 128, 160
    def accK(dt, kt): return ACC + (dt*4+kt)*4
    def acc(dt, qi): return QA + (dt*4+qi)*4
    HE = "he" in OPT
    def Hf(s, qi): return vr((0 if HE and 4 <= s < 8 else HR) + ((s & 3)*4+qi)*4, 4, "a" if s & 4 else "v")
    frags = []
    for s2 in range(0, 16, 2):
        for dt in range(8):
            for s in (s2, s2+1):
                frags.append((s >> 1, page(s >> 1) + (dt >> 2)*8192 + (s & 1)*4096, dt & 3, [(accK(dt, kt), "W", Cfrag(kt, s), s == 0) for kt in range(4)]))
    for s2 in range(0, 16, 2):
        for t in range(4):
            for s in (s2, s2+1):
                frags.append((8 + (s >> 2), page(8 + (s >> 2)) + (s & 3)*4096, t, [(X + (t*4+kt)*4, Cfrag(kt, s), "W", s == 0) for kt in range(4)]))
    for hb in range(2):
        for s2 in range(0, 16, 2):
            for t in (2*hb, 2*hb+1):
                for s in (s2, s2+1):
                    frags.append((12 + (s >> 2), CBUF + (s & 3)*CW + (s >> 2)*4096, t, [(ACC + (t*4+kt)*4, Cfrag(kt, s), "W", s == 0) for kt in range(4)]))
    for s2 in range(0, 16, 2):
        for dt in range(8):
            for s in (s2, s2+1):
                frags.append((16 + (s >> 1), (s >> 1)*16384 + (dt >> 2)*8192 + (s & 1)*4096, dt & 3, [(acc(dt, qi), "W", Hf(s, qi), s == 0) for qi in range(4)]))
    def wreg(f): return ("v", WF + (f % 8)*4) if f < 256 else ("a", aK + (f % 16)*4)
    slots = []
    CH = "nochain" not in OPT
    for f in range(0, len(frags), 2):
        for n, k in ([(n, k) for n in range(4) for k in range(2)] if CH else [(n, k) for k in range(2) for n in range(4)]):
            fl, r = wreg(f + k); wf = vr(r, 4, fl); d, a_, b_, first = frags[f + k][3][n]
            sl = Slot(I(f"v_mfma_f32_16x16x32_bf16 {vr(d,4)}, {wf if a_ == 'W' else a_}, {wf if b_ == 'W' else b_}, {'0' if first else vr(d,4)}"))
            if n == 0 and k == 0:
                sl.pre.append(W(lg=[("wf", f+1)]))
                if f < 128 and f % 16 == 0: sl.pre.append(W(lg=[("cr", f//16)]))
                if f >= 256 and f % 16 == 0: sl.pre.append(W(vm=[("h", (f-256)//8 + 1)]))
            slots.append(sl)
    LA = 4
    wbase = [0]; bar = {}
    vTR2 = vCD
    def frag_reads(f):
        q, a, t, _ = frags[f]; g = []
        fl, r = wreg(f)
        if a >= 131072: return g, [LG(f"ds_read_b64_tr_b16 {vr(r+2*hh, 2, fl)}, v{vTR2+t} offset:{a - 131072 + hh*512}", ("wf", f)) for hh in range(2)]
        wb = a & 65536
        if wb != wbase[0]:
            g += [f"v_xor_b32 v{vTR+i}, 0x10000, v{vTR+i}" for i in range(4)]; wbase[0] = wb
        return g, [LG(f"ds_read_b64_tr_b16 {vr(r+2*hh, 2, fl)}, v{vTR+t} offset:{a - wb + hh*512}", ("wf", f)) for hh in range(2)]
    for f in range(LA):
        g, rd = frag_reads(f); o += g + rd
    valid = {0}
    VAL = {12: [12, 13, 14, 15], 16: [16, 17, 18, 19]}
    for f in range(LA, len(frags)):
        q = frags[f][0]; i = (f - LA)*4
        if q not in valid or (q > 16 and f % 16 == 0):
            qs = VAL.get(q, [q]); valid.update(qs); bar[q] = i - 1
            slots[i-1].alu += [W(vm=[("w", x) for x in qs]), I("s_barrier")]
        g, rd = frag_reads(f)
        slots[i-1].alu += flat(g)
        slots[i].mem.append(rd[0]); slots[i+1].mem.append(rd[1])
    def put(groups, b, step=4, where="mem"):
        for n, g in enumerate(groups): getattr(slots[b + step*n], where).append(g)
    def up(b, r):
        while (b & 3) != r: b += 1
        return b
    def lq(groups, b):
        put(groups, up(b, 3)); return up(b, 3) + 4*(len(groups) - 1)
    vused = set()
    def vq(groups, b, stride=1):
        k = up(b, 2) >> 2; last = b
        for g in groups:
            while k in vused: k += 1
            vused.add(k); slots[4*k + 2].mem.append(g); last = 4*k + 2; k += stride
        return last
    def sq(text, b, e): spread(slots, SEQ(scc_groups(text)), b, e)
    def before_bar(q, items): slots[bar[q]].alu[0:0] = flat(items)
    def pre(items, groups): groups[0] = flat(items) + groups[0]; return groups
    cend = {}
    for p in range(7):
        rd = c_reads(p+1); rd[0] = [W(vm=[("c", p+1)]), rd[0]]
        cend[p+1] = lq(rd, p*64 + int(OV('crd', 20)))
    MR = vT + 8
    vq([[W(lg="mr2"), f"v_add_f32 v{MR}, v{MR}, v{MR+1}", f"v_add_f32 v{MR+2}, v{MR+2}, v{MR+3}", f"v_add_f32 v{MR}, v{MR}, v{MR+2}",
         VM(f"buffer_store_dword v{MR}, v{vL4}, {WS}, s{sMST} offen sc1", "mst")]], 14)
    sq([f"v_and_b32 v{vTR2+i}, 0xffff, v{vTR+i}" for i in range(4)] + [f"v_or_b32 v{vTR2+i}, 0x20000, v{vTR2+i}" for i in range(4)], 520, 540)
    lq([LG(f"ds_read2st64_b32 v[{MR}:{MR+1}], v{vL4} offset0:192 offset1:193", "mr2"),
        LG(f"ds_read2st64_b32 v[{MR+2}:{MR+3}], v{vL4} offset0:194 offset1:195", "mr2")], 0)
    vq([[W(vm=["mst", "zero"]), VM(f"buffer_atomic_add v{vONE}, v{vL256}, s[{sDBG}:{sDBG+3}], s{sATO} offen sc1")]], 100)
    XR, F0, F1, TT, AV, BV, PP, MF = 64, 72, 80, 88, 92, 100, 108, 124
    sq([f"""
    s_sub_u32 s{sHST}, 15, s{sJ}
    s_cmp_lt_u32 s{sC}, 16
    s_cselect_b32 s{sHST}, s{sJ}, s{sHST}
    s_lshl_b32 s{sHST}, s{sHST}, 4
    s_and_b32 s{sMF}, s{sC}, 15
    s_add_u32 s{sHST}, s{sHST}, s{sMF}
    s_lshl_b32 s{sMF}, s{sHST}, 13
    s_lshl_b32 s{sSPIN}, s{sW}, 11
    s_add_u32 s{sMF}, s{sMF}, s{sSPIN}
    """], 20, 40)
    xe = vq([VM(f"buffer_load_dwordx4 {vr(XR+4*k,4)}, v{vL16}, s[{sX}:{sX+3}], s{sMF} offen offset:{1024*k}{' nt' if 'ntx' in OPT else ''}", "x") for k in range(2)], 104)

    g = []
    for j in range(4):
        for F, xr in ((F0, XR), (F1, XR+4)): g += [f"v_lshlrev_b32 v{F+2*j}, 16, v{xr+j}", f"v_and_b32 v{F+2*j+1}, 0xffff0000, v{xr+j}"]
    g[0] = [W(vm="x"), g[0]]
    def reduce2(sa, sb, post):
        r = []
        for m in ("quad_perm:[1,0,3,2]", "quad_perm:[2,3,0,1]", "row_ror:4", "row_ror:8"):
            r += [f"v_add_f32_dpp v{TT}, v{TT}, v{TT} {m} row_mask:0xf bank_mask:0xf", f"v_add_f32_dpp v{TT+1}, v{TT+1}, v{TT+1} {m} row_mask:0xf bank_mask:0xf"]
        r += [f"v_permlane16_swap_b32 v{TT}, v{TT+1}", f"v_add_f32 v{TT}, v{TT}, v{TT+1}", f"v_mov_b32 v{TT+1}, v{TT}",
              f"v_permlane32_swap_b32 v{TT}, v{TT+1}", f"v_add_f32 v{TT}, v{TT}, v{TT+1}"] + post
        return r + [f"v_readlane_b32 s{sa}, v{TT}, 0", f"v_readlane_b32 s{sb}, v{TT}, 16"]
    for j in range(1, 8):
        for k, F in enumerate((F0, F1)): g += [f"v_add_f32 v{TT+k}, v{F if j == 1 else TT+k}, v{F+j}"]
    g += reduce2(sMEAN0, sMEAN1, [f"v_mul_f32 v{TT}, {fbits(1/512)}, v{TT}"])
    for j in range(8):
        for F, sm in ((F0, sMEAN0), (F1, sMEAN1)): g += [f"v_subrev_f32 v{F+j}, s{sm}, v{F+j}"]
    for j in range(8):
        for k, F in enumerate((F0, F1)): g += [f"v_mul_f32 v{TT+k}, v{F}, v{F}" if j == 0 else f"v_fmac_f32 v{TT+k}, v{F+j}, v{F+j}"]
    g += reduce2(sRS0, sRS1, [f"v_mov_b32 v{TT+1}, {fbits(EPS)}", f"v_fmac_f32 v{TT+1}, {fbits(1/512)}, v{TT}", f"v_rsq_f32 v{TT}, v{TT+1}"])
    for j in range(8):
        for F, rs in ((F0, sRS0), (F1, sRS1)): g += [f"v_mul_f32 v{F+j}, s{rs}, v{F+j}"]
    assert xe < 200
    spread(slots, g, max(xe + 60, 200), 360)
    ld = f"buffer_load_dword v{MR}, v{vL4}, s[{sDBG}:{sDBG+3}], 0 offen sc1"
    vq([VM(ld, "poll1")], 226)
    e = 0
    if pfa and "pfpre" not in OPT:
        for k, g in enumerate(pfa): slots[2*k + 1].alu.append(g)
        e = 2*len(pfa) + 2
    CP = int(OV("cp", 0))
    sPC, sPW = sWVOFF + 0, sVST + 0
    def cp_c(i): return [[VM(f"buffer_load_dwordx4 v[28:31], v{vCD}, s[{sCKV}:{sCKV+3}], s0 offen offset:{i*128}", "pf")] + ([f"s_xor_b32 s0, s0, 8192"])for n in range(2)] if CP and i < 8 else []
    def cp_w(q): return [[VM(f"buffer_load_dwordx4 v[28:31], v{vPW}, s[{sWK}:{sWK+3}], s1 offen", "pf"), f"s_add_u32 s1, s1, {2*64*8192}"]] if CP > 1 and q < 8 else []
    if CP:
        def vx(groups, b): put(groups, up(b, 0))
        vx(cp_c(3) + cp_w(3), 0); e = vq(c_dma(2), 0); e = vq(w_dma(2), e)
        for i in range(3, 8):
            vx(cp_c(i+1) + (cp_w(i+2) if i & 1 else []), max(e, cend.get(i-3, 0) + 8) - int(OV("cpl", 0)))
            e = vq(pre([W(lg=[("cr", i-3)])], c_dma(i)), max(e, cend.get(i-3, 0) + 8)); assert e < (i-1)*64 + 10, (i, e)
            if i < 7: e = vq(w_dma(i), max(e, bar[i-2]))
    BU = int(OV("burst", 0))
    if BU:
        first = c_dma(2) + w_dma(2) + c_dma(3)
        for k, g in enumerate(first): slots[k*BU//2].mem.append(g)
        for k in range((len(first)*BU//2)//4 + 1): vused.add(k)
        e = len(first)*BU//2
    elif not CP: e = vq(c_dma(2), e); e = vq(w_dma(2), e)
    if not BU and not CP: e = vq(c_dma(3), e)
    if not CP: e = vq(w_dma(3), max(e, bar[1]))
    for i in range(4, 8 if not CP else 0):
        e = vq(pre([W(lg=[("cr", i-3)])], c_dma(i)), max(e, cend[i-3] + 8))
        assert e < (i-1)*64 - 10, (i, e)
        if i < 7: e = vq(w_dma(i), max(e, bar[i-2]))
    before_bar(5, check(ld, f"v_cmp_gt_u32 vcc, 4, v{MR}", sSPIN, "poll1"))
    sq([f"s_lshl_b32 s{sMF}, s{sW}, 10", f"s_add_u32 s{sMF}, s{sMF}, {WS_MODP}"], bar[5] - 8, bar[5] - 4)
    e = vq([[VM(f"buffer_load_dwordx4 {vr(PP+4*n,4)}, v{vL16}, {WS}, s{sMF} offen sc1", "pp"), f"s_add_u32 s{sMF}, s{sMF}, 12288"] for n in range(4)], bar[5] + 1)
    g = [[VM(f"buffer_load_dword v{MF+n}, v{vL4}, {WS}, s{sMF} offen sc1", "mf"), f"s_add_u32 s{sMF}, s{sMF}, 12288"] for n in range(4)]
    e = vq(pre([f"s_lshl_b32 s{sMF}, s{sC}, 10", f"s_lshl_b32 s{sSPIN}, s{sW}, 8", f"s_add_u32 s{sMF}, s{sMF}, s{sSPIN}",
                f"s_mul_i32 s{sSPIN}, s{sJ}, 12288", f"s_add_u32 s{sSPIN}, s{sSPIN}, s{sMF}", f"s_add_u32 s{sSPIN}, s{sSPIN}, {WS_MODF}",
                f"s_add_u32 s{sMF}, s{sMF}, {WS_MODP}", f"s_cmp_lt_u32 s{sC}, 12",
                f"s_cselect_b32 s{sMF}, s{sMF}, {OOB:#x}", f"s_cselect_b32 s{sSPIN}, s{sSPIN}, {OOB:#x}"], g), e)
    assert e < 372
    e = vq(w_dma(7), max(e, bar[5])); assert e < bar[7] - 60
    if PF and "nopv" not in OPT: e = vq(pre([W(lg=[("cr", 5)])], pf_w(sWV, vPW, 16384 + 6144, 0, sX, sX+1)), max(e, cend[5] + 8))
    e = vq(w_dma(8), max(e, bar[6]))
    if PF and "pq1" in OPT: e = vq(pf_w(sWQ, vPW, 16384 + 6144, 0, sX, sX+1), e + 16); assert e < bar[7]
    e = vq(w_dma(9), max(e, bar[7]))
    if PF and OV("pqs", None):
        sq([f"v_mov_b32 v{vT+12}, v{vPW}"], 300, 301); e_ = vq(pf_w(sWQ, vT+12, 0, 0, sX+2, sX+3, reg=vCD), int(OV("pqs", 0)), int(OV("pqd", 8))); assert e_ < 516
    elif PF and "pq1" not in OPT:
        sq([f"v_mov_b32 v{vT+12}, v{vPW}"], 400, 401); e = vq(pf_w(sWQ, vT+12, 16384 + 6144, 0, sX, sX+1), max(e, 470)); assert e < bar[8]
    e = e; e = vq(w_dma(10), max(e, bar[8] + 14))
    e = vq(w_dma(12), e + 8); e = vq(w_dma(11), max(e, bar[9] + 6)); e = vq(w_dma(13), e + 8); e = vq(w_dma(14), e + 12); e = vq(w_dma(15), e + 12)
    assert e < 690
    g = [[W(vm="pp"), f"v_add_f32 v{PP}, v{PP}, v{PP+4}"]] + [f"v_add_f32 v{PP+j}, v{PP+j}, v{PP+4+j}" for j in range(1, 4)]
    g += [f"v_add_f32 v{PP+8+j}, v{PP+8+j}, v{PP+12+j}" for j in range(4)] + [f"v_add_f32 v{PP+j}, v{PP+j}, v{PP+8+j}" for j in range(4)]
    g += rnd(PP, PP+1, PP+4) + rnd(PP+2, PP+3, PP+5) + [f"v_add_f32 v{PP+j}, s{sADD}, v{PP+j}" for j in range(4)]
    g += rnd(PP, PP+1, PP+4) + rnd(PP+2, PP+3, PP+5) + [f"v_mul_f32 v{PP+j}, {fbits(CSCALE)}, v{PP+j}" for j in range(4)]
    g += [f"s_lshl_b32 s{sMF}, s{sW}, 10", f"s_add_u32 s{sMF}, s{sMF}, {MODV}", f"v_add_u32 v{PP+4}, s{sMF}, v{vL16}", f"v_lshlrev_b32 v{TT}, 5, v0", f"v_add_u32 v{TT}, {MODV}, v{TT}"]
    g += [[W(vm="mf"), f"v_add_f32 v{MF}, v{MF}, v{MF+1}"], f"v_add_f32 v{MF+2}, v{MF+2}, v{MF+3}", f"v_add_f32 v{MF}, v{MF}, v{MF+2}",
          f"v_cvt_pk_bf16_f32 v{MF}, v{MF}, v{MF}", f"v_lshlrev_b32 v{vT+11}, 16, v{MF}"]
    spread(slots, g, 372, 424)
    lq([LG(f"ds_write_b128 v{PP+4}, {vr(PP,4)}", "mv")], 425)
    assert bar[7] > 427
    before_bar(7, [W(lg="mv")])
    put([LG(f"ds_read_b128 {vr(r,4)}, v{TT} offset:{off}", "ab") for r, off in ((BV, 0), (BV+4, 16), (AV, 2048), (AV+4, 2064))], bar[7] + 1, 2)
    g = []
    for j in range(8):
        for F in (F0, F1): g += [f"v_fma_f32 v{F+j}, v{F+j}, v{AV+j}, v{BV+j}"]
    g[0] = [W(lg="ab"), g[0]]
    for j in range(4):
        for F, xr in ((F0, XR), (F1, XR+4)): g += [f"v_cvt_pk_bf16_f32 v{xr+j}, v{F+2*j}, v{F+2*j+1}"]
    HA, HG, HD = vT+2, vT+3, vT+12
    g += [f"s_lshr_b32 s{sMF}, s{sW}, 1", f"s_mul_i32 s{sMF}, s{sMF}, {CW - 4160}", f"s_mul_i32 s{sADD}, s{sW}, 2080", f"s_add_u32 s{sMF}, s{sMF}, s{sADD}",
          f"s_add_u32 s{sMF}, s{sMF}, {HSTA}", f"v_add_u32 v{TT}, s{sMF}, v{vL16}"]
    g += [x.t for x in flat([f"""
    v_and_b32 v{HG}, 7, v0
    v_lshrrev_b32 v{TT+2}, 3, v0
    v_mul_u32_u24 v{HA}, 1040, v{HG}
    v_lshrrev_b32 v{TT+3}, 2, v{HG}
    v_mul_u32_u24 v{TT+3}, {CW - 4160}, v{TT+3}
    v_add_u32 v{HA}, v{HA}, v{TT+3}
    v_lshl_add_u32 v{HA}, v{TT+2}, 4, v{HA}
    s_lshl_b32 s{sMF}, s{sW}, 8
    s_add_u32 s{sMF}, s{sMF}, {HSTA}
    v_add_u32 v{HA}, s{sMF}, v{HA}
    v_lshlrev_b32 v{HG}, 4, v{HG}
    v_and_b32 v{TT+3}, 3, v{TT+2}
    v_lshl_add_u32 v{HG}, v{TT+3}, 8, v{HG}
    v_lshrrev_b32 v{TT+2}, 2, v{TT+2}
    v_lshl_add_u32 v{HG}, v{TT+2}, 10, v{HG}
    s_and_b32 s{sMF}, s{sHST}, 1
    s_lshr_b32 s{sHST}, s{sHST}, 1
    s_lshl_b32 s{sHST}, s{sHST}, 14
    s_lshl_b32 s{sMF}, s{sMF}, 7
    s_add_u32 s{sHST}, s{sHST}, s{sMF}
    s_lshl_b32 s{sMF}, s{sW}, 12
    s_add_u32 s{sHST}, s{sHST}, s{sMF}
    s_add_u32 s{sHST}, s{sHST}, {WS_H}
    """])]
    spread(slots, g, bar[7] + 12, 488)
    put([LG(f"ds_write_b128 v{TT}, {vr(XR+4*k,4)} offset:{1040*k}", "hw") for k in range(2)], 489, 2)
    assert bar[8] > 491
    before_bar(8, [W(lg="hw")])
    put([LG(f"ds_read_b128 {vr(XR+56+4*k,4)}, v{HA} offset:{128*k}", "hr") for k in range(2)], bar[8] + 1, 1)
    e = vq([VM(f"buffer_store_dword v{vT+11}, v{vL4}, {WS}, s{sSPIN} offen sc1", "hst")] +
           [[W(lg="hr"), VM(f"buffer_store_dwordx4 {vr(XR+56+4*k,4)}, v{HG}, {WS}, s{sHST} offen offset:{2048*k} sc1", "hst")] for k in range(2)], bar[8] + 1)
    assert e < 524
    HB_ = int(OV("hb", 10))
    before_bar(HB_, [W(vm="hst")])
    sq(flag_off(sMF, 0, True), bar[HB_] - 12, bar[HB_] - 11)
    vq([publish(vT+2, sMF)], bar[HB_] + 1)
    def pack(dst, qa, qb):
        return [f"v_cvt_pk_bf16_f32 v{dst}, v{qa}, v{qa+1}", f"v_cvt_pk_bf16_f32 v{dst+1}, v{qa+2}, v{qa+3}",
                f"v_cvt_pk_bf16_f32 v{dst+2}, v{qb}, v{qb+1}", f"v_cvt_pk_bf16_f32 v{dst+3}, v{qb+2}, v{qb+3}"]
    def store(src, sreg, off, tag):
        return [f"s_add_u32 s{sT0}, s{sreg}, {off & ~4095}", VM(f"buffer_store_dwordx4 {vr(src,4)}, v{vL16}, {WS}, s{sT0} offen offset:{off & 4095} sc1", tag)]
    def at23(e):
        while (e & 3) < 2: e += 1
        return e
    kl = [(s4, kt) for s4 in (2, 3, 0, 1) for kt in range(4)]
    for n, (s4, kt) in enumerate(kl):
        dst = accK({2: 4, 3: 6, 0: 5, 1: 7}[s4], kt)
        b = 514 + n*(22 if n < 2 else 12) + (20 if n >= 2 else 0)
        put(pack(dst, accK(2*s4, kt), accK(2*s4+1, kt)), b, 2, "alu")
        e = vq([store(dst, sKST, (kt >> 1)*8192 + ((kt & 1)*4 + s4)*1024, "kst")], 530 + int(OV("ksp", 21))*n)
        assert b + 6 < 530 + int(OV("ksp", 21))*n and b + 6 < 764 and e < 880
    sH = 32; sUS, sUL = sMF, sHST
    slots[815].alu += [I("s_barrier")]
    if "ct2" in OPT:
        slots[860].alu.append(flat([f"Lb0_{N}:"])); vq([code_part(f"Lb0_{N}", f"Lfin_{N}", 14, 32, vT+10)], 640)
    for q, b in ((16, 690), (17, bar[11] + 30), (18, bar[12]), (19, 815)): e = vq(w_dma(q), b + 1)
    sq(flag_off(sSPIN, 0, False) + [f"v_and_b32 v{vT+2}, 31, v0", f"v_lshlrev_b32 v{vT+2}, {FS}, v{vT+2}"], 780, 800)
    ld = f"buffer_load_dword v{vT+3}, v{vT+2}, {WS}, s{sSPIN} offen sc1"
    vq([VM(ld, "poll2")], max(e, 836))
    sq([f"""
    s_lshl_b32 s{sUS}, s{sJ}, 2
    s_sub_u32 s{sUL}, 60, s{sUS}
    s_add_u32 s{sUS}, s{sUS}, s{sW}
    s_add_u32 s{sUL}, s{sUL}, s{sW}
    s_lshl_b32 s{sH}, s{sUL}, 15
    s_add_u32 s{sH}, s{sH}, {WS_H}
    s_add_u32 s{sH+1}, s{sH}, 16384
    s_lshl_b32 s{sH+2}, s{sUS}, 15
    s_add_u32 s{sH+2}, s{sH+2}, {WS_H}
    s_add_u32 s{sH+3}, s{sH+2}, 16384
    """], 850, 876)
    slots[883].alu += check(ld, f"v_cmp_ne_u32 vcc, 1, v{vT+3}", sADD, "poll2") + [I("s_barrier")]
    def h_ld(s):
        g = []
        for qi in range(4):
            x = [VM(f"buffer_load_dwordx4 {Hf(s, qi)}, v{vL16}, {WS}, s{sH+qi} offen offset:{(s&3)*1024} sc1", ("h", s))]
            if (s & 3) == 3: x.append(f"s_add_u32 s{sH+qi}, s{sH+qi}, 4096")
            g.append(x)
        return g
    for n in range(8):
        t, uu = n >> 1, n & 1; qa = X + (t*4+2*uu)*4
        put(pack(qa, qa, qa+4), 780 + 10*n, 2, "alu")
        e = vq([store(qa, sVST, uu*8192 + t*1024, "vst")], int(OV("va0", 872)) + int(OV("vap", 19))*n)
        assert e < 1020
    e = vq(h_ld(0) + h_ld(1) + h_ld(2) + h_ld(3), 884)
    assert e < 990
    if HE: e = vq(h_ld(4) + h_ld(5) + h_ld(6) + h_ld(7), max(e, 936)); assert e < 1060
    for n in range(8):
        t, uu = n >> 1, n & 1; qa = ACC + (t*4+2*uu)*4
        put(pack(WF + 4*n, qa, qa+4), 1024 + 3*n, 1, "alu") if n < 4 else put(pack(WF + 4*n, qa, qa+4), 1024 + 12 + 3*(n-4), 1, "alu")
        e = vq([store(WF + 4*n, sVST, uu*8192 + (4+t)*1024, "vst")], int(OV("vs0", 1050)) + int(OV("vsp", 20))*n); vend = e
    def kvflag(dst, base, own):
        r = [f"s_lshl_b32 s{dst}, s{sHEAD}, 5", f"s_add_u32 s{dst}, s{dst}, {WS_FLAG + base}"]
        if own: r += [f"s_lshl_b32 s{sT0}, s{sJ}, 2", f"s_add_u32 s{dst}, s{dst}, s{sT0}"]
        return r + [f"s_cmp_eq_u32 s{sW}, 0", f"s_cselect_b32 s{dst}, s{dst}, {OOB:#x}"]
    before_bar(16, [W(vm="kst")])
    sq(kvflag(sSPIN, KF, True), bar[16] - 12, bar[16] - 11)
    vq([publish(vT+2, sSPIN)], bar[16] + 1)
    for p in (0, 4, 8, 12): slots[p*64].alu += st()
    for p in range(15): slots[p*64].alu += st("A")
    for p in range(9, 24): slots[p*64].alu += st("B")
    B0 = 1024
    slots[B0].alu += st()
    sK, sCT = 12, 36; sMK = [24, 26, 32, 34]
    sKO, sCNT, sODW, sFL = 78, 86, 87, 90
    vKB, vVB, ONES, LS, PB, CB, TMP = 2, 3, 12, 16, 32, 192, 224
    sq([f"""
    s_lshl_b32 s{sKO}, s{sHEAD}, 20
    s_add_u32 s{sK}, s{sWS}, s{sKO}
    s_addc_u32 s{sK+1}, s{sWS+1}, 0
    s_sub_u32 s{sK+2}, 16, s{sJ}
    s_lshl_b32 s{sK+2}, s{sK+2}, 16
    s_mov_b32 s{sK+3}, 0x20000
    s_add_u32 s{sKO}, s{sM0K}, {4*32768}
    """], bar[20] + 1, bar[20] + 12)
    vF = LS
    sq(kvflag(sFL, KF, False) + [f"v_and_b32 v{vF}, 7, v0", f"v_lshlrev_b32 v{vF}, 2, v{vF}"], bar[19] - 20, bar[19] - 4)
    ld = f"buffer_load_dword v{vF+1}, v{vF}, {WS}, s{sFL} offen sc1"
    e = vq([VM(ld, "poll3")], bar[19]); assert e < bar[20] - 20
    before_bar(20, check(ld, f"v_cmp_ne_u32 vcc, 1, v{vF+1}", sCNT, "poll3"))
    VB = int(OV("vb", 21)); assert vend < bar[VB] - 20 and vend < bar[20] + 100
    before_bar(VB, [W(vm="vst")])
    sq(kvflag(sFL, VF, True), bar[VB] - 12, bar[VB] - 11)
    e = vq([publish(vF+2, sFL)], bar[VB] + 1)
    sq(kvflag(sFL, VF, False), e + 4, e + 12)
    vq([VM(ld, "poll4")], bar[23] + 1)
    LEAD = int(OV("lead", 120)); LEADH = int(OV("leadh", LEAD)); e = B0
    for s in range(8 if HE else 4, 16, 2):
        q = 16 + s//2
        if q >= 20: e = vq(w_dma(q), max(e, bar[17] + 1, bar[q] - LEAD)); assert e < bar[q] - 50
        e = vq(h_ld(s) + h_ld(s+1), max(e, B0 + (s-6)*32 if s < 12 or not HE else 0, B0 + s*32 - LEADH)); assert e < B0 + s*32 - 50, (s, e)
    hend = e
    vcheck = check(ld, f"v_cmp_ne_u32 vcc, 1, v{vF+1}", sCNT, "poll4")
    def kv_dma(which, tag, pair=None):
        if pair is None: so = sKO; grp = [f"s_and_b32 m0, s{sKO}, 0x1ffff"]
        else: so = sT1; grp = [f"s_add_u32 s{sT1}, s{sM0K}, {pair*32768 + (which == 'V')*16384}", f"s_mov_b32 m0, s{sT1}"]
        g = [grp]
        for n in range(4): g.append([VM(f"buffer_load_dwordx4 v{vL16}, s[{sK}:{sK+3}], s{so} offen offset:{n*1024} {OV('kvf', 'sc1').replace('none', '').replace('+', ' ')} lds", tag)])
        if pair is None: return SEQ(g + [[f"s_sub_u32 s{sKO}, s{sKO}, 16384" if which == "K" else f"s_add_u32 s{sKO}, s{sKO}, 49152"]])
        return SEQ([g[0] + g[1]] + g[2:])
    e = vq(kv_dma("K", ("K", 0), 0) + kv_dma("K", ("K", 1), 1), max(hend, bar[21] + 1))
    sS1, sD1, sD3, sS2, sX0, sX1, sW2 = 80, 7, 81, 91, 85, 83, 16; sD2 = [20, 21, 22, 23]
    vU1, vU2, vUT = TMP+12, TMP+16, TMP+20
    g = srd(sW2, PW2, 1792*1024) + [f"""
    s_lshl_b32 s{sX0}, s2, 2
    s_add_u32 s{sX0}, s{sX0}, s{sW}
    s_and_b32 s{sX0}, s{sX0}, 511
    s_lshr_b32 s{sS1}, s{sX0}, 3
    s_and_b32 s{sX1}, s{sX0}, 7
    s_lshl_b32 s{sD1}, s{sX1}, 7
    s_add_u32 s{sD1}, s{sD1}, s{sS1}
    s_lshl_b32 s{sD1}, s{sD1}, 12
    s_add_u32 s{sD1}, s{sD1}, {WS_WOF}
    s_mul_i32 s{sD3}, s{sX1}, 56
    s_add_u32 s{sD3}, s{sD3}, s{sS1}
    s_lshl_b32 s{sD3}, s{sD3}, 12
    s_add_u32 s{sD3}, s{sD3}, {WS_W2F}
    s_lshl_b32 s{sS1}, s{sS1}, 15
    s_lshl_b32 s{sX1}, s{sX1}, 7
    s_add_u32 s{sS1}, s{sS1}, s{sX1}
    s_and_b32 s{sX1}, s{sX0}, 15
    s_mul_i32 s{sS2}, s{sX1}, {32*3584}
    s_mul_i32 s{sX1}, s{sX1}, 7168
    s_add_u32 s{sX1}, s{sX1}, {WS_W1F}
    s_cmp_lt_u32 s{sX0}, 448
    s_cselect_b32 s{sX1}, s{sX1}, {OOB:#x}
    s_cselect_b32 s{sD3}, s{sD3}, {OOB:#x}
    s_cselect_b32 s{sU2+2}, s{sU2+2}, 0
    s_cmp_ge_u32 s2, 128
    s_cselect_b32 s{sWO+2}, s{sWO+2}, 0
    s_lshr_b32 s{sX0}, s{sX0}, 4
    s_lshl_b32 s{sD2[0]}, s{sX0}, 7
    s_add_u32 s{sS2}, s{sS2}, s{sD2[0]}
    s_lshl_b32 s{sX0}, s{sX0}, 2
    """] + [f"""
    s_mul_i32 s{sODW}, s{sX0}, 9363
    s_lshr_b32 s{sODW}, s{sODW}, 16
    s_mul_i32 s{sODW}, s{sODW}, {114688-7168}
    s_lshl_b32 s{sD2[t]}, s{sX0}, 10
    s_add_u32 s{sD2[t]}, s{sD2[t]}, s{sODW}
    s_add_u32 s{sD2[t]}, s{sD2[t]}, s{sX1}
    s_add_u32 s{sX0}, s{sX0}, 1
    """ for t in range(4)] + [f"""
    v_lshrrev_b32 v{vUT}, 3, v0
    v_and_b32 v{vUT+1}, 7, v0
    v_and_b32 v{vUT+2}, 6, v{vUT}
    v_xor_b32 v{vUT+2}, v{vUT+2}, v{vUT+1}
    v_lshlrev_b32 v{vUT+2}, 4, v{vUT+2}
    v_lshl_add_u32 v{vU1}, v{vUT}, 10, v{vUT+2}
    v_add_u32 v{vU1+1}, 7168, v{vU1}
    v_add_u32 v{vU1+2}, {2*7168}, v{vU1}
    v_add_u32 v{vU1+3}, {3*7168}, v{vU1}
    v_mul_u32_u24 v{vU2}, 3584, v{vUT}
    v_add_u32 v{vU2}, v{vU2}, v{vUT+2}
    v_add_u32 v{vU2+1}, {8*3584-1024}, v{vU2}
    v_add_u32 v{vU2+2}, {2*(8*3584-1024)}, v{vU2}
    v_add_u32 v{vU2+3}, {3*(8*3584-1024)}, v{vU2}
    v_lshrrev_b32 v{vUT+1}, 4, v0
    v_bfe_u32 v{vUT+2}, v0, 2, 2
    v_lshl_add_u32 v{vUT+1}, v{vUT+1}, 2, v{vUT+2}
    v_bfe_u32 v{vUT+2}, v{vUT+1}, 1, 2
    v_lshlrev_b32 v{vUT+1}, 7, v{vUT+1}
    v_lshl_add_u32 v{vUT+1}, v{vUT+2}, 5, v{vUT+1}
    v_and_b32 v{vUT+2}, 3, v0
    v_lshl_add_u32 v{vUT+1}, v{vUT+2}, 3, v{vUT+1}
    s_lshl_b32 s{sX0}, s{sW}, 13
    s_add_u32 s{sX0}, s{sX0}, 131072
    v_add_u32 v{vUT}, s{sX0}, v{vUT+1}
    v_xor_b32 v{vUT+1}, 32, v{vUT}
    v_xor_b32 v{vUT+2}, 64, v{vUT}
    v_xor_b32 v{vUT+3}, 0x60, v{vUT}
    """]
    sq(g[:-1], B0 + 250, B0 + 380); sq(g[-1:], B0 + 388, B0 + 432)
    def side_dma(rnd_):
        r = []
        for u, (vo, sd, so) in enumerate((((vU1, sWO, f"s{sS1}, 0"), (vU1, sWO, f"s{sS1}, {64*32768}")), ((vU1, sW2, f"s{sS1}, 0"), (vU2, sU2, f"s{sS2}, 0")))[rnd_]):
            d = [[VM(f"buffer_load_dwordx4 v{vo+n}, s[{sd}:{sd+3}], s{sT0} offen offset:{n*1024}{NT1} lds", "ud")] for n in range(4)]
            d[0] = [f"s_add_u32 m0, s{sX0}, {u*4096}", f"s_add_u32 s{sT0}, {so}"] + d[0]
            r += SEQ(d)
        return r
    def side_reads(): return [LG(f"ds_read_b64_tr_b16 {ar(192 + u*16 + t*4 + 2*hh, 2)}, v{vUT+t} offset:{u*4096 + hh*2048}", "ur") for u in range(2) for t in range(4) for hh in range(2)]
    def side_stores(rnd_):
        st_ = lambda q, so, off: [VM(f"buffer_store_dwordx4 {ar(192 + 4*q, 4)}, v{vL16}, {WS}, s{so} offen offset:{off} sc1")]
        if rnd_ == 1: return [st_(t, sD3, t*1024) for t in range(4)] + [st_(4+t, sD2[t], 0) for t in range(4)]
        r = [st_(t & 3 | (t & 4), sD1, (t & 3)*1024) for t in range(8)]
        r[3] = r[3] + [f"s_add_u32 s{sD1}, s{sD1}, {64*4096}"]
        return r
    e = vq(side_dma(0), bar[23] + 8); assert e < B0 + 510
    init = [f"v_accvgpr_write_b32 a{r}, 0" for r in range(128)] + [f"v_mov_b32 v{ONES+r}, 0x3f803f80" for r in range(4)]
    assert not HE
    spread(slots, init, B0 + 40, bar[21] - 8)
    init = [x.t for x in flat([f"""
    s_lshl_b32 s{sODW}, s{sHEAD}, 12
    s_add_u32 s{sODW}, s{sODW}, {WS_CTX}
    s_lshl_b32 s{sCT}, s{sUL}, 18
    s_add_u32 s{sCT}, s{sCT}, s{sODW}
    s_add_u32 s{sCT+1}, s{sCT}, 131072
    s_lshl_b32 s{sCT+2}, s{sUS}, 18
    s_add_u32 s{sCT+2}, s{sCT+2}, s{sODW}
    s_add_u32 s{sCT+3}, s{sCT+2}, 131072
    v_lshrrev_b32 v{PB+4}, 4, v0
    v_lshlrev_b32 v{PB+4}, 2, v{PB+4}
    v_and_b32 v{PB+5}, 15, v0
    v_sub_u32 v{PB+5}, v{PB+5}, v{PB+4}
    v_cmp_le_i32 s[{sMK[0]}:{sMK[0]+1}], 0, v{PB+5}
    v_cmp_le_i32 s[{sMK[1]}:{sMK[1]+1}], 1, v{PB+5}
    v_cmp_le_i32 s[{sMK[2]}:{sMK[2]+1}], 2, v{PB+5}
    v_cmp_le_i32 s[{sMK[3]}:{sMK[3]+1}], 3, v{PB+5}
    v_mov_b32 v{vKB}, v{vL16}
    v_mov_b32 v{vVB}, v{vL16}
    """])] + [f"v_mov_b32 v{LS+r}, 0" for r in range(2, 16)]
    spread(slots, init, bar[23] - 30, bar[23] + 10)
    spread(slots, [f"v_mov_b32 v{CB+r}, 0" for r in range(32)] + [f"v_mov_b32 v{TMP+31}, 0xff800000"], B0 + 330, B0 + 400)
    def qpack(s4): return sum(([f"v_cvt_pk_bf16_f32 v{acc(2*s4, qi)+k}, v{acc(2*s4 + (k >> 1), qi) + 2*(k & 1)}, v{acc(2*s4 + (k >> 1), qi) + 2*(k & 1) + 1}"
                                for k in range(4)] for qi in range(4)), [])
    for s4 in range(3): spread(slots, qpack(s4), B0 + 448 + 16*s4 + 17, B0 + 448 + 16*s4 + 31 - (s4 == 2))
    if "vmap" in OPT: print("".join(("#" if k in vused else ".") + ("|" if k % 16 == 15 else "") for k in range(len(slots)//4)))
    if "nopack" not in OPT: pack_slots(slots)
    o += emit_slots(slots) + [f"Latt_{N}:"]
    o += st()
    from fatt import attention
    from ftail import tail
    env.update(locals())
    o = resolve_waits(flat(o + attention(env, "prologue")))
    o += attention(env, "main")
    if upto >= 3: o += tail(env, upto)
    return o + finish()
```

```python
from common import *
from flay import *

def attention(env, part):
    g_ = env
    (N, ts, st, sW, sK, sMK, sCT, sT0, sT1, sKO, sCNT, sODW, sUS, sUL, sFL, vL16, vKB, vVB, ONES, LS, PB, CB, TMP,
     aK, aV, acc, kv_dma, WS, upto) = [g_[k] for k in
     "N ts st sW sK sMK sCT sT0 sT1 sKO sCNT sODW sUS sUL sFL vL16 vKB vVB ONES LS PB CB TMP aK aV acc kv_dma WS upto".split()]
    FLAG = 131072; NINF = "0xff800000"; sG = 20
    def Q(qi, s4): return vr(acc(2*s4, qi), 4)
    def S(buf, qi, kt): return acc(2*(buf*2+kt)+1, qi)
    def Pq(buf, qi): return PB + (buf*4+qi)*4
    def C(qi, kt): return CB + (qi*2+kt)*4
    def O(t, qi): return ar((t*4+qi)*4, 4)
    def Kf(kt, ds): return ar(aK + (kt*4+ds)*4, 4)
    def Vf(t): return ar(aV + t*4, 4)
    GQ = {0: (0, 1), 1: (2, 3)}
    def mask(g):
        r = []
        for e in range(4):
            for qt in range(2):
                c = C(GQ[g][qt], qt) + e
                r.append(f"v_cndmask_b32 v{c}, v{TMP+31}, v{c}, s[{sMK[e]}:{sMK[e]+1}]")
            r.append(f"v_mov_b32 v{C(GQ[g][0], 1)+e}, v{TMP+31}")
        return r
    def k_reads(off): return [LG(f"ds_read_b128 {Kf(kt, ds)}, v{vKB} offset:{off + (kt*4+ds)*1024}", ("k", kt*4+ds)) for kt in range(2) for ds in range(4)]
    def v_reads(off): return [LG(f"ds_read_b128 {Vf(t)}, v{vVB} offset:{16384 + off + t*1024}", ("v", t)) for t in range(8)]
    def qk(buf, groups):
        r = []
        for kt in range(2):
            for g in groups:
                for qi in GQ[g]:
                    for ds in range(4):
                        d = vr(S(buf, qi, kt), 4)
                        r.append((I(f"v_mfma_f32_16x16x32_bf16 {d}, {Kf(kt, ds)}, {Q(qi, ds)}, {vr(C(qi, kt), 4) if ds == 0 else d}"), kt*4+ds))
        return r
    def pv(buf, groups):
        r = []
        for t in range(8):
            for g in groups:
                for qi in GQ[g]:
                    r.append((I(f"v_mfma_f32_16x16x32_bf16 {O(t, qi)}, {Vf(t)}, {vr(Pq(buf, qi), 4)}, {O(t, qi)}"), t))
        for g in groups:
            for qi in GQ[g]:
                r.append((I(f"v_mfma_f32_16x16x32_bf16 {vr(LS+4*qi, 4)}, {vr(ONES, 4)}, {vr(Pq(buf, qi), 4)}, {vr(LS+4*qi, 4)}"), None))
        return r
    def softmax(buf, groups):
        ex = []; cv = []
        for g in groups:
            for qi in GQ[g]:
                for kt in range(2):
                    s0 = S(buf, qi, kt)
                    for h in range(2):
                        ex += [f"v_exp_f32 v{s0+2*h}, v{s0+2*h}", f"v_exp_f32 v{s0+2*h+1}, v{s0+2*h+1}"]
                        cv += [f"v_cvt_pk_bf16_f32 v{Pq(buf, qi)+2*kt+h}, v{s0+2*h}, v{s0+2*h+1}"]
        return ex, cv
    if part == "prologue":
        if "oldpro" not in env["opt"]:
            k1 = [LG(f"ds_read_b128 {Vf(f)}, v{vKB} offset:{8192 + f*1024}", ("k1", f)) for f in range(8)]
            o = env["vcheck"] + [W(vm=[("K", 0)]), "s_barrier", k_reads(0), k1, kv_dma("V", ("V", 0), 0)] + [f"v_mov_b32 v{LS+r}, 0" for r in range(2)]
            dm = sum((kv_dma(wh, (wh, p), p) for wh, p in (("K", 2), ("V", 1), ("K", 3), ("V", 2))), [])
            o += env["qpack"](3) + [f"s_cmp_lg_u32 s{sUS}, 0", f"s_cbranch_scc1 Lp0_{N}", mask(1), f"Lp0_{N}:", "s_nop 1", W(lg=[("k", 7)])]
            def q1(g): return [I(m.t.replace(Kf(f >> 2, f & 3), Vf(f), 1)) for m, f in qk(1, (g,))]
            sl = [Slot(m) for m in [m for m, _ in qk(0, (0,))] + [m for m, _ in qk(0, (1,))] + q1(0) + q1(1)]
            def mx(g):
                r = []; Q2 = GQ[g]
                for k in range(4):
                    for qi in Q2:
                        a, b, t = S(0, qi, 0), S(0, qi, 1), TMP + qi
                        r.append((f"v_max3_f32 v{t}, v{a}, v{a+1}, v{a+2}", f"v_max3_f32 v{t}, v{t}, v{a+3}, v{b}",
                                  f"v_max3_f32 v{t}, v{t}, v{b+1}, v{b+2}", f"v_max_f32 v{t}, v{t}, v{b+3}")[k])
                for sw in ("v_permlane16_swap_b32", "v_permlane32_swap_b32"):
                    r += [f"v_mov_b32 v{TMP+4+qi}, v{TMP+qi}" for qi in Q2] + [f"{sw} v{TMP+qi}, v{TMP+4+qi}" for qi in Q2]
                    r += [f"v_max_f32 v{TMP+qi}, v{TMP+qi}, v{TMP+4+qi}" for qi in Q2]
                return r + [f"v_sub_f32 v{C(qi, kt)+e}, v{C(qi, kt)+e}, v{TMP+qi}" for kt in range(2) for qi in Q2 for e in range(4)]
            sb = lambda g: [f"v_sub_f32 v{S(0, qi, kt)+e}, v{S(0, qi, kt)+e}, v{TMP+qi}" for qi in GQ[g] for kt in range(2) for e in range(4)]
            spread(sl, mx(0), 18, 32); spread(sl, mx(1), 34, 48)
            sl[32].pre.append(W(lg=[("k1", 7)]))
            sl[47].alu.append(flat([f"s_cmp_lg_u32 s{sUS}, 1", f"s_cbranch_scc1 Lp1_{N}", mask(1), f"Lp1_{N}:", "s_nop 1"]))
            for k in range(16): sl[1 + 3*k].mem.append(dm[k])
            sl[49].alu += flat([W(vm=[("K", 1), ("V", 0)]), "s_barrier", f"v_add_u32 v{vKB}, 32768, v{vL16}"])
            for k, r in enumerate(k_reads(0)): sl[50 + k].mem.append(r)
            ex, cv = softmax(0, (0, 1)); sq_ = sb(0) + sb(1)
            for k in range(len(cv)): sq_ += ex[2*k:2*k+2] + ([cv[k-1]] if k else [])
            sq_ += [cv[-1]]
            spread(sl, sq_[:36], 48, 64)
            return o + emit_slots(sl) + sq_[36:] + st()
        o = env["vcheck"] + [W(vm=[("K", 0)]), "s_barrier", k_reads(0), kv_dma("V", ("V", 0), 0)]
        o += [f"v_mov_b32 v{LS+r}, 0" for r in range(2)]
        dm = sum((kv_dma(wh, (wh, p), p) for wh, p in (("K", 2), ("V", 1), ("K", 3), ("V", 2))), [])
        o += env["qpack"](3) + [f"s_cmp_lg_u32 s{sUS}, 0", f"s_cbranch_scc1 Lp0_{N}", mask(1), f"Lp0_{N}:", "s_nop 1"]
        q0 = [Slot(m) for m, _ in qk(0, (0, 1))]
        for k in range(8): q0[4*k + 1].mem.append(dm[k])
        o += [W(lg=[("k", 7)])] + emit_slots(q0)
        o += [k_reads(8192), "s_nop 3", f"s_cmp_lg_u32 s{sUS}, 1", f"s_cbranch_scc1 Lp1_{N}", mask(1), f"Lp1_{N}:", "s_nop 1"]
        q1 = [Slot(m) for m, _ in qk(1, (0, 1))]
        q1[0].pre.append(W(lg=[("k", 7)]))
        mx = []
        for qi in range(4):
            a, b, t = S(0, qi, 0), S(0, qi, 1), TMP + qi
            mx += [f"v_max3_f32 v{t}, v{a}, v{a+1}, v{a+2}", f"v_max3_f32 v{t}, v{t}, v{a+3}, v{b}",
                   f"v_max3_f32 v{t}, v{t}, v{b+1}, v{b+2}", f"v_max_f32 v{t}, v{t}, v{b+3}"]
        for sw in ("v_permlane16_swap_b32", "v_permlane32_swap_b32"):
            mx += [f"v_mov_b32 v{TMP+4+qi}, v{TMP+qi}" for qi in range(4)]
            mx += [f"{sw} v{TMP+qi}, v{TMP+4+qi}" for qi in range(4)]
            mx += [f"v_max_f32 v{TMP+qi}, v{TMP+qi}, v{TMP+4+qi}" for qi in range(4)]
        spread(q1, mx, 2, 32)
        for k in range(8): q1[4*k + 1].mem.append(dm[8 + k])
        o += emit_slots(q1)
        o += [W(vm=[("K", 1), ("V", 0)]), "s_barrier", f"v_add_u32 v{vKB}, 32768, v{vL16}", k_reads(0)]
        for qi in range(4):
            for kt in range(2): o += [f"v_sub_f32 v{S(0, qi, kt)+e}, v{S(0, qi, kt)+e}, v{TMP+qi}" for e in range(4)]
        ex, cv = softmax(0, (0, 1))
        for k in range(len(cv)): o += ex[2*k:2*k+2] + ([cv[k-1]] if k else [])
        o += [cv[-1]]
        for qi in range(4):
            for kt in range(2):
                o += [f"v_sub_f32 v{C(qi, kt)+e}, v{C(qi, kt)+e}, v{TMP+qi}" for e in range(4)]
                o += [f"v_sub_f32 v{S(1, qi, kt)+e}, v{S(1, qi, kt)+e}, v{TMP+qi}" for e in range(4)]
        return o + st()
    MODES = {"D": ((0, 1), (0, 1), (0, 1)), "T1": ((0,), (0, 1), (0, 1)), "T2": ((0,), (0,), (0, 1)),
             "S": ((0,), (0,), (0,)), "F1": ((), (0,), (0,)), "F2": ((), (), (0,))}
    def iteration(mode, par, last=False, tail=(), xlds=(), xvm=(), xseq=False, xalu=()):
        gq, gs, gp = MODES[mode]
        m1 = qk(par, gq); m2 = pv(par, gp)
        sl = [Slot(m) for m, _ in m1 + m2]; n1 = len(m1); n2 = len(m2); n = n1 + n2
        ex, cv = softmax(1 - par, gs)
        free = [8]*n; pre = []
        epos = [min(n - 2, 1 + (k*(n - 1))//len(ex)) for k in range(len(ex))] if ex else []
        for k, x in enumerate(ex): sl[epos[k]].alu.append(I(x)); free[epos[k]] -= 8
        def place(x, lo, hi=None, mem=False, after=None):
            hi = n - 1 if hi is None else min(hi, n - 1); lo = min(lo, hi)
            c = [i for i in range(lo, hi + 1) if free[i] >= 4]
            i = c[0] if c else max(range(lo, hi + 1), key=lambda k: (free[k], -k))
            (sl[i].mem if mem else sl[i].alu).append(x); free[i] -= 4
            return i
        first = lambda ms, f: next(i for i, (_, g) in enumerate(ms) if g == f)
        for k, x in enumerate(cv): place(I(x), epos[2*k+1] + 1)
        vrd = v_reads(par*8192)
        DE = "dlate" not in env["opt"] and n1 == 16 and not last
        if DE:
            dm = kv_dma("K" if par == 0 else "V", "d")
            i = place(dm[0], 0, 0)
            for k, g in enumerate(dm[1:5]): i = place(g, 2 + 4*k, 2 + 4*k, mem=True)
            place(dm[5], i, i + 4)
        if n1:
            i = 0
            for k, r in enumerate(vrd): i = place(r, max(i, k*(n1*int(env['OV']('vs', 5))//8)//8), n1 - 2, mem=True)
            place(W(lg=[("k", 7)]), max(0, first(m1, 4) - 3), first(m1, 4) - 1)
            place(W(lg=[("v", 3)]), n1 - 3, n1 - 1)
        else: pre += vrd + [W(lg=[("v", 3)])]
        wv = n1 + first(m2, 4) - 1
        if last:
            place(W(lg=[("v", 7)]), wv - 2, wv); i = 0
            for k, g in enumerate(xvm): i = place(flat(g), max(k*(n - 1)//len(xvm), i + 1 if k else 0), n - 1, mem=True)
        else:
            if par == 0:
                place(W(lg=[("v", 7)]), wv - 2, wv); b = n1; krd = k_reads(8192)
            else:
                b = n1 + max(1, n2*int(env['OV']('bo', 2))//18)
                while free[b] < 8 and b < wv: b += 1
                sl[b].alu += flat([W(lg=[("v", 7)], vm="*16"), "s_barrier"]); free[b] -= 8
                i = b
                for x in (f"v_mov_b32 v{vVB}, v{vKB}", f"v_add_u32 v{vKB}, 0x8000, v{vKB}", f"v_and_b32 v{vKB}, 0x1ffff, v{vKB}"):
                    i = place(I(x), max(n1 - 1, b - 4) if i == b else i, b - 1) if n1 else (pre.append(I(x)) or 0)
                b += 1; krd = k_reads(0)
            i = b
            for k, r in enumerate(krd): i = place(r, max(i, b + k*((n - b)*int(env['OV']('ks', 5))//8)//8), n - 2, mem=True)
            dm = kv_dma("K" if par == 0 else "V", "d")
            hi = (n//3 if xseq else n - 2) if par == 0 else b - 2
            i = 2
            for k, x in enumerate(xlds): i = place(x, max(i, 2 + k*(n - 8)//len(xlds)), n - 4, mem=True)
            if DE: pass
            elif hi < 8: pre += dm
            else:
                i = place(dm[0], 0, hi)
                for k, g in enumerate(dm[1:5]): i = place(g, max(i + 1, 2 + k*(hi - 2)//4), hi, mem=True)
                i = place(dm[5], i, hi)
            lo = i + 1 if xseq else 1
            for k, g in enumerate(xvm):
                t_ = max(lo + k*(n - 2 - lo)//len(xvm), i + 1 if k else 0)
                i = place(flat(g), t_, min(t_ + 2, n - 2), mem=True)
                free[i] -= 4*(len(flat(g)) - 1)
            place(W(lg=[("k", 3)]), n - 1)
        i = 0
        for g in xalu: i = place(g, i); free[i] -= 4*(len(g) - 1)
        for x in tail: place(I(x), n - 3)
        env.setdefault("over", []).append((mode, par, n, sum(-f for f in free if f < 0), sum(f for f in free if f > 0)))
        return pre + emit_slots(sl)
    def epilogue(g, tsets, psets, rc):
        r = [f"v_rcp_f32 v{rc+k}, v{LS+4*qi}" for k, qi in enumerate(GQ[g])]
        n = 0
        for k, qi in enumerate(GQ[g]):
            for s4 in range(4):
                t = tsets[n % len(tsets)]; p = psets[n % len(psets)]; n += 1
                for h in range(2): r += [f"v_accvgpr_read_b32 v{t+4*h+e}, a{((2*s4+h)*4+qi)*4+e}" for e in range(4)]
                r += [f"v_pk_mul_f32 {vr(t+2*e, 2)}, {vr(t+2*e, 2)}, {vr(rc, 2)} op_sel:[0,{k}] op_sel_hi:[1,{k}]" for e in range(4)]
                r += [f"v_cvt_pk_bf16_f32 v{p+e}, v{t+2*e}, v{t+2*e+1}" for e in range(4)]
                r += [VM(f"buffer_store_dwordx4 {vr(p, 4)}, v{vL16}, {WS}, s{sCT+qi} offen offset:{s4*1024} sc1", "ctx")]
        return r
    epi_short = lambda: epilogue(1, [CB+16], [PB+8, PB+12], CB+28)
    epi_long = lambda: epilogue(0, [TMP], [TMP+8, TMP+12], TMP+24) + ([] if "epiend" not in env["opt"] else epi_short())
    def code_touch(a, b):
        env["npc"] = env.get("npc", 0) + 1; l = f"Lpc{env['npc']}_{N}"
        return ["s_getpc_b64 s[40:41]", f"{l}:", f"s_add_u32 s40, s40, {a}-{l}", "s_addc_u32 s41, s41, 0", f"s_mov_b32 s42, {b}-{a}", "s_mov_b32 s43, 0x20000",
                f"s_lshl_b32 s{sT0}, s{sW}, 13", f"v_lshlrev_b32 v{TMP+10}, 7, v0", VM(f"buffer_load_dword v{TMP+11}, v{TMP+10}, s[40:43], s{sT0} offen", "code")]
    sWB, sCTL, sML, sROT = 82, 80, 81, 91
    ROT = env["ROT"] = not env["XL"] and "norot" not in env["opt"]
    CTL = f"s_lshr_b32 s{sCTL}, s2, 5" if env["XL"] else f"s_and_b32 s{sCTL}, s2, 1\ns_lshl_b32 s{sCTL}, s{sCTL}, 2\ns_bfe_u32 s{sT0}, s2, 0x20003\ns_add_u32 s{sCTL}, s{sCTL}, s{sT0}"
    def wreg(i, t):
        i %= 16
        if i < 8: return (192 + 16*i if i < 4 else 64 + 16*i) + 4*t
        return ((2*(i & 3) + (t >> 1))*4 + (2 if i < 12 else 0) + (t & 1))*4
    def w_step(i, lds=None):
        if lds is None: g = [[VM(f"buffer_load_dwordx4 {ar(wreg(i, t), 4)}, v{vL16}, {WS}, s{sT1} offen offset:{t*1024} sc1", ("cw", i))] for t in range(4)]
        else: g = [[VM(f"buffer_load_dwordx4 v{vL16}, {WS}, s{sT1} offen offset:{t*1024} sc1 lds", ("cw", i))] for t in range(4)]
        off = [f"s_add_u32 s{sT1}, s{sROT}, {i*4096}", f"s_and_b32 s{sT1}, s{sT1}, 0x1ffff", f"s_add_u32 s{sT1}, s{sT1}, s{sWB}"] if ROT else [f"s_add_u32 s{sT1}, s{sWB}, {i*4096}"]
        g[0] = ([] if lds is None else [f"s_add_u32 m0, {lds}"]) + off + g[0]
        return SEQ(g)
    EW = "noew" not in env["opt"]; XS = env["XS"] = "noxs" not in env["opt"] and upto >= 3
    def early_w(force=False): return [] if not (EW or force) else sum((w_step(i) for i in range(4)), []) + w_step(16, f"s{sML}, 0") + w_step(17, f"s{sML}, 4096") if upto >= 3 else []
    def early_ep(): return [[VM(f"buffer_load_dwordx2 {vr(CB+16+2*t, 2)}, v{TMP+12}, s[16:19], s79 offen offset:{t*32}")] for t in range(4)] + \
                           [[VM(f"buffer_load_dword v{CB+24+k}, v{TMP+13}, {WS}, s83 offen offset:{k*2048 if k < 2 else 0} sc1")] + ([f"s_add_u32 s83, s83, 4096"] if k == 1 else []) for k in range(3)]
    def ep_addr():
        assert env["XL"]
        return srd(16, env["pX"], 2*MB) + [f"""
        s_and_b32 s79, s2, 7
        s_lshl_b32 s79, s79, 2
        s_bfe_u32 s{sT0}, s2, 0x20003
        s_add_u32 s79, s79, s{sT0}
        s_lshl_b32 s79, s79, 2
        s_add_u32 s79, s79, s{sW}
        s_lshl_b32 s79, s79, 14
        s_lshl_b32 s{sT0}, s{sCTL}, 7
        s_add_u32 s79, s79, s{sT0}
        s_mul_i32 s83, s{env['sJ']}, 12288
        s_lshl_b32 s{sT0}, s{sCTL}, 8
        s_add_u32 s83, s83, s{sT0}
        s_add_u32 s83, s83, {WS_MODF + 2*2048}
        v_lshrrev_b32 v{TMP+13}, 4, v0
        v_and_b32 v{TMP+12}, 15, v0
        v_lshlrev_b32 v{TMP+12}, 10, v{TMP+12}
        v_lshl_add_u32 v{TMP+12}, v{TMP+13}, 3, v{TMP+12}
        v_lshlrev_b32 v{TMP+13}, 2, v0
        """]
    env["wreg"] = wreg; env["w_step"] = w_step
    sld = f"buffer_load_dwordx2 {vr(TMP+8, 2)}, v{TMP+10}, {WS}, s{sFL} offen sc1"
    TS = "nots" not in env["opt"].split()
    def tail_setup(): return [CTL, f"s_lshl_b32 s{sWB}, s{sCTL}, 19", f"s_lshl_b32 s{sT0}, s{sW}, 17", f"s_add_u32 s{sWB}, s{sWB}, s{sT0}", f"s_add_u32 s{sWB}, s{sWB}, {WS_WOF}",
                              f"s_lshl_b32 s{sML}, s{sW}, 13", f"s_add_u32 s{sML}, s{sML}, 131072"] + ([f"s_lshl_b32 s{sROT}, s{env['sJ']}, 14"] if ROT else []) + ep_addr()
    ts_ = lambda: SEQ(scc_groups(tail_setup())) if TS else ()
    KT = [("k", i) for i in range(8)]
    def region(items): return resolve_waits(flat(items), pre_lg=KT)
    def side_period(rnd):
        st_ = env["side_stores"](rnd); st_[0] = [W(lg="ur")] + st_[0]
        return region([iteration("D", 0, xlds=env["side_reads"]()), iteration("D", 1, xvm=st_)])
    def loop(mode, lbl, cuts=False):
        r = flat([f"{lbl}_go:", f"s_sub_u32 s{sCNT}, s{sCNT}, 1", f"s_cbranch_scc1 {lbl}_done", ".p2align 6", f"{lbl}:"])
        r += region([iteration(mode, 0), iteration(mode, 1, tail=[f"s_sub_u32 s{sCNT}, s{sCNT}, 1"])]) + flat([f"s_cbranch_scc0 {lbl}"])
        if cuts == "poll":
            r += flat(["s_sub_u32 s1, s1, 1", f"s_cbranch_scc1 {lbl}_done", sld, f"s_mov_b32 s{sCNT}, {1 if XS else 2}", f"s_branch {lbl}_go"])
        elif cuts:
            r += flat(["s_sub_u32 s1, s1, 1", f"s_cbranch_scc1 {lbl}_done", "s_cmp_eq_u32 s1, 0", f"s_cbranch_scc1 {lbl}_pub"]) + side_period(1)
            r += flat([f"s_mov_b32 s{sCNT}, 2", f"s_branch {lbl}_go", f"{lbl}_pub:",
                       f"s_lshl_b32 s{sFL}, s2, 2", f"s_add_u32 s{sFL}, s{sFL}, {WS_FLAG + env['SF']}", f"s_cmp_eq_u32 s{sW}, 0",
                       f"s_cselect_b32 s{sFL}, s{sFL}, {OOB:#x}", [x if isinstance(x, str) else x.t for x in env["publish"](TMP+8, sFL)],
                       f"s_mov_b32 s{sCNT}, s0", f"s_branch {lbl}_go"])
        return r + flat([f"{lbl}_done:"])
    o = flat([f"""
    s_waitcnt lgkmcnt(4)
    s_and_b32 s{sODW}, s{sW}, 1
    s_sub_u32 s{sCNT}, s{sUS}, 1
    s_ashr_i32 s{sCNT}, s{sCNT}, 1
    s_sub_u32 s{sCNT}, s{sCNT}, s{sODW}
    s_max_i32 s{sCNT}, s{sCNT}, 0
    s_mov_b32 s1, 0
    s_cmp_lt_u32 s2, 128
    s_cbranch_scc1 Ldd_{N}_go
    s_mov_b32 s1, 2
    s_sub_u32 s0, s{sCNT}, 7
    s_mov_b32 s{sCNT}, 2
    """]) + side_period(0) + region([iteration("D", 0, xvm=env["side_dma"](1), xseq=True), iteration("D", 1)]) + loop("D", f"Ldd_{N}", True)
    o += flat([f"s_bitcmp1_b32 s{sW}, 0", f"s_cbranch_scc1 Lodd1_{N}", f"s_cmp_eq_u32 s{sUS}, 0", f"s_cbranch_scc1 Lt2s_{N}", mask(1), "s_nop 1"])
    o += region([iteration("D", 0), iteration("T1", 1)])
    o += flat([f"Lt2s_{N}:"]) + region([iteration("T2", 0, xalu=ts_()), iteration("S", 1)])
    o += flat([f"s_branch Lss_entry_{N}", f"Lodd1_{N}:", f"s_cmp_eq_u32 s{sUS}, 1", f"s_cbranch_scc1 Lt12_{N}"])
    o += region([iteration("D", 0), mask(1), "s_nop 0", iteration("D", 1)])
    o += flat([f"Lt12_{N}:"]) + region([iteration("T1", 0), iteration("T2", 1, xalu=ts_())])
    o += flat([f"Lss_entry_{N}:", f"v_lshlrev_b32 v{TMP+10}, 3, v0", f"s_mov_b32 s{sFL}, {WS_FLAG + env['SF'] + 512}", sld] + (["s_nop 7"] + epi_short() if "epiend" not in env["opt"] else []) + [f"""
    s_sub_u32 s{sCNT}, s{sUL}, s{sUS}
    s_lshr_b32 s{sCNT}, s{sCNT}, 1
    s_sub_u32 s{sCNT}, s{sCNT}, 2
    s_cmp_ge_u32 s{sCNT}, 4
    s_cselect_b32 s1, 1, 0
    s_mov_b32 s0, s1
    s_mul_i32 s{sT0}, s1, {3 if XS else 2}
    s_sub_u32 s{sCNT}, s{sCNT}, s{sT0}
    """]) + loop("S", f"Lss_{N}", "poll")
    o += resolve_waits([VM("s_nop 0", "p5")] + [VM("s_nop 0")]*0 + env["check"](sld, [f"v_and_b32 v{TMP+8}, v{TMP+8}, v{TMP+9}", f"v_cmp_ne_u32 vcc, 1, v{TMP+8}"], sCNT, "*8", every=True))
    o += flat(([] if TS else tail_setup()) +
               (env["code_part"](f"Lfin_{N}", f"Lend_{N}", 8, 40, TMP+14, I) if "noct3" not in env["opt"] else []))
    fin_ep = early_ep
    if XS:
        X2 = "x1" not in env["opt"].split()
        xl = (early_ep() if X2 else []) + sum((w_step(k) for k in range(8, 12)), []); c = (0, 4, 11, 17, 23) if X2 else (0, 4, 8, 12, 16)
        o += flat(["s_cmp_eq_u32 s0, 0", f"s_cbranch_scc1 Lxt_{N}"])
        for k in (0, 2): o += region([iteration("S", 0, xvm=xl[c[k]:c[k+1]]), iteration("S", 1, xvm=xl[c[k+1]:c[k+2]])])
        o += flat([f"s_branch Lxs_{N}", f"Lxt_{N}:", early_ep() if X2 else [], f"Lxs_{N}:"])
        if X2: fin_ep = lambda: []
    o += flat([f"s_bitcmp1_b32 s{sW}, 0", f"s_cbranch_scc1 Lodd2_{N}", mask(0), "s_nop 1"])
    ew = early_w()
    o += region([iteration("S", 0, xvm=fin_ep() + ew[:(c0 := 4 if fin_ep() else 10)]), iteration("F1", 1, xvm=ew[c0:(c1 := 12 if fin_ep() else 16)])]) + region([iteration("F2", 0, last=True, xvm=ew[c1:])])
    o += flat([f"s_branch Lfin_{N}", f"Lodd2_{N}:"]) + region([iteration("S", 0, xvm=fin_ep() + (ew := early_w())[:(c0 := 4 if fin_ep() else 8)]), mask(0), "s_nop 0", iteration("S", 1, xvm=ew[c0:16])])
    o += region([iteration("F1", 0, last=True, xvm=ew[16:20]), iteration("F2", 1, last=True, xvm=ew[20:])])
    if "over" in env["opt"].split(): print(env["over"])
    o += flat([f"Lfin_{N}:", f"s_cmp_ge_u32 s{sW}, 2", f"s_cbranch_scc1 Lepi_{N}", f"s_waitcnt vmcnt({24 if upto >= 3 and EW else 0})", "s_barrier", f"Lepi_{N}:",
               f"s_waitcnt vmcnt({24 if upto >= 3 and EW else 0})"]) + flat(st())
    o += flat([f"s_mov_b32 s{sT0}, {fbits(2.0**90)}", f"s_mov_b64 s[{sG}:{sG+1}], 0", "s_nop 5"])
    for qi in range(4): o += flat([f"v_cmp_ngt_f32 vcc, s{sT0}, v{LS+4*qi}", f"s_or_b64 s[{sG}:{sG+1}], s[{sG}:{sG+1}], vcc"])
    o += flat([f"""
    s_cmp_lg_u64 s[{sG}:{sG+1}], 0
    s_cselect_b32 s{sFL}, 1, 0
    v_mov_b32 v{TMP}, s{sFL}
    s_and_b32 s{sFL}, s{sK+2}, 0x1ffff
    s_lshl_b32 s{sT0}, s{sW}, 12
    s_add_u32 s{sT0}, s{sT0}, s{sFL}
    v_mov_b32 v{TMP+1}, s{sT0}
    ds_write_b32 v{TMP+1}, v{TMP}
    """])
    def epi_mix():
        e_ = flat(epi_long()); w_ = sum((w_step(i) for i in range(4, 8)), []) if upto >= 3 else []
        NI = int(env["OV"]("ni", 8)); pos = [i for i, x in enumerate(e_) if x.vm is not None]
        for k in reversed(range(min(NI, len(w_)))):
            p_ = pos[k*len(pos)//NI] - (12 if (k*len(pos)) % NI == 0 else 4); e_[p_:p_] = flat(w_[k])
        return e_ + st("T") + ([] if EW else early_w(True)[:16]) + w_[NI:]
    o += resolve_waits(flat([f"""
    """, epi_mix(), W(vm="ctx"), [] if EW else early_w(True)[16:]]))
    o += flat([f"""
    v_mov_b32 v{TMP+1}, s{sFL}
    s_waitcnt lgkmcnt(0)
    s_barrier
    ds_read2st64_b32 v[{TMP+4}:{TMP+5}], v{TMP+1} offset0:0 offset1:16
    ds_read2st64_b32 v[{TMP+6}:{TMP+7}], v{TMP+1} offset0:32 offset1:48
    s_waitcnt lgkmcnt(0)
    v_or3_b32 v{TMP}, v{TMP+4}, v{TMP+5}, v{TMP+6}
    v_or_b32 v{TMP}, v{TMP}, v{TMP+7}
    v_readfirstlane_b32 s{sFL}, v{TMP}
    s_cmp_lg_u32 s{sFL}, 0
    s_cbranch_scc1 Lfallback_{N}
    Lnorm_{N}:
    """]) + flat(st("T"))
    MR = TMP + 16
    fb = [f"Lfallback_{N}:", "s_waitcnt vmcnt(0)", "s_mov_b32 s0, 0"] + [f"v_accvgpr_write_b32 a{r}, 0" for r in range(128)] + [f"v_mov_b32 v{LS+r}, 0" for r in range(16)]
    fb += [f"v_mov_b32 v{MR+qi}, {NINF}" for qi in range(4)]
    fb += [f"s_mov_b32 s{sCNT}, 0", f"s_lshr_b32 s{sODW}, s{sK+2}, 14", f"v_mov_b32 v{vKB}, v{vL16}", f"v_mov_b32 v{vVB}, v{vL16}", f"Lfb_{N}:", "s_barrier",
           f"s_lshr_b32 s{sKO}, s{sCNT}, 1", f"s_lshl_b32 s{sKO}, s{sKO}, 15", f"s_and_b32 s{sT0}, s{sCNT}, 1", f"s_lshl_b32 s{sT0}, s{sT0}, 13",
           f"s_add_u32 s{sKO}, s{sKO}, s{sT0}", f"s_lshl_b32 s{sT0}, s{sW}, 11", f"s_add_u32 s{sKO}, s{sKO}, s{sT0}", f"s_mov_b32 m0, s{sT0}", f"s_add_u32 s{sT0}, s{sT0}, 16384",
           f"buffer_load_dwordx4 v{vL16}, s[{sK}:{sK+3}], s{sKO} offen sc1 lds", f"buffer_load_dwordx4 v{vL16}, s[{sK}:{sK+3}], s{sKO} offen offset:1024 sc1 lds",
           f"s_mov_b32 m0, s{sT0}", f"s_add_u32 s{sKO}, s{sKO}, 16384",
           f"buffer_load_dwordx4 v{vL16}, s[{sK}:{sK+3}], s{sKO} offen sc1 lds", f"buffer_load_dwordx4 v{vL16}, s[{sK}:{sK+3}], s{sKO} offen offset:1024 sc1 lds",
           "s_waitcnt vmcnt(0)", "s_barrier"]
    fb += [x.t for x in k_reads(0) + v_reads(0)] + ["s_waitcnt lgkmcnt(0)"]
    for g, su in ((0, sUL), (1, sUS)):
        fb += [f"s_cmp_gt_u32 s{sCNT}, s{su}", f"s_cbranch_scc1 Lfbs{g}_{N}"]
        fb += [f"v_mov_b32 v{C(qi, kt)+e}, 0" for qi in GQ[g] for kt in range(2) for e in range(4)]
        fb += [f"s_cmp_lg_u32 s{sCNT}, s{su}", f"s_cbranch_scc1 Lfbm{g}_{N}", mask(g), f"Lfbm{g}_{N}:", "s_nop 1"]
        fb += [m for m, _ in qk(0, (g,))] + ["s_nop 7"]
        for qi in GQ[g]:
            a, b, t = S(0, qi, 0), S(0, qi, 1), TMP
            fb += [f"v_max3_f32 v{t}, v{a}, v{a+1}, v{a+2}", f"v_max3_f32 v{t}, v{t}, v{a+3}, v{b}",
                   f"v_max3_f32 v{t}, v{t}, v{b+1}, v{b+2}", f"v_max3_f32 v{t}, v{t}, v{b+3}, v{MR+qi}"]
            for sw in ("v_permlane16_swap_b32", "v_permlane32_swap_b32"):
                fb += [f"v_mov_b32 v{t+1}, v{t}", f"{sw} v{t}, v{t+1}", f"v_max_f32 v{t}, v{t}, v{t+1}"]
            fb += [f"v_sub_f32 v{t+1}, v{MR+qi}, v{t}", f"v_exp_f32 v{t+1}, v{t+1}", f"v_mov_b32 v{MR+qi}, v{t}"]
            fb += [f"v_sub_f32 v{S(0, qi, kt)+e}, v{S(0, qi, kt)+e}, v{t}" for kt in range(2) for e in range(4)]
            fb += [f"v_mul_f32 v{LS+4*qi+e}, v{t+1}, v{LS+4*qi+e}" for e in range(4)]
            for tt in range(8):
                a0 = (tt*4+qi)*4
                fb += [f"v_accvgpr_read_b32 v{t+4+e}, a{a0+e}" for e in range(4)]
                fb += [f"v_mul_f32 v{t+4+e}, v{t+1}, v{t+4+e}" for e in range(4)]
                fb += [f"v_accvgpr_write_b32 a{a0+e}, v{t+4+e}" for e in range(4)]
        ex, cv = softmax(0, (g,))
        fb += ex + cv + [m for m, _ in pv(0, (g,))] + ["s_nop 7", f"Lfbs{g}_{N}:"]
    fb += [f"s_add_u32 s{sCNT}, s{sCNT}, 1", f"s_cmp_lt_u32 s{sCNT}, s{sODW}", f"s_cbranch_scc1 Lfb_{N}", "s_waitcnt vmcnt(0)"] + (epi_short() if "epiend" not in env["opt"] else []) + epi_long()
    if upto >= 3: fb += [w_step(i) for i in range(4, 8)] + ep_addr() + early_ep()
    fb += ["s_waitcnt vmcnt(0)", "s_barrier", f"s_branch Lnorm_{N}"]
    env["fallback"] = flat(fb)
    return o
```

```python
from common import *
from flay import *

def attention(env, part):
    g_ = env
    (N, ts, st, sW, sK, sMK, sCT, sT0, sT1, sKO, sCNT, sODW, sUS, sUL, sFL, vL16, vKB, vVB, ONES, LS, PB, CB, TMP,
     aK, aV, acc, kv_dma, WS, upto) = [g_[k] for k in
     "N ts st sW sK sMK sCT sT0 sT1 sKO sCNT sODW sUS sUL sFL vL16 vKB vVB ONES LS PB CB TMP aK aV acc kv_dma WS upto".split()]
    FLAG = 131072; NINF = "0xff800000"; sG = 20
    def Q(qi, s4): return vr(acc(2*s4, qi), 4)
    def S(buf, qi, kt): return acc(2*(buf*2+kt)+1, qi)
    def Pq(buf, qi): return PB + (buf*4+qi)*4
    def C(qi, kt): return CB + (qi*2+kt)*4
    def O(t, qi): return ar((t*4+qi)*4, 4)
    def Kf(kt, ds): return ar(aK + (kt*4+ds)*4, 4)
    def Vf(t): return ar(aV + t*4, 4)
    GQ = {0: (0, 1), 1: (2, 3)}
    def mask(g):
        r = []
        for e in range(4):
            for qt in range(2):
                c = C(GQ[g][qt], qt) + e
                r.append(f"v_cndmask_b32 v{c}, v{TMP+31}, v{c}, s[{sMK[e]}:{sMK[e]+1}]")
            r.append(f"v_mov_b32 v{C(GQ[g][0], 1)+e}, v{TMP+31}")
        return r
    def k_reads(off): return [LG(f"ds_read_b128 {Kf(kt, ds)}, v{vKB} offset:{off + (kt*4+ds)*1024}", ("k", kt*4+ds)) for kt in range(2) for ds in range(4)]
    def v_reads(off): return [LG(f"ds_read_b128 {Vf(t)}, v{vVB} offset:{16384 + off + t*1024}", ("v", t)) for t in range(8)]
    def qk(buf, groups):
        r = []
        for kt in range(2):
            for g in groups:
                for qi in GQ[g]:
                    for ds in range(4):
                        d = vr(S(buf, qi, kt), 4)
                        r.append((I(f"v_mfma_f32_16x16x32_bf16 {d}, {Kf(kt, ds)}, {Q(qi, ds)}, {vr(C(qi, kt), 4) if ds == 0 else d}"), kt*4+ds))
        return r
    def pv(buf, groups):
        r = []
        for t in range(8):
            for g in groups:
                for qi in GQ[g]:
                    r.append((I(f"v_mfma_f32_16x16x32_bf16 {O(t, qi)}, {Vf(t)}, {vr(Pq(buf, qi), 4)}, {O(t, qi)}"), t))
        for g in groups:
            for qi in GQ[g]:
                r.append((I(f"v_mfma_f32_16x16x32_bf16 {vr(LS+4*qi, 4)}, {vr(ONES, 4)}, {vr(Pq(buf, qi), 4)}, {vr(LS+4*qi, 4)}"), None))
        return r
    def softmax(buf, groups):
        ex = []; cv = []
        for g in groups:
            for qi in GQ[g]:
                for kt in range(2):
                    s0 = S(buf, qi, kt)
                    for h in range(2):
                        ex += [f"v_exp_f32 v{s0+2*h}, v{s0+2*h}", f"v_exp_f32 v{s0+2*h+1}, v{s0+2*h+1}"]
                        cv += [f"v_cvt_pk_bf16_f32 v{Pq(buf, qi)+2*kt+h}, v{s0+2*h}, v{s0+2*h+1}"]
        return ex, cv
    if part == "prologue":
        if "oldpro" not in env["opt"]:
            k1 = [LG(f"ds_read_b128 {Vf(f)}, v{vKB} offset:{8192 + f*1024}", ("k1", f)) for f in range(8)]
            o = [k1] if env["KE"] else env["vcheck"] + [W(vm=[("K", 0)]), "s_barrier", k_reads(0), k1, kv_dma("V", ("V", 0), 0)]
            o += [f"v_mov_b32 v{LS+r}, 0" for r in range(2)]
            dm = sum((kv_dma(wh, (wh, p), p) for wh, p in (("K", 2), ("V", 1), ("K", 3), ("V", 2))[env["KE"]:]), [])
            o += env["qpack"](3) + [f"s_cmp_lg_u32 s{sUS}, 0", f"s_cbranch_scc1 Lp0_{N}", mask(1), f"Lp0_{N}:", "s_nop 1", W(lg=[("k", 7)])]
            def q1(g): return [I(m.t.replace(Kf(f >> 2, f & 3), Vf(f), 1)) for m, f in qk(1, (g,))]
            sl = [Slot(m) for m in [m for m, _ in qk(0, (0,))] + [m for m, _ in qk(0, (1,))] + q1(0) + q1(1)]
            def mx(g):
                r = []; Q2 = GQ[g]
                for k in range(4):
                    for qi in Q2:
                        a, b, t = S(0, qi, 0), S(0, qi, 1), TMP + qi
                        r.append((f"v_max3_f32 v{t}, v{a}, v{a+1}, v{a+2}", f"v_max3_f32 v{t}, v{t}, v{a+3}, v{b}",
                                  f"v_max3_f32 v{t}, v{t}, v{b+1}, v{b+2}", f"v_max_f32 v{t}, v{t}, v{b+3}")[k])
                for sw in ("v_permlane16_swap_b32", "v_permlane32_swap_b32"):
                    r += [f"v_mov_b32 v{TMP+4+qi}, v{TMP+qi}" for qi in Q2] + [f"{sw} v{TMP+qi}, v{TMP+4+qi}" for qi in Q2]
                    r += [f"v_max_f32 v{TMP+qi}, v{TMP+qi}, v{TMP+4+qi}" for qi in Q2]
                return r + [f"v_sub_f32 v{C(qi, kt)+e}, v{C(qi, kt)+e}, v{TMP+qi}" for kt in range(2) for qi in Q2 for e in range(4)]
            sb = lambda g: [f"v_sub_f32 v{S(0, qi, kt)+e}, v{S(0, qi, kt)+e}, v{TMP+qi}" for qi in GQ[g] for kt in range(2) for e in range(4)]
            spread(sl, mx(0), 18, 32); spread(sl, mx(1), 34, 48)
            sl[32].pre.append(W(lg=[("k1", 7)]))
            sl[47].alu.append(flat([f"s_cmp_lg_u32 s{sUS}, 1", f"s_cbranch_scc1 Lp1_{N}", mask(1), f"Lp1_{N}:", "s_nop 1"]))
            for k in range(len(dm)): sl[1 + (48//len(dm))*k].mem.append(dm[k])
            sl[49].alu += flat([W(vm=[("K", 1), ("V", 0)]), "s_barrier", f"v_add_u32 v{vKB}, 32768, v{vL16}"])
            for k, r in enumerate(k_reads(0)): sl[50 + k].mem.append(r)
            ex, cv = softmax(0, (0, 1)); sq_ = sb(0) + sb(1)
            for k in range(len(cv)): sq_ += ex[2*k:2*k+2] + ([cv[k-1]] if k else [])
            sq_ += [cv[-1]]
            spread(sl, sq_[:36], 48, 64)
            return o + emit_slots(sl) + sq_[36:] + st()
        o = env["vcheck"] + [W(vm=[("K", 0)]), "s_barrier", k_reads(0), kv_dma("V", ("V", 0), 0)]
        o += [f"v_mov_b32 v{LS+r}, 0" for r in range(2)]
        dm = sum((kv_dma(wh, (wh, p), p) for wh, p in (("K", 2), ("V", 1), ("K", 3), ("V", 2))), [])
        o += env["qpack"](3) + [f"s_cmp_lg_u32 s{sUS}, 0", f"s_cbranch_scc1 Lp0_{N}", mask(1), f"Lp0_{N}:", "s_nop 1"]
        q0 = [Slot(m) for m, _ in qk(0, (0, 1))]
        for k in range(8): q0[4*k + 1].mem.append(dm[k])
        o += [W(lg=[("k", 7)])] + emit_slots(q0)
        o += [k_reads(8192), "s_nop 3", f"s_cmp_lg_u32 s{sUS}, 1", f"s_cbranch_scc1 Lp1_{N}", mask(1), f"Lp1_{N}:", "s_nop 1"]
        q1 = [Slot(m) for m, _ in qk(1, (0, 1))]
        q1[0].pre.append(W(lg=[("k", 7)]))
        mx = []
        for qi in range(4):
            a, b, t = S(0, qi, 0), S(0, qi, 1), TMP + qi
            mx += [f"v_max3_f32 v{t}, v{a}, v{a+1}, v{a+2}", f"v_max3_f32 v{t}, v{t}, v{a+3}, v{b}",
                   f"v_max3_f32 v{t}, v{t}, v{b+1}, v{b+2}", f"v_max_f32 v{t}, v{t}, v{b+3}"]
        for sw in ("v_permlane16_swap_b32", "v_permlane32_swap_b32"):
            mx += [f"v_mov_b32 v{TMP+4+qi}, v{TMP+qi}" for qi in range(4)]
            mx += [f"{sw} v{TMP+qi}, v{TMP+4+qi}" for qi in range(4)]
            mx += [f"v_max_f32 v{TMP+qi}, v{TMP+qi}, v{TMP+4+qi}" for qi in range(4)]
        spread(q1, mx, 2, 32)
        for k in range(8): q1[4*k + 1].mem.append(dm[8 + k])
        o += emit_slots(q1)
        o += [W(vm=[("K", 1), ("V", 0)]), "s_barrier", f"v_add_u32 v{vKB}, 32768, v{vL16}", k_reads(0)]
        for qi in range(4):
            for kt in range(2): o += [f"v_sub_f32 v{S(0, qi, kt)+e}, v{S(0, qi, kt)+e}, v{TMP+qi}" for e in range(4)]
        ex, cv = softmax(0, (0, 1))
        for k in range(len(cv)): o += ex[2*k:2*k+2] + ([cv[k-1]] if k else [])
        o += [cv[-1]]
        for qi in range(4):
            for kt in range(2):
                o += [f"v_sub_f32 v{C(qi, kt)+e}, v{C(qi, kt)+e}, v{TMP+qi}" for e in range(4)]
                o += [f"v_sub_f32 v{S(1, qi, kt)+e}, v{S(1, qi, kt)+e}, v{TMP+qi}" for e in range(4)]
        return o + st()
    MODES = {"D": ((0, 1), (0, 1), (0, 1)), "T1": ((0,), (0, 1), (0, 1)), "T2": ((0,), (0,), (0, 1)),
             "S": ((0,), (0,), (0,)), "F1": ((), (0,), (0,)), "F2": ((), (), (0,))}
    def iteration(mode, par, last=False, tail=(), xlds=(), xvm=(), xseq=False, xalu=()):
        gq, gs, gp = MODES[mode]
        m1 = qk(par, gq); m2 = pv(par, gp)
        sl = [Slot(m) for m, _ in m1 + m2]; n1 = len(m1); n2 = len(m2); n = n1 + n2
        ex, cv = softmax(1 - par, gs)
        free = [8]*n; pre = []
        epos = [min(n - 2, 1 + (k*(n - 1))//len(ex)) for k in range(len(ex))] if ex else []
        for k, x in enumerate(ex): sl[epos[k]].alu.append(I(x)); free[epos[k]] -= 8
        def place(x, lo, hi=None, mem=False, after=None):
            hi = n - 1 if hi is None else min(hi, n - 1); lo = min(lo, hi)
            c = [i for i in range(lo, hi + 1) if free[i] >= 4]
            i = c[0] if c else max(range(lo, hi + 1), key=lambda k: (free[k], -k))
            (sl[i].mem if mem else sl[i].alu).append(x); free[i] -= 4
            return i
        first = lambda ms, f: next(i for i, (_, g) in enumerate(ms) if g == f)
        for k, x in enumerate(cv): place(I(x), epos[2*k+1] + 1)
        vrd = v_reads(par*8192)
        DE = "dlate" not in env["opt"] and n1 == 16 and not last
        if DE:
            dm = kv_dma("K" if par == 0 else "V", "d")
            i = place(dm[0], 0, 0)
            for k, g in enumerate(dm[1:5]): i = place(g, 2 + 4*k, 2 + 4*k, mem=True)
            place(dm[5], i, i + 4)
        if n1:
            i = 0
            for k, r in enumerate(vrd): i = place(r, max(i, k*(n1*int(env['OV']('vs', 5))//8)//8), n1 - 2, mem=True)
            place(W(lg=[("k", 7)]), max(0, first(m1, 4) - 3), first(m1, 4) - 1)
            place(W(lg=[("v", 3)]), n1 - 3, n1 - 1)
        else: pre += vrd + [W(lg=[("v", 3)])]
        wv = n1 + first(m2, 4) - 1
        if last:
            place(W(lg=[("v", 7)]), wv - 2, wv); i = 0
            for k, g in enumerate(xvm): i = place(flat(g), max(k*(n - 1)//len(xvm), i + 1 if k else 0), n - 1, mem=True)
        else:
            if par == 0:
                place(W(lg=[("v", 7)]), wv - 2, wv); b = n1; krd = k_reads(8192)
            else:
                b = n1 + max(1, n2*int(env['OV']('bo', 2))//18)
                while free[b] < 8 and b < wv: b += 1
                nb_ = "nobar" in env["opt"] and tail
                sl[b].alu += flat([W(lg=[("v", 7)], vm="*16"), "s_nop 0" if nb_ else "s_barrier"]); free[b] -= 8
                i = b
                for x in (f"v_mov_b32 v{vVB}, v{vKB}", f"v_add_u32 v{vKB}, 0x8000, v{vKB}", f"v_and_b32 v{vKB}, 0x1ffff, v{vKB}"):
                    i = place(I(x), max(n1 - 1, b - 4) if i == b else i, b - 1) if n1 else (pre.append(I(x)) or 0)
                b += 1; krd = k_reads(0)
            i = b
            for k, r in enumerate(krd): i = place(r, max(i, b + k*((n - b)*int(env['OV']('ks', 5))//8)//8), n - 2, mem=True)
            dm = kv_dma("K" if par == 0 else "V", "d")
            hi = (n//3 if xseq else n - 2) if par == 0 else b - 2
            i = 2
            for k, x in enumerate(xlds): i = place(x, max(i, 2 + k*(n - 8)//len(xlds)), n - 4, mem=True)
            if DE: pass
            elif hi < 8: pre += dm
            else:
                i = place(dm[0], 0, hi)
                for k, g in enumerate(dm[1:5]): i = place(g, max(i + 1, 2 + k*(hi - 2)//4), hi, mem=True)
                i = place(dm[5], i, hi)
            lo = i + 1 if xseq else 1
            for k, g in enumerate(xvm):
                t_ = max(lo + k*(n - 2 - lo)//len(xvm), i + 1 if k else 0)
                i = place(flat(g), t_, min(t_ + 2, n - 2), mem=True)
                free[i] -= 4*(len(flat(g)) - 1)
            place(W(lg=[("k", 3)]), n - 1)
        i = 0
        for g in xalu: i = place(g, i); free[i] -= 4*(len(g) - 1)
        for x in tail: place(I(x), n - 3)
        env.setdefault("over", []).append((mode, par, n, sum(-f for f in free if f < 0), sum(f for f in free if f > 0)))
        return pre + emit_slots(sl)
    def epilogue(g, tsets, psets, rc):
        r = [f"v_rcp_f32 v{rc+k}, v{LS+4*qi}" for k, qi in enumerate(GQ[g])]
        n = 0
        for k, qi in enumerate(GQ[g]):
            for s4 in range(4):
                t = tsets[n % len(tsets)]; p = psets[n % len(psets)]; n += 1
                for h in range(2): r += [f"v_accvgpr_read_b32 v{t+4*h+e}, a{((2*s4+h)*4+qi)*4+e}" for e in range(4)]
                r += [f"v_pk_mul_f32 {vr(t+2*e, 2)}, {vr(t+2*e, 2)}, {vr(rc, 2)} op_sel:[0,{k}] op_sel_hi:[1,{k}]" for e in range(4)]
                r += [f"v_cvt_pk_bf16_f32 v{p+e}, v{t+2*e}, v{t+2*e+1}" for e in range(4)]
                r += [VM(f"buffer_store_dwordx4 {vr(p, 4)}, v{vL16}, {WS}, s{sCT+qi} offen offset:{s4*1024} sc1", "ctx")]
        return r
    epi_short = lambda: epilogue(1, [CB+16], [PB+8, PB+12], CB+28)
    epi_long = lambda: epilogue(0, [TMP], [TMP+8, TMP+12], TMP+24) + ([] if "epiend" not in env["opt"] else epi_short())
    def code_touch(a, b):
        env["npc"] = env.get("npc", 0) + 1; l = f"Lpc{env['npc']}_{N}"
        return ["s_getpc_b64 s[40:41]", f"{l}:", f"s_add_u32 s40, s40, {a}-{l}", "s_addc_u32 s41, s41, 0", f"s_mov_b32 s42, {b}-{a}", "s_mov_b32 s43, 0x20000",
                f"s_lshl_b32 s{sT0}, s{sW}, 13", f"v_lshlrev_b32 v{TMP+10}, 7, v0", VM(f"buffer_load_dword v{TMP+11}, v{TMP+10}, s[40:43], s{sT0} offen", "code")]
    sWB, sCTL, sML, sROT = 82, 80, 81, 91
    ROT = env["ROT"] = not env["XL"] and "norot" not in env["opt"]
    CTL = f"s_lshr_b32 s{sCTL}, s2, 5" if env["XL"] else f"s_and_b32 s{sCTL}, s2, 1\ns_lshl_b32 s{sCTL}, s{sCTL}, 2\ns_bfe_u32 s{sT0}, s2, 0x20003\ns_add_u32 s{sCTL}, s{sCTL}, s{sT0}"
    def wreg(i, t):
        i %= 16
        if i < 8: return (192 + 16*i if i < 4 else 64 + 16*i) + 4*t
        return ((2*(i & 3) + (t >> 1))*4 + (2 if i < 12 else 0) + (t & 1))*4
    def w_step(i, lds=None):
        if lds is None: g = [[VM(f"buffer_load_dwordx4 {ar(wreg(i, t), 4)}, v{vL16}, {WS}, s{sT1} offen offset:{t*1024} sc1", ("cw", i))] for t in range(4)]
        else: g = [[VM(f"buffer_load_dwordx4 v{vL16}, {WS}, s{sT1} offen offset:{t*1024} sc1 lds", ("cw", i))] for t in range(4)]
        off = [f"s_add_u32 s{sT1}, s{sROT}, {i*4096}", f"s_and_b32 s{sT1}, s{sT1}, 0x1ffff", f"s_add_u32 s{sT1}, s{sT1}, s{sWB}"] if ROT else [f"s_add_u32 s{sT1}, s{sWB}, {i*4096}"]
        g[0] = ([] if lds is None else [f"s_add_u32 m0, {lds}"]) + off + g[0]
        return SEQ(g)
    EW = "noew" not in env["opt"]; XS = env["XS"] = "noxs" not in env["opt"] and upto >= 3
    def early_w(force=False): return [] if not (EW or force) else sum((w_step(i) for i in range(4)), []) + w_step(16, f"s{sML}, 0") + w_step(17, f"s{sML}, 4096") if upto >= 3 else []
    def early_ep(): return [[VM(f"buffer_load_dwordx2 {vr(CB+16+2*t, 2)}, v{TMP+12}, s[16:19], s79 offen offset:{t*32}")] for t in range(4)] + \
                           [[VM(f"buffer_load_dword v{CB+24+k}, v{TMP+13}, {WS}, s83 offen offset:{k*2048 if k < 2 else 0} sc1")] + ([f"s_add_u32 s83, s83, 4096"] if k == 1 else []) for k in range(3)]
    def ep_addr():
        assert env["XL"]
        return srd(16, env["pX"], 2*MB) + [f"""
        s_and_b32 s79, s2, 7
        s_lshl_b32 s79, s79, 2
        s_bfe_u32 s{sT0}, s2, 0x20003
        s_add_u32 s79, s79, s{sT0}
        s_lshl_b32 s79, s79, 2
        s_add_u32 s79, s79, s{sW}
        s_lshl_b32 s79, s79, 14
        s_lshl_b32 s{sT0}, s{sCTL}, 7
        s_add_u32 s79, s79, s{sT0}
        s_mul_i32 s83, s{env['sJ']}, 12288
        s_lshl_b32 s{sT0}, s{sCTL}, 8
        s_add_u32 s83, s83, s{sT0}
        s_add_u32 s83, s83, {WS_MODF + 2*2048}
        v_lshrrev_b32 v{TMP+13}, 4, v0
        v_and_b32 v{TMP+12}, 15, v0
        v_lshlrev_b32 v{TMP+12}, 10, v{TMP+12}
        v_lshl_add_u32 v{TMP+12}, v{TMP+13}, 3, v{TMP+12}
        v_lshlrev_b32 v{TMP+13}, 2, v0
        """]
    env["wreg"] = wreg; env["w_step"] = w_step
    sld = f"buffer_load_dwordx2 {vr(TMP+8, 2)}, v{TMP+10}, {WS}, s{sFL} offen sc1"
    TS = "nots" not in env["opt"].split()
    def tail_setup(): return [CTL, f"s_lshl_b32 s{sWB}, s{sCTL}, 19", f"s_lshl_b32 s{sT0}, s{sW}, 17", f"s_add_u32 s{sWB}, s{sWB}, s{sT0}", f"s_add_u32 s{sWB}, s{sWB}, {WS_WOF}",
                              f"s_lshl_b32 s{sML}, s{sW}, 13", f"s_add_u32 s{sML}, s{sML}, 131072"] + ([f"s_lshl_b32 s{sROT}, s{env['sJ']}, 14"] if ROT else []) + ep_addr()
    ts_ = lambda: SEQ(scc_groups(tail_setup())) if TS else ()
    KT = [("k", i) for i in range(8)]
    def region(items): return resolve_waits(flat(items), pre_lg=KT)
    def side_period(rnd):
        st_ = env["side_stores"](rnd); st_[0] = [W(lg="ur")] + st_[0]
        return region([iteration("D", 0, xlds=env["side_reads"]()), iteration("D", 1, xvm=st_)])
    def loop(mode, lbl, cuts=False):
        r = flat([f"{lbl}_go:", f"s_sub_u32 s{sCNT}, s{sCNT}, 1", f"s_cbranch_scc1 {lbl}_done", ".p2align 6", f"{lbl}:"])
        r += region([iteration(mode, 0), iteration(mode, 1, tail=[f"s_sub_u32 s{sCNT}, s{sCNT}, 1"])]) + flat([f"s_cbranch_scc0 {lbl}"])
        if cuts == "poll":
            r += flat(["s_sub_u32 s1, s1, 1", f"s_cbranch_scc1 {lbl}_done", sld, f"s_mov_b32 s{sCNT}, {1 if XS else 2}", f"s_branch {lbl}_go"])
        elif cuts:
            r += flat(["s_sub_u32 s1, s1, 1", f"s_cbranch_scc1 {lbl}_done", "s_cmp_eq_u32 s1, 0", f"s_cbranch_scc1 {lbl}_pub"]) + side_period(1)
            r += flat([f"s_mov_b32 s{sCNT}, 2", f"s_branch {lbl}_go", f"{lbl}_pub:",
                       f"s_lshl_b32 s{sFL}, s2, 2", f"s_add_u32 s{sFL}, s{sFL}, {WS_FLAG + env['SF']}", f"s_cmp_eq_u32 s{sW}, 0",
                       f"s_cselect_b32 s{sFL}, s{sFL}, {OOB:#x}", [x if isinstance(x, str) else x.t for x in env["publish"](TMP+8, sFL)],
                       f"s_mov_b32 s{sCNT}, s0", f"s_branch {lbl}_go"])
        return r + flat([f"{lbl}_done:"])
    o = flat([f"""
    s_waitcnt lgkmcnt(4)
    s_and_b32 s{sODW}, s{sW}, 1
    s_sub_u32 s{sCNT}, s{sUS}, 1
    s_ashr_i32 s{sCNT}, s{sCNT}, 1
    s_sub_u32 s{sCNT}, s{sCNT}, s{sODW}
    s_max_i32 s{sCNT}, s{sCNT}, 0
    s_mov_b32 s1, 0
    s_cmp_lt_u32 s2, 128
    s_cbranch_scc1 Ldd_{N}_go
    s_mov_b32 s1, 2
    s_sub_u32 s0, s{sCNT}, 7
    s_mov_b32 s{sCNT}, 2
    """]) + side_period(0) + region([iteration("D", 0, xvm=env["side_dma"](1), xseq=True), iteration("D", 1)]) + loop("D", f"Ldd_{N}", True)
    o += flat([f"s_bitcmp1_b32 s{sW}, 0", f"s_cbranch_scc1 Lodd1_{N}", f"s_cmp_eq_u32 s{sUS}, 0", f"s_cbranch_scc1 Lt2s_{N}", mask(1), "s_nop 1"])
    o += region([iteration("D", 0), iteration("T1", 1)])
    o += flat([f"Lt2s_{N}:"]) + region([iteration("T2", 0, xalu=ts_()), iteration("S", 1)])
    o += flat([f"s_branch Lss_entry_{N}", f"Lodd1_{N}:", f"s_cmp_eq_u32 s{sUS}, 1", f"s_cbranch_scc1 Lt12_{N}"])
    o += region([iteration("D", 0), mask(1), "s_nop 0", iteration("D", 1)])
    o += flat([f"Lt12_{N}:"]) + region([iteration("T1", 0), iteration("T2", 1, xalu=ts_())])
    o += flat([f"Lss_entry_{N}:", f"v_lshlrev_b32 v{TMP+10}, 3, v0", f"s_mov_b32 s{sFL}, {WS_FLAG + env['SF'] + 512}", sld] + (["s_nop 7"] + epi_short() if "epiend" not in env["opt"] else []) + [f"""
    s_sub_u32 s{sCNT}, s{sUL}, s{sUS}
    s_lshr_b32 s{sCNT}, s{sCNT}, 1
    s_sub_u32 s{sCNT}, s{sCNT}, 2
    s_cmp_ge_u32 s{sCNT}, 4
    s_cselect_b32 s1, 1, 0
    s_mov_b32 s0, s1
    s_mul_i32 s{sT0}, s1, {3 if XS else 2}
    s_sub_u32 s{sCNT}, s{sCNT}, s{sT0}
    """]) + loop("S", f"Lss_{N}", "poll")
    o += resolve_waits([VM("s_nop 0", "p5")] + [VM("s_nop 0")]*0 + env["check"](sld, [f"v_and_b32 v{TMP+8}, v{TMP+8}, v{TMP+9}", f"v_cmp_ne_u32 vcc, 1, v{TMP+8}"], sCNT, "*8", every=True))
    o += flat(([] if TS else tail_setup()) +
               (env["code_part"](f"Lfin_{N}", f"Lend_{N}", 8, 40, TMP+14, I) if "noct3" not in env["opt"] else []))
    fin_ep = early_ep
    if XS:
        X2 = "x1" not in env["opt"].split()
        xl = (early_ep() if X2 else []) + sum((w_step(k) for k in range(8, 12)), []); c = (0, 4, 11, 17, 23) if X2 else (0, 4, 8, 12, 16)
        o += flat(["s_cmp_eq_u32 s0, 0", f"s_cbranch_scc1 Lxt_{N}"])
        for k in (0, 2): o += region([iteration("S", 0, xvm=xl[c[k]:c[k+1]]), iteration("S", 1, xvm=xl[c[k+1]:c[k+2]])])
        o += flat([f"s_branch Lxs_{N}", f"Lxt_{N}:", early_ep() if X2 else [], f"Lxs_{N}:"])
        if X2: fin_ep = lambda: []
    o += flat([f"s_bitcmp1_b32 s{sW}, 0", f"s_cbranch_scc1 Lodd2_{N}", mask(0), "s_nop 1"])
    ew = early_w()
    o += region([iteration("S", 0, xvm=fin_ep() + ew[:(c0 := 4 if fin_ep() else 10)]), iteration("F1", 1, xvm=ew[c0:(c1 := 12 if fin_ep() else 16)])]) + region([iteration("F2", 0, last=True, xvm=ew[c1:])])
    o += flat([f"s_branch Lfin_{N}", f"Lodd2_{N}:"]) + region([iteration("S", 0, xvm=fin_ep() + (ew := early_w())[:(c0 := 4 if fin_ep() else 8)]), mask(0), "s_nop 0", iteration("S", 1, xvm=ew[c0:16])])
    o += region([iteration("F1", 0, last=True, xvm=ew[16:20]), iteration("F2", 1, last=True, xvm=ew[20:])])
    if "over" in env["opt"].split(): print(env["over"])
    o += flat([f"Lfin_{N}:", f"s_cmp_ge_u32 s{sW}, 2", f"s_cbranch_scc1 Lepi_{N}", f"s_waitcnt vmcnt({24 if upto >= 3 and EW else 0})", "s_barrier", f"Lepi_{N}:",
               f"s_waitcnt vmcnt({24 if upto >= 3 and EW else 0})"]) + flat(st())
    o += flat([f"s_mov_b32 s{sT0}, {fbits(2.0**90)}", f"s_mov_b64 s[{sG}:{sG+1}], 0", "s_nop 5"])
    for qi in range(4): o += flat([f"v_cmp_ngt_f32 vcc, s{sT0}, v{LS+4*qi}", f"s_or_b64 s[{sG}:{sG+1}], s[{sG}:{sG+1}], vcc"])
    o += flat([f"""
    s_cmp_lg_u64 s[{sG}:{sG+1}], 0
    s_cselect_b32 s{sFL}, 1, 0
    v_mov_b32 v{TMP}, s{sFL}
    s_and_b32 s{sFL}, s{sK+2}, 0x1ffff
    s_lshl_b32 s{sT0}, s{sW}, 12
    s_add_u32 s{sT0}, s{sT0}, s{sFL}
    v_mov_b32 v{TMP+1}, s{sT0}
    ds_write_b32 v{TMP+1}, v{TMP}
    """])
    def epi_mix():
        e_ = flat(epi_long()); w_ = sum((w_step(i) for i in range(4, 8)), []) if upto >= 3 else []
        NI = int(env["OV"]("ni", 8)); pos = [i for i, x in enumerate(e_) if x.vm is not None]
        for k in reversed(range(min(NI, len(w_)))):
            p_ = pos[k*len(pos)//NI] - (12 if (k*len(pos)) % NI == 0 else 4); e_[p_:p_] = flat(w_[k])
        return e_ + st("T") + ([] if EW else early_w(True)[:16]) + w_[NI:]
    o += resolve_waits(flat([f"""
    """, epi_mix(), W(vm="ctx"), [] if EW else early_w(True)[16:]]))
    o += flat([f"""
    v_mov_b32 v{TMP+1}, s{sFL}
    s_waitcnt lgkmcnt(0)
    s_barrier
    ds_read2st64_b32 v[{TMP+4}:{TMP+5}], v{TMP+1} offset0:0 offset1:16
    ds_read2st64_b32 v[{TMP+6}:{TMP+7}], v{TMP+1} offset0:32 offset1:48
    s_waitcnt lgkmcnt(0)
    v_or3_b32 v{TMP}, v{TMP+4}, v{TMP+5}, v{TMP+6}
    v_or_b32 v{TMP}, v{TMP}, v{TMP+7}
    v_readfirstlane_b32 s{sFL}, v{TMP}
    s_cmp_lg_u32 s{sFL}, 0
    s_cbranch_scc1 Lfallback_{N}
    Lnorm_{N}:
    """]) + flat(st("T"))
    MR = TMP + 16
    fb = [f"Lfallback_{N}:", "s_waitcnt vmcnt(0)", "s_mov_b32 s0, 0"] + [f"v_accvgpr_write_b32 a{r}, 0" for r in range(128)] + [f"v_mov_b32 v{LS+r}, 0" for r in range(16)]
    fb += [f"v_mov_b32 v{MR+qi}, {NINF}" for qi in range(4)]
    fb += [f"s_mov_b32 s{sCNT}, 0", f"s_lshr_b32 s{sODW}, s{sK+2}, 14", f"v_mov_b32 v{vKB}, v{vL16}", f"v_mov_b32 v{vVB}, v{vL16}", f"Lfb_{N}:", "s_barrier",
           f"s_lshr_b32 s{sKO}, s{sCNT}, 1", f"s_lshl_b32 s{sKO}, s{sKO}, 15", f"s_and_b32 s{sT0}, s{sCNT}, 1", f"s_lshl_b32 s{sT0}, s{sT0}, 13",
           f"s_add_u32 s{sKO}, s{sKO}, s{sT0}", f"s_lshl_b32 s{sT0}, s{sW}, 11", f"s_add_u32 s{sKO}, s{sKO}, s{sT0}", f"s_mov_b32 m0, s{sT0}", f"s_add_u32 s{sT0}, s{sT0}, 16384",
           f"buffer_load_dwordx4 v{vL16}, s[{sK}:{sK+3}], s{sKO} offen sc1 lds", f"buffer_load_dwordx4 v{vL16}, s[{sK}:{sK+3}], s{sKO} offen offset:1024 sc1 lds",
           f"s_mov_b32 m0, s{sT0}", f"s_add_u32 s{sKO}, s{sKO}, 16384",
           f"buffer_load_dwordx4 v{vL16}, s[{sK}:{sK+3}], s{sKO} offen sc1 lds", f"buffer_load_dwordx4 v{vL16}, s[{sK}:{sK+3}], s{sKO} offen offset:1024 sc1 lds",
           "s_waitcnt vmcnt(0)", "s_barrier"]
    fb += [x.t for x in k_reads(0) + v_reads(0)] + ["s_waitcnt lgkmcnt(0)"]
    for g, su in ((0, sUL), (1, sUS)):
        fb += [f"s_cmp_gt_u32 s{sCNT}, s{su}", f"s_cbranch_scc1 Lfbs{g}_{N}"]
        fb += [f"v_mov_b32 v{C(qi, kt)+e}, 0" for qi in GQ[g] for kt in range(2) for e in range(4)]
        fb += [f"s_cmp_lg_u32 s{sCNT}, s{su}", f"s_cbranch_scc1 Lfbm{g}_{N}", mask(g), f"Lfbm{g}_{N}:", "s_nop 1"]
        fb += [m for m, _ in qk(0, (g,))] + ["s_nop 7"]
        for qi in GQ[g]:
            a, b, t = S(0, qi, 0), S(0, qi, 1), TMP
            fb += [f"v_max3_f32 v{t}, v{a}, v{a+1}, v{a+2}", f"v_max3_f32 v{t}, v{t}, v{a+3}, v{b}",
                   f"v_max3_f32 v{t}, v{t}, v{b+1}, v{b+2}", f"v_max3_f32 v{t}, v{t}, v{b+3}, v{MR+qi}"]
            for sw in ("v_permlane16_swap_b32", "v_permlane32_swap_b32"):
                fb += [f"v_mov_b32 v{t+1}, v{t}", f"{sw} v{t}, v{t+1}", f"v_max_f32 v{t}, v{t}, v{t+1}"]
            fb += [f"v_sub_f32 v{t+1}, v{MR+qi}, v{t}", f"v_exp_f32 v{t+1}, v{t+1}", f"v_mov_b32 v{MR+qi}, v{t}"]
            fb += [f"v_sub_f32 v{S(0, qi, kt)+e}, v{S(0, qi, kt)+e}, v{t}" for kt in range(2) for e in range(4)]
            fb += [f"v_mul_f32 v{LS+4*qi+e}, v{t+1}, v{LS+4*qi+e}" for e in range(4)]
            for tt in range(8):
                a0 = (tt*4+qi)*4
                fb += [f"v_accvgpr_read_b32 v{t+4+e}, a{a0+e}" for e in range(4)]
                fb += [f"v_mul_f32 v{t+4+e}, v{t+1}, v{t+4+e}" for e in range(4)]
                fb += [f"v_accvgpr_write_b32 a{a0+e}, v{t+4+e}" for e in range(4)]
        ex, cv = softmax(0, (g,))
        fb += ex + cv + [m for m, _ in pv(0, (g,))] + ["s_nop 7", f"Lfbs{g}_{N}:"]
    fb += [f"s_add_u32 s{sCNT}, s{sCNT}, 1", f"s_cmp_lt_u32 s{sCNT}, s{sODW}", f"s_cbranch_scc1 Lfb_{N}", "s_waitcnt vmcnt(0)"] + (epi_short() if "epiend" not in env["opt"] else []) + epi_long()
    if upto >= 3: fb += [w_step(i) for i in range(4, 8)] + ep_addr() + early_ep()
    fb += ["s_waitcnt vmcnt(0)", "s_barrier", f"s_branch Lnorm_{N}"]
    env["fallback"] = flat(fb)
    return o
```

```python
from common import *
from flay import *

def fused(name, ts=False, opt="", upto=9):
    N = name
    NT = " nt" if "nt" in opt.split() else ""
    NT1 = " nt" if "nt1" in opt.split() or NT else ""
    NTT = " nt" if "ntt" in opt.split() or NT else ""
    sW, sHEAD, sJ, sC = 3, 4, 5, 6
    sWS = 8; WS = "s[8:11]"
    sT0, sT1 = 76, 77
    pX, pB1, pB2, pOUT = 92, 94, 96, 98
    vL16 = 1
    nstamp = [0]; env = {}
    SM = "A" if "stA" in opt else ("B" if "stB" in opt else ("P" if "stP" in opt else ("T" if "stT" in opt else "")))
    def st(kind=""):
        if not ts or nstamp[0] >= 15 or kind != SM: return []
        nstamp[0] += 1
        return [stamp(nstamp[0] - 1)]
    def finish():
        r = []
        if ts:
            r += ["s_waitcnt vmcnt(0)", stamp(15), "s_waitcnt lgkmcnt(0)", "v_mov_b32 v2, s100", "v_mov_b32 v3, s74",
                  "s_lshl_b32 s76, s2, 2", f"s_add_u32 s76, s76, s{sW}", "s_lshl_b32 s77, s76, 3", f"s_add_u32 s77, s77, {WS_TS}",
                  f"buffer_store_dwordx2 v[2:3], off, {WS}, s77", "s_lshl_b32 s77, s76, 6", f"s_add_u32 s77, s77, {WS_TS + 65536}"]
            for q in range(0, 16, 4):
                r += [f"v_mov_b32 v{4+j}, s{44+2*(q+j)}" for j in range(4)]
                r += [f"buffer_store_dwordx4 v[4:7], off, {WS}, s77 offset:{q*4}", "s_nop 1"]
        return flat(r + [f"Lend_{N}:", "s_endpgm"]) + env["fallback"] + flat([f"Lcode_end_{N}:", "s_endpgm"])
    def rnd(r0, r1, t): return [f"v_cvt_pk_bf16_f32 v{t}, v{r0}, v{r1}", f"v_lshlrev_b32 v{r0}, 16, v{t}", f"v_and_b32 v{r1}, 0xffff0000, v{t}"]
    HY = "hy" in opt.split()
    XL = "noxl" not in opt.split() and not HY
    FS = int(next((x[3:] for x in opt.split() if x.startswith("fs=")), 5))
    FB = lambda kind: WS_FLAG + 8192 + (kind + 1)*(256 << FS)
    def flag_off(dst, kind, own, line=None):
        if (XL and kind >= 2) or (HY and kind == 3):
            r = [f"s_and_b32 s{dst}, s2, 7", f"s_lshl_b32 s{dst}, s{dst}, {5 + FS}", f"s_add_u32 s{dst}, s{dst}, {FB(kind)}"]
            if own: r += [f"s_lshr_b32 s{sT0}, s2, 3", f"s_lshl_b32 s{sT0}, s{sT0}, {FS}", f"s_add_u32 s{dst}, s{dst}, s{sT0}"]
            return r + [f"s_cmp_eq_u32 s{sW}, 0", f"s_cselect_b32 s{dst}, s{dst}, {OOB:#x}"]
        r = [f"s_lshl_b32 s{dst}, s{sJ if line is None else line}, {5 + FS}", f"s_add_u32 s{dst}, s{dst}, {FB(kind)}"]
        if own: r += [f"s_lshl_b32 s{sT0}, s{sC}, {FS}", f"s_add_u32 s{dst}, s{dst}, s{sT0}"]
        return r + [f"s_cmp_eq_u32 s{sW}, 0", f"s_cselect_b32 s{dst}, s{dst}, {OOB:#x}"]
    def publish(vt, soff):
        return [f"v_min_u32 v{vt}, 1, v0", f"v_lshlrev_b32 v{vt}, 27, v{vt}", f"v_mov_b32 v{vt+1}, 1",
                VM(f"buffer_store_dword v{vt+1}, v{vt}, {WS}, s{soff} offen sc1", "flag")]
    nct = [0]
    def code_part(a, b, lines, sd, vt, emit=VM):
        nct[0] += 1; l = f"Lct{nct[0]}_{N}"
        return [f"s_getpc_b64 s[{sd}:{sd+1}]", f"{l}:", f"s_add_u32 s{sd}, s{sd}, {a}-{l}", f"s_addc_u32 s{sd+1}, s{sd+1}, 0", f"s_mov_b32 s{sd+2}, {b}-{a}",
                f"s_mov_b32 s{sd+3}, 0x20000", f"s_cmp_eq_u32 s{sW}, 0", f"s_cselect_b32 s{sd+2}, s{sd+2}, 0", f"s_lshr_b32 s{sT0}, s2, 3", f"s_mul_i32 s{sT0}, s{sT0}, {lines*128}",
                f"v_min_u32 v{vt}, {lines - 1}, v0", f"v_lshlrev_b32 v{vt}, 7, v{vt}", emit(f"buffer_load_dword v{vt+1}, v{vt}, s[{sd}:{sd+3}], s{sT0} offen")]
    nsp = [0]
    def check(load, test, scnt, tag, mask=None, every=False):
        nsp[0] += 1; k = f"{N}_{nsp[0]}"
        test = [test, "s_cmp_lg_u64 vcc, 0" if mask is None else f"s_and_b64 vcc, vcc, s[{mask}:{mask+1}]"]
        return flat([W(vm=tag), [] if every else [f"s_cmp_lg_u32 s{sW}, 0", f"s_cbranch_scc1 Lok{k}"], test, f"s_cbranch_scc0 Lok{k}", f"s_mov_b32 s{scnt}, 0x80000",
                     f"Lsp{k}:", f"s_sub_u32 s{scnt}, s{scnt}, 1", f"s_cbranch_scc1 Lok{k}", "s_sleep 1", load, It("s_waitcnt vmcnt(0)", k="cond"), test,
                     f"s_cbranch_scc1 Lsp{k}", f"Lok{k}:"])

    sCKV, sWK, sWV, sMOD, sCV, sX, sDBG, sCODE = 12, 16, 20, 24, 28, 32, 36, 40
    sWQ, sWO, sU2 = sMOD, sCV, sCODE
    sCOFF, sWKOFF, sWVOFF, sKST, sVST, sM0C, sM0K, sMST, sATO, sADD, sMF, sHST, sSPIN, sRS0 = range(78, 92)
    sRS1 = 7; sMEAN0, sMEAN1 = sMST, sATO
    vWD, vTR, vCD, vCR, vT = 2, 6, 10, 14, 16
    WF, X, ACC = 32, 64, 128
    RING, CBUF, CW = 0, 65536, 24576
    MODRED, MODV, HSTA = 49152, CBUF + 16384, CBUF + CW + 16384
    o = ["s_cmp_ge_u32 s2, 256", f"s_cbranch_scc1 Lend_{N}"] + load_args()
    if ts: o += ["s_memrealtime s[100:101]" if not CYC else "s_memtime s[100:101]"]
    o += [f"s_getpc_b64 s[{sCODE}:{sCODE+1}]", f"Lpc_{N}:", f"s_mov_b32 s{sCODE+2}, Lcode_end_{N}-Lpc_{N}", f"s_mov_b32 s{sCODE+3}, 0x20000",
          f"v_lshlrev_b32 v{vT}, 7, v0"]
    CPM = next((x[4:] for x in opt.split() if x.startswith("cpm=")), "part")
    if CPM == "all": o += [VM(f"buffer_load_dword v{vT+1}, v{vT}, s[{sCODE}:{sCODE+3}], 0 offen", "code")]
    elif CPM == "part":
        o += [f"s_lshr_b32 s{sT0}, s2, 3", f"s_mul_i32 s{sT0}, s{sT0}, 3072", f"v_cmp_gt_u32 vcc, 24, v0", f"v_mov_b32 v{vT+1}, {1 << 27}",
              f"v_cndmask_b32 v{vT}, v{vT+1}, v{vT}, vcc", VM(f"buffer_load_dword v{vT+1}, v{vT}, s[{sCODE}:{sCODE+3}], s{sT0} offen", "code")]
    o += [f"""
    v_lshrrev_b32 v{vT+2}, 6, v0
    v_and_b32 v0, 63, v0
    v_readfirstlane_b32 s{sW}, v{vT+2}
    v_lshlrev_b32 v{vL16}, 4, v0
    s_and_b32 s{sHEAD}, s2, 7
    s_lshl_b32 s{sHEAD}, s{sHEAD}, 2
    s_bfe_u32 s{sT0}, s2, 0x20003
    s_add_u32 s{sHEAD}, s{sHEAD}, s{sT0}
    s_lshr_b32 s{sJ}, s2, 5
    s_and_b32 s{sC}, s2, 31
    v_lshrrev_b32 v{vT+2}, 3, v0
    v_and_b32 v{vT+3}, 7, v0
    """]
    r8, c8 = vT+2, vT+3
    o += [f"""
    v_mul_u32_u24 v{vT+4}, 6144, v{r8}
    v_lshl_add_u32 v{vT+4}, v{c8}, 4, v{vT+4}
    v_lshlrev_b32 v{vT+5}, 1, v{r8}
    v_lshrrev_b32 v{vT+6}, 1, v{r8}
    v_xor_b32 v{vT+6}, v{vT+6}, v{c8}
    v_lshlrev_b32 v{vT+6}, 4, v{vT+6}
    v_lshl_add_u32 v{vCD}, v{r8}, 10, v{vT+6}
    v_xor_b32 v{vCD+1}, 64, v{vCD}
    v_add_u32 v{vCD+1}, {7*1024}, v{vCD+1}
    v_add_u32 v{vCD+2}, {14*1024}, v{vCD}
    v_add_u32 v{vCD+3}, {14*1024}, v{vCD+1}
    v_and_b32 v{vT+6}, 2, v{r8}
    v_xor_b32 v{vT+6}, v{vT+6}, v{c8}
    v_lshlrev_b32 v{vT+6}, 4, v{vT+6}
    v_lshl_add_u32 v{vWD}, v{r8}, 13, v{vT+6}
    v_xor_b32 v{vWD+1}, 64, v{vWD}
    v_add_u32 v{vWD+1}, {65536-1024}, v{vWD+1}
    v_add_u32 v{vWD+2}, {2*(65536-1024)}, v{vWD}
    v_add_u32 v{vWD+3}, {2*(65536-1024)}, v{vWD+1}
    s_and_b32 s{sT0}, s2, 3
    s_lshl_b32 s{sT0}, s{sT0}, 7
    s_lshl_b32 s{sT1}, s{sW}, 5
    s_add_u32 s{sMF}, s{sT0}, s{sT1}
    s_lshl_b32 s{sHST}, s{sMF}, 1
    s_mul_i32 s{sMF}, s{sMF}, 6144
    s_lshr_b32 s{sMST}, s2, 2
    s_lshl_b32 s{sMST}, s{sMST}, 7
    s_add_u32 s{sMF}, s{sMF}, s{sMST}
    s_lshl_b32 s{sCOFF}, s{sJ}, 18
    s_lshl_b32 s{sT0}, s{sW}, 16
    s_add_u32 s{sCOFF}, s{sCOFF}, s{sT0}
    s_mul_i32 s{sM0C}, s{sW}, {CW}
    s_add_u32 s{sM0C}, s{sM0C}, {CBUF}
    s_and_b32 s{sT0}, s{sW}, 1
    s_lshl_b32 s{sWKOFF}, s{sT0}, 18
    s_lshr_b32 s{sT1}, s{sW}, 1
    s_lshl_b32 s{sT1}, s{sT1}, 7
    s_add_u32 s{sWKOFF}, s{sWKOFF}, s{sT1}
    s_lshl_b32 s{sT1}, s{sHEAD}, 8
    s_add_u32 s{sWKOFF}, s{sWKOFF}, s{sT1}
    s_lshl_b32 s{sWVOFF}, s{sW}, 18
    s_add_u32 s{sWVOFF}, s{sWVOFF}, s{sT1}
    s_lshl_b32 s{sM0K}, s{sW}, 12
    s_waitcnt lgkmcnt(0)
    """]
    if SM == "P": o += ["s_memrealtime s[92:93]"]
    o += srd(sMOD, P("wmod"), 512*6144) + srd(sCV, P("c"), 1024) + ["s_cmp_lt_u32 s2, 192", f"s_cselect_b32 s{sMOD+2}, s{sMOD+2}, 0"]
    MW, MC, MA, MT = 64, 80, 84, 92
    for n in range(4): o += [VM(f"buffer_load_ushort v{MC+n}, v{vT+5}, s[{sCV}:{sCV+3}], s{sHST} offen offset:{16*n}", "modc")]
    for n in range(4):
        o += [VM(f"buffer_load_dwordx4 v[{MW+4*n}:{MW+4*n+3}], v{vT+4}, s[{sMOD}:{sMOD+3}], s{sMF} offen{NT1}", ("modw", n))]
        if n < 3: o += [f"s_add_u32 s{sMF}, s{sMF}, {8*6144}"]
    o += srd(sCKV, P("ckv"), 2*MB) + srd(sWK, P("wuk"), 4*MB)
    def c_dma(i):
        g = []
        for hh in range(2):
            grp = [f"s_add_u32 m0, s{sM0C}, {(i % 3)*8192 + hh*4096}", f"s_add_u32 s{sRS0}, s{sCOFF}, {i*128 + hh*32768}"]
            for n in range(4):
                grp.append(VM(f"buffer_load_dwordx4 v{vCD+n}, s[{sCKV}:{sCKV+3}], s{sRS0} offen offset:{n*1024}{' nt' if 'ntc' in opt.split() else ''} lds", ("c", i)))
                g.append(grp); grp = []
        return SEQ(g)
    def page(q): return RING + (q % 4) * 16384
    def w_dma(q):
        sTW = sRS1 if q <= 2 else sT1
        if q < 8: sd, off, m0 = sWK, f"s_add_u32 s{sTW}, s{sWKOFF}, {q*64*8192}", f"s{sM0K}, {page(q)}"
        elif q < 16:
            sd, off = sWV, f"s_add_u32 s{sTW}, s{sWVOFF}, {((q-8)&3)*128*8192 + ((q-8)>>2)*128}"
            m0 = f"s{sM0K}, {page(q)}" if q < 12 else f"s{sM0C}, {(q-12)*4096}"
        else: sd, off, m0 = sWQ, f"s_add_u32 s{sTW}, s{sWKOFF}, {(q-16)*64*8192}", f"s{sM0K}, {(q-16)*16384}"
        g = []; grp = [f"s_add_u32 m0, {m0}", off]
        for n in range(4):
            grp.append(VM(f"buffer_load_dwordx4 v{vWD+n}, s[{sd}:{sd+3}], s{sTW} offen offset:{n*1024}{' nt' if (q < 8 and 'ntk' in opt.split()) or (8 <= q < int(OV('ntv', 0))) else NT} lds", ("w", q)))
            g.append(grp); grp = []
        return SEQ(g)
    OPT = opt.split()
    def OV(k, d): return next((x.split("=")[1] for x in OPT if x.startswith(k + "=")), d)
    o += [c_dma(0), w_dma(0)] + (["s_memrealtime s[94:95]"] if SM == "P" else []) + srd(sWV, P("wuv"), 4*MB)
    OPT = opt.split()
    def OV(k, d): return next((x.split("=")[1] for x in OPT if x.startswith(k + "=")), d)
    vTD = vT+1
    vPC, vPW = 96, 97
    def pf_addr(vc, vw):
        return [f"v_lshrrev_b32 v{vw}, 4, v0", f"v_and_b32 v{vc}, 15, v0", f"v_lshlrev_b32 v{vc}, 4, v{vc}",
                f"v_lshl_add_u32 v{vw+1}, v{vw}, 13, v{vc}", f"v_lshl_add_u32 v{vc}, v{vw}, 10, v{vc}", f"v_mov_b32 v{vw}, v{vw+1}"]
    def pf_c(dummy):
        g = []; grp = [f"s_add_u32 m0, s{sM0C}, {dummy}", f"s_bfe_u32 s{sRS0}, s2, 0x20003", f"s_lshl_b32 s{sRS0}, s{sRS0}, 16", f"s_lshl_b32 s{sRS1}, s{sJ}, 18",
                       f"s_add_u32 s{sRS0}, s{sRS0}, s{sRS1}", f"s_lshl_b32 s{sRS1}, s{sW}, 14", f"s_add_u32 s{sRS0}, s{sRS0}, s{sRS1}"]
        for col in range(1, 4):
            for rg in range(4):
                grp += [f"s_add_u32 s{sRS1}, s{sRS0}, {rg*4096 + col*256}", VM(f"buffer_load_dwordx4 v{vPC}, s[{sCKV}:{sCKV+3}], s{sRS1} offen lds", "pf")]
                g.append(grp); grp = []
        return SEQ(g)
    def pf_w(sd, vw, dummy, first, sRS0=sRS0, sRS1=sRS1, reg=None):
        g = []; grp = [f"s_add_u32 m0, s{sM0C}, {dummy}", f"s_lshr_b32 s{sRS0}, s{sW}, 1", f"s_lshl_b32 s{sRS0}, s{sRS0}, 3", f"s_add_u32 s{sRS0}, s{sRS0}, s{sJ}",
                       f"s_lshl_b32 s{sRS0}, s{sRS0}, 1", f"s_and_b32 s{sRS1}, s{sW}, 1", f"s_add_u32 s{sRS0}, s{sRS0}, s{sRS1}", f"s_lshl_b32 s{sRS0}, s{sRS0}, 15",
                       f"s_lshl_b32 s{sRS1}, s{sHEAD}, 8", f"s_add_u32 s{sRS0}, s{sRS0}, s{sRS1}"]
        for q in range(first, 8, 2):
            if reg is not None and q == first: grp = grp[1:]
            grp += [f"s_add_u32 s{sRS1}, s{sRS0}, {q*64*8192}", VM(f"buffer_load_dwordx4 v{vw}, s[{sd}:{sd+3}], s{sRS1} offen{NTT} lds" if reg is None else
                                                                    f"buffer_load_dwordx4 {vr(reg, 4)}, v{vw}, s[{sd}:{sd+3}], s{sRS1} offen{NTT}", "pf")]
            g.append(grp); grp = []
        return SEQ(g)
    PF = "nopf" not in OPT
    o += pf_addr(vPC, vPW)
    pfa = (pf_w(sWK, vPW, 16384, 2) if "pfk" in OPT else []) + (pf_c(16384) if "pfc" in OPT else [])
    NPRE = int(OV("npre", 2))
    ilv = sum((c_dma(i) + w_dma(i) for i in range(1, NPRE + 1)), []) if "ilv" in OPT else []
    pro0 = len(o)
    o += ([] if ilv else [c_dma(1), w_dma(1)]) + ([pfa] if "pfpre" in OPT else []) + (["s_memrealtime s[96:97]"] if SM == "P" else []) + srd(sWS, P("ws"), WS_SIZE)
    KF, VF, SF = 0, 5120, 6144
    vZA, vZD = vT+14, vT+15
    o += [f"""
    v_lshlrev_b32 v{vZA}, {8 + FS}, v0
    s_lshl_b32 s{sT0}, s2, {FS}
    s_add_u32 s{sT0}, s{sT0}, 8192
    v_add_u32 v{vZA}, s{sT0}, v{vZA}
    s_lshl_b32 s{sT0}, s{sHEAD}, 5
    s_lshl_b32 s{sT1}, s{sJ}, 2
    s_add_u32 s{sT0}, s{sT0}, s{sT1}
    v_writelane_b32 v{vZA}, s{sT0}, 0
    s_add_u32 s{sT0}, s{sT0}, {VF}
    v_writelane_b32 v{vZA}, s{sT0}, 5
    s_lshl_b32 s{sT0}, s2, 2
    s_add_u32 s{sT0}, s{sT0}, {SF}
    v_writelane_b32 v{vZA}, s{sT0}, 6
    v_mov_b32 v{vZD}, {1 << 27}
    v_cmp_gt_u32 vcc, 7, v0
    v_cndmask_b32 v{vZA}, v{vZD}, v{vZA}, vcc
    v_mov_b32 v{vZD}, 0
    s_mov_b32 s{sSPIN}, {WS_FLAG}
    s_cmp_eq_u32 s{sW}, 0
    s_cselect_b32 s{sSPIN}, s{sSPIN}, {OOB:#x}
    """, VM(f"buffer_store_dword v{vZD}, v{vZA}, {WS}, s{sSPIN} offen sc1", "zero")]
    for i in (32768, 65536) if CPM == "all" else ():
        o += [f"s_mov_b32 s{sT0}, {i}", VM(f"buffer_load_dword v{vT+1}, v{vT}, s[{sCODE}:{sCODE+3}], s{sT0} offen", "code2")]
    o += srd(sX, P("x"), 2*MB) + srd(sDBG, P("dbg"), 256) + srd(sWQ, P("wq"), 4*MB) + srd(sWO, P("wo"), 4*MB)
    EARLY = "s_waitcnt lgkmcnt(0)\ns_mov_b32 s66, s92\ns_mov_b32 s68, s94\ns_mov_b32 s72, s96" if SM == "P" else ""
    PW2 = 100 if not ts else 74
    o += srd(sU2, P("w1"), 1792*1024) + [f"""
    s_mov_b64 s[{PW2}:{PW2+1}], s[{P('w2')}:{P('w2')+1}]
    {EARLY}
    s_mov_b64 s[{pX}:{pX+1}], s[{P('x')}:{P('x')+1}]
    s_mov_b64 s[{pB1}:{pB1+1}], s[{P('b1')}:{P('b1')+1}]
    s_mov_b64 s[{pB2}:{pB2+1}], s[{P('b2')}:{P('b2')+1}]
    s_mov_b64 s[{pOUT}:{pOUT+1}], s[{P('out')}:{P('out')+1}]
    v_lshrrev_b32 v{vT+6}, 4, v0
    v_bfe_u32 v{vT+7}, v0, 2, 2
    v_lshl_add_u32 v{vT+8}, v{vT+6}, 3, v{vT+7}
    v_lshlrev_b32 v{vT+8}, 7, v{vT+8}
    v_and_b32 v{vT+9}, 3, v0
    v_lshl_add_u32 v{vT+8}, v{vT+9}, 3, v{vT+8}
    v_and_b32 v{vT+9}, 1, v{vT+6}
    v_lshlrev_b32 v{vT+9}, 1, v{vT+9}
    v_lshrrev_b32 v{vT+10}, 1, v{vT+7}
    v_or_b32 v{vT+9}, v{vT+9}, v{vT+10}
    v_lshl_add_u32 v{vTR}, v{vT+9}, 5, v{vT+8}
    v_xor_b32 v{vTR+1}, 32, v{vTR}
    v_xor_b32 v{vTR+2}, 64, v{vTR}
    v_xor_b32 v{vTR+3}, 0x60, v{vTR}
    v_and_b32 v{vT+7}, 15, v0
    v_lshrrev_b32 v{vT+8}, 1, v{vT+7}
    v_xor_b32 v{vT+8}, v{vT+8}, v{vT+6}
    v_lshlrev_b32 v{vT+8}, 4, v{vT+8}
    v_lshl_add_u32 v{vT+8}, v{vT+7}, 7, v{vT+8}
    v_add_u32 v{vCR}, s{sM0C}, v{vT+8}
    v_xor_b32 v{vCR+1}, 64, v{vCR}
    s_lshl_b32 s{sKST}, s{sHEAD}, 20
    s_lshl_b32 s{sT0}, s{sJ}, 17
    s_add_u32 s{sKST}, s{sKST}, s{sT0}
    s_lshl_b32 s{sT0}, s{sW}, 15
    s_add_u32 s{sKST}, s{sKST}, s{sT0}
    s_add_u32 s{sVST}, s{sKST}, 16384
    s_and_b32 s{sT0}, s2, 3
    s_mul_i32 s{sT0}, s{sT0}, 12288
    s_lshl_b32 s{sMST}, s{sMST}, 1
    s_add_u32 s{sMST}, s{sMST}, s{sT0}
    s_add_u32 s{sMST}, s{sMST}, {WS_MODP}
    s_cmp_lt_u32 s2, 192
    s_cselect_b32 s{sT0}, s{sW}, 1
    s_cmp_eq_u32 s{sT0}, 0
    s_cselect_b32 s{sMST}, s{sMST}, {OOB:#x}
    s_and_b32 s{sATO}, s2, 63
    s_lshl_b32 s{sATO}, s{sATO}, 2
    s_cmp_eq_u32 s{sW}, 0
    s_cselect_b32 s{sATO}, s{sATO}, 256
    s_cmp_ge_u32 s{sW}, 2
    s_cselect_b32 s{sADD}, 1.0, 0
    """]
    o += st("P") + [W(vm="code" if SM == "P" else "modc")] + st("P") + [W(vm="modc")] + st("P")
    for n in range(4): o += [f"v_lshlrev_b32 v{MC+n}, 16, v{MC+n}"]
    for n in range(4): o += [f"v_mul_f32 v{MT+n}, {fbits(-1.4426950408889634)}, v{MC+n}"]
    for n in range(4): o += [f"v_exp_f32 v{MT+n}, v{MT+n}"]
    for n in range(4): o += [f"v_add_f32 v{MT+n}, 1.0, v{MT+n}"]
    for n in range(4): o += [f"v_rcp_f32 v{MT+n}, v{MT+n}"]
    for n in range(4): o += [f"v_mul_f32 v{MC+n}, v{MC+n}, v{MT+n}"]
    for n in range(4): o += [f"v_cvt_pk_bf16_f32 v{MC+n}, v{MC+n}, v{MC+n}"]
    for n in range(4): o += [f"v_lshlrev_b32 v{MC+n}, 16, v{MC+n}"]
    for n in range(4):
        o += [W(vm=[("modw", n)])]
        for j in range(4):
            o += [f"v_lshlrev_b32 v{MT}, 16, v{MW+4*n+j}", f"v_and_b32 v{MT+1}, 0xffff0000, v{MW+4*n+j}"]
            if n == 0: o += [f"v_mul_f32 v{MA+2*j}, v{MC}, v{MT}", f"v_mul_f32 v{MA+2*j+1}, v{MC}, v{MT+1}"]
            else: o += [f"v_fmac_f32 v{MA+2*j}, v{MC+n}, v{MT}", f"v_fmac_f32 v{MA+2*j+1}, v{MC+n}, v{MT+1}"]
    for j in range(8): o += [f"v_add_f32_dpp v{MA+j}, v{MA+j}, v{MA+j} row_ror:8 row_mask:0xf bank_mask:0xf"]
    for j in range(0, 8, 2): o += [f"v_permlane16_swap_b32 v{MA+j}, v{MA+j+1}"]
    for j in range(0, 8, 2): o += [f"v_add_f32 v{MA+j}, v{MA+j}, v{MA+j+1}"]
    for j in (0, 4): o += [f"v_permlane32_swap_b32 v{MA+j}, v{MA+j+2}"]
    for j in (0, 4): o += [f"v_add_f32 v{MA+j}, v{MA+j}, v{MA+j+2}"]
    vL4, vL256, vONE = vT+4, vT+5, vT+6
    o += [f"""
    v_lshrrev_b32 v{MT}, 4, v0
    v_lshl_add_u32 v{MT}, v{c8}, 3, v{MT}
    v_lshlrev_b32 v{MT}, 2, v{MT}
    s_lshl_b32 s{sT0}, s{sW}, 8
    v_add_u32 v{MT}, s{sT0}, v{MT}
    """, LG(f"ds_write_b32 v{MT}, v{MA} offset:{MODRED}", "mr"), LG(f"ds_write_b32 v{MT}, v{MA+4} offset:{MODRED+16}", "mr"),
    f"v_lshlrev_b32 v{vL4}, 2, v0", f"v_lshlrev_b32 v{vL256}, 8, v0", f"v_mov_b32 v{vONE}, 1"]
    def Cfrag(kt, s): return ar((s*4+kt)*4, 4)
    def c_reads(i):
        return [LG(f"ds_read_b128 {Cfrag(kt, 2*i+sp)}, v{vCR+sp} offset:{(i % 3)*8192 + kt*2048}", ("cr", i)) for sp in range(2) for kt in range(4)]
    if ilv:
        rest = scc_groups(o[pro0:]); n_ = len(rest)
        for k in reversed(range(len(ilv))): rest.insert((k*n_)//len(ilv), ilv[k])
        o = o[:pro0] + rest
    o += st("P") + [W(vm=[("c", 0)])] + st("P") + [c_reads(0), W(vm=[("w", 0)], lg="mr")] + st("P") + ["s_barrier"] + st("P")

    QA, HR = 64, 192
    aK, aV = 128, 160
    def accK(dt, kt): return ACC + (dt*4+kt)*4
    def acc(dt, qi): return QA + (dt*4+qi)*4
    HE = "he" in OPT
    def Hf(s, qi): return vr((0 if HE and 4 <= s < 8 else HR) + ((s & 3)*4+qi)*4, 4, "a" if s & 4 else "v")
    frags = []
    for s2 in range(0, 16, 2):
        for dt in range(8):
            for s in (s2, s2+1):
                frags.append((s >> 1, page(s >> 1) + (dt >> 2)*8192 + (s & 1)*4096, dt & 3, [(accK(dt, kt), "W", Cfrag(kt, s), s == 0) for kt in range(4)]))
    for s2 in range(0, 16, 2):
        for t in range(4):
            for s in (s2, s2+1):
                frags.append((8 + (s >> 2), page(8 + (s >> 2)) + (s & 3)*4096, t, [(X + (t*4+kt)*4, Cfrag(kt, s), "W", s == 0) for kt in range(4)]))
    for hb in range(2):
        for s2 in range(0, 16, 2):
            for t in (2*hb, 2*hb+1):
                for s in (s2, s2+1):
                    frags.append((12 + (s >> 2), CBUF + (s & 3)*CW + (s >> 2)*4096, t, [(ACC + (t*4+kt)*4, Cfrag(kt, s), "W", s == 0) for kt in range(4)]))
    for s2 in range(0, 16, 2):
        for dt in range(8):
            for s in (s2, s2+1):
                frags.append((16 + (s >> 1), (s >> 1)*16384 + (dt >> 2)*8192 + (s & 1)*4096, dt & 3, [(acc(dt, qi), "W", Hf(s, qi), s == 0) for qi in range(4)]))
    KE = "noke" not in OPT
    def wreg(f): return ("v", WF + (f % 8)*4) if f < 256 else (("a", aV + (f % 8)*4) if KE else ("a", aK + (f % 16)*4))
    slots = []
    CH = "nochain" not in OPT
    for f in range(0, len(frags), 2):
        for n, k in ([(n, k) for n in range(4) for k in range(2)] if CH else [(n, k) for k in range(2) for n in range(4)]):
            fl, r = wreg(f + k); wf = vr(r, 4, fl); d, a_, b_, first = frags[f + k][3][n]
            sl = Slot(I(f"v_mfma_f32_16x16x32_bf16 {vr(d,4)}, {wf if a_ == 'W' else a_}, {wf if b_ == 'W' else b_}, {'0' if first else vr(d,4)}"))
            if n == 0 and k == 0:
                sl.pre.append(W(lg=[("wf", f+1)]))
                if f < 128 and f % 16 == 0: sl.pre.append(W(lg=[("cr", f//16)]))
                if f >= 256 and f % 16 == 0: sl.pre.append(W(vm=[("h", (f-256)//8 + 1)]))
            slots.append(sl)
    LA = 4
    wbase = [0]; bar = {}
    vTR2 = vCD
    def frag_reads(f):
        q, a, t, _ = frags[f]; g = []
        fl, r = wreg(f)
        if a >= 131072: return g, [LG(f"ds_read_b64_tr_b16 {vr(r+2*hh, 2, fl)}, v{vTR2+t} offset:{a - 131072 + hh*512}", ("wf", f)) for hh in range(2)]
        wb = a & 65536
        if wb != wbase[0]:
            g += [f"v_xor_b32 v{vTR+i}, 0x10000, v{vTR+i}" for i in range(4)]; wbase[0] = wb
        return g, [LG(f"ds_read_b64_tr_b16 {vr(r+2*hh, 2, fl)}, v{vTR+t} offset:{a - wb + hh*512}", ("wf", f)) for hh in range(2)]
    for f in range(LA):
        g, rd = frag_reads(f); o += g + rd
    valid = {0}
    VAL = {12: [12, 13, 14, 15], 16: [16, 17, 18, 19]}
    for f in range(LA, len(frags)):
        q = frags[f][0]; i = (f - LA)*4
        if q not in valid or (q > 16 and f % 16 == 0):
            qs = VAL.get(q, [q]); valid.update(qs); bar[q] = i - 1
            slots[i-1].alu += [W(vm=[("w", x) for x in qs]), I("s_barrier")]
        g, rd = frag_reads(f)
        slots[i-1].alu += flat(g)
        slots[i].mem.append(rd[0]); slots[i+1].mem.append(rd[1])
    def put(groups, b, step=4, where="mem"):
        for n, g in enumerate(groups): getattr(slots[b + step*n], where).append(g)
    def up(b, r):
        while (b & 3) != r: b += 1
        return b
    def lq(groups, b):
        put(groups, up(b, 3)); return up(b, 3) + 4*(len(groups) - 1)
    vused = set()
    def vq(groups, b, stride=1):
        k = up(b, 2) >> 2; last = b
        for g in groups:
            while k in vused: k += 1
            vused.add(k); slots[4*k + 2].mem.append(g); last = 4*k + 2; k += stride
        return last
    def sq(text, b, e): spread(slots, SEQ(scc_groups(text)), b, e)
    def before_bar(q, items): slots[bar[q]].alu[0:0] = flat(items)
    def pre(items, groups): groups[0] = flat(items) + groups[0]; return groups
    cend = {}
    for p in range(7):
        rd = c_reads(p+1); rd[0] = [W(vm=[("c", p+1)]), rd[0]]
        cend[p+1] = lq(rd, p*64 + int(OV('crd', 20)))
    MR = vT + 8
    vq([[W(lg="mr2"), f"v_add_f32 v{MR}, v{MR}, v{MR+1}", f"v_add_f32 v{MR+2}, v{MR+2}, v{MR+3}", f"v_add_f32 v{MR}, v{MR}, v{MR+2}",
         VM(f"buffer_store_dword v{MR}, v{vL4}, {WS}, s{sMST} offen sc1", "mst")]], 14)
    sq([f"v_and_b32 v{vTR2+i}, 0xffff, v{vTR+i}" for i in range(4)] + [f"v_or_b32 v{vTR2+i}, 0x20000, v{vTR2+i}" for i in range(4)], 520, 540)
    lq([LG(f"ds_read2st64_b32 v[{MR}:{MR+1}], v{vL4} offset0:192 offset1:193", "mr2"),
        LG(f"ds_read2st64_b32 v[{MR+2}:{MR+3}], v{vL4} offset0:194 offset1:195", "mr2")], 0)
    vq([[W(vm=["mst", "zero"]), VM(f"buffer_atomic_add v{vONE}, v{vL256}, s[{sDBG}:{sDBG+3}], s{sATO} offen sc1")]], 100)
    XR, F0, F1, TT, AV, BV, PP, MF = 64, 72, 80, 88, 92, 100, 108, 124
    sq([f"""
    s_sub_u32 s{sHST}, 15, s{sJ}
    s_cmp_lt_u32 s{sC}, 16
    s_cselect_b32 s{sHST}, s{sJ}, s{sHST}
    s_lshl_b32 s{sHST}, s{sHST}, 4
    s_and_b32 s{sMF}, s{sC}, 15
    s_add_u32 s{sHST}, s{sHST}, s{sMF}
    s_lshl_b32 s{sMF}, s{sHST}, 13
    s_lshl_b32 s{sSPIN}, s{sW}, 11
    s_add_u32 s{sMF}, s{sMF}, s{sSPIN}
    """], 20, 40)
    xe = vq([VM(f"buffer_load_dwordx4 {vr(XR+4*k,4)}, v{vL16}, s[{sX}:{sX+3}], s{sMF} offen offset:{1024*k}{' nt' if 'ntx' in OPT else ''}", "x") for k in range(2)], 104)

    g = []
    for j in range(4):
        for F, xr in ((F0, XR), (F1, XR+4)): g += [f"v_lshlrev_b32 v{F+2*j}, 16, v{xr+j}", f"v_and_b32 v{F+2*j+1}, 0xffff0000, v{xr+j}"]
    g[0] = [W(vm="x"), g[0]]
    def reduce2(sa, sb, post):
        r = []
        for m in ("quad_perm:[1,0,3,2]", "quad_perm:[2,3,0,1]", "row_ror:4", "row_ror:8"):
            r += [f"v_add_f32_dpp v{TT}, v{TT}, v{TT} {m} row_mask:0xf bank_mask:0xf", f"v_add_f32_dpp v{TT+1}, v{TT+1}, v{TT+1} {m} row_mask:0xf bank_mask:0xf"]
        r += [f"v_permlane16_swap_b32 v{TT}, v{TT+1}", f"v_add_f32 v{TT}, v{TT}, v{TT+1}", f"v_mov_b32 v{TT+1}, v{TT}",
              f"v_permlane32_swap_b32 v{TT}, v{TT+1}", f"v_add_f32 v{TT}, v{TT}, v{TT+1}"] + post
        return r + [f"v_readlane_b32 s{sa}, v{TT}, 0", f"v_readlane_b32 s{sb}, v{TT}, 16"]
    for j in range(1, 8):
        for k, F in enumerate((F0, F1)): g += [f"v_add_f32 v{TT+k}, v{F if j == 1 else TT+k}, v{F+j}"]
    g += reduce2(sMEAN0, sMEAN1, [f"v_mul_f32 v{TT}, {fbits(1/512)}, v{TT}"])
    for j in range(8):
        for F, sm in ((F0, sMEAN0), (F1, sMEAN1)): g += [f"v_subrev_f32 v{F+j}, s{sm}, v{F+j}"]
    for j in range(8):
        for k, F in enumerate((F0, F1)): g += [f"v_mul_f32 v{TT+k}, v{F}, v{F}" if j == 0 else f"v_fmac_f32 v{TT+k}, v{F+j}, v{F+j}"]
    g += reduce2(sRS0, sRS1, [f"v_mov_b32 v{TT+1}, {fbits(EPS)}", f"v_fmac_f32 v{TT+1}, {fbits(1/512)}, v{TT}", f"v_rsq_f32 v{TT}, v{TT+1}"])
    for j in range(8):
        for F, rs in ((F0, sRS0), (F1, sRS1)): g += [f"v_mul_f32 v{F+j}, s{rs}, v{F+j}"]
    assert xe < 200
    spread(slots, g, max(xe + 60, 200), 360)
    ld = f"buffer_load_dword v{MR}, v{vL4}, s[{sDBG}:{sDBG+3}], 0 offen sc1"
    vq([VM(ld, "poll1")], 226)
    e = 0
    if pfa and "pfpre" not in OPT:
        for k, g in enumerate(pfa): slots[2*k + 1].alu.append(g)
        e = 2*len(pfa) + 2
    CP = int(OV("cp", 0))
    sPC, sPW = sWVOFF + 0, sVST + 0
    def cp_c(i): return [[VM(f"buffer_load_dwordx4 v[28:31], v{vCD}, s[{sCKV}:{sCKV+3}], s0 offen offset:{i*128}", "pf")] + ([f"s_xor_b32 s0, s0, 8192"])for n in range(2)] if CP and i < 8 else []
    def cp_w(q): return [[VM(f"buffer_load_dwordx4 v[28:31], v{vPW}, s[{sWK}:{sWK+3}], s1 offen", "pf"), f"s_add_u32 s1, s1, {2*64*8192}"]] if CP > 1 and q < 8 else []
    if CP:
        def vx(groups, b): put(groups, up(b, 0))
        vx(cp_c(3) + cp_w(3), 0); e = vq(c_dma(2), 0); e = vq(w_dma(2), e)
        for i in range(3, 8):
            vx(cp_c(i+1) + (cp_w(i+2) if i & 1 else []), max(e, cend.get(i-3, 0) + 8) - int(OV("cpl", 0)))
            e = vq(pre([W(lg=[("cr", i-3)])], c_dma(i)), max(e, cend.get(i-3, 0) + 8)); assert e < (i-1)*64 + 10, (i, e)
            if i < 7: e = vq(w_dma(i), max(e, bar[i-2]))
    BU = int(OV("burst", 0))
    if BU:
        first = c_dma(2) + w_dma(2) + c_dma(3)
        for k, g in enumerate(first): slots[k*BU//2].mem.append(g)
        for k in range((len(first)*BU//2)//4 + 1): vused.add(k)
        e = len(first)*BU//2
    elif not CP: e = vq(c_dma(2), e); e = vq(w_dma(2), e)
    if not BU and not CP: e = vq(c_dma(3), e)
    if not CP: e = vq(w_dma(3), max(e, bar[1]))
    for i in range(4, 8 if not CP else 0):
        e = vq(pre([W(lg=[("cr", i-3)])], c_dma(i)), max(e, cend[i-3] + 8))
        assert e < (i-1)*64 - 10, (i, e)
        if i < 7: e = vq(w_dma(i), max(e, bar[i-2]))
    before_bar(5, check(ld, f"v_cmp_gt_u32 vcc, 4, v{MR}", sSPIN, "poll1"))
    sq([f"s_lshl_b32 s{sMF}, s{sW}, 10", f"s_add_u32 s{sMF}, s{sMF}, {WS_MODP}"], bar[5] - 8, bar[5] - 4)
    e = vq([[VM(f"buffer_load_dwordx4 {vr(PP+4*n,4)}, v{vL16}, {WS}, s{sMF} offen sc1", "pp"), f"s_add_u32 s{sMF}, s{sMF}, 12288"] for n in range(4)], bar[5] + 1)
    g = [[VM(f"buffer_load_dword v{MF+n}, v{vL4}, {WS}, s{sMF} offen sc1", "mf"), f"s_add_u32 s{sMF}, s{sMF}, 12288"] for n in range(4)]
    e = vq(pre([f"s_lshl_b32 s{sMF}, s{sC}, 10", f"s_lshl_b32 s{sSPIN}, s{sW}, 8", f"s_add_u32 s{sMF}, s{sMF}, s{sSPIN}",
                f"s_mul_i32 s{sSPIN}, s{sJ}, 12288", f"s_add_u32 s{sSPIN}, s{sSPIN}, s{sMF}", f"s_add_u32 s{sSPIN}, s{sSPIN}, {WS_MODF}",
                f"s_add_u32 s{sMF}, s{sMF}, {WS_MODP}", f"s_cmp_lt_u32 s{sC}, 12",
                f"s_cselect_b32 s{sMF}, s{sMF}, {OOB:#x}", f"s_cselect_b32 s{sSPIN}, s{sSPIN}, {OOB:#x}"], g), e)
    assert e < 372
    e = vq(w_dma(7), max(e, bar[5])); assert e < bar[7] - 60
    if PF and "nopv" not in OPT: e = vq(pre([W(lg=[("cr", 5)])], pf_w(sWV, vPW, 16384 + 6144, 0, sX, sX+1)), max(e, cend[5] + 8))
    e = vq(w_dma(8), max(e, bar[6]))
    if PF and "pq1" in OPT: e = vq(pf_w(sWQ, vPW, 16384 + 6144, 0, sX, sX+1), e + 16); assert e < bar[7]
    e = vq(w_dma(9), max(e, bar[7]))
    if PF and OV("pqs", None):
        sq([f"v_mov_b32 v{vT+12}, v{vPW}"], 300, 301); e_ = vq(pf_w(sWQ, vT+12, 0, 0, sX+2, sX+3, reg=vCD), int(OV("pqs", 0)), int(OV("pqd", 8))); assert e_ < 516
    elif PF and "pq1" not in OPT:
        sq([f"v_mov_b32 v{vT+12}, v{vPW}"], 400, 401); e = vq(pf_w(sWQ, vT+12, 16384 + 6144, 0, sX, sX+1), max(e, 470)); assert e < bar[8]
    e = e; e = vq(w_dma(10), max(e, bar[8] + 14))
    e = vq(w_dma(12), e + 8); e = vq(w_dma(11), max(e, bar[9] + 6)); e = vq(w_dma(13), e + 8); e = vq(w_dma(14), e + 12); e = vq(w_dma(15), e + 12)
    assert e < 690
    g = [[W(vm="pp"), f"v_add_f32 v{PP}, v{PP}, v{PP+4}"]] + [f"v_add_f32 v{PP+j}, v{PP+j}, v{PP+4+j}" for j in range(1, 4)]
    g += [f"v_add_f32 v{PP+8+j}, v{PP+8+j}, v{PP+12+j}" for j in range(4)] + [f"v_add_f32 v{PP+j}, v{PP+j}, v{PP+8+j}" for j in range(4)]
    g += rnd(PP, PP+1, PP+4) + rnd(PP+2, PP+3, PP+5) + [f"v_add_f32 v{PP+j}, s{sADD}, v{PP+j}" for j in range(4)]
    g += rnd(PP, PP+1, PP+4) + rnd(PP+2, PP+3, PP+5) + [f"v_mul_f32 v{PP+j}, {fbits(CSCALE)}, v{PP+j}" for j in range(4)]
    g += [f"s_lshl_b32 s{sMF}, s{sW}, 10", f"s_add_u32 s{sMF}, s{sMF}, {MODV}", f"v_add_u32 v{PP+4}, s{sMF}, v{vL16}", f"v_lshlrev_b32 v{TT}, 5, v0", f"v_add_u32 v{TT}, {MODV}, v{TT}"]
    g += [[W(vm="mf"), f"v_add_f32 v{MF}, v{MF}, v{MF+1}"], f"v_add_f32 v{MF+2}, v{MF+2}, v{MF+3}", f"v_add_f32 v{MF}, v{MF}, v{MF+2}",
          f"v_cvt_pk_bf16_f32 v{MF}, v{MF}, v{MF}", f"v_lshlrev_b32 v{vT+11}, 16, v{MF}"]
    spread(slots, g, 372, 424)
    lq([LG(f"ds_write_b128 v{PP+4}, {vr(PP,4)}", "mv")], 425)
    assert bar[7] > 427
    before_bar(7, [W(lg="mv")])
    put([LG(f"ds_read_b128 {vr(r,4)}, v{TT} offset:{off}", "ab") for r, off in ((BV, 0), (BV+4, 16), (AV, 2048), (AV+4, 2064))], bar[7] + 1, 2)
    g = []
    for j in range(8):
        for F in (F0, F1): g += [f"v_fma_f32 v{F+j}, v{F+j}, v{AV+j}, v{BV+j}"]
    g[0] = [W(lg="ab"), g[0]]
    for j in range(4):
        for F, xr in ((F0, XR), (F1, XR+4)): g += [f"v_cvt_pk_bf16_f32 v{xr+j}, v{F+2*j}, v{F+2*j+1}"]
    HA, HG, HD = vT+2, vT+3, vT+12
    g += [f"s_lshr_b32 s{sMF}, s{sW}, 1", f"s_mul_i32 s{sMF}, s{sMF}, {CW - 4160}", f"s_mul_i32 s{sADD}, s{sW}, 2080", f"s_add_u32 s{sMF}, s{sMF}, s{sADD}",
          f"s_add_u32 s{sMF}, s{sMF}, {HSTA}", f"v_add_u32 v{TT}, s{sMF}, v{vL16}"]
    g += [x.t for x in flat([f"""
    v_and_b32 v{HG}, 7, v0
    v_lshrrev_b32 v{TT+2}, 3, v0
    v_mul_u32_u24 v{HA}, 1040, v{HG}
    v_lshrrev_b32 v{TT+3}, 2, v{HG}
    v_mul_u32_u24 v{TT+3}, {CW - 4160}, v{TT+3}
    v_add_u32 v{HA}, v{HA}, v{TT+3}
    v_lshl_add_u32 v{HA}, v{TT+2}, 4, v{HA}
    s_lshl_b32 s{sMF}, s{sW}, 8
    s_add_u32 s{sMF}, s{sMF}, {HSTA}
    v_add_u32 v{HA}, s{sMF}, v{HA}
    v_lshlrev_b32 v{HG}, 4, v{HG}
    v_and_b32 v{TT+3}, 3, v{TT+2}
    v_lshl_add_u32 v{HG}, v{TT+3}, 8, v{HG}
    v_lshrrev_b32 v{TT+2}, 2, v{TT+2}
    v_lshl_add_u32 v{HG}, v{TT+2}, 10, v{HG}
    s_and_b32 s{sMF}, s{sHST}, 1
    s_lshr_b32 s{sHST}, s{sHST}, 1
    s_lshl_b32 s{sHST}, s{sHST}, 14
    s_lshl_b32 s{sMF}, s{sMF}, 7
    s_add_u32 s{sHST}, s{sHST}, s{sMF}
    s_lshl_b32 s{sMF}, s{sW}, 12
    s_add_u32 s{sHST}, s{sHST}, s{sMF}
    s_add_u32 s{sHST}, s{sHST}, {WS_H}
    """])]
    spread(slots, g, bar[7] + 12, 488)
    put([LG(f"ds_write_b128 v{TT}, {vr(XR+4*k,4)} offset:{1040*k}", "hw") for k in range(2)], 489, 2)
    assert bar[8] > 491
    before_bar(8, [W(lg="hw")])
    put([LG(f"ds_read_b128 {vr(XR+56+4*k,4)}, v{HA} offset:{128*k}", "hr") for k in range(2)], bar[8] + 1, 1)
    e = vq([VM(f"buffer_store_dword v{vT+11}, v{vL4}, {WS}, s{sSPIN} offen sc1", "hst")] +
           [[W(lg="hr"), VM(f"buffer_store_dwordx4 {vr(XR+56+4*k,4)}, v{HG}, {WS}, s{sHST} offen offset:{2048*k} sc1", "hst")] for k in range(2)], bar[8] + 1)
    assert e < 524
    HB_ = int(OV("hb", 10))
    before_bar(HB_, [W(vm="hst")])
    sq(flag_off(sMF, 0, True), bar[HB_] - 12, bar[HB_] - 11)
    vq([publish(vT+2, sMF)], bar[HB_] + 1)
    def pack(dst, qa, qb):
        return [f"v_cvt_pk_bf16_f32 v{dst}, v{qa}, v{qa+1}", f"v_cvt_pk_bf16_f32 v{dst+1}, v{qa+2}, v{qa+3}",
                f"v_cvt_pk_bf16_f32 v{dst+2}, v{qb}, v{qb+1}", f"v_cvt_pk_bf16_f32 v{dst+3}, v{qb+2}, v{qb+3}"]
    def store(src, sreg, off, tag):
        return [f"s_add_u32 s{sT0}, s{sreg}, {off & ~4095}", VM(f"buffer_store_dwordx4 {vr(src,4)}, v{vL16}, {WS}, s{sT0} offen offset:{off & 4095} sc1", tag)]
    def at23(e):
        while (e & 3) < 2: e += 1
        return e
    kl = [(s4, kt) for s4 in (2, 3, 0, 1) for kt in range(4)]
    for n, (s4, kt) in enumerate(kl):
        dst = accK({2: 4, 3: 6, 0: 5, 1: 7}[s4], kt)
        b = 514 + n*(22 if n < 2 else 12) + (20 if n >= 2 else 0)
        put(pack(dst, accK(2*s4, kt), accK(2*s4+1, kt)), b, 2, "alu")
        e = vq([store(dst, sKST, (kt >> 1)*8192 + ((kt & 1)*4 + s4)*1024, "kst")], 530 + int(OV("ksp", 21))*n)
        assert b + 6 < 530 + int(OV("ksp", 21))*n and b + 6 < 764 and e < 880
    sH = 32; sUS, sUL = sMF, sHST
    slots[815].alu += [I("s_barrier")]
    if "ct2" in OPT:
        slots[860].alu.append(flat([f"Lb0_{N}:"])); vq([code_part(f"Lb0_{N}", f"Lfin_{N}", 14, 32, vT+10)], 640)
    for q, b in ((16, 690), (17, bar[11] + 30), (18, bar[12]), (19, 815)): e = vq(w_dma(q), b + 1)
    sq(flag_off(sSPIN, 0, False) + [f"v_and_b32 v{vT+2}, 31, v0", f"v_lshlrev_b32 v{vT+2}, {FS}, v{vT+2}"], 780, 800)
    ld = f"buffer_load_dword v{vT+3}, v{vT+2}, {WS}, s{sSPIN} offen sc1"
    vq([VM(ld, "poll2")], max(e, 836))
    sq([f"""
    s_lshl_b32 s{sUS}, s{sJ}, 2
    s_sub_u32 s{sUL}, 60, s{sUS}
    s_add_u32 s{sUS}, s{sUS}, s{sW}
    s_add_u32 s{sUL}, s{sUL}, s{sW}
    s_lshl_b32 s{sH}, s{sUL}, 15
    s_add_u32 s{sH}, s{sH}, {WS_H}
    s_add_u32 s{sH+1}, s{sH}, 16384
    s_lshl_b32 s{sH+2}, s{sUS}, 15
    s_add_u32 s{sH+2}, s{sH+2}, {WS_H}
    s_add_u32 s{sH+3}, s{sH+2}, 16384
    """], 850, 876)
    slots[883].alu += check(ld, f"v_cmp_ne_u32 vcc, 1, v{vT+3}", sADD, "poll2") + [I("s_barrier")]
    def h_ld(s):
        g = []
        for qi in range(4):
            x = [VM(f"buffer_load_dwordx4 {Hf(s, qi)}, v{vL16}, {WS}, s{sH+qi} offen offset:{(s&3)*1024} sc1", ("h", s))]
            if (s & 3) == 3: x.append(f"s_add_u32 s{sH+qi}, s{sH+qi}, 4096")
            g.append(x)
        return g
    for n in range(8):
        t, uu = n >> 1, n & 1; qa = X + (t*4+2*uu)*4
        put(pack(qa, qa, qa+4), 780 + 10*n, 2, "alu")
        e = vq([store(qa, sVST, uu*8192 + t*1024, "vst")], int(OV("va0", 872)) + int(OV("vap", 19))*n)
        assert e < 1020
    e = vq(h_ld(0) + h_ld(1) + h_ld(2) + h_ld(3), 884)
    assert e < 990
    if HE: e = vq(h_ld(4) + h_ld(5) + h_ld(6) + h_ld(7), max(e, 936)); assert e < 1060
    for n in range(8):
        t, uu = n >> 1, n & 1; qa = ACC + (t*4+2*uu)*4
        put(pack(WF + 4*n, qa, qa+4), 1024 + 3*n, 1, "alu") if n < 4 else put(pack(WF + 4*n, qa, qa+4), 1024 + 12 + 3*(n-4), 1, "alu")
        e = vq([store(WF + 4*n, sVST, uu*8192 + (4+t)*1024, "vst")], int(OV("vs0", 1050)) + int(OV("vsp", 20))*n); vend = e
    def kvflag(dst, base, own):
        r = [f"s_lshl_b32 s{dst}, s{sHEAD}, 5", f"s_add_u32 s{dst}, s{dst}, {WS_FLAG + base}"]
        if own: r += [f"s_lshl_b32 s{sT0}, s{sJ}, 2", f"s_add_u32 s{dst}, s{dst}, s{sT0}"]
        return r + [f"s_cmp_eq_u32 s{sW}, 0", f"s_cselect_b32 s{dst}, s{dst}, {OOB:#x}"]
    before_bar(16, [W(vm="kst")])
    sq(kvflag(sSPIN, KF, True), bar[16] - 12, bar[16] - 11)
    vq([publish(vT+2, sSPIN)], bar[16] + 1)
    for p in (0, 4, 8, 12): slots[p*64].alu += st()
    for p in range(15): slots[p*64].alu += st("A")
    for p in range(9, 24): slots[p*64].alu += st("B")
    B0 = 1024
    slots[B0].alu += st()
    sK, sCT = 12, 36; sMK = [24, 26, 32, 34]
    sKO, sCNT, sODW, sFL = 78, 86, 87, 90
    vKB, vVB, ONES, LS, PB, CB, TMP = 2, 3, 12, 16, 32, 192, 224
    sq([f"""
    s_lshl_b32 s{sKO}, s{sHEAD}, 20
    s_add_u32 s{sK}, s{sWS}, s{sKO}
    s_addc_u32 s{sK+1}, s{sWS+1}, 0
    s_sub_u32 s{sK+2}, 16, s{sJ}
    s_lshl_b32 s{sK+2}, s{sK+2}, 16
    s_mov_b32 s{sK+3}, 0x20000
    s_add_u32 s{sKO}, s{sM0K}, {4*32768}
    """], bar[20] + 1, bar[20] + 12)
    vF = LS
    sq(kvflag(sFL, KF, False) + [f"v_and_b32 v{vF}, 7, v0", f"v_lshlrev_b32 v{vF}, 2, v{vF}"], bar[19] - 20, bar[19] - 4)
    ld = f"buffer_load_dword v{vF+1}, v{vF}, {WS}, s{sFL} offen sc1"
    e = vq([VM(ld, "poll3")], bar[19]); assert e < bar[20] - 20
    before_bar(20, check(ld, f"v_cmp_ne_u32 vcc, 1, v{vF+1}", sCNT, "poll3"))
    VB = int(OV("vb", 21)); assert vend < bar[VB] - 20 and vend < bar[20] + 100
    before_bar(VB, [W(vm="vst")])
    sq(kvflag(sFL, VF, True), bar[VB] - 12, bar[VB] - 11)
    e = vq([publish(vF+2, sFL)], bar[VB] + 1)
    sq(kvflag(sFL, VF, False), e + 4, e + 12)
    vq([VM(ld, "poll4")], bar[23] + 1)
    LEAD = int(OV("lead", 120)); LEADH = int(OV("leadh", LEAD)); e = B0
    for s in range(8 if HE else 4, 16, 2):
        q = 16 + s//2
        if q >= 20: e = vq(w_dma(q), max(e, bar[17] + 1, bar[q] - LEAD)); assert e < bar[q] - 50
        e = vq(h_ld(s) + h_ld(s+1), max(e, B0 + (s-6)*32 if s < 12 or not HE else 0, B0 + s*32 - LEADH)); assert e < B0 + s*32 - 50, (s, e)
    hend = e
    vcheck = check(ld, f"v_cmp_ne_u32 vcc, 1, v{vF+1}", sCNT, "poll4")
    def kv_dma(which, tag, pair=None):
        if pair is None: so = sKO; grp = [f"s_and_b32 m0, s{sKO}, 0x1ffff"]
        else: so = sT1; grp = [f"s_add_u32 s{sT1}, s{sM0K}, {pair*32768 + (which == 'V')*16384}", f"s_mov_b32 m0, s{sT1}"]
        g = [grp]
        for n in range(4): g.append([VM(f"buffer_load_dwordx4 v{vL16}, s[{sK}:{sK+3}], s{so} offen offset:{n*1024} {OV('kvf', 'sc1').replace('none', '').replace('+', ' ')} lds", tag)])
        if pair is None: return SEQ(g + [[f"s_sub_u32 s{sKO}, s{sKO}, 16384" if which == "K" else f"s_add_u32 s{sKO}, s{sKO}, 49152"]])
        return SEQ([g[0] + g[1]] + g[2:])
    e = vq(kv_dma("K", ("K", 0), 0) + kv_dma("K", ("K", 1), 1), max(hend, bar[21] + 1))
    sS1, sD1, sD3, sS2, sX0, sX1, sW2 = 80, 7, 81, 91, 85, 83, 16; sD2 = [20, 21, 22, 23]
    vU1, vU2, vUT = TMP+12, TMP+16, TMP+20
    g = srd(sW2, PW2, 1792*1024) + [f"""
    s_lshl_b32 s{sX0}, s2, 2
    s_add_u32 s{sX0}, s{sX0}, s{sW}
    s_and_b32 s{sX0}, s{sX0}, 511
    s_lshr_b32 s{sS1}, s{sX0}, 3
    s_and_b32 s{sX1}, s{sX0}, 7
    s_lshl_b32 s{sD1}, s{sX1}, 7
    s_add_u32 s{sD1}, s{sD1}, s{sS1}
    s_lshl_b32 s{sD1}, s{sD1}, 12
    s_add_u32 s{sD1}, s{sD1}, {WS_WOF}
    s_mul_i32 s{sD3}, s{sX1}, 56
    s_add_u32 s{sD3}, s{sD3}, s{sS1}
    s_lshl_b32 s{sD3}, s{sD3}, 12
    s_add_u32 s{sD3}, s{sD3}, {WS_W2F}
    s_lshl_b32 s{sS1}, s{sS1}, 15
    s_lshl_b32 s{sX1}, s{sX1}, 7
    s_add_u32 s{sS1}, s{sS1}, s{sX1}
    s_and_b32 s{sX1}, s{sX0}, 15
    s_mul_i32 s{sS2}, s{sX1}, {32*3584}
    s_mul_i32 s{sX1}, s{sX1}, 7168
    s_add_u32 s{sX1}, s{sX1}, {WS_W1F}
    s_cmp_lt_u32 s{sX0}, 448
    s_cselect_b32 s{sX1}, s{sX1}, {OOB:#x}
    s_cselect_b32 s{sD3}, s{sD3}, {OOB:#x}
    s_cselect_b32 s{sU2+2}, s{sU2+2}, 0
    s_cmp_ge_u32 s2, 128
    s_cselect_b32 s{sWO+2}, s{sWO+2}, 0
    s_lshr_b32 s{sX0}, s{sX0}, 4
    s_lshl_b32 s{sD2[0]}, s{sX0}, 7
    s_add_u32 s{sS2}, s{sS2}, s{sD2[0]}
    s_lshl_b32 s{sX0}, s{sX0}, 2
    """] + [f"""
    s_mul_i32 s{sODW}, s{sX0}, 9363
    s_lshr_b32 s{sODW}, s{sODW}, 16
    s_mul_i32 s{sODW}, s{sODW}, {114688-7168}
    s_lshl_b32 s{sD2[t]}, s{sX0}, 10
    s_add_u32 s{sD2[t]}, s{sD2[t]}, s{sODW}
    s_add_u32 s{sD2[t]}, s{sD2[t]}, s{sX1}
    s_add_u32 s{sX0}, s{sX0}, 1
    """ for t in range(4)] + [f"""
    v_lshrrev_b32 v{vUT}, 3, v0
    v_and_b32 v{vUT+1}, 7, v0
    v_and_b32 v{vUT+2}, 6, v{vUT}
    v_xor_b32 v{vUT+2}, v{vUT+2}, v{vUT+1}
    v_lshlrev_b32 v{vUT+2}, 4, v{vUT+2}
    v_lshl_add_u32 v{vU1}, v{vUT}, 10, v{vUT+2}
    v_add_u32 v{vU1+1}, 7168, v{vU1}
    v_add_u32 v{vU1+2}, {2*7168}, v{vU1}
    v_add_u32 v{vU1+3}, {3*7168}, v{vU1}
    v_mul_u32_u24 v{vU2}, 3584, v{vUT}
    v_add_u32 v{vU2}, v{vU2}, v{vUT+2}
    v_add_u32 v{vU2+1}, {8*3584-1024}, v{vU2}
    v_add_u32 v{vU2+2}, {2*(8*3584-1024)}, v{vU2}
    v_add_u32 v{vU2+3}, {3*(8*3584-1024)}, v{vU2}
    v_lshrrev_b32 v{vUT+1}, 4, v0
    v_bfe_u32 v{vUT+2}, v0, 2, 2
    v_lshl_add_u32 v{vUT+1}, v{vUT+1}, 2, v{vUT+2}
    v_bfe_u32 v{vUT+2}, v{vUT+1}, 1, 2
    v_lshlrev_b32 v{vUT+1}, 7, v{vUT+1}
    v_lshl_add_u32 v{vUT+1}, v{vUT+2}, 5, v{vUT+1}
    v_and_b32 v{vUT+2}, 3, v0
    v_lshl_add_u32 v{vUT+1}, v{vUT+2}, 3, v{vUT+1}
    s_lshl_b32 s{sX0}, s{sW}, 13
    s_add_u32 s{sX0}, s{sX0}, 131072
    v_add_u32 v{vUT}, s{sX0}, v{vUT+1}
    v_xor_b32 v{vUT+1}, 32, v{vUT}
    v_xor_b32 v{vUT+2}, 64, v{vUT}
    v_xor_b32 v{vUT+3}, 0x60, v{vUT}
    """]
    sq(g[:-1], B0 + 250, B0 + 380); sq(g[-1:], B0 + 388, B0 + 432)
    def side_dma(rnd_):
        r = []
        for u, (vo, sd, so) in enumerate((((vU1, sWO, f"s{sS1}, 0"), (vU1, sWO, f"s{sS1}, {64*32768}")), ((vU1, sW2, f"s{sS1}, 0"), (vU2, sU2, f"s{sS2}, 0")))[rnd_]):
            d = [[VM(f"buffer_load_dwordx4 v{vo+n}, s[{sd}:{sd+3}], s{sT0} offen offset:{n*1024}{NT1} lds", "ud")] for n in range(4)]
            d[0] = [f"s_add_u32 m0, s{sX0}, {u*4096}", f"s_add_u32 s{sT0}, {so}"] + d[0]
            r += SEQ(d)
        return r
    def side_reads(): return [LG(f"ds_read_b64_tr_b16 {ar(192 + u*16 + t*4 + 2*hh, 2)}, v{vUT+t} offset:{u*4096 + hh*2048}", "ur") for u in range(2) for t in range(4) for hh in range(2)]
    def side_stores(rnd_):
        st_ = lambda q, so, off: [VM(f"buffer_store_dwordx4 {ar(192 + 4*q, 4)}, v{vL16}, {WS}, s{so} offen offset:{off} sc1")]
        if rnd_ == 1: return [st_(t, sD3, t*1024) for t in range(4)] + [st_(4+t, sD2[t], 0) for t in range(4)]
        r = [st_(t & 3 | (t & 4), sD1, (t & 3)*1024) for t in range(8)]
        r[3] = r[3] + [f"s_add_u32 s{sD1}, s{sD1}, {64*4096}"]
        return r
    e = vq(side_dma(0), bar[23] + 8); assert e < B0 + 480
    if KE:
        slots[B0 + 479].alu += vcheck + flat([W(vm=[("K", 0), ("K", 1)]), "s_barrier"])
        put([LG(f"ds_read_b128 {ar(aK + 4*f, 4)}, v{vKB} offset:{f*1024}", ("k", f)) for f in range(8)], B0 + 483)
        e = vq(kv_dma("V", ("V", 0), 0) + kv_dma("K", ("K", 2), 2), B0 + 480); assert e < B0 + 512
    init = [f"v_accvgpr_write_b32 a{r}, 0" for r in range(128)] + [f"v_mov_b32 v{ONES+r}, 0x3f803f80" for r in range(4)]
    assert not HE
    spread(slots, init, B0 + 40, bar[21] - 8)
    init = [x.t for x in flat([f"""
    s_lshl_b32 s{sODW}, s{sHEAD}, 12
    s_add_u32 s{sODW}, s{sODW}, {WS_CTX}
    s_lshl_b32 s{sCT}, s{sUL}, 18
    s_add_u32 s{sCT}, s{sCT}, s{sODW}
    s_add_u32 s{sCT+1}, s{sCT}, 131072
    s_lshl_b32 s{sCT+2}, s{sUS}, 18
    s_add_u32 s{sCT+2}, s{sCT+2}, s{sODW}
    s_add_u32 s{sCT+3}, s{sCT+2}, 131072
    v_lshrrev_b32 v{PB+4}, 4, v0
    v_lshlrev_b32 v{PB+4}, 2, v{PB+4}
    v_and_b32 v{PB+5}, 15, v0
    v_sub_u32 v{PB+5}, v{PB+5}, v{PB+4}
    v_cmp_le_i32 s[{sMK[0]}:{sMK[0]+1}], 0, v{PB+5}
    v_cmp_le_i32 s[{sMK[1]}:{sMK[1]+1}], 1, v{PB+5}
    v_cmp_le_i32 s[{sMK[2]}:{sMK[2]+1}], 2, v{PB+5}
    v_cmp_le_i32 s[{sMK[3]}:{sMK[3]+1}], 3, v{PB+5}
    v_mov_b32 v{vKB}, v{vL16}
    v_mov_b32 v{vVB}, v{vL16}
    """])] + [f"v_mov_b32 v{LS+r}, 0" for r in range(2, 16)]
    spread(slots, init, bar[23] - 30, bar[23] + 10)
    spread(slots, [f"v_mov_b32 v{CB+r}, 0" for r in range(32)] + [f"v_mov_b32 v{TMP+31}, 0xff800000"], B0 + 330, B0 + 400)
    def qpack(s4): return sum(([f"v_cvt_pk_bf16_f32 v{acc(2*s4, qi)+k}, v{acc(2*s4 + (k >> 1), qi) + 2*(k & 1)}, v{acc(2*s4 + (k >> 1), qi) + 2*(k & 1) + 1}"
                                for k in range(4)] for qi in range(4)), [])
    for s4 in range(3): spread(slots, qpack(s4), B0 + 448 + 16*s4 + 17, B0 + 448 + 16*s4 + 31 - (s4 == 2))
    if "vmap" in OPT: print("".join(("#" if k in vused else ".") + ("|" if k % 16 == 15 else "") for k in range(len(slots)//4)))
    if "nopack" not in OPT: pack_slots(slots)
    o += emit_slots(slots) + [f"Latt_{N}:"]
    o += st()
    from fatt import attention
    from ftail import tail
    env.update(locals())
    o = resolve_waits(flat(o + attention(env, "prologue")))
    o += attention(env, "main")
    if upto >= 3: o += tail(env, upto)
    return o + finish()
```

```python
from common import *
from flay import *

def fused(name, ts=False, opt="", upto=9):
    N = name
    NT = " nt" if "nt" in opt.split() else ""
    NT1 = " nt" if "nt1" in opt.split() or NT else ""
    NTT = " nt" if "ntt" in opt.split() or NT else ""
    sW, sHEAD, sJ, sC = 3, 4, 5, 6
    sWS = 8; WS = "s[8:11]"
    sT0, sT1 = 76, 77
    pX, pB1, pB2, pOUT = 92, 94, 96, 98
    vL16 = 1
    nstamp = [0]; env = {}
    SM = "A" if "stA" in opt else ("B" if "stB" in opt else ("P" if "stP" in opt else ("T" if "stT" in opt else "")))
    def st(kind=""):
        if not ts or nstamp[0] >= (14 if "dbgout" in opt else 15) or kind != SM: return []
        nstamp[0] += 1
        return [stamp(nstamp[0] - 1)]
    def finish():
        r = []
        if ts:
            r += ["s_waitcnt vmcnt(0)", stamp(15), "s_waitcnt lgkmcnt(0)", "v_mov_b32 v2, s100", "v_mov_b32 v3, s74",
                  "s_lshl_b32 s76, s2, 2", f"s_add_u32 s76, s76, s{sW}", "s_lshl_b32 s77, s76, 3", f"s_add_u32 s77, s77, {WS_TS}",
                  f"buffer_store_dwordx2 v[2:3], off, {WS}, s77", "s_lshl_b32 s77, s76, 6", f"s_add_u32 s77, s77, {WS_TS + 65536}"]
            for q in range(0, 16, 4):
                r += [f"v_mov_b32 v{4+j}, s{44+2*(q+j)}" for j in range(4)]
                r += [f"buffer_store_dwordx4 v[4:7], off, {WS}, s77 offset:{q*4}", "s_nop 1"]
        if ts and "dbgout" in opt:
            wg = next((x[3:] for x in opt.split() if x.startswith("wg=")), "0")
            r += [f"s_cmp_lg_u32 s2, {wg}", f"s_cbranch_scc1 Lend_{N}", f"s_cmp_lg_u32 s{sW}, 3", f"s_cbranch_scc1 Lend_{N}"] + srd(12, 72, 256)
            for q in range(0, 16, 4):
                for j in range(4): r += [f"s_sub_u32 s76, s{44+2*(q+j)}, s100", f"v_mov_b32 v{4+j}, s76"]
                r += [f"buffer_store_dwordx4 v[4:7], off, s[12:15], 0 offset:{q*4}", "s_nop 1"]
        return flat(r + [f"Lend_{N}:", "s_endpgm"]) + env["fallback"] + flat([f"Lcode_end_{N}:", "s_endpgm"])
    def rnd(r0, r1, t): return [f"v_cvt_pk_bf16_f32 v{t}, v{r0}, v{r1}", f"v_lshlrev_b32 v{r0}, 16, v{t}", f"v_and_b32 v{r1}, 0xffff0000, v{t}"]
    HY = "hy" in opt.split()
    XL = "noxl" not in opt.split() and not HY
    FS = int(next((x[3:] for x in opt.split() if x.startswith("fs=")), 5))
    FB = lambda kind: WS_FLAG + 8192 + (kind + 1)*(256 << FS)
    def flag_off(dst, kind, own, line=None):
        if (XL and kind >= 2) or (HY and kind == 3):
            r = [f"s_and_b32 s{dst}, s2, 7", f"s_lshl_b32 s{dst}, s{dst}, {5 + FS}", f"s_add_u32 s{dst}, s{dst}, {FB(kind)}"]
            if own: r += [f"s_lshr_b32 s{sT0}, s2, 3", f"s_lshl_b32 s{sT0}, s{sT0}, {FS}", f"s_add_u32 s{dst}, s{dst}, s{sT0}"]
            return r + [f"s_cmp_eq_u32 s{sW}, 0", f"s_cselect_b32 s{dst}, s{dst}, {OOB:#x}"]
        r = [f"s_lshl_b32 s{dst}, s{sJ if line is None else line}, {5 + FS}", f"s_add_u32 s{dst}, s{dst}, {FB(kind)}"]
        if own: r += [f"s_lshl_b32 s{sT0}, s{sC}, {FS}", f"s_add_u32 s{dst}, s{dst}, s{sT0}"]
        return r + [f"s_cmp_eq_u32 s{sW}, 0", f"s_cselect_b32 s{dst}, s{dst}, {OOB:#x}"]
    def publish(vt, soff):
        return [f"v_min_u32 v{vt}, 1, v0", f"v_lshlrev_b32 v{vt}, 27, v{vt}", f"v_mov_b32 v{vt+1}, 1",
                VM(f"buffer_store_dword v{vt+1}, v{vt}, {WS}, s{soff} offen sc1", "flag")]
    nct = [0]
    def code_part(a, b, lines, sd, vt, emit=VM):
        nct[0] += 1; l = f"Lct{nct[0]}_{N}"
        return [f"s_getpc_b64 s[{sd}:{sd+1}]", f"{l}:", f"s_add_u32 s{sd}, s{sd}, {a}-{l}", f"s_addc_u32 s{sd+1}, s{sd+1}, 0", f"s_mov_b32 s{sd+2}, {b}-{a}",
                f"s_mov_b32 s{sd+3}, 0x20000", f"s_cmp_eq_u32 s{sW}, 0", f"s_cselect_b32 s{sd+2}, s{sd+2}, 0", f"s_lshr_b32 s{sT0}, s2, 3", f"s_mul_i32 s{sT0}, s{sT0}, {lines*128}",
                f"v_min_u32 v{vt}, {lines - 1}, v0", f"v_lshlrev_b32 v{vt}, 7, v{vt}", emit(f"buffer_load_dword v{vt+1}, v{vt}, s[{sd}:{sd+3}], s{sT0} offen")]
    nsp = [0]
    def check(load, test, scnt, tag, mask=None, every=False):
        nsp[0] += 1; k = f"{N}_{nsp[0]}"
        test = [test, "s_cmp_lg_u64 vcc, 0" if mask is None else f"s_and_b64 vcc, vcc, s[{mask}:{mask+1}]"]
        return flat([W(vm=tag), [] if every else [f"s_cmp_lg_u32 s{sW}, 0", f"s_cbranch_scc1 Lok{k}"], test, f"s_cbranch_scc0 Lok{k}", f"s_mov_b32 s{scnt}, 0x80000",
                     f"Lsp{k}:", f"s_sub_u32 s{scnt}, s{scnt}, 1", f"s_cbranch_scc1 Lok{k}", "s_sleep 1", load, It("s_waitcnt vmcnt(0)", k="cond"), test,
                     f"s_cbranch_scc1 Lsp{k}", f"Lok{k}:"])

    sCKV, sWK, sWV, sMOD, sCV, sX, sDBG, sCODE = 12, 16, 20, 24, 28, 32, 36, 40
    sWQ, sWO, sU2 = sMOD, sCV, sCODE
    sCOFF, sWKOFF, sWVOFF, sKST, sVST, sM0C, sM0K, sMST, sATO, sADD, sMF, sHST, sSPIN, sRS0 = range(78, 92)
    sRS1 = 7; sMEAN0, sMEAN1 = sMST, sATO
    vWD, vTR, vCD, vCR, vT = 2, 6, 10, 14, 16
    WF, X, ACC = 32, 64, 128
    RING, CBUF, CW = 0, 65536, 24576
    MODRED, MODV, HSTA = 49152, CBUF + 16384, CBUF + CW + 16384
    o = ["s_cmp_ge_u32 s2, 256", f"s_cbranch_scc1 Lend_{N}"] + load_args()
    if ts: o += ["s_memrealtime s[100:101]" if not CYC else "s_memtime s[100:101]"]
    o += [f"s_getpc_b64 s[{sCODE}:{sCODE+1}]", f"Lpc_{N}:", f"s_mov_b32 s{sCODE+2}, Lcode_end_{N}-Lpc_{N}", f"s_mov_b32 s{sCODE+3}, 0x20000",
          f"v_lshlrev_b32 v{vT}, 7, v0"]
    CPM = next((x[4:] for x in opt.split() if x.startswith("cpm=")), "part")
    if CPM == "all": o += [VM(f"buffer_load_dword v{vT+1}, v{vT}, s[{sCODE}:{sCODE+3}], 0 offen", "code")]
    elif CPM == "part":
        o += [f"s_lshr_b32 s{sT0}, s2, 3", f"s_mul_i32 s{sT0}, s{sT0}, 3072", f"v_cmp_gt_u32 vcc, 24, v0", f"v_mov_b32 v{vT+1}, {1 << 27}",
              f"v_cndmask_b32 v{vT}, v{vT+1}, v{vT}, vcc", VM(f"buffer_load_dword v{vT+1}, v{vT}, s[{sCODE}:{sCODE+3}], s{sT0} offen", "code")]
    o += [f"""
    v_lshrrev_b32 v{vT+2}, 6, v0
    v_and_b32 v0, 63, v0
    v_readfirstlane_b32 s{sW}, v{vT+2}
    v_lshlrev_b32 v{vL16}, 4, v0
    s_and_b32 s{sHEAD}, s2, 7
    s_lshl_b32 s{sHEAD}, s{sHEAD}, 2
    s_bfe_u32 s{sT0}, s2, 0x20003
    s_add_u32 s{sHEAD}, s{sHEAD}, s{sT0}
    s_lshr_b32 s{sJ}, s2, 5
    s_and_b32 s{sC}, s2, 31
    v_lshrrev_b32 v{vT+2}, 3, v0
    v_and_b32 v{vT+3}, 7, v0
    """]
    r8, c8 = vT+2, vT+3
    o += [f"""
    v_mul_u32_u24 v{vT+4}, 6144, v{r8}
    v_lshl_add_u32 v{vT+4}, v{c8}, 4, v{vT+4}
    v_lshlrev_b32 v{vT+5}, 1, v{r8}
    v_lshrrev_b32 v{vT+6}, 1, v{r8}
    v_xor_b32 v{vT+6}, v{vT+6}, v{c8}
    v_lshlrev_b32 v{vT+6}, 4, v{vT+6}
    v_lshl_add_u32 v{vCD}, v{r8}, 10, v{vT+6}
    v_xor_b32 v{vCD+1}, 64, v{vCD}
    v_add_u32 v{vCD+1}, {7*1024}, v{vCD+1}
    v_add_u32 v{vCD+2}, {14*1024}, v{vCD}
    v_add_u32 v{vCD+3}, {14*1024}, v{vCD+1}
    v_and_b32 v{vT+6}, 2, v{r8}
    v_xor_b32 v{vT+6}, v{vT+6}, v{c8}
    v_lshlrev_b32 v{vT+6}, 4, v{vT+6}
    v_lshl_add_u32 v{vWD}, v{r8}, 13, v{vT+6}
    v_xor_b32 v{vWD+1}, 64, v{vWD}
    v_add_u32 v{vWD+1}, {65536-1024}, v{vWD+1}
    v_add_u32 v{vWD+2}, {2*(65536-1024)}, v{vWD}
    v_add_u32 v{vWD+3}, {2*(65536-1024)}, v{vWD+1}
    s_and_b32 s{sT0}, s2, 3
    s_lshl_b32 s{sT0}, s{sT0}, 7
    s_lshl_b32 s{sT1}, s{sW}, 5
    s_add_u32 s{sMF}, s{sT0}, s{sT1}
    s_lshl_b32 s{sHST}, s{sMF}, 1
    s_mul_i32 s{sMF}, s{sMF}, 6144
    s_lshr_b32 s{sMST}, s2, 2
    s_lshl_b32 s{sMST}, s{sMST}, 7
    s_add_u32 s{sMF}, s{sMF}, s{sMST}
    s_lshl_b32 s{sCOFF}, s{sJ}, 18
    s_lshl_b32 s{sT0}, s{sW}, 16
    s_add_u32 s{sCOFF}, s{sCOFF}, s{sT0}
    s_mul_i32 s{sM0C}, s{sW}, {CW}
    s_add_u32 s{sM0C}, s{sM0C}, {CBUF}
    s_and_b32 s{sT0}, s{sW}, 1
    s_lshl_b32 s{sWKOFF}, s{sT0}, 18
    s_lshr_b32 s{sT1}, s{sW}, 1
    s_lshl_b32 s{sT1}, s{sT1}, 7
    s_add_u32 s{sWKOFF}, s{sWKOFF}, s{sT1}
    s_lshl_b32 s{sT1}, s{sHEAD}, 8
    s_add_u32 s{sWKOFF}, s{sWKOFF}, s{sT1}
    s_lshl_b32 s{sWVOFF}, s{sW}, 18
    s_add_u32 s{sWVOFF}, s{sWVOFF}, s{sT1}
    s_lshl_b32 s{sM0K}, s{sW}, 12
    s_waitcnt lgkmcnt(0)
    """]
    if SM == "P": o += ["s_memrealtime s[92:93]"]
    o += srd(sMOD, P("wmod"), 512*6144) + srd(sCV, P("c"), 1024) + ["s_cmp_lt_u32 s2, 192", f"s_cselect_b32 s{sMOD+2}, s{sMOD+2}, 0"]
    MW, MC, MA, MT = 64, 80, 84, 92
    for n in range(4): o += [VM(f"buffer_load_ushort v{MC+n}, v{vT+5}, s[{sCV}:{sCV+3}], s{sHST} offen offset:{16*n}", "modc")]
    for n in range(4):
        o += [VM(f"buffer_load_dwordx4 v[{MW+4*n}:{MW+4*n+3}], v{vT+4}, s[{sMOD}:{sMOD+3}], s{sMF} offen{NT1}", ("modw", n))]
        if n < 3: o += [f"s_add_u32 s{sMF}, s{sMF}, {8*6144}"]
    o += srd(sCKV, P("ckv"), 2*MB) + srd(sWK, P("wuk"), 4*MB)
    def c_dma(i):
        g = []
        for hh in range(2):
            grp = [f"s_add_u32 m0, s{sM0C}, {(i % 3)*8192 + hh*4096}", f"s_add_u32 s{sRS0}, s{sCOFF}, {i*128 + hh*32768}"]
            for n in range(4):
                grp.append(VM(f"buffer_load_dwordx4 v{vCD+n}, s[{sCKV}:{sCKV+3}], s{sRS0} offen offset:{n*1024}{' nt' if 'ntc' in opt.split() else ''} lds", ("c", i)))
                g.append(grp); grp = []
        return SEQ(g)
    def page(q): return RING + (q % 4) * 16384
    def w_dma(q):
        sTW = sRS1 if q <= 2 else sT1
        if q < 8: sd, off, m0 = sWK, f"s_add_u32 s{sTW}, s{sWKOFF}, {q*64*8192}", f"s{sM0K}, {page(q)}"
        elif q < 16:
            sd, off = sWV, f"s_add_u32 s{sTW}, s{sWVOFF}, {((q-8)&3)*128*8192 + ((q-8)>>2)*128}"
            m0 = f"s{sM0K}, {page(q)}" if q < 12 else f"s{sM0C}, {(q-12)*4096}"
        else: sd, off, m0 = sWQ, f"s_add_u32 s{sTW}, s{sWKOFF}, {(q-16)*64*8192}", f"s{sM0K}, {(q-16)*16384}"
        g = []; grp = [f"s_add_u32 m0, {m0}", off]
        for n in range(4):
            grp.append(VM(f"buffer_load_dwordx4 v{vWD+n}, s[{sd}:{sd+3}], s{sTW} offen offset:{n*1024}{' nt' if (q < 8 and 'ntk' in opt.split()) or (8 <= q < int(OV('ntv', 0))) else NT} lds", ("w", q)))
            g.append(grp); grp = []
        return SEQ(g)
    OPT = opt.split()
    def OV(k, d): return next((x.split("=")[1] for x in OPT if x.startswith(k + "=")), d)
    o += [c_dma(0), w_dma(0)] + (["s_memrealtime s[94:95]"] if SM == "P" else []) + srd(sWV, P("wuv"), 4*MB)
    OPT = opt.split()
    def OV(k, d): return next((x.split("=")[1] for x in OPT if x.startswith(k + "=")), d)
    vTD = vT+1
    vPC, vPW = 96, 97
    def pf_addr(vc, vw):
        return [f"v_lshrrev_b32 v{vw}, 4, v0", f"v_and_b32 v{vc}, 15, v0", f"v_lshlrev_b32 v{vc}, 4, v{vc}",
                f"v_lshl_add_u32 v{vw+1}, v{vw}, 13, v{vc}", f"v_lshl_add_u32 v{vc}, v{vw}, 10, v{vc}", f"v_mov_b32 v{vw}, v{vw+1}"]
    def pf_c(dummy):
        g = []; grp = [f"s_add_u32 m0, s{sM0C}, {dummy}", f"s_bfe_u32 s{sRS0}, s2, 0x20003", f"s_lshl_b32 s{sRS0}, s{sRS0}, 16", f"s_lshl_b32 s{sRS1}, s{sJ}, 18",
                       f"s_add_u32 s{sRS0}, s{sRS0}, s{sRS1}", f"s_lshl_b32 s{sRS1}, s{sW}, 14", f"s_add_u32 s{sRS0}, s{sRS0}, s{sRS1}"]
        for col in range(1, 4):
            for rg in range(4):
                grp += [f"s_add_u32 s{sRS1}, s{sRS0}, {rg*4096 + col*256}", VM(f"buffer_load_dwordx4 v{vPC}, s[{sCKV}:{sCKV+3}], s{sRS1} offen lds", "pf")]
                g.append(grp); grp = []
        return SEQ(g)
    def pf_w(sd, vw, dummy, first, sRS0=sRS0, sRS1=sRS1, reg=None):
        g = []; grp = [f"s_add_u32 m0, s{sM0C}, {dummy}", f"s_lshr_b32 s{sRS0}, s{sW}, 1", f"s_lshl_b32 s{sRS0}, s{sRS0}, 3", f"s_add_u32 s{sRS0}, s{sRS0}, s{sJ}",
                       f"s_lshl_b32 s{sRS0}, s{sRS0}, 1", f"s_and_b32 s{sRS1}, s{sW}, 1", f"s_add_u32 s{sRS0}, s{sRS0}, s{sRS1}", f"s_lshl_b32 s{sRS0}, s{sRS0}, 15",
                       f"s_lshl_b32 s{sRS1}, s{sHEAD}, 8", f"s_add_u32 s{sRS0}, s{sRS0}, s{sRS1}"]
        for q in range(first, 8, 2):
            if reg is not None and q == first: grp = grp[1:]
            grp += [f"s_add_u32 s{sRS1}, s{sRS0}, {q*64*8192}", VM(f"buffer_load_dwordx4 v{vw}, s[{sd}:{sd+3}], s{sRS1} offen{NTT} lds" if reg is None else
                                                                    f"buffer_load_dwordx4 {vr(reg, 4)}, v{vw}, s[{sd}:{sd+3}], s{sRS1} offen{NTT}", "pf")]
            g.append(grp); grp = []
        return SEQ(g)
    PF = "nopf" not in OPT
    o += pf_addr(vPC, vPW)
    pfa = (pf_w(sWK, vPW, 16384, 2) if "pfk" in OPT else []) + (pf_c(16384) if "pfc" in OPT else [])
    NPRE = int(OV("npre", 2))
    ilv = sum((c_dma(i) + w_dma(i) for i in range(1, NPRE + 1)), []) if "ilv" in OPT else []
    pro0 = len(o)
    o += ([] if ilv else [c_dma(1), w_dma(1)]) + ([pfa] if "pfpre" in OPT else []) + (["s_memrealtime s[96:97]"] if SM == "P" else []) + srd(sWS, P("ws"), WS_SIZE)
    KF, VF, SF = 0, 5120, 6144
    vZA, vZD = vT+14, vT+15
    o += [f"""
    v_lshlrev_b32 v{vZA}, {8 + FS}, v0
    s_lshl_b32 s{sT0}, s2, {FS}
    s_add_u32 s{sT0}, s{sT0}, 8192
    v_add_u32 v{vZA}, s{sT0}, v{vZA}
    s_lshl_b32 s{sT0}, s{sHEAD}, 5
    s_lshl_b32 s{sT1}, s{sJ}, 2
    s_add_u32 s{sT0}, s{sT0}, s{sT1}
    v_writelane_b32 v{vZA}, s{sT0}, 0
    s_add_u32 s{sT0}, s{sT0}, {VF}
    v_writelane_b32 v{vZA}, s{sT0}, 5
    s_lshl_b32 s{sT0}, s2, 2
    s_add_u32 s{sT0}, s{sT0}, {SF}
    v_writelane_b32 v{vZA}, s{sT0}, 6
    v_mov_b32 v{vZD}, {1 << 27}
    v_cmp_gt_u32 vcc, 7, v0
    v_cndmask_b32 v{vZA}, v{vZD}, v{vZA}, vcc
    v_mov_b32 v{vZD}, 0
    s_mov_b32 s{sSPIN}, {WS_FLAG}
    s_cmp_eq_u32 s{sW}, 0
    s_cselect_b32 s{sSPIN}, s{sSPIN}, {OOB:#x}
    """, VM(f"buffer_store_dword v{vZD}, v{vZA}, {WS}, s{sSPIN} offen sc1", "zero")]
    for i in (32768, 65536) if CPM == "all" else ():
        o += [f"s_mov_b32 s{sT0}, {i}", VM(f"buffer_load_dword v{vT+1}, v{vT}, s[{sCODE}:{sCODE+3}], s{sT0} offen", "code2")]
    o += srd(sX, P("x"), 2*MB) + srd(sDBG, P("dbg"), 256) + srd(sWQ, P("wq"), 4*MB) + srd(sWO, P("wo"), 4*MB)
    EARLY = "s_waitcnt lgkmcnt(0)\ns_mov_b32 s66, s92\ns_mov_b32 s68, s94\ns_mov_b32 s72, s96" if SM == "P" else ""
    PW2 = 100 if not ts else 74
    o += srd(sU2, P("w1"), 1792*1024) + [f"""
    s_mov_b64 s[{PW2}:{PW2+1}], s[{P('w2')}:{P('w2')+1}]
    {EARLY}
    s_mov_b64 s[{pX}:{pX+1}], s[{P('x')}:{P('x')+1}]
    s_mov_b64 s[{pB1}:{pB1+1}], s[{P('b1')}:{P('b1')+1}]
    s_mov_b64 s[{pB2}:{pB2+1}], s[{P('b2')}:{P('b2')+1}]
    s_mov_b64 s[{pOUT}:{pOUT+1}], s[{P('out')}:{P('out')+1}]
    v_lshrrev_b32 v{vT+6}, 4, v0
    v_bfe_u32 v{vT+7}, v0, 2, 2
    v_lshl_add_u32 v{vT+8}, v{vT+6}, 3, v{vT+7}
    v_lshlrev_b32 v{vT+8}, 7, v{vT+8}
    v_and_b32 v{vT+9}, 3, v0
    v_lshl_add_u32 v{vT+8}, v{vT+9}, 3, v{vT+8}
    v_and_b32 v{vT+9}, 1, v{vT+6}
    v_lshlrev_b32 v{vT+9}, 1, v{vT+9}
    v_lshrrev_b32 v{vT+10}, 1, v{vT+7}
    v_or_b32 v{vT+9}, v{vT+9}, v{vT+10}
    v_lshl_add_u32 v{vTR}, v{vT+9}, 5, v{vT+8}
    v_xor_b32 v{vTR+1}, 32, v{vTR}
    v_xor_b32 v{vTR+2}, 64, v{vTR}
    v_xor_b32 v{vTR+3}, 0x60, v{vTR}
    v_and_b32 v{vT+7}, 15, v0
    v_lshrrev_b32 v{vT+8}, 1, v{vT+7}
    v_xor_b32 v{vT+8}, v{vT+8}, v{vT+6}
    v_lshlrev_b32 v{vT+8}, 4, v{vT+8}
    v_lshl_add_u32 v{vT+8}, v{vT+7}, 7, v{vT+8}
    v_add_u32 v{vCR}, s{sM0C}, v{vT+8}
    v_xor_b32 v{vCR+1}, 64, v{vCR}
    s_lshl_b32 s{sKST}, s{sHEAD}, 20
    s_lshl_b32 s{sT0}, s{sJ}, 17
    s_add_u32 s{sKST}, s{sKST}, s{sT0}
    s_lshl_b32 s{sT0}, s{sW}, 15
    s_add_u32 s{sKST}, s{sKST}, s{sT0}
    s_add_u32 s{sVST}, s{sKST}, 16384
    s_and_b32 s{sT0}, s2, 3
    s_mul_i32 s{sT0}, s{sT0}, 12288
    s_lshl_b32 s{sMST}, s{sMST}, 1
    s_add_u32 s{sMST}, s{sMST}, s{sT0}
    s_add_u32 s{sMST}, s{sMST}, {WS_MODP}
    s_cmp_lt_u32 s2, 192
    s_cselect_b32 s{sT0}, s{sW}, 1
    s_cmp_eq_u32 s{sT0}, 0
    s_cselect_b32 s{sMST}, s{sMST}, {OOB:#x}
    s_and_b32 s{sATO}, s2, 63
    s_lshl_b32 s{sATO}, s{sATO}, 2
    s_cmp_eq_u32 s{sW}, 0
    s_cselect_b32 s{sATO}, s{sATO}, 256
    s_cmp_ge_u32 s{sW}, 2
    s_cselect_b32 s{sADD}, 1.0, 0
    """]
    o += st("P") + [W(vm="code" if SM == "P" else "modc")] + st("P") + [W(vm="modc")] + st("P")
    for n in range(4): o += [f"v_lshlrev_b32 v{MC+n}, 16, v{MC+n}"]
    for n in range(4): o += [f"v_mul_f32 v{MT+n}, {fbits(-1.4426950408889634)}, v{MC+n}"]
    for n in range(4): o += [f"v_exp_f32 v{MT+n}, v{MT+n}"]
    for n in range(4): o += [f"v_add_f32 v{MT+n}, 1.0, v{MT+n}"]
    for n in range(4): o += [f"v_rcp_f32 v{MT+n}, v{MT+n}"]
    for n in range(4): o += [f"v_mul_f32 v{MC+n}, v{MC+n}, v{MT+n}"]
    for n in range(4): o += [f"v_cvt_pk_bf16_f32 v{MC+n}, v{MC+n}, v{MC+n}"]
    for n in range(4): o += [f"v_lshlrev_b32 v{MC+n}, 16, v{MC+n}"]
    for n in range(4):
        o += [W(vm=[("modw", n)])]
        for j in range(4):
            o += [f"v_lshlrev_b32 v{MT}, 16, v{MW+4*n+j}", f"v_and_b32 v{MT+1}, 0xffff0000, v{MW+4*n+j}"]
            if n == 0: o += [f"v_mul_f32 v{MA+2*j}, v{MC}, v{MT}", f"v_mul_f32 v{MA+2*j+1}, v{MC}, v{MT+1}"]
            else: o += [f"v_fmac_f32 v{MA+2*j}, v{MC+n}, v{MT}", f"v_fmac_f32 v{MA+2*j+1}, v{MC+n}, v{MT+1}"]
    for j in range(8): o += [f"v_add_f32_dpp v{MA+j}, v{MA+j}, v{MA+j} row_ror:8 row_mask:0xf bank_mask:0xf"]
    for j in range(0, 8, 2): o += [f"v_permlane16_swap_b32 v{MA+j}, v{MA+j+1}"]
    for j in range(0, 8, 2): o += [f"v_add_f32 v{MA+j}, v{MA+j}, v{MA+j+1}"]
    for j in (0, 4): o += [f"v_permlane32_swap_b32 v{MA+j}, v{MA+j+2}"]
    for j in (0, 4): o += [f"v_add_f32 v{MA+j}, v{MA+j}, v{MA+j+2}"]
    vL4, vL256, vONE = vT+4, vT+5, vT+6
    o += [f"""
    v_lshrrev_b32 v{MT}, 4, v0
    v_lshl_add_u32 v{MT}, v{c8}, 3, v{MT}
    v_lshlrev_b32 v{MT}, 2, v{MT}
    s_lshl_b32 s{sT0}, s{sW}, 8
    v_add_u32 v{MT}, s{sT0}, v{MT}
    """, LG(f"ds_write_b32 v{MT}, v{MA} offset:{MODRED}", "mr"), LG(f"ds_write_b32 v{MT}, v{MA+4} offset:{MODRED+16}", "mr"),
    f"v_lshlrev_b32 v{vL4}, 2, v0", f"v_lshlrev_b32 v{vL256}, 8, v0", f"v_mov_b32 v{vONE}, 1"]
    def Cfrag(kt, s): return ar((s*4+kt)*4, 4)
    def c_reads(i):
        return [LG(f"ds_read_b128 {Cfrag(kt, 2*i+sp)}, v{vCR+sp} offset:{(i % 3)*8192 + kt*2048}", ("cr", i)) for sp in range(2) for kt in range(4)]
    if ilv:
        rest = scc_groups(o[pro0:]); n_ = len(rest)
        for k in reversed(range(len(ilv))): rest.insert((k*n_)//len(ilv), ilv[k])
        o = o[:pro0] + rest
    o += st("P") + [W(vm=[("c", 0)])] + st("P") + [c_reads(0), W(vm=[("w", 0)], lg="mr")] + st("P") + ["s_barrier"] + st("P")

    QA, HR = 64, 192
    aK, aV = 128, 160
    def accK(dt, kt): return ACC + (dt*4+kt)*4
    def acc(dt, qi): return QA + (dt*4+qi)*4
    HE = "he" in OPT
    def Hf(s, qi): return vr((0 if HE and 4 <= s < 8 else HR) + ((s & 3)*4+qi)*4, 4, "a" if s & 4 else "v")
    frags = []
    for s2 in range(0, 16, 2):
        for dt in range(8):
            for s in (s2, s2+1):
                frags.append((s >> 1, page(s >> 1) + (dt >> 2)*8192 + (s & 1)*4096, dt & 3, [(accK(dt, kt), "W", Cfrag(kt, s), s == 0) for kt in range(4)]))
    for s2 in range(0, 16, 2):
        for t in range(4):
            for s in (s2, s2+1):
                frags.append((8 + (s >> 2), page(8 + (s >> 2)) + (s & 3)*4096, t, [(X + (t*4+kt)*4, Cfrag(kt, s), "W", s == 0) for kt in range(4)]))
    for hb in range(2):
        for s2 in range(0, 16, 2):
            for t in (2*hb, 2*hb+1):
                for s in (s2, s2+1):
                    frags.append((12 + (s >> 2), CBUF + (s & 3)*CW + (s >> 2)*4096, t, [(ACC + (t*4+kt)*4, Cfrag(kt, s), "W", s == 0) for kt in range(4)]))
    for s2 in range(0, 16, 2):
        for dt in range(8):
            for s in (s2, s2+1):
                frags.append((16 + (s >> 1), (s >> 1)*16384 + (dt >> 2)*8192 + (s & 1)*4096, dt & 3, [(acc(dt, qi), "W", Hf(s, qi), s == 0) for qi in range(4)]))
    KE = "noke" not in OPT
    def wreg(f): return ("v", WF + (f % 8)*4) if f < 256 else (("a", aV + (f % 8)*4) if KE else ("a", aK + (f % 16)*4))
    slots = []
    CH = "nochain" not in OPT
    for f in range(0, len(frags), 2):
        for n, k in ([(n, k) for n in range(4) for k in range(2)] if CH else [(n, k) for k in range(2) for n in range(4)]):
            fl, r = wreg(f + k); wf = vr(r, 4, fl); d, a_, b_, first = frags[f + k][3][n]
            sl = Slot(I(f"v_mfma_f32_16x16x32_bf16 {vr(d,4)}, {wf if a_ == 'W' else a_}, {wf if b_ == 'W' else b_}, {'0' if first else vr(d,4)}"))
            if n == 0 and k == 0:
                sl.pre.append(W(lg=[("wf", f+1)]))
                if f < 128 and f % 16 == 0: sl.pre.append(W(lg=[("cr", f//16)]))
                if f >= 256 and f % 16 == 0: sl.pre.append(W(vm=[("h", (f-256)//8 + 1)]))
            slots.append(sl)
    LA = 4
    wbase = [0]; bar = {}
    vTR2 = vCD
    def frag_reads(f):
        q, a, t, _ = frags[f]; g = []
        fl, r = wreg(f)
        if a >= 131072: return g, [LG(f"ds_read_b64_tr_b16 {vr(r+2*hh, 2, fl)}, v{vTR2+t} offset:{a - 131072 + hh*512}", ("wf", f)) for hh in range(2)]
        wb = a & 65536
        if wb != wbase[0]:
            g += [f"v_xor_b32 v{vTR+i}, 0x10000, v{vTR+i}" for i in range(4)]; wbase[0] = wb
        return g, [LG(f"ds_read_b64_tr_b16 {vr(r+2*hh, 2, fl)}, v{vTR+t} offset:{a - wb + hh*512}", ("wf", f)) for hh in range(2)]
    for f in range(LA):
        g, rd = frag_reads(f); o += g + rd
    valid = {0}
    VAL = {12: [12, 13, 14, 15], 16: [16, 17, 18, 19]}
    for f in range(LA, len(frags)):
        q = frags[f][0]; i = (f - LA)*4
        if q not in valid or (q > 16 and f % 16 == 0):
            qs = VAL.get(q, [q]); valid.update(qs); bar[q] = i - 1
            slots[i-1].alu += [W(vm=[("w", x) for x in qs]), I("s_barrier")]
        g, rd = frag_reads(f)
        slots[i-1].alu += flat(g)
        slots[i].mem.append(rd[0]); slots[i+1].mem.append(rd[1])
    def put(groups, b, step=4, where="mem"):
        for n, g in enumerate(groups): getattr(slots[b + step*n], where).append(g)
    def up(b, r):
        while (b & 3) != r: b += 1
        return b
    def lq(groups, b):
        put(groups, up(b, 3)); return up(b, 3) + 4*(len(groups) - 1)
    vused = set()
    def vq(groups, b, stride=1):
        k = up(b, 2) >> 2; last = b
        for g in groups:
            while k in vused: k += 1
            vused.add(k); slots[4*k + 2].mem.append(g); last = 4*k + 2; k += stride
        return last
    def sq(text, b, e): spread(slots, SEQ(scc_groups(text)), b, e)
    def before_bar(q, items): slots[bar[q]].alu[0:0] = flat(items)
    def pre(items, groups): groups[0] = flat(items) + groups[0]; return groups
    cend = {}
    for p in range(7):
        rd = c_reads(p+1); rd[0] = [W(vm=[("c", p+1)]), rd[0]]
        cend[p+1] = lq(rd, p*64 + int(OV('crd', 20)))
    MR = vT + 8
    vq([[W(lg="mr2"), f"v_add_f32 v{MR}, v{MR}, v{MR+1}", f"v_add_f32 v{MR+2}, v{MR+2}, v{MR+3}", f"v_add_f32 v{MR}, v{MR}, v{MR+2}",
         VM(f"buffer_store_dword v{MR}, v{vL4}, {WS}, s{sMST} offen sc1", "mst")]], 14)
    sq([f"v_and_b32 v{vTR2+i}, 0xffff, v{vTR+i}" for i in range(4)] + [f"v_or_b32 v{vTR2+i}, 0x20000, v{vTR2+i}" for i in range(4)], 520, 540)
    lq([LG(f"ds_read2st64_b32 v[{MR}:{MR+1}], v{vL4} offset0:192 offset1:193", "mr2"),
        LG(f"ds_read2st64_b32 v[{MR+2}:{MR+3}], v{vL4} offset0:194 offset1:195", "mr2")], 0)
    vq([[W(vm=["mst", "zero"]), VM(f"buffer_atomic_add v{vONE}, v{vL256}, s[{sDBG}:{sDBG+3}], s{sATO} offen sc1")]], 100)
    XR, F0, F1, TT, AV, BV, PP, MF = 64, 72, 80, 88, 92, 100, 108, 124
    sq([f"""
    s_sub_u32 s{sHST}, 15, s{sJ}
    s_cmp_lt_u32 s{sC}, 16
    s_cselect_b32 s{sHST}, s{sJ}, s{sHST}
    s_lshl_b32 s{sHST}, s{sHST}, 4
    s_and_b32 s{sMF}, s{sC}, 15
    s_add_u32 s{sHST}, s{sHST}, s{sMF}
    s_lshl_b32 s{sMF}, s{sHST}, 13
    s_lshl_b32 s{sSPIN}, s{sW}, 11
    s_add_u32 s{sMF}, s{sMF}, s{sSPIN}
    """], 20, 40)
    xe = vq([VM(f"buffer_load_dwordx4 {vr(XR+4*k,4)}, v{vL16}, s[{sX}:{sX+3}], s{sMF} offen offset:{1024*k}{' nt' if 'ntx' in OPT else ''}", "x") for k in range(2)], 104)

    g = []
    for j in range(4):
        for F, xr in ((F0, XR), (F1, XR+4)): g += [f"v_lshlrev_b32 v{F+2*j}, 16, v{xr+j}", f"v_and_b32 v{F+2*j+1}, 0xffff0000, v{xr+j}"]
    g[0] = [W(vm="x"), g[0]]
    def reduce2(sa, sb, post):
        r = []
        for m in ("quad_perm:[1,0,3,2]", "quad_perm:[2,3,0,1]", "row_ror:4", "row_ror:8"):
            r += [f"v_add_f32_dpp v{TT}, v{TT}, v{TT} {m} row_mask:0xf bank_mask:0xf", f"v_add_f32_dpp v{TT+1}, v{TT+1}, v{TT+1} {m} row_mask:0xf bank_mask:0xf"]
        r += [f"v_permlane16_swap_b32 v{TT}, v{TT+1}", f"v_add_f32 v{TT}, v{TT}, v{TT+1}", f"v_mov_b32 v{TT+1}, v{TT}",
              f"v_permlane32_swap_b32 v{TT}, v{TT+1}", f"v_add_f32 v{TT}, v{TT}, v{TT+1}"] + post
        return r + [f"v_readlane_b32 s{sa}, v{TT}, 0", f"v_readlane_b32 s{sb}, v{TT}, 16"]
    for j in range(1, 8):
        for k, F in enumerate((F0, F1)): g += [f"v_add_f32 v{TT+k}, v{F if j == 1 else TT+k}, v{F+j}"]
    g += reduce2(sMEAN0, sMEAN1, [f"v_mul_f32 v{TT}, {fbits(1/512)}, v{TT}"])
    for j in range(8):
        for F, sm in ((F0, sMEAN0), (F1, sMEAN1)): g += [f"v_subrev_f32 v{F+j}, s{sm}, v{F+j}"]
    for j in range(8):
        for k, F in enumerate((F0, F1)): g += [f"v_mul_f32 v{TT+k}, v{F}, v{F}" if j == 0 else f"v_fmac_f32 v{TT+k}, v{F+j}, v{F+j}"]
    g += reduce2(sRS0, sRS1, [f"v_mov_b32 v{TT+1}, {fbits(EPS)}", f"v_fmac_f32 v{TT+1}, {fbits(1/512)}, v{TT}", f"v_rsq_f32 v{TT}, v{TT+1}"])
    for j in range(8):
        for F, rs in ((F0, sRS0), (F1, sRS1)): g += [f"v_mul_f32 v{F+j}, s{rs}, v{F+j}"]
    assert xe < 200
    spread(slots, g, max(xe + 60, 200), 360)
    ld = f"buffer_load_dword v{MR}, v{vL4}, s[{sDBG}:{sDBG+3}], 0 offen sc1"
    vq([VM(ld, "poll1")], 226)
    e = 0
    if pfa and "pfpre" not in OPT:
        for k, g in enumerate(pfa): slots[2*k + 1].alu.append(g)
        e = 2*len(pfa) + 2
    CP = int(OV("cp", 0))
    sPC, sPW = sWVOFF + 0, sVST + 0
    def cp_c(i): return [[VM(f"buffer_load_dwordx4 v[28:31], v{vCD}, s[{sCKV}:{sCKV+3}], s0 offen offset:{i*128}", "pf")] + ([f"s_xor_b32 s0, s0, 8192"])for n in range(2)] if CP and i < 8 else []
    def cp_w(q): return [[VM(f"buffer_load_dwordx4 v[28:31], v{vPW}, s[{sWK}:{sWK+3}], s1 offen", "pf"), f"s_add_u32 s1, s1, {2*64*8192}"]] if CP > 1 and q < 8 else []
    if CP:
        def vx(groups, b): put(groups, up(b, 0))
        vx(cp_c(3) + cp_w(3), 0); e = vq(c_dma(2), 0); e = vq(w_dma(2), e)
        for i in range(3, 8):
            vx(cp_c(i+1) + (cp_w(i+2) if i & 1 else []), max(e, cend.get(i-3, 0) + 8) - int(OV("cpl", 0)))
            e = vq(pre([W(lg=[("cr", i-3)])], c_dma(i)), max(e, cend.get(i-3, 0) + 8)); assert e < (i-1)*64 + 10, (i, e)
            if i < 7: e = vq(w_dma(i), max(e, bar[i-2]))
    BU = int(OV("burst", 0))
    if BU:
        first = c_dma(2) + w_dma(2) + c_dma(3)
        for k, g in enumerate(first): slots[k*BU//2].mem.append(g)
        for k in range((len(first)*BU//2)//4 + 1): vused.add(k)
        e = len(first)*BU//2
    elif not CP: e = vq(c_dma(2), e); e = vq(w_dma(2), e)
    if not BU and not CP: e = vq(c_dma(3), e)
    if not CP: e = vq(w_dma(3), max(e, bar[1]))
    for i in range(4, 8 if not CP else 0):
        e = vq(pre([W(lg=[("cr", i-3)])], c_dma(i)), max(e, cend[i-3] + 8))
        assert e < (i-1)*64 - 10, (i, e)
        if i < 7: e = vq(w_dma(i), max(e, bar[i-2]))
    before_bar(5, check(ld, f"v_cmp_gt_u32 vcc, 4, v{MR}", sSPIN, "poll1"))
    sq([f"s_lshl_b32 s{sMF}, s{sW}, 10", f"s_add_u32 s{sMF}, s{sMF}, {WS_MODP}"], bar[5] - 8, bar[5] - 4)
    e = vq([[VM(f"buffer_load_dwordx4 {vr(PP+4*n,4)}, v{vL16}, {WS}, s{sMF} offen sc1", "pp"), f"s_add_u32 s{sMF}, s{sMF}, 12288"] for n in range(4)], bar[5] + 1)
    g = [[VM(f"buffer_load_dword v{MF+n}, v{vL4}, {WS}, s{sMF} offen sc1", "mf"), f"s_add_u32 s{sMF}, s{sMF}, 12288"] for n in range(4)]
    e = vq(pre([f"s_lshl_b32 s{sMF}, s{sC}, 10", f"s_lshl_b32 s{sSPIN}, s{sW}, 8", f"s_add_u32 s{sMF}, s{sMF}, s{sSPIN}",
                f"s_mul_i32 s{sSPIN}, s{sJ}, 12288", f"s_add_u32 s{sSPIN}, s{sSPIN}, s{sMF}", f"s_add_u32 s{sSPIN}, s{sSPIN}, {WS_MODF}",
                f"s_add_u32 s{sMF}, s{sMF}, {WS_MODP}", f"s_cmp_lt_u32 s{sC}, 12",
                f"s_cselect_b32 s{sMF}, s{sMF}, {OOB:#x}", f"s_cselect_b32 s{sSPIN}, s{sSPIN}, {OOB:#x}"], g), e)
    assert e < 372
    e = vq(w_dma(7), max(e, bar[5])); assert e < bar[7] - 60
    if PF and "nopv" not in OPT: e = vq(pre([W(lg=[("cr", 5)])], pf_w(sWV, vPW, 16384 + 6144, 0, sX, sX+1)), max(e, cend[5] + 8))
    e = vq(w_dma(8), max(e, bar[6]))
    if PF and "pq1" in OPT: e = vq(pf_w(sWQ, vPW, 16384 + 6144, 0, sX, sX+1), e + 16); assert e < bar[7]
    e = vq(w_dma(9), max(e, bar[7]))
    if PF and OV("pqs", None):
        sq([f"v_mov_b32 v{vT+12}, v{vPW}"], 300, 301); e_ = vq(pf_w(sWQ, vT+12, 0, 0, sX+2, sX+3, reg=vCD), int(OV("pqs", 0)), int(OV("pqd", 8))); assert e_ < 516
    elif PF and "pq1" not in OPT:
        sq([f"v_mov_b32 v{vT+12}, v{vPW}"], 400, 401); e = vq(pf_w(sWQ, vT+12, 16384 + 6144, 0, sX, sX+1), max(e, 470)); assert e < bar[8]
    e = e; e = vq(w_dma(10), max(e, bar[8] + 14))
    e = vq(w_dma(12), e + 8); e = vq(w_dma(11), max(e, bar[9] + 6)); e = vq(w_dma(13), e + 8); e = vq(w_dma(14), e + 12); e = vq(w_dma(15), e + 12)
    assert e < 690
    g = [[W(vm="pp"), f"v_add_f32 v{PP}, v{PP}, v{PP+4}"]] + [f"v_add_f32 v{PP+j}, v{PP+j}, v{PP+4+j}" for j in range(1, 4)]
    g += [f"v_add_f32 v{PP+8+j}, v{PP+8+j}, v{PP+12+j}" for j in range(4)] + [f"v_add_f32 v{PP+j}, v{PP+j}, v{PP+8+j}" for j in range(4)]
    g += rnd(PP, PP+1, PP+4) + rnd(PP+2, PP+3, PP+5) + [f"v_add_f32 v{PP+j}, s{sADD}, v{PP+j}" for j in range(4)]
    g += rnd(PP, PP+1, PP+4) + rnd(PP+2, PP+3, PP+5) + [f"v_mul_f32 v{PP+j}, {fbits(CSCALE)}, v{PP+j}" for j in range(4)]
    g += [f"s_lshl_b32 s{sMF}, s{sW}, 10", f"s_add_u32 s{sMF}, s{sMF}, {MODV}", f"v_add_u32 v{PP+4}, s{sMF}, v{vL16}", f"v_lshlrev_b32 v{TT}, 5, v0", f"v_add_u32 v{TT}, {MODV}, v{TT}"]
    g += [[W(vm="mf"), f"v_add_f32 v{MF}, v{MF}, v{MF+1}"], f"v_add_f32 v{MF+2}, v{MF+2}, v{MF+3}", f"v_add_f32 v{MF}, v{MF}, v{MF+2}",
          f"v_cvt_pk_bf16_f32 v{MF}, v{MF}, v{MF}", f"v_lshlrev_b32 v{vT+11}, 16, v{MF}"]
    spread(slots, g, 372, 424)
    lq([LG(f"ds_write_b128 v{PP+4}, {vr(PP,4)}", "mv")], 425)
    assert bar[7] > 427
    before_bar(7, [W(lg="mv")])
    put([LG(f"ds_read_b128 {vr(r,4)}, v{TT} offset:{off}", "ab") for r, off in ((BV, 0), (BV+4, 16), (AV, 2048), (AV+4, 2064))], bar[7] + 1, 2)
    g = []
    for j in range(8):
        for F in (F0, F1): g += [f"v_fma_f32 v{F+j}, v{F+j}, v{AV+j}, v{BV+j}"]
    g[0] = [W(lg="ab"), g[0]]
    for j in range(4):
        for F, xr in ((F0, XR), (F1, XR+4)): g += [f"v_cvt_pk_bf16_f32 v{xr+j}, v{F+2*j}, v{F+2*j+1}"]
    HA, HG, HD = vT+2, vT+3, vT+12
    g += [f"s_lshr_b32 s{sMF}, s{sW}, 1", f"s_mul_i32 s{sMF}, s{sMF}, {CW - 4160}", f"s_mul_i32 s{sADD}, s{sW}, 2080", f"s_add_u32 s{sMF}, s{sMF}, s{sADD}",
          f"s_add_u32 s{sMF}, s{sMF}, {HSTA}", f"v_add_u32 v{TT}, s{sMF}, v{vL16}"]
    g += [x.t for x in flat([f"""
    v_and_b32 v{HG}, 7, v0
    v_lshrrev_b32 v{TT+2}, 3, v0
    v_mul_u32_u24 v{HA}, 1040, v{HG}
    v_lshrrev_b32 v{TT+3}, 2, v{HG}
    v_mul_u32_u24 v{TT+3}, {CW - 4160}, v{TT+3}
    v_add_u32 v{HA}, v{HA}, v{TT+3}
    v_lshl_add_u32 v{HA}, v{TT+2}, 4, v{HA}
    s_lshl_b32 s{sMF}, s{sW}, 8
    s_add_u32 s{sMF}, s{sMF}, {HSTA}
    v_add_u32 v{HA}, s{sMF}, v{HA}
    v_lshlrev_b32 v{HG}, 4, v{HG}
    v_and_b32 v{TT+3}, 3, v{TT+2}
    v_lshl_add_u32 v{HG}, v{TT+3}, 8, v{HG}
    v_lshrrev_b32 v{TT+2}, 2, v{TT+2}
    v_lshl_add_u32 v{HG}, v{TT+2}, 10, v{HG}
    s_and_b32 s{sMF}, s{sHST}, 1
    s_lshr_b32 s{sHST}, s{sHST}, 1
    s_lshl_b32 s{sHST}, s{sHST}, 14
    s_lshl_b32 s{sMF}, s{sMF}, 7
    s_add_u32 s{sHST}, s{sHST}, s{sMF}
    s_lshl_b32 s{sMF}, s{sW}, 12
    s_add_u32 s{sHST}, s{sHST}, s{sMF}
    s_add_u32 s{sHST}, s{sHST}, {WS_H}
    """])]
    spread(slots, g, bar[7] + 12, 488)
    put([LG(f"ds_write_b128 v{TT}, {vr(XR+4*k,4)} offset:{1040*k}", "hw") for k in range(2)], 489, 2)
    assert bar[8] > 491
    before_bar(8, [W(lg="hw")])
    put([LG(f"ds_read_b128 {vr(XR+56+4*k,4)}, v{HA} offset:{128*k}", "hr") for k in range(2)], bar[8] + 1, 1)
    e = vq([VM(f"buffer_store_dword v{vT+11}, v{vL4}, {WS}, s{sSPIN} offen sc1", "hst")] +
           [[W(lg="hr"), VM(f"buffer_store_dwordx4 {vr(XR+56+4*k,4)}, v{HG}, {WS}, s{sHST} offen offset:{2048*k} sc1", "hst")] for k in range(2)], bar[8] + 1)
    assert e < 524
    HB_ = int(OV("hb", 10))
    before_bar(HB_, [W(vm="hst")])
    sq(flag_off(sMF, 0, True), bar[HB_] - 12, bar[HB_] - 11)
    vq([publish(vT+2, sMF)], bar[HB_] + 1)
    def pack(dst, qa, qb):
        return [f"v_cvt_pk_bf16_f32 v{dst}, v{qa}, v{qa+1}", f"v_cvt_pk_bf16_f32 v{dst+1}, v{qa+2}, v{qa+3}",
                f"v_cvt_pk_bf16_f32 v{dst+2}, v{qb}, v{qb+1}", f"v_cvt_pk_bf16_f32 v{dst+3}, v{qb+2}, v{qb+3}"]
    def store(src, sreg, off, tag):
        return [f"s_add_u32 s{sT0}, s{sreg}, {off & ~4095}", VM(f"buffer_store_dwordx4 {vr(src,4)}, v{vL16}, {WS}, s{sT0} offen offset:{off & 4095} sc1", tag)]
    def at23(e):
        while (e & 3) < 2: e += 1
        return e
    kl = [(s4, kt) for s4 in (2, 3, 0, 1) for kt in range(4)]
    for n, (s4, kt) in enumerate(kl):
        dst = accK({2: 4, 3: 6, 0: 5, 1: 7}[s4], kt)
        b = 514 + n*(22 if n < 2 else 12) + (20 if n >= 2 else 0)
        put(pack(dst, accK(2*s4, kt), accK(2*s4+1, kt)), b, 2, "alu")
        e = vq([store(dst, sKST, (kt >> 1)*8192 + ((kt & 1)*4 + s4)*1024, "kst")], 530 + int(OV("ksp", 21))*n)
        assert b + 6 < 530 + int(OV("ksp", 21))*n and b + 6 < 764 and e < 880
    sH = 32; sUS, sUL = sMF, sHST
    slots[815].alu += [I("s_barrier")]
    if "ct2" in OPT:
        slots[860].alu.append(flat([f"Lb0_{N}:"])); vq([code_part(f"Lb0_{N}", f"Lfin_{N}", 14, 32, vT+10)], 640)
    for q, b in ((16, 690), (17, bar[11] + 30), (18, bar[12]), (19, 815)): e = vq(w_dma(q), b + 1)
    sq(flag_off(sSPIN, 0, False) + [f"v_and_b32 v{vT+2}, 31, v0", f"v_lshlrev_b32 v{vT+2}, {FS}, v{vT+2}"], 780, 800)
    ld = f"buffer_load_dword v{vT+3}, v{vT+2}, {WS}, s{sSPIN} offen sc1"
    vq([VM(ld, "poll2")], max(e, 836))
    sq([f"""
    s_lshl_b32 s{sUS}, s{sJ}, 2
    s_sub_u32 s{sUL}, 60, s{sUS}
    s_add_u32 s{sUS}, s{sUS}, s{sW}
    s_add_u32 s{sUL}, s{sUL}, s{sW}
    s_lshl_b32 s{sH}, s{sUL}, 15
    s_add_u32 s{sH}, s{sH}, {WS_H}
    s_add_u32 s{sH+1}, s{sH}, 16384
    s_lshl_b32 s{sH+2}, s{sUS}, 15
    s_add_u32 s{sH+2}, s{sH+2}, {WS_H}
    s_add_u32 s{sH+3}, s{sH+2}, 16384
    """], 850, 876)
    slots[883].alu += check(ld, f"v_cmp_ne_u32 vcc, 1, v{vT+3}", sADD, "poll2") + [I("s_barrier")]
    def h_ld(s):
        g = []
        for qi in range(4):
            x = [VM(f"buffer_load_dwordx4 {Hf(s, qi)}, v{vL16}, {WS}, s{sH+qi} offen offset:{(s&3)*1024} sc1", ("h", s))]
            if (s & 3) == 3: x.append(f"s_add_u32 s{sH+qi}, s{sH+qi}, 4096")
            g.append(x)
        return g
    for n in range(8):
        t, uu = n >> 1, n & 1; qa = X + (t*4+2*uu)*4
        put(pack(qa, qa, qa+4), 780 + 10*n, 2, "alu")
        e = vq([store(qa, sVST, uu*8192 + t*1024, "vst")], int(OV("va0", 872)) + int(OV("vap", 19))*n)
        assert e < 1020
    e = vq(h_ld(0) + h_ld(1) + h_ld(2) + h_ld(3), 884)
    assert e < 990
    if HE: e = vq(h_ld(4) + h_ld(5) + h_ld(6) + h_ld(7), max(e, 936)); assert e < 1060
    for n in range(8):
        t, uu = n >> 1, n & 1; qa = ACC + (t*4+2*uu)*4
        put(pack(WF + 4*n, qa, qa+4), 1024 + 3*n, 1, "alu") if n < 4 else put(pack(WF + 4*n, qa, qa+4), 1024 + 12 + 3*(n-4), 1, "alu")
        e = vq([store(WF + 4*n, sVST, uu*8192 + (4+t)*1024, "vst")], int(OV("vs0", 1050)) + int(OV("vsp", 20))*n); vend = e
    def kvflag(dst, base, own):
        r = [f"s_lshl_b32 s{dst}, s{sHEAD}, 5", f"s_add_u32 s{dst}, s{dst}, {WS_FLAG + base}"]
        if own: r += [f"s_lshl_b32 s{sT0}, s{sJ}, 2", f"s_add_u32 s{dst}, s{dst}, s{sT0}"]
        return r + [f"s_cmp_eq_u32 s{sW}, 0", f"s_cselect_b32 s{dst}, s{dst}, {OOB:#x}"]
    before_bar(16, [W(vm="kst")])
    sq(kvflag(sSPIN, KF, True), bar[16] - 12, bar[16] - 11)
    vq([publish(vT+2, sSPIN)], bar[16] + 1)
    for p in (0, 4, 8, 12): slots[p*64].alu += st()
    for p in range(15): slots[p*64].alu += st("A")
    for p in range(9, 24): slots[p*64].alu += st("B")
    B0 = 1024
    slots[B0].alu += st()
    sK, sCT = 12, 36; sMK = [24, 26, 32, 34]
    sKO, sCNT, sODW, sFL = 78, 86, 87, 90
    vKB, vVB, ONES, LS, PB, CB, TMP = 2, 3, 12, 16, 32, 192, 224
    sq([f"""
    s_lshl_b32 s{sKO}, s{sHEAD}, 20
    s_add_u32 s{sK}, s{sWS}, s{sKO}
    s_addc_u32 s{sK+1}, s{sWS+1}, 0
    s_sub_u32 s{sK+2}, 16, s{sJ}
    s_lshl_b32 s{sK+2}, s{sK+2}, 16
    s_mov_b32 s{sK+3}, 0x20000
    s_add_u32 s{sKO}, s{sM0K}, {4*32768}
    """], bar[20] + 1, bar[20] + 12)
    vF = LS
    sq(kvflag(sFL, KF, False) + [f"v_and_b32 v{vF}, 7, v0", f"v_lshlrev_b32 v{vF}, 2, v{vF}"], bar[19] - 20, bar[19] - 4)
    ld = f"buffer_load_dword v{vF+1}, v{vF}, {WS}, s{sFL} offen sc1"
    e = vq([VM(ld, "poll3")], bar[19]); assert e < bar[20] - 20
    before_bar(20, check(ld, f"v_cmp_ne_u32 vcc, 1, v{vF+1}", sCNT, "poll3"))
    VB = int(OV("vb", 21)); assert vend < bar[VB] - 20 and vend < bar[20] + 100
    before_bar(VB, [W(vm="vst")])
    sq(kvflag(sFL, VF, True), bar[VB] - 12, bar[VB] - 11)
    e = vq([publish(vF+2, sFL)], bar[VB] + 1)
    sq(kvflag(sFL, VF, False), e + 4, e + 12)
    vq([VM(ld, "poll4")], bar[23] + 1)
    LEAD = int(OV("lead", 120)); LEADH = int(OV("leadh", LEAD)); e = B0
    for s in range(8 if HE else 4, 16, 2):
        q = 16 + s//2
        if q >= 20: e = vq(w_dma(q), max(e, bar[17] + 1, bar[q] - LEAD)); assert e < bar[q] - 50
        e = vq(h_ld(s) + h_ld(s+1), max(e, B0 + (s-6)*32 if s < 12 or not HE else 0, B0 + s*32 - LEADH)); assert e < B0 + s*32 - 50, (s, e)
    hend = e
    vcheck = check(ld, f"v_cmp_ne_u32 vcc, 1, v{vF+1}", sCNT, "poll4")
    def kv_dma(which, tag, pair=None):
        if pair is None: so = sKO; grp = [f"s_and_b32 m0, s{sKO}, 0x1ffff"]
        else: so = sT1; grp = [f"s_add_u32 s{sT1}, s{sM0K}, {pair*32768 + (which == 'V')*16384}", f"s_mov_b32 m0, s{sT1}"]
        g = [grp]
        for n in range(4): g.append([VM(f"buffer_load_dwordx4 v{vL16}, s[{sK}:{sK+3}], s{so} offen offset:{n*1024} {OV('kvf', 'sc1').replace('none', '').replace('+', ' ')} lds", tag)])
        if pair is None: return SEQ(g + [[f"s_sub_u32 s{sKO}, s{sKO}, 16384" if which == "K" else f"s_add_u32 s{sKO}, s{sKO}, 49152"]])
        return SEQ([g[0] + g[1]] + g[2:])
    e = vq(kv_dma("K", ("K", 0), 0) + kv_dma("K", ("K", 1), 1), max(hend, bar[21] + 1))
    sS1, sD1, sD3, sS2, sX0, sX1, sW2 = 80, 7, 81, 91, 85, 83, 16; sD2 = [20, 21, 22, 23]
    vU1, vU2, vUT = TMP+12, TMP+16, TMP+20
    g = srd(sW2, PW2, 1792*1024) + [f"""
    s_lshl_b32 s{sX0}, s2, 2
    s_add_u32 s{sX0}, s{sX0}, s{sW}
    s_and_b32 s{sX0}, s{sX0}, 511
    s_lshr_b32 s{sS1}, s{sX0}, 3
    s_and_b32 s{sX1}, s{sX0}, 7
    s_lshl_b32 s{sD1}, s{sX1}, 7
    s_add_u32 s{sD1}, s{sD1}, s{sS1}
    s_lshl_b32 s{sD1}, s{sD1}, 12
    s_add_u32 s{sD1}, s{sD1}, {WS_WOF}
    s_mul_i32 s{sD3}, s{sX1}, 56
    s_add_u32 s{sD3}, s{sD3}, s{sS1}
    s_lshl_b32 s{sD3}, s{sD3}, 12
    s_add_u32 s{sD3}, s{sD3}, {WS_W2F}
    s_lshl_b32 s{sS1}, s{sS1}, 15
    s_lshl_b32 s{sX1}, s{sX1}, 7
    s_add_u32 s{sS1}, s{sS1}, s{sX1}
    s_and_b32 s{sX1}, s{sX0}, 15
    s_mul_i32 s{sS2}, s{sX1}, {32*3584}
    s_mul_i32 s{sX1}, s{sX1}, 7168
    s_add_u32 s{sX1}, s{sX1}, {WS_W1F}
    s_cmp_lt_u32 s{sX0}, 448
    s_cselect_b32 s{sX1}, s{sX1}, {OOB:#x}
    s_cselect_b32 s{sD3}, s{sD3}, {OOB:#x}
    s_cselect_b32 s{sU2+2}, s{sU2+2}, 0
    s_cmp_ge_u32 s2, 128
    s_cselect_b32 s{sWO+2}, s{sWO+2}, 0
    s_lshr_b32 s{sX0}, s{sX0}, 4
    s_lshl_b32 s{sD2[0]}, s{sX0}, 7
    s_add_u32 s{sS2}, s{sS2}, s{sD2[0]}
    s_lshl_b32 s{sX0}, s{sX0}, 2
    """] + [f"""
    s_mul_i32 s{sODW}, s{sX0}, 9363
    s_lshr_b32 s{sODW}, s{sODW}, 16
    s_mul_i32 s{sODW}, s{sODW}, {114688-7168}
    s_lshl_b32 s{sD2[t]}, s{sX0}, 10
    s_add_u32 s{sD2[t]}, s{sD2[t]}, s{sODW}
    s_add_u32 s{sD2[t]}, s{sD2[t]}, s{sX1}
    s_add_u32 s{sX0}, s{sX0}, 1
    """ for t in range(4)] + [f"""
    v_lshrrev_b32 v{vUT}, 3, v0
    v_and_b32 v{vUT+1}, 7, v0
    v_and_b32 v{vUT+2}, 6, v{vUT}
    v_xor_b32 v{vUT+2}, v{vUT+2}, v{vUT+1}
    v_lshlrev_b32 v{vUT+2}, 4, v{vUT+2}
    v_lshl_add_u32 v{vU1}, v{vUT}, 10, v{vUT+2}
    v_add_u32 v{vU1+1}, 7168, v{vU1}
    v_add_u32 v{vU1+2}, {2*7168}, v{vU1}
    v_add_u32 v{vU1+3}, {3*7168}, v{vU1}
    v_mul_u32_u24 v{vU2}, 3584, v{vUT}
    v_add_u32 v{vU2}, v{vU2}, v{vUT+2}
    v_add_u32 v{vU2+1}, {8*3584-1024}, v{vU2}
    v_add_u32 v{vU2+2}, {2*(8*3584-1024)}, v{vU2}
    v_add_u32 v{vU2+3}, {3*(8*3584-1024)}, v{vU2}
    v_lshrrev_b32 v{vUT+1}, 4, v0
    v_bfe_u32 v{vUT+2}, v0, 2, 2
    v_lshl_add_u32 v{vUT+1}, v{vUT+1}, 2, v{vUT+2}
    v_bfe_u32 v{vUT+2}, v{vUT+1}, 1, 2
    v_lshlrev_b32 v{vUT+1}, 7, v{vUT+1}
    v_lshl_add_u32 v{vUT+1}, v{vUT+2}, 5, v{vUT+1}
    v_and_b32 v{vUT+2}, 3, v0
    v_lshl_add_u32 v{vUT+1}, v{vUT+2}, 3, v{vUT+1}
    s_lshl_b32 s{sX0}, s{sW}, 13
    s_add_u32 s{sX0}, s{sX0}, 131072
    v_add_u32 v{vUT}, s{sX0}, v{vUT+1}
    v_xor_b32 v{vUT+1}, 32, v{vUT}
    v_xor_b32 v{vUT+2}, 64, v{vUT}
    v_xor_b32 v{vUT+3}, 0x60, v{vUT}
    """]
    sq(g[:-1], B0 + 250, B0 + 380); sq(g[-1:], B0 + 388, B0 + 432)
    def side_dma(rnd_):
        r = []
        for u, (vo, sd, so) in enumerate((((vU1, sWO, f"s{sS1}, 0"), (vU1, sWO, f"s{sS1}, {64*32768}")), ((vU1, sW2, f"s{sS1}, 0"), (vU2, sU2, f"s{sS2}, 0")))[rnd_]):
            d = [[VM(f"buffer_load_dwordx4 v{vo+n}, s[{sd}:{sd+3}], s{sT0} offen offset:{n*1024}{NT1} lds", "ud")] for n in range(4)]
            d[0] = [f"s_add_u32 m0, s{sX0}, {u*4096}", f"s_add_u32 s{sT0}, {so}"] + d[0]
            r += SEQ(d)
        return r
    def side_reads(): return [LG(f"ds_read_b64_tr_b16 {ar(192 + u*16 + t*4 + 2*hh, 2)}, v{vUT+t} offset:{u*4096 + hh*2048}", "ur") for u in range(2) for t in range(4) for hh in range(2)]
    def side_stores(rnd_):
        st_ = lambda q, so, off: [VM(f"buffer_store_dwordx4 {ar(192 + 4*q, 4)}, v{vL16}, {WS}, s{so} offen offset:{off} sc1")]
        if rnd_ == 1: return [st_(t, sD3, t*1024) for t in range(4)] + [st_(4+t, sD2[t], 0) for t in range(4)]
        r = [st_(t & 3 | (t & 4), sD1, (t & 3)*1024) for t in range(8)]
        r[3] = r[3] + [f"s_add_u32 s{sD1}, s{sD1}, {64*4096}"]
        return r
    e = vq(side_dma(0), bar[23] + 8); assert e < B0 + 480
    if KE:
        slots[B0 + 479].alu += vcheck + flat([W(vm=[("K", 0), ("K", 1)]), "s_barrier"])
        put([LG(f"ds_read_b128 {ar(aK + 4*f, 4)}, v{vKB} offset:{f*1024}", ("k", f)) for f in range(8)], B0 + 483)
        e = vq(kv_dma("V", ("V", 0), 0) + kv_dma("K", ("K", 2), 2), B0 + 480); assert e < B0 + 512
    init = [f"v_accvgpr_write_b32 a{r}, 0" for r in range(128)] + [f"v_mov_b32 v{ONES+r}, 0x3f803f80" for r in range(4)]
    assert not HE
    spread(slots, init, B0 + 40, bar[21] - 8)
    init = [x.t for x in flat([f"""
    s_lshl_b32 s{sODW}, s{sHEAD}, 12
    s_add_u32 s{sODW}, s{sODW}, {WS_CTX}
    s_lshl_b32 s{sCT}, s{sUL}, 18
    s_add_u32 s{sCT}, s{sCT}, s{sODW}
    s_add_u32 s{sCT+1}, s{sCT}, 131072
    s_lshl_b32 s{sCT+2}, s{sUS}, 18
    s_add_u32 s{sCT+2}, s{sCT+2}, s{sODW}
    s_add_u32 s{sCT+3}, s{sCT+2}, 131072
    v_lshrrev_b32 v{PB+4}, 4, v0
    v_lshlrev_b32 v{PB+4}, 2, v{PB+4}
    v_and_b32 v{PB+5}, 15, v0
    v_sub_u32 v{PB+5}, v{PB+5}, v{PB+4}
    v_cmp_le_i32 s[{sMK[0]}:{sMK[0]+1}], 0, v{PB+5}
    v_cmp_le_i32 s[{sMK[1]}:{sMK[1]+1}], 1, v{PB+5}
    v_cmp_le_i32 s[{sMK[2]}:{sMK[2]+1}], 2, v{PB+5}
    v_cmp_le_i32 s[{sMK[3]}:{sMK[3]+1}], 3, v{PB+5}
    v_mov_b32 v{vKB}, v{vL16}
    v_mov_b32 v{vVB}, v{vL16}
    """])] + [f"v_mov_b32 v{LS+r}, 0" for r in range(2, 16)]
    spread(slots, init, bar[23] - 30, bar[23] + 10)
    spread(slots, [f"v_mov_b32 v{CB+r}, 0" for r in range(32)] + [f"v_mov_b32 v{TMP+31}, 0xff800000"], B0 + 330, B0 + 400)
    def qpack(s4): return sum(([f"v_cvt_pk_bf16_f32 v{acc(2*s4, qi)+k}, v{acc(2*s4 + (k >> 1), qi) + 2*(k & 1)}, v{acc(2*s4 + (k >> 1), qi) + 2*(k & 1) + 1}"
                                for k in range(4)] for qi in range(4)), [])
    for s4 in range(3): spread(slots, qpack(s4), B0 + 448 + 16*s4 + 17, B0 + 448 + 16*s4 + 31 - (s4 == 2))
    if "vmap" in OPT: print("".join(("#" if k in vused else ".") + ("|" if k % 16 == 15 else "") for k in range(len(slots)//4)))
    if "nopack" not in OPT: pack_slots(slots)
    o += emit_slots(slots) + [f"Latt_{N}:"]
    o += st()
    from fatt import attention
    from ftail import tail
    env.update(locals())
    o = resolve_waits(flat(o + attention(env, "prologue")))
    o += attention(env, "main")
    if upto >= 3: o += tail(env, upto)
    return o + finish()
```

```python
from common import *
from flay import *

def tail(env, upto):
    (N, st, sW, sJ, sC, sT0, sT1, vL16, WS, pX, pB1, pB2, pOUT, flag_off, publish, check, rnd, opt) = [env[k] for k in
     "N st sW sJ sC sT0 sT1 vL16 WS pX pB1 pB2 pOUT flag_off publish check rnd opt".split()]
    sR = 12
    sA = 16
    sSUB = 20
    sK = 24
    sC0, sC1, sONE = 30, 32, 34
    sWB, sRB, sCTL, sRT, sMF, sFL, sCNT, sBLK, sN, sODD, sPAIR, sWD, sM0, sZ = 82, 79, 80, 81, 78, 83, 84, 85, 86, 87, 88, 89, 90, 40
    vG16, vRM, vP, vT = 2, 3, 4, 6
    GA, AV, BV, XR, ACC, AR = 8, 24, 40, 56, 64, 128
    RED = 114688
    o = []; XL = env['XL']; ids = [f"""
    s_and_b32 s{sT0}, s2, 7
    s_bfe_u32 s{sT1}, s2, 0x20003
    s_and_b32 s{sN}, s{sT0}, 3
    s_lshl_b32 s{sN}, s{sN}, 2
    s_add_u32 s{sN}, s{sN}, s{sT1}
    s_sub_u32 s{sBLK}, 15, s{sJ}
    s_mov_b32 s{sSUB}, 0x0f0f0f0f
    s_cmp_lt_u32 s{sT0}, 4
    s_cselect_b32 s{sBLK}, s{sJ}, s{sBLK}
    s_cselect_b32 s{sSUB}, s{sSUB}, 0xf0f0f0f0
    s_mov_b32 s{sSUB+1}, s{sSUB}
    s_bfe_u32 s{sT0}, s2, 0x10001
    s_lshl_b32 s{sRB}, s{sBLK}, 1
    s_add_u32 s{sRB}, s{sRB}, s{sT0}
    s_lshl_b32 s{sRT}, s{sRB}, 2
    s_add_u32 s{sRT}, s{sRT}, s{sW}
    """]
    HY = env['HY']; ROT = env['ROT']
    if HY: ids += [f"s_lshr_b32 s{sN}, s2, 5", f"s_lshl_b32 s{sN}, s{sN}, 1", f"s_bfe_u32 s{sT0}, s2, 0x10003", f"s_add_u32 s{sN}, s{sN}, s{sT0}"]
    ids2 = [f"""
    s_and_b32 s{sT0}, s2, 7
    s_lshl_b32 s{sRB}, s{sT0}, 2
    s_bfe_u32 s{sT1}, s2, 0x20003
    s_add_u32 s{sRB}, s{sRB}, s{sT1}
    s_lshr_b32 s{sBLK}, s{sRB}, 1
    s_lshl_b32 s{sN}, s{sCTL}, 1
    s_and_b32 s{sT1}, s{sT1}, 1
    s_add_u32 s{sN}, s{sN}, s{sT1}
    s_mov_b32 s{sSUB}, 0x33333333
    s_bitcmp0_b32 s2, 4
    s_cselect_b32 s{sSUB}, s{sSUB}, 0xcccccccc
    s_lshr_b32 s{sT0}, s2, 3
    s_bitset0_b32 s{sSUB}, s{sT0}
    s_mov_b32 s{sSUB+1}, s{sSUB}
    s_lshl_b32 s{sRT}, s{sRB}, 2
    s_add_u32 s{sRT}, s{sRT}, s{sW}
    s_sub_u32 s{sPAIR}, 15, s{sBLK}
    s_min_u32 s{sPAIR}, s{sPAIR}, s{sBLK}
    """]
    if XL: ids = ids2
    sSUBZ = 22 if HY else sSUB
    ids2 = [f"s_lshr_b32 s{sCTL}, s2, 5"] + ids2 + [f"s_mov_b32 s{sSUBZ}, 0x0f0f0f0f", f"s_cmp_lt_u32 s{sBLK}, 8", f"s_cselect_b32 s{sSUBZ}, s{sSUBZ}, 0xf0f0f0f0",
            f"s_mov_b32 s{sSUBZ+1}, s{sSUBZ}", f"s_mul_i32 s{sMF}, s{sJ}, 12288", f"s_lshl_b32 s{sT0}, s{sCTL}, 8", f"s_add_u32 s{sMF}, s{sMF}, s{sT0}",
            f"s_add_u32 s{sMF}, s{sMF}, {WS_MODF}"]
    def gemm_loads(kind):
        def w(i):
            g = []
            for t in range(4):
                x = [VM(f"buffer_load_dwordx4 {ar(env['wreg'](i, t), 4)}, v{vL16}, {WS}, s{sWB} offen offset:{t*1024} sc1", (kind + "w", i))]
                if t == 3: x.append(f"s_add_u32 s{sWB}, s{sWB}, 4096")
                g.append(x)
            return g
        def a(i):
            g = []
            for r in range(4):
                if ROT and kind == "c":
                    x = [f"s_lshl_b32 s{sCNT}, s{sJ}, 12", f"s_add_u32 s{sCNT}, s{sCNT}, {i*1024}", f"s_and_b32 s{sCNT}, s{sCNT}, 0x7fff",
                         f"v_add_u32 v{vT+1}, s{sCNT}, v{vL16}"] if r == 0 and (i & 3) == 0 else []
                    g.append(x + [VM(f"buffer_load_dwordx4 {vr(AR + (i % 7)*16 + 4*r, 4)}, v{vT+1}, {WS}, s{sA+r} offen offset:{(i & 3)*1024} sc1", (kind + "a", i))])
                    continue
                x = [VM(f"buffer_load_dwordx4 {vr(AR + (i % 7)*16 + 4*r, 4)}, v{vL16}, {WS}, s{sA+r} offen offset:{(i & 3)*1024} sc1", (kind + "a", i))]
                if (i & 3) == 3: x.append(f"s_add_u32 s{sA+r}, s{sA+r}, 4096")
                g.append(x)
            return g
        return w, a
    wreg = env["wreg"]
    NL = int(env['OV']('nl', 8))
    PD = dict(c=int(env['OV']('pdc', 4)), e=int(env['OV']('pde', 4)))
    def gemm(kind, ns, wl, al, extra):
        r = []
        for i in range(ns):
            sl = []
            for t in range(4):
                for q in range(4):
                    d = vr(ACC + (t*4+q)*4, 4)
                    sl.append(Slot(I(f"v_mfma_f32_16x16x32_bf16 {d}, {ar(wreg(i, t), 4)}, {vr(AR + (i % 7)*16 + 4*q, 4)}, {'0' if i == 0 else d}")))
            if 16 <= i < 16 + NL: sl[0].pre.append(W(vm=[(kind + "a", i)], lg=[("lw", i)]))
            else: sl[0].pre.append(W(vm=[(kind + "a", i), (kind + "w", i)]))
            ld = []
            pd = PD[kind]
            if (i >= 1 or pd < 8) and i + min(pd, 7) < ns: ld += al(i + min(pd, 7))
            if i >= 1 and i + 15 < ns:
                if 18 <= i + 15 < 16 + NL: sl[0].pre.append(W(vm=[("cw", i + 15)]))
                if i + 15 < 16 + NL: ld += [LG(f"ds_read_b128 {ar(wreg(i + 15, t), 4)}, v{vP + 1 if i < 3 else vP} offset:{((i - 1) if i < 3 else (i - 3))*4096 + t*1024}", ("lw", i + 15)) for t in range(4)]
                else: ld += wl(i + 15)
            ld += extra(i)
            for k, g in enumerate(ld): sl[k*16//len(ld)].mem.append(g)
            r += emit_slots(sl)
            if kind == "c" and i in (0, 15): r += st("T")
        return r
    def rot_rows(pitch):
        r = []
        for k in (1, 2, 3, 0):
            r += [f"s_add_u32 s{sT0}, s{sW}, {k}", f"s_and_b32 s{sT0}, s{sT0}, 3", f"s_mul_i32 s{sT0}, s{sT0}, {pitch}", f"s_add_u32 s{sA+k}, s{sA}, s{sT0}"]
        return r
    RA = {1: vP, 2: vP+1, 3: vT+1, 0: vT}
    def reduce_addr(): return [[f"s_add_u32 s{sT0}, s{sW}, {q}", f"s_and_b32 s{sT0}, s{sT0}, 3", f"s_mul_i32 s{sT0}, s{sT0}, 12288", f"s_add_u32 s{sT0}, s{sT0}, {RED}",
                                f"v_add_u32 v{RA[q]}, s{sT0}, v{vL16}"] for q in range(4)]
    def reduce_waves():
        r = []
        for q in range(1, 4):
            if q < 4: r += [LG(f"ds_write_b128 v{RA[q]}, {vr(ACC + (t*4+q)*4, 4)} offset:{(q-1)*4096 + t*1024}", "rw") for t in range(4)]
        r += [W(lg="rw"), "s_barrier"]
        for t in range(4):
            for q in range(1, 4): r += [LG(f"ds_read_b128 {vr(ACC + (t*4+q)*4, 4)}, v{vT} offset:{(q-1)*4096 + t*1024}", ("rr", t))]
        return r
    def sum4(t):
        b = ACC + t*16; r = [W(lg=[("rr", t)])]
        for h in (0, 2): r += [f"v_pk_add_f32 {vr(b+h, 2)}, {vr(b+h, 2)}, {vr(b+4+h, 2)}", f"v_pk_add_f32 {vr(b+8+h, 2)}, {vr(b+8+h, 2)}, {vr(b+12+h, 2)}"]
        for h in (0, 2): r += [f"v_pk_add_f32 {vr(b+h, 2)}, {vr(b+h, 2)}, {vr(b+8+h, 2)}"]
        return r
    def modf(dst, vec):
        return [f"s_add_u32 s{sT0}, s{sMF}, {vec*2048}"] + [VM(f"buffer_load_dwordx4 {vr(dst+4*t, 4)}, v{vG16}, {WS}, s{sT0} offen offset:{t*64} sc1", "ep") for t in range(4)]
    def prep(kind): return flag_off(sFL, kind, True) + publish(vP, sFL)[:-1]
    def sync(kind, mask, between, after=()):
        ld = f"buffer_load_dword v{vP+1}, v{vP}, {WS}, s{sFL} offen sc1"
        line = sPAIR if (XL and kind == 1) or (HY and kind == 2) else None
        return (([] if kind > 1 else prep(kind)) + publish(vP, sFL)[-1:] + ([env["w_step"](12), env["w_step"](13)] + ids if kind == 1 else []) + flag_off(sFL, kind, False, line) + [f"v_and_b32 v{vP}, 31, v0", f"v_lshlrev_b32 v{vP}, {env['FS']}, v{vP}"]
                + between + [VM(ld, ("poll", kind))] + list(after) + check(ld, f"v_cmp_ne_u32 vcc, 1, v{vP+1}", sCNT, [("poll", kind)], mask) + ["s_barrier"])
    wl, al = gemm_loads("c"); wl = lambda i: env["w_step"](i)
    o += st()
    btw = []; wpre = [f"s_lshl_b32 s{sM0}, s{sW}, 15"] + [env["w_step"](i) for i in range(14, 16)]
    w811 = [env["w_step"](i) for i in range(8, 12)]
    if env["XS"]: w811 = ["s_cmp_lg_u32 s0, 0", f"s_cbranch_scc1 Lw8_{N}"] + [x.t for x in flat(w811)] + [f"Lw8_{N}:"]
    wpre = wpre + w811 + [env["w_step"](i, f"s{sM0}, {(i - 18)*4096}") for i in range(18, 16 + NL)]
    btw += [f"""
    v_lshrrev_b32 v{vT}, 4, v0
    v_lshlrev_b32 v{vG16}, 4, v{vT}
    v_and_b32 v{vT+1}, 15, v0
    v_lshlrev_b32 v{vRM}, 10, v{vT+1}
    v_lshl_add_u32 v{vRM}, v{vT}, 3, v{vRM}
    s_mul_i32 s{sMF}, s{sJ}, 12288
    s_lshl_b32 s{sT0}, s{sCTL}, 8
    s_add_u32 s{sMF}, s{sMF}, s{sT0}
    s_add_u32 s{sMF}, s{sMF}, {WS_MODF}
    s_lshl_b32 s{sA}, s{sRB}, 19
    s_lshl_b32 s{sT0}, s{sW}, 15
    s_add_u32 s{sA}, s{sA}, s{sT0}
    s_add_u32 s{sA}, s{sA}, {WS_CTX}
    """] + rot_rows(131072)
    CBX = env["CB"] + 16
    aft1 = [f"v_mov_b32 v{XR+k}, v{CBX+k}" for k in range(8)]
    for dst, k in ((GA, 0), (BV, 1), (AV, 2)):
        aft1 += [LG(f"ds_bpermute_b32 v{dst+4*t+e}, v{vG16}, v{CBX+8+k} offset:{(16*t+e)*4}", "bp") for t in range(4) for e in range(4)]
    aft1 += [W(lg="bp")]
    for j in range(0, 16, 2): aft1 += [f"v_add_f32 v{AV+j}, 1.0, v{AV+j}", f"v_add_f32 v{AV+j+1}, 1.0, v{AV+j+1}"] + rnd(AV+j, AV+j+1, vT)
    A2, B2_, TT = 128, 136, 244
    btw = [f"v_lshlrev_b32 v{vT+1}, 5, v0", f"s_mul_i32 s{sT0}, s{sJ}, 12288", f"s_add_u32 s{sT0}, s{sT0}, {WS_MODF + 3*2048}"] + \
          [VM(f"buffer_load_dwordx4 {vr(r, 4)}, v{vT+1}, {WS}, s{sT0} offen offset:{off} sc1", "ab") for r, off in ((A2, 2048), (A2+4, 2064), (B2_, 0), (B2_+4, 16))] + btw
    aft1 += [W(vm="ab")] + [f"v_add_f32 v{A2+j}, 1.0, v{A2+j}" for j in range(8)]
    for j in range(4):
        aft1 += [f"v_cvt_pk_bf16_f32 v{TT+j}, v{A2+2*j}, v{A2+2*j+1}", f"v_cvt_pk_bf16_f32 v{TT+4+j}, v{B2_+2*j}, v{B2_+2*j+1}", f"v_mov_b32 v{TT+8+j}, 0x3f803f80"]
    for j in range(4): aft1 += [f"v_lshlrev_b32 v{A2+2*j}, 16, v{TT+j}", f"v_and_b32 v{A2+2*j+1}, 0xffff0000, v{TT+j}"]
    SS = 144
    for j in range(0, 8, 2):
        a, b = vr(A2+j, 2), vr(B2_+j, 2); S = [vr(SS+2*k, 2) for k in range(5)]
        if j == 0: aft1 += [f"v_pk_add_f32 {S[0]}, {a}, {vr(A2+2, 2)}", f"v_pk_mul_f32 {S[1]}, {a}, {a}", f"v_pk_mul_f32 {S[2]}, {a}, {b}",
                           f"v_pk_add_f32 {S[3]}, {b}, {vr(B2_+2, 2)}", f"v_pk_mul_f32 {S[4]}, {b}, {b}"]
        else:
            if j > 2: aft1 += [f"v_pk_add_f32 {S[0]}, {S[0]}, {a}", f"v_pk_add_f32 {S[3]}, {S[3]}, {b}"]
            aft1 += [f"v_pk_fma_f32 {S[1]}, {a}, {a}, {S[1]}", f"v_pk_fma_f32 {S[2]}, {a}, {b}, {S[2]}", f"v_pk_fma_f32 {S[4]}, {b}, {b}, {S[4]}"]
    aft1 += [f"v_add_f32 v{SS+2*k}, v{SS+2*k}, v{SS+2*k+1}" for k in range(5)]
    for m in ("quad_perm:[1,0,3,2]", "quad_perm:[2,3,0,1]", "row_ror:4", "row_ror:8"):
        aft1 += [f"v_add_f32_dpp v{SS+2*k}, v{SS+2*k}, v{SS+2*k} {m} row_mask:0xf bank_mask:0xf" for k in range(5)]
    for sw in ("v_permlane16_swap_b32", "v_permlane32_swap_b32"):
        aft1 += [f"v_mov_b32 v{SS+2*k+1}, v{SS+2*k}" for k in range(5)] + [f"{sw} v{SS+2*k}, v{SS+2*k+1}" for k in range(5)]
        aft1 += [f"v_add_f32 v{SS+2*k}, v{SS+2*k}, v{SS+2*k+1}" for k in range(5)]
    aft1 += [f"v_readfirstlane_b32 s{sK+k}, v{SS+2*k}" for k in range(5)]
    c0 = -2*0.7978845608028654*1.4426950408889634
    aft1 += [f"s_mov_b32 s{sC0}, {fbits(c0)}", f"s_mov_b32 s{sC0+1}, s{sC0}", f"s_mov_b32 s{sC1}, {fbits(c0*0.044715)}", f"s_mov_b32 s{sC1+1}, s{sC1}",
            f"s_mov_b32 s{sONE}, 1.0", f"s_mov_b32 s{sONE+1}, 1.0"]
    if "noil" not in opt:
        k0 = wpre.index(f"Lw8_{N}:") + 1 if env["XS"] else 0
        head_, rest_ = flat(wpre[:k0]), flat(wpre[k0:]); alu_ = scc_groups(aft1)
        h0 = next(i for i, x in enumerate(head_) if x.t.startswith("s_cmp_lg_u32 s0")) if env["XS"] else 0
        pos = [i for i, x in enumerate(head_[:h0]) if x.vm is not None]
        n1_ = len(alu_)*len(pos)//(len(pos) + sum(x.vm is not None for x in rest_))
        def mix(lst, ps, groups):
            for k in reversed(range(len(groups))): lst[ps[k*len(ps)//len(groups)] + 1:ps[k*len(ps)//len(groups)] + 1] = groups[k]
            return lst
        wpre = mix(head_, pos, alu_[:n1_]); aft1 = mix(rest_, [i for i, x in enumerate(rest_) if x.vm is not None], alu_[n1_:])
        if "earlypoll" not in opt: wpre += aft1; aft1 = []
    o += sync(1, None, btw + wpre, aft1) + st() + st("T")
    o += [al(i) for i in range(PD["c"])] + [f"v_add_u32 v{vP}, s{sM0}, v{vL16}", f"s_lshl_b32 s{sT0}, s{sW}, 13", f"s_add_u32 s{sT0}, s{sT0}, 131072", f"v_add_u32 v{vP+1}, s{sT0}, v{vL16}"]
    def w1_dma(g):
        grp = [f"s_add_u32 m0, s{sM0}, {g*16384}", f"s_add_u32 s{sCNT}, s{sWD}, {g*16384}"]; r = []
        for n in range(4):
            grp.append(VM(f"buffer_load_dwordx4 v{vL16}, {WS}, s{sCNT} offen offset:{n*1024} sc1 lds", ("w1", g))); r.append(grp); grp = []
        return SEQ(r)
    o += [f"s_lshl_b32 s{sM0}, s{sW}, 12", f"s_mul_i32 s{sWD}, s{sN}, 114688", f"s_add_u32 s{sWD}, s{sWD}, s{sM0}", f"s_add_u32 s{sWD}, s{sWD}, {WS_W1F}"]
    NW0 = int(env["OV"]("nw0", 4)); NW1 = int(env["OV"]("nw1", 7))
    o += gemm("c", 32, wl, al, lambda i: [["s_barrier"]] + reduce_addr() if i == 20 and NL else (w1_dma(i - 32 + NW0) if i >= 32 - NW0 else []))
    w1q = sum((w1_dma(g) for g in range(NW0, NW1)), [])
    cepi = len(o) + 2
    o += st() + st("T") + reduce_waves()
    F, Z, ZP, ST = AR, AR+16, AR+32, AR+40
    for j in range(8): o += [f"v_lshlrev_b32 v{F+2*j}, 16, v{XR+j}", f"v_and_b32 v{F+2*j+1}, 0xffff0000, v{XR+j}"]
    o += [f"s_lshl_b32 s{sT0}, s{sRT}, 14", f"s_lshl_b32 s{sT1}, s{sCTL}, 11", f"s_add_u32 s{sT0}, s{sT0}, s{sT1}", f"s_add_u32 s{sFL}, s{sT0}, {WS_Z}"]
    for t in range(4):
        o += sum4(t)
        for h in (0, 2): o += [f"v_pk_fma_f32 {vr(F+4*t+h, 2)}, {vr(ACC+t*16+h, 2)}, {vr(GA+4*t+h, 2)}, {vr(F+4*t+h, 2)}"]
        for j in (2*t, 2*t+1): o += rnd(F+2*j, F+2*j+1, XR+j)
        for h in (0, 2): o += [f"v_pk_mul_f32 {vr(Z+4*t+h, 2)}, {vr(F+4*t+h, 2)}, {vr(AV+4*t+h, 2)}"]
        for j in (2*t, 2*t+1): o += [f"v_cvt_pk_bf16_f32 v{ZP+j}, v{Z+2*j}, v{Z+2*j+1}"]
        if t & 1: o += [VM(f"buffer_store_dwordx4 {vr(ZP+2*(t-1), 4)}, v{vL16}, {WS}, s{sFL} offen offset:{(t >> 1)*1024} sc1", "zst")]
    if HY:
        o += [f"s_add_u32 s{sFL}, s{sFL}, {WS_X1 - WS_Z}"]
        o += [VM(f"buffer_store_dwordx4 {vr(XR+4*p, 4)}, v{vL16}, {WS}, s{sFL} offen offset:{p*1024} sc1", "zst") for p in range(2)]
    for j in range(0, 16, 2):
        x, z, a, b = vr(F+j, 2), vr(Z+j, 2), vr(AV+j, 2), vr(BV+j, 2); S = [vr(ST+2*k, 2) for k in range(6)]
        if j == 0:
            o += [f"v_pk_add_f32 {S[0]}, {x}, {vr(F+2, 2)}", f"v_pk_mul_f32 {S[1]}, {x}, {x}", f"v_pk_add_f32 {S[2]}, {z}, {vr(Z+2, 2)}",
                  f"v_pk_mul_f32 {S[3]}, {z}, {z}", f"v_pk_mul_f32 {S[4]}, {a}, {z}", f"v_pk_mul_f32 {S[5]}, {b}, {z}"]
        else:
            if j > 2: o += [f"v_pk_add_f32 {S[0]}, {S[0]}, {x}", f"v_pk_add_f32 {S[2]}, {S[2]}, {z}"]
            o += [f"v_pk_fma_f32 {S[1]}, {x}, {x}, {S[1]}", f"v_pk_fma_f32 {S[3]}, {z}, {z}, {S[3]}",
                  f"v_pk_fma_f32 {S[4]}, {a}, {z}, {S[4]}", f"v_pk_fma_f32 {S[5]}, {b}, {z}, {S[5]}"]
    o += [f"v_add_f32 v{ST+2*k}, v{ST+2*k}, v{ST+2*k+1}" for k in range(6)]
    o += [f"v_permlane16_swap_b32 v{ST+4*k}, v{ST+4*k+2}" for k in range(3)]
    o += [f"v_add_f32 v{ST+4*k}, v{ST+4*k}, v{ST+4*k+2}" for k in range(3)]
    o += [f"v_mov_b32 v{ST+10}, v{ST+8}", f"v_permlane32_swap_b32 v{ST}, v{ST+4}", f"v_permlane32_swap_b32 v{ST+8}, v{ST+10}",
          f"v_add_f32 v{ST}, v{ST}, v{ST+4}", f"v_add_f32 v{ST+1}, v{ST+8}, v{ST+10}",
          f"s_lshl_b32 s{sT0}, s{sRT}, 12", f"s_lshr_b32 s{sT1}, s{sCTL}, 1", f"s_lshl_b32 s{sT1}, s{sT1}, 10", f"s_add_u32 s{sT0}, s{sT0}, s{sT1}",
          f"s_and_b32 s{sT1}, s{sCTL}, 1", f"s_lshl_b32 s{sT1}, s{sT1}, 3", f"s_add_u32 s{sT0}, s{sT0}, s{sT1}", f"s_add_u32 s{sT0}, s{sT0}, {WS_STAT}",
          VM(f"buffer_store_dwordx2 {vr(ST, 2)}, v{vL16}, {WS}, s{sT0} offen sc1", "zst")]
    head, epi = flat(o[:cepi]), flat(o[cepi:])
    last = next(i for i, x in enumerate(epi) if x.vm == "zst")
    for k in reversed(range(len(w1q))): epi[(k*last)//len(w1q):(k*last)//len(w1q)] = flat(w1q[k])
    o = head + epi
    PRE = [("cw", i) for i in range(12) for t in range(4)]
    if upto < 4: return resolve_waits(flat(o), pre_vm=PRE)
    DA, XA, WF, DS, CO, B1, HB = 64, 120, 128, 160, 192, 200, 216
    EARR, UVS = 114688, 114688 + 3072
    vW, vW6, vWX, vE, vU, vU6, g4, c16 = 8, 9, 10, 11, 12, 13, 14, 15
    wl2, al2 = gemm_loads("e")
    if HY: o += ids2
    if upto >= 5:
        o += [f"s_mul_i32 s{sWB}, s{sCTL}, {56*4096}", f"s_mul_i32 s{sT0}, s{sW}, {14*4096}", f"s_add_u32 s{sWB}, s{sWB}, s{sT0}", f"s_add_u32 s{sWB}, s{sWB}, {WS_W2F}"]
    setup = [f"""
    s_and_b32 s{sODD}, s{sN}, 1
    s_lshl_b32 s{sPAIR}, s{sBLK}, 2
    s_add_u32 s{sPAIR}, s{sPAIR}, s{sW}
    v_lshrrev_b32 v{g4}, 4, v0
    v_and_b32 v{c16}, 15, v0
    s_lshl_b32 s{sT0}, s{sODD}, 10
    v_add_u32 v{vW}, s{sT0}, v{vL16}
    s_cmp_eq_u32 s{sODD}, 0
    s_cselect_b32 s{sT0}, 6144, 0
    v_add_u32 v{vW6}, s{sT0}, v{vL16}
    s_lshl_b32 s{sT0}, s{sW}, 11
    v_add_u32 v{vWX}, s{sT0}, v{vL16}
    v_min_u32 v{vE}, 2, v{c16}
    v_lshlrev_b32 v{vE}, 10, v{vE}
    v_lshl_add_u32 v{vE}, v{g4}, 3, v{vE}
    v_add_u32 v{vE}, {EARR}, v{vE}
    """]
    b1l = srd(sR, pB1, 3584) + [f"v_lshlrev_b32 v{vT}, 3, v{g4}", f"s_mul_i32 s{sT0}, s{sN}, 224", f"s_lshl_b32 s{sT1}, s{sODD}, 5", f"s_add_u32 s{sT1}, s{sT1}, s{sT0}"]
    b1l += [VM(f"buffer_load_dwordx2 {vr(B1+2*i, 2)}, v{vT}, s[{sR}:{sR+3}], s{sT1} offen offset:{i*32}", "b1") for i in range(6)]
    b1l += [f"s_cmp_eq_u32 s{sODD}, 0", f"s_cselect_b32 s{sT1}, 192, 0", f"s_add_u32 s{sT1}, s{sT1}, s{sT0}",
            VM(f"buffer_load_dwordx2 {vr(B1+12, 2)}, v{vT}, s[{sR}:{sR+3}], s{sT1} offen", "b1")]
    setup += [
            f"s_lshl_b32 s{sZ}, s{sPAIR}, 15", f"s_add_u32 s{sZ}, s{sZ}, {WS_Z}", f"s_add_u32 s{sZ+1}, s{sZ}, 16384",
            f"s_lshl_b32 s{sZ+2}, s{sPAIR}, 13", f"s_add_u32 s{sZ+2}, s{sZ+2}, {WS_STAT}", f"s_add_u32 s{sZ+3}, s{sZ+2}, 4096"]
    B1P = env["OV"]("b1p", "pre")
    o += setup + (b1l if B1P == "pre" else []) + prep(2) + [W(vm="zst"), "s_barrier"] + st() + st("T")
    btw = [[w1_dma(g) for g in range(NW1, 7)], It(None, wvm="ab")] + (b1l if B1P == "btw" else [])
    btw += [f"v_add_u32 v{vT}, {EARR}, v{vL16}"] + [LG(f"ds_write_b128 v{vT}, {vr(TT+4*k, 4)} offset:{k*1024}", "ew") for k in range(3)]
    btw += [W(vm=[("w1", 6)], lg="ew"), "s_barrier"]
    def xr(s):
        b = WF + (s % 3)*12
        return ([f"v_add_u32 v{vWX}, 57344, v{vWX}"] if s == 8 else []) + \
               [LG(f"ds_read_b128 {vr(b+4*k, 4)}, v{vWX} offset:{(s & 7)*7168 + k*1024}", ("x", s)) for k in range(2)] + \
               [LG(f"ds_read_b64 {vr(b+8+2*hh, 2)}, v{vE} offset:{s*64 + hh*32}", ("x", s)) for hh in range(2)]
    NE2 = int(env['OV']('ne2', 4)); aft = []
    early2 = sum((wl2(i) for i in range(NE2)), []) if upto >= 5 else []
    NB2 = int(env['OV']('nb2', 2))
    k_ = next(i for i, x in enumerate(btw) if isinstance(x, It) and x.wvm == "ab")
    btw[k_:k_] = early2[:4*NB2]; early2 = early2[4*NB2:]
    aft += xr(0) + xr(1)
    for s in range(16):
        b = WF + (s % 3)*12
        aft += [W(lg=[("x", s)])] + [f"v_mfma_f32_16x16x32_bf16 {vr(XA+4*k, 4)}, {vr(b+4*k, 4)}, {vr(b+8, 4)}, {'0' if s == 0 else vr(XA+4*k, 4)}" for k in range(2)]
        if s + 2 < 16: aft += xr(s + 2)
        if s % 2 and early2: aft += early2.pop(0)
    aft += [f"v_lshlrev_b32 v{vT}, 9, v{c16}", f"v_lshl_add_u32 v{vT}, v{g4}, 4, v{vT}", f"s_lshl_b32 s{sT0}, s{sW}, 7", f"s_add_u32 s{sT0}, s{sT0}, {UVS}",
            f"v_add_u32 v{vT}, s{sT0}, v{vT}", f"v_lshlrev_b32 v{vU6}, 4, v{g4}", f"s_lshl_b32 s{sT0}, s{sODD}, 6", f"s_add_u32 s{sT0}, s{sT0}, {UVS}",
            f"v_add_u32 v{vU}, s{sT0}, v{vU6}", f"s_cmp_eq_u32 s{sODD}, 0", f"s_cselect_b32 s{sT0}, 384, 0", f"s_add_u32 s{sT0}, s{sT0}, {UVS}",
            f"v_add_u32 v{vU6}, s{sT0}, v{vU6}"]
    aft += [LG(f"ds_write_b128 v{vT}, {vr(XA+4*k, 4)} offset:{k*64}", "uw") for k in range(2)] + [f"v_lshlrev_b32 v{vT+1}, 3, v0", W(lg="uw")]
    o += sync(2, sSUBZ, btw, aft) + st() + st("T")
    def Zf(s, r): return ar((s*2+r)*4, 4)
    def z_ld(s):
        g = []
        for r in range(2):
            x = [VM(f"buffer_load_dwordx4 {Zf(s, r)}, v{vL16}, {WS}, s{sZ+r} offen offset:{(s & 3)*1024} sc1", ("z", s))]
            if (s & 3) == 3: x.append(f"s_add_u32 s{sZ+r}, s{sZ+r}, 4096")
            g.append(x)
        return g
    o += [z_ld(s) for s in range(4)]
    stat = [VM(f"buffer_load_dwordx4 {vr(DS + r*16 + 4*c2, 4)}, v{vL16}, {WS}, s{sZ+2+r} offen offset:{c2*1024} sc1", "stat") for r in range(2) for c2 in range(4)]
    LA = 4
    frags = [(s, i) for s in range(16) for i in range(7)]; slots = []
    for f, (s, i) in enumerate(frags):
        for r in range(2):
            d = vr(DA + (i*2+r)*4, 4)
            slots.append(Slot(I(f"v_mfma_f32_16x16x32_bf16 {d}, {vr(WF + (f % 8)*4, 4)}, {Zf(s, r)}, {'0' if s == 0 else d}")))
        if f % 2 == 0: slots[2*f].pre.append(W(lg=[("wf", f+1)]))
        if i == 0: slots[2*f].pre.append(W(vm=[("z", s)]))
    def rd(f):
        s, i = frags[f]
        g = [f"v_add_u32 v{vW}, 57344, v{vW}", f"v_add_u32 v{vW6}, 57344, v{vW6}"] if (s, i) == (8, 0) else []
        return g, LG(f"ds_read_b128 {vr(WF + (f % 8)*4, 4)}, v{vW if i < 6 else vW6} offset:{(s & 7)*7168 + (i*1024 if i < 6 else 0)}", ("wf", f))
    for f in range(LA): o += [rd(f)[1]]
    for f in range(LA, len(frags)):
        g, x = rd(f); i = 2*(f - LA)
        if g: slots[i-1].alu += flat(g)
        slots[i].mem.append(x)
    GB, B2 = 16, 32
    ld = sum((z_ld(s) for s in range(4, 16)), []) + stat
    ZP_ = float(env["OV"]("zp", 3))
    ld = ld[:8] + stat + ld[8:24] if "statlate" not in opt else ld
    for k, g in enumerate(ld): slots[1 + 2*int(k*ZP_/2)].mem.append(g)
    if upto >= 5:
        NM2 = int(env['OV']('nm2', 8))
        for k, g in enumerate(early2 + sum((wl2(i) for i in range(NE2, NM2)), [])): slots[int(env["OV"]("m2s", 101)) + int(env["OV"]("m2d", 5))*k].mem.append(g)
        ep = flat(srd(sR, pB2, 1024) + [f"v_lshlrev_b32 v{vT}, 3, v{g4}", modf(GB, 5), f"s_lshl_b32 s{sT0}, s{sCTL}, 7"] +
                  [VM(f"buffer_load_dwordx2 {vr(B2+2*t, 2)}, v{vT}, s[{sR}:{sR+3}], s{sT0} offen offset:{t*32}", "ep") for t in range(4)])
        if HY: ep += flat([f"s_lshl_b32 s{sT0}, s{sRT}, 14", f"s_lshl_b32 s{sT1}, s{sCTL}, 11", f"s_add_u32 s{sT0}, s{sT0}, s{sT1}", f"s_add_u32 s{sT0}, s{sT0}, {WS_X1}"] +
                          [VM(f"buffer_load_dwordx4 {vr(XR+4*p, 4)}, v{vL16}, {WS}, s{sT0} offen offset:{p*1024} sc1", "ep") for p in range(2)])
        for k, g in enumerate(ep): slots[int(env["OV"]("eps", 189)) + 2*k].mem.append(g)
    bg = []
    for r in range(2):
        b = DS + r*16
        for ct in range(1, 8): bg += [f"v_add_f32 v{b}, v{b}, v{b+2*ct}", f"v_add_f32 v{b+1}, v{b+1}, v{b+2*ct+1}"]
        S1, S5, S2, S3, S4, S6, M1, R1, T0, T1, T2 = b, b+1, b+2, b+3, b+4, b+5, b+6, b+7, b+8, b+9, b+10
        bg += [f"v_mov_b32 v{S2}, v{S1}", f"v_mov_b32 v{S6}, v{S5}", f"v_permlane16_swap_b32 v{S1}, v{S2}", f"v_permlane16_swap_b32 v{S5}, v{S6}",
               f"v_mov_b32 v{S3}, v{S1}", f"v_mov_b32 v{S4}, v{S2}", f"v_permlane32_swap_b32 v{S1}, v{S3}", f"v_permlane32_swap_b32 v{S2}, v{S4}"]
        n = fbits(1/512); al_, be, ga, de = CO+4*r, CO+4*r+1, CO+4*r+2, CO+4*r+3
        bg += [f"v_mul_f32 v{M1}, {n}, v{S1}",
               f"v_mul_f32 v{T0}, {n}, v{S2}", f"v_fma_f32 v{T0}, -v{M1}, v{M1}, v{T0}", f"v_add_f32 v{T0}, {fbits(EPS)}, v{T0}", f"v_rsq_f32 v{R1}, v{T0}",
               f"v_fma_f32 v{T0}, -v{M1}, s{sK}, v{S3}",
               f"v_mul_f32 v{T1}, s{sK+1}, v{M1}", f"v_fma_f32 v{T1}, -2.0, v{S5}, v{T1}", f"v_fma_f32 v{T1}, v{T1}, v{M1}, v{S4}",
               f"v_fma_f32 v{T2}, -v{M1}, s{sK+2}, v{S6}",
               f"v_fma_f32 v{T0}, v{T0}, v{R1}, s{sK+3}", f"v_mul_f32 v{T0}, {n}, v{T0}",
               f"v_mul_f32 v{T1}, v{T1}, v{R1}", f"v_fma_f32 v{T1}, 2.0, v{T2}, v{T1}", f"v_fma_f32 v{T1}, v{T1}, v{R1}, s{sK+4}",
               f"v_mul_f32 v{T1}, {n}, v{T1}", f"v_fma_f32 v{T1}, -v{T0}, v{T0}, v{T1}", f"v_add_f32 v{T1}, {fbits(EPS)}, v{T1}", f"v_rsq_f32 v{ga}, v{T1}",
               f"v_mul_f32 v{M1}, -1.0, v{M1}", f"v_mul_f32 v{al_}, v{R1}, v{ga}", f"v_mul_f32 v{de}, v{T0}, v{ga}", f"v_mul_f32 v{be}, v{M1}, v{al_}",
               f"v_mul_f32 v{de}, -1.0, v{de}"]
    bg[0] = [W(vm="stat"), bg[0]]
    spread(slots, bg, int(env["OV"]("bgs", 90)), 222)
    if "nodpack" not in opt: pack_slots(slots)
    slots[14].alu += st("T")
    o += emit_slots(slots) + st() + st("T")
    U = [128, 140, 152]; BB, G = 164, 168
    def uvs(n): return [LG(f"ds_read_b128 {vr(U[n % 3]+4*k, 4)}, v{vU if n else vU6} offset:{k*512 + ((n-1)*64 if n else 0)}", ("u", n)) for k in range(3)]
    late = sum((wl2(i) for i in range(NM2, 14)), []) if upto >= 5 else []
    sHF, sHH = sZ, sZ+2
    order = (6, 0, 1, 2, 3, 4, 5)
    o += uvs(0) + uvs(1) + [W(vm="b1"), f"v_mov_b32 v{BB+12}, s{sC0}", f"v_mov_b32 v{BB+13}, s{sC0}", f"""
    s_mul_i32 s{sT0}, s{sPAIR}, {2*57344}
    s_add_u32 s{sT0}, s{sT0}, {WS_H1}
    s_mul_i32 s{sT1}, s{sN}, 7
    s_add_u32 s{sT1}, s{sT1}, s{sODD}
    s_lshl_b32 s{sT1}, s{sT1}, 9
    s_add_u32 s{sHF}, s{sT0}, s{sT1}
    s_add_u32 s{sHF+1}, s{sHF}, 57344
    s_or_b32 s{sT1}, s{sN}, 1
    s_mul_i32 s{sT1}, s{sT1}, 7
    s_sub_u32 s{sT1}, s{sT1}, 1
    s_lshl_b32 s{sT1}, s{sT1}, 9
    s_add_u32 s{sHH}, s{sT0}, s{sT1}
    s_lshl_b32 s{sT1}, s{sODD}, 3
    s_add_u32 s{sHH}, s{sHH}, s{sT1}
    s_add_u32 s{sHH+1}, s{sHH}, 57344
    """]
    depi = []
    for n, i in enumerate(order):
        if n + 2 < 7: depi += uvs(n+2)
        depi += [f"v_lshlrev_b32 v{BB}, 16, v{B1+2*i}", f"v_and_b32 v{BB+1}, 0xffff0000, v{B1+2*i}",
                 f"v_lshlrev_b32 v{BB+2}, 16, v{B1+2*i+1}", f"v_and_b32 v{BB+3}, 0xffff0000, v{B1+2*i+1}", W(lg=[("u", n)])]
        u = U[n % 3]; cells = [(r, h) for r in range(2) for h in (0, 2)]
        Xv = lambda r, h: vr(DA + (i*2+r)*4 + h, 2)
        T = lambda r, h: vr(G + r*4 + h, 2)
        lo, hi = "op_sel:[0,0,0] op_sel_hi:[1,0,1]", "op_sel:[0,1,0] op_sel_hi:[1,1,1]"
        for r, h in cells: depi += [f"v_pk_fma_f32 {T(r,h)}, {vr(u+8+h,2)}, {vr(CO+4*r+2,2)}, {vr(BB+h,2)} {hi}"]
        for r, h in cells: depi += [f"v_pk_fma_f32 {T(r,h)}, {vr(u+4+h,2)}, {vr(CO+4*r+2,2)}, {T(r,h)} {lo}"]
        for r, h in cells: depi += [f"v_pk_fma_f32 {T(r,h)}, {vr(u+h,2)}, {vr(CO+4*r,2)}, {T(r,h)} {hi}"]
        for r, h in cells: depi += [f"v_pk_fma_f32 {Xv(r,h)}, {Xv(r,h)}, {vr(CO+4*r,2)}, {T(r,h)} {lo}"]
        for r, h in cells: depi += [f"v_pk_mul_f32 {T(r,h)}, {Xv(r,h)}, {Xv(r,h)}"]
        for r, h in cells: depi += [f"v_pk_fma_f32 {T(r,h)}, {T(r,h)}, s[{sC1}:{sC1+1}], {vr(BB+12,2)}"]
        for r, h in cells: depi += [f"v_pk_mul_f32 {T(r,h)}, {T(r,h)}, {Xv(r,h)}"]
        depi += [f"v_exp_f32 v{G+k}, v{G+k}" for k in range(8)]
        for r, h in cells: depi += [f"v_pk_add_f32 {T(r,h)}, {T(r,h)}, s[{sONE}:{sONE+1}]"]
        depi += [f"v_rcp_f32 v{G+k}, v{G+k}" for k in range(8)]
        for r, h in cells: depi += [f"v_pk_mul_f32 {Xv(r,h)}, {Xv(r,h)}, {T(r,h)}"]
        for r, h in cells:
            a = DA + (i*2+r)*4 + h
            depi += [f"v_cvt_pk_bf16_f32 v{HB + ((3*r + i//2)*4 + (i & 1)*2 if i < 6 else 24 + 2*r) + h//2}, v{a}, v{a+1}"]
        if i < 6 and i & 1:
            depi += [VM(f"buffer_store_dwordx4 {vr(HB+4*(3*r + i//2), 4)}, v{vL16}, {WS}, s{sHF+r} offen offset:{(i//2)*1024} sc1", "hst2") for r in range(2)]
        if i == 6:
            depi += [VM(f"buffer_store_dwordx2 {vr(HB+24+2*r, 2)}, v{vL16}, {WS}, s{sHH+r} offen sc1", "hst2") for r in range(2)]
    depi = flat(depi); NL2 = min(len(late), int(env['OV']('nl2', 0))); span = len(depi)*6//7
    for k in reversed(range(NL2)): depi[(k*span)//NL2:(k*span)//NL2] = flat(late[k])
    o += depi; late = late[NL2:]
    if upto < 5: return resolve_waits(flat(o), pre_vm=PRE)
    btw = [f"s_mul_i32 s{sA}, s{sRB}, {4*57344}", f"s_mul_i32 s{sT0}, s{sW}, {14*1024}", f"s_add_u32 s{sA}, s{sA}, s{sT0}", f"s_add_u32 s{sA}, s{sA}, {WS_H1}"]
    btw += rot_rows(57344) + srd(sR, pOUT, 2*MB)
    F2, BF = 40, 8
    btw += [W(vm="ep")]
    vOW, vOR = 8, 9
    btw += [f"""
    s_mul_i32 s{sT0}, s{sW}, 2304
    v_mul_u32_u24 v{vOW}, 144, v{c16}
    v_lshl_add_u32 v{vOW}, v{g4}, 3, v{vOW}
    v_add_u32 v{vOW}, s{sT0}, v{vOW}
    v_lshrrev_b32 v{vRM}, 3, v0
    v_and_b32 v{vG16}, 7, v0
    v_lshlrev_b32 v{vG16}, 4, v{vG16}
    v_mul_u32_u24 v{vOR}, 144, v{vRM}
    v_add3_u32 v{vOR}, v{vOR}, v{vG16}, s{sT0}
    v_lshl_add_u32 v{vRM}, v{vRM}, 10, v{vG16}
    """]
    for j in range(8): btw += [f"v_lshlrev_b32 v{F2+2*j}, 16, v{B2+j}", f"v_and_b32 v{F2+2*j+1}, 0xffff0000, v{B2+j}"]
    for j in range(8):
        btw += [f"v_lshlrev_b32 v{B2}, 16, v{XR+j}", f"v_and_b32 v{B2+1}, 0xffff0000, v{XR+j}", f"v_pk_fma_f32 {vr(F2+2*j, 2)}, {vr(F2+2*j, 2)}, {vr(GB+2*j, 2)}, {vr(B2, 2)}"]
    NL3 = int(env["OV"]("nl3", 8))
    o += st("T") + late[:NL3] + btw + prep(3) + [W(vm="hst2"), "s_barrier"] + st() + st("T")
    o += (sync(3, sSUB, late[NL3:]) if "earlypoll" not in opt else sync(3, sSUB, [], late[NL3:])) + st() + st("T")
    o += [al2(i) for i in range(PD["e"])]
    o += gemm("e", 14, wl2, al2, lambda i: reduce_addr() if i == 11 else []) + st("T")
    o += reduce_waves()
    F = F2
    o += [f"s_lshl_b32 s{sT0}, s{sRT}, 14", f"s_lshl_b32 s{sT1}, s{sCTL}, 7", f"s_add_u32 s{sT0}, s{sT0}, s{sT1}"]
    for t in range(4):
        b = ACC + t*16
        o += sum4(t)
        for h in (0, 2): o += [f"v_pk_fma_f32 {vr(F+4*t+h, 2)}, {vr(b+h, 2)}, {vr(GB+4*t+h, 2)}, {vr(F+4*t+h, 2)}"]
        o += [f"v_cvt_pk_bf16_f32 v{XR+2*t}, v{F+4*t}, v{F+4*t+1}", f"v_cvt_pk_bf16_f32 v{XR+2*t+1}, v{F+4*t+2}, v{F+4*t+3}",
              LG(f"ds_write_b64 v{vOW}, {vr(XR+2*t, 2)} offset:{t*32}", "ow")]
    o += [W(lg="ow")] + [LG(f"ds_read_b128 {vr(XR+4*k, 4)}, v{vOR} offset:{k*8*144}", ("or", k)) for k in range(2)]
    for k in range(2): o += [W(lg=[("or", k)]), VM(f"buffer_store_dwordx4 {vr(XR+4*k, 4)}, v{vRM}, s[{sR}:{sR+3}], s{sT0} offen sc1"), f"s_add_u32 s{sT0}, s{sT0}, 8192"]
    return resolve_waits(flat(o), pre_vm=PRE)
```

```python
from common import *
from flay import *

def fused(name, ts=False, opt="", upto=9):
    N = name
    NT = " nt" if "nt" in opt.split() else ""
    NT1 = " nt" if "nt1" in opt.split() or NT else ""
    NTT = " nt" if "ntt" in opt.split() or NT else ""
    sW, sHEAD, sJ, sC = 3, 4, 5, 6
    sWS = 8; WS = "s[8:11]"
    sT0, sT1 = 76, 77
    pX, pB1, pB2, pOUT = 92, 94, 96, 98
    vL16 = 1
    nstamp = [0]; env = {}
    SM = "A" if "stA" in opt else ("B" if "stB" in opt else ("P" if "stP" in opt else ("T" if "stT" in opt else "")))
    def st(kind=""):
        if not ts or nstamp[0] >= (14 if "dbgout" in opt else 15) or kind != SM: return []
        nstamp[0] += 1
        return [stamp(nstamp[0] - 1)]
    def finish():
        r = []
        if ts:
            r += ["s_waitcnt vmcnt(0)", stamp(15), "s_waitcnt lgkmcnt(0)", "v_mov_b32 v2, s100", "v_mov_b32 v3, s74",
                  "s_lshl_b32 s76, s2, 2", f"s_add_u32 s76, s76, s{sW}", "s_lshl_b32 s77, s76, 3", f"s_add_u32 s77, s77, {WS_TS}",
                  f"buffer_store_dwordx2 v[2:3], off, {WS}, s77", "s_lshl_b32 s77, s76, 6", f"s_add_u32 s77, s77, {WS_TS + 65536}"]
            for q in range(0, 16, 4):
                r += [f"v_mov_b32 v{4+j}, s{44+2*(q+j)}" for j in range(4)]
                r += [f"buffer_store_dwordx4 v[4:7], off, {WS}, s77 offset:{q*4}", "s_nop 1"]
        if ts and "dbgout" in opt:
            wg = next((x[3:] for x in opt.split() if x.startswith("wg=")), "0")
            r += [f"s_cmp_lg_u32 s2, {wg}", f"s_cbranch_scc1 Lend_{N}", f"s_cmp_lg_u32 s{sW}, 3", f"s_cbranch_scc1 Lend_{N}"] + srd(12, 72, 256)
            for q in range(0, 16, 4):
                for j in range(4): r += [f"s_sub_u32 s76, s{44+2*(q+j)}, s100", f"v_mov_b32 v{4+j}, s76"]
                r += [f"buffer_store_dwordx4 v[4:7], off, s[12:15], 0 offset:{q*4}", "s_nop 1"]
        return flat(r + [f"Lend_{N}:", "s_endpgm"]) + env["fallback"] + flat([f"Lcode_end_{N}:", "s_endpgm"])
    def rnd(r0, r1, t): return [f"v_cvt_pk_bf16_f32 v{t}, v{r0}, v{r1}", f"v_lshlrev_b32 v{r0}, 16, v{t}", f"v_and_b32 v{r1}, 0xffff0000, v{t}"]
    HY = "hy" in opt.split()
    XL = "noxl" not in opt.split() and not HY
    FS = int(next((x[3:] for x in opt.split() if x.startswith("fs=")), 5))
    FB = lambda kind: WS_FLAG + 8192 + (kind + 1)*(256 << FS)
    def flag_off(dst, kind, own, line=None):
        if (XL and kind >= 2) or (HY and kind == 3):
            r = [f"s_and_b32 s{dst}, s2, 7", f"s_lshl_b32 s{dst}, s{dst}, {5 + FS}", f"s_add_u32 s{dst}, s{dst}, {FB(kind)}"]
            if own: r += [f"s_lshr_b32 s{sT0}, s2, 3", f"s_lshl_b32 s{sT0}, s{sT0}, {FS}", f"s_add_u32 s{dst}, s{dst}, s{sT0}"]
            return r + [f"s_cmp_eq_u32 s{sW}, 0", f"s_cselect_b32 s{dst}, s{dst}, {OOB:#x}"]
        r = [f"s_lshl_b32 s{dst}, s{sJ if line is None else line}, {5 + FS}", f"s_add_u32 s{dst}, s{dst}, {FB(kind)}"]
        if own: r += [f"s_lshl_b32 s{sT0}, s{sC}, {FS}", f"s_add_u32 s{dst}, s{dst}, s{sT0}"]
        return r + [f"s_cmp_eq_u32 s{sW}, 0", f"s_cselect_b32 s{dst}, s{dst}, {OOB:#x}"]
    def publish(vt, soff):
        return [f"v_min_u32 v{vt}, 1, v0", f"v_lshlrev_b32 v{vt}, 27, v{vt}", f"v_mov_b32 v{vt+1}, 1",
                VM(f"buffer_store_dword v{vt+1}, v{vt}, {WS}, s{soff} offen sc1", "flag")]
    nct = [0]
    def code_part(a, b, lines, sd, vt, emit=VM):
        nct[0] += 1; l = f"Lct{nct[0]}_{N}"
        return [f"s_getpc_b64 s[{sd}:{sd+1}]", f"{l}:", f"s_add_u32 s{sd}, s{sd}, {a}-{l}", f"s_addc_u32 s{sd+1}, s{sd+1}, 0", f"s_mov_b32 s{sd+2}, {b}-{a}",
                f"s_mov_b32 s{sd+3}, 0x20000", f"s_cmp_eq_u32 s{sW}, 0", f"s_cselect_b32 s{sd+2}, s{sd+2}, 0", f"s_lshr_b32 s{sT0}, s2, 3", f"s_mul_i32 s{sT0}, s{sT0}, {lines*128}",
                f"v_min_u32 v{vt}, {lines - 1}, v0", f"v_lshlrev_b32 v{vt}, 7, v{vt}", emit(f"buffer_load_dword v{vt+1}, v{vt}, s[{sd}:{sd+3}], s{sT0} offen")]
    SLP = {"0": [], "1": "s_sleep 1", "3": "s_sleep 3"}[next((x[4:] for x in opt.split() if x.startswith("slp=")), "1")]
    nsp = [0]
    def check(load, test, scnt, tag, mask=None, every=False):
        nsp[0] += 1; k = f"{N}_{nsp[0]}"
        test = [test, "s_cmp_lg_u64 vcc, 0" if mask is None else f"s_and_b64 vcc, vcc, s[{mask}:{mask+1}]"]
        return flat([W(vm=tag), [] if every else [f"s_cmp_lg_u32 s{sW}, 0", f"s_cbranch_scc1 Lok{k}"], test, f"s_cbranch_scc0 Lok{k}", f"s_mov_b32 s{scnt}, 0x80000",
                     f"Lsp{k}:", f"s_sub_u32 s{scnt}, s{scnt}, 1", f"s_cbranch_scc1 Lok{k}", SLP, load, It("s_waitcnt vmcnt(0)", k="cond"), test,
                     f"s_cbranch_scc1 Lsp{k}", f"Lok{k}:"])

    sCKV, sWK, sWV, sMOD, sCV, sX, sDBG, sCODE = 12, 16, 20, 24, 28, 32, 36, 40
    sWQ, sWO, sU2 = sMOD, sCV, sCODE
    sCOFF, sWKOFF, sWVOFF, sKST, sVST, sM0C, sM0K, sMST, sATO, sADD, sMF, sHST, sSPIN, sRS0 = range(78, 92)
    sRS1 = 7; sMEAN0, sMEAN1 = sMST, sATO
    vWD, vTR, vCD, vCR, vT = 2, 6, 10, 14, 16
    WF, X, ACC = 32, 64, 128
    RING, CBUF, CW = 0, 65536, 24576
    MODRED, MODV, HSTA = 49152, CBUF + 16384, CBUF + CW + 16384
    o = ["s_cmp_ge_u32 s2, 256", f"s_cbranch_scc1 Lend_{N}"] + load_args()
    if ts: o += ["s_memrealtime s[100:101]" if not CYC else "s_memtime s[100:101]"]
    o += [f"s_getpc_b64 s[{sCODE}:{sCODE+1}]", f"Lpc_{N}:", f"s_mov_b32 s{sCODE+2}, Lcode_end_{N}-Lpc_{N}", f"s_mov_b32 s{sCODE+3}, 0x20000",
          f"v_lshlrev_b32 v{vT}, 7, v0"]
    CPM = next((x[4:] for x in opt.split() if x.startswith("cpm=")), "part")
    if CPM == "all": o += [VM(f"buffer_load_dword v{vT+1}, v{vT}, s[{sCODE}:{sCODE+3}], 0 offen", "code")]
    elif CPM == "part":
        o += [f"s_lshr_b32 s{sT0}, s2, 3", f"s_mul_i32 s{sT0}, s{sT0}, 3072", f"v_cmp_gt_u32 vcc, 24, v0", f"v_mov_b32 v{vT+1}, {1 << 27}",
              f"v_cndmask_b32 v{vT}, v{vT+1}, v{vT}, vcc", VM(f"buffer_load_dword v{vT+1}, v{vT}, s[{sCODE}:{sCODE+3}], s{sT0} offen", "code")]
    o += [f"""
    v_lshrrev_b32 v{vT+2}, 6, v0
    v_and_b32 v0, 63, v0
    v_readfirstlane_b32 s{sW}, v{vT+2}
    v_lshlrev_b32 v{vL16}, 4, v0
    s_and_b32 s{sHEAD}, s2, 7
    s_lshl_b32 s{sHEAD}, s{sHEAD}, 2
    s_bfe_u32 s{sT0}, s2, 0x20003
    s_add_u32 s{sHEAD}, s{sHEAD}, s{sT0}
    s_lshr_b32 s{sJ}, s2, 5
    s_and_b32 s{sC}, s2, 31
    v_lshrrev_b32 v{vT+2}, 3, v0
    v_and_b32 v{vT+3}, 7, v0
    """]
    r8, c8 = vT+2, vT+3
    o += [f"""
    v_mul_u32_u24 v{vT+4}, 6144, v{r8}
    v_lshl_add_u32 v{vT+4}, v{c8}, 4, v{vT+4}
    v_lshlrev_b32 v{vT+5}, 1, v{r8}
    v_lshrrev_b32 v{vT+6}, 1, v{r8}
    v_xor_b32 v{vT+6}, v{vT+6}, v{c8}
    v_lshlrev_b32 v{vT+6}, 4, v{vT+6}
    v_lshl_add_u32 v{vCD}, v{r8}, 10, v{vT+6}
    v_xor_b32 v{vCD+1}, 64, v{vCD}
    v_add_u32 v{vCD+1}, {7*1024}, v{vCD+1}
    v_add_u32 v{vCD+2}, {14*1024}, v{vCD}
    v_add_u32 v{vCD+3}, {14*1024}, v{vCD+1}
    v_and_b32 v{vT+6}, 2, v{r8}
    v_xor_b32 v{vT+6}, v{vT+6}, v{c8}
    v_lshlrev_b32 v{vT+6}, 4, v{vT+6}
    v_lshl_add_u32 v{vWD}, v{r8}, 13, v{vT+6}
    v_xor_b32 v{vWD+1}, 64, v{vWD}
    v_add_u32 v{vWD+1}, {65536-1024}, v{vWD+1}
    v_add_u32 v{vWD+2}, {2*(65536-1024)}, v{vWD}
    v_add_u32 v{vWD+3}, {2*(65536-1024)}, v{vWD+1}
    s_and_b32 s{sT0}, s2, 3
    s_lshl_b32 s{sT0}, s{sT0}, 7
    s_lshl_b32 s{sT1}, s{sW}, 5
    s_add_u32 s{sMF}, s{sT0}, s{sT1}
    s_lshl_b32 s{sHST}, s{sMF}, 1
    s_mul_i32 s{sMF}, s{sMF}, 6144
    s_lshr_b32 s{sMST}, s2, 2
    s_lshl_b32 s{sMST}, s{sMST}, 7
    s_add_u32 s{sMF}, s{sMF}, s{sMST}
    s_lshl_b32 s{sCOFF}, s{sJ}, 18
    s_lshl_b32 s{sT0}, s{sW}, 16
    s_add_u32 s{sCOFF}, s{sCOFF}, s{sT0}
    s_mul_i32 s{sM0C}, s{sW}, {CW}
    s_add_u32 s{sM0C}, s{sM0C}, {CBUF}
    s_and_b32 s{sT0}, s{sW}, 1
    s_lshl_b32 s{sWKOFF}, s{sT0}, 18
    s_lshr_b32 s{sT1}, s{sW}, 1
    s_lshl_b32 s{sT1}, s{sT1}, 7
    s_add_u32 s{sWKOFF}, s{sWKOFF}, s{sT1}
    s_lshl_b32 s{sT1}, s{sHEAD}, 8
    s_add_u32 s{sWKOFF}, s{sWKOFF}, s{sT1}
    s_lshl_b32 s{sWVOFF}, s{sW}, 18
    s_add_u32 s{sWVOFF}, s{sWVOFF}, s{sT1}
    s_lshl_b32 s{sM0K}, s{sW}, 12
    s_waitcnt lgkmcnt(0)
    """]
    if SM == "P": o += ["s_memrealtime s[92:93]"]
    o += srd(sMOD, P("wmod"), 512*6144) + srd(sCV, P("c"), 1024) + ["s_cmp_lt_u32 s2, 192", f"s_cselect_b32 s{sMOD+2}, s{sMOD+2}, 0"]
    MW, MC, MA, MT = 64, 80, 84, 92
    for n in range(4): o += [VM(f"buffer_load_ushort v{MC+n}, v{vT+5}, s[{sCV}:{sCV+3}], s{sHST} offen offset:{16*n}", "modc")]
    for n in range(4):
        o += [VM(f"buffer_load_dwordx4 v[{MW+4*n}:{MW+4*n+3}], v{vT+4}, s[{sMOD}:{sMOD+3}], s{sMF} offen{NT1}", ("modw", n))]
        if n < 3: o += [f"s_add_u32 s{sMF}, s{sMF}, {8*6144}"]
    o += srd(sCKV, P("ckv"), 2*MB) + srd(sWK, P("wuk"), 4*MB)
    def c_dma(i):
        g = []
        for hh in range(2):
            grp = [f"s_add_u32 m0, s{sM0C}, {(i % 3)*8192 + hh*4096}", f"s_add_u32 s{sRS0}, s{sCOFF}, {i*128 + hh*32768}"]
            for n in range(4):
                grp.append(VM(f"buffer_load_dwordx4 v{vCD+n}, s[{sCKV}:{sCKV+3}], s{sRS0} offen offset:{n*1024}{' nt' if 'ntc' in opt.split() else ''} lds", ("c", i)))
                g.append(grp); grp = []
        return SEQ(g)
    def page(q): return RING + (q % 4) * 16384
    def w_dma(q):
        sTW = sRS1 if q <= 2 else sT1
        if q < 8: sd, off, m0 = sWK, f"s_add_u32 s{sTW}, s{sWKOFF}, {q*64*8192}", f"s{sM0K}, {page(q)}"
        elif q < 16:
            sd, off = sWV, f"s_add_u32 s{sTW}, s{sWVOFF}, {((q-8)&3)*128*8192 + ((q-8)>>2)*128}"
            m0 = f"s{sM0K}, {page(q)}" if q < 12 else f"s{sM0C}, {(q-12)*4096}"
        else: sd, off, m0 = sWQ, f"s_add_u32 s{sTW}, s{sWKOFF}, {(q-16)*64*8192}", f"s{sM0K}, {(q-16)*16384}"
        g = []; grp = [f"s_add_u32 m0, {m0}", off]
        for n in range(4):
            grp.append(VM(f"buffer_load_dwordx4 v{vWD+n}, s[{sd}:{sd+3}], s{sTW} offen offset:{n*1024}{' nt' if (q < 8 and 'ntk' in opt.split()) or (8 <= q < int(OV('ntv', 0))) else NT} lds", ("w", q)))
            g.append(grp); grp = []
        return SEQ(g)
    OPT = opt.split()
    def OV(k, d): return next((x.split("=")[1] for x in OPT if x.startswith(k + "=")), d)
    o += [c_dma(0), w_dma(0)] + (["s_memrealtime s[94:95]"] if SM == "P" else []) + srd(sWV, P("wuv"), 4*MB)
    OPT = opt.split()
    def OV(k, d): return next((x.split("=")[1] for x in OPT if x.startswith(k + "=")), d)
    vTD = vT+1
    vPC, vPW = 96, 97
    def pf_addr(vc, vw):
        return [f"v_lshrrev_b32 v{vw}, 4, v0", f"v_and_b32 v{vc}, 15, v0", f"v_lshlrev_b32 v{vc}, 4, v{vc}",
                f"v_lshl_add_u32 v{vw+1}, v{vw}, 13, v{vc}", f"v_lshl_add_u32 v{vc}, v{vw}, 10, v{vc}", f"v_mov_b32 v{vw}, v{vw+1}"]
    def pf_c(dummy):
        g = []; grp = [f"s_add_u32 m0, s{sM0C}, {dummy}", f"s_bfe_u32 s{sRS0}, s2, 0x20003", f"s_lshl_b32 s{sRS0}, s{sRS0}, 16", f"s_lshl_b32 s{sRS1}, s{sJ}, 18",
                       f"s_add_u32 s{sRS0}, s{sRS0}, s{sRS1}", f"s_lshl_b32 s{sRS1}, s{sW}, 14", f"s_add_u32 s{sRS0}, s{sRS0}, s{sRS1}"]
        for col in range(1, 4):
            for rg in range(4):
                grp += [f"s_add_u32 s{sRS1}, s{sRS0}, {rg*4096 + col*256}", VM(f"buffer_load_dwordx4 v{vPC}, s[{sCKV}:{sCKV+3}], s{sRS1} offen lds", "pf")]
                g.append(grp); grp = []
        return SEQ(g)
    def pf_w(sd, vw, dummy, first, sRS0=sRS0, sRS1=sRS1, reg=None):
        g = []; grp = [f"s_add_u32 m0, s{sM0C}, {dummy}", f"s_lshr_b32 s{sRS0}, s{sW}, 1", f"s_lshl_b32 s{sRS0}, s{sRS0}, 3", f"s_add_u32 s{sRS0}, s{sRS0}, s{sJ}",
                       f"s_lshl_b32 s{sRS0}, s{sRS0}, 1", f"s_and_b32 s{sRS1}, s{sW}, 1", f"s_add_u32 s{sRS0}, s{sRS0}, s{sRS1}", f"s_lshl_b32 s{sRS0}, s{sRS0}, 15",
                       f"s_lshl_b32 s{sRS1}, s{sHEAD}, 8", f"s_add_u32 s{sRS0}, s{sRS0}, s{sRS1}"]
        for q in range(first, 8, 2):
            if reg is not None and q == first: grp = grp[1:]
            grp += [f"s_add_u32 s{sRS1}, s{sRS0}, {q*64*8192}", VM(f"buffer_load_dwordx4 v{vw}, s[{sd}:{sd+3}], s{sRS1} offen{NTT} lds" if reg is None else
                                                                    f"buffer_load_dwordx4 {vr(reg, 4)}, v{vw}, s[{sd}:{sd+3}], s{sRS1} offen{NTT}", "pf")]
            g.append(grp); grp = []
        return SEQ(g)
    PF = "nopf" not in OPT
    o += pf_addr(vPC, vPW)
    pfa = (pf_w(sWK, vPW, 16384, 2) if "pfk" in OPT else []) + (pf_c(16384) if "pfc" in OPT else [])
    NPRE = int(OV("npre", 2))
    ilv = sum((c_dma(i) + w_dma(i) for i in range(1, NPRE + 1)), []) if "ilv" in OPT else []
    pro0 = len(o)
    o += ([] if ilv else [c_dma(1), w_dma(1)]) + ([pfa] if "pfpre" in OPT else []) + (["s_memrealtime s[96:97]"] if SM == "P" else []) + srd(sWS, P("ws"), WS_SIZE)
    KF, VF, SF = 0, 5120, 6144
    vZA, vZD = vT+14, vT+15
    o += [f"""
    v_lshlrev_b32 v{vZA}, {8 + FS}, v0
    s_lshl_b32 s{sT0}, s2, {FS}
    s_add_u32 s{sT0}, s{sT0}, 8192
    v_add_u32 v{vZA}, s{sT0}, v{vZA}
    s_lshl_b32 s{sT0}, s{sHEAD}, 5
    s_lshl_b32 s{sT1}, s{sJ}, 2
    s_add_u32 s{sT0}, s{sT0}, s{sT1}
    v_writelane_b32 v{vZA}, s{sT0}, 0
    s_add_u32 s{sT0}, s{sT0}, {VF}
    v_writelane_b32 v{vZA}, s{sT0}, 5
    s_lshl_b32 s{sT0}, s2, 2
    s_add_u32 s{sT0}, s{sT0}, {SF}
    v_writelane_b32 v{vZA}, s{sT0}, 6
    v_mov_b32 v{vZD}, {1 << 27}
    v_cmp_gt_u32 vcc, 7, v0
    v_cndmask_b32 v{vZA}, v{vZD}, v{vZA}, vcc
    v_mov_b32 v{vZD}, 0
    s_mov_b32 s{sSPIN}, {WS_FLAG}
    s_cmp_eq_u32 s{sW}, 0
    s_cselect_b32 s{sSPIN}, s{sSPIN}, {OOB:#x}
    """, VM(f"buffer_store_dword v{vZD}, v{vZA}, {WS}, s{sSPIN} offen sc1", "zero")]
    for i in (32768, 65536) if CPM == "all" else ():
        o += [f"s_mov_b32 s{sT0}, {i}", VM(f"buffer_load_dword v{vT+1}, v{vT}, s[{sCODE}:{sCODE+3}], s{sT0} offen", "code2")]
    o += srd(sX, P("x"), 2*MB) + srd(sDBG, P("dbg"), 256) + srd(sWQ, P("wq"), 4*MB) + srd(sWO, P("wo"), 4*MB)
    EARLY = "s_waitcnt lgkmcnt(0)\ns_mov_b32 s66, s92\ns_mov_b32 s68, s94\ns_mov_b32 s72, s96" if SM == "P" else ""
    PW2 = 100 if not ts else 74
    o += srd(sU2, P("w1"), 1792*1024) + [f"""
    s_mov_b64 s[{PW2}:{PW2+1}], s[{P('w2')}:{P('w2')+1}]
    {EARLY}
    s_mov_b64 s[{pX}:{pX+1}], s[{P('x')}:{P('x')+1}]
    s_mov_b64 s[{pB1}:{pB1+1}], s[{P('b1')}:{P('b1')+1}]
    s_mov_b64 s[{pB2}:{pB2+1}], s[{P('b2')}:{P('b2')+1}]
    s_mov_b64 s[{pOUT}:{pOUT+1}], s[{P('out')}:{P('out')+1}]
    v_lshrrev_b32 v{vT+6}, 4, v0
    v_bfe_u32 v{vT+7}, v0, 2, 2
    v_lshl_add_u32 v{vT+8}, v{vT+6}, 3, v{vT+7}
    v_lshlrev_b32 v{vT+8}, 7, v{vT+8}
    v_and_b32 v{vT+9}, 3, v0
    v_lshl_add_u32 v{vT+8}, v{vT+9}, 3, v{vT+8}
    v_and_b32 v{vT+9}, 1, v{vT+6}
    v_lshlrev_b32 v{vT+9}, 1, v{vT+9}
    v_lshrrev_b32 v{vT+10}, 1, v{vT+7}
    v_or_b32 v{vT+9}, v{vT+9}, v{vT+10}
    v_lshl_add_u32 v{vTR}, v{vT+9}, 5, v{vT+8}
    v_xor_b32 v{vTR+1}, 32, v{vTR}
    v_xor_b32 v{vTR+2}, 64, v{vTR}
    v_xor_b32 v{vTR+3}, 0x60, v{vTR}
    v_and_b32 v{vT+7}, 15, v0
    v_lshrrev_b32 v{vT+8}, 1, v{vT+7}
    v_xor_b32 v{vT+8}, v{vT+8}, v{vT+6}
    v_lshlrev_b32 v{vT+8}, 4, v{vT+8}
    v_lshl_add_u32 v{vT+8}, v{vT+7}, 7, v{vT+8}
    v_add_u32 v{vCR}, s{sM0C}, v{vT+8}
    v_xor_b32 v{vCR+1}, 64, v{vCR}
    s_lshl_b32 s{sKST}, s{sHEAD}, 20
    s_lshl_b32 s{sT0}, s{sJ}, 17
    s_add_u32 s{sKST}, s{sKST}, s{sT0}
    s_lshl_b32 s{sT0}, s{sW}, 15
    s_add_u32 s{sKST}, s{sKST}, s{sT0}
    s_add_u32 s{sVST}, s{sKST}, 16384
    s_and_b32 s{sT0}, s2, 3
    s_mul_i32 s{sT0}, s{sT0}, 12288
    s_lshl_b32 s{sMST}, s{sMST}, 1
    s_add_u32 s{sMST}, s{sMST}, s{sT0}
    s_add_u32 s{sMST}, s{sMST}, {WS_MODP}
    s_cmp_lt_u32 s2, 192
    s_cselect_b32 s{sT0}, s{sW}, 1
    s_cmp_eq_u32 s{sT0}, 0
    s_cselect_b32 s{sMST}, s{sMST}, {OOB:#x}
    s_and_b32 s{sATO}, s2, 63
    s_lshl_b32 s{sATO}, s{sATO}, 2
    s_cmp_eq_u32 s{sW}, 0
    s_cselect_b32 s{sATO}, s{sATO}, 256
    s_cmp_ge_u32 s{sW}, 2
    s_cselect_b32 s{sADD}, 1.0, 0
    """]
    o += st("P") + [W(vm="code" if SM == "P" else "modc")] + st("P") + [W(vm="modc")] + st("P")
    for n in range(4): o += [f"v_lshlrev_b32 v{MC+n}, 16, v{MC+n}"]
    for n in range(4): o += [f"v_mul_f32 v{MT+n}, {fbits(-1.4426950408889634)}, v{MC+n}"]
    for n in range(4): o += [f"v_exp_f32 v{MT+n}, v{MT+n}"]
    for n in range(4): o += [f"v_add_f32 v{MT+n}, 1.0, v{MT+n}"]
    for n in range(4): o += [f"v_rcp_f32 v{MT+n}, v{MT+n}"]
    for n in range(4): o += [f"v_mul_f32 v{MC+n}, v{MC+n}, v{MT+n}"]
    for n in range(4): o += [f"v_cvt_pk_bf16_f32 v{MC+n}, v{MC+n}, v{MC+n}"]
    for n in range(4): o += [f"v_lshlrev_b32 v{MC+n}, 16, v{MC+n}"]
    for n in range(4):
        o += [W(vm=[("modw", n)])]
        for j in range(4):
            o += [f"v_lshlrev_b32 v{MT}, 16, v{MW+4*n+j}", f"v_and_b32 v{MT+1}, 0xffff0000, v{MW+4*n+j}"]
            if n == 0: o += [f"v_mul_f32 v{MA+2*j}, v{MC}, v{MT}", f"v_mul_f32 v{MA+2*j+1}, v{MC}, v{MT+1}"]
            else: o += [f"v_fmac_f32 v{MA+2*j}, v{MC+n}, v{MT}", f"v_fmac_f32 v{MA+2*j+1}, v{MC+n}, v{MT+1}"]
    for j in range(8): o += [f"v_add_f32_dpp v{MA+j}, v{MA+j}, v{MA+j} row_ror:8 row_mask:0xf bank_mask:0xf"]
    for j in range(0, 8, 2): o += [f"v_permlane16_swap_b32 v{MA+j}, v{MA+j+1}"]
    for j in range(0, 8, 2): o += [f"v_add_f32 v{MA+j}, v{MA+j}, v{MA+j+1}"]
    for j in (0, 4): o += [f"v_permlane32_swap_b32 v{MA+j}, v{MA+j+2}"]
    for j in (0, 4): o += [f"v_add_f32 v{MA+j}, v{MA+j}, v{MA+j+2}"]
    vL4, vL256, vONE = vT+4, vT+5, vT+6
    o += [f"""
    v_lshrrev_b32 v{MT}, 4, v0
    v_lshl_add_u32 v{MT}, v{c8}, 3, v{MT}
    v_lshlrev_b32 v{MT}, 2, v{MT}
    s_lshl_b32 s{sT0}, s{sW}, 8
    v_add_u32 v{MT}, s{sT0}, v{MT}
    """, LG(f"ds_write_b32 v{MT}, v{MA} offset:{MODRED}", "mr"), LG(f"ds_write_b32 v{MT}, v{MA+4} offset:{MODRED+16}", "mr"),
    f"v_lshlrev_b32 v{vL4}, 2, v0", f"v_lshlrev_b32 v{vL256}, 8, v0", f"v_mov_b32 v{vONE}, 1"]
    def Cfrag(kt, s): return ar((s*4+kt)*4, 4)
    def c_reads(i):
        return [LG(f"ds_read_b128 {Cfrag(kt, 2*i+sp)}, v{vCR+sp} offset:{(i % 3)*8192 + kt*2048}", ("cr", i)) for sp in range(2) for kt in range(4)]
    if ilv:
        rest = scc_groups(o[pro0:]); n_ = len(rest)
        for k in reversed(range(len(ilv))): rest.insert((k*n_)//len(ilv), ilv[k])
        o = o[:pro0] + rest
    o += st("P") + [W(vm=[("c", 0)])] + st("P") + [c_reads(0), W(vm=[("w", 0)], lg="mr")] + st("P") + ["s_barrier"] + st("P")

    QA, HR = 64, 192
    aK, aV = 128, 160
    def accK(dt, kt): return ACC + (dt*4+kt)*4
    def acc(dt, qi): return QA + (dt*4+qi)*4
    HE = "he" in OPT
    def Hf(s, qi): return vr((0 if HE and 4 <= s < 8 else HR) + ((s & 3)*4+qi)*4, 4, "a" if s & 4 else "v")
    frags = []
    for s2 in range(0, 16, 2):
        for dt in range(8):
            for s in (s2, s2+1):
                frags.append((s >> 1, page(s >> 1) + (dt >> 2)*8192 + (s & 1)*4096, dt & 3, [(accK(dt, kt), "W", Cfrag(kt, s), s == 0) for kt in range(4)]))
    for s2 in range(0, 16, 2):
        for t in range(4):
            for s in (s2, s2+1):
                frags.append((8 + (s >> 2), page(8 + (s >> 2)) + (s & 3)*4096, t, [(X + (t*4+kt)*4, Cfrag(kt, s), "W", s == 0) for kt in range(4)]))
    for hb in range(2):
        for s2 in range(0, 16, 2):
            for t in (2*hb, 2*hb+1):
                for s in (s2, s2+1):
                    frags.append((12 + (s >> 2), CBUF + (s & 3)*CW + (s >> 2)*4096, t, [(ACC + (t*4+kt)*4, Cfrag(kt, s), "W", s == 0) for kt in range(4)]))
    for s2 in range(0, 16, 2):
        for dt in range(8):
            for s in (s2, s2+1):
                frags.append((16 + (s >> 1), (s >> 1)*16384 + (dt >> 2)*8192 + (s & 1)*4096, dt & 3, [(acc(dt, qi), "W", Hf(s, qi), s == 0) for qi in range(4)]))
    KE = "noke" not in OPT
    def wreg(f): return ("v", WF + (f % 8)*4) if f < 256 else (("a", aV + (f % 8)*4) if KE else ("a", aK + (f % 16)*4))
    slots = []
    CH = "nochain" not in OPT
    for f in range(0, len(frags), 2):
        for n, k in ([(n, k) for n in range(4) for k in range(2)] if CH else [(n, k) for k in range(2) for n in range(4)]):
            fl, r = wreg(f + k); wf = vr(r, 4, fl); d, a_, b_, first = frags[f + k][3][n]
            sl = Slot(I(f"v_mfma_f32_16x16x32_bf16 {vr(d,4)}, {wf if a_ == 'W' else a_}, {wf if b_ == 'W' else b_}, {'0' if first else vr(d,4)}"))
            if n == 0 and k == 0:
                sl.pre.append(W(lg=[("wf", f+1)]))
                if f < 128 and f % 16 == 0: sl.pre.append(W(lg=[("cr", f//16)]))
                if f >= 256 and f % 16 == 0: sl.pre.append(W(vm=[("h", (f-256)//8 + 1)]))
            slots.append(sl)
    LA = 4
    wbase = [0]; bar = {}
    vTR2 = vCD
    def frag_reads(f):
        q, a, t, _ = frags[f]; g = []
        fl, r = wreg(f)
        if a >= 131072: return g, [LG(f"ds_read_b64_tr_b16 {vr(r+2*hh, 2, fl)}, v{vTR2+t} offset:{a - 131072 + hh*512}", ("wf", f)) for hh in range(2)]
        wb = a & 65536
        if wb != wbase[0]:
            g += [f"v_xor_b32 v{vTR+i}, 0x10000, v{vTR+i}" for i in range(4)]; wbase[0] = wb
        return g, [LG(f"ds_read_b64_tr_b16 {vr(r+2*hh, 2, fl)}, v{vTR+t} offset:{a - wb + hh*512}", ("wf", f)) for hh in range(2)]
    for f in range(LA):
        g, rd = frag_reads(f); o += g + rd
    valid = {0}
    VAL = {12: [12, 13, 14, 15], 16: [16, 17, 18, 19]}
    for f in range(LA, len(frags)):
        q = frags[f][0]; i = (f - LA)*4
        if q not in valid or (q > 16 and f % 16 == 0):
            qs = VAL.get(q, [q]); valid.update(qs); bar[q] = i - 1
            slots[i-1].alu += [W(vm=[("w", x) for x in qs]), I("s_barrier")]
        g, rd = frag_reads(f)
        slots[i-1].alu += flat(g)
        slots[i].mem.append(rd[0]); slots[i+1].mem.append(rd[1])
    def put(groups, b, step=4, where="mem"):
        for n, g in enumerate(groups): getattr(slots[b + step*n], where).append(g)
    def up(b, r):
        while (b & 3) != r: b += 1
        return b
    def lq(groups, b):
        put(groups, up(b, 3)); return up(b, 3) + 4*(len(groups) - 1)
    vused = set()
    def vq(groups, b, stride=1):
        k = up(b, 2) >> 2; last = b
        for g in groups:
            while k in vused: k += 1
            vused.add(k); slots[4*k + 2].mem.append(g); last = 4*k + 2; k += stride
        return last
    def sq(text, b, e): spread(slots, SEQ(scc_groups(text)), b, e)
    def before_bar(q, items): slots[bar[q]].alu[0:0] = flat(items)
    def pre(items, groups): groups[0] = flat(items) + groups[0]; return groups
    cend = {}
    for p in range(7):
        rd = c_reads(p+1); rd[0] = [W(vm=[("c", p+1)]), rd[0]]
        cend[p+1] = lq(rd, p*64 + int(OV('crd', 20)))
    MR = vT + 8
    vq([[W(lg="mr2"), f"v_add_f32 v{MR}, v{MR}, v{MR+1}", f"v_add_f32 v{MR+2}, v{MR+2}, v{MR+3}", f"v_add_f32 v{MR}, v{MR}, v{MR+2}",
         VM(f"buffer_store_dword v{MR}, v{vL4}, {WS}, s{sMST} offen sc1", "mst")]], 14)
    sq([f"v_and_b32 v{vTR2+i}, 0xffff, v{vTR+i}" for i in range(4)] + [f"v_or_b32 v{vTR2+i}, 0x20000, v{vTR2+i}" for i in range(4)], 520, 540)
    lq([LG(f"ds_read2st64_b32 v[{MR}:{MR+1}], v{vL4} offset0:192 offset1:193", "mr2"),
        LG(f"ds_read2st64_b32 v[{MR+2}:{MR+3}], v{vL4} offset0:194 offset1:195", "mr2")], 0)
    vq([[W(vm=["mst", "zero"]), VM(f"buffer_atomic_add v{vONE}, v{vL256}, s[{sDBG}:{sDBG+3}], s{sATO} offen sc1")]], 100)
    XR, F0, F1, TT, AV, BV, PP, MF = 64, 72, 80, 88, 92, 100, 108, 124
    sq([f"""
    s_sub_u32 s{sHST}, 15, s{sJ}
    s_cmp_lt_u32 s{sC}, 16
    s_cselect_b32 s{sHST}, s{sJ}, s{sHST}
    s_lshl_b32 s{sHST}, s{sHST}, 4
    s_and_b32 s{sMF}, s{sC}, 15
    s_add_u32 s{sHST}, s{sHST}, s{sMF}
    s_lshl_b32 s{sMF}, s{sHST}, 13
    s_lshl_b32 s{sSPIN}, s{sW}, 11
    s_add_u32 s{sMF}, s{sMF}, s{sSPIN}
    """], 20, 40)
    xe = vq([VM(f"buffer_load_dwordx4 {vr(XR+4*k,4)}, v{vL16}, s[{sX}:{sX+3}], s{sMF} offen offset:{1024*k}{' nt' if 'ntx' in OPT else ''}", "x") for k in range(2)], 104)

    g = []
    for j in range(4):
        for F, xr in ((F0, XR), (F1, XR+4)): g += [f"v_lshlrev_b32 v{F+2*j}, 16, v{xr+j}", f"v_and_b32 v{F+2*j+1}, 0xffff0000, v{xr+j}"]
    g[0] = [W(vm="x"), g[0]]
    def reduce2(sa, sb, post):
        r = []
        for m in ("quad_perm:[1,0,3,2]", "quad_perm:[2,3,0,1]", "row_ror:4", "row_ror:8"):
            r += [f"v_add_f32_dpp v{TT}, v{TT}, v{TT} {m} row_mask:0xf bank_mask:0xf", f"v_add_f32_dpp v{TT+1}, v{TT+1}, v{TT+1} {m} row_mask:0xf bank_mask:0xf"]
        r += [f"v_permlane16_swap_b32 v{TT}, v{TT+1}", f"v_add_f32 v{TT}, v{TT}, v{TT+1}", f"v_mov_b32 v{TT+1}, v{TT}",
              f"v_permlane32_swap_b32 v{TT}, v{TT+1}", f"v_add_f32 v{TT}, v{TT}, v{TT+1}"] + post
        return r + [f"v_readlane_b32 s{sa}, v{TT}, 0", f"v_readlane_b32 s{sb}, v{TT}, 16"]
    for j in range(1, 8):
        for k, F in enumerate((F0, F1)): g += [f"v_add_f32 v{TT+k}, v{F if j == 1 else TT+k}, v{F+j}"]
    g += reduce2(sMEAN0, sMEAN1, [f"v_mul_f32 v{TT}, {fbits(1/512)}, v{TT}"])
    for j in range(8):
        for F, sm in ((F0, sMEAN0), (F1, sMEAN1)): g += [f"v_subrev_f32 v{F+j}, s{sm}, v{F+j}"]
    for j in range(8):
        for k, F in enumerate((F0, F1)): g += [f"v_mul_f32 v{TT+k}, v{F}, v{F}" if j == 0 else f"v_fmac_f32 v{TT+k}, v{F+j}, v{F+j}"]
    g += reduce2(sRS0, sRS1, [f"v_mov_b32 v{TT+1}, {fbits(EPS)}", f"v_fmac_f32 v{TT+1}, {fbits(1/512)}, v{TT}", f"v_rsq_f32 v{TT}, v{TT+1}"])
    for j in range(8):
        for F, rs in ((F0, sRS0), (F1, sRS1)): g += [f"v_mul_f32 v{F+j}, s{rs}, v{F+j}"]
    assert xe < 200
    spread(slots, g, max(xe + 60, 200), 360)
    ld = f"buffer_load_dword v{MR}, v{vL4}, s[{sDBG}:{sDBG+3}], 0 offen sc1"
    vq([VM(ld, "poll1")], 226)
    e = 0
    if pfa and "pfpre" not in OPT:
        for k, g in enumerate(pfa): slots[2*k + 1].alu.append(g)
        e = 2*len(pfa) + 2
    CP = int(OV("cp", 0))
    sPC, sPW = sWVOFF + 0, sVST + 0
    def cp_c(i): return [[VM(f"buffer_load_dwordx4 v[28:31], v{vCD}, s[{sCKV}:{sCKV+3}], s0 offen offset:{i*128}", "pf")] + ([f"s_xor_b32 s0, s0, 8192"])for n in range(2)] if CP and i < 8 else []
    def cp_w(q): return [[VM(f"buffer_load_dwordx4 v[28:31], v{vPW}, s[{sWK}:{sWK+3}], s1 offen", "pf"), f"s_add_u32 s1, s1, {2*64*8192}"]] if CP > 1 and q < 8 else []
    if CP:
        def vx(groups, b): put(groups, up(b, 0))
        vx(cp_c(3) + cp_w(3), 0); e = vq(c_dma(2), 0); e = vq(w_dma(2), e)
        for i in range(3, 8):
            vx(cp_c(i+1) + (cp_w(i+2) if i & 1 else []), max(e, cend.get(i-3, 0) + 8) - int(OV("cpl", 0)))
            e = vq(pre([W(lg=[("cr", i-3)])], c_dma(i)), max(e, cend.get(i-3, 0) + 8)); assert e < (i-1)*64 + 10, (i, e)
            if i < 7: e = vq(w_dma(i), max(e, bar[i-2]))
    BU = int(OV("burst", 0))
    if BU:
        first = c_dma(2) + w_dma(2) + c_dma(3)
        for k, g in enumerate(first): slots[k*BU//2].mem.append(g)
        for k in range((len(first)*BU//2)//4 + 1): vused.add(k)
        e = len(first)*BU//2
    elif not CP: e = vq(c_dma(2), e); e = vq(w_dma(2), e)
    if not BU and not CP: e = vq(c_dma(3), e)
    if not CP: e = vq(w_dma(3), max(e, bar[1]))
    for i in range(4, 8 if not CP else 0):
        e = vq(pre([W(lg=[("cr", i-3)])], c_dma(i)), max(e, cend[i-3] + 8))
        assert e < (i-1)*64 - 10, (i, e)
        if i < 7: e = vq(w_dma(i), max(e, bar[i-2]))
    before_bar(5, check(ld, f"v_cmp_gt_u32 vcc, 4, v{MR}", sSPIN, "poll1"))
    sq([f"s_lshl_b32 s{sMF}, s{sW}, 10", f"s_add_u32 s{sMF}, s{sMF}, {WS_MODP}"], bar[5] - 8, bar[5] - 4)
    e = vq([[VM(f"buffer_load_dwordx4 {vr(PP+4*n,4)}, v{vL16}, {WS}, s{sMF} offen sc1", "pp"), f"s_add_u32 s{sMF}, s{sMF}, 12288"] for n in range(4)], bar[5] + 1)
    g = [[VM(f"buffer_load_dword v{MF+n}, v{vL4}, {WS}, s{sMF} offen sc1", "mf"), f"s_add_u32 s{sMF}, s{sMF}, 12288"] for n in range(4)]
    e = vq(pre([f"s_lshl_b32 s{sMF}, s{sC}, 10", f"s_lshl_b32 s{sSPIN}, s{sW}, 8", f"s_add_u32 s{sMF}, s{sMF}, s{sSPIN}",
                f"s_mul_i32 s{sSPIN}, s{sJ}, 12288", f"s_add_u32 s{sSPIN}, s{sSPIN}, s{sMF}", f"s_add_u32 s{sSPIN}, s{sSPIN}, {WS_MODF}",
                f"s_add_u32 s{sMF}, s{sMF}, {WS_MODP}", f"s_cmp_lt_u32 s{sC}, 12",
                f"s_cselect_b32 s{sMF}, s{sMF}, {OOB:#x}", f"s_cselect_b32 s{sSPIN}, s{sSPIN}, {OOB:#x}"], g), e)
    assert e < 372
    e = vq(w_dma(7), max(e, bar[5])); assert e < bar[7] - 60
    if PF and "nopv" not in OPT: e = vq(pre([W(lg=[("cr", 5)])], pf_w(sWV, vPW, 16384 + 6144, 0, sX, sX+1)), max(e, cend[5] + 8))
    e = vq(w_dma(8), max(e, bar[6]))
    if PF and "pq1" in OPT: e = vq(pf_w(sWQ, vPW, 16384 + 6144, 0, sX, sX+1), e + 16); assert e < bar[7]
    e = vq(w_dma(9), max(e, bar[7]))
    if PF and OV("pqs", None):
        sq([f"v_mov_b32 v{vT+12}, v{vPW}"], 300, 301); e_ = vq(pf_w(sWQ, vT+12, 0, 0, sX+2, sX+3, reg=vCD), int(OV("pqs", 0)), int(OV("pqd", 8))); assert e_ < 516
    elif PF and "pq1" not in OPT and "nopq" not in OPT:
        sq([f"v_mov_b32 v{vT+12}, v{vPW}"], 400, 401); e = vq(pf_w(sWQ, vT+12, 16384 + 6144, 0, sX, sX+1), max(e, int(OV("pqa", 470)))); assert e < bar[8]
    e = e; e = vq(w_dma(10), max(e, bar[8] + 14))

    if "w12late" in OPT: e = vq(w_dma(11), max(e, bar[9] + 6)); e = vq(w_dma(12), e + 4); e = vq(w_dma(13), e + 4); e = vq(w_dma(14), e + 4); e = vq(w_dma(15), e + 4)
    else: e = vq(w_dma(12), e + 8); e = vq(w_dma(11), max(e, bar[9] + 6)); e = vq(w_dma(13), e + 8); e = vq(w_dma(14), e + 12); e = vq(w_dma(15), e + 12)
    assert e < 690
    g = [[W(vm="pp"), f"v_add_f32 v{PP}, v{PP}, v{PP+4}"]] + [f"v_add_f32 v{PP+j}, v{PP+j}, v{PP+4+j}" for j in range(1, 4)]
    g += [f"v_add_f32 v{PP+8+j}, v{PP+8+j}, v{PP+12+j}" for j in range(4)] + [f"v_add_f32 v{PP+j}, v{PP+j}, v{PP+8+j}" for j in range(4)]
    g += rnd(PP, PP+1, PP+4) + rnd(PP+2, PP+3, PP+5) + [f"v_add_f32 v{PP+j}, s{sADD}, v{PP+j}" for j in range(4)]
    g += rnd(PP, PP+1, PP+4) + rnd(PP+2, PP+3, PP+5) + [f"v_mul_f32 v{PP+j}, {fbits(CSCALE)}, v{PP+j}" for j in range(4)]
    g += [f"s_lshl_b32 s{sMF}, s{sW}, 10", f"s_add_u32 s{sMF}, s{sMF}, {MODV}", f"v_add_u32 v{PP+4}, s{sMF}, v{vL16}", f"v_lshlrev_b32 v{TT}, 5, v0", f"v_add_u32 v{TT}, {MODV}, v{TT}"]
    g += [[W(vm="mf"), f"v_add_f32 v{MF}, v{MF}, v{MF+1}"], f"v_add_f32 v{MF+2}, v{MF+2}, v{MF+3}", f"v_add_f32 v{MF}, v{MF}, v{MF+2}",
          f"v_cvt_pk_bf16_f32 v{MF}, v{MF}, v{MF}", f"v_lshlrev_b32 v{vT+11}, 16, v{MF}"]
    spread(slots, g, 372, 424)
    lq([LG(f"ds_write_b128 v{PP+4}, {vr(PP,4)}", "mv")], 425)
    assert bar[7] > 427
    before_bar(7, [W(lg="mv")])
    put([LG(f"ds_read_b128 {vr(r,4)}, v{TT} offset:{off}", "ab") for r, off in ((BV, 0), (BV+4, 16), (AV, 2048), (AV+4, 2064))], bar[7] + 1, 2)
    g = []
    for j in range(8):
        for F in (F0, F1): g += [f"v_fma_f32 v{F+j}, v{F+j}, v{AV+j}, v{BV+j}"]
    g[0] = [W(lg="ab"), g[0]]
    for j in range(4):
        for F, xr in ((F0, XR), (F1, XR+4)): g += [f"v_cvt_pk_bf16_f32 v{xr+j}, v{F+2*j}, v{F+2*j+1}"]
    HA, HG, HD = vT+2, vT+3, vT+12
    g += [f"s_lshr_b32 s{sMF}, s{sW}, 1", f"s_mul_i32 s{sMF}, s{sMF}, {CW - 4160}", f"s_mul_i32 s{sADD}, s{sW}, 2080", f"s_add_u32 s{sMF}, s{sMF}, s{sADD}",
          f"s_add_u32 s{sMF}, s{sMF}, {HSTA}", f"v_add_u32 v{TT}, s{sMF}, v{vL16}"]
    g += [x.t for x in flat([f"""
    v_and_b32 v{HG}, 7, v0
    v_lshrrev_b32 v{TT+2}, 3, v0
    v_mul_u32_u24 v{HA}, 1040, v{HG}
    v_lshrrev_b32 v{TT+3}, 2, v{HG}
    v_mul_u32_u24 v{TT+3}, {CW - 4160}, v{TT+3}
    v_add_u32 v{HA}, v{HA}, v{TT+3}
    v_lshl_add_u32 v{HA}, v{TT+2}, 4, v{HA}
    s_lshl_b32 s{sMF}, s{sW}, 8
    s_add_u32 s{sMF}, s{sMF}, {HSTA}
    v_add_u32 v{HA}, s{sMF}, v{HA}
    v_lshlrev_b32 v{HG}, 4, v{HG}
    v_and_b32 v{TT+3}, 3, v{TT+2}
    v_lshl_add_u32 v{HG}, v{TT+3}, 8, v{HG}
    v_lshrrev_b32 v{TT+2}, 2, v{TT+2}
    v_lshl_add_u32 v{HG}, v{TT+2}, 10, v{HG}
    s_and_b32 s{sMF}, s{sHST}, 1
    s_lshr_b32 s{sHST}, s{sHST}, 1
    s_lshl_b32 s{sHST}, s{sHST}, 14
    s_lshl_b32 s{sMF}, s{sMF}, 7
    s_add_u32 s{sHST}, s{sHST}, s{sMF}
    s_lshl_b32 s{sMF}, s{sW}, 12
    s_add_u32 s{sHST}, s{sHST}, s{sMF}
    s_add_u32 s{sHST}, s{sHST}, {WS_H}
    """])]
    spread(slots, g, bar[7] + 12, 488)
    put([LG(f"ds_write_b128 v{TT}, {vr(XR+4*k,4)} offset:{1040*k}", "hw") for k in range(2)], 489, 2)
    assert bar[8] > 491
    before_bar(8, [W(lg="hw")])
    put([LG(f"ds_read_b128 {vr(XR+56+4*k,4)}, v{HA} offset:{128*k}", "hr") for k in range(2)], bar[8] + 1, 1)
    e = vq([VM(f"buffer_store_dword v{vT+11}, v{vL4}, {WS}, s{sSPIN} offen sc1", "hst")] +
           [[W(lg="hr"), VM(f"buffer_store_dwordx4 {vr(XR+56+4*k,4)}, v{HG}, {WS}, s{sHST} offen offset:{2048*k} sc1", "hst")] for k in range(2)], bar[8] + 1)
    assert e < 524
    HB_ = int(OV("hb", 10))
    before_bar(HB_, [W(vm="hst")])
    sq(flag_off(sMF, 0, True), bar[HB_] - 12, bar[HB_] - 11)
    vq([publish(vT+2, sMF)], bar[HB_] + 1)
    def pack(dst, qa, qb):
        return [f"v_cvt_pk_bf16_f32 v{dst}, v{qa}, v{qa+1}", f"v_cvt_pk_bf16_f32 v{dst+1}, v{qa+2}, v{qa+3}",
                f"v_cvt_pk_bf16_f32 v{dst+2}, v{qb}, v{qb+1}", f"v_cvt_pk_bf16_f32 v{dst+3}, v{qb+2}, v{qb+3}"]
    def store(src, sreg, off, tag):
        return [f"s_add_u32 s{sT0}, s{sreg}, {off & ~4095}", VM(f"buffer_store_dwordx4 {vr(src,4)}, v{vL16}, {WS}, s{sT0} offen offset:{off & 4095} sc1", tag)]
    def at23(e):
        while (e & 3) < 2: e += 1
        return e
    kl = [(s4, kt) for s4 in (2, 3, 0, 1) for kt in range(4)]
    for n, (s4, kt) in enumerate(kl):
        dst = accK({2: 4, 3: 6, 0: 5, 1: 7}[s4], kt)
        b = 514 + n*(22 if n < 2 else 12) + (20 if n >= 2 else 0)
        put(pack(dst, accK(2*s4, kt), accK(2*s4+1, kt)), b, 2, "alu")
        e = vq([store(dst, sKST, (kt >> 1)*8192 + ((kt & 1)*4 + s4)*1024, "kst")], 530 + int(OV("ksp", 21))*n)
        assert b + 6 < 530 + int(OV("ksp", 21))*n and b + 6 < 764 and e < 880
    sH = 32; sUS, sUL = sMF, sHST
    slots[815].alu += [I("s_barrier")]
    if "ct2" in OPT:
        slots[860].alu.append(flat([f"Lb0_{N}:"])); vq([code_part(f"Lb0_{N}", f"Lfin_{N}", 14, 32, vT+10)], 640)
    for q, b in ((16, 690), (17, bar[11] + 30), (18, bar[12]), (19, 815)): e = vq(w_dma(q), b + 1)
    sq(flag_off(sSPIN, 0, False) + [f"v_and_b32 v{vT+2}, 31, v0", f"v_lshlrev_b32 v{vT+2}, {FS}, v{vT+2}"], 780, 800)
    ld = f"buffer_load_dword v{vT+3}, v{vT+2}, {WS}, s{sSPIN} offen sc1"
    vq([VM(ld, "poll2")], max(e, 836))
    sq([f"""
    s_lshl_b32 s{sUS}, s{sJ}, 2
    s_sub_u32 s{sUL}, 60, s{sUS}
    s_add_u32 s{sUS}, s{sUS}, s{sW}
    s_add_u32 s{sUL}, s{sUL}, s{sW}
    s_lshl_b32 s{sH}, s{sUL}, 15
    s_add_u32 s{sH}, s{sH}, {WS_H}
    s_add_u32 s{sH+1}, s{sH}, 16384
    s_lshl_b32 s{sH+2}, s{sUS}, 15
    s_add_u32 s{sH+2}, s{sH+2}, {WS_H}
    s_add_u32 s{sH+3}, s{sH+2}, 16384
    """], 850, 876)
    slots[883].alu += check(ld, f"v_cmp_ne_u32 vcc, 1, v{vT+3}", sADD, "poll2") + [I("s_barrier")]
    def h_ld(s):
        g = []
        for qi in range(4):
            x = [VM(f"buffer_load_dwordx4 {Hf(s, qi)}, v{vL16}, {WS}, s{sH+qi} offen offset:{(s&3)*1024} sc1", ("h", s))]
            if (s & 3) == 3: x.append(f"s_add_u32 s{sH+qi}, s{sH+qi}, 4096")
            g.append(x)
        return g
    for n in range(8):
        t, uu = n >> 1, n & 1; qa = X + (t*4+2*uu)*4
        put(pack(qa, qa, qa+4), 780 + 10*n, 2, "alu")
        e = vq([store(qa, sVST, uu*8192 + t*1024, "vst")], int(OV("va0", 872)) + int(OV("vap", 19))*n)
        assert e < 1020
    e = vq(h_ld(0) + h_ld(1) + h_ld(2) + h_ld(3), 884)
    assert e < 990
    if HE: e = vq(h_ld(4) + h_ld(5) + h_ld(6) + h_ld(7), max(e, 936)); assert e < 1060
    for n in range(8):
        t, uu = n >> 1, n & 1; qa = ACC + (t*4+2*uu)*4
        put(pack(WF + 4*n, qa, qa+4), 1024 + 3*n, 1, "alu") if n < 4 else put(pack(WF + 4*n, qa, qa+4), 1024 + 12 + 3*(n-4), 1, "alu")
        e = vq([store(WF + 4*n, sVST, uu*8192 + (4+t)*1024, "vst")], int(OV("vs0", 1050)) + int(OV("vsp", 20))*n); vend = e
    def kvflag(dst, base, own):
        r = [f"s_lshl_b32 s{dst}, s{sHEAD}, 5", f"s_add_u32 s{dst}, s{dst}, {WS_FLAG + base}"]
        if own: r += [f"s_lshl_b32 s{sT0}, s{sJ}, 2", f"s_add_u32 s{dst}, s{dst}, s{sT0}"]
        return r + [f"s_cmp_eq_u32 s{sW}, 0", f"s_cselect_b32 s{dst}, s{dst}, {OOB:#x}"]
    before_bar(16, [W(vm="kst")])
    sq(kvflag(sSPIN, KF, True), bar[16] - 12, bar[16] - 11)
    vq([publish(vT+2, sSPIN)], bar[16] + 1)
    for p in (0, 4, 8, 12): slots[p*64].alu += st()
    for p in range(15): slots[p*64].alu += st("A")
    for p in range(9, 24): slots[p*64].alu += st("B")
    B0 = 1024
    slots[B0].alu += st()
    sK, sCT = 12, 36; sMK = [24, 26, 32, 34]
    sKO, sCNT, sODW, sFL = 78, 86, 87, 90
    vKB, vVB, ONES, LS, PB, CB, TMP = 2, 3, 12, 16, 32, 192, 224
    sq([f"""
    s_lshl_b32 s{sKO}, s{sHEAD}, 20
    s_add_u32 s{sK}, s{sWS}, s{sKO}
    s_addc_u32 s{sK+1}, s{sWS+1}, 0
    s_sub_u32 s{sK+2}, 16, s{sJ}
    s_lshl_b32 s{sK+2}, s{sK+2}, 16
    s_mov_b32 s{sK+3}, 0x20000
    s_add_u32 s{sKO}, s{sM0K}, {4*32768}
    """], bar[20] + 1, bar[20] + 12)
    vF = LS
    sq(kvflag(sFL, KF, False) + [f"v_and_b32 v{vF}, 7, v0", f"v_lshlrev_b32 v{vF}, 2, v{vF}"], bar[19] - 20, bar[19] - 4)
    ld = f"buffer_load_dword v{vF+1}, v{vF}, {WS}, s{sFL} offen sc1"
    e = vq([VM(ld, "poll3")], bar[19]); assert e < bar[20] - 20
    before_bar(20, check(ld, f"v_cmp_ne_u32 vcc, 1, v{vF+1}", sCNT, "poll3"))
    VB = int(OV("vb", 21)); assert vend < bar[VB] - 20 and vend < bar[20] + 100
    before_bar(VB, [W(vm="vst")])
    sq(kvflag(sFL, VF, True), bar[VB] - 12, bar[VB] - 11)
    e = vq([publish(vF+2, sFL)], bar[VB] + 1)
    sq(kvflag(sFL, VF, False), e + 4, e + 12)
    vq([VM(ld, "poll4")], bar[23] + 1)
    LEAD = int(OV("lead", 120)); LEADH = int(OV("leadh", LEAD)); e = B0
    for s in range(8 if HE else 4, 16, 2):
        q = 16 + s//2
        if q >= 20: e = vq(w_dma(q), max(e, bar[17] + 1, bar[q] - LEAD)); assert e < bar[q] - 50
        e = vq(h_ld(s) + h_ld(s+1), max(e, B0 + (s-6)*32 if s < 12 or not HE else 0, B0 + s*32 - LEADH)); assert e < B0 + s*32 - 50, (s, e)
    hend = e
    vcheck = check(ld, f"v_cmp_ne_u32 vcc, 1, v{vF+1}", sCNT, "poll4")
    def kv_dma(which, tag, pair=None):
        if pair is None: so = sKO; grp = [f"s_and_b32 m0, s{sKO}, 0x1ffff"]
        else: so = sT1; grp = [f"s_add_u32 s{sT1}, s{sM0K}, {pair*32768 + (which == 'V')*16384}", f"s_mov_b32 m0, s{sT1}"]
        g = [grp]
        for n in range(4): g.append([VM(f"buffer_load_dwordx4 v{vL16}, s[{sK}:{sK+3}], s{so} offen offset:{n*1024} {OV('kvf', 'sc1').replace('none', '').replace('+', ' ')} lds", tag)])
        if pair is None: return SEQ(g + [[f"s_sub_u32 s{sKO}, s{sKO}, 16384" if which == "K" else f"s_add_u32 s{sKO}, s{sKO}, 49152"]])
        return SEQ([g[0] + g[1]] + g[2:])
    e = vq(kv_dma("K", ("K", 0), 0) + kv_dma("K", ("K", 1), 1), max(hend, bar[21] + 1))
    sS1, sD1, sD3, sS2, sX0, sX1, sW2 = 80, 7, 81, 91, 85, 83, 16; sD2 = [20, 21, 22, 23]
    vU1, vU2, vUT = TMP+12, TMP+16, TMP+20
    g = srd(sW2, PW2, 1792*1024) + [f"""
    s_lshl_b32 s{sX0}, s2, 2
    s_add_u32 s{sX0}, s{sX0}, s{sW}
    s_and_b32 s{sX0}, s{sX0}, 511
    s_lshr_b32 s{sS1}, s{sX0}, 3
    s_and_b32 s{sX1}, s{sX0}, 7
    s_lshl_b32 s{sD1}, s{sX1}, 7
    s_add_u32 s{sD1}, s{sD1}, s{sS1}
    s_lshl_b32 s{sD1}, s{sD1}, 12
    s_add_u32 s{sD1}, s{sD1}, {WS_WOF}
    s_mul_i32 s{sD3}, s{sX1}, 56
    s_add_u32 s{sD3}, s{sD3}, s{sS1}
    s_lshl_b32 s{sD3}, s{sD3}, 12
    s_add_u32 s{sD3}, s{sD3}, {WS_W2F}
    s_lshl_b32 s{sS1}, s{sS1}, 15
    s_lshl_b32 s{sX1}, s{sX1}, 7
    s_add_u32 s{sS1}, s{sS1}, s{sX1}
    s_and_b32 s{sX1}, s{sX0}, 15
    s_mul_i32 s{sS2}, s{sX1}, {32*3584}
    s_mul_i32 s{sX1}, s{sX1}, 7168
    s_add_u32 s{sX1}, s{sX1}, {WS_W1F}
    s_cmp_lt_u32 s{sX0}, 448
    s_cselect_b32 s{sX1}, s{sX1}, {OOB:#x}
    s_cselect_b32 s{sD3}, s{sD3}, {OOB:#x}
    s_cselect_b32 s{sU2+2}, s{sU2+2}, 0
    s_cmp_ge_u32 s2, 128
    s_cselect_b32 s{sWO+2}, s{sWO+2}, 0
    s_lshr_b32 s{sX0}, s{sX0}, 4
    s_lshl_b32 s{sD2[0]}, s{sX0}, 7
    s_add_u32 s{sS2}, s{sS2}, s{sD2[0]}
    s_lshl_b32 s{sX0}, s{sX0}, 2
    """] + [f"""
    s_mul_i32 s{sODW}, s{sX0}, 9363
    s_lshr_b32 s{sODW}, s{sODW}, 16
    s_mul_i32 s{sODW}, s{sODW}, {114688-7168}
    s_lshl_b32 s{sD2[t]}, s{sX0}, 10
    s_add_u32 s{sD2[t]}, s{sD2[t]}, s{sODW}
    s_add_u32 s{sD2[t]}, s{sD2[t]}, s{sX1}
    s_add_u32 s{sX0}, s{sX0}, 1
    """ for t in range(4)] + [f"""
    v_lshrrev_b32 v{vUT}, 3, v0
    v_and_b32 v{vUT+1}, 7, v0
    v_and_b32 v{vUT+2}, 6, v{vUT}
    v_xor_b32 v{vUT+2}, v{vUT+2}, v{vUT+1}
    v_lshlrev_b32 v{vUT+2}, 4, v{vUT+2}
    v_lshl_add_u32 v{vU1}, v{vUT}, 10, v{vUT+2}
    v_add_u32 v{vU1+1}, 7168, v{vU1}
    v_add_u32 v{vU1+2}, {2*7168}, v{vU1}
    v_add_u32 v{vU1+3}, {3*7168}, v{vU1}
    v_mul_u32_u24 v{vU2}, 3584, v{vUT}
    v_add_u32 v{vU2}, v{vU2}, v{vUT+2}
    v_add_u32 v{vU2+1}, {8*3584-1024}, v{vU2}
    v_add_u32 v{vU2+2}, {2*(8*3584-1024)}, v{vU2}
    v_add_u32 v{vU2+3}, {3*(8*3584-1024)}, v{vU2}
    v_lshrrev_b32 v{vUT+1}, 4, v0
    v_bfe_u32 v{vUT+2}, v0, 2, 2
    v_lshl_add_u32 v{vUT+1}, v{vUT+1}, 2, v{vUT+2}
    v_bfe_u32 v{vUT+2}, v{vUT+1}, 1, 2
    v_lshlrev_b32 v{vUT+1}, 7, v{vUT+1}
    v_lshl_add_u32 v{vUT+1}, v{vUT+2}, 5, v{vUT+1}
    v_and_b32 v{vUT+2}, 3, v0
    v_lshl_add_u32 v{vUT+1}, v{vUT+2}, 3, v{vUT+1}
    s_lshl_b32 s{sX0}, s{sW}, 13
    s_add_u32 s{sX0}, s{sX0}, 131072
    v_add_u32 v{vUT}, s{sX0}, v{vUT+1}
    v_xor_b32 v{vUT+1}, 32, v{vUT}
    v_xor_b32 v{vUT+2}, 64, v{vUT}
    v_xor_b32 v{vUT+3}, 0x60, v{vUT}
    """]
    sq(g[:-1], B0 + 250, B0 + 380); sq(g[-1:], B0 + 388, B0 + 432)
    def side_dma(rnd_):
        r = []
        for u, (vo, sd, so) in enumerate((((vU1, sWO, f"s{sS1}, 0"), (vU1, sWO, f"s{sS1}, {64*32768}")), ((vU1, sW2, f"s{sS1}, 0"), (vU2, sU2, f"s{sS2}, 0")))[rnd_]):
            d = [[VM(f"buffer_load_dwordx4 v{vo+n}, s[{sd}:{sd+3}], s{sT0} offen offset:{n*1024}{NT1} lds", "ud")] for n in range(4)]
            d[0] = [f"s_add_u32 m0, s{sX0}, {u*4096}", f"s_add_u32 s{sT0}, {so}"] + d[0]
            r += SEQ(d)
        return r
    def side_reads(): return [LG(f"ds_read_b64_tr_b16 {ar(192 + u*16 + t*4 + 2*hh, 2)}, v{vUT+t} offset:{u*4096 + hh*2048}", "ur") for u in range(2) for t in range(4) for hh in range(2)]
    def side_stores(rnd_):
        st_ = lambda q, so, off: [VM(f"buffer_store_dwordx4 {ar(192 + 4*q, 4)}, v{vL16}, {WS}, s{so} offen offset:{off} sc1")]
        if rnd_ == 1: return [st_(t, sD3, t*1024) for t in range(4)] + [st_(4+t, sD2[t], 0) for t in range(4)]
        r = [st_(t & 3 | (t & 4), sD1, (t & 3)*1024) for t in range(8)]
        r[3] = r[3] + [f"s_add_u32 s{sD1}, s{sD1}, {64*4096}"]
        return r
    e = vq(side_dma(0), bar[23] + 8); assert e < B0 + 480
    if KE:
        slots[B0 + 479].alu += vcheck + flat([W(vm=[("K", 0), ("K", 1)]), "s_barrier"])
        put([LG(f"ds_read_b128 {ar(aK + 4*f, 4)}, v{vKB} offset:{f*1024}", ("k", f)) for f in range(8)], B0 + 483)
        e = vq(kv_dma("V", ("V", 0), 0) + kv_dma("K", ("K", 2), 2), B0 + 480); assert e < B0 + 512
    init = [f"v_accvgpr_write_b32 a{r}, 0" for r in range(128)] + [f"v_mov_b32 v{ONES+r}, 0x3f803f80" for r in range(4)]
    assert not HE
    spread(slots, init, B0 + 40, bar[21] - 8)
    init = [x.t for x in flat([f"""
    s_lshl_b32 s{sODW}, s{sHEAD}, 12
    s_add_u32 s{sODW}, s{sODW}, {WS_CTX}
    s_lshl_b32 s{sCT}, s{sUL}, 18
    s_add_u32 s{sCT}, s{sCT}, s{sODW}
    s_add_u32 s{sCT+1}, s{sCT}, 131072
    s_lshl_b32 s{sCT+2}, s{sUS}, 18
    s_add_u32 s{sCT+2}, s{sCT+2}, s{sODW}
    s_add_u32 s{sCT+3}, s{sCT+2}, 131072
    v_lshrrev_b32 v{PB+4}, 4, v0
    v_lshlrev_b32 v{PB+4}, 2, v{PB+4}
    v_and_b32 v{PB+5}, 15, v0
    v_sub_u32 v{PB+5}, v{PB+5}, v{PB+4}
    v_cmp_le_i32 s[{sMK[0]}:{sMK[0]+1}], 0, v{PB+5}
    v_cmp_le_i32 s[{sMK[1]}:{sMK[1]+1}], 1, v{PB+5}
    v_cmp_le_i32 s[{sMK[2]}:{sMK[2]+1}], 2, v{PB+5}
    v_cmp_le_i32 s[{sMK[3]}:{sMK[3]+1}], 3, v{PB+5}
    v_mov_b32 v{vKB}, v{vL16}
    v_mov_b32 v{vVB}, v{vL16}
    """])] + [f"v_mov_b32 v{LS+r}, 0" for r in range(2, 16)]
    spread(slots, init, bar[23] - 30, bar[23] + 10)
    spread(slots, [f"v_mov_b32 v{CB+r}, 0" for r in range(32)] + [f"v_mov_b32 v{TMP+31}, 0xff800000"], B0 + 330, B0 + 400)
    def qpack(s4): return sum(([f"v_cvt_pk_bf16_f32 v{acc(2*s4, qi)+k}, v{acc(2*s4 + (k >> 1), qi) + 2*(k & 1)}, v{acc(2*s4 + (k >> 1), qi) + 2*(k & 1) + 1}"
                                for k in range(4)] for qi in range(4)), [])
    for s4 in range(3): spread(slots, qpack(s4), B0 + 448 + 16*s4 + 17, B0 + 448 + 16*s4 + 31 - (s4 == 2))
    if "vmap" in OPT: print("".join(("#" if k in vused else ".") + ("|" if k % 16 == 15 else "") for k in range(len(slots)//4)))
    if "nopack" not in OPT: pack_slots(slots)
    o += emit_slots(slots) + [f"Latt_{N}:"]
    o += st()
    from fatt import attention
    from ftail import tail
    env.update(locals())
    o = resolve_waits(flat(o + attention(env, "prologue")))
    o += attention(env, "main")
    if upto >= 3: o += tail(env, upto)
    return o + finish()
```

```python
from common import *
from flay import *

def fused(name, ts=False, opt="", upto=9):
    N = name
    NT = " nt" if "nt" in opt.split() else ""
    NT1 = " nt" if "nt1" in opt.split() or NT else ""
    NTT = " nt" if "ntt" in opt.split() or NT else ""
    sW, sHEAD, sJ, sC = 3, 4, 5, 6
    sWS = 8; WS = "s[8:11]"
    sT0, sT1 = 76, 77
    pX, pB1, pB2, pOUT = 92, 94, 96, 98
    vL16 = 1
    nstamp = [0]; env = {}
    SM = "A" if "stA" in opt else ("B" if "stB" in opt else ("P" if "stP" in opt else ("T" if "stT" in opt else "")))
    def st(kind=""):
        if not ts or nstamp[0] >= (14 if "dbgout" in opt else 15) or kind != SM: return []
        nstamp[0] += 1
        return [stamp(nstamp[0] - 1)]
    def finish():
        r = []
        if ts:
            r += ["s_waitcnt vmcnt(0)", stamp(15), "s_waitcnt lgkmcnt(0)", "v_mov_b32 v2, s100", "v_mov_b32 v3, s74",
                  "s_lshl_b32 s76, s2, 2", f"s_add_u32 s76, s76, s{sW}", "s_lshl_b32 s77, s76, 3", f"s_add_u32 s77, s77, {WS_TS}",
                  f"buffer_store_dwordx2 v[2:3], off, {WS}, s77", "s_lshl_b32 s77, s76, 6", f"s_add_u32 s77, s77, {WS_TS + 65536}"]
            for q in range(0, 16, 4):
                r += [f"v_mov_b32 v{4+j}, s{44+2*(q+j)}" for j in range(4)]
                r += [f"buffer_store_dwordx4 v[4:7], off, {WS}, s77 offset:{q*4}", "s_nop 1"]
        if ts and "dbgout" in opt:
            wg = next((x[3:] for x in opt.split() if x.startswith("wg=")), "0")
            r += [f"s_cmp_lg_u32 s2, {wg}", f"s_cbranch_scc1 Lend_{N}", f"s_cmp_lg_u32 s{sW}, 3", f"s_cbranch_scc1 Lend_{N}"] + srd(12, 72, 256)
            for q in range(0, 16, 4):
                for j in range(4): r += [f"s_sub_u32 s76, s{44+2*(q+j)}, s100", f"v_mov_b32 v{4+j}, s76"]
                r += [f"buffer_store_dwordx4 v[4:7], off, s[12:15], 0 offset:{q*4}", "s_nop 1"]
        return flat(r + [f"Lend_{N}:", "s_endpgm"]) + env["fallback"] + flat([f"Lcode_end_{N}:", "s_endpgm"])
    def rnd(r0, r1, t): return [f"v_cvt_pk_bf16_f32 v{t}, v{r0}, v{r1}", f"v_lshlrev_b32 v{r0}, 16, v{t}", f"v_and_b32 v{r1}, 0xffff0000, v{t}"]
    HY = "hy" in opt.split()
    XL = "noxl" not in opt.split() and not HY
    FS = int(next((x[3:] for x in opt.split() if x.startswith("fs=")), 5))
    FB = lambda kind: WS_FLAG + 8192 + (kind + 1)*(256 << FS)
    def flag_off(dst, kind, own, line=None):
        if (XL and kind >= 2) or (HY and kind == 3):
            r = [f"s_and_b32 s{dst}, s2, 7", f"s_lshl_b32 s{dst}, s{dst}, {5 + FS}", f"s_add_u32 s{dst}, s{dst}, {FB(kind)}"]
            if own: r += [f"s_lshr_b32 s{sT0}, s2, 3", f"s_lshl_b32 s{sT0}, s{sT0}, {FS}", f"s_add_u32 s{dst}, s{dst}, s{sT0}"]
            return r + [f"s_cmp_eq_u32 s{sW}, 0", f"s_cselect_b32 s{dst}, s{dst}, {OOB:#x}"]
        r = [f"s_lshl_b32 s{dst}, s{sJ if line is None else line}, {5 + FS}", f"s_add_u32 s{dst}, s{dst}, {FB(kind)}"]
        if own: r += [f"s_lshl_b32 s{sT0}, s{sC}, {FS}", f"s_add_u32 s{dst}, s{dst}, s{sT0}"]
        return r + [f"s_cmp_eq_u32 s{sW}, 0", f"s_cselect_b32 s{dst}, s{dst}, {OOB:#x}"]
    def publish(vt, soff):
        return [f"v_min_u32 v{vt}, 1, v0", f"v_lshlrev_b32 v{vt}, 27, v{vt}", f"v_mov_b32 v{vt+1}, 1",
                VM(f"buffer_store_dword v{vt+1}, v{vt}, {WS}, s{soff} offen sc1", "flag")]
    nct = [0]
    def code_part(a, b, lines, sd, vt, emit=VM):
        nct[0] += 1; l = f"Lct{nct[0]}_{N}"
        return [f"s_getpc_b64 s[{sd}:{sd+1}]", f"{l}:", f"s_add_u32 s{sd}, s{sd}, {a}-{l}", f"s_addc_u32 s{sd+1}, s{sd+1}, 0", f"s_mov_b32 s{sd+2}, {b}-{a}",
                f"s_mov_b32 s{sd+3}, 0x20000", f"s_cmp_eq_u32 s{sW}, 0", f"s_cselect_b32 s{sd+2}, s{sd+2}, 0", f"s_lshr_b32 s{sT0}, s2, 3", f"s_mul_i32 s{sT0}, s{sT0}, {lines*128}",
                f"v_min_u32 v{vt}, {lines - 1}, v0", f"v_lshlrev_b32 v{vt}, 7, v{vt}", emit(f"buffer_load_dword v{vt+1}, v{vt}, s[{sd}:{sd+3}], s{sT0} offen")]
    SLP = {"0": [], "1": "s_sleep 1", "3": "s_sleep 3"}[next((x[4:] for x in opt.split() if x.startswith("slp=")), "1")]
    nsp = [0]
    def check(load, test, scnt, tag, mask=None, every=False):
        nsp[0] += 1; k = f"{N}_{nsp[0]}"
        test = [test, "s_cmp_lg_u64 vcc, 0" if mask is None else f"s_and_b64 vcc, vcc, s[{mask}:{mask+1}]"]
        return flat([W(vm=tag), [] if every else [f"s_cmp_lg_u32 s{sW}, 0", f"s_cbranch_scc1 Lok{k}"], test, f"s_cbranch_scc0 Lok{k}", f"s_mov_b32 s{scnt}, 0x80000",
                     f"Lsp{k}:", f"s_sub_u32 s{scnt}, s{scnt}, 1", f"s_cbranch_scc1 Lok{k}", SLP, load, It("s_waitcnt vmcnt(0)", k="cond"), test,
                     f"s_cbranch_scc1 Lsp{k}", f"Lok{k}:"])

    sCKV, sWK, sWV, sMOD, sCV, sX, sDBG, sCODE = 12, 16, 20, 24, 28, 32, 36, 40
    sWQ, sWO, sU2 = sMOD, sCV, sCODE
    sCOFF, sWKOFF, sWVOFF, sKST, sVST, sM0C, sM0K, sMST, sATO, sADD, sMF, sHST, sSPIN, sRS0 = range(78, 92)
    sRS1 = 7; sMEAN0, sMEAN1 = sMST, sATO
    vWD, vTR, vCD, vCR, vT = 2, 6, 10, 14, 16
    WF, X, ACC = 32, 64, 128
    RING, CBUF, CW = 0, 65536, 24576
    MODRED, MODV, HSTA = 49152, CBUF + 16384, CBUF + CW + 16384
    o = ["s_cmp_ge_u32 s2, 256", f"s_cbranch_scc1 Lend_{N}"] + load_args()
    if ts: o += ["s_memrealtime s[100:101]" if not CYC else "s_memtime s[100:101]"]
    o += [f"s_getpc_b64 s[{sCODE}:{sCODE+1}]", f"Lpc_{N}:", f"s_mov_b32 s{sCODE+2}, Lcode_end_{N}-Lpc_{N}", f"s_mov_b32 s{sCODE+3}, 0x20000",
          f"v_lshlrev_b32 v{vT}, 7, v0"]
    CPM = next((x[4:] for x in opt.split() if x.startswith("cpm=")), "part")
    if CPM == "all": o += [VM(f"buffer_load_dword v{vT+1}, v{vT}, s[{sCODE}:{sCODE+3}], 0 offen", "code")]
    elif CPM == "part":
        o += [f"s_lshr_b32 s{sT0}, s2, 3", f"s_mul_i32 s{sT0}, s{sT0}, 3072", f"v_cmp_gt_u32 vcc, 24, v0", f"v_mov_b32 v{vT+1}, {1 << 27}",
              f"v_cndmask_b32 v{vT}, v{vT+1}, v{vT}, vcc", VM(f"buffer_load_dword v{vT+1}, v{vT}, s[{sCODE}:{sCODE+3}], s{sT0} offen", "code")]
    o += [f"""
    v_lshrrev_b32 v{vT+2}, 6, v0
    v_and_b32 v0, 63, v0
    v_readfirstlane_b32 s{sW}, v{vT+2}
    v_lshlrev_b32 v{vL16}, 4, v0
    s_and_b32 s{sHEAD}, s2, 7
    s_lshl_b32 s{sHEAD}, s{sHEAD}, 2
    s_bfe_u32 s{sT0}, s2, 0x20003
    s_add_u32 s{sHEAD}, s{sHEAD}, s{sT0}
    s_lshr_b32 s{sJ}, s2, 5
    s_and_b32 s{sC}, s2, 31
    v_lshrrev_b32 v{vT+2}, 3, v0
    v_and_b32 v{vT+3}, 7, v0
    """]
    r8, c8 = vT+2, vT+3
    o += [f"""
    v_mul_u32_u24 v{vT+4}, 6144, v{r8}
    v_lshl_add_u32 v{vT+4}, v{c8}, 4, v{vT+4}
    v_lshlrev_b32 v{vT+5}, 1, v{r8}
    v_lshrrev_b32 v{vT+6}, 1, v{r8}
    v_xor_b32 v{vT+6}, v{vT+6}, v{c8}
    v_lshlrev_b32 v{vT+6}, 4, v{vT+6}
    v_lshl_add_u32 v{vCD}, v{r8}, 10, v{vT+6}
    v_xor_b32 v{vCD+1}, 64, v{vCD}
    v_add_u32 v{vCD+1}, {7*1024}, v{vCD+1}
    v_add_u32 v{vCD+2}, {14*1024}, v{vCD}
    v_add_u32 v{vCD+3}, {14*1024}, v{vCD+1}
    v_and_b32 v{vT+6}, 2, v{r8}
    v_xor_b32 v{vT+6}, v{vT+6}, v{c8}
    v_lshlrev_b32 v{vT+6}, 4, v{vT+6}
    v_lshl_add_u32 v{vWD}, v{r8}, 13, v{vT+6}
    v_xor_b32 v{vWD+1}, 64, v{vWD}
    v_add_u32 v{vWD+1}, {65536-1024}, v{vWD+1}
    v_add_u32 v{vWD+2}, {2*(65536-1024)}, v{vWD}
    v_add_u32 v{vWD+3}, {2*(65536-1024)}, v{vWD+1}
    s_and_b32 s{sT0}, s2, 3
    s_lshl_b32 s{sT0}, s{sT0}, 7
    s_lshl_b32 s{sT1}, s{sW}, 5
    s_add_u32 s{sMF}, s{sT0}, s{sT1}
    s_lshl_b32 s{sHST}, s{sMF}, 1
    s_mul_i32 s{sMF}, s{sMF}, 6144
    s_lshr_b32 s{sMST}, s2, 2
    s_lshl_b32 s{sMST}, s{sMST}, 7
    s_add_u32 s{sMF}, s{sMF}, s{sMST}
    s_lshl_b32 s{sCOFF}, s{sJ}, 18
    s_lshl_b32 s{sT0}, s{sW}, 16
    s_add_u32 s{sCOFF}, s{sCOFF}, s{sT0}
    s_mul_i32 s{sM0C}, s{sW}, {CW}
    s_add_u32 s{sM0C}, s{sM0C}, {CBUF}
    s_and_b32 s{sT0}, s{sW}, 1
    s_lshl_b32 s{sWKOFF}, s{sT0}, 18
    s_lshr_b32 s{sT1}, s{sW}, 1
    s_lshl_b32 s{sT1}, s{sT1}, 7
    s_add_u32 s{sWKOFF}, s{sWKOFF}, s{sT1}
    s_lshl_b32 s{sT1}, s{sHEAD}, 8
    s_add_u32 s{sWKOFF}, s{sWKOFF}, s{sT1}
    s_lshl_b32 s{sWVOFF}, s{sW}, 18
    s_add_u32 s{sWVOFF}, s{sWVOFF}, s{sT1}
    s_lshl_b32 s{sM0K}, s{sW}, 12
    s_waitcnt lgkmcnt(0)
    """]
    if SM == "P": o += ["s_memrealtime s[92:93]"]
    o += srd(sMOD, P("wmod"), 512*6144) + srd(sCV, P("c"), 1024) + ["s_cmp_lt_u32 s2, 192", f"s_cselect_b32 s{sMOD+2}, s{sMOD+2}, 0"]
    MW, MC, MA, MT = 64, 80, 84, 92
    for n in range(4): o += [VM(f"buffer_load_ushort v{MC+n}, v{vT+5}, s[{sCV}:{sCV+3}], s{sHST} offen offset:{16*n}", "modc")]
    for n in range(4):
        o += [VM(f"buffer_load_dwordx4 v[{MW+4*n}:{MW+4*n+3}], v{vT+4}, s[{sMOD}:{sMOD+3}], s{sMF} offen{NT1}", ("modw", n))]
        if n < 3: o += [f"s_add_u32 s{sMF}, s{sMF}, {8*6144}"]
    o += srd(sCKV, P("ckv"), 2*MB) + srd(sWK, P("wuk"), 4*MB)
    def c_dma(i):
        g = []
        for hh in range(2):
            grp = [f"s_add_u32 m0, s{sM0C}, {(i % 3)*8192 + hh*4096}", f"s_add_u32 s{sRS0}, s{sCOFF}, {i*128 + hh*32768}"]
            for n in range(4):
                grp.append(VM(f"buffer_load_dwordx4 v{vCD+n}, s[{sCKV}:{sCKV+3}], s{sRS0} offen offset:{n*1024}{' nt' if 'ntc' in opt.split() else ''} lds", ("c", i)))
                g.append(grp); grp = []
        return SEQ(g)
    def page(q): return RING + (q % 4) * 16384
    def w_dma(q):
        sTW = sRS1 if q <= 2 else sT1
        if q < 8: sd, off, m0 = sWK, f"s_add_u32 s{sTW}, s{sWKOFF}, {q*64*8192}", f"s{sM0K}, {page(q)}"
        elif q < 16:
            sd, off = sWV, f"s_add_u32 s{sTW}, s{sWVOFF}, {((q-8)&3)*128*8192 + ((q-8)>>2)*128}"
            m0 = f"s{sM0K}, {page(q)}" if q < 12 else f"s{sM0C}, {(q-12)*4096}"
        else: sd, off, m0 = sWQ, f"s_add_u32 s{sTW}, s{sWKOFF}, {(q-16)*64*8192}", f"s{sM0K}, {(q-16)*16384}"
        g = []; grp = [f"s_add_u32 m0, {m0}", off]
        for n in range(4):
            grp.append(VM(f"buffer_load_dwordx4 v{vWD+n}, s[{sd}:{sd+3}], s{sTW} offen offset:{n*1024}{' nt' if (q < 8 and 'ntk' in opt.split()) or (8 <= q < int(OV('ntv', 0))) else NT} lds", ("w", q)))
            g.append(grp); grp = []
        return SEQ(g)
    OPT = opt.split()
    def OV(k, d): return next((x.split("=")[1] for x in OPT if x.startswith(k + "=")), d)
    o += [c_dma(0), w_dma(0)] + (["s_memrealtime s[94:95]"] if SM == "P" else []) + srd(sWV, P("wuv"), 4*MB)
    OPT = opt.split()
    def OV(k, d): return next((x.split("=")[1] for x in OPT if x.startswith(k + "=")), d)
    vTD = vT+1
    vPC, vPW = 96, 97
    def pf_addr(vc, vw):
        return [f"v_lshrrev_b32 v{vw}, 4, v0", f"v_and_b32 v{vc}, 15, v0", f"v_lshlrev_b32 v{vc}, 4, v{vc}",
                f"v_lshl_add_u32 v{vw+1}, v{vw}, 13, v{vc}", f"v_lshl_add_u32 v{vc}, v{vw}, 10, v{vc}", f"v_mov_b32 v{vw}, v{vw+1}"]
    def pf_c(dummy):
        g = []; grp = [f"s_add_u32 m0, s{sM0C}, {dummy}", f"s_bfe_u32 s{sRS0}, s2, 0x20003", f"s_lshl_b32 s{sRS0}, s{sRS0}, 16", f"s_lshl_b32 s{sRS1}, s{sJ}, 18",
                       f"s_add_u32 s{sRS0}, s{sRS0}, s{sRS1}", f"s_lshl_b32 s{sRS1}, s{sW}, 14", f"s_add_u32 s{sRS0}, s{sRS0}, s{sRS1}"]
        for col in range(1, 4):
            for rg in range(4):
                grp += [f"s_add_u32 s{sRS1}, s{sRS0}, {rg*4096 + col*256}", VM(f"buffer_load_dwordx4 v{vPC}, s[{sCKV}:{sCKV+3}], s{sRS1} offen lds", "pf")]
                g.append(grp); grp = []
        return SEQ(g)
    def pf_w(sd, vw, dummy, first, sRS0=sRS0, sRS1=sRS1, reg=None):
        g = []; grp = [f"s_add_u32 m0, s{sM0C}, {dummy}", f"s_lshr_b32 s{sRS0}, s{sW}, 1", f"s_lshl_b32 s{sRS0}, s{sRS0}, 3", f"s_add_u32 s{sRS0}, s{sRS0}, s{sJ}",
                       f"s_lshl_b32 s{sRS0}, s{sRS0}, 1", f"s_and_b32 s{sRS1}, s{sW}, 1", f"s_add_u32 s{sRS0}, s{sRS0}, s{sRS1}", f"s_lshl_b32 s{sRS0}, s{sRS0}, 15",
                       f"s_lshl_b32 s{sRS1}, s{sHEAD}, 8", f"s_add_u32 s{sRS0}, s{sRS0}, s{sRS1}"]
        for q in range(first, 8, 2):
            if reg is not None and q == first: grp = grp[1:]
            grp += [f"s_add_u32 s{sRS1}, s{sRS0}, {q*64*8192}", VM(f"buffer_load_dwordx4 v{vw}, s[{sd}:{sd+3}], s{sRS1} offen{NTT} lds" if reg is None else
                                                                    f"buffer_load_dwordx4 {vr(reg, 4)}, v{vw}, s[{sd}:{sd+3}], s{sRS1} offen{NTT}", "pf")]
            g.append(grp); grp = []
        return SEQ(g)
    PF = "nopf" not in OPT
    o += pf_addr(vPC, vPW)
    pfa = (pf_w(sWK, vPW, 16384, 2) if "pfk" in OPT else []) + (pf_c(16384) if "pfc" in OPT else [])
    NPRE = int(OV("npre", 2))
    ilv = sum((c_dma(i) + w_dma(i) for i in range(1, NPRE + 1)), []) if "ilv" in OPT else []
    pro0 = len(o)
    o += ([] if ilv else [c_dma(1), w_dma(1)]) + ([pfa] if "pfpre" in OPT else []) + (["s_memrealtime s[96:97]"] if SM == "P" else []) + srd(sWS, P("ws"), WS_SIZE)
    KF, VF, SF = 0, 5120, 6144
    vZA, vZD = vT+14, vT+15
    o += [f"""
    v_lshlrev_b32 v{vZA}, {8 + FS}, v0
    s_lshl_b32 s{sT0}, s2, {FS}
    s_add_u32 s{sT0}, s{sT0}, 8192
    v_add_u32 v{vZA}, s{sT0}, v{vZA}
    s_lshl_b32 s{sT0}, s{sHEAD}, 5
    s_lshl_b32 s{sT1}, s{sJ}, 2
    s_add_u32 s{sT0}, s{sT0}, s{sT1}
    v_writelane_b32 v{vZA}, s{sT0}, 0
    s_add_u32 s{sT0}, s{sT0}, {VF}
    v_writelane_b32 v{vZA}, s{sT0}, 5
    s_lshl_b32 s{sT0}, s2, 2
    s_add_u32 s{sT0}, s{sT0}, {SF}
    v_writelane_b32 v{vZA}, s{sT0}, 6
    v_mov_b32 v{vZD}, {1 << 27}
    v_cmp_gt_u32 vcc, 7, v0
    v_cndmask_b32 v{vZA}, v{vZD}, v{vZA}, vcc
    v_mov_b32 v{vZD}, 0
    s_mov_b32 s{sSPIN}, {WS_FLAG}
    s_cmp_eq_u32 s{sW}, 0
    s_cselect_b32 s{sSPIN}, s{sSPIN}, {OOB:#x}
    """, VM(f"buffer_store_dword v{vZD}, v{vZA}, {WS}, s{sSPIN} offen sc1", "zero")]
    for i in (32768, 65536) if CPM == "all" else ():
        o += [f"s_mov_b32 s{sT0}, {i}", VM(f"buffer_load_dword v{vT+1}, v{vT}, s[{sCODE}:{sCODE+3}], s{sT0} offen", "code2")]
    o += srd(sX, P("x"), 2*MB) + srd(sDBG, P("dbg"), 256) + srd(sWQ, P("wq"), 4*MB) + srd(sWO, P("wo"), 4*MB)
    EARLY = "s_waitcnt lgkmcnt(0)\ns_mov_b32 s66, s92\ns_mov_b32 s68, s94\ns_mov_b32 s72, s96" if SM == "P" else ""
    PW2 = 100 if not ts else 74
    o += srd(sU2, P("w1"), 1792*1024) + [f"""
    s_mov_b64 s[{PW2}:{PW2+1}], s[{P('w2')}:{P('w2')+1}]
    {EARLY}
    s_mov_b64 s[{pX}:{pX+1}], s[{P('x')}:{P('x')+1}]
    s_mov_b64 s[{pB1}:{pB1+1}], s[{P('b1')}:{P('b1')+1}]
    s_mov_b64 s[{pB2}:{pB2+1}], s[{P('b2')}:{P('b2')+1}]
    s_mov_b64 s[{pOUT}:{pOUT+1}], s[{P('out')}:{P('out')+1}]
    v_lshrrev_b32 v{vT+6}, 4, v0
    v_bfe_u32 v{vT+7}, v0, 2, 2
    v_lshl_add_u32 v{vT+8}, v{vT+6}, 3, v{vT+7}
    v_lshlrev_b32 v{vT+8}, 7, v{vT+8}
    v_and_b32 v{vT+9}, 3, v0
    v_lshl_add_u32 v{vT+8}, v{vT+9}, 3, v{vT+8}
    v_and_b32 v{vT+9}, 1, v{vT+6}
    v_lshlrev_b32 v{vT+9}, 1, v{vT+9}
    v_lshrrev_b32 v{vT+10}, 1, v{vT+7}
    v_or_b32 v{vT+9}, v{vT+9}, v{vT+10}
    v_lshl_add_u32 v{vTR}, v{vT+9}, 5, v{vT+8}
    v_xor_b32 v{vTR+1}, 32, v{vTR}
    v_xor_b32 v{vTR+2}, 64, v{vTR}
    v_xor_b32 v{vTR+3}, 0x60, v{vTR}
    v_and_b32 v{vT+7}, 15, v0
    v_lshrrev_b32 v{vT+8}, 1, v{vT+7}
    v_xor_b32 v{vT+8}, v{vT+8}, v{vT+6}
    v_lshlrev_b32 v{vT+8}, 4, v{vT+8}
    v_lshl_add_u32 v{vT+8}, v{vT+7}, 7, v{vT+8}
    v_add_u32 v{vCR}, s{sM0C}, v{vT+8}
    v_xor_b32 v{vCR+1}, 64, v{vCR}
    s_lshl_b32 s{sKST}, s{sHEAD}, 20
    s_lshl_b32 s{sT0}, s{sJ}, 17
    s_add_u32 s{sKST}, s{sKST}, s{sT0}
    s_lshl_b32 s{sT0}, s{sW}, 15
    s_add_u32 s{sKST}, s{sKST}, s{sT0}
    s_add_u32 s{sVST}, s{sKST}, 16384
    s_and_b32 s{sT0}, s2, 3
    s_mul_i32 s{sT0}, s{sT0}, 12288
    s_lshl_b32 s{sMST}, s{sMST}, 1
    s_add_u32 s{sMST}, s{sMST}, s{sT0}
    s_add_u32 s{sMST}, s{sMST}, {WS_MODP}
    s_cmp_lt_u32 s2, 192
    s_cselect_b32 s{sT0}, s{sW}, 1
    s_cmp_eq_u32 s{sT0}, 0
    s_cselect_b32 s{sMST}, s{sMST}, {OOB:#x}
    s_and_b32 s{sATO}, s2, 63
    s_lshl_b32 s{sATO}, s{sATO}, 2
    s_cmp_eq_u32 s{sW}, 0
    s_cselect_b32 s{sATO}, s{sATO}, 256
    s_cmp_ge_u32 s{sW}, 2
    s_cselect_b32 s{sADD}, 1.0, 0
    """]
    o += st("P") + [W(vm="code" if SM == "P" else "modc")] + st("P") + [W(vm="modc")] + st("P")
    for n in range(4): o += [f"v_lshlrev_b32 v{MC+n}, 16, v{MC+n}"]
    for n in range(4): o += [f"v_mul_f32 v{MT+n}, {fbits(-1.4426950408889634)}, v{MC+n}"]
    for n in range(4): o += [f"v_exp_f32 v{MT+n}, v{MT+n}"]
    for n in range(4): o += [f"v_add_f32 v{MT+n}, 1.0, v{MT+n}"]
    for n in range(4): o += [f"v_rcp_f32 v{MT+n}, v{MT+n}"]
    for n in range(4): o += [f"v_mul_f32 v{MC+n}, v{MC+n}, v{MT+n}"]
    for n in range(4): o += [f"v_cvt_pk_bf16_f32 v{MC+n}, v{MC+n}, v{MC+n}"]
    for n in range(4): o += [f"v_lshlrev_b32 v{MC+n}, 16, v{MC+n}"]
    for n in range(4):
        o += [W(vm=[("modw", n)])]
        for j in range(4):
            o += [f"v_lshlrev_b32 v{MT}, 16, v{MW+4*n+j}", f"v_and_b32 v{MT+1}, 0xffff0000, v{MW+4*n+j}"]
            if n == 0: o += [f"v_mul_f32 v{MA+2*j}, v{MC}, v{MT}", f"v_mul_f32 v{MA+2*j+1}, v{MC}, v{MT+1}"]
            else: o += [f"v_fmac_f32 v{MA+2*j}, v{MC+n}, v{MT}", f"v_fmac_f32 v{MA+2*j+1}, v{MC+n}, v{MT+1}"]
    for j in range(8): o += [f"v_add_f32_dpp v{MA+j}, v{MA+j}, v{MA+j} row_ror:8 row_mask:0xf bank_mask:0xf"]
    for j in range(0, 8, 2): o += [f"v_permlane16_swap_b32 v{MA+j}, v{MA+j+1}"]
    for j in range(0, 8, 2): o += [f"v_add_f32 v{MA+j}, v{MA+j}, v{MA+j+1}"]
    for j in (0, 4): o += [f"v_permlane32_swap_b32 v{MA+j}, v{MA+j+2}"]
    for j in (0, 4): o += [f"v_add_f32 v{MA+j}, v{MA+j}, v{MA+j+2}"]
    vL4, vL256, vONE = vT+4, vT+5, vT+6
    o += [f"""
    v_lshrrev_b32 v{MT}, 4, v0
    v_lshl_add_u32 v{MT}, v{c8}, 3, v{MT}
    v_lshlrev_b32 v{MT}, 2, v{MT}
    s_lshl_b32 s{sT0}, s{sW}, 8
    v_add_u32 v{MT}, s{sT0}, v{MT}
    """, LG(f"ds_write_b32 v{MT}, v{MA} offset:{MODRED}", "mr"), LG(f"ds_write_b32 v{MT}, v{MA+4} offset:{MODRED+16}", "mr"),
    f"v_lshlrev_b32 v{vL4}, 2, v0", f"v_lshlrev_b32 v{vL256}, 8, v0", f"v_mov_b32 v{vONE}, 1"]
    def Cfrag(kt, s): return ar((s*4+kt)*4, 4)
    def c_reads(i):
        return [LG(f"ds_read_b128 {Cfrag(kt, 2*i+sp)}, v{vCR+sp} offset:{(i % 3)*8192 + kt*2048}", ("cr", i)) for sp in range(2) for kt in range(4)]
    if ilv:
        rest = scc_groups(o[pro0:]); n_ = len(rest)
        for k in reversed(range(len(ilv))): rest.insert((k*n_)//len(ilv), ilv[k])
        o = o[:pro0] + rest
    o += st("P") + [W(vm=[("c", 0)])] + st("P") + [c_reads(0), W(vm=[("w", 0)], lg="mr")] + st("P") + ["s_barrier"] + st("P")

    QA, HR = 64, 192
    aK, aV = 128, 160
    def accK(dt, kt): return ACC + (dt*4+kt)*4
    def acc(dt, qi): return QA + (dt*4+qi)*4
    HE = "he" in OPT
    def Hf(s, qi): return vr((0 if HE and 4 <= s < 8 else HR) + ((s & 3)*4+qi)*4, 4, "a" if s & 4 else "v")
    frags = []
    for s2 in range(0, 16, 2):
        for dt in range(8):
            for s in (s2, s2+1):
                frags.append((s >> 1, page(s >> 1) + (dt >> 2)*8192 + (s & 1)*4096, dt & 3, [(accK(dt, kt), "W", Cfrag(kt, s), s == 0) for kt in range(4)]))
    for s2 in range(0, 16, 2):
        for t in range(4):
            for s in (s2, s2+1):
                frags.append((8 + (s >> 2), page(8 + (s >> 2)) + (s & 3)*4096, t, [(X + (t*4+kt)*4, Cfrag(kt, s), "W", s == 0) for kt in range(4)]))
    for hb in range(2):
        for s2 in range(0, 16, 2):
            for t in (2*hb, 2*hb+1):
                for s in (s2, s2+1):
                    frags.append((12 + (s >> 2), CBUF + (s & 3)*CW + (s >> 2)*4096, t, [(ACC + (t*4+kt)*4, Cfrag(kt, s), "W", s == 0) for kt in range(4)]))
    for s2 in range(0, 16, 2):
        for dt in range(8):
            for s in (s2, s2+1):
                frags.append((16 + (s >> 1), (s >> 1)*16384 + (dt >> 2)*8192 + (s & 1)*4096, dt & 3, [(acc(dt, qi), "W", Hf(s, qi), s == 0) for qi in range(4)]))
    KE = "noke" not in OPT
    def wreg(f): return ("v", WF + (f % 8)*4) if f < 256 else (("a", aV + (f % 8)*4) if KE else ("a", aK + (f % 16)*4))
    slots = []
    CH = "nochain" not in OPT
    for f in range(0, len(frags), 2):
        for n, k in ([(n, k) for n in range(4) for k in range(2)] if CH else [(n, k) for k in range(2) for n in range(4)]):
            fl, r = wreg(f + k); wf = vr(r, 4, fl); d, a_, b_, first = frags[f + k][3][n]
            sl = Slot(I(f"v_mfma_f32_16x16x32_bf16 {vr(d,4)}, {wf if a_ == 'W' else a_}, {wf if b_ == 'W' else b_}, {'0' if first else vr(d,4)}"))
            if n == 0 and k == 0:
                sl.pre.append(W(lg=[("wf", f+1)]))
                if f < 128 and f % 16 == 0: sl.pre.append(W(lg=[("cr", f//16)]))
                if f >= 256 and f % 16 == 0: sl.pre.append(W(vm=[("h", (f-256)//8 + 1)]))
            slots.append(sl)
    LA = 4
    wbase = [0]; bar = {}
    vTR2 = vCD
    def frag_reads(f):
        q, a, t, _ = frags[f]; g = []
        fl, r = wreg(f)
        if a >= 131072: return g, [LG(f"ds_read_b64_tr_b16 {vr(r+2*hh, 2, fl)}, v{vTR2+t} offset:{a - 131072 + hh*512}", ("wf", f)) for hh in range(2)]
        wb = a & 65536
        if wb != wbase[0]:
            g += [f"v_xor_b32 v{vTR+i}, 0x10000, v{vTR+i}" for i in range(4)]; wbase[0] = wb
        return g, [LG(f"ds_read_b64_tr_b16 {vr(r+2*hh, 2, fl)}, v{vTR+t} offset:{a - wb + hh*512}", ("wf", f)) for hh in range(2)]
    for f in range(LA):
        g, rd = frag_reads(f); o += g + rd
    valid = {0}
    VAL = {12: [12, 13, 14, 15], 16: [16, 17, 18, 19]}
    for f in range(LA, len(frags)):
        q = frags[f][0]; i = (f - LA)*4
        if q not in valid or (q > 16 and f % 16 == 0):
            qs = VAL.get(q, [q]); valid.update(qs); bar[q] = i - 1
            slots[i-1].alu += [W(vm=[("w", x) for x in qs]), I("s_barrier")]
        g, rd = frag_reads(f)
        slots[i-1].alu += flat(g)
        slots[i].mem.append(rd[0]); slots[i+1].mem.append(rd[1])
    def put(groups, b, step=4, where="mem"):
        for n, g in enumerate(groups): getattr(slots[b + step*n], where).append(g)
    def up(b, r):
        while (b & 3) != r: b += 1
        return b
    def lq(groups, b):
        put(groups, up(b, 3)); return up(b, 3) + 4*(len(groups) - 1)
    vused = set()
    def vq(groups, b, stride=1):
        k = up(b, 2) >> 2; last = b
        for g in groups:
            while k in vused: k += 1
            vused.add(k); slots[4*k + 2].mem.append(g); last = 4*k + 2; k += stride
        return last
    def sq(text, b, e): spread(slots, SEQ(scc_groups(text)), b, e)
    def before_bar(q, items): slots[bar[q]].alu[0:0] = flat(items)
    def pre(items, groups): groups[0] = flat(items) + groups[0]; return groups
    cend = {}
    for p in range(7):
        rd = c_reads(p+1); rd[0] = [W(vm=[("c", p+1)]), rd[0]]
        cend[p+1] = lq(rd, p*64 + int(OV('crd', 20)))
    MR = vT + 8
    vq([[W(lg="mr2"), f"v_add_f32 v{MR}, v{MR}, v{MR+1}", f"v_add_f32 v{MR+2}, v{MR+2}, v{MR+3}", f"v_add_f32 v{MR}, v{MR}, v{MR+2}",
         VM(f"buffer_store_dword v{MR}, v{vL4}, {WS}, s{sMST} offen sc1", "mst")]], 14)
    sq([f"v_and_b32 v{vTR2+i}, 0xffff, v{vTR+i}" for i in range(4)] + [f"v_or_b32 v{vTR2+i}, 0x20000, v{vTR2+i}" for i in range(4)], 520, 540)
    lq([LG(f"ds_read2st64_b32 v[{MR}:{MR+1}], v{vL4} offset0:192 offset1:193", "mr2"),
        LG(f"ds_read2st64_b32 v[{MR+2}:{MR+3}], v{vL4} offset0:194 offset1:195", "mr2")], 0)
    vq([[W(vm=["mst", "zero"]), VM(f"buffer_atomic_add v{vONE}, v{vL256}, s[{sDBG}:{sDBG+3}], s{sATO} offen sc1")]], 100)
    XR, F0, F1, TT, AV, BV, PP, MF = 64, 72, 80, 88, 92, 100, 108, 124
    sq([f"""
    s_sub_u32 s{sHST}, 15, s{sJ}
    s_cmp_lt_u32 s{sC}, 16
    s_cselect_b32 s{sHST}, s{sJ}, s{sHST}
    s_lshl_b32 s{sHST}, s{sHST}, 4
    s_and_b32 s{sMF}, s{sC}, 15
    s_add_u32 s{sHST}, s{sHST}, s{sMF}
    s_lshl_b32 s{sMF}, s{sHST}, 13
    s_lshl_b32 s{sSPIN}, s{sW}, 11
    s_add_u32 s{sMF}, s{sMF}, s{sSPIN}
    """], 20, 40)
    xe = vq([VM(f"buffer_load_dwordx4 {vr(XR+4*k,4)}, v{vL16}, s[{sX}:{sX+3}], s{sMF} offen offset:{1024*k}{' nt' if 'ntx' in OPT else ''}", "x") for k in range(2)], 104)

    g = []
    for j in range(4):
        for F, xr in ((F0, XR), (F1, XR+4)): g += [f"v_lshlrev_b32 v{F+2*j}, 16, v{xr+j}", f"v_and_b32 v{F+2*j+1}, 0xffff0000, v{xr+j}"]
    g[0] = [W(vm="x"), g[0]]
    def reduce2(sa, sb, post):
        r = []
        for m in ("quad_perm:[1,0,3,2]", "quad_perm:[2,3,0,1]", "row_ror:4", "row_ror:8"):
            r += [f"v_add_f32_dpp v{TT}, v{TT}, v{TT} {m} row_mask:0xf bank_mask:0xf", f"v_add_f32_dpp v{TT+1}, v{TT+1}, v{TT+1} {m} row_mask:0xf bank_mask:0xf"]
        r += [f"v_permlane16_swap_b32 v{TT}, v{TT+1}", f"v_add_f32 v{TT}, v{TT}, v{TT+1}", f"v_mov_b32 v{TT+1}, v{TT}",
              f"v_permlane32_swap_b32 v{TT}, v{TT+1}", f"v_add_f32 v{TT}, v{TT}, v{TT+1}"] + post
        return r + [f"v_readlane_b32 s{sa}, v{TT}, 0", f"v_readlane_b32 s{sb}, v{TT}, 16"]
    for j in range(1, 8):
        for k, F in enumerate((F0, F1)): g += [f"v_add_f32 v{TT+k}, v{F if j == 1 else TT+k}, v{F+j}"]
    g += reduce2(sMEAN0, sMEAN1, [f"v_mul_f32 v{TT}, {fbits(1/512)}, v{TT}"])
    for j in range(8):
        for F, sm in ((F0, sMEAN0), (F1, sMEAN1)): g += [f"v_subrev_f32 v{F+j}, s{sm}, v{F+j}"]
    for j in range(8):
        for k, F in enumerate((F0, F1)): g += [f"v_mul_f32 v{TT+k}, v{F}, v{F}" if j == 0 else f"v_fmac_f32 v{TT+k}, v{F+j}, v{F+j}"]
    g += reduce2(sRS0, sRS1, [f"v_mov_b32 v{TT+1}, {fbits(EPS)}", f"v_fmac_f32 v{TT+1}, {fbits(1/512)}, v{TT}", f"v_rsq_f32 v{TT}, v{TT+1}"])
    for j in range(8):
        for F, rs in ((F0, sRS0), (F1, sRS1)): g += [f"v_mul_f32 v{F+j}, s{rs}, v{F+j}"]
    assert xe < 200
    spread(slots, g, max(xe + 60, 200), 360)
    ld = f"buffer_load_dword v{MR}, v{vL4}, s[{sDBG}:{sDBG+3}], 0 offen sc1"
    vq([VM(ld, "poll1")], 226)
    e = 0
    if pfa and "pfpre" not in OPT:
        for k, g in enumerate(pfa): slots[2*k + 1].alu.append(g)
        e = 2*len(pfa) + 2
    CP = int(OV("cp", 0))
    sPC, sPW = sWVOFF + 0, sVST + 0
    def cp_c(i): return [[VM(f"buffer_load_dwordx4 v[28:31], v{vCD}, s[{sCKV}:{sCKV+3}], s0 offen offset:{i*128}", "pf")] + ([f"s_xor_b32 s0, s0, 8192"])for n in range(2)] if CP and i < 8 else []
    def cp_w(q): return [[VM(f"buffer_load_dwordx4 v[28:31], v{vPW}, s[{sWK}:{sWK+3}], s1 offen", "pf"), f"s_add_u32 s1, s1, {2*64*8192}"]] if CP > 1 and q < 8 else []
    if CP:
        def vx(groups, b): put(groups, up(b, 0))
        vx(cp_c(3) + cp_w(3), 0); e = vq(c_dma(2), 0); e = vq(w_dma(2), e)
        for i in range(3, 8):
            vx(cp_c(i+1) + (cp_w(i+2) if i & 1 else []), max(e, cend.get(i-3, 0) + 8) - int(OV("cpl", 0)))
            e = vq(pre([W(lg=[("cr", i-3)])], c_dma(i)), max(e, cend.get(i-3, 0) + 8)); assert e < (i-1)*64 + 10, (i, e)
            if i < 7: e = vq(w_dma(i), max(e, bar[i-2]))
    BU = int(OV("burst", 0))
    if BU:
        first = c_dma(2) + w_dma(2) + c_dma(3)
        for k, g in enumerate(first): slots[k*BU//2].mem.append(g)
        for k in range((len(first)*BU//2)//4 + 1): vused.add(k)
        e = len(first)*BU//2
    elif not CP: e = vq(c_dma(2), e); e = vq(w_dma(2), e)
    if not BU and not CP: e = vq(c_dma(3), e)
    if not CP: e = vq(w_dma(3), max(e, bar[1]))
    for i in range(4, 8 if not CP else 0):
        e = vq(pre([W(lg=[("cr", i-3)])], c_dma(i)), max(e, cend[i-3] + 8))
        assert e < (i-1)*64 - 10, (i, e)
        if i < 7: e = vq(w_dma(i), max(e, bar[i-2]))
    before_bar(5, check(ld, f"v_cmp_gt_u32 vcc, 4, v{MR}", sSPIN, "poll1"))
    sq([f"s_lshl_b32 s{sMF}, s{sW}, 10", f"s_add_u32 s{sMF}, s{sMF}, {WS_MODP}"], bar[5] - 8, bar[5] - 4)
    e = vq([[VM(f"buffer_load_dwordx4 {vr(PP+4*n,4)}, v{vL16}, {WS}, s{sMF} offen sc1", "pp"), f"s_add_u32 s{sMF}, s{sMF}, 12288"] for n in range(4)], bar[5] + 1)
    g = [[VM(f"buffer_load_dword v{MF+n}, v{vL4}, {WS}, s{sMF} offen sc1", "mf"), f"s_add_u32 s{sMF}, s{sMF}, 12288"] for n in range(4)]
    e = vq(pre([f"s_lshl_b32 s{sMF}, s{sC}, 10", f"s_lshl_b32 s{sSPIN}, s{sW}, 8", f"s_add_u32 s{sMF}, s{sMF}, s{sSPIN}",
                f"s_mul_i32 s{sSPIN}, s{sJ}, 12288", f"s_add_u32 s{sSPIN}, s{sSPIN}, s{sMF}", f"s_add_u32 s{sSPIN}, s{sSPIN}, {WS_MODF}",
                f"s_add_u32 s{sMF}, s{sMF}, {WS_MODP}", f"s_cmp_lt_u32 s{sC}, 12",
                f"s_cselect_b32 s{sMF}, s{sMF}, {OOB:#x}", f"s_cselect_b32 s{sSPIN}, s{sSPIN}, {OOB:#x}"], g), e)
    assert e < 372
    e = vq(w_dma(7), max(e, bar[5])); assert e < bar[7] - 60
    if PF and "nopv" not in OPT: e = vq(pre([W(lg=[("cr", 5)])], pf_w(sWV, vPW, 16384 + 6144, 0, sX, sX+1)), max(e, cend[5] + 8))
    e = vq(w_dma(8), max(e, bar[6]))
    if PF and "pq1" in OPT: e = vq(pf_w(sWQ, vPW, 16384 + 6144, 0, sX, sX+1), e + 16); assert e < bar[7]
    e = vq(w_dma(9), max(e, bar[7]))
    if PF and OV("pqs", None):
        sq([f"v_mov_b32 v{vT+12}, v{vPW}"], 300, 301); e_ = vq(pf_w(sWQ, vT+12, 0, 0, sX+2, sX+3, reg=vCD), int(OV("pqs", 0)), int(OV("pqd", 8))); assert e_ < 516
    elif PF and "pq1" not in OPT and "nopq" not in OPT:
        sq([f"v_mov_b32 v{vT+12}, v{vPW}"], 400, 401); e = vq(pf_w(sWQ, vT+12, 16384 + 6144, 0, sX, sX+1), max(e, int(OV("pqa", 448)))); assert e < bar[8]
    e = e; e = vq(w_dma(10), max(e, bar[8] + 14))

    if "w12early" not in OPT: e = vq(w_dma(11), max(e, bar[9] + 6)); e = vq(w_dma(12), e + 4); e = vq(w_dma(13), e + 4); e = vq(w_dma(14), e + 4); e = vq(w_dma(15), e + 4)
    else: e = vq(w_dma(12), e + 8); e = vq(w_dma(11), max(e, bar[9] + 6)); e = vq(w_dma(13), e + 8); e = vq(w_dma(14), e + 12); e = vq(w_dma(15), e + 12)
    assert e < 690
    g = [[W(vm="pp"), f"v_add_f32 v{PP}, v{PP}, v{PP+4}"]] + [f"v_add_f32 v{PP+j}, v{PP+j}, v{PP+4+j}" for j in range(1, 4)]
    g += [f"v_add_f32 v{PP+8+j}, v{PP+8+j}, v{PP+12+j}" for j in range(4)] + [f"v_add_f32 v{PP+j}, v{PP+j}, v{PP+8+j}" for j in range(4)]
    g += rnd(PP, PP+1, PP+4) + rnd(PP+2, PP+3, PP+5) + [f"v_add_f32 v{PP+j}, s{sADD}, v{PP+j}" for j in range(4)]
    g += rnd(PP, PP+1, PP+4) + rnd(PP+2, PP+3, PP+5) + [f"v_mul_f32 v{PP+j}, {fbits(CSCALE)}, v{PP+j}" for j in range(4)]
    g += [f"s_lshl_b32 s{sMF}, s{sW}, 10", f"s_add_u32 s{sMF}, s{sMF}, {MODV}", f"v_add_u32 v{PP+4}, s{sMF}, v{vL16}", f"v_lshlrev_b32 v{TT}, 5, v0", f"v_add_u32 v{TT}, {MODV}, v{TT}"]
    g += [[W(vm="mf"), f"v_add_f32 v{MF}, v{MF}, v{MF+1}"], f"v_add_f32 v{MF+2}, v{MF+2}, v{MF+3}", f"v_add_f32 v{MF}, v{MF}, v{MF+2}",
          f"v_cvt_pk_bf16_f32 v{MF}, v{MF}, v{MF}", f"v_lshlrev_b32 v{vT+11}, 16, v{MF}"]
    spread(slots, g, 372, 424)
    lq([LG(f"ds_write_b128 v{PP+4}, {vr(PP,4)}", "mv")], 425)
    assert bar[7] > 427
    before_bar(7, [W(lg="mv")])
    put([LG(f"ds_read_b128 {vr(r,4)}, v{TT} offset:{off}", "ab") for r, off in ((BV, 0), (BV+4, 16), (AV, 2048), (AV+4, 2064))], bar[7] + 1, 2)
    g = []
    for j in range(8):
        for F in (F0, F1): g += [f"v_fma_f32 v{F+j}, v{F+j}, v{AV+j}, v{BV+j}"]
    g[0] = [W(lg="ab"), g[0]]
    for j in range(4):
        for F, xr in ((F0, XR), (F1, XR+4)): g += [f"v_cvt_pk_bf16_f32 v{xr+j}, v{F+2*j}, v{F+2*j+1}"]
    HA, HG, HD = vT+2, vT+3, vT+12
    g += [f"s_lshr_b32 s{sMF}, s{sW}, 1", f"s_mul_i32 s{sMF}, s{sMF}, {CW - 4160}", f"s_mul_i32 s{sADD}, s{sW}, 2080", f"s_add_u32 s{sMF}, s{sMF}, s{sADD}",
          f"s_add_u32 s{sMF}, s{sMF}, {HSTA}", f"v_add_u32 v{TT}, s{sMF}, v{vL16}"]
    g += [x.t for x in flat([f"""
    v_and_b32 v{HG}, 7, v0
    v_lshrrev_b32 v{TT+2}, 3, v0
    v_mul_u32_u24 v{HA}, 1040, v{HG}
    v_lshrrev_b32 v{TT+3}, 2, v{HG}
    v_mul_u32_u24 v{TT+3}, {CW - 4160}, v{TT+3}
    v_add_u32 v{HA}, v{HA}, v{TT+3}
    v_lshl_add_u32 v{HA}, v{TT+2}, 4, v{HA}
    s_lshl_b32 s{sMF}, s{sW}, 8
    s_add_u32 s{sMF}, s{sMF}, {HSTA}
    v_add_u32 v{HA}, s{sMF}, v{HA}
    v_lshlrev_b32 v{HG}, 4, v{HG}
    v_and_b32 v{TT+3}, 3, v{TT+2}
    v_lshl_add_u32 v{HG}, v{TT+3}, 8, v{HG}
    v_lshrrev_b32 v{TT+2}, 2, v{TT+2}
    v_lshl_add_u32 v{HG}, v{TT+2}, 10, v{HG}
    s_and_b32 s{sMF}, s{sHST}, 1
    s_lshr_b32 s{sHST}, s{sHST}, 1
    s_lshl_b32 s{sHST}, s{sHST}, 14
    s_lshl_b32 s{sMF}, s{sMF}, 7
    s_add_u32 s{sHST}, s{sHST}, s{sMF}
    s_lshl_b32 s{sMF}, s{sW}, 12
    s_add_u32 s{sHST}, s{sHST}, s{sMF}
    s_add_u32 s{sHST}, s{sHST}, {WS_H}
    """])]
    spread(slots, g, bar[7] + 12, 488)
    put([LG(f"ds_write_b128 v{TT}, {vr(XR+4*k,4)} offset:{1040*k}", "hw") for k in range(2)], 489, 2)
    assert bar[8] > 491
    before_bar(8, [W(lg="hw")])
    put([LG(f"ds_read_b128 {vr(XR+56+4*k,4)}, v{HA} offset:{128*k}", "hr") for k in range(2)], bar[8] + 1, 1)
    e = vq([VM(f"buffer_store_dword v{vT+11}, v{vL4}, {WS}, s{sSPIN} offen sc1", "hst")] +
           [[W(lg="hr"), VM(f"buffer_store_dwordx4 {vr(XR+56+4*k,4)}, v{HG}, {WS}, s{sHST} offen offset:{2048*k} sc1", "hst")] for k in range(2)], bar[8] + 1)
    assert e < 524
    HB_ = int(OV("hb", 10))
    before_bar(HB_, [W(vm="hst")])
    sq(flag_off(sMF, 0, True), bar[HB_] - 12, bar[HB_] - 11)
    vq([publish(vT+2, sMF)], bar[HB_] + 1)
    def pack(dst, qa, qb):
        return [f"v_cvt_pk_bf16_f32 v{dst}, v{qa}, v{qa+1}", f"v_cvt_pk_bf16_f32 v{dst+1}, v{qa+2}, v{qa+3}",
                f"v_cvt_pk_bf16_f32 v{dst+2}, v{qb}, v{qb+1}", f"v_cvt_pk_bf16_f32 v{dst+3}, v{qb+2}, v{qb+3}"]
    def store(src, sreg, off, tag):
        return [f"s_add_u32 s{sT0}, s{sreg}, {off & ~4095}", VM(f"buffer_store_dwordx4 {vr(src,4)}, v{vL16}, {WS}, s{sT0} offen offset:{off & 4095} sc1", tag)]
    def at23(e):
        while (e & 3) < 2: e += 1
        return e
    kl = [(s4, kt) for s4 in (2, 3, 0, 1) for kt in range(4)]
    for n, (s4, kt) in enumerate(kl):
        dst = accK({2: 4, 3: 6, 0: 5, 1: 7}[s4], kt)
        b = 514 + n*(22 if n < 2 else 12) + (20 if n >= 2 else 0)
        put(pack(dst, accK(2*s4, kt), accK(2*s4+1, kt)), b, 2, "alu")
        e = vq([store(dst, sKST, (kt >> 1)*8192 + ((kt & 1)*4 + s4)*1024, "kst")], 530 + int(OV("ksp", 21))*n)
        assert b + 6 < 530 + int(OV("ksp", 21))*n and b + 6 < 764 and e < 880
    sH = 32; sUS, sUL = sMF, sHST
    slots[815].alu += [I("s_barrier")]
    if "ct2" in OPT:
        slots[860].alu.append(flat([f"Lb0_{N}:"])); vq([code_part(f"Lb0_{N}", f"Lfin_{N}", 14, 32, vT+10)], 640)
    for q, b in ((16, 690), (17, bar[11] + 30), (18, bar[12]), (19, 815)): e = vq(w_dma(q), b + 1)
    sq(flag_off(sSPIN, 0, False) + [f"v_and_b32 v{vT+2}, 31, v0", f"v_lshlrev_b32 v{vT+2}, {FS}, v{vT+2}"], 780, 800)
    ld = f"buffer_load_dword v{vT+3}, v{vT+2}, {WS}, s{sSPIN} offen sc1"
    vq([VM(ld, "poll2")], max(e, 836))
    sq([f"""
    s_lshl_b32 s{sUS}, s{sJ}, 2
    s_sub_u32 s{sUL}, 60, s{sUS}
    s_add_u32 s{sUS}, s{sUS}, s{sW}
    s_add_u32 s{sUL}, s{sUL}, s{sW}
    s_lshl_b32 s{sH}, s{sUL}, 15
    s_add_u32 s{sH}, s{sH}, {WS_H}
    s_add_u32 s{sH+1}, s{sH}, 16384
    s_lshl_b32 s{sH+2}, s{sUS}, 15
    s_add_u32 s{sH+2}, s{sH+2}, {WS_H}
    s_add_u32 s{sH+3}, s{sH+2}, 16384
    """], 850, 876)
    slots[883].alu += check(ld, f"v_cmp_ne_u32 vcc, 1, v{vT+3}", sADD, "poll2") + [I("s_barrier")]
    def h_ld(s):
        g = []
        for qi in range(4):
            x = [VM(f"buffer_load_dwordx4 {Hf(s, qi)}, v{vL16}, {WS}, s{sH+qi} offen offset:{(s&3)*1024} sc1", ("h", s))]
            if (s & 3) == 3: x.append(f"s_add_u32 s{sH+qi}, s{sH+qi}, 4096")
            g.append(x)
        return g
    for n in range(8):
        t, uu = n >> 1, n & 1; qa = X + (t*4+2*uu)*4
        put(pack(qa, qa, qa+4), 780 + 10*n, 2, "alu")
        e = vq([store(qa, sVST, uu*8192 + t*1024, "vst")], int(OV("va0", 872)) + int(OV("vap", 19))*n)
        assert e < 1020
    e = vq(h_ld(0) + h_ld(1) + h_ld(2) + h_ld(3), 884)
    assert e < 990
    if HE: e = vq(h_ld(4) + h_ld(5) + h_ld(6) + h_ld(7), max(e, 936)); assert e < 1060
    for n in range(8):
        t, uu = n >> 1, n & 1; qa = ACC + (t*4+2*uu)*4
        put(pack(WF + 4*n, qa, qa+4), 1024 + 3*n, 1, "alu") if n < 4 else put(pack(WF + 4*n, qa, qa+4), 1024 + 12 + 3*(n-4), 1, "alu")
        e = vq([store(WF + 4*n, sVST, uu*8192 + (4+t)*1024, "vst")], int(OV("vs0", 1050)) + int(OV("vsp", 20))*n); vend = e
    def kvflag(dst, base, own):
        r = [f"s_lshl_b32 s{dst}, s{sHEAD}, 5", f"s_add_u32 s{dst}, s{dst}, {WS_FLAG + base}"]
        if own: r += [f"s_lshl_b32 s{sT0}, s{sJ}, 2", f"s_add_u32 s{dst}, s{dst}, s{sT0}"]
        return r + [f"s_cmp_eq_u32 s{sW}, 0", f"s_cselect_b32 s{dst}, s{dst}, {OOB:#x}"]
    KB_ = int(OV("kb", 16))
    before_bar(KB_, [W(vm="kst")])
    sq(kvflag(sSPIN, KF, True), bar[KB_] - 12, bar[KB_] - 11)
    vq([publish(vT+2, sSPIN)], bar[KB_] + 1)
    for p in (0, 4, 8, 12): slots[p*64].alu += st()
    for p in range(15): slots[p*64].alu += st("A")
    for p in range(9, 24): slots[p*64].alu += st("B")
    B0 = 1024
    slots[B0].alu += st()
    sK, sCT = 12, 36; sMK = [24, 26, 32, 34]
    sKO, sCNT, sODW, sFL = 78, 86, 87, 90
    vKB, vVB, ONES, LS, PB, CB, TMP = 2, 3, 12, 16, 32, 192, 224
    sq([f"""
    s_lshl_b32 s{sKO}, s{sHEAD}, 20
    s_add_u32 s{sK}, s{sWS}, s{sKO}
    s_addc_u32 s{sK+1}, s{sWS+1}, 0
    s_sub_u32 s{sK+2}, 16, s{sJ}
    s_lshl_b32 s{sK+2}, s{sK+2}, 16
    s_mov_b32 s{sK+3}, 0x20000
    s_add_u32 s{sKO}, s{sM0K}, {4*32768}
    """], bar[20] + 1, bar[20] + 12)
    vF = LS
    sq(kvflag(sFL, KF, False) + [f"v_and_b32 v{vF}, 7, v0", f"v_lshlrev_b32 v{vF}, 2, v{vF}"], bar[19] - 20, bar[19] - 4)
    ld = f"buffer_load_dword v{vF+1}, v{vF}, {WS}, s{sFL} offen sc1"
    e = vq([VM(ld, "poll3")], bar[19]); assert e < bar[20] - 20
    before_bar(20, check(ld, f"v_cmp_ne_u32 vcc, 1, v{vF+1}", sCNT, "poll3"))
    VB = int(OV("vb", 21)); assert vend < bar[VB] - 20 and vend < bar[20] + 100
    before_bar(VB, [W(vm="vst")])
    sq(kvflag(sFL, VF, True), bar[VB] - 12, bar[VB] - 11)
    e = vq([publish(vF+2, sFL)], bar[VB] + 1)
    sq(kvflag(sFL, VF, False), e + 4, e + 12)
    vq([VM(ld, "poll4")], bar[23] + 1)
    LEAD = int(OV("lead", 120)); LEADH = int(OV("leadh", LEAD)); e = B0
    for s in range(8 if HE else 4, 16, 2):
        q = 16 + s//2
        if q >= 20: e = vq(w_dma(q), max(e, bar[17] + 1, bar[q] - LEAD)); assert e < bar[q] - 50
        e = vq(h_ld(s) + h_ld(s+1), max(e, B0 + (s-6)*32 if s < 12 or not HE else 0, B0 + s*32 - LEADH)); assert e < B0 + s*32 - 50, (s, e)
    hend = e
    vcheck = check(ld, f"v_cmp_ne_u32 vcc, 1, v{vF+1}", sCNT, "poll4")
    def kv_dma(which, tag, pair=None):
        if pair is None: so = sKO; grp = [f"s_and_b32 m0, s{sKO}, 0x1ffff"]
        else: so = sT1; grp = [f"s_add_u32 s{sT1}, s{sM0K}, {pair*32768 + (which == 'V')*16384}", f"s_mov_b32 m0, s{sT1}"]
        g = [grp]
        for n in range(4): g.append([VM(f"buffer_load_dwordx4 v{vL16}, s[{sK}:{sK+3}], s{so} offen offset:{n*1024} {OV('kvf', 'sc1').replace('none', '').replace('+', ' ')} lds", tag)])
        if pair is None: return SEQ(g + [[f"s_sub_u32 s{sKO}, s{sKO}, 16384" if which == "K" else f"s_add_u32 s{sKO}, s{sKO}, 49152"]])
        return SEQ([g[0] + g[1]] + g[2:])
    e = vq(kv_dma("K", ("K", 0), 0) + kv_dma("K", ("K", 1), 1), max(hend, bar[21] + 1))
    sS1, sD1, sD3, sS2, sX0, sX1, sW2 = 80, 7, 81, 91, 85, 83, 16; sD2 = [20, 21, 22, 23]
    vU1, vU2, vUT = TMP+12, TMP+16, TMP+20
    g = srd(sW2, PW2, 1792*1024) + [f"""
    s_lshl_b32 s{sX0}, s2, 2
    s_add_u32 s{sX0}, s{sX0}, s{sW}
    s_and_b32 s{sX0}, s{sX0}, 511
    s_lshr_b32 s{sS1}, s{sX0}, 3
    s_and_b32 s{sX1}, s{sX0}, 7
    s_lshl_b32 s{sD1}, s{sX1}, 7
    s_add_u32 s{sD1}, s{sD1}, s{sS1}
    s_lshl_b32 s{sD1}, s{sD1}, 12
    s_add_u32 s{sD1}, s{sD1}, {WS_WOF}
    s_mul_i32 s{sD3}, s{sX1}, 56
    s_add_u32 s{sD3}, s{sD3}, s{sS1}
    s_lshl_b32 s{sD3}, s{sD3}, 12
    s_add_u32 s{sD3}, s{sD3}, {WS_W2F}
    s_lshl_b32 s{sS1}, s{sS1}, 15
    s_lshl_b32 s{sX1}, s{sX1}, 7
    s_add_u32 s{sS1}, s{sS1}, s{sX1}
    s_and_b32 s{sX1}, s{sX0}, 15
    s_mul_i32 s{sS2}, s{sX1}, {32*3584}
    s_mul_i32 s{sX1}, s{sX1}, 7168
    s_add_u32 s{sX1}, s{sX1}, {WS_W1F}
    s_cmp_lt_u32 s{sX0}, 448
    s_cselect_b32 s{sX1}, s{sX1}, {OOB:#x}
    s_cselect_b32 s{sD3}, s{sD3}, {OOB:#x}
    s_cselect_b32 s{sU2+2}, s{sU2+2}, 0
    s_cmp_ge_u32 s2, 128
    s_cselect_b32 s{sWO+2}, s{sWO+2}, 0
    s_lshr_b32 s{sX0}, s{sX0}, 4
    s_lshl_b32 s{sD2[0]}, s{sX0}, 7
    s_add_u32 s{sS2}, s{sS2}, s{sD2[0]}
    s_lshl_b32 s{sX0}, s{sX0}, 2
    """] + [f"""
    s_mul_i32 s{sODW}, s{sX0}, 9363
    s_lshr_b32 s{sODW}, s{sODW}, 16
    s_mul_i32 s{sODW}, s{sODW}, {114688-7168}
    s_lshl_b32 s{sD2[t]}, s{sX0}, 10
    s_add_u32 s{sD2[t]}, s{sD2[t]}, s{sODW}
    s_add_u32 s{sD2[t]}, s{sD2[t]}, s{sX1}
    s_add_u32 s{sX0}, s{sX0}, 1
    """ for t in range(4)] + [f"""
    v_lshrrev_b32 v{vUT}, 3, v0
    v_and_b32 v{vUT+1}, 7, v0
    v_and_b32 v{vUT+2}, 6, v{vUT}
    v_xor_b32 v{vUT+2}, v{vUT+2}, v{vUT+1}
    v_lshlrev_b32 v{vUT+2}, 4, v{vUT+2}
    v_lshl_add_u32 v{vU1}, v{vUT}, 10, v{vUT+2}
    v_add_u32 v{vU1+1}, 7168, v{vU1}
    v_add_u32 v{vU1+2}, {2*7168}, v{vU1}
    v_add_u32 v{vU1+3}, {3*7168}, v{vU1}
    v_mul_u32_u24 v{vU2}, 3584, v{vUT}
    v_add_u32 v{vU2}, v{vU2}, v{vUT+2}
    v_add_u32 v{vU2+1}, {8*3584-1024}, v{vU2}
    v_add_u32 v{vU2+2}, {2*(8*3584-1024)}, v{vU2}
    v_add_u32 v{vU2+3}, {3*(8*3584-1024)}, v{vU2}
    v_lshrrev_b32 v{vUT+1}, 4, v0
    v_bfe_u32 v{vUT+2}, v0, 2, 2
    v_lshl_add_u32 v{vUT+1}, v{vUT+1}, 2, v{vUT+2}
    v_bfe_u32 v{vUT+2}, v{vUT+1}, 1, 2
    v_lshlrev_b32 v{vUT+1}, 7, v{vUT+1}
    v_lshl_add_u32 v{vUT+1}, v{vUT+2}, 5, v{vUT+1}
    v_and_b32 v{vUT+2}, 3, v0
    v_lshl_add_u32 v{vUT+1}, v{vUT+2}, 3, v{vUT+1}
    s_lshl_b32 s{sX0}, s{sW}, 13
    s_add_u32 s{sX0}, s{sX0}, 131072
    v_add_u32 v{vUT}, s{sX0}, v{vUT+1}
    v_xor_b32 v{vUT+1}, 32, v{vUT}
    v_xor_b32 v{vUT+2}, 64, v{vUT}
    v_xor_b32 v{vUT+3}, 0x60, v{vUT}
    """]
    sq(g[:-1], B0 + 250, B0 + 380); sq(g[-1:], B0 + 388, B0 + 432)
    def side_dma(rnd_):
        r = []
        for u, (vo, sd, so) in enumerate((((vU1, sWO, f"s{sS1}, 0"), (vU1, sWO, f"s{sS1}, {64*32768}")), ((vU1, sW2, f"s{sS1}, 0"), (vU2, sU2, f"s{sS2}, 0")))[rnd_]):
            d = [[VM(f"buffer_load_dwordx4 v{vo+n}, s[{sd}:{sd+3}], s{sT0} offen offset:{n*1024}{NT1} lds", "ud")] for n in range(4)]
            d[0] = [f"s_add_u32 m0, s{sX0}, {u*4096}", f"s_add_u32 s{sT0}, {so}"] + d[0]
            r += SEQ(d)
        return r
    def side_reads(): return [LG(f"ds_read_b64_tr_b16 {ar(192 + u*16 + t*4 + 2*hh, 2)}, v{vUT+t} offset:{u*4096 + hh*2048}", "ur") for u in range(2) for t in range(4) for hh in range(2)]
    def side_stores(rnd_):
        st_ = lambda q, so, off: [VM(f"buffer_store_dwordx4 {ar(192 + 4*q, 4)}, v{vL16}, {WS}, s{so} offen offset:{off} sc1")]
        if rnd_ == 1: return [st_(t, sD3, t*1024) for t in range(4)] + [st_(4+t, sD2[t], 0) for t in range(4)]
        r = [st_(t & 3 | (t & 4), sD1, (t & 3)*1024) for t in range(8)]
        r[3] = r[3] + [f"s_add_u32 s{sD1}, s{sD1}, {64*4096}"]
        return r
    e = vq(side_dma(0), bar[23] + 8); assert e < B0 + 480
    if KE:
        slots[B0 + 479].alu += vcheck + flat([W(vm=[("K", 0), ("K", 1)]), "s_barrier"])
        put([LG(f"ds_read_b128 {ar(aK + 4*f, 4)}, v{vKB} offset:{f*1024}", ("k", f)) for f in range(8)], B0 + 483)
        e = vq(kv_dma("V", ("V", 0), 0) + kv_dma("K", ("K", 2), 2), B0 + 480); assert e < B0 + 512
    init = [f"v_accvgpr_write_b32 a{r}, 0" for r in range(128)] + [f"v_mov_b32 v{ONES+r}, 0x3f803f80" for r in range(4)]
    assert not HE
    spread(slots, init, B0 + 40, bar[21] - 8)
    init = [x.t for x in flat([f"""
    s_lshl_b32 s{sODW}, s{sHEAD}, 12
    s_add_u32 s{sODW}, s{sODW}, {WS_CTX}
    s_lshl_b32 s{sCT}, s{sUL}, 18
    s_add_u32 s{sCT}, s{sCT}, s{sODW}
    s_add_u32 s{sCT+1}, s{sCT}, 131072
    s_lshl_b32 s{sCT+2}, s{sUS}, 18
    s_add_u32 s{sCT+2}, s{sCT+2}, s{sODW}
    s_add_u32 s{sCT+3}, s{sCT+2}, 131072
    v_lshrrev_b32 v{PB+4}, 4, v0
    v_lshlrev_b32 v{PB+4}, 2, v{PB+4}
    v_and_b32 v{PB+5}, 15, v0
    v_sub_u32 v{PB+5}, v{PB+5}, v{PB+4}
    v_cmp_le_i32 s[{sMK[0]}:{sMK[0]+1}], 0, v{PB+5}
    v_cmp_le_i32 s[{sMK[1]}:{sMK[1]+1}], 1, v{PB+5}
    v_cmp_le_i32 s[{sMK[2]}:{sMK[2]+1}], 2, v{PB+5}
    v_cmp_le_i32 s[{sMK[3]}:{sMK[3]+1}], 3, v{PB+5}
    v_mov_b32 v{vKB}, v{vL16}
    v_mov_b32 v{vVB}, v{vL16}
    """])] + [f"v_mov_b32 v{LS+r}, 0" for r in range(2, 16)]
    spread(slots, init, bar[23] - 30, bar[23] + 10)
    spread(slots, [f"v_mov_b32 v{CB+r}, 0" for r in range(32)] + [f"v_mov_b32 v{TMP+31}, 0xff800000"], B0 + 330, B0 + 400)
    def qpack(s4): return sum(([f"v_cvt_pk_bf16_f32 v{acc(2*s4, qi)+k}, v{acc(2*s4 + (k >> 1), qi) + 2*(k & 1)}, v{acc(2*s4 + (k >> 1), qi) + 2*(k & 1) + 1}"
                                for k in range(4)] for qi in range(4)), [])
    for s4 in range(3): spread(slots, qpack(s4), B0 + 448 + 16*s4 + 17, B0 + 448 + 16*s4 + 31 - (s4 == 2))
    if "vmap" in OPT: print("".join(("#" if k in vused else ".") + ("|" if k % 16 == 15 else "") for k in range(len(slots)//4)))
    if "nopack" not in OPT: pack_slots(slots)
    o += emit_slots(slots) + [f"Latt_{N}:"]
    o += st()
    from fatt import attention
    from ftail import tail
    env.update(locals())
    o = resolve_waits(flat(o + attention(env, "prologue")))
    o += attention(env, "main")
    if upto >= 3: o += tail(env, upto)
    return o + finish()
```
